```python
import torch

def _softmax(x, axis=-1):
    return torch.softmax(x, dim=axis)
def _gelu(x):
    return torch.nn.functional.gelu(x, approximate="tanh")
def _silu(x):
    return torch.nn.functional.silu(x)
def _sigmoid(x):
    return torch.sigmoid(x)
def _layernorm(x, axis=-1, eps=1e-5):
    m = x.mean(dim=axis, keepdim=True)
    v = x.var(dim=axis, keepdim=True, unbiased=False)
    return (x - m) / torch.sqrt(v + eps)
def _scatter_add(tgt, idx, src, axis=0):
    return tgt.clone().index_add_(axis, idx, src)
def _segment_sum(src, seg, n):
    out = torch.zeros((n,) + src.shape[1:], dtype=src.dtype)
    return out.index_add_(0, seg, src)
def _pad(x, pw):
    flat = tuple(v for pair in reversed(pw) for v in pair)
    return torch.nn.functional.pad(x, flat)

kernel_name = 'recurrent_scan__spectral_gfnet__geglu_ffn__prompt'

def setup_inputs():

    _w = (lambda a: (lambda t: t.to(torch.bfloat16) if t.is_floating_point() else t)(torch.as_tensor(a)))
    def _A_setup():
        B, S, D = 1, 2048, 1024
        Df = D // 2 + 1
        return {
            "x": _w((lambda *s: torch.randn(*s, dtype=torch.bfloat16) * 0.05)(B, S, D)),
            "w_r": _w((lambda *s: torch.randn(*s, dtype=torch.bfloat16) * 0.05)(S, Df) * 0.02),
            "w_i": _w((lambda *s: torch.randn(*s, dtype=torch.bfloat16) * 0.05)(S, Df) * 0.02),
        }
    _A_in = _A_setup()

    def _B_setup():
        B, S, D, F = 1, 2048, 1024, 3584
        return {
            "x": _w((lambda *s: torch.randn(*s, dtype=torch.bfloat16) * 0.05)(B, S, D)),
            "w_gate": _w((lambda *s: torch.randn(*s, dtype=torch.bfloat16) * 0.05)(D, F)),
            "w_up": _w((lambda *s: torch.randn(*s, dtype=torch.bfloat16) * 0.05)(D, F)),
            "w_down": _w((lambda *s: torch.randn(*s, dtype=torch.bfloat16) * 0.05)(F, D)),
        }
    _B_in = _B_setup()

    return {
        "A_x": _A_in["x"],
        "A_w_r": _A_in["w_r"],
        "A_w_i": _A_in["w_i"],
        "B_x": _B_in["x"],
        "B_w_gate": _B_in["w_gate"],
        "B_w_up": _B_in["w_up"],
        "B_w_down": _B_in["w_down"],
    }

def reference(A_x, A_w_r, A_w_i, B_x, B_w_gate, B_w_up, B_w_down):
    def _A_ref(x, w_r, w_i):
        B, S, D = x.shape
        X = (lambda x, axes=(-2,-1): torch.fft.rfft2(x.float(), dim=axes))(x, axes=(-2, -1))
        W = w_r + 1j * w_i
        X = X * W
        y = (lambda x, s, axes=(-2,-1): torch.fft.irfft2(x, s=s, dim=axes).to(torch.bfloat16))(X, (S, D), axes=(-2, -1))
        return y

    def _B_ref(x, w_gate, w_up, w_down):
        return (_gelu(x @ w_gate) * (x @ w_up)) @ w_down

    x = A_x
    xn = _layernorm(x, axis=-1)
    s = _A_ref(xn, A_w_r, A_w_i)
    g = _silu(_B_ref(xn, B_w_gate, B_w_up, B_w_down))
    return x + s * g
```

```python
import re

TRANS = ("v_exp_f32", "v_log_f32", "v_rcp_f32", "v_rsq_f32", "v_sqrt_f32", "v_sin_f32", "v_cos_f32")
REG_RE = re.compile(r"(?<![\w.])([vas])(?:(\d+)|\[(\d+):(\d+)\])(?![\w])")

def regs_of(op):
    op = op.strip()
    out = set()
    if op in ("vcc",): return {("s", 106), ("s", 107)}
    if op == "exec": return {("s", 126), ("s", 127)}
    if op == "m0": return {("s", 124)}
    for m in REG_RE.finditer(op):
        f = m.group(1)
        if m.group(2) is not None: out.add((f, int(m.group(2))))
        else:
            for i in range(int(m.group(3)), int(m.group(4)) + 1): out.add((f, i))
    return out

def split_ops(s):
    ops, depth, cur = [], 0, ""
    for ch in s:
        if ch in "[(": depth += 1
        if ch in "])": depth -= 1
        if ch == "," and depth == 0: ops.append(cur.strip()); cur = ""
        else: cur += ch
    if cur.strip(): ops.append(cur.strip())
    return ops

class Ins:
    def __init__(self, text):
        self.text = text
        t = text.split(";")[0].strip()
        sp = t.split(None, 1)
        self.mn = sp[0]
        rest = sp[1] if len(sp) > 1 else ""
        ops = split_ops(rest)
        self.mods = ""
        if ops:
            parts = ops[-1].split(None, 1)
            ops[-1] = parts[0]
            if len(parts) > 1: self.mods = parts[1]
        self.ops = ops
        mn = self.mn
        self.mfma = mn.startswith("v_mfma")
        self.valu = mn.startswith("v_") and not self.mfma
        self.trans = any(mn.startswith(x) for x in TRANS)
        self.vmem = mn.startswith("buffer_") or mn.startswith("global_")
        self.ds = mn.startswith("ds_")
        self.salu = mn.startswith("s_")
        self.dpp = "_dpp" in mn
        self.sdwa = "_sdwa" in mn or "op_sel" in self.mods
        self.lds_dma = self.vmem and (" lds" in (" " + self.mods) or "load_lds" in mn)
        self.passes = 0
        if self.mfma: self.passes = 8 if "32x32" in mn else 4
        R = [regs_of(o) for o in ops]
        self.w, self.r = set(), set()
        self.srcc = set(); self.ab = set(); self.stdata = set()
        if self.mfma:
            self.w = R[0]; self.ab = R[1] | R[2]; self.srcc = R[3]; self.r = self.ab | self.srcc
        elif self.valu:
            if mn.startswith("v_permlane"):
                self.w = R[0] | R[1]; self.r = R[0] | R[1]
            elif mn.startswith(("v_add_co", "v_sub_co", "v_addc_co")):
                self.w = R[0] | R[1]
                for x in R[2:]: self.r |= x
            elif mn == "v_nop": pass
            else:
                self.w = R[0]
                for x in R[1:]: self.r |= x
                if mn.startswith(("v_fmac", "v_dot2c", "v_writelane")) or self.dpp: self.r |= R[0]
        elif self.vmem:
            if "store" in mn or "atomic" in mn:
                for x in R: self.r |= x
                if mn.startswith("buffer_"): self.stdata = R[0]
                else: self.stdata = R[1]
                if not (mn.endswith("x4") or mn.endswith("x3")): self.stdata = set()
            elif self.lds_dma:
                for x in R: self.r |= x
                self.r |= {("s", 124)}
            elif mn.startswith(("buffer_inv", "buffer_wb")): pass
            else:
                self.w = R[0]
                for x in R[1:]: self.r |= x
                if "d16" in mn: self.r |= R[0]
        elif self.ds:
            if mn.startswith(("ds_read", "ds_bpermute", "ds_permute", "ds_swizzle")):
                self.w = R[0]
                for x in R[1:]: self.r |= x
            else:
                for x in R: self.r |= x
        elif self.salu:
            if mn.startswith(("s_cmp", "s_waitcnt", "s_nop", "s_barrier", "s_branch", "s_cbranch", "s_endpgm", "s_setprio", "s_sleep", "s_bitcmp")):
                for x in R: self.r |= x
            else:
                if R: self.w = R[0]
                for x in R[1:]: self.r |= x
                if "saveexec" in mn: self.w = self.w | {("s", 126), ("s", 127)}
        self.states = 1
        if mn == "s_nop": self.states = int(ops[0], 0) + 1

def need(p, c):
    n = 0
    if p.mfma:
        big = p.passes == 8
        if c.mfma:
            if p.w & c.ab: n = max(n, 12 if big else 8)
            if p.w & c.srcc:
                if not (p.w == c.srcc and p.passes == c.passes): n = max(n, 10 if big else 6)
            if (p.w & c.w) and not (p.w == c.srcc and p.passes == c.passes): n = max(n, 10 if big else 6)
        elif c.valu or c.vmem or c.ds:
            if p.w & (c.r | c.w): n = max(n, 12 if big else 8)
            if c.valu and (p.srcc & c.w): n = max(n, 7 if big else 3)
    if p.valu:
        vw = {x for x in p.w if x[0] != "s"}
        sw = {x for x in p.w if x[0] == "s"}
        if c.mfma and (vw & c.r): n = max(n, 2)
        if c.valu:
            if p.trans and not c.trans and (vw & c.r): n = max(n, 1)
            if p.sdwa and (vw & (c.r | c.w)): n = max(n, 1)
            if c.mn.startswith(("v_readlane", "v_readfirstlane")) and (vw & c.r): n = max(n, 1)
            if (c.dpp or c.mn.startswith("v_permlane")) and (vw & c.r): n = max(n, 2)
            if sw & c.r:
                n = max(n, 4 if c.mn.startswith(("v_readlane", "v_writelane")) else 2)
        if c.vmem and (sw & c.r): n = max(n, 5)
        if c.salu and (sw & c.r): n = max(n, 1)
    if p.salu and (("s", 124) in p.w) and c.lds_dma: n = max(n, 1)
    if p.stdata and (p.stdata & c.w): n = max(n, 2 if (c.valu or c.mfma) else 1)
    return n

class Asm:
    def __init__(self):
        self.items = []
    def __call__(self, s, *a):
        for line in s.strip().split("\n"):
            line = line.strip()
            if not line: continue
            if line.endswith(":"): self.items.append(("l", line[:-1]))
            elif line.startswith((".", ";")): self.items.append(("d", line))
            else: self.items.append(("i", line))
    def label(self, l): self.items.append(("l", l))
    def raw(self, s): self.items.append(("d", s))
    def fix(self, verbose=False):
        out = []; hist = []
        inserted = 0
        for kind, t in self.items:
            if kind != "i":
                out.append((kind, t)); continue
            ins = Ins(t)
            dist = 0; req = 0
            for p in reversed(hist[-24:]):
                nd = need(p, ins)
                if nd - dist > req: req = nd - dist
                dist += p.states
                if dist >= 20: break
            while req > 0:
                k = min(req, 16)
                nop = Ins("s_nop %d" % (k - 1)); out.append(("i", nop.text)); hist.append(nop); req -= k; inserted += k
            out.append((kind, t)); hist.append(ins)
            if ins.mn in ("s_endpgm", "s_branch"): hist = []
        self.items = out
        idx = {t: i for i, (k, t) in enumerate(out) if k == "l"}
        for i, (k, t) in enumerate(out):
            if k == "i" and t.startswith(("s_branch", "s_cbranch")):
                tgt = t.split()[1]
                before = [Ins(x[1]) for x in out[max(0, i - 40):i + 1] if x[0] == "i"][-20:]
                after = [Ins(x[1]) for x in out[idx[tgt]:idx[tgt] + 60] if x[0] == "i"][:20]
                da = 0
                for c in after:
                    dist = da
                    for p in reversed(before):
                        if need(p, c) > dist:
                            raise RuntimeError("hazard across branch %s: %s -> %s" % (t, p.text, c.text))
                        dist += p.states
                    da += c.states
                    if c.mn in ("s_branch", "s_endpgm"): break
        if verbose: print("inserted nop states:", inserted)
    def text(self):
        o = []
        for k, t in self.items:
            if k == "l": o.append(t + ":")
            elif k == "d": o.append(t)
            else: o.append("    " + t)
        return "\n".join(o) + "\n"

def interleave(main, fill, start=0, end=None):
    n = len(main); end = n if end is None else end
    slots = [[] for _ in range(n)]
    m = len(fill)
    for i, f in enumerate(fill):
        pos = start + (i * (end - start)) // m
        slots[pos].extend(f if isinstance(f, list) else [f])
    return slots

def vr(b, n=1, f="v"):
    return "%s%d" % (f, b) if n == 1 else "%s[%d:%d]" % (f, b, b + n - 1)
def ar(b, n=1): return vr(b, n, "a")
def sr(b, n=1): return vr(b, n, "s")
```

```python
from asmlib import *
import math
K2_LDS = 128 * 1024 + 8192
MF = "v_mfma_f32_16x16x32_bf16"

def gen_gemm1(A, G):
    KA = G.KA
    A("s_load_dwordx4 s[4:7], s[0:1], %d" % KA["wg"])
    A("s_load_dwordx2 s[8:9], s[0:1], %d" % KA["ws"])
    A("s_and_b32 s40, s2, 7"); A("s_lshr_b32 s41, s2, 3"); A("s_sub_u32 s41, s41, 4")
    A("s_and_b32 s42, s40, 1"); A("s_lshl_b32 s42, s42, 2"); A("s_and_b32 s43, s41, 3"); A("s_add_u32 s42, s42, s43")
    A("s_lshr_b32 s43, s40, 1"); A("s_mul_i32 s43, s43, 7"); A("s_lshr_b32 s44, s41, 2"); A("s_add_u32 s43, s43, s44")
    A("v_and_b32 v1, 63, v0"); A("v_lshrrev_b32 v2, 6, v0")
    A("v_readfirstlane_b32 s45, v2")
    A("v_lshlrev_b32 v3, 4, v1")
    A("s_and_b32 s46, s45, 1"); A("s_lshr_b32 s47, s45, 1")
    A("v_lshrrev_b32 v4, 4, v1")
    A("s_lshl_b32 s48, s46, 2"); A("v_add_u32 v4, s48, v4")
    A("v_lshlrev_b32 v5, 1, v4"); A("v_and_b32 v6, 15, v1"); A("v_xor_b32 v5, v5, v6")
    A("s_lshl_b32 s48, s47, 4"); A("v_add_u32 v4, s48, v4")
    A("v_mul_u32_u24 v4, 7168, v4"); A("v_lshl_add_u32 v4, v5, 4, v4")
    A("s_lshl_b32 s48, s47, 13"); A("v_add_u32 v5, s48, v3"); A("v_add_u32 v6, 0x10000, v5")
    A("v_bfe_u32 v7, v1, 4, 1"); A("v_lshlrev_b32 v16, 12, v7")
    A("v_bfe_u32 v7, v1, 5, 1"); A("v_lshl_add_u32 v16, v7, 10, v16")
    A("v_bfe_u32 v7, v1, 2, 2"); A("v_lshl_add_u32 v16, v7, 8, v16")
    A("v_and_b32 v7, 3, v1"); A("v_lshl_add_u32 v16, v7, 3, v16"); A("v_add_u32 v16, 0x4000, v16")
    A("v_bfe_u32 v7, v1, 2, 3")
    A("s_lshl_b32 s48, s46, 2")
    for t in range(4):
        A("s_add_u32 s49, s48, %d" % t)
        A("v_xor_b32 v17, s49, v7"); A("v_lshl_add_u32 v%d, v17, 5, v16" % (8 + t)); A("v_add_u32 v%d, 0x10000, v%d" % (12 + t, 8 + t))
    A("s_waitcnt lgkmcnt(0)")
    G.srd(A, 12, 8, G.WS_XN, G.SZ_XN)
    G.srd(A, 16, 4, 0, 1024 * 7168)
    G.srd(A, 20, 6, -2048, 1024 * 7168 + 2048)
    G.srd(A, 24, 8, G.WS_HZ, G.SZ_HZ)
    A("s_lshl_b32 s30, s42, 19"); A("s_lshl_b32 s48, s45, 12"); A("s_add_u32 s30, s30, s48")
    A("s_lshl_b32 s31, s43, 8"); A("s_add_u32 s32, s31, %d" % (57344 - 1024))
    A("s_lshl_b32 s33, s45, 12"); A("s_add_u32 s34, s33, 0x4000")

    def dma(buf):
        o = []
        o.append(["s_add_u32 m0, s33, 0x%x" % (buf * 32768), "buffer_load_dwordx4 v3, s[12:15], s30 offen lds"])
        for p in range(1, 4): o.append(["buffer_load_dwordx4 v3, s[12:15], s30 offen offset:%d lds" % (p * 1024)])
        o[-1].append("s_add_u32 s30, s30, 0x4000")
        o.append(["s_add_u32 m0, s34, 0x%x" % (buf * 32768), "buffer_load_dwordx4 v4, s[16:19], s31 offen lds"])
        o.append(["buffer_load_dwordx4 v4, s[16:19], s32 offen offset:1024 lds"])
        o.append(["buffer_load_dwordx4 v4, s[20:23], s31 offen offset:2048 lds", "s_add_u32 s31, s31, %d" % (32 * 7168)])
        o.append(["buffer_load_dwordx4 v4, s[20:23], s32 offen offset:3072 lds", "s_add_u32 s32, s32, %d" % (32 * 7168)])
        return o
    FR = 32
    def reads(buf, st):
        base = FR + 64 * st; hi = buf >> 1; off = (buf & 1) * 32768
        o = []
        la = []
        for it in range(8):
            mat, t = it >> 2, it & 3
            for h in range(2):
                r = base + 4 * it + 2 * h
                la.append("ds_read_b64_tr_b16 v[%d:%d], v%d offset:%d" % (r, r + 1, (12 if hi else 8) + t, off + h * 8192 + mat * 2048))
        lb = []
        for jt in range(8):
            r = base + 32 + 4 * jt
            lb.append("ds_read_b128 v[%d:%d], v%d offset:%d" % (r, r + 3, 6 if hi else 5, off + jt * 1024))
        for i in range(8): o += [lb[i], la[2 * i], la[2 * i + 1]]
        return o
    def mfmas(st):
        base = FR + 64 * st; o = []
        for jt in range(8):
            for it in range(8):
                d = (it * 8 + jt) * 4
                o.append("%s a[%d:%d], v[%d:%d], v[%d:%d], a[%d:%d]" % (MF, d, d + 3, base + 4 * it, base + 4 * it + 3, base + 32 + 4 * jt, base + 35 + 4 * jt, d, d + 3))
        return o
    def step(i, do_dma, do_read, vm):
        m = mfmas(i & 1)
        s1 = interleave(m, reads((i + 1) & 3, (i + 1) & 1), 1, 52) if do_read else [[] for _ in m]
        s2 = interleave(m, dma(i & 3), 0, 64) if do_dma else [[] for _ in m]
        for k, x in enumerate(m):
            A(x)
            for y in s2[k] + s1[k]: A(y)
        if vm is not None:
            A("s_waitcnt vmcnt(%d) lgkmcnt(0)" % vm); A("s_barrier")
    for b in range(4):
        for x in dma(b):
            for y in x: A(y)
    for i in range(256): A("v_accvgpr_write_b32 a%d, 0" % i)
    A("s_waitcnt vmcnt(24)"); A("s_barrier")
    for x in reads(0, 0): A(x)
    A("s_waitcnt vmcnt(16) lgkmcnt(0)"); A("s_barrier")
    A("s_mov_b32 s35, 7")
    A.raw(".p2align 6")
    A.label("g1_loop")
    for i in range(4): step(i, True, True, 16)
    A("s_sub_u32 s35, s35, 1"); A("s_cmp_lg_u32 s35, 0"); A("s_cbranch_scc1 g1_loop")
    step(0, False, True, 8); step(1, False, True, 0); step(2, False, True, None)
    A("s_waitcnt lgkmcnt(0)")
    step(3, False, False, None)
    A("s_lshl_b32 s36, s42, 1"); A("s_add_u32 s36, s36, s47"); A("s_mul_i32 s36, s36, 144")
    A("s_lshl_b32 s37, s43, 2"); A("s_add_u32 s36, s36, s37"); A("s_lshl_b32 s37, s46, 1"); A("s_add_u32 s36, s36, s37")
    A("s_lshl_b32 s36, s36, 13")
    c0 = math.sqrt(2 / math.pi)
    c1 = -2 * c0 * math.log2(math.e); c2 = c1 * 0.044715
    A("s_mov_b32 s38, 0x%x" % G.f32(c2)); A("v_mov_b32 v16, 0x%x" % G.f32(c1))
    n = 0
    for jt in range(8):
        for p in range(2):
            T = 32 + 40 * (n % 4); n += 1
            for e in range(8):
                it = 2 * p + (e >> 2)
                A("v_accvgpr_read_b32 v%d, a%d" % (T + e, (it * 8 + jt) * 4 + (e & 3)))
            for e in range(8): A("v_mul_f32 v%d, v%d, v%d" % (T + 16 + e, T + e, T + e))
            for e in range(8): A("v_fma_f32 v%d, v%d, s38, v16" % (T + 16 + e, T + 16 + e))
            for e in range(8): A("v_mul_f32 v%d, v%d, v%d" % (T + 16 + e, T + 16 + e, T + e))
            for e in range(8): A("v_exp_f32 v%d, v%d" % (T + 16 + e, T + 16 + e))
            for e in range(8):
                it = 4 + 2 * p + (e >> 2)
                A("v_accvgpr_read_b32 v%d, a%d" % (T + 8 + e, (it * 8 + jt) * 4 + (e & 3)))
            for e in range(8): A("v_add_f32 v%d, 1.0, v%d" % (T + 16 + e, T + 16 + e))
            for e in range(8): A("v_rcp_f32 v%d, v%d" % (T + 16 + e, T + 16 + e))
            for e in range(8): A("v_mul_f32 v%d, v%d, v%d" % (T + e, T + e, T + 8 + e))
            for e in range(8): A("v_mul_f32 v%d, v%d, v%d" % (T + e, T + e, T + 16 + e))
            for e in range(4): A("v_cvt_pk_bf16_f32 v%d, v%d, v%d" % (T + 32 + e, T + 2 * e, T + 2 * e + 1))
            A("s_add_u32 s37, s36, 0x%x" % (p * 8192 + (jt >> 2) * 4096))
            A("buffer_store_dwordx4 v[%d:%d], v3, s[24:27], s37 offen offset:%d" % (T + 32, T + 35, (jt & 3) * 1024))
    A("s_endpgm")

def gen_colfft(A, G):
    KA = G.KA
    A("s_load_dwordx4 s[4:7], s[0:1], %d" % KA["wr"])
    A("s_load_dwordx2 s[8:9], s[0:1], %d" % KA["ws"])
    G.tab_srd(A, 28, "k2")
    A("v_and_b32 v1, 63, v0"); A("v_lshrrev_b32 v2, 6, v0")
    A("v_readfirstlane_b32 s45, v2")
    A("v_lshlrev_b32 v3, 4, v1")
    A("s_waitcnt lgkmcnt(0)")
    WSZ = 2048 * 1026
    G.srd(A, 12, 4, 0, WSZ); G.srd(A, 16, 6, 0, WSZ)
    G.srd(A, 20, 8, G.WS_Y, G.SZ_Y); G.srd(A, 24, 8, G.WS_HZ, G.SZ_HZ); G.srd(A, 32, 8, G.WS_G, G.SZ_G)
    DAT = 8
    FA = 40
    FE = 56
    T1 = 88
    T2 = 96
    D = 152
    P = 216
    TMP = 248
    A("v_and_b32 v4, 15, v1"); A("v_lshrrev_b32 v5, 4, v1")
    A("v_lshlrev_b32 v6, 6, v4"); A("v_lshl_add_u32 v6, v5, 4, v6")
    A("v_add_u32 v7, 0x1000, v6")
    A("s_lshl_b32 s40, s2, 4"); A("s_lshl_b32 s41, s45, 2"); A("s_add_u32 s40, s40, s41"); A("s_lshl_b32 s40, s40, 13")
    def yload():
        for e in range(8):
            A("buffer_load_dwordx4 v[%d:%d], v%d, s[20:23], s40 offen offset:%d" % (DAT + 4 * e, DAT + 4 * e + 3, 6 if e < 4 else 7, (e & 3) * 1024))
    yload()
    names = []
    for inv in range(2):
        for part in range(2): names.append(("fa_%d%d" % (inv, part), FA + 8 * inv + 4 * part))
    for o in range(4):
        for ih in range(2): names.append(("fe_%d%d" % (o, ih), FE + 8 * o + 4 * ih))
    for t in range(2): names.append(("t1_%d" % t, T1 + 4 * t))
    for e in range(1, 8):
        for t in range(2): names.append(("t2_%d%d" % (e, t), T2 + 8 * (e - 1) + 4 * t))
    for nm, r in names: G.tab_load(A, vr(r, 4), nm, 3, 28, 42)
    A("v_and_b32 v%d, 1, v1" % TMP); A("v_bfe_u32 v%d, v1, 1, 2" % (TMP + 1)); A("v_lshrrev_b32 v%d, 3, v1" % (TMP + 2))
    A("v_lshl_add_u32 v%d, v%d, 4, v%d" % (TMP + 3, TMP + 1, TMP + 2))
    A("s_lshl_b32 s41, s45, 6"); A("v_add_u32 v%d, s41, v%d" % (TMP + 3, TMP + 3))
    A("v_mul_u32_u24 v%d, 1026, v%d" % (TMP + 4, TMP + 3))
    A("v_lshl_add_u32 v%d, v%d, 4, v%d" % (TMP + 4, TMP, TMP + 4))
    A("v_lshlrev_b32 v%d, 16, v%d" % (TMP + 5, TMP)); A("v_lshl_add_u32 v%d, v%d, 4, v%d" % (TMP + 5, TMP + 2, TMP + 5))
    A("v_lshl_add_u32 v%d, v%d, 2, v%d" % (TMP + 5, TMP + 1, TMP + 5))
    A("s_lshl_b32 s41, s45, 8"); A("v_add_u32 v%d, s41, v%d" % (TMP + 5, TMP + 5))
    A("s_lshl_b32 s43, s2, 5")
    A("s_mov_b32 s46, 0x05040100"); A("s_mov_b32 s47, 0x07060302")
    for half in range(2):
        for k in range(8):
            it = half * 8 + k; ep, ah = it >> 1, it & 1
            A("s_add_u32 s44, s43, %d" % ((256 * ep + 8 * ah) * 1026))
            A("buffer_load_dwordx4 v[%d:%d], v%d, s[12:15], s44 offen" % (D + 8 * k, D + 8 * k + 3, TMP + 4))
            A("buffer_load_dwordx4 v[%d:%d], v%d, s[16:19], s44 offen" % (D + 8 * k + 4, D + 8 * k + 7, TMP + 4))
        for k in range(8):
            it = half * 8 + k; ep, ah = it >> 1, it & 1
            A("s_waitcnt vmcnt(%d)" % (14 - 2 * k))
            for q in range(4):
                A("v_perm_b32 v%d, v%d, v%d, s46" % (P + 2 * q, D + 8 * k + 4 + q, D + 8 * k + q))
                A("v_perm_b32 v%d, v%d, v%d, s47" % (P + 2 * q + 1, D + 8 * k + 4 + q, D + 8 * k + q))
            for c in range(8):
                A("ds_write_b32 v%d, v%d offset:%d" % (TMP + 5, P + c, c * 8192 + ep * 1024 + ah * 128))
    A("s_cmp_lg_u32 s2, 0"); A("s_cbranch_scc1 cf_no512")
    A("v_mul_u32_u24 v%d, 1026, v0" % TMP); A("v_add_u32 v%d, 1024, v%d" % (TMP, TMP))
    for ep in range(8):
        A("s_mov_b32 s44, %d" % (256 * ep * 1026))
        A("buffer_load_ushort v%d, v%d, s[12:15], s44 offen" % (D + ep, TMP))
        A("buffer_load_ushort v%d, v%d, s[16:19], s44 offen" % (D + 8 + ep, TMP))
    A("v_and_b32 v%d, 15, v0" % (TMP + 1)); A("v_lshl_add_u32 v%d, v2, 4, v%d" % (TMP + 1, TMP + 1)); A("v_lshlrev_b32 v%d, 4, v%d" % (TMP + 1, TMP + 1))
    A("v_bfe_u32 v%d, v0, 4, 2" % (TMP + 2)); A("v_lshl_add_u32 v%d, v%d, 2, v%d" % (TMP + 1, TMP + 2, TMP + 1))
    A("v_add_u32 v%d, 0x20000, v%d" % (TMP + 1, TMP + 1))
    A("s_waitcnt vmcnt(0)")
    for ep in range(8): A("v_lshl_or_b32 v%d, v%d, 16, v%d" % (D + ep, D + 8 + ep, D + ep))
    for ep in range(8): A("ds_write_b32 v%d, v%d offset:%d" % (TMP + 1, D + ep, ep * 1024))
    A.label("cf_no512")
    A("s_waitcnt vmcnt(0) lgkmcnt(0)"); A("s_barrier")
    A("s_lshl_b32 s41, s45, 15"); A("v_add_u32 v4, s41, v3")
    A("s_mov_b32 s48, 0")
    A("s_or_b32 s49, s2, s45"); A("s_cmp_eq_u32 s49, 0"); A("s_cselect_b32 s49, 5, 4")
    A("s_mov_b32 s50, 0xffff0000")
    A.label("cf_loop")
    A("s_waitcnt vmcnt(0)")
    A("s_cmp_eq_u32 s49, 4"); A("s_cbranch_scc1 cf_in_ok")
    A("s_cmp_eq_u32 s48, 0"); A("s_cbranch_scc0 cf_in_n0")
    for i in range(32): A("v_and_b32 v%d, 0xffff, v%d" % (DAT + i, DAT + i))
    A.label("cf_in_n0")
    A("s_cmp_eq_u32 s48, 4"); A("s_cbranch_scc0 cf_in_ok")
    for i in range(32): A("v_lshrrev_b32 v%d, 16, v%d" % (DAT + i, DAT + i))
    A("v_add_u32 v4, 0x20000, v3")
    A.label("cf_in_ok")
    A("s_nop 1")
    def mm(d, a, b, c=None):
        A("%s v[%d:%d], v[%d:%d], v[%d:%d], %s" % (MF, d, d + 3, a, a + 3, b, b + 3, "0" if c is None else "v[%d:%d]" % (c, c + 3)))
    tctr = [0]
    def cmul_pack(dst, re, im, tc, ts, conj):
        t0 = TMP + 2 * (tctr[0] % 4); t1 = t0 + 1; tctr[0] += 1
        A("v_mul_f32 v%d, v%d, v%d" % (t0, re, tc)); A("v_mul_f32 v%d, v%d, v%d" % (t1, im, tc))
        if not conj:
            A("v_fmac_f32 v%d, v%d, v%d" % (t0, im, ts)); A("v_fma_f32 v%d, -v%d, v%d, v%d" % (t1, re, ts, t1))
        else:
            A("v_fma_f32 v%d, -v%d, v%d, v%d" % (t0, im, ts, t0)); A("v_fmac_f32 v%d, v%d, v%d" % (t1, re, ts))
        A("v_cvt_pk_bf16_f32 v%d, v%d, v%d" % (dst, t0, t1))
    for e in range(8):
        mm(D + 8 * e, DAT + 4 * e, FA); mm(D + 8 * e + 4, DAT + 4 * e, FA + 4)
    for ep in range(8): A("ds_read_b128 v[%d:%d], v4 offset:%d" % (DAT + 4 * ep, DAT + 4 * ep + 3, ep * 1024))
    for e in range(8):
        for r in range(4): cmul_pack(P + 4 * e + r, D + 8 * e + r, D + 8 * e + 4 + r, T1 + r, T1 + 4 + r, False)
    for e in range(8):
        mm(D + 8 * e, FA, P + 4 * e); mm(D + 8 * e + 4, FA + 4, P + 4 * e)
    for e in range(8):
        for r in range(4):
            if e == 0: A("v_cvt_pk_bf16_f32 v%d, v%d, v%d" % (P + 8 * r, D + r, D + 4 + r))
            else: cmul_pack(P + 8 * r + e, D + 8 * e + r, D + 8 * e + 4 + r, T2 + 8 * (e - 1) + r, T2 + 8 * (e - 1) + 4 + r, False)
    def stageE():
        for r in range(4):
            for o in range(4): mm(D + 16 * r + 4 * o, FE + 8 * o, P + 8 * r)
            for o in range(4): mm(D + 16 * r + 4 * o, FE + 8 * o + 4, P + 8 * r + 4, D + 16 * r + 4 * o)
    stageE()
    A("s_waitcnt lgkmcnt(0)")
    for r in range(4):
        for ep in range(8):
            w = DAT + 4 * ep + r
            t0 = TMP + 4 * (tctr[0] % 2); tctr[0] += 1
            re = D + 16 * r + 2 * ep; im = re + 1
            A("v_lshlrev_b32 v%d, 16, v%d" % (t0 + 2, w)); A("v_and_b32 v%d, s50, v%d" % (t0 + 3, w))
            A("v_mul_f32 v%d, v%d, v%d" % (t0, re, t0 + 2)); A("v_mul_f32 v%d, v%d, v%d" % (t0 + 1, im, t0 + 2))
            A("v_fma_f32 v%d, -v%d, v%d, v%d" % (t0, im, t0 + 3, t0)); A("v_fmac_f32 v%d, v%d, v%d" % (t0 + 1, re, t0 + 3))
            A("v_cvt_pk_bf16_f32 v%d, v%d, v%d" % (P + 8 * r + ep, t0, t0 + 1))
    A("s_add_u32 s40, s40, 0x2000"); A("s_cmp_eq_u32 s48, 3"); A("s_cselect_b32 s40, 0, s40")
    yload()
    A("v_add_u32 v4, 0x2000, v4")
    stageE()
    for r in range(4):
        for x in range(8):
            e = (8 - x) & 7
            re = D + 16 * r + 2 * x
            if e == 0: A("v_cvt_pk_bf16_f32 v%d, v%d, v%d" % (P + r, re, re + 1))
            else: cmul_pack(P + 4 * e + r, re, re + 1, T2 + 8 * (e - 1) + r, T2 + 8 * (e - 1) + 4 + r, True)
    for e in range(8):
        mm(D + 8 * e, P + 4 * e, FA + 8); mm(D + 8 * e + 4, P + 4 * e, FA + 12)
    for e in range(8):
        for r in range(4): cmul_pack(P + 4 * e + r, D + 8 * e + r, D + 8 * e + 4 + r, T1 + r, T1 + 4 + r, True)
    for e in range(8):
        mm(D + 8 * e, P + 4 * e, FA + 8); mm(D + 8 * e + 4, P + 4 * e, FA + 12)
    for e in range(8):
        for r in range(4): A("v_cvt_pk_bf16_f32 v%d, v%d, v%d" % (P + 4 * e + r, D + 8 * e + r, D + 8 * e + 4 + r))
    for cc in range(4):
        A("s_cmp_eq_u32 s48, %d" % cc); A("s_cbranch_scc0 cf_o%d" % cc)
        for q in range(32): A("v_accvgpr_write_b32 a%d, v%d" % (4 * q + cc, P + q))
        A.label("cf_o%d" % cc)
    A("s_cmp_eq_u32 s48, 4"); A("s_cbranch_scc0 cf_o4")
    for q in range(32):
        A("v_accvgpr_read_b32 v%d, a%d" % (D + q, 4 * q))
    for q in range(32):
        A("v_perm_b32 v%d, v%d, v%d, s46" % (D + q, P + q, D + q))
    for q in range(32):
        A("v_accvgpr_write_b32 a%d, v%d" % (4 * q, D + q))
    A.label("cf_o4")
    A("s_add_u32 s48, s48, 1"); A("s_cmp_lt_u32 s48, s49"); A("s_cbranch_scc1 cf_loop")
    A("v_and_b32 v4, 15, v1"); A("v_lshlrev_b32 v4, 4, v4"); A("v_lshrrev_b32 v5, 4, v1")
    A("s_mov_b32 s41, %d" % (4 * 144 * 8192)); A("v_mul_lo_u32 v5, s41, v5"); A("v_add_u32 v4, v4, v5")
    A("v_add_u32 v5, 0x1000, v4")
    A("s_add_u32 s41, s2, 112"); A("s_lshl_b32 s41, s41, 13"); A("s_lshl_b32 s42, s45, 8"); A("s_add_u32 s41, s41, s42")
    for r in range(4):
        A("s_add_u32 s42, s41, %d" % (r * 144 * 8192))
        for e in range(8):
            q = 4 * e + r
            A("buffer_store_dwordx4 a[%d:%d], v%d, s[24:27], s42 offen offset:%d" % (4 * q, 4 * q + 3, 4 if e < 4 else 5, (e & 3) * 1024))
    A("s_waitcnt vmcnt(0)")
    A("v_and_b32 v8, 127, v0"); A("v_lshlrev_b32 v9, 3, v8")
    A("v_lshrrev_b32 v10, 7, v0")
    A("v_lshlrev_b32 v11, 4, v8"); A("v_lshl_add_u32 v11, v10, 12, v11")
    A("s_lshl_b32 s41, s2, 4"); A("v_add_u32 v10, s41, v10")
    A("s_mov_b32 s42, 0x%x" % G.f32(1.0 / 1024)); A("s_mov_b32 s43, 0x%x" % G.f32(2.0 ** -20)); A("s_movk_i32 s44, 0x3ff")
    A("s_lshl_b32 s51, s2, 16")
    for it in range(8):
        g, ch = it >> 1, it & 1
        B = 16 + 32 * (it & 1)
        A("v_mul_u32_u24 v12, v10, v9")
        for i in range(8):
            A("v_and_b32 v%d, s44, v12" % (B + i))
            if i < 7: A("v_add_u32 v12, v12, v10")
        for i in range(8): A("v_cvt_f32_u32 v%d, v%d" % (B + i, B + i))
        for i in range(8): A("v_mul_f32 v%d, s42, v%d" % (B + i, B + i))
        for i in range(8): A("v_sin_f32 v%d, v%d" % (B + 8 + i, B + i))
        for i in range(8): A("v_cos_f32 v%d, v%d" % (B + i, B + i))
        for i in range(8): A("v_mul_f32 v%d, -s43, v%d" % (B + 8 + i, B + 8 + i))
        for i in range(8): A("v_mul_f32 v%d, s43, v%d" % (B + i, B + i))
        for i in range(8): A("v_cvt_pk_bf16_f32 v%d, v%d, v%d" % (B + 16 + i, B + 2 * i, B + 2 * i + 1))
        if it == 0:
            one = G.bf16(2.0 ** -21)
            A("v_cmp_eq_u32 vcc, 0, v10")
            A("v_mov_b32 v13, 0x%x" % (one | (one << 16))); A("v_mov_b32 v14, 0x%x" % (one | ((one | 0x8000) << 16)))
            for i in range(4): A("v_cndmask_b32 v%d, v%d, v13, vcc" % (B + 16 + i, B + 16 + i))
            for i in range(4): A("v_cndmask_b32 v%d, v%d, v14, vcc" % (B + 20 + i, B + 20 + i))
        A("s_add_u32 s52, s51, %d" % ((16 * ch + 4 * g) * 2048))
        A("buffer_store_dwordx4 v[%d:%d], v11, s[32:35], s52 offen" % (B + 16, B + 19))
        A("buffer_store_dwordx4 v[%d:%d], v11, s[32:35], s52 offen offset:2048" % (B + 20, B + 23))
        A("v_add_u32 v10, 2, v10")
    A("s_endpgm")

def gen_k2(G):
    A = Asm(); G.kernel_head(A, "k2_kernel")
    A("s_cmp_ge_u32 s2, 256"); A("s_cbranch_scc1 k2_done")
    A("s_cmp_lt_u32 s2, 32"); A("s_cbranch_scc1 k2_fft")
    gen_gemm1(A, G)
    A.label("k2_fft")
    gen_colfft(A, G)
    A.label("k2_done"); A("s_endpgm")
    A.fix()
    return A.text() + G.kernel_desc("k2_kernel", 512, 256, 64)
```

```python
from asmlib import *
import math
K3_LDS = 64 * 1024
MF = "v_mfma_f32_16x16x32_bf16"

def gen_k3(G):
    KA = G.KA
    A = Asm(); G.kernel_head(A, "k3_kernel")
    A("s_cmp_ge_u32 s2, 256"); A("s_cbranch_scc1 k3_done")
    A("s_load_dwordx2 s[4:5], s[0:1], %d" % KA["x"])
    A("s_load_dwordx4 s[8:11], s[0:1], %d" % KA["wd"])
    A("s_load_dwordx2 s[6:7], s[0:1], %d" % KA["ws"])
    A("s_and_b32 s40, s2, 7"); A("s_lshr_b32 s41, s2, 3")
    A("s_lshr_b32 s42, s40, 1"); A("s_lshl_b32 s42, s42, 2"); A("s_and_b32 s43, s41, 3"); A("s_add_u32 s42, s42, s43")
    A("s_and_b32 s43, s40, 1"); A("s_lshl_b32 s43, s43, 3"); A("s_lshr_b32 s44, s41, 2"); A("s_add_u32 s43, s43, s44")
    A("v_and_b32 v1, 63, v0"); A("v_lshrrev_b32 v2, 6, v0")
    A("v_readfirstlane_b32 s45, v2")
    A("v_lshlrev_b32 v3, 4, v1")
    A("v_lshl_add_u32 v4, v2, 11, v3")
    for ks in range(1, 4): A("v_add_u32 v%d, 0x%x, v4" % (4 + ks, ks * 8192))
    A("v_lshrrev_b32 v16, 3, v1"); A("v_lshl_add_u32 v16, v2, 5, v16"); A("v_lshlrev_b32 v16, 11, v16")
    A("v_lshrrev_b32 v17, 4, v1"); A("v_lshlrev_b32 v17, 1, v17"); A("v_and_b32 v18, 7, v1"); A("v_xor_b32 v17, v17, v18")
    A("v_lshl_add_u32 v8, v17, 4, v16")
    for p in range(1, 4): A("v_add_u32 v%d, 0x%x, v8" % (8 + p, p * 15360))
    A("v_lshrrev_b32 v16, 2, v1"); A("v_lshlrev_b32 v16, 7, v16"); A("v_and_b32 v17, 3, v1"); A("v_lshl_add_u32 v16, v17, 3, v16")
    A("v_bfe_u32 v17, v1, 3, 2")
    for t in range(4):
        A("v_xor_b32 v18, %d, v17" % t); A("v_lshl_add_u32 v%d, v18, 5, v16" % (12 + t))
    A("s_waitcnt lgkmcnt(0)")
    G.srd(A, 12, 6, G.WS_HZ, G.SZ_HZ)
    G.srd(A, 16, 8, 0, 3584 * 2048)
    G.srd(A, 20, 6, G.WS_G, G.SZ_G)
    G.srd(A, 24, 4, 0, 4 << 20)
    G.srd(A, 28, 10, 0, 4 << 20)
    A("s_mul_i32 s32, s42, %d" % (144 * 8192))
    A("s_lshl_b32 s33, s43, 7")
    A("s_lshl_b32 s34, s45, 12")
    ACC, SAC, AF = 24, 56, 88
    def dma(slot):
        o = [["s_add_u32 m0, s34, 0x%x" % (slot * 16384), "buffer_load_dwordx4 v8, s[16:19], s33 offen lds"]]
        for p in range(1, 4): o.append(["buffer_load_dwordx4 v%d, s[16:19], s33 offen offset:%d lds" % (8 + p, p * 1024)])
        o[-1].append("s_add_u32 s33, s33, 0x40000")
        return o
    def hload(slot):
        o = []
        for ks in range(4):
            for jt in range(2):
                r = 32 * slot + 8 * ks + 4 * jt
                o.append(["buffer_load_dwordx4 a[%d:%d], v%d, s[12:15], s32 offen offset:%d" % (r, r + 3, 4 + ks, jt * 1024)])
        o[-1].append("s_add_u32 s32, s32, 0x8000")
        return o
    def reads(slot, st):
        o = []
        for ks in range(4):
            for t in range(4):
                for h in range(2):
                    r = AF + 64 * st + 16 * ks + 4 * t + 2 * h
                    o.append("ds_read_b64_tr_b16 v[%d:%d], v%d offset:%d" % (r, r + 1, 12 + t, slot * 16384 + ks * 4096 + h * 2048))
        return o
    def mfmas(i, acc):
        o = []
        for ks in range(4):
            for t in range(4):
                for jt in range(2):
                    d = acc + 8 * t + 4 * jt; a = AF + 64 * (i & 1) + 16 * ks + 4 * t; b = 32 * (i & 3) + 8 * ks + 4 * jt
                    o.append("%s v[%d:%d], v[%d:%d], a[%d:%d], v[%d:%d]" % (MF, d, d + 3, a, a + 3, b, b + 3, d, d + 3))
        return o
    def step(i, acc, do_dma, do_h, do_read, vm, extra=None):
        m = mfmas(i, acc)
        ld = (dma(i & 3) if do_dma else []) + (hload((i + 3) & 3) if do_h else [])
        s1 = interleave(m, reads((i + 1) & 3, (i + 1) & 1), 0, 30) if do_read else [[] for _ in m]
        s2 = interleave(m, ld, 0, 24) if ld else [[] for _ in m]
        s3 = interleave(m, extra, 0, 32) if extra else [[] for _ in m]
        for k, x in enumerate(m):
            A(x)
            for y in s2[k] + s1[k] + s3[k]: A(y)
        if vm is not None:
            A("s_waitcnt vmcnt(%d) lgkmcnt(0)" % vm); A("s_barrier")
    def flat(l):
        for x in l:
            for y in x: A(y)
    flat(dma(0)); flat(dma(1)); flat(hload(0)); flat(dma(2)); flat(hload(1)); flat(dma(3)); flat(hload(2))
    for i in range(64): A("v_mov_b32 v%d, 0" % (ACC + i))
    A("s_waitcnt vmcnt(36)"); A("s_barrier")
    for x in reads(0, 0): A(x)
    A("s_waitcnt vmcnt(24) lgkmcnt(0)"); A("s_barrier")
    A("s_mov_b32 s35, 7")
    A.raw(".p2align 6")
    A.label("g2_loop")
    A("s_cmp_eq_u32 s35, 1"); A("s_cbranch_scc0 g2_nosw")
    A("s_mov_b32 s16, s20"); A("s_mov_b32 s17, s21"); A("s_mov_b32 s18, s22"); A("s_lshl_b32 s33, s43, 7")
    A.label("g2_nosw")
    for i in range(4): step(i, ACC, True, True, True, 24)
    A("s_sub_u32 s35, s35, 1"); A("s_cmp_lg_u32 s35, 0"); A("s_cbranch_scc1 g2_loop")
    A("v_and_b32 v16, 15, v1"); A("v_lshlrev_b32 v16, 18, v16"); A("v_lshl_add_u32 v16, v2, 12, v16")
    A("v_lshrrev_b32 v17, 4, v1"); A("v_lshl_add_u32 v16, v17, 3, v16")
    A("s_lshl_b32 s36, s42, 14"); A("s_lshl_b32 s37, s43, 7"); A("s_add_u32 s36, s36, s37")
    XR = 216
    nl2e = -math.log2(math.e)
    A("s_mov_b32 s38, 0x%x" % G.f32(nl2e)); A("s_mov_b32 s39, 0xffff0000")
    def silu(lo, n):
        o = []
        T = 232
        for b in range(lo, lo + n, 8):
            for e in range(8): o.append("v_mul_f32 v%d, s38, v%d" % (T + e, ACC + b + e))
            for e in range(8): o.append("v_exp_f32 v%d, v%d" % (T + e, T + e))
            for e in range(8): o.append("v_add_f32 v%d, 1.0, v%d" % (T + e, T + e))
            for e in range(8): o.append("v_rcp_f32 v%d, v%d" % (T + e, T + e))
            for e in range(8): o.append("v_mul_f32 v%d, v%d, v%d" % (ACC + b + e, ACC + b + e, T + e))
        return o
    xl = []
    for t in range(4):
        for jt in range(2):
            r = XR + 4 * t + 2 * jt
            xl.append("buffer_load_dwordx2 v[%d:%d], v16, s[24:27], s36 offen offset:%d" % (r, r + 1, jt * 2048 + t * 32))
    step(0, SAC, True, True, True, 24)
    step(1, SAC, True, True, True, 24, silu(0, 8))
    step(2, SAC, True, True, True, 24, silu(8, 8))
    step(3, SAC, True, True, True, 24, silu(16, 8))
    step(0, SAC, False, True, True, 20, silu(24, 8))
    step(1, SAC, False, False, True, 16, xl)
    step(2, SAC, False, False, True, None)
    A("s_waitcnt vmcnt(8) lgkmcnt(0)")
    step(3, SAC, False, False, False, None)
    A("s_waitcnt vmcnt(0)")
    for t in range(4):
        for jt in range(2):
            r = XR + 4 * t + 2 * jt; d = 8 * t + 4 * jt; T = AF + 8 * (2 * t + jt)
            A("v_lshlrev_b32 v%d, 16, v%d" % (T, r)); A("v_and_b32 v%d, s39, v%d" % (T + 1, r))
            A("v_lshlrev_b32 v%d, 16, v%d" % (T + 2, r + 1)); A("v_and_b32 v%d, s39, v%d" % (T + 3, r + 1))
            for e in range(4): A("v_fmac_f32 v%d, v%d, v%d" % (T + e, SAC + d + e, ACC + d + e))
            A("v_cvt_pk_bf16_f32 v%d, v%d, v%d" % (T + 4, T, T + 1)); A("v_cvt_pk_bf16_f32 v%d, v%d, v%d" % (T + 5, T + 2, T + 3))
            A("buffer_store_dwordx2 v[%d:%d], v16, s[28:31], s36 offen offset:%d" % (T + 4, T + 5, jt * 2048 + t * 32))
    A.label("k3_done"); A("s_endpgm")
    A.fix()
    return A.text() + G.kernel_desc("k3_kernel", 384, 256, 64)
```

```python
import sys, math, struct
import numpy as np
from asmlib import *

NAME = "recurrent_scan__spectral_gfnet__geglu_ffn__prompt"
WS_XN = 0; WS_Y = 4 << 20; WS_HZ = 8 << 20; WS_G = 28 << 20
SZ_XN = 4 << 20; SZ_Y = 4 << 20; SZ_HZ = 16 * 144 * 8192; SZ_G = 2 << 20
KA = dict(x=0, wr=8, wi=16, bx=24, wg=32, wu=40, wd=48, out=56, dbg=64, ws=72)

def f32(x): return struct.unpack("<I", struct.pack("<f", x))[0]
def bf16(x):
    u = f32(x); return ((u + 0x7FFF + ((u >> 16) & 1)) >> 16) & 0xFFFF
def pk(lo, hi): return bf16(lo) | (bf16(hi) << 16)

class Table:
    def __init__(self): self.blocks = []; self.names = {}
    def add(self, name, fn):
        self.names[name] = len(self.blocks)
        self.blocks.append([d for l in range(64) for d in fn(l)])
    def off(self, name): return self.names[name] * 1024
TAB = Table()
def cs(num, den):
    a = 2 * math.pi * (num % den) / den
    c, s = math.cos(a), math.sin(a)
    if abs(c) < 1e-12: c = 0.0
    if abs(s) < 1e-12: s = 0.0
    return c, s

def build_tables():
    def slot_a(g, j): return 4 * g + j if j < 4 else 16 + 4 * g + (j - 4)
    def f1(part):
        def fn(l):
            g, c = l >> 4, l & 15
            v = []
            for j in range(8):
                a = slot_a(g, j)
                if part == 0: v.append(cs(a * c, 32)[0])
                else: v.append(-cs(a * c, 32)[1] if c else cs(a * 16, 32)[0])
            return [pk(v[2 * i], v[2 * i + 1]) for i in range(4)]
        return fn
    TAB.add("f1re", f1(0)); TAB.add("f1im", f1(1))
    for bh in range(2):
        for t in range(2):
            TAB.add("tw%d%d" % (bh, t), lambda l, bh=bh, t=t: [f32(cs((16 * bh + 4 * (l >> 4) + r) * (l & 15), 1024)[t]) for r in range(4)])
    for dh in range(2):
        for part in range(2):
            for bh in range(2):
                def fn(l, dh=dh, part=part, bh=bh):
                    g, i = l >> 4, l & 15
                    d = 16 * dh + i; o = []
                    for r in range(4):
                        b = 16 * bh + 4 * g + r
                        c, s = cs(b * d, 32)
                        if part == 0: o.append(pk(c, s))
                        else: o.append(pk(-s, c) if dh == 0 else pk(s, -c))
                    return o
                TAB.add("f2_%d%d%d" % (dh, part, bh), fn)
    for part in range(2):
        for bh in range(2):
            def fn(l, part=part, bh=bh):
                g, i = l >> 4, l & 15
                o = []
                for r in range(4):
                    b = 16 * bh + 4 * g + r
                    c, s = cs(b * i, 32)
                    lo = c if part == 0 else (-s if i else cs(b * 16, 32)[0])
                    u = 15 - i
                    c2, s2 = cs(b * (2 * u + 1), 64)
                    hi = c2 if part == 0 else -s2
                    o.append(pk(lo, hi))
                return o
            TAB.add("f2s_%d%d" % (part, bh), fn)
    for inv in range(2):
        for part in range(2):
            def fn(l, inv=inv, part=part):
                g, n = l >> 4, l & 15
                o = []
                for jj in range(4):
                    c, s = cs((4 * g + jj) * n, 16)
                    if inv: s = -s
                    o.append(pk(c, s) if part == 0 else pk(-s, c))
                return o
            TAB.add("fa_%d%d" % (inv, part), fn)
    for o_ in range(4):
        for ih in range(2):
            def fn(l, o_=o_, ih=ih):
                gk, i = l >> 4, l & 15
                if (i >> 2) != gk: return [0, 0, 0, 0]
                r2 = i & 3; ep = 2 * o_ + (r2 >> 1); part = r2 & 1
                o = []
                for jj in range(4):
                    c, s = cs((4 * ih + jj) * ep, 8)
                    o.append(pk(c, s) if part == 0 else pk(-s, c))
                return o
            TAB.add("fe_%d%d" % (o_, ih), fn)
    for t in range(2):
        TAB.add("t1_%d" % t, lambda l, t=t: [f32(cs((4 * (l >> 4) + r) * (l & 15), 256)[t]) for r in range(4)])
    for e in range(1, 8):
        for t in range(2):
            TAB.add("t2_%d%d" % (e, t), lambda l, e=e, t=t: [f32(cs(e * ((l & 15) + 16 * (4 * (l >> 4) + r)), 2048)[t]) for r in range(4)])

def srd(A, d, base, off, size):
    if off >= 0:
        A("s_add_u32 s%d, s%d, 0x%x" % (d, base, off)); A("s_addc_u32 s%d, s%d, 0" % (d + 1, base + 1))
    else:
        A("s_sub_u32 s%d, s%d, 0x%x" % (d, base, -off)); A("s_subb_u32 s%d, s%d, 0" % (d + 1, base + 1))
    A("s_and_b32 s%d, s%d, 0xffff" % (d + 1, d + 1))
    A("s_mov_b32 s%d, 0x%x" % (d + 2, size)); A("s_mov_b32 s%d, 0x20000" % (d + 3))

def tab_srd(A, d, tag):
    A("s_getpc_b64 s[%d:%d]" % (d, d + 1))
    A("s_add_u32 s%d, s%d, gf_tab@rel32@lo+4" % (d, d))
    A("s_addc_u32 s%d, s%d, gf_tab@rel32@hi+12" % (d + 1, d + 1))
    A("s_and_b32 s%d, s%d, 0xffff" % (d + 1, d + 1))
    A("s_mov_b32 s%d, 0x%x" % (d + 2, len(TAB.blocks) * 1024)); A("s_mov_b32 s%d, 0x20000" % (d + 3))

def tab_load(A, dst, name, vlane16, srdt, stmp):
    o = TAB.off(name)
    A("s_mov_b32 s%d, 0x%x" % (stmp, o))
    A("buffer_load_dwordx4 %s, v%d, s[%d:%d], s%d offen" % (dst, vlane16, srdt, srdt + 3, stmp))

def kernel_head(A, name):
    A.raw(".text"); A.raw(".globl %s" % name); A.raw(".p2align 8"); A.raw(".type %s,@function" % name)
    A.label(name)

def kernel_desc(name, nv, acc_off, ns=102):
    return """.section .rodata,"a"
.p2align 6
.amdhsa_kernel %s
  .amdhsa_next_free_vgpr %d
  .amdhsa_next_free_sgpr %d
  .amdhsa_accum_offset %d
  .amdhsa_group_segment_fixed_size 0
  .amdhsa_kernarg_size 80
  .amdhsa_user_sgpr_count 2
  .amdhsa_user_sgpr_kernarg_segment_ptr 1
  .amdhsa_system_sgpr_workgroup_id_x 1
  .amdhsa_float_denorm_mode_32 3
.end_amdhsa_kernel
""" % (name, nv, ns, acc_off)

def allreduce_add(A, regs, tmps):
    for mod in ("quad_perm:[1,0,3,2]", "quad_perm:[2,3,0,1]", "row_half_mirror", "row_mirror"):
        for r in regs:
            A("v_add_f32_dpp v%d, v%d, v%d %s row_mask:0xf bank_mask:0xf" % (r, r, r, mod))
    for sw in ("v_permlane16_swap_b32", "v_permlane32_swap_b32"):
        for r, t in zip(regs, tmps): A("v_mov_b32 v%d, v%d" % (t, r))
        for r, t in zip(regs, tmps): A("%s v%d, v%d" % (sw, r, t))
        for r, t in zip(regs, tmps): A("v_add_f32 v%d, v%d, v%d" % (r, r, t))

MF = "v_mfma_f32_16x16x32_bf16"

K1_LDS = 8 * 2080 + 16384
def gen_k1():
    A = Asm(); kernel_head(A, "k1_kernel")
    RS = 2080; YT = 8 * RS
    A("s_cmp_ge_u32 s2, 256"); A("s_cbranch_scc1 k1_done")
    A("s_load_dwordx2 s[4:5], s[0:1], %d" % KA["x"])
    A("s_load_dwordx2 s[6:7], s[0:1], %d" % KA["ws"])
    tab_srd(A, 20, "k1")
    A("s_and_b32 s24, s2, 7"); A("s_bfe_u32 s25, s2, 0x10003"); A("s_lshr_b32 s26, s2, 4")
    A("s_lshl_b32 s27, s26, 3"); A("s_add_u32 s27, s27, s24")
    A("v_and_b32 v1, 63, v0"); A("v_lshrrev_b32 v2, 6, v0")
    A("v_lshlrev_b32 v3, 4, v1")
    A("s_lshl_b32 s28, s25, 21"); A("s_lshl_b32 s29, s27, 11"); A("s_add_u32 s28, s28, s29")
    A("v_lshl_add_u32 v4, v2, 19, v3")
    A("s_add_u32 s29, s28, 0x40000")
    A("s_waitcnt lgkmcnt(0)")
    srd(A, 8, 4, 0, 4 << 20); srd(A, 12, 6, WS_XN, SZ_XN); srd(A, 16, 6, WS_Y, SZ_Y)
    X = 8
    A("buffer_load_dwordx4 v[8:11], v4, s[8:11], s28 offen")
    A("buffer_load_dwordx4 v[12:15], v4, s[8:11], s28 offen offset:1024")
    A("buffer_load_dwordx4 v[16:19], v4, s[8:11], s29 offen")
    A("buffer_load_dwordx4 v[20:23], v4, s[8:11], s29 offen offset:1024")
    F1 = 64; TW = 72; F2 = 88; F2S = 120
    names = [("f1re", F1), ("f1im", F1 + 4)]
    for bh in range(2):
        for t in range(2): names.append(("tw%d%d" % (bh, t), TW + 8 * bh + 4 * t))
    for dh in range(2):
        for part in range(2):
            for bh in range(2): names.append(("f2_%d%d%d" % (dh, part, bh), F2 + 16 * dh + 8 * part + 4 * bh))
    for part in range(2):
        for bh in range(2): names.append(("f2s_%d%d" % (part, bh), F2S + 8 * part + 4 * bh))
    for nm, r in names: tab_load(A, vr(r, 4), nm, 3, 20, 30)
    NT = len(names)
    A("s_mov_b32 s31, 0xffff0000")
    A("v_and_b32 v5, 15, v1"); A("v_lshrrev_b32 v6, 4, v1")
    A("v_cmp_eq_u32 vcc, 0, v5")
    A("v_mov_b32 v7, 0xffff")
    MG, MP, MQ = 136, 137, 138
    A("v_cndmask_b32 v%d, -1, 0, vcc" % MG)
    A("v_cndmask_b32 v%d, 0, v7, vcc" % MP)
    A("v_lshlrev_b32 v%d, 16, v%d" % (MQ, MP))
    YB0, YB1 = 139, 140
    A("v_lshl_add_u32 v%d, v6, 7, v5" % YB0); A("v_lshlrev_b32 v%d, 5, v%d" % (YB0, YB0))
    A("v_lshl_add_u32 v%d, v2, 3, v%d" % (YB0, YB0))
    A("v_sub_u32 v7, 32, v5"); A("v_cndmask_b32 v7, v7, 16, vcc")
    A("v_lshlrev_b32 v%d, 7, v6" % YB1); A("v_sub_u32 v%d, 384, v%d" % (YB1, YB1)); A("v_add_u32 v%d, v%d, v7" % (YB1, YB1))
    A("v_lshlrev_b32 v%d, 5, v%d" % (YB1, YB1)); A("v_lshl_add_u32 v%d, v2, 3, v%d" % (YB1, YB1))
    XW = 141
    A("v_mul_u32_u24 v%d, %d, v2" % (XW, 2 * RS)); A("v_add_u32 v%d, v%d, v3" % (XW, XW))
    TR = 142
    A("v_lshrrev_b32 v7, 2, v1"); A("v_lshlrev_b32 v7, 6, v7"); A("v_and_b32 v%d, 3, v1" % TR)
    A("v_lshl_add_u32 v7, v%d, 3, v7" % TR); A("v_mul_u32_u24 v%d, %d, v2" % (TR, 2 * RS)); A("v_add_u32 v%d, v%d, v7" % (TR, TR))
    XR = 143
    A("v_and_b32 v7, 7, v1"); A("v_mul_u32_u24 v%d, %d, v7" % (XR, RS))
    A("v_bfe_u32 v7, v1, 3, 2"); A("v_lshl_add_u32 v%d, v7, 3, v%d" % (XR, XR))
    A("v_lshrrev_b32 v7, 5, v0"); A("v_lshl_add_u32 v%d, v7, 6, v%d" % (XR, XR))
    XG = 144
    A("v_lshrrev_b32 v7, 5, v0"); A("v_lshlrev_b32 v%d, 14, v7" % XG)
    A("v_bfe_u32 v7, v1, 3, 2"); A("v_lshl_add_u32 v%d, v7, 8, v%d" % (XG, XG))
    A("v_and_b32 v7, 7, v1"); A("v_lshl_add_u32 v%d, v7, 4, v%d" % (XG, XG))
    A("s_lshr_b32 s32, s27, 4"); A("s_lshl_b32 s32, s32, 19"); A("s_and_b32 s33, s27, 15"); A("s_lshl_b32 s33, s33, 10")
    A("s_add_u32 s32, s32, s33"); A("s_lshl_b32 s33, s25, 7"); A("s_add_u32 s32, s32, s33")
    YG = 145; YR = 146
    A("v_lshrrev_b32 v7, 1, v0"); A("v_lshlrev_b32 v%d, 13, v7" % YG); A("v_and_b32 v7, 1, v0"); A("v_lshl_add_u32 v%d, v7, 4, v%d" % (YG, YG))
    A("s_lshl_b32 s34, s24, 10"); A("s_lshl_b32 s35, s26, 6"); A("s_add_u32 s34, s34, s35"); A("s_lshl_b32 s35, s25, 5"); A("s_add_u32 s34, s34, s35")
    A("v_lshlrev_b32 v%d, 4, v0" % YR)
    A("s_waitcnt vmcnt(%d)" % NT)
    U = 24
    for row in range(2):
        for i in range(8):
            A("v_lshlrev_b32 v%d, 16, v%d" % (U + 16 * row + 2 * i, X + 8 * row + i))
            A("v_and_b32 v%d, s31, v%d" % (U + 16 * row + 2 * i + 1, X + 8 * row + i))
    S = [56, 57]; T = [58, 59]
    for row in range(2):
        b = U + 16 * row
        for i in range(8): A("v_add_f32 v%d, v%d, v%d" % (X + 8 * row + i, b + 2 * i, b + 2 * i + 1))
    for wdt in (4, 2, 1):
        for row in range(2):
            for i in range(wdt):
                d = S[row] if wdt == 1 else X + 8 * row + i
                A("v_add_f32 v%d, v%d, v%d" % (d, X + 8 * row + i, X + 8 * row + i + wdt))
    allreduce_add(A, S, T)
    A("s_mov_b32 s36, 0x%x" % f32(1.0 / 1024))
    for row in range(2): A("v_mul_f32 v%d, s36, v%d" % (S[row], S[row]))
    Q = [60, 61]
    for row in range(2):
        b = U + 16 * row
        for i in range(8):
            A("v_sub_f32 v%d, v%d, v%d" % (X + 8 * row + i, b + 2 * i, S[row]))
            A("v_mul_f32 v%d, v%d, v%d" % (X + 8 * row + i, X + 8 * row + i, X + 8 * row + i))
            A("v_sub_f32 v7, v%d, v%d" % (b + 2 * i + 1, S[row]))
            A("v_fmac_f32 v%d, v7, v7" % (X + 8 * row + i))
    for wdt in (4, 2, 1):
        for row in range(2):
            for i in range(wdt):
                d = Q[row] if wdt == 1 else X + 8 * row + i
                A("v_add_f32 v%d, v%d, v%d" % (d, X + 8 * row + i, X + 8 * row + i + wdt))
    allreduce_add(A, Q, T)
    for row in range(2): A("v_mul_f32 v%d, s36, v%d" % (Q[row], Q[row]))
    for row in range(2): A("v_cvt_pk_bf16_f32 v%d, v%d, v%d" % (T[row], S[row], Q[row]))
    for row in range(2):
        A("v_lshlrev_b32 v%d, 16, v%d" % (S[row], T[row])); A("v_and_b32 v%d, s31, v%d" % (Q[row], T[row]))
    for row in range(2): A("v_add_f32 v%d, 0x%x, v%d" % (Q[row], f32(1e-5), Q[row]))
    A("v_cvt_pk_bf16_f32 v%d, v%d, v%d" % (T[0], Q[0], Q[1]))
    A("v_lshlrev_b32 v%d, 16, v%d" % (Q[0], T[0])); A("v_and_b32 v%d, s31, v%d" % (Q[1], T[0]))
    for row in range(2): A("v_sqrt_f32 v%d, v%d" % (Q[row], Q[row]))
    A("v_cvt_pk_bf16_f32 v%d, v%d, v%d" % (T[0], Q[0], Q[1]))
    A("v_lshlrev_b32 v%d, 16, v%d" % (Q[0], T[0])); A("v_and_b32 v%d, s31, v%d" % (Q[1], T[0]))
    for row in range(2): A("v_rcp_f32 v%d, v%d" % (Q[row], Q[row]))
    for row in range(2):
        b = U + 16 * row
        for i in range(16): A("v_sub_f32 v%d, v%d, v%d" % (b + i, b + i, S[row]))
        for i in range(8): A("v_cvt_pk_bf16_f32 v%d, v%d, v%d" % (X + 8 * row + i, b + 2 * i, b + 2 * i + 1))
        for i in range(8):
            A("v_lshlrev_b32 v%d, 16, v%d" % (b + 2 * i, X + 8 * row + i)); A("v_and_b32 v%d, s31, v%d" % (b + 2 * i + 1, X + 8 * row + i))
        for i in range(16): A("v_mul_f32 v%d, v%d, v%d" % (b + i, b + i, Q[row]))
        for i in range(8): A("v_cvt_pk_bf16_f32 v%d, v%d, v%d" % (X + 8 * row + i, b + 2 * i, b + 2 * i + 1))
        A("ds_write_b128 v%d, v[%d:%d] offset:%d" % (XW, X + 8 * row, X + 8 * row + 3, row * RS))
        A("ds_write_b128 v%d, v[%d:%d] offset:%d" % (XW, X + 8 * row + 4, X + 8 * row + 7, row * RS + 1024))
    A("s_waitcnt lgkmcnt(0)")
    for row in range(2):
        for bh in range(2):
            for hh in range(2):
                r = X + 8 * row + 4 * bh + 2 * hh
                A("ds_read_b64_tr_b16 v[%d:%d], v%d offset:%d" % (r, r + 1, TR, row * RS + hh * 1024 + bh * 32))
    A("s_barrier")
    XO = 148
    for it in range(4):
        A("ds_read_b64 v[%d:%d], v%d offset:%d" % (XO + 4 * it, XO + 4 * it + 1, XR, it * 512))
        A("ds_read_b64 v[%d:%d], v%d offset:%d" % (XO + 4 * it + 2, XO + 4 * it + 3, XR, it * 512 + 32))
    A("s_waitcnt vmcnt(0) lgkmcnt(8)")
    for row in range(2):
        for bh in range(2):
            for part in range(2):
                d = U + 16 * row + 8 * bh + 4 * part
                A("%s v[%d:%d], v[%d:%d], v[%d:%d], 0" % (MF, d, d + 3, X + 8 * row + 4 * bh, X + 8 * row + 4 * bh + 3, F1 + 4 * part, F1 + 4 * part + 3))
    A("s_waitcnt lgkmcnt(0)")
    for it in range(4):
        A("s_add_u32 s33, s32, 0x%x" % (it * 8 * 16384))
        A("buffer_store_dwordx4 v[%d:%d], v%d, s[12:15], s33 offen" % (XO + 4 * it, XO + 4 * it + 3, XG))
    PP, PQ = 164, 180
    for row in range(2):
        for bh in range(2):
            for r in range(4):
                re = U + 16 * row + 8 * bh + r; im = re + 4
                tc = TW + 8 * bh + r; ts = tc + 4
                A("v_mul_f32 v56, v%d, v%d" % (re, tc)); A("v_mul_f32 v57, v%d, v%d" % (im, tc))
                A("v_fmac_f32 v56, v%d, v%d" % (im, ts)); A("v_fma_f32 v57, -v%d, v%d, v57" % (re, ts))
                o = 8 * row + 4 * bh + r
                A("v_cvt_pk_bf16_f32 v58, v56, v57")
                A("v_and_b32 v%d, v58, v%d" % (X + o, MG)); A("v_and_b32 v%d, v58, v%d" % (PP + o, MP)); A("v_and_b32 v%d, v58, v%d" % (PQ + o, MQ))
    for row in range(2):
        for bh in range(2):
            for dh in range(2):
                for part in range(2):
                    d = U + 16 * row + 8 * dh + 4 * part
                    a = F2 + 16 * dh + 8 * part + 4 * bh; b = X + 8 * row + 4 * bh
                    A("%s v[%d:%d], v[%d:%d], v[%d:%d], %s" % (MF, d, d + 3, a, a + 3, b, b + 3, "0" if bh == 0 else "v[%d:%d]" % (d, d + 3)))
        for bh in range(2):
            for dh in range(2):
                for part in range(2):
                    d = U + 16 * row + 8 * dh + 4 * part
                    a = F2S + 8 * part + 4 * bh; b = (PP if dh == 0 else PQ) + 8 * row + 4 * bh
                    A("%s v[%d:%d], v[%d:%d], v[%d:%d], v[%d:%d]" % (MF, d, d + 3, a, a + 3, b, b + 3, d, d + 3))
    YP = 64
    for row in range(2):
        for dh in range(2):
            for r in range(4):
                re = U + 16 * row + 8 * dh + r
                A("v_cvt_pk_bf16_f32 v%d, v%d, v%d" % (YP + 8 * dh + 2 * r + row, re, re + 4))
    for dh in range(2):
        for r in range(4):
            p = YP + 8 * dh + 2 * r
            A("ds_write_b64 v%d, v[%d:%d] offset:%d" % (YB0 if dh == 0 else YB1, p, p + 1, YT + (r if dh == 0 else 3 - r) * 1024))
    A("s_waitcnt lgkmcnt(0)"); A("s_barrier")
    for it in range(4): A("ds_read_b128 v[%d:%d], v%d offset:%d" % (8 + 4 * it, 11 + 4 * it, YR, YT + it * 4096))
    for it in range(4):
        A("s_add_u32 s35, s34, 0x%x" % (it * 128 * 8192))
        A("s_waitcnt lgkmcnt(%d)" % (3 - it))
        A("buffer_store_dwordx4 v[%d:%d], v%d, s[16:19], s35 offen" % (8 + 4 * it, 11 + 4 * it, YG))
    A.label("k1_done"); A("s_endpgm")
    A.fix()
    return A.text() + kernel_desc("k1_kernel", 200, 200, 48)

from gen_k2 import gen_k2, K2_LDS
from gen_k3 import gen_k3, K3_LDS

def main():
    build_tables()
    stub = open("cdna_kernels/%s.s.ref" % NAME).read().split("\n")
    head = [l for l in stub if l.startswith(";") and "@launch" not in l and "Override" not in l and "grid=ceil" not in l]
    o = "\n".join(head[:12]) + "\n"
    o += "; @launch kernel=k1_kernel grid=(256,1,1) block=(256,1,1) lds=%d\n" % K1_LDS
    o += "; @launch kernel=k2_kernel grid=(256,1,1) block=(256,1,1) lds=%d\n" % K2_LDS
    o += "; @launch kernel=k3_kernel grid=(256,1,1) block=(256,1,1) lds=%d\n" % K3_LDS
    o += '.amdgcn_target "amdgcn-amd-amdhsa--gfx950"\n'
    import gen as G
    o += gen_k1() + gen_k2(sys.modules[__name__]) + gen_k3(sys.modules[__name__])
    o += '.section .rodata,"a"\n.p2align 8\n.type gf_tab,@object\ngf_tab:\n'
    for b in TAB.blocks:
        for i in range(0, 256, 8): o += ".long " + ",".join("0x%x" % x for x in b[i:i + 8]) + "\n"
    o += ".size gf_tab, %d\n" % (len(TAB.blocks) * 1024)
    path = sys.argv[1] if len(sys.argv) > 1 else "cdna_kernels/%s.s" % NAME
    open(path, "w").write(o)
    print("wrote", path, len(o), "bytes")

if __name__ == "__main__":
    main()
```

```python
from asmlib import *
import math
K2_LDS = 128 * 1024
MF = "v_mfma_f32_16x16x32_bf16"

def gen_gemm1(A, G):
    KA = G.KA
    G.stamp(A, 0); G.stamp(A, 1, True)
    A("s_load_dwordx4 s[4:7], s[0:1], %d" % KA["wg"])
    A("s_load_dwordx2 s[8:9], s[0:1], %d" % KA["ws"])
    A("s_load_dwordx2 s[10:11], s[0:1], %d" % KA["wd"])
    A("s_and_b32 s40, s2, 7"); A("s_lshr_b32 s41, s2, 3"); A("s_sub_u32 s41, s41, 4")
    A("s_and_b32 s42, s40, 1"); A("s_lshl_b32 s42, s42, 2"); A("s_and_b32 s43, s41, 3"); A("s_add_u32 s42, s42, s43")
    A("s_lshr_b32 s43, s40, 1"); A("s_mul_i32 s43, s43, 7"); A("s_lshr_b32 s44, s41, 2"); A("s_add_u32 s43, s43, s44")
    A("v_and_b32 v1, 63, v0"); A("v_lshrrev_b32 v2, 6, v0")
    A("v_readfirstlane_b32 s45, v2")
    A("v_lshlrev_b32 v3, 4, v1")
    A("s_and_b32 s46, s45, 1"); A("s_lshr_b32 s47, s45, 1")
    A("v_lshrrev_b32 v4, 4, v1")
    A("s_lshl_b32 s48, s46, 2"); A("v_add_u32 v4, s48, v4")
    A("v_lshlrev_b32 v5, 1, v4"); A("v_and_b32 v6, 15, v1"); A("v_xor_b32 v5, v5, v6")
    A("s_lshl_b32 s48, s47, 4"); A("v_add_u32 v4, s48, v4")
    A("v_mul_u32_u24 v4, 7168, v4"); A("v_lshl_add_u32 v4, v5, 4, v4")
    A("s_lshl_b32 s48, s47, 13"); A("v_add_u32 v5, s48, v3"); A("v_add_u32 v6, 0x10000, v5")
    A("v_bfe_u32 v7, v1, 4, 1"); A("v_lshlrev_b32 v16, 12, v7")
    A("v_bfe_u32 v7, v1, 5, 1"); A("v_lshl_add_u32 v16, v7, 10, v16")
    A("v_bfe_u32 v7, v1, 2, 2"); A("v_lshl_add_u32 v16, v7, 8, v16")
    A("v_and_b32 v7, 3, v1"); A("v_lshl_add_u32 v16, v7, 3, v16"); A("v_add_u32 v16, 0x4000, v16")
    A("v_bfe_u32 v7, v1, 2, 3")
    A("s_lshl_b32 s48, s46, 2")
    for t in range(4):
        A("s_add_u32 s49, s48, %d" % t)
        A("v_xor_b32 v17, s49, v7"); A("v_lshl_add_u32 v%d, v17, 5, v16" % (8 + t)); A("v_add_u32 v%d, 0x10000, v%d" % (12 + t, 8 + t))
    A("s_waitcnt lgkmcnt(0)")
    G.srd(A, 12, 8, G.WS_XN, G.SZ_XN)
    G.srd(A, 16, 4, 0, 1024 * 7168)
    G.srd(A, 20, 6, -2048, 1024 * 7168 + 2048)
    G.srd(A, 24, 8, G.WS_HZ, G.SZ_HZ)
    G.srd(A, 52, 10, 0, 3584 * 2048)
    A("s_lshl_b32 s30, s42, 19"); A("s_lshl_b32 s48, s45, 12"); A("s_add_u32 s30, s30, s48")
    A("s_lshl_b32 s31, s43, 8"); A("s_add_u32 s32, s31, %d" % (57344 - 1024))
    A("s_lshl_b32 s33, s45, 12"); A("s_add_u32 s34, s33, 0x4000")

    def dma(buf):
        o = []
        o.append(["s_add_u32 m0, s33, 0x%x" % (buf * 32768), "buffer_load_dwordx4 v3, s[12:15], s30 offen lds"])
        for p in range(1, 4): o.append(["buffer_load_dwordx4 v3, s[12:15], s30 offen offset:%d lds" % (p * 1024)])
        o[-1].append("s_add_u32 s30, s30, 0x4000")
        o.append(["s_add_u32 m0, s34, 0x%x" % (buf * 32768), "buffer_load_dwordx4 v4, s[16:19], s31 offen lds"])
        o.append(["buffer_load_dwordx4 v4, s[16:19], s32 offen offset:1024 lds"])
        o.append(["buffer_load_dwordx4 v4, s[20:23], s31 offen offset:2048 lds", "s_add_u32 s31, s31, %d" % (32 * 7168)])
        o.append(["buffer_load_dwordx4 v4, s[20:23], s32 offen offset:3072 lds", "s_add_u32 s32, s32, %d" % (32 * 7168)])
        return o
    def acc(it, jt):
        return ("v", 32 + (jt * 8 + it) * 4) if jt < 7 else ("a", 128 + it * 4)
    def reads(buf, st):
        base = 64 * st; hi = buf >> 1; off = (buf & 1) * 32768
        o = []; la = []; lb = []
        for it in range(8):
            mat, t = it >> 2, it & 3
            for h in range(2):
                r = base + 4 * it + 2 * h
                la.append("ds_read_b64_tr_b16 a[%d:%d], v%d offset:%d" % (r, r + 1, (12 if hi else 8) + t, off + h * 8192 + mat * 2048))
        for jt in range(8):
            r = base + 32 + 4 * jt
            lb.append("ds_read_b128 a[%d:%d], v%d offset:%d" % (r, r + 3, 6 if hi else 5, off + jt * 1024))
        for i in range(8): o += [lb[i], la[2 * i], la[2 * i + 1]]
        return o
    def mfmas(st, first=False):
        base = 64 * st; o = []
        for jt in range(8):
            for it in range(8):
                f, d = acc(it, jt); dd = "%s[%d:%d]" % (f, d, d + 3)
                o.append("%s %s, a[%d:%d], a[%d:%d], %s" % (MF, dd, base + 4 * it, base + 4 * it + 3, base + 32 + 4 * jt, base + 35 + 4 * jt, "0" if first else dd))
        return o
    def step(i, dmas, do_read, vm, first=False, rd0=1, mid=None, extra=None):
        m = mfmas(i & 1, first)
        s1 = interleave(m, reads((i + 1) & 3, (i + 1) & 1), rd0, 56 if rd0 > 1 else 52) if do_read else [[] for _ in m]
        dl = []
        for b_ in dmas: dl += dma(b_)
        if extra: dl += extra
        s2 = interleave(m, dl, 0, 64) if dl else [[] for _ in m]
        for k, x in enumerate(m):
            A(x)
            if mid is not None and k == rd0 - 1:
                nv = sum(1 for kk in range(k + 1) for y in s2[kk] if y.startswith("buffer"))
                for y in s2[k]: A(y)
                A("s_waitcnt vmcnt(%d)" % (mid + nv)); A("s_barrier")
                continue
            for y in s2[k] + s1[k]: A(y)
        if vm is not None:
            A("s_waitcnt vmcnt(%d) lgkmcnt(0)" % vm); A("s_barrier")
    def flat(l):
        for x in l:
            for y in x: A(y)
    flat(dma(0)); flat(dma(1))
    G.stamp(A, 2)
    A("s_waitcnt vmcnt(8)"); A("s_barrier")
    G.stamp(A, 3)
    for x in reads(0, 0): A(x)
    flat(dma(2))
    A("s_waitcnt lgkmcnt(0)")
    G.stamp(A, 4)
    step(0, [3, 0], True, 16, first=True, rd0=24, mid=8)
    for i in range(1, 4): step(i, [i & 3], True, 16)
    A("s_mov_b32 s35, 6")
    A.raw(".p2align 6")
    A.label("g1_loop")
    for i in range(4): step(i, [i], True, 16)
    A("s_sub_u32 s35, s35, 1"); A("s_cmp_lg_u32 s35, 0"); A("s_cbranch_scc1 g1_loop")
    G.stamp(A, 5)
    pf = []
    if G.PREFETCH:
        A("s_sub_u32 s50, s2, 32"); A("s_lshl_b32 s50, s50, 15"); A("s_add_u32 s51, s50, 16384")
        A("v_lshlrev_b32 v17, 6, v0")
        pf = [["buffer_load_dword v1, v17, s[52:55], s50 offen"], ["buffer_load_dword v2, v17, s[52:55], s51 offen"]]
    step(0, [], True, 8); step(1, [], True, 0); step(2, [], True, None, extra=pf)
    A("s_waitcnt lgkmcnt(0)")
    step(3, [], False, None)
    G.stamp(A, 6)
    A("s_lshl_b32 s36, s42, 1"); A("s_add_u32 s36, s36, s47"); A("s_mul_i32 s36, s36, 144")
    A("s_lshl_b32 s37, s43, 2"); A("s_add_u32 s36, s36, s37"); A("s_lshl_b32 s37, s46, 1"); A("s_add_u32 s36, s36, s37")
    A("s_lshl_b32 s36, s36, 13")
    c0 = math.sqrt(2 / math.pi)
    c1 = -2 * c0 * math.log2(math.e); c2 = c1 * 0.044715
    A("s_mov_b32 s38, 0x%x" % G.f32(c2)); A("s_mov_b32 s39, s38")
    A("v_mov_b32 v8, 0x%x" % G.f32(c1)); A("v_mov_b32 v9, v8"); A("v_mov_b32 v10, 1.0"); A("v_mov_b32 v11, 1.0")
    def p2(r): return "v[%d:%d]" % (r, r + 1)
    n = 0
    for jt in range(8):
        if jt == 7:
            for i in range(32): A("v_accvgpr_read_b32 v%d, a%d" % (32 + i, 128 + i))
        for p in range(2):
            b0 = 32 + (jt % 7) * 32
            g = b0 + 8 * p; u = b0 + 16 + 8 * p
            T = 16 + 8 * (n % 2); n += 1
            H4 = range(0, 8, 2)
            for e in H4: A("v_pk_mul_f32 %s, %s, %s" % (p2(T + e), p2(g + e), p2(g + e)))
            for e in H4: A("v_pk_fma_f32 %s, %s, s[38:39], v[8:9]" % (p2(T + e), p2(T + e)))
            for e in H4: A("v_pk_mul_f32 %s, %s, %s" % (p2(T + e), p2(T + e), p2(g + e)))
            for e in range(8): A("v_exp_f32 v%d, v%d" % (T + e, T + e))
            for e in H4: A("v_pk_mul_f32 %s, %s, %s" % (p2(u + e), p2(u + e), p2(g + e)))
            for e in H4: A("v_pk_add_f32 %s, %s, v[10:11]" % (p2(T + e), p2(T + e)))
            for e in range(8): A("v_rcp_f32 v%d, v%d" % (T + e, T + e))
            A("s_add_u32 s37, s36, 0x%x" % (p * 8192 + (jt >> 2) * 4096))
            for e in H4: A("v_pk_mul_f32 %s, %s, %s" % (p2(u + e), p2(u + e), p2(T + e)))
            for e in range(4): A("v_cvt_pk_bf16_f32 v%d, v%d, v%d" % (g + e, u + 2 * e, u + 2 * e + 1))
            A("buffer_store_dwordx4 v[%d:%d], v3, s[24:27], s37 offen offset:%d%s" % (g, g + 3, (jt & 3) * 1024, G.H_FLAGS))
    G.stamp(A, 7)
    if G.STAMP: A("s_waitcnt vmcnt(0)")
    G.stamp(A, 8); G.stamp(A, 9, True)
    G.stamp_out(A, 1, 10, 8, "g1")
    A("s_endpgm")

def gen_colfft(A, G):
    KA = G.KA
    G.stamp(A, 0); G.stamp(A, 1, True)
    A("s_load_dwordx2 s[8:9], s[0:1], %d" % KA["ws"])
    G.tab_srd(A, 28, "k2")
    A("v_and_b32 v1, 63, v0"); A("v_lshrrev_b32 v2, 6, v0")
    A("v_readfirstlane_b32 s45, v2")
    A("v_lshlrev_b32 v3, 4, v1")
    DAT, FA, FE = 128, 160, 176
    W, T1, T2, D, P, TMP = 8, 40, 48, 104, 168, 200
    names = []
    for inv in range(2):
        for part in range(2): names.append(("fa_%d%d" % (inv, part), ar(FA + 8 * inv + 4 * part, 4)))
    for t in range(2): names.append(("t1_%d" % t, vr(T1 + 4 * t, 4)))
    for e in range(1, 8):
        for t in range(2): names.append(("t2_%d%d" % (e, t), vr(T2 + 8 * (e - 1) + 4 * t, 4)))
    for o in range(4):
        for ih in range(2): names.append(("fe_%d%d" % (o, ih), ar(FE + 8 * o + 4 * ih, 4)))
    for nm, r in names: G.tab_load(A, r, nm, 3, 28, 42)
    A("v_and_b32 v4, 15, v1"); A("v_lshrrev_b32 v5, 4, v1")
    A("v_lshlrev_b32 v6, 6, v4"); A("v_lshl_add_u32 v6, v5, 4, v6")
    A("v_add_u32 v7, 0x1000, v6"); A("v_add_u32 v4, 0x1000, v3")
    A("s_lshl_b32 s40, s2, 4"); A("s_lshl_b32 s41, s45, 2"); A("s_add_u32 s40, s40, s41"); A("s_lshl_b32 s40, s40, 13")
    A("s_waitcnt lgkmcnt(0)")
    G.srd(A, 12, 8, G.WS_WT, G.SZ_WT)
    G.srd(A, 20, 8, G.WS_Y, G.SZ_Y); G.srd(A, 24, 8, G.WS_HZ, G.SZ_HZ); G.srd(A, 32, 8, G.WS_G, G.SZ_G)
    def yload():
        for e in range(8):
            A("buffer_load_dwordx4 a[%d:%d], v%d, s[20:23], s40 offen offset:%d" % (DAT + 4 * e, DAT + 4 * e + 3, 6 if e < 4 else 7, (e & 3) * 1024))
    def wload():
        for e in range(8):
            A("buffer_load_dwordx4 v[%d:%d], v%d, s[12:15], s40 offen offset:%d" % (W + 4 * e, W + 4 * e + 3, 3 if e < 4 else 4, (e & 3) * 1024))
    yload(); wload()
    A("s_mov_b32 s46, 0x05040100")
    A("s_mov_b32 s48, 0")
    A("s_or_b32 s49, s2, s45"); A("s_cmp_eq_u32 s49, 0"); A("s_cselect_b32 s49, 5, 4")
    A("s_mov_b32 s50, 0xffff0000")
    G.stamp(A, 2); G.stamp(A, 3)
    A("s_waitcnt vmcnt(8)")
    G.stamp(A, 4)
    A.label("cf_loop")
    A("s_waitcnt vmcnt(8)")
    def q(f, r): return "%s[%d:%d]" % (f, r, r + 3)
    def p2(r): return "v[%d:%d]" % (r, r + 1)
    def mm(d, a, b, c=None):
        A("%s %s, %s, %s, %s" % (MF, q("v", d), a, b, "0" if c is None else q("v", c)))
    tctr = [0]
    def tw_quads(dsts, re, tc, conj):
        t = TMP + 8 * (tctr[0] % 4); tctr[0] += 1
        im = re + 4; ts = tc + 4
        neg = " neg_lo:[1,0,0] neg_hi:[1,0,0]"
        for h in (0, 2): A("v_pk_mul_f32 %s, %s, %s" % (p2(t + h), p2(re + h), p2(tc + h)))
        for h in (0, 2): A("v_pk_mul_f32 %s, %s, %s" % (p2(t + 4 + h), p2(im + h), p2(tc + h)))
        for h in (0, 2): A("v_pk_fma_f32 %s, %s, %s, %s%s" % (p2(t + h), p2(im + h), p2(ts + h), p2(t + h), neg if conj else ""))
        for h in (0, 2): A("v_pk_fma_f32 %s, %s, %s, %s%s" % (p2(t + 4 + h), p2(re + h), p2(ts + h), p2(t + 4 + h), "" if conj else neg))
        for r in range(4): A("v_cvt_pk_bf16_f32 v%d, v%d, v%d" % (dsts[r], t + r, t + 4 + r))
    def cm_pairs(items):
        ts = []
        for _ in items:
            ts.append(TMP + 2 * (tctr[0] % 8)); tctr[0] += 1
        for (dst, z, c, s_), t in zip(items, ts):
            A("v_pk_mul_f32 %s, %s, %s op_sel:[0,%d] op_sel_hi:[1,%d]" % (p2(t), p2(z), p2(c & ~1), c & 1, c & 1))
        for (dst, z, c, s_), t in zip(items, ts):
            A("v_pk_fma_f32 %s, %s, %s, %s op_sel:[1,%d,0] op_sel_hi:[0,%d,1] neg_lo:[1,0,0]" % (p2(t), p2(z), p2(s_ & ~1), p2(t), s_ & 1, s_ & 1))
        for (dst, z, c, s_), t in zip(items, ts):
            A("v_cvt_pk_bf16_f32 v%d, v%d, v%d" % (dst, t, t + 1))
    for e in range(8):
        mm(D + 8 * e, q("a", DAT + 4 * e), q("a", FA)); mm(D + 8 * e + 4, q("a", DAT + 4 * e), q("a", FA + 4))
    A("s_add_u32 s40, s40, 0x2000"); A("s_cmp_eq_u32 s48, 3"); A("s_cselect_b32 s40, 0x%x, s40" % (512 * 8192))
    yload()
    for e in range(8): tw_quads([P + 4 * e + r for r in range(4)], D + 8 * e, T1, False)
    for e in range(8):
        mm(D + 8 * e, q("a", FA), q("v", P + 4 * e)); mm(D + 8 * e + 4, q("a", FA + 4), q("v", P + 4 * e))
    for e in range(8):
        if e == 0:
            for r in range(4): A("v_cvt_pk_bf16_f32 v%d, v%d, v%d" % (P + 8 * r, D + r, D + 4 + r))
        else: tw_quads([P + 8 * r + e for r in range(4)], D + 8 * e, T2 + 8 * (e - 1), False)
    def stageE():
        for r in range(4):
            for o in range(4): mm(D + 16 * r + 4 * o, q("a", FE + 8 * o), q("v", P + 8 * r))
            for o in range(4): mm(D + 16 * r + 4 * o, q("a", FE + 8 * o + 4), q("v", P + 8 * r + 4), D + 16 * r + 4 * o)
    stageE()
    A("s_waitcnt vmcnt(8)")
    U = TMP + 16
    for r in range(4):
        for eh in range(2):
            items = []
            for k in range(4):
                ep = 4 * eh + k; w = W + 4 * ep + r; u = U + 8 * (eh & 1) + 2 * k
                A("v_lshlrev_b32 v%d, 16, v%d" % (u, w)); A("v_and_b32 v%d, s50, v%d" % (u + 1, w))
                items.append((P + 8 * r + ep, D + 16 * r + 2 * ep, u, u + 1))
            cm_pairs(items)
    wload()
    stageE()
    for r in range(4):
        A("v_cvt_pk_bf16_f32 v%d, v%d, v%d" % (P + r, D + 16 * r, D + 16 * r + 1))
        for xs in ((1, 2, 3, 4), (5, 6, 7)):
            cm_pairs([(P + 4 * (8 - x) + r, D + 16 * r + 2 * x, T2 + 8 * (7 - x) + r, T2 + 8 * (7 - x) + 4 + r) for x in xs])
    for e in range(8):
        mm(D + 8 * e, q("v", P + 4 * e), q("a", FA + 8)); mm(D + 8 * e + 4, q("v", P + 4 * e), q("a", FA + 12))
    for e in range(8): tw_quads([P + 4 * e + r for r in range(4)], D + 8 * e, T1, True)
    for e in range(8):
        mm(D + 8 * e, q("v", P + 4 * e), q("a", FA + 8)); mm(D + 8 * e + 4, q("v", P + 4 * e), q("a", FA + 12))
    for e in range(8):
        for r in range(4): A("v_cvt_pk_bf16_f32 v%d, v%d, v%d" % (P + 4 * e + r, D + 8 * e + r, D + 8 * e + 4 + r))
    for cc in range(4):
        A("s_cmp_eq_u32 s48, %d" % cc); A("s_cbranch_scc0 cf_o%d" % cc)
        for qq in range(32): A("v_accvgpr_write_b32 a%d, v%d" % (4 * qq + cc, P + qq))
        A.label("cf_o%d" % cc)
    A("s_cmp_eq_u32 s48, 4"); A("s_cbranch_scc0 cf_o4")
    for qq in range(32): A("v_accvgpr_read_b32 v%d, a%d" % (D + qq, 4 * qq))
    for qq in range(32): A("v_perm_b32 v%d, v%d, v%d, s46" % (D + qq, P + qq, D + qq))
    for qq in range(32): A("v_accvgpr_write_b32 a%d, v%d" % (4 * qq, D + qq))
    A.label("cf_o4")
    A("s_add_u32 s48, s48, 1"); A("s_cmp_lt_u32 s48, s49"); A("s_cbranch_scc1 cf_loop")
    G.stamp(A, 5)
    A("v_and_b32 v4, 15, v1"); A("v_lshlrev_b32 v4, 4, v4"); A("v_lshrrev_b32 v5, 4, v1")
    A("s_mov_b32 s41, %d" % (4 * 144 * 8192)); A("v_mul_lo_u32 v5, s41, v5"); A("v_add_u32 v4, v4, v5")
    A("v_add_u32 v5, 0x1000, v4")
    A("s_add_u32 s41, s2, 112"); A("s_lshl_b32 s41, s41, 13"); A("s_lshl_b32 s42, s45, 8"); A("s_add_u32 s41, s41, s42")
    for r in range(4):
        A("s_add_u32 s42, s41, %d" % (r * 144 * 8192))
        for e in range(8):
            q = 4 * e + r
            A("buffer_store_dwordx4 a[%d:%d], v%d, s[24:27], s42 offen offset:%d" % (4 * q, 4 * q + 3, 4 if e < 4 else 5, (e & 3) * 1024))
    A("s_waitcnt vmcnt(0)")
    G.stamp(A, 6)
    A("v_and_b32 v8, 127, v0"); A("v_lshlrev_b32 v9, 3, v8")
    A("v_lshrrev_b32 v10, 7, v0")
    A("v_lshlrev_b32 v11, 4, v8"); A("v_lshl_add_u32 v11, v10, 12, v11")
    A("s_lshl_b32 s41, s2, 4"); A("v_add_u32 v10, s41, v10")
    A("s_mov_b32 s42, 0x%x" % G.f32(1.0 / 1024)); A("s_mov_b32 s43, 0x%x" % G.f32(2.0 ** -20)); A("s_movk_i32 s44, 0x3ff")
    A("s_lshl_b32 s51, s2, 16")
    for it in range(8):
        g, ch = it >> 1, it & 1
        B = 16 + 32 * (it & 1)
        A("v_mul_u32_u24 v12, v10, v9")
        for i in range(8):
            A("v_and_b32 v%d, s44, v12" % (B + i))
            if i < 7: A("v_add_u32 v12, v12, v10")
        for i in range(8): A("v_cvt_f32_u32 v%d, v%d" % (B + i, B + i))
        for i in range(8): A("v_mul_f32 v%d, s42, v%d" % (B + i, B + i))
        for i in range(8): A("v_sin_f32 v%d, v%d" % (B + 8 + i, B + i))
        for i in range(8): A("v_cos_f32 v%d, v%d" % (B + i, B + i))
        for i in range(8): A("v_mul_f32 v%d, -s43, v%d" % (B + 8 + i, B + 8 + i))
        for i in range(8): A("v_mul_f32 v%d, s43, v%d" % (B + i, B + i))
        for i in range(8): A("v_cvt_pk_bf16_f32 v%d, v%d, v%d" % (B + 16 + i, B + 2 * i, B + 2 * i + 1))
        if it == 0:
            one = G.bf16(2.0 ** -21)
            A("v_cmp_eq_u32 vcc, 0, v10")
            A("v_mov_b32 v13, 0x%x" % (one | (one << 16))); A("v_mov_b32 v14, 0x%x" % (one | ((one | 0x8000) << 16)))
            for i in range(4): A("v_cndmask_b32 v%d, v%d, v13, vcc" % (B + 16 + i, B + 16 + i))
            for i in range(4): A("v_cndmask_b32 v%d, v%d, v14, vcc" % (B + 20 + i, B + 20 + i))
        A("s_add_u32 s52, s51, %d" % ((16 * ch + 4 * g) * 2048))
        A("buffer_store_dwordx4 v[%d:%d], v11, s[32:35], s52 offen" % (B + 16, B + 19))
        A("buffer_store_dwordx4 v[%d:%d], v11, s[32:35], s52 offen offset:2048" % (B + 20, B + 23))
        A("v_add_u32 v10, 2, v10")
    G.stamp(A, 7)
    if G.STAMP: A("s_waitcnt vmcnt(0)")
    G.stamp(A, 8); G.stamp(A, 9, True)
    G.stamp_out(A, 1, 10, 8, "cf")
    A("s_endpgm")

def gen_k2(G):
    A = Asm(); G.kernel_head(A, "k2_kernel")
    A("s_cmp_ge_u32 s2, 256"); A("s_cbranch_scc1 k2_done")
    import os
    dbg = os.environ.get("K2DBG", "")
    A("s_cmp_lt_u32 s2, 32"); A("s_cbranch_scc1 %s" % ("k2_done" if dbg == "nofft" else "k2_fft"))
    if dbg == "nogemm": A("s_endpgm")
    gen_gemm1(A, G)
    A.label("k2_fft")
    gen_colfft(A, G)
    A.label("k2_done"); A("s_endpgm")
    A.fix()
    return A.text() + G.kernel_desc("k2_kernel", 512, 256, 64)
```

```python
from asmlib import *
import math
K3_LDS = 64 * 1024
MF = "v_mfma_f32_16x16x32_bf16"

def gen_k3(G):
    KA = G.KA
    A = Asm(); G.kernel_head(A, "k3_kernel")
    A("s_cmp_ge_u32 s2, 256"); A("s_cbranch_scc1 k3_done")
    G.stamp(A, 0); G.stamp(A, 1, True)
    A("s_load_dwordx2 s[4:5], s[0:1], %d" % KA["x"])
    A("s_load_dwordx4 s[8:11], s[0:1], %d" % KA["wd"])
    A("s_load_dwordx2 s[6:7], s[0:1], %d" % KA["ws"])
    A("s_and_b32 s40, s2, 7"); A("s_lshr_b32 s41, s2, 3")
    A("s_lshr_b32 s42, s40, 1"); A("s_lshl_b32 s42, s42, 2"); A("s_and_b32 s43, s41, 3"); A("s_add_u32 s42, s42, s43")
    A("s_and_b32 s43, s40, 1"); A("s_lshl_b32 s43, s43, 3"); A("s_lshr_b32 s44, s41, 2"); A("s_add_u32 s43, s43, s44")
    A("v_and_b32 v1, 63, v0"); A("v_lshrrev_b32 v2, 6, v0")
    A("v_readfirstlane_b32 s45, v2")
    A("v_lshlrev_b32 v3, 4, v1")
    A("v_lshl_add_u32 v4, v2, 11, v3")
    for ks in range(1, 4): A("v_add_u32 v%d, 0x%x, v4" % (4 + ks, ks * 8192))
    A("v_lshrrev_b32 v16, 3, v1"); A("v_lshl_add_u32 v16, v2, 5, v16"); A("v_lshlrev_b32 v16, 11, v16")
    A("v_lshrrev_b32 v17, 4, v1"); A("v_lshlrev_b32 v17, 1, v17"); A("v_and_b32 v18, 7, v1"); A("v_xor_b32 v17, v17, v18")
    A("v_lshl_add_u32 v8, v17, 4, v16")
    for p in range(1, 4): A("v_add_u32 v%d, 0x%x, v8" % (8 + p, p * 15360))
    A("v_lshrrev_b32 v16, 2, v1"); A("v_lshlrev_b32 v16, 7, v16"); A("v_and_b32 v17, 3, v1"); A("v_lshl_add_u32 v16, v17, 3, v16")
    A("v_bfe_u32 v17, v1, 3, 2")
    for t in range(4):
        A("v_xor_b32 v18, %d, v17" % t); A("v_lshl_add_u32 v%d, v18, 5, v16" % (12 + t))
    A("s_waitcnt lgkmcnt(0)")
    G.srd(A, 12, 6, G.WS_HZ, G.SZ_HZ)
    G.srd(A, 16, 8, 0, 3584 * 2048)
    G.srd(A, 20, 6, G.WS_G, G.SZ_G)
    G.srd(A, 24, 4, 0, 4 << 20)
    G.srd(A, 28, 10, 0, 4 << 20)
    A("s_mul_i32 s32, s42, %d" % (144 * 8192))
    A("s_lshl_b32 s33, s43, 7")
    A("s_lshl_b32 s34, s45, 12")
    ACC, SAC, AF = 24, 56, 88
    def dma(slot):
        o = [["s_add_u32 m0, s34, 0x%x" % (slot * 16384), "buffer_load_dwordx4 v8, s[16:19], s33 offen lds"]]
        for p in range(1, 4): o.append(["buffer_load_dwordx4 v%d, s[16:19], s33 offen offset:%d lds" % (8 + p, p * 1024)])
        o[-1].append("s_add_u32 s33, s33, 0x40000")
        return o
    def hload(slot):
        o = []
        for ks in range(4):
            for jt in range(2):
                r = 32 * slot + 8 * ks + 4 * jt
                o.append(["buffer_load_dwordx4 a[%d:%d], v%d, s[12:15], s32 offen offset:%d" % (r, r + 3, 4 + ks, jt * 1024)])
        o[-1].append("s_add_u32 s32, s32, 0x8000")
        return o
    def reads(slot, st):
        o = []
        for ks in range(4):
            for t in range(4):
                for h in range(2):
                    r = AF + 64 * st + 16 * ks + 4 * t + 2 * h
                    o.append("ds_read_b64_tr_b16 v[%d:%d], v%d offset:%d" % (r, r + 1, 12 + t, slot * 16384 + ks * 4096 + h * 2048))
        return o
    def mfmas(i, acc):
        o = []
        for ks in range(4):
            for t in range(4):
                for jt in range(2):
                    d = acc + 8 * t + 4 * jt; a = AF + 64 * (i & 1) + 16 * ks + 4 * t; b = 32 * (i & 3) + 8 * ks + 4 * jt
                    o.append("%s v[%d:%d], v[%d:%d], a[%d:%d], v[%d:%d]" % (MF, d, d + 3, a, a + 3, b, b + 3, d, d + 3))
        return o
    def step(i, acc, do_dma, do_h, do_read, vm, extra=None):
        m = mfmas(i, acc)
        ld = (dma(i & 3) if do_dma else []) + (hload((i + 3) & 3) if do_h else [])
        s1 = interleave(m, reads((i + 1) & 3, (i + 1) & 1), 0, 30) if do_read else [[] for _ in m]
        s2 = interleave(m, ld, 0, 24) if ld else [[] for _ in m]
        s3 = interleave(m, extra, 0, 32) if extra else [[] for _ in m]
        for k, x in enumerate(m):
            A(x)
            for y in s2[k] + s1[k] + s3[k]: A(y)
        if vm is not None:
            A("s_waitcnt vmcnt(%d) lgkmcnt(0)" % vm); A("s_barrier")
    def flat(l):
        for x in l:
            for y in x: A(y)
    flat(dma(0)); flat(dma(1)); flat(hload(0)); flat(dma(2)); flat(hload(1)); flat(dma(3)); flat(hload(2))
    for i in range(64): A("v_mov_b32 v%d, 0" % (ACC + i))
    G.stamp(A, 2)
    A("s_waitcnt vmcnt(36)"); A("s_barrier")
    G.stamp(A, 3)
    for x in reads(0, 0): A(x)
    A("s_waitcnt vmcnt(24) lgkmcnt(0)"); A("s_barrier")
    G.stamp(A, 4)
    A("s_mov_b32 s35, 7")
    A.raw(".p2align 6")
    A.label("g2_loop")
    A("s_cmp_eq_u32 s35, 1"); A("s_cbranch_scc0 g2_nosw")
    A("s_mov_b32 s16, s20"); A("s_mov_b32 s17, s21"); A("s_mov_b32 s18, s22"); A("s_lshl_b32 s33, s43, 7")
    A.label("g2_nosw")
    for i in range(4): step(i, ACC, True, True, True, 24)
    A("s_sub_u32 s35, s35, 1"); A("s_cmp_lg_u32 s35, 0"); A("s_cbranch_scc1 g2_loop")
    G.stamp(A, 5)
    A("v_and_b32 v16, 15, v1"); A("v_lshlrev_b32 v16, 18, v16"); A("v_lshl_add_u32 v16, v2, 12, v16")
    A("v_lshrrev_b32 v17, 4, v1"); A("v_lshl_add_u32 v16, v17, 3, v16")
    A("s_lshl_b32 s36, s42, 14"); A("s_lshl_b32 s37, s43, 7"); A("s_add_u32 s36, s36, s37")
    XR = 216
    nl2e = -math.log2(math.e)
    A("s_mov_b32 s38, 0x%x" % G.f32(nl2e)); A("s_mov_b32 s39, 0xffff0000")
    def silu(lo, n):
        o = []
        T = 232
        for b in range(lo, lo + n, 8):
            for e in range(8): o.append("v_mul_f32 v%d, s38, v%d" % (T + e, ACC + b + e))
            for e in range(8): o.append("v_exp_f32 v%d, v%d" % (T + e, T + e))
            for e in range(8): o.append("v_add_f32 v%d, 1.0, v%d" % (T + e, T + e))
            for e in range(8): o.append("v_rcp_f32 v%d, v%d" % (T + e, T + e))
            for e in range(8): o.append("v_mul_f32 v%d, v%d, v%d" % (ACC + b + e, ACC + b + e, T + e))
        return o
    xl = []
    for t in range(4):
        for jt in range(2):
            r = XR + 4 * t + 2 * jt
            xl.append("buffer_load_dwordx2 v[%d:%d], v16, s[24:27], s36 offen offset:%d" % (r, r + 1, jt * 2048 + t * 32))
    step(0, SAC, True, True, True, 24)
    step(1, SAC, True, True, True, 24, silu(0, 8))
    step(2, SAC, True, True, True, 24, silu(8, 8))
    step(3, SAC, True, True, True, 24, silu(16, 8))
    step(0, SAC, False, True, True, 20, silu(24, 8))
    step(1, SAC, False, False, True, 16, xl)
    step(2, SAC, False, False, True, None)
    A("s_waitcnt vmcnt(8) lgkmcnt(0)")
    step(3, SAC, False, False, False, None)
    A("s_waitcnt vmcnt(0)")
    G.stamp(A, 6)
    for t in range(4):
        for jt in range(2):
            r = XR + 4 * t + 2 * jt; d = 8 * t + 4 * jt; T = AF + 8 * (2 * t + jt)
            A("v_lshlrev_b32 v%d, 16, v%d" % (T, r)); A("v_and_b32 v%d, s39, v%d" % (T + 1, r))
            A("v_lshlrev_b32 v%d, 16, v%d" % (T + 2, r + 1)); A("v_and_b32 v%d, s39, v%d" % (T + 3, r + 1))
            for e in range(4): A("v_fmac_f32 v%d, v%d, v%d" % (T + e, SAC + d + e, ACC + d + e))
            A("v_cvt_pk_bf16_f32 v%d, v%d, v%d" % (T + 4, T, T + 1)); A("v_cvt_pk_bf16_f32 v%d, v%d, v%d" % (T + 5, T + 2, T + 3))
            A("buffer_store_dwordx2 v[%d:%d], v16, s[28:31], s36 offen offset:%d" % (T + 4, T + 5, jt * 2048 + t * 32))
    G.stamp(A, 7)
    if G.STAMP: A("s_waitcnt vmcnt(0)")
    G.stamp(A, 8); G.stamp(A, 9, True)
    G.stamp_out(A, 2, 10, 6, "k3")
    A.label("k3_done"); A("s_endpgm")
    A.fix()
    return A.text() + G.kernel_desc("k3_kernel", 384, 256, 64)
```

```python
import sys, math, struct
import numpy as np
from asmlib import *

NAME = "recurrent_scan__spectral_gfnet__geglu_ffn__prompt"
WS_XN = 0; WS_Y = 40 << 20; WS_HZ = 8 << 20; WS_G = 28 << 20; WS_WT = 32 << 20; SZ_WT = 513 * 8192
SZ_XN = 4 << 20; SZ_Y = 513 * 8192; SZ_HZ = 16 * 144 * 8192; SZ_G = 2 << 20
KA = dict(x=0, wr=8, wi=16, bx=24, wg=32, wu=40, wd=48, out=56, dbg=64, ws=72)

import os
STAMP = os.environ.get("STAMP", "") != ""
def f32(x): return struct.unpack("<I", struct.pack("<f", x))[0]
def bf16(x):
    u = f32(x); return ((u + 0x7FFF + ((u >> 16) & 1)) >> 16) & 0xFFFF
def pk(lo, hi): return bf16(lo) | (bf16(hi) << 16)

class Table:
    def __init__(self): self.blocks = []; self.names = {}
    def add(self, name, fn):
        self.names[name] = len(self.blocks)
        self.blocks.append([d for l in range(64) for d in fn(l)])
    def off(self, name): return self.names[name] * 1024
TAB = Table()
def cs(num, den):
    a = 2 * math.pi * (num % den) / den
    c, s = math.cos(a), math.sin(a)
    if abs(c) < 1e-12: c = 0.0
    if abs(s) < 1e-12: s = 0.0
    return c, s

def build_tables():
    def slot_a(g, j): return 4 * g + j if j < 4 else 16 + 4 * g + (j - 4)
    def f1(part):
        def fn(l):
            g, c = l >> 4, l & 15
            v = []
            for j in range(8):
                a = slot_a(g, j)
                if part == 0: v.append(cs(a * c, 32)[0])
                else: v.append(-cs(a * c, 32)[1] if c else cs(a * 16, 32)[0])
            return [pk(v[2 * i], v[2 * i + 1]) for i in range(4)]
        return fn
    TAB.add("f1re", f1(0)); TAB.add("f1im", f1(1))
    for bh in range(2):
        for t in range(2):
            TAB.add("tw%d%d" % (bh, t), lambda l, bh=bh, t=t: [f32(cs((16 * bh + 4 * (l >> 4) + r) * (l & 15), 1024)[t]) for r in range(4)])
    for dh in range(2):
        for part in range(2):
            for bh in range(2):
                def fn(l, dh=dh, part=part, bh=bh):
                    g, i = l >> 4, l & 15
                    d = 16 * dh + i; o = []
                    for r in range(4):
                        b = 16 * bh + 4 * g + r
                        c, s = cs(b * d, 32)
                        if part == 0: o.append(pk(c, s))
                        else: o.append(pk(-s, c) if dh == 0 else pk(s, -c))
                    return o
                TAB.add("f2_%d%d%d" % (dh, part, bh), fn)
    for part in range(2):
        for bh in range(2):
            def fn(l, part=part, bh=bh):
                g, i = l >> 4, l & 15
                o = []
                for r in range(4):
                    b = 16 * bh + 4 * g + r
                    c, s = cs(b * i, 32)
                    lo = c if part == 0 else (-s if i else cs(b * 16, 32)[0])
                    u = 15 - i
                    c2, s2 = cs(b * (2 * u + 1), 64)
                    hi = c2 if part == 0 else -s2
                    o.append(pk(lo, hi))
                return o
            TAB.add("f2s_%d%d" % (part, bh), fn)
    for inv in range(2):
        for part in range(2):
            def fn(l, inv=inv, part=part):
                g, n = l >> 4, l & 15
                o = []
                for jj in range(4):
                    c, s = cs((4 * g + jj) * n, 16)
                    if inv: s = -s
                    o.append(pk(c, s) if part == 0 else pk(-s, c))
                return o
            TAB.add("fa_%d%d" % (inv, part), fn)
    for o_ in range(4):
        for ih in range(2):
            def fn(l, o_=o_, ih=ih):
                gk, i = l >> 4, l & 15
                if (i >> 2) != gk: return [0, 0, 0, 0]
                r2 = i & 3; ep = 2 * o_ + (r2 >> 1); part = r2 & 1
                o = []
                for jj in range(4):
                    c, s = cs((4 * ih + jj) * ep, 8)
                    o.append(pk(c, s) if part == 0 else pk(-s, c))
                return o
            TAB.add("fe_%d%d" % (o_, ih), fn)
    for t in range(2):
        TAB.add("t1_%d" % t, lambda l, t=t: [f32(cs((4 * (l >> 4) + r) * (l & 15), 256)[t]) for r in range(4)])
    for e in range(1, 8):
        for t in range(2):
            TAB.add("t2_%d%d" % (e, t), lambda l, e=e, t=t: [f32(cs(e * ((l & 15) + 16 * (4 * (l >> 4) + r)), 2048)[t]) for r in range(4)])

def srd(A, d, base, off, size):
    if off >= 0:
        A("s_add_u32 s%d, s%d, 0x%x" % (d, base, off)); A("s_addc_u32 s%d, s%d, 0" % (d + 1, base + 1))
    else:
        A("s_sub_u32 s%d, s%d, 0x%x" % (d, base, -off)); A("s_subb_u32 s%d, s%d, 0" % (d + 1, base + 1))
    A("s_and_b32 s%d, s%d, 0xffff" % (d + 1, d + 1))
    A("s_mov_b32 s%d, 0x%x" % (d + 2, size)); A("s_mov_b32 s%d, 0x20000" % (d + 3))

def tab_srd(A, d, tag):
    A("s_getpc_b64 s[%d:%d]" % (d, d + 1))
    A("s_add_u32 s%d, s%d, gf_tab@rel32@lo+4" % (d, d))
    A("s_addc_u32 s%d, s%d, gf_tab@rel32@hi+12" % (d + 1, d + 1))
    A("s_and_b32 s%d, s%d, 0xffff" % (d + 1, d + 1))
    A("s_mov_b32 s%d, 0x%x" % (d + 2, len(TAB.blocks) * 1024)); A("s_mov_b32 s%d, 0x20000" % (d + 3))

def tab_load(A, dst, name, vlane16, srdt, stmp):
    o = TAB.off(name)
    A("s_mov_b32 s%d, 0x%x" % (stmp, o))
    A("buffer_load_dwordx4 %s, v%d, s[%d:%d], s%d offen" % (dst, vlane16, srdt, srdt + 3, stmp))

def kernel_head(A, name):
    A.raw(".text"); A.raw(".globl %s" % name); A.raw(".p2align 8"); A.raw(".type %s,@function" % name)
    A.label(name)

def kernel_desc(name, nv, acc_off, ns=102):
    if STAMP: ns = 102
    return """.section .rodata,"a"
.p2align 6
.amdhsa_kernel %s
  .amdhsa_next_free_vgpr %d
  .amdhsa_next_free_sgpr %d
  .amdhsa_accum_offset %d
  .amdhsa_group_segment_fixed_size 0
  .amdhsa_kernarg_size 80
  .amdhsa_user_sgpr_count 2
  .amdhsa_user_sgpr_kernarg_segment_ptr 1
  .amdhsa_system_sgpr_workgroup_id_x 1
  .amdhsa_float_denorm_mode_32 3
.end_amdhsa_kernel
""" % (name, nv, ns, acc_off)

def allreduce_add(A, regs, tmps):
    for mod in ("quad_perm:[1,0,3,2]", "quad_perm:[2,3,0,1]", "row_half_mirror", "row_mirror"):
        for r in regs:
            A("v_add_f32_dpp v%d, v%d, v%d %s row_mask:0xf bank_mask:0xf" % (r, r, r, mod))
    for sw in ("v_permlane16_swap_b32", "v_permlane32_swap_b32"):
        for r, t in zip(regs, tmps): A("v_mov_b32 v%d, v%d" % (t, r))
        for r, t in zip(regs, tmps): A("%s v%d, v%d" % (sw, r, t))
        for r, t in zip(regs, tmps): A("v_add_f32 v%d, v%d, v%d" % (r, r, t))

MF = "v_mfma_f32_16x16x32_bf16"

import os
STAMP = os.environ.get("STAMP", "") != ""
WS_STAMP = 64 << 20
def stamp(A, i, real=False):
    if STAMP: A("%s s[%d:%d]" % ("s_memrealtime" if real else "s_memtime", 72 + 2 * i, 73 + 2 * i))
def stamp_out(A, kidx, n, wsreg, tag):
    if not STAMP: return
    A("s_waitcnt vmcnt(0) lgkmcnt(0)")
    srd(A, 96, wsreg, WS_STAMP + kidx * 65536, 65536)
    A("v_lshrrev_b32 v1, 6, v0"); A("v_lshlrev_b32 v1, 6, v1"); A("s_lshl_b32 s68, s2, 8"); A("v_add_u32 v1, s68, v1")
    for i in range(n):
        A("v_mov_b32 v2, s%d" % (72 + 2 * i))
        A("buffer_store_dword v2, v1, s[96:99], 0 offen offset:%d" % (4 * i))
        A("s_nop 1")

K1_LDS = 8 * 2080 + 16384
def gen_k1_help(A):
    A("s_load_dwordx4 s[4:7], s[0:1], %d" % KA["wr"])
    A("s_load_dwordx4 s[8:11], s[0:1], %d" % KA["wg"])
    A("s_load_dwordx2 s[12:13], s[0:1], %d" % KA["ws"])
    A("s_sub_u32 s3, s2, 256")
    A("s_and_b32 s36, s3, 3"); A("s_bfe_u32 s37, s3, 0x10002"); A("s_bfe_u32 s38, s3, 0x20003"); A("s_lshr_b32 s39, s3, 5")
    A("s_lshl_b32 s40, s37, 3"); A("s_lshl_b32 s41, s38, 6"); A("s_add_u32 s40, s40, s41"); A("s_lshl_b32 s41, s39, 8"); A("s_add_u32 s40, s40, s41")
    A("s_mul_i32 s40, s40, 1026"); A("s_lshl_b32 s41, s36, 8"); A("s_add_u32 s40, s40, s41")
    A("v_and_b32 v1, 7, v0"); A("v_lshrrev_b32 v2, 3, v0")
    A("v_mul_u32_u24 v3, 1026, v1"); A("v_lshl_add_u32 v3, v2, 3, v3")
    A("v_lshlrev_b32 v4, 15, v2"); A("v_lshl_add_u32 v4, v1, 4, v4")
    A("s_lshl_b32 s42, s36, 20"); A("s_lshl_b32 s41, s39, 10"); A("s_add_u32 s42, s42, s41"); A("s_lshl_b32 s41, s38, 8"); A("s_add_u32 s42, s42, s41")
    A("s_lshl_b32 s41, s37, 7"); A("s_add_u32 s42, s42, s41")
    A("s_mov_b32 s46, 0x05040100"); A("s_mov_b32 s47, 0x07060302")
    A("v_lshlrev_b32 v5, 6, v0")
    A("s_mul_i32 s43, s3, %d" % (1024 * 7168 // 256))
    A("s_waitcnt lgkmcnt(0)")
    WSZ = 2048 * 1026
    srd(A, 16, 4, 0, WSZ); srd(A, 20, 6, 0, WSZ); srd(A, 24, 12, WS_WT, SZ_WT)
    srd(A, 28, 8, 0, 1024 * 7168); srd(A, 32, 10, 0, 1024 * 7168)
    for r in range(4):
        A("s_add_u32 s41, s40, %d" % (16 * r * 1026))
        A("buffer_load_dwordx2 v[%d:%d], v3, s[16:19], s41 offen" % (8 + 4 * r, 9 + 4 * r))
        A("buffer_load_dwordx2 v[%d:%d], v3, s[20:23], s41 offen" % (10 + 4 * r, 11 + 4 * r))
    A("v_mul_u32_u24 v6, 1026, v1")
    for r in range(4):
        A("s_add_u32 s41, s40, %d" % (16 * r * 1026 + 256))
        A("buffer_load_ushort v%d, v6, s[16:19], s41 offen" % (48 + r))
        A("buffer_load_ushort v%d, v6, s[20:23], s41 offen" % (52 + r))
    PFM = os.environ.get("PFM", "x4")
    if PREFETCH and PFM == "x4":
        A("v_lshlrev_b32 v5, 4, v0")
        NPF = int(os.environ.get("NPF", "7"))
        for i in range(NPF):
            A("buffer_load_dwordx4 v[%d:%d], v5, s[28:31], s43 offen" % (64 + 8 * i, 67 + 8 * i))
            A("buffer_load_dwordx4 v[%d:%d], v5, s[32:35], s43 offen" % (68 + 8 * i, 71 + 8 * i))
            A("s_add_u32 s43, s43, 4096")
        A("s_waitcnt vmcnt(%d)" % (2 * NPF))
    elif PREFETCH and PFM == "d128":
        A("v_lshlrev_b32 v5, 7, v0")
        A("v_cmp_gt_u32 vcc, 224, v0"); A("s_and_saveexec_b64 s[44:45], vcc")
        A("buffer_load_dword v62, v5, s[28:31], s43 offen"); A("buffer_load_dword v63, v5, s[32:35], s43 offen")
        A("s_mov_b64 exec, s[44:45]")
        A("s_waitcnt vmcnt(2)")
    else:
        A("s_waitcnt vmcnt(0)")
    for c in range(4):
        for r in range(4):
            A("v_perm_b32 v%d, v%d, v%d, s%d" % (24 + 4 * c + r, 10 + 4 * r + (c >> 1), 8 + 4 * r + (c >> 1), 46 + (c & 1)))
        A("s_add_u32 s41, s42, %d" % (c * 8192))
        A("buffer_store_dwordx4 v[%d:%d], v4, s[24:27], s41 offen%s" % (24 + 4 * c, 27 + 4 * c, WT_FLAGS))
    A("s_cmp_lg_u32 s36, 3"); A("s_cbranch_scc1 k1_done")
    for r in range(4): A("v_lshl_or_b32 v%d, v%d, 16, v%d" % (48 + r, 52 + r, 48 + r))
    A("s_add_u32 s41, s42, %d" % (128 * 8192))
    A("v_cmp_gt_u32 vcc, 8, v0"); A("s_and_saveexec_b64 s[44:45], vcc"); A("s_cbranch_execz k1_done")
    A("buffer_store_dwordx4 v[48:51], v4, s[24:27], s41 offen%s" % WT_FLAGS)

PREFETCH = os.environ.get("NOPF", "") == ""
WT_FLAGS = os.environ.get("WTFL", " sc0 sc1")
H_FLAGS = os.environ.get("HFL", "")
def gen_k1():
    A = Asm(); kernel_head(A, "k1_kernel")
    RS = 2080; YT = 8 * RS
    A("s_cmp_ge_u32 s2, 512"); A("s_cbranch_scc1 k1_done")
    A("s_cmp_ge_u32 s2, 256"); A("s_cbranch_scc1 k1_help")
    stamp(A, 0); stamp(A, 1, True)
    A("s_load_dwordx2 s[4:5], s[0:1], %d" % KA["x"])
    A("s_load_dwordx2 s[6:7], s[0:1], %d" % KA["ws"])
    tab_srd(A, 20, "k1")
    A("s_and_b32 s24, s2, 7"); A("s_bfe_u32 s25, s2, 0x10003"); A("s_lshr_b32 s26, s2, 4")
    A("s_lshl_b32 s27, s26, 3"); A("s_add_u32 s27, s27, s24")
    A("v_and_b32 v1, 63, v0"); A("v_lshrrev_b32 v2, 6, v0")
    A("v_lshlrev_b32 v3, 4, v1")
    A("s_lshl_b32 s28, s25, 21"); A("s_lshl_b32 s29, s27, 11"); A("s_add_u32 s28, s28, s29")
    A("v_lshl_add_u32 v4, v2, 19, v3")
    A("s_add_u32 s29, s28, 0x40000")
    A("s_waitcnt lgkmcnt(0)")
    srd(A, 8, 4, 0, 4 << 20); srd(A, 12, 6, WS_XN, SZ_XN); srd(A, 16, 6, WS_Y, SZ_Y)
    X = 8
    A("buffer_load_dwordx4 v[8:11], v4, s[8:11], s28 offen")
    A("buffer_load_dwordx4 v[12:15], v4, s[8:11], s28 offen offset:1024")
    A("buffer_load_dwordx4 v[16:19], v4, s[8:11], s29 offen")
    A("buffer_load_dwordx4 v[20:23], v4, s[8:11], s29 offen offset:1024")
    F1 = 64; TW = 72; F2 = 88; F2S = 120
    names = [("f1re", F1), ("f1im", F1 + 4)]
    for bh in range(2):
        for t in range(2): names.append(("tw%d%d" % (bh, t), TW + 8 * bh + 4 * t))
    for dh in range(2):
        for part in range(2):
            for bh in range(2): names.append(("f2_%d%d%d" % (dh, part, bh), F2 + 16 * dh + 8 * part + 4 * bh))
    for part in range(2):
        for bh in range(2): names.append(("f2s_%d%d" % (part, bh), F2S + 8 * part + 4 * bh))
    for nm, r in names: tab_load(A, vr(r, 4), nm, 3, 20, 30)
    NT = len(names)
    A("s_mov_b32 s31, 0xffff0000")
    A("v_and_b32 v5, 15, v1"); A("v_lshrrev_b32 v6, 4, v1")
    A("v_cmp_eq_u32 vcc, 0, v5")
    A("v_mov_b32 v7, 0xffff")
    MG, MP, MQ = 136, 137, 138
    A("v_cndmask_b32 v%d, -1, 0, vcc" % MG)
    A("v_cndmask_b32 v%d, 0, v7, vcc" % MP)
    A("v_lshlrev_b32 v%d, 16, v%d" % (MQ, MP))
    YB0, YB1 = 139, 140
    A("v_lshl_add_u32 v%d, v6, 7, v5" % YB0); A("v_lshlrev_b32 v%d, 5, v%d" % (YB0, YB0))
    A("v_lshl_add_u32 v%d, v2, 3, v%d" % (YB0, YB0))
    A("v_sub_u32 v7, 32, v5"); A("v_cndmask_b32 v7, v7, 16, vcc")
    A("v_lshlrev_b32 v%d, 7, v6" % YB1); A("v_sub_u32 v%d, 384, v%d" % (YB1, YB1)); A("v_add_u32 v%d, v%d, v7" % (YB1, YB1))
    A("v_lshlrev_b32 v%d, 5, v%d" % (YB1, YB1)); A("v_lshl_add_u32 v%d, v2, 3, v%d" % (YB1, YB1))
    XW = 141
    A("v_mul_u32_u24 v%d, %d, v2" % (XW, 2 * RS)); A("v_add_u32 v%d, v%d, v3" % (XW, XW))
    TR = 142
    A("v_lshrrev_b32 v7, 2, v1"); A("v_lshlrev_b32 v7, 6, v7"); A("v_and_b32 v%d, 3, v1" % TR)
    A("v_lshl_add_u32 v7, v%d, 3, v7" % TR); A("v_mul_u32_u24 v%d, %d, v2" % (TR, 2 * RS)); A("v_add_u32 v%d, v%d, v7" % (TR, TR))
    XR = 143
    A("v_and_b32 v7, 7, v1"); A("v_mul_u32_u24 v%d, %d, v7" % (XR, RS))
    A("v_bfe_u32 v7, v1, 3, 2"); A("v_lshl_add_u32 v%d, v7, 3, v%d" % (XR, XR))
    A("v_lshrrev_b32 v7, 5, v0"); A("v_lshl_add_u32 v%d, v7, 6, v%d" % (XR, XR))
    XG = 144
    A("v_lshrrev_b32 v7, 5, v0"); A("v_lshlrev_b32 v%d, 14, v7" % XG)
    A("v_bfe_u32 v7, v1, 3, 2"); A("v_lshl_add_u32 v%d, v7, 8, v%d" % (XG, XG))
    A("v_and_b32 v7, 7, v1"); A("v_lshl_add_u32 v%d, v7, 4, v%d" % (XG, XG))
    A("s_lshr_b32 s32, s27, 4"); A("s_lshl_b32 s32, s32, 19"); A("s_and_b32 s33, s27, 15"); A("s_lshl_b32 s33, s33, 10")
    A("s_add_u32 s32, s32, s33"); A("s_lshl_b32 s33, s25, 7"); A("s_add_u32 s32, s32, s33")
    YG = 145; YR = 146
    A("v_lshrrev_b32 v7, 1, v0"); A("v_lshlrev_b32 v%d, 13, v7" % YG); A("v_and_b32 v7, 1, v0"); A("v_lshl_add_u32 v%d, v7, 4, v%d" % (YG, YG))
    A("s_lshl_b32 s34, s24, 10"); A("s_lshl_b32 s35, s26, 6"); A("s_add_u32 s34, s34, s35"); A("s_lshl_b32 s35, s25, 5"); A("s_add_u32 s34, s34, s35")
    A("v_lshlrev_b32 v%d, 4, v0" % YR)
    stamp(A, 2)
    A("s_waitcnt vmcnt(%d)" % NT)
    stamp(A, 3)
    U = 24
    for row in range(2):
        for i in range(8):
            A("v_lshlrev_b32 v%d, 16, v%d" % (U + 16 * row + 2 * i, X + 8 * row + i))
            A("v_and_b32 v%d, s31, v%d" % (U + 16 * row + 2 * i + 1, X + 8 * row + i))
    S = [56, 57]; T = [58, 59]
    for row in range(2):
        b = U + 16 * row
        for i in range(8): A("v_add_f32 v%d, v%d, v%d" % (X + 8 * row + i, b + 2 * i, b + 2 * i + 1))
    for wdt in (4, 2, 1):
        for row in range(2):
            for i in range(wdt):
                d = S[row] if wdt == 1 else X + 8 * row + i
                A("v_add_f32 v%d, v%d, v%d" % (d, X + 8 * row + i, X + 8 * row + i + wdt))
    allreduce_add(A, S, T)
    A("s_mov_b32 s36, 0x%x" % f32(1.0 / 1024))
    for row in range(2): A("v_mul_f32 v%d, s36, v%d" % (S[row], S[row]))
    Q = [60, 61]
    for row in range(2):
        b = U + 16 * row
        for i in range(8):
            A("v_sub_f32 v%d, v%d, v%d" % (X + 8 * row + i, b + 2 * i, S[row]))
            A("v_mul_f32 v%d, v%d, v%d" % (X + 8 * row + i, X + 8 * row + i, X + 8 * row + i))
            A("v_sub_f32 v7, v%d, v%d" % (b + 2 * i + 1, S[row]))
            A("v_fmac_f32 v%d, v7, v7" % (X + 8 * row + i))
    for wdt in (4, 2, 1):
        for row in range(2):
            for i in range(wdt):
                d = Q[row] if wdt == 1 else X + 8 * row + i
                A("v_add_f32 v%d, v%d, v%d" % (d, X + 8 * row + i, X + 8 * row + i + wdt))
    allreduce_add(A, Q, T)
    for row in range(2): A("v_mul_f32 v%d, s36, v%d" % (Q[row], Q[row]))
    for row in range(2): A("v_cvt_pk_bf16_f32 v%d, v%d, v%d" % (T[row], S[row], Q[row]))
    for row in range(2):
        A("v_lshlrev_b32 v%d, 16, v%d" % (S[row], T[row])); A("v_and_b32 v%d, s31, v%d" % (Q[row], T[row]))
    for row in range(2): A("v_add_f32 v%d, 0x%x, v%d" % (Q[row], f32(1e-5), Q[row]))
    A("v_cvt_pk_bf16_f32 v%d, v%d, v%d" % (T[0], Q[0], Q[1]))
    A("v_lshlrev_b32 v%d, 16, v%d" % (Q[0], T[0])); A("v_and_b32 v%d, s31, v%d" % (Q[1], T[0]))
    for row in range(2): A("v_sqrt_f32 v%d, v%d" % (Q[row], Q[row]))
    A("v_cvt_pk_bf16_f32 v%d, v%d, v%d" % (T[0], Q[0], Q[1]))
    A("v_lshlrev_b32 v%d, 16, v%d" % (Q[0], T[0])); A("v_and_b32 v%d, s31, v%d" % (Q[1], T[0]))
    for row in range(2): A("v_rcp_f32 v%d, v%d" % (Q[row], Q[row]))
    for row in range(2):
        b = U + 16 * row
        for i in range(16): A("v_sub_f32 v%d, v%d, v%d" % (b + i, b + i, S[row]))
        for i in range(8): A("v_cvt_pk_bf16_f32 v%d, v%d, v%d" % (X + 8 * row + i, b + 2 * i, b + 2 * i + 1))
        for i in range(8):
            A("v_lshlrev_b32 v%d, 16, v%d" % (b + 2 * i, X + 8 * row + i)); A("v_and_b32 v%d, s31, v%d" % (b + 2 * i + 1, X + 8 * row + i))
        for i in range(16): A("v_mul_f32 v%d, v%d, v%d" % (b + i, b + i, Q[row]))
        for i in range(8): A("v_cvt_pk_bf16_f32 v%d, v%d, v%d" % (X + 8 * row + i, b + 2 * i, b + 2 * i + 1))
        A("ds_write_b128 v%d, v[%d:%d] offset:%d" % (XW, X + 8 * row, X + 8 * row + 3, row * RS))
        A("ds_write_b128 v%d, v[%d:%d] offset:%d" % (XW, X + 8 * row + 4, X + 8 * row + 7, row * RS + 1024))
    A("s_waitcnt lgkmcnt(0)")
    for row in range(2):
        for bh in range(2):
            for hh in range(2):
                r = X + 8 * row + 4 * bh + 2 * hh
                A("ds_read_b64_tr_b16 v[%d:%d], v%d offset:%d" % (r, r + 1, TR, row * RS + hh * 1024 + bh * 32))
    A("s_barrier")
    XO = 148
    for it in range(4):
        A("ds_read_b64 v[%d:%d], v%d offset:%d" % (XO + 4 * it, XO + 4 * it + 1, XR, it * 512))
        A("ds_read_b64 v[%d:%d], v%d offset:%d" % (XO + 4 * it + 2, XO + 4 * it + 3, XR, it * 512 + 32))
    stamp(A, 4)
    A("s_waitcnt vmcnt(0) lgkmcnt(8)")
    stamp(A, 5)
    for row in range(2):
        for bh in range(2):
            for part in range(2):
                d = U + 16 * row + 8 * bh + 4 * part
                A("%s v[%d:%d], v[%d:%d], v[%d:%d], 0" % (MF, d, d + 3, X + 8 * row + 4 * bh, X + 8 * row + 4 * bh + 3, F1 + 4 * part, F1 + 4 * part + 3))
    A("s_waitcnt lgkmcnt(0)")
    for it in range(4):
        A("s_add_u32 s33, s32, 0x%x" % (it * 8 * 16384))
        A("buffer_store_dwordx4 v[%d:%d], v%d, s[12:15], s33 offen" % (XO + 4 * it, XO + 4 * it + 3, XG))
    PP, PQ = 164, 180
    for row in range(2):
        for bh in range(2):
            for r in range(4):
                re = U + 16 * row + 8 * bh + r; im = re + 4
                tc = TW + 8 * bh + r; ts = tc + 4
                A("v_mul_f32 v56, v%d, v%d" % (re, tc)); A("v_mul_f32 v57, v%d, v%d" % (im, tc))
                A("v_fmac_f32 v56, v%d, v%d" % (im, ts)); A("v_fma_f32 v57, -v%d, v%d, v57" % (re, ts))
                o = 8 * row + 4 * bh + r
                A("v_cvt_pk_bf16_f32 v58, v56, v57")
                A("v_and_b32 v%d, v58, v%d" % (X + o, MG)); A("v_and_b32 v%d, v58, v%d" % (PP + o, MP)); A("v_and_b32 v%d, v58, v%d" % (PQ + o, MQ))
    for row in range(2):
        for bh in range(2):
            for dh in range(2):
                for part in range(2):
                    d = U + 16 * row + 8 * dh + 4 * part
                    a = F2 + 16 * dh + 8 * part + 4 * bh; b = X + 8 * row + 4 * bh
                    A("%s v[%d:%d], v[%d:%d], v[%d:%d], %s" % (MF, d, d + 3, a, a + 3, b, b + 3, "0" if bh == 0 else "v[%d:%d]" % (d, d + 3)))
        for bh in range(2):
            for dh in range(2):
                for part in range(2):
                    d = U + 16 * row + 8 * dh + 4 * part
                    a = F2S + 8 * part + 4 * bh; b = (PP if dh == 0 else PQ) + 8 * row + 4 * bh
                    A("%s v[%d:%d], v[%d:%d], v[%d:%d], v[%d:%d]" % (MF, d, d + 3, a, a + 3, b, b + 3, d, d + 3))
    YP = 64
    for row in range(2):
        for dh in range(2):
            for r in range(4):
                re = U + 16 * row + 8 * dh + r
                A("v_cvt_pk_bf16_f32 v%d, v%d, v%d" % (YP + 8 * dh + 2 * r + row, re, re + 4))
    for dh in range(2):
        for r in range(4):
            p = YP + 8 * dh + 2 * r
            A("ds_write_b64 v%d, v[%d:%d] offset:%d" % (YB0 if dh == 0 else YB1, p, p + 1, YT + (r if dh == 0 else 3 - r) * 1024))
    A("s_waitcnt lgkmcnt(0)"); A("s_barrier")
    for it in range(4): A("ds_read_b128 v[%d:%d], v%d offset:%d" % (8 + 4 * it, 11 + 4 * it, YR, YT + it * 4096))
    for it in range(4):
        A("s_add_u32 s35, s34, 0x%x" % (it * 128 * 8192))
        A("s_waitcnt lgkmcnt(%d)" % (3 - it))
        if it == 0:
            A("v_cmp_gt_u32 vcc, 2, v0"); A("v_mov_b32 v7, 0xffff"); A("v_cndmask_b32 v7, -1, v7, vcc")
            for i in range(4): A("v_lshrrev_b32 v%d, 16, v%d" % (24 + i, 8 + i))
            for i in range(4): A("v_and_b32 v%d, v7, v%d" % (8 + i, 8 + i))
        A("buffer_store_dwordx4 v[%d:%d], v%d, s[16:19], s35 offen" % (8 + 4 * it, 11 + 4 * it, YG))
    A("s_add_u32 s35, s34, 0x%x" % (512 * 8192))
    A("s_and_saveexec_b64 s[38:39], vcc"); A("s_cbranch_execz k1_n512")
    A("buffer_store_dwordx4 v[24:27], v%d, s[16:19], s35 offen" % YG)
    A.label("k1_n512")
    A("s_mov_b64 exec, s[38:39]")
    stamp(A, 6)
    if STAMP: A("s_waitcnt vmcnt(0)")
    stamp(A, 7); stamp(A, 8, True)
    stamp_out(A, 0, 9, 6, "k1")
    A("s_endpgm")
    A.label("k1_help")
    gen_k1_help(A)
    A.label("k1_done"); A("s_endpgm")
    A.fix()
    return A.text() + kernel_desc("k1_kernel", 200, 200, 48)

from gen_k2 import gen_k2, K2_LDS
from gen_k3 import gen_k3, K3_LDS

def main():
    build_tables()
    stub = open("cdna_kernels/%s.s.ref" % NAME).read().split("\n")
    head = [l for l in stub if l.startswith(";") and "@launch" not in l and "Override" not in l and "grid=ceil" not in l]
    o = "\n".join(head[:12]) + "\n"
    o += "; @launch kernel=k1_kernel grid=(512,1,1) block=(256,1,1) lds=%d\n" % K1_LDS
    o += "; @launch kernel=k2_kernel grid=(256,1,1) block=(256,1,1) lds=%d\n" % K2_LDS
    o += "; @launch kernel=k3_kernel grid=(256,1,1) block=(256,1,1) lds=%d\n" % K3_LDS
    o += '.amdgcn_target "amdgcn-amd-amdhsa--gfx950"\n'
    import gen as G
    o += gen_k1() + gen_k2(sys.modules[__name__]) + gen_k3(sys.modules[__name__])
    o += '.section .rodata,"a"\n.p2align 8\n.type gf_tab,@object\ngf_tab:\n'
    for b in TAB.blocks:
        for i in range(0, 256, 8): o += ".long " + ",".join("0x%x" % x for x in b[i:i + 8]) + "\n"
    o += ".size gf_tab, %d\n" % (len(TAB.blocks) * 1024)
    path = sys.argv[1] if len(sys.argv) > 1 else "cdna_kernels/%s.s" % NAME
    open(path, "w").write(o)
    print("wrote", path, len(o), "bytes")

if __name__ == "__main__":
    main()
```

```python
import sys, math, struct
import numpy as np
from asmlib import *

NAME = "recurrent_scan__spectral_gfnet__geglu_ffn__prompt"
WS_XN = 0; WS_Y = 40 << 20; WS_HZ = 8 << 20; WS_G = 28 << 20; WS_WT = 32 << 20; SZ_WT = 513 * 8192
SZ_XN = 4 << 20; SZ_Y = 513 * 8192; SZ_HZ = 16 * 144 * 8192; SZ_G = 2 << 20
KA = dict(x=0, wr=8, wi=16, bx=24, wg=32, wu=40, wd=48, out=56, dbg=64, ws=72)

import os
STAMP = os.environ.get("STAMP", "") != ""
def f32(x): return struct.unpack("<I", struct.pack("<f", x))[0]
def bf16(x):
    u = f32(x); return ((u + 0x7FFF + ((u >> 16) & 1)) >> 16) & 0xFFFF
def pk(lo, hi): return bf16(lo) | (bf16(hi) << 16)

class Table:
    def __init__(self): self.blocks = []; self.names = {}
    def add(self, name, fn):
        self.names[name] = len(self.blocks)
        self.blocks.append([d for l in range(64) for d in fn(l)])
    def off(self, name): return self.names[name] * 1024
TAB = Table()
def cs(num, den):
    a = 2 * math.pi * (num % den) / den
    c, s = math.cos(a), math.sin(a)
    if abs(c) < 1e-12: c = 0.0
    if abs(s) < 1e-12: s = 0.0
    return c, s

def build_tables():
    def slot_a(g, j): return 4 * g + j if j < 4 else 16 + 4 * g + (j - 4)
    def f1(part):
        def fn(l):
            g, c = l >> 4, l & 15
            v = []
            for j in range(8):
                a = slot_a(g, j)
                if part == 0: v.append(cs(a * c, 32)[0])
                else: v.append(-cs(a * c, 32)[1] if c else cs(a * 16, 32)[0])
            return [pk(v[2 * i], v[2 * i + 1]) for i in range(4)]
        return fn
    TAB.add("f1re", f1(0)); TAB.add("f1im", f1(1))
    for bh in range(2):
        for t in range(2):
            TAB.add("tw%d%d" % (bh, t), lambda l, bh=bh, t=t: [f32(cs((16 * bh + 4 * (l >> 4) + r) * (l & 15), 1024)[t]) for r in range(4)])
    for dh in range(2):
        for part in range(2):
            for bh in range(2):
                def fn(l, dh=dh, part=part, bh=bh):
                    g, i = l >> 4, l & 15
                    d = 16 * dh + i; o = []
                    for r in range(4):
                        b = 16 * bh + 4 * g + r
                        c, s = cs(b * d, 32)
                        if part == 0: o.append(pk(c, s))
                        else: o.append(pk(-s, c) if dh == 0 else pk(s, -c))
                    return o
                TAB.add("f2_%d%d%d" % (dh, part, bh), fn)
    for part in range(2):
        for bh in range(2):
            def fn(l, part=part, bh=bh):
                g, i = l >> 4, l & 15
                o = []
                for r in range(4):
                    b = 16 * bh + 4 * g + r
                    c, s = cs(b * i, 32)
                    lo = c if part == 0 else (-s if i else cs(b * 16, 32)[0])
                    u = 15 - i
                    c2, s2 = cs(b * (2 * u + 1), 64)
                    hi = c2 if part == 0 else -s2
                    o.append(pk(lo, hi))
                return o
            TAB.add("f2s_%d%d" % (part, bh), fn)
    for inv in range(2):
        for part in range(2):
            def fn(l, inv=inv, part=part):
                g, n = l >> 4, l & 15
                o = []
                for jj in range(4):
                    c, s = cs((4 * g + jj) * n, 16)
                    if inv: s = -s
                    o.append(pk(c, s) if part == 0 else pk(-s, c))
                return o
            TAB.add("fa_%d%d" % (inv, part), fn)
    for o_ in range(4):
        for ih in range(2):
            def fn(l, o_=o_, ih=ih):
                gk, i = l >> 4, l & 15
                if (i >> 2) != gk: return [0, 0, 0, 0]
                r2 = i & 3; ep = 2 * o_ + (r2 >> 1); part = r2 & 1
                o = []
                for jj in range(4):
                    c, s = cs((4 * ih + jj) * ep, 8)
                    o.append(pk(c, s) if part == 0 else pk(-s, c))
                return o
            TAB.add("fe_%d%d" % (o_, ih), fn)
    for t in range(2):
        TAB.add("t1_%d" % t, lambda l, t=t: [f32(cs((4 * (l >> 4) + r) * (l & 15), 256)[t]) for r in range(4)])
    for e in range(1, 8):
        for t in range(2):
            TAB.add("t2_%d%d" % (e, t), lambda l, e=e, t=t: [f32(cs(e * ((l & 15) + 16 * (4 * (l >> 4) + r)), 2048)[t]) for r in range(4)])

def srd(A, d, base, off, size):
    if off >= 0:
        A("s_add_u32 s%d, s%d, 0x%x" % (d, base, off)); A("s_addc_u32 s%d, s%d, 0" % (d + 1, base + 1))
    else:
        A("s_sub_u32 s%d, s%d, 0x%x" % (d, base, -off)); A("s_subb_u32 s%d, s%d, 0" % (d + 1, base + 1))
    A("s_and_b32 s%d, s%d, 0xffff" % (d + 1, d + 1))
    A("s_mov_b32 s%d, 0x%x" % (d + 2, size)); A("s_mov_b32 s%d, 0x20000" % (d + 3))

def tab_srd(A, d, tag):
    A("s_getpc_b64 s[%d:%d]" % (d, d + 1))
    A("s_add_u32 s%d, s%d, gf_tab@rel32@lo+4" % (d, d))
    A("s_addc_u32 s%d, s%d, gf_tab@rel32@hi+12" % (d + 1, d + 1))
    A("s_and_b32 s%d, s%d, 0xffff" % (d + 1, d + 1))
    A("s_mov_b32 s%d, 0x%x" % (d + 2, len(TAB.blocks) * 1024)); A("s_mov_b32 s%d, 0x20000" % (d + 3))

def tab_load(A, dst, name, vlane16, srdt, stmp):
    o = TAB.off(name)
    A("s_mov_b32 s%d, 0x%x" % (stmp, o))
    A("buffer_load_dwordx4 %s, v%d, s[%d:%d], s%d offen" % (dst, vlane16, srdt, srdt + 3, stmp))

def kernel_head(A, name):
    A.raw(".text"); A.raw(".globl %s" % name); A.raw(".p2align 8"); A.raw(".type %s,@function" % name)
    A.label(name)

def kernel_desc(name, nv, acc_off, ns=102):
    if STAMP: ns = 102
    return """.section .rodata,"a"
.p2align 6
.amdhsa_kernel %s
  .amdhsa_next_free_vgpr %d
  .amdhsa_next_free_sgpr %d
  .amdhsa_accum_offset %d
  .amdhsa_group_segment_fixed_size 0
  .amdhsa_kernarg_size 80
  .amdhsa_user_sgpr_count 2
  .amdhsa_user_sgpr_kernarg_segment_ptr 1
  .amdhsa_system_sgpr_workgroup_id_x 1
  .amdhsa_float_denorm_mode_32 3
.end_amdhsa_kernel
""" % (name, nv, ns, acc_off)

def allreduce_add(A, regs, tmps):
    for mod in ("quad_perm:[1,0,3,2]", "quad_perm:[2,3,0,1]", "row_half_mirror", "row_mirror"):
        for r in regs:
            A("v_add_f32_dpp v%d, v%d, v%d %s row_mask:0xf bank_mask:0xf" % (r, r, r, mod))
    for sw in ("v_permlane16_swap_b32", "v_permlane32_swap_b32"):
        for r, t in zip(regs, tmps): A("v_mov_b32 v%d, v%d" % (t, r))
        for r, t in zip(regs, tmps): A("%s v%d, v%d" % (sw, r, t))
        for r, t in zip(regs, tmps): A("v_add_f32 v%d, v%d, v%d" % (r, r, t))

MF = "v_mfma_f32_16x16x32_bf16"

import os
STAMP = os.environ.get("STAMP", "") != ""
WS_STAMP = 64 << 20
def stamp(A, i, real=False):
    if STAMP: A("%s s[%d:%d]" % ("s_memrealtime" if real else "s_memtime", 72 + 2 * i, 73 + 2 * i))
def stamp_out(A, kidx, n, wsreg, tag):
    if not STAMP: return
    A("s_waitcnt vmcnt(0) lgkmcnt(0)")
    if os.environ.get("STAMP") == "dbg":
        if tag == "cf": return
        A("s_cmp_lg_u32 s2, 40"); A("s_cbranch_scc1 so_skip_%s" % tag)
        A("s_load_dwordx2 s[68:69], s[0:1], %d" % KA["dbg"]); A("s_waitcnt lgkmcnt(0)")
        srd(A, 96, 68, 512 * (2 - kidx), 256)
        A("v_mov_b32 v1, 0")
        sel = [1, n - 1] + ([3, 5, 7] if kidx == 0 else [4, 6, 8])
        for i, k in enumerate(sel):
            if i >= 2: A("s_sub_u32 s70, s%d, s72" % (72 + 2 * k))
            else: A("s_mov_b32 s70, s%d" % (72 + 2 * k))
            A("v_mov_b32 v2, s70")
            A("buffer_store_dword v2, v1, s[96:99], 0 offen offset:%d" % (4 * (5 * kidx + i)))
            A("s_nop 1")
        A.label("so_skip_%s" % tag)
        return
    srd(A, 96, wsreg, WS_STAMP + kidx * 65536, 65536)
    A("v_lshrrev_b32 v1, 6, v0"); A("v_lshlrev_b32 v1, 6, v1"); A("s_lshl_b32 s68, s2, 8"); A("v_add_u32 v1, s68, v1")
    for i in range(n):
        A("v_mov_b32 v2, s%d" % (72 + 2 * i))
        A("buffer_store_dword v2, v1, s[96:99], 0 offen offset:%d" % (4 * i))
        A("s_nop 1")

K1_LDS = 8 * 2080 + 16384
def gen_k1_help(A):
    A("s_load_dwordx4 s[4:7], s[0:1], %d" % KA["wr"])
    A("s_load_dwordx4 s[8:11], s[0:1], %d" % KA["wg"])
    A("s_load_dwordx2 s[12:13], s[0:1], %d" % KA["ws"])
    A("s_sub_u32 s3, s2, 256")
    A("s_and_b32 s36, s3, 3"); A("s_bfe_u32 s37, s3, 0x10002"); A("s_bfe_u32 s38, s3, 0x20003"); A("s_lshr_b32 s39, s3, 5")
    A("s_lshl_b32 s40, s37, 3"); A("s_lshl_b32 s41, s38, 6"); A("s_add_u32 s40, s40, s41"); A("s_lshl_b32 s41, s39, 8"); A("s_add_u32 s40, s40, s41")
    A("s_mul_i32 s40, s40, 1026"); A("s_lshl_b32 s41, s36, 8"); A("s_add_u32 s40, s40, s41")
    A("v_and_b32 v1, 7, v0"); A("v_lshrrev_b32 v2, 3, v0")
    A("v_mul_u32_u24 v3, 1026, v1"); A("v_lshl_add_u32 v3, v2, 3, v3")
    A("v_lshlrev_b32 v4, 15, v2"); A("v_lshl_add_u32 v4, v1, 4, v4")
    A("s_lshl_b32 s42, s36, 20"); A("s_lshl_b32 s41, s39, 10"); A("s_add_u32 s42, s42, s41"); A("s_lshl_b32 s41, s38, 8"); A("s_add_u32 s42, s42, s41")
    A("s_lshl_b32 s41, s37, 7"); A("s_add_u32 s42, s42, s41")
    A("s_mov_b32 s46, 0x05040100"); A("s_mov_b32 s47, 0x07060302")
    A("v_lshlrev_b32 v5, 6, v0")
    A("s_mul_i32 s43, s3, %d" % (1024 * 7168 // 256))
    A("s_waitcnt lgkmcnt(0)")
    WSZ = 2048 * 1026
    srd(A, 16, 4, 0, WSZ); srd(A, 20, 6, 0, WSZ); srd(A, 24, 12, WS_WT, SZ_WT)
    srd(A, 28, 8, 0, 1024 * 7168); srd(A, 32, 10, 0, 1024 * 7168)
    for r in range(4):
        A("s_add_u32 s41, s40, %d" % (16 * r * 1026))
        A("buffer_load_dwordx2 v[%d:%d], v3, s[16:19], s41 offen" % (8 + 4 * r, 9 + 4 * r))
        A("buffer_load_dwordx2 v[%d:%d], v3, s[20:23], s41 offen" % (10 + 4 * r, 11 + 4 * r))
    A("v_mul_u32_u24 v6, 1026, v1")
    for r in range(4):
        A("s_add_u32 s41, s40, %d" % (16 * r * 1026 + 256))
        A("buffer_load_ushort v%d, v6, s[16:19], s41 offen" % (48 + r))
        A("buffer_load_ushort v%d, v6, s[20:23], s41 offen" % (52 + r))
    PFM = os.environ.get("PFM", "x4")
    if PREFETCH and PFM == "x4":
        A("v_lshlrev_b32 v5, 4, v0")
        NPF = int(os.environ.get("NPF", "7"))
        for i in range(NPF):
            A("buffer_load_dwordx4 v[%d:%d], v5, s[28:31], s43 offen" % (64 + 8 * i, 67 + 8 * i))
            A("buffer_load_dwordx4 v[%d:%d], v5, s[32:35], s43 offen" % (68 + 8 * i, 71 + 8 * i))
            A("s_add_u32 s43, s43, 4096")
        A("s_waitcnt vmcnt(%d)" % (2 * NPF))
    elif PREFETCH and PFM == "d128":
        A("v_lshlrev_b32 v5, 7, v0")
        A("v_cmp_gt_u32 vcc, 224, v0"); A("s_and_saveexec_b64 s[44:45], vcc")
        A("buffer_load_dword v62, v5, s[28:31], s43 offen"); A("buffer_load_dword v63, v5, s[32:35], s43 offen")
        A("s_mov_b64 exec, s[44:45]")
        A("s_waitcnt vmcnt(2)")
    else:
        A("s_waitcnt vmcnt(0)")
    for c in range(4):
        for r in range(4):
            A("v_perm_b32 v%d, v%d, v%d, s%d" % (24 + 4 * c + r, 10 + 4 * r + (c >> 1), 8 + 4 * r + (c >> 1), 46 + (c & 1)))
        A("s_add_u32 s41, s42, %d" % (c * 8192))
        A("buffer_store_dwordx4 v[%d:%d], v4, s[24:27], s41 offen%s" % (24 + 4 * c, 27 + 4 * c, WT_FLAGS))
    A("s_cmp_lg_u32 s36, 3"); A("s_cbranch_scc1 k1_done")
    for r in range(4): A("v_lshl_or_b32 v%d, v%d, 16, v%d" % (48 + r, 52 + r, 48 + r))
    A("s_add_u32 s41, s42, %d" % (128 * 8192))
    A("v_cmp_gt_u32 vcc, 8, v0"); A("s_and_saveexec_b64 s[44:45], vcc"); A("s_cbranch_execz k1_done")
    A("buffer_store_dwordx4 v[48:51], v4, s[24:27], s41 offen%s" % WT_FLAGS)

PREFETCH = os.environ.get("NOPF", "") == ""
WT_FLAGS = os.environ.get("WTFL", " sc0 sc1")
H_FLAGS = os.environ.get("HFL", "")
def gen_k1():
    A = Asm(); kernel_head(A, "k1_kernel")
    RS = 2080; YT = 8 * RS
    A("s_cmp_ge_u32 s2, 512"); A("s_cbranch_scc1 k1_done")
    A("s_cmp_ge_u32 s2, 256"); A("s_cbranch_scc1 k1_help")
    stamp(A, 0); stamp(A, 1, True)
    A("s_load_dwordx2 s[4:5], s[0:1], %d" % KA["x"])
    A("s_load_dwordx2 s[6:7], s[0:1], %d" % KA["ws"])
    tab_srd(A, 20, "k1")
    A("s_and_b32 s24, s2, 7"); A("s_bfe_u32 s25, s2, 0x10003"); A("s_lshr_b32 s26, s2, 4")
    A("s_lshl_b32 s27, s26, 3"); A("s_add_u32 s27, s27, s24")
    A("v_and_b32 v1, 63, v0"); A("v_lshrrev_b32 v2, 6, v0")
    A("v_lshlrev_b32 v3, 4, v1")
    A("s_lshl_b32 s28, s25, 21"); A("s_lshl_b32 s29, s27, 11"); A("s_add_u32 s28, s28, s29")
    A("v_lshl_add_u32 v4, v2, 19, v3")
    A("s_add_u32 s29, s28, 0x40000")
    A("s_waitcnt lgkmcnt(0)")
    srd(A, 8, 4, 0, 4 << 20); srd(A, 12, 6, WS_XN, SZ_XN); srd(A, 16, 6, WS_Y, SZ_Y)
    X = 8
    A("buffer_load_dwordx4 v[8:11], v4, s[8:11], s28 offen")
    A("buffer_load_dwordx4 v[12:15], v4, s[8:11], s28 offen offset:1024")
    A("buffer_load_dwordx4 v[16:19], v4, s[8:11], s29 offen")
    A("buffer_load_dwordx4 v[20:23], v4, s[8:11], s29 offen offset:1024")
    F1 = 64; TW = 72; F2 = 88; F2S = 120
    names = [("f1re", F1), ("f1im", F1 + 4)]
    for bh in range(2):
        for t in range(2): names.append(("tw%d%d" % (bh, t), TW + 8 * bh + 4 * t))
    for dh in range(2):
        for part in range(2):
            for bh in range(2): names.append(("f2_%d%d%d" % (dh, part, bh), F2 + 16 * dh + 8 * part + 4 * bh))
    for part in range(2):
        for bh in range(2): names.append(("f2s_%d%d" % (part, bh), F2S + 8 * part + 4 * bh))
    for nm, r in names: tab_load(A, vr(r, 4), nm, 3, 20, 30)
    NT = len(names)
    A("s_mov_b32 s31, 0xffff0000")
    A("v_and_b32 v5, 15, v1"); A("v_lshrrev_b32 v6, 4, v1")
    A("v_cmp_eq_u32 vcc, 0, v5")
    A("v_mov_b32 v7, 0xffff")
    MG, MP, MQ = 136, 137, 138
    A("v_cndmask_b32 v%d, -1, 0, vcc" % MG)
    A("v_cndmask_b32 v%d, 0, v7, vcc" % MP)
    A("v_lshlrev_b32 v%d, 16, v%d" % (MQ, MP))
    YB0, YB1 = 139, 140
    A("v_lshl_add_u32 v%d, v6, 7, v5" % YB0); A("v_lshlrev_b32 v%d, 5, v%d" % (YB0, YB0))
    A("v_lshl_add_u32 v%d, v2, 3, v%d" % (YB0, YB0))
    A("v_sub_u32 v7, 32, v5"); A("v_cndmask_b32 v7, v7, 16, vcc")
    A("v_lshlrev_b32 v%d, 7, v6" % YB1); A("v_sub_u32 v%d, 384, v%d" % (YB1, YB1)); A("v_add_u32 v%d, v%d, v7" % (YB1, YB1))
    A("v_lshlrev_b32 v%d, 5, v%d" % (YB1, YB1)); A("v_lshl_add_u32 v%d, v2, 3, v%d" % (YB1, YB1))
    XW = 141
    A("v_mul_u32_u24 v%d, %d, v2" % (XW, 2 * RS)); A("v_add_u32 v%d, v%d, v3" % (XW, XW))
    TR = 142
    A("v_lshrrev_b32 v7, 2, v1"); A("v_lshlrev_b32 v7, 6, v7"); A("v_and_b32 v%d, 3, v1" % TR)
    A("v_lshl_add_u32 v7, v%d, 3, v7" % TR); A("v_mul_u32_u24 v%d, %d, v2" % (TR, 2 * RS)); A("v_add_u32 v%d, v%d, v7" % (TR, TR))
    XR = 143
    A("v_and_b32 v7, 7, v1"); A("v_mul_u32_u24 v%d, %d, v7" % (XR, RS))
    A("v_bfe_u32 v7, v1, 3, 2"); A("v_lshl_add_u32 v%d, v7, 3, v%d" % (XR, XR))
    A("v_lshrrev_b32 v7, 5, v0"); A("v_lshl_add_u32 v%d, v7, 6, v%d" % (XR, XR))
    XG = 144
    A("v_lshrrev_b32 v7, 5, v0"); A("v_lshlrev_b32 v%d, 14, v7" % XG)
    A("v_bfe_u32 v7, v1, 3, 2"); A("v_lshl_add_u32 v%d, v7, 8, v%d" % (XG, XG))
    A("v_and_b32 v7, 7, v1"); A("v_lshl_add_u32 v%d, v7, 4, v%d" % (XG, XG))
    A("s_lshr_b32 s32, s27, 4"); A("s_lshl_b32 s32, s32, 19"); A("s_and_b32 s33, s27, 15"); A("s_lshl_b32 s33, s33, 10")
    A("s_add_u32 s32, s32, s33"); A("s_lshl_b32 s33, s25, 7"); A("s_add_u32 s32, s32, s33")
    YG = 145; YR = 146
    A("v_lshrrev_b32 v7, 1, v0"); A("v_lshlrev_b32 v%d, 13, v7" % YG); A("v_and_b32 v7, 1, v0"); A("v_lshl_add_u32 v%d, v7, 4, v%d" % (YG, YG))
    A("s_lshl_b32 s34, s24, 10"); A("s_lshl_b32 s35, s26, 6"); A("s_add_u32 s34, s34, s35"); A("s_lshl_b32 s35, s25, 5"); A("s_add_u32 s34, s34, s35")
    A("v_lshlrev_b32 v%d, 4, v0" % YR)
    stamp(A, 2)
    A("s_waitcnt vmcnt(%d)" % NT)
    stamp(A, 3)
    U = 24
    for row in range(2):
        for i in range(8):
            A("v_lshlrev_b32 v%d, 16, v%d" % (U + 16 * row + 2 * i, X + 8 * row + i))
            A("v_and_b32 v%d, s31, v%d" % (U + 16 * row + 2 * i + 1, X + 8 * row + i))
    S = [56, 57]; T = [58, 59]
    for row in range(2):
        b = U + 16 * row
        for i in range(8): A("v_add_f32 v%d, v%d, v%d" % (X + 8 * row + i, b + 2 * i, b + 2 * i + 1))
    for wdt in (4, 2, 1):
        for row in range(2):
            for i in range(wdt):
                d = S[row] if wdt == 1 else X + 8 * row + i
                A("v_add_f32 v%d, v%d, v%d" % (d, X + 8 * row + i, X + 8 * row + i + wdt))
    allreduce_add(A, S, T)
    A("s_mov_b32 s36, 0x%x" % f32(1.0 / 1024))
    for row in range(2): A("v_mul_f32 v%d, s36, v%d" % (S[row], S[row]))
    Q = [60, 61]
    for row in range(2):
        b = U + 16 * row
        for i in range(8):
            A("v_sub_f32 v%d, v%d, v%d" % (X + 8 * row + i, b + 2 * i, S[row]))
            A("v_mul_f32 v%d, v%d, v%d" % (X + 8 * row + i, X + 8 * row + i, X + 8 * row + i))
            A("v_sub_f32 v7, v%d, v%d" % (b + 2 * i + 1, S[row]))
            A("v_fmac_f32 v%d, v7, v7" % (X + 8 * row + i))
    for wdt in (4, 2, 1):
        for row in range(2):
            for i in range(wdt):
                d = Q[row] if wdt == 1 else X + 8 * row + i
                A("v_add_f32 v%d, v%d, v%d" % (d, X + 8 * row + i, X + 8 * row + i + wdt))
    allreduce_add(A, Q, T)
    for row in range(2): A("v_mul_f32 v%d, s36, v%d" % (Q[row], Q[row]))
    for row in range(2): A("v_cvt_pk_bf16_f32 v%d, v%d, v%d" % (T[row], S[row], Q[row]))
    for row in range(2):
        A("v_lshlrev_b32 v%d, 16, v%d" % (S[row], T[row])); A("v_and_b32 v%d, s31, v%d" % (Q[row], T[row]))
    for row in range(2): A("v_add_f32 v%d, 0x%x, v%d" % (Q[row], f32(1e-5), Q[row]))
    A("v_cvt_pk_bf16_f32 v%d, v%d, v%d" % (T[0], Q[0], Q[1]))
    A("v_lshlrev_b32 v%d, 16, v%d" % (Q[0], T[0])); A("v_and_b32 v%d, s31, v%d" % (Q[1], T[0]))
    for row in range(2): A("v_sqrt_f32 v%d, v%d" % (Q[row], Q[row]))
    A("v_cvt_pk_bf16_f32 v%d, v%d, v%d" % (T[0], Q[0], Q[1]))
    A("v_lshlrev_b32 v%d, 16, v%d" % (Q[0], T[0])); A("v_and_b32 v%d, s31, v%d" % (Q[1], T[0]))
    for row in range(2): A("v_rcp_f32 v%d, v%d" % (Q[row], Q[row]))
    for row in range(2):
        b = U + 16 * row
        for i in range(16): A("v_sub_f32 v%d, v%d, v%d" % (b + i, b + i, S[row]))
        for i in range(8): A("v_cvt_pk_bf16_f32 v%d, v%d, v%d" % (X + 8 * row + i, b + 2 * i, b + 2 * i + 1))
        for i in range(8):
            A("v_lshlrev_b32 v%d, 16, v%d" % (b + 2 * i, X + 8 * row + i)); A("v_and_b32 v%d, s31, v%d" % (b + 2 * i + 1, X + 8 * row + i))
        for i in range(16): A("v_mul_f32 v%d, v%d, v%d" % (b + i, b + i, Q[row]))
        for i in range(8): A("v_cvt_pk_bf16_f32 v%d, v%d, v%d" % (X + 8 * row + i, b + 2 * i, b + 2 * i + 1))
        A("ds_write_b128 v%d, v[%d:%d] offset:%d" % (XW, X + 8 * row, X + 8 * row + 3, row * RS))
        A("ds_write_b128 v%d, v[%d:%d] offset:%d" % (XW, X + 8 * row + 4, X + 8 * row + 7, row * RS + 1024))
    A("s_waitcnt lgkmcnt(0)")
    for row in range(2):
        for bh in range(2):
            for hh in range(2):
                r = X + 8 * row + 4 * bh + 2 * hh
                A("ds_read_b64_tr_b16 v[%d:%d], v%d offset:%d" % (r, r + 1, TR, row * RS + hh * 1024 + bh * 32))
    A("s_barrier")
    XO = 148
    for it in range(4):
        A("ds_read_b64 v[%d:%d], v%d offset:%d" % (XO + 4 * it, XO + 4 * it + 1, XR, it * 512))
        A("ds_read_b64 v[%d:%d], v%d offset:%d" % (XO + 4 * it + 2, XO + 4 * it + 3, XR, it * 512 + 32))
    stamp(A, 4)
    A("s_waitcnt vmcnt(0) lgkmcnt(8)")
    stamp(A, 5)
    for row in range(2):
        for bh in range(2):
            for part in range(2):
                d = U + 16 * row + 8 * bh + 4 * part
                A("%s v[%d:%d], v[%d:%d], v[%d:%d], 0" % (MF, d, d + 3, X + 8 * row + 4 * bh, X + 8 * row + 4 * bh + 3, F1 + 4 * part, F1 + 4 * part + 3))
    A("s_waitcnt lgkmcnt(0)")
    for it in range(4):
        A("s_add_u32 s33, s32, 0x%x" % (it * 8 * 16384))
        A("buffer_store_dwordx4 v[%d:%d], v%d, s[12:15], s33 offen" % (XO + 4 * it, XO + 4 * it + 3, XG))
    PP, PQ = 164, 180
    for row in range(2):
        for bh in range(2):
            for r in range(4):
                re = U + 16 * row + 8 * bh + r; im = re + 4
                tc = TW + 8 * bh + r; ts = tc + 4
                A("v_mul_f32 v56, v%d, v%d" % (re, tc)); A("v_mul_f32 v57, v%d, v%d" % (im, tc))
                A("v_fmac_f32 v56, v%d, v%d" % (im, ts)); A("v_fma_f32 v57, -v%d, v%d, v57" % (re, ts))
                o = 8 * row + 4 * bh + r
                A("v_cvt_pk_bf16_f32 v58, v56, v57")
                A("v_and_b32 v%d, v58, v%d" % (X + o, MG)); A("v_and_b32 v%d, v58, v%d" % (PP + o, MP)); A("v_and_b32 v%d, v58, v%d" % (PQ + o, MQ))
    for row in range(2):
        for bh in range(2):
            for dh in range(2):
                for part in range(2):
                    d = U + 16 * row + 8 * dh + 4 * part
                    a = F2 + 16 * dh + 8 * part + 4 * bh; b = X + 8 * row + 4 * bh
                    A("%s v[%d:%d], v[%d:%d], v[%d:%d], %s" % (MF, d, d + 3, a, a + 3, b, b + 3, "0" if bh == 0 else "v[%d:%d]" % (d, d + 3)))
        for bh in range(2):
            for dh in range(2):
                for part in range(2):
                    d = U + 16 * row + 8 * dh + 4 * part
                    a = F2S + 8 * part + 4 * bh; b = (PP if dh == 0 else PQ) + 8 * row + 4 * bh
                    A("%s v[%d:%d], v[%d:%d], v[%d:%d], v[%d:%d]" % (MF, d, d + 3, a, a + 3, b, b + 3, d, d + 3))
    YP = 64
    for row in range(2):
        for dh in range(2):
            for r in range(4):
                re = U + 16 * row + 8 * dh + r
                A("v_cvt_pk_bf16_f32 v%d, v%d, v%d" % (YP + 8 * dh + 2 * r + row, re, re + 4))
    for dh in range(2):
        for r in range(4):
            p = YP + 8 * dh + 2 * r
            A("ds_write_b64 v%d, v[%d:%d] offset:%d" % (YB0 if dh == 0 else YB1, p, p + 1, YT + (r if dh == 0 else 3 - r) * 1024))
    A("s_waitcnt lgkmcnt(0)"); A("s_barrier")
    for it in range(4): A("ds_read_b128 v[%d:%d], v%d offset:%d" % (8 + 4 * it, 11 + 4 * it, YR, YT + it * 4096))
    for it in range(4):
        A("s_add_u32 s35, s34, 0x%x" % (it * 128 * 8192))
        A("s_waitcnt lgkmcnt(%d)" % (3 - it))
        if it == 0:
            A("v_cmp_gt_u32 vcc, 2, v0"); A("v_mov_b32 v7, 0xffff"); A("v_cndmask_b32 v7, -1, v7, vcc")
            for i in range(4): A("v_lshrrev_b32 v%d, 16, v%d" % (24 + i, 8 + i))
            for i in range(4): A("v_and_b32 v%d, v7, v%d" % (8 + i, 8 + i))
        A("buffer_store_dwordx4 v[%d:%d], v%d, s[16:19], s35 offen" % (8 + 4 * it, 11 + 4 * it, YG))
    A("s_add_u32 s35, s34, 0x%x" % (512 * 8192))
    A("s_and_saveexec_b64 s[38:39], vcc"); A("s_cbranch_execz k1_n512")
    A("buffer_store_dwordx4 v[24:27], v%d, s[16:19], s35 offen" % YG)
    A.label("k1_n512")
    A("s_mov_b64 exec, s[38:39]")
    stamp(A, 6)
    if STAMP: A("s_waitcnt vmcnt(0)")
    stamp(A, 7); stamp(A, 8, True)
    stamp_out(A, 0, 9, 6, "k1")
    A("s_endpgm")
    A.label("k1_help")
    gen_k1_help(A)
    A.label("k1_done"); A("s_endpgm")
    A.fix()
    return A.text() + kernel_desc("k1_kernel", 200, 200, 48)

from gen_k2 import gen_k2, K2_LDS
from gen_k3 import gen_k3, K3_LDS

def main():
    build_tables()
    stub = open("cdna_kernels/%s.s.ref" % NAME).read().split("\n")
    head = [l for l in stub if l.startswith(";") and "@launch" not in l and "Override" not in l and "grid=ceil" not in l]
    o = "\n".join(head[:12]) + "\n"
    o += "; @launch kernel=k1_kernel grid=(512,1,1) block=(256,1,1) lds=%d\n" % K1_LDS
    o += "; @launch kernel=k2_kernel grid=(256,1,1) block=(256,1,1) lds=%d\n" % K2_LDS
    o += "; @launch kernel=k3_kernel grid=(256,1,1) block=(256,1,1) lds=%d\n" % K3_LDS
    o += '.amdgcn_target "amdgcn-amd-amdhsa--gfx950"\n'
    import gen as G
    o += gen_k1() + gen_k2(sys.modules[__name__]) + gen_k3(sys.modules[__name__])
    o += '.section .rodata,"a"\n.p2align 8\n.type gf_tab,@object\ngf_tab:\n'
    for b in TAB.blocks:
        for i in range(0, 256, 8): o += ".long " + ",".join("0x%x" % x for x in b[i:i + 8]) + "\n"
    o += ".size gf_tab, %d\n" % (len(TAB.blocks) * 1024)
    path = sys.argv[1] if len(sys.argv) > 1 else "cdna_kernels/%s.s" % NAME
    open(path, "w").write(o)
    print("wrote", path, len(o), "bytes")

if __name__ == "__main__":
    main()
```

```python
from asmlib import *
import math
K2_LDS = 128 * 1024
MF = "v_mfma_f32_16x16x32_bf16"

def zero_flags(A, G, wsreg):
    G.srd(A, 56, wsreg, G.WS_FL, G.SZ_FL)
    A("v_lshlrev_b32 v20, 2, v1"); A("v_mov_b32 v21, 0"); A("s_lshl_b32 s60, s2, 8")
    A("buffer_store_dword v21, v20, s[56:59], s60 offen")

def gen_gemm1(A, G):
    KA = G.KA
    G.stamp(A, 0); G.stamp(A, 1, True)
    A("s_load_dwordx4 s[4:7], s[0:1], %d" % KA["wg"])
    A("s_load_dwordx2 s[8:9], s[0:1], %d" % KA["ws"])
    A("s_load_dwordx2 s[10:11], s[0:1], %d" % KA["wd"])
    A("s_and_b32 s40, s2, 7"); A("s_lshr_b32 s41, s2, 3"); A("s_sub_u32 s41, s41, 4")
    A("s_and_b32 s42, s40, 1"); A("s_lshl_b32 s42, s42, 2"); A("s_and_b32 s43, s41, 3"); A("s_add_u32 s42, s42, s43")
    A("s_lshr_b32 s43, s40, 1"); A("s_mul_i32 s43, s43, 7"); A("s_lshr_b32 s44, s41, 2"); A("s_add_u32 s43, s43, s44")
    A("v_and_b32 v1, 63, v0"); A("v_lshrrev_b32 v2, 6, v0")
    A("v_readfirstlane_b32 s45, v2")
    A("v_lshlrev_b32 v3, 4, v1")
    A("s_and_b32 s46, s45, 1"); A("s_lshr_b32 s47, s45, 1")
    A("v_lshrrev_b32 v4, 4, v1")
    A("s_lshl_b32 s48, s46, 2"); A("v_add_u32 v4, s48, v4")
    A("v_lshlrev_b32 v5, 1, v4"); A("v_and_b32 v6, 15, v1"); A("v_xor_b32 v5, v5, v6")
    A("s_lshl_b32 s48, s47, 4"); A("v_add_u32 v4, s48, v4")
    A("v_mul_u32_u24 v4, 7168, v4"); A("v_lshl_add_u32 v4, v5, 4, v4")
    A("s_lshl_b32 s48, s47, 13"); A("v_add_u32 v5, s48, v3"); A("v_add_u32 v6, 0x10000, v5")
    A("v_bfe_u32 v7, v1, 4, 1"); A("v_lshlrev_b32 v16, 12, v7")
    A("v_bfe_u32 v7, v1, 5, 1"); A("v_lshl_add_u32 v16, v7, 10, v16")
    A("v_bfe_u32 v7, v1, 2, 2"); A("v_lshl_add_u32 v16, v7, 8, v16")
    A("v_and_b32 v7, 3, v1"); A("v_lshl_add_u32 v16, v7, 3, v16"); A("v_add_u32 v16, 0x4000, v16")
    A("v_bfe_u32 v7, v1, 2, 3")
    A("s_lshl_b32 s48, s46, 2")
    for t in range(4):
        A("s_add_u32 s49, s48, %d" % t)
        A("v_xor_b32 v17, s49, v7"); A("v_lshl_add_u32 v%d, v17, 5, v16" % (8 + t)); A("v_add_u32 v%d, 0x10000, v%d" % (12 + t, 8 + t))
    A("s_waitcnt lgkmcnt(0)")
    G.srd(A, 12, 8, G.WS_XN, G.SZ_XN)
    G.srd(A, 16, 4, 0, 1024 * 7168)
    G.srd(A, 20, 6, -2048, 1024 * 7168 + 2048)
    G.srd(A, 24, 8, G.WS_H, G.SZ_H)
    zero_flags(A, G, 8)
    G.srd(A, 52, 10, 0, 3584 * 2048)
    A("s_lshl_b32 s30, s42, 19"); A("s_lshl_b32 s48, s45, 12"); A("s_add_u32 s30, s30, s48")
    A("s_lshl_b32 s31, s43, 8"); A("s_add_u32 s32, s31, %d" % (57344 - 1024))
    A("s_lshl_b32 s33, s45, 12"); A("s_add_u32 s34, s33, 0x4000")

    def dma(buf):
        o = []
        o.append(["s_add_u32 m0, s33, 0x%x" % (buf * 32768), "buffer_load_dwordx4 v3, s[12:15], s30 offen lds"])
        for p in range(1, 4): o.append(["buffer_load_dwordx4 v3, s[12:15], s30 offen offset:%d lds" % (p * 1024)])
        o[-1].append("s_add_u32 s30, s30, 0x4000")
        o.append(["s_add_u32 m0, s34, 0x%x" % (buf * 32768), "buffer_load_dwordx4 v4, s[16:19], s31 offen lds"])
        o.append(["buffer_load_dwordx4 v4, s[16:19], s32 offen offset:1024 lds"])
        o.append(["buffer_load_dwordx4 v4, s[20:23], s31 offen offset:2048 lds", "s_add_u32 s31, s31, %d" % (32 * 7168)])
        o.append(["buffer_load_dwordx4 v4, s[20:23], s32 offen offset:3072 lds", "s_add_u32 s32, s32, %d" % (32 * 7168)])
        return o
    def acc(it, jt):
        return ("v", 32 + (jt * 8 + it) * 4) if jt < 7 else ("a", 128 + it * 4)
    def reads(buf, st):
        base = 64 * st; hi = buf >> 1; off = (buf & 1) * 32768
        o = []; la = []; lb = []
        for it in range(8):
            mat, t = it >> 2, it & 3
            for h in range(2):
                r = base + 4 * it + 2 * h
                la.append("ds_read_b64_tr_b16 a[%d:%d], v%d offset:%d" % (r, r + 1, (12 if hi else 8) + t, off + h * 8192 + mat * 2048))
        for jt in range(8):
            r = base + 32 + 4 * jt
            lb.append("ds_read_b128 a[%d:%d], v%d offset:%d" % (r, r + 3, 6 if hi else 5, off + jt * 1024))
        for i in range(8): o += [lb[i], la[2 * i], la[2 * i + 1]]
        return o
    def mfmas(st, first=False):
        base = 64 * st; o = []
        for jt in range(8):
            for it in range(8):
                f, d = acc(it, jt); dd = "%s[%d:%d]" % (f, d, d + 3)
                o.append("%s %s, a[%d:%d], a[%d:%d], %s" % (MF, dd, base + 4 * it, base + 4 * it + 3, base + 32 + 4 * jt, base + 35 + 4 * jt, "0" if first else dd))
        return o
    def step(i, dmas, do_read, vm, first=False, rd0=1, mid=None, extra=None):
        m = mfmas(i & 1, first)
        s1 = interleave(m, reads((i + 1) & 3, (i + 1) & 1), rd0, 56 if rd0 > 1 else 52) if do_read else [[] for _ in m]
        dl = []
        for b_ in dmas: dl += dma(b_)
        if extra: dl += extra
        s2 = interleave(m, dl, 0, 64) if dl else [[] for _ in m]
        for k, x in enumerate(m):
            A(x)
            if mid is not None and k == rd0 - 1:
                nv = sum(1 for kk in range(k + 1) for y in s2[kk] if y.startswith("buffer"))
                for y in s2[k]: A(y)
                A("s_waitcnt vmcnt(%d)" % (mid + nv)); A("s_barrier")
                continue
            for y in s2[k] + s1[k]: A(y)
        if vm is not None:
            A("s_waitcnt vmcnt(%d) lgkmcnt(0)" % vm); A("s_barrier")
    def flat(l):
        for x in l:
            for y in x: A(y)
    flat(dma(0)); flat(dma(1))
    G.stamp(A, 2)
    A("s_waitcnt vmcnt(8)"); A("s_barrier")
    G.stamp(A, 3)
    for x in reads(0, 0): A(x)
    flat(dma(2))
    A("s_waitcnt lgkmcnt(0)")
    G.stamp(A, 4)
    step(0, [3, 0], True, 16, first=True, rd0=24, mid=8)
    for i in range(1, 4): step(i, [i & 3], True, 16)
    A("s_mov_b32 s35, 6")
    A.raw(".p2align 6")
    A.label("g1_loop")
    for i in range(4): step(i, [i], True, 16)
    A("s_sub_u32 s35, s35, 1"); A("s_cmp_lg_u32 s35, 0"); A("s_cbranch_scc1 g1_loop")
    G.stamp(A, 5)
    pf = []
    if G.PREFETCH:
        A("s_sub_u32 s50, s2, 32"); A("s_lshl_b32 s50, s50, 15"); A("s_add_u32 s51, s50, 16384")
        A("v_lshlrev_b32 v17, 6, v0")
        pf = [["buffer_load_dword v1, v17, s[52:55], s50 offen"], ["buffer_load_dword v2, v17, s[52:55], s51 offen"]]
    step(0, [], True, 8); step(1, [], True, 0); step(2, [], True, None, extra=pf)
    A("s_waitcnt lgkmcnt(0)")
    step(3, [], False, None)
    G.stamp(A, 6)
    A("s_lshl_b32 s36, s42, 1"); A("s_add_u32 s36, s36, s47"); A("s_mul_i32 s36, s36, 112")
    A("s_lshl_b32 s37, s43, 2"); A("s_add_u32 s36, s36, s37"); A("s_lshl_b32 s37, s46, 1"); A("s_add_u32 s36, s36, s37")
    A("s_lshl_b32 s36, s36, 13")
    c0 = math.sqrt(2 / math.pi)
    c1 = -2 * c0 * math.log2(math.e); c2 = c1 * 0.044715
    A("s_mov_b32 s38, 0x%x" % G.f32(c2)); A("s_mov_b32 s39, s38")
    A("v_mov_b32 v8, 0x%x" % G.f32(c1)); A("v_mov_b32 v9, v8"); A("v_mov_b32 v10, 1.0"); A("v_mov_b32 v11, 1.0")
    def p2(r): return "v[%d:%d]" % (r, r + 1)
    n = 0
    for jt in range(8):
        if jt == 7:
            for i in range(32): A("v_accvgpr_read_b32 v%d, a%d" % (32 + i, 128 + i))
        for p in range(2):
            b0 = 32 + (jt % 7) * 32
            g = b0 + 8 * p; u = b0 + 16 + 8 * p
            T = 16 + 8 * (n % 2); n += 1
            H4 = range(0, 8, 2)
            for e in H4: A("v_pk_mul_f32 %s, %s, %s" % (p2(T + e), p2(g + e), p2(g + e)))
            for e in H4: A("v_pk_fma_f32 %s, %s, s[38:39], v[8:9]" % (p2(T + e), p2(T + e)))
            for e in H4: A("v_pk_mul_f32 %s, %s, %s" % (p2(T + e), p2(T + e), p2(g + e)))
            for e in range(8): A("v_exp_f32 v%d, v%d" % (T + e, T + e))
            for e in H4: A("v_pk_mul_f32 %s, %s, %s" % (p2(u + e), p2(u + e), p2(g + e)))
            for e in H4: A("v_pk_add_f32 %s, %s, v[10:11]" % (p2(T + e), p2(T + e)))
            for e in range(8): A("v_rcp_f32 v%d, v%d" % (T + e, T + e))
            A("s_add_u32 s37, s36, 0x%x" % (p * 8192 + (jt >> 2) * 4096))
            for e in H4: A("v_pk_mul_f32 %s, %s, %s" % (p2(u + e), p2(u + e), p2(T + e)))
            for e in range(4): A("v_cvt_pk_bf16_f32 v%d, v%d, v%d" % (g + e, u + 2 * e, u + 2 * e + 1))
            A("buffer_store_dwordx4 v[%d:%d], v3, s[24:27], s37 offen offset:%d%s" % (g, g + 3, (jt & 3) * 1024, G.H_FLAGS))
    G.stamp(A, 7)
    if G.STAMP: A("s_waitcnt vmcnt(0)")
    G.stamp(A, 8); G.stamp(A, 9, True)
    G.stamp_out(A, 1, 10, 8, "g1")
    A("s_endpgm")

def gen_colfft(A, G):
    KA = G.KA
    G.stamp(A, 0); G.stamp(A, 1, True)
    A("s_load_dwordx2 s[8:9], s[0:1], %d" % KA["ws"])
    G.tab_srd(A, 28, "k2")
    A("v_and_b32 v1, 63, v0"); A("v_lshrrev_b32 v2, 6, v0")
    A("v_readfirstlane_b32 s45, v2")
    A("v_lshlrev_b32 v3, 4, v1")
    DAT, FA, FE = 128, 160, 176
    W, T1, T2, D, P, TMP = 8, 40, 48, 104, 168, 200
    names = []
    for inv in range(2):
        for part in range(2): names.append(("fa_%d%d" % (inv, part), ar(FA + 8 * inv + 4 * part, 4)))
    for t in range(2): names.append(("t1_%d" % t, vr(T1 + 4 * t, 4)))
    for e in range(1, 8):
        for t in range(2): names.append(("t2_%d%d" % (e, t), vr(T2 + 8 * (e - 1) + 4 * t, 4)))
    for o in range(4):
        for ih in range(2): names.append(("fe_%d%d" % (o, ih), ar(FE + 8 * o + 4 * ih, 4)))
    for nm, r in names: G.tab_load(A, r, nm, 3, 28, 42)
    A("v_and_b32 v4, 15, v1"); A("v_lshrrev_b32 v5, 4, v1")
    A("v_lshlrev_b32 v6, 6, v4"); A("v_lshl_add_u32 v6, v5, 4, v6")
    A("v_add_u32 v7, 0x1000, v6"); A("v_add_u32 v4, 0x1000, v3")
    A("s_lshl_b32 s51, s2, 2"); A("s_add_u32 s51, s51, s45")
    A("s_and_b32 s41, s51, 15"); A("s_bfe_u32 s42, s51, 0x20004"); A("s_lshl_b32 s42, s42, 7")
    A("s_add_u32 s40, s41, s42")
    A("s_sub_u32 s43, 32, s41"); A("s_cmp_eq_u32 s41, 0"); A("s_cselect_b32 s43, 16, s43")
    A("s_add_u32 s43, s43, 480"); A("s_sub_u32 s43, s43, s42")
    A("s_cmp_ge_u32 s51, 64"); A("s_cselect_b32 s40, s43, s40"); A("s_cselect_b32 s52, -1, 1"); A("s_lshl_b32 s52, s52, 18")
    A("s_lshl_b32 s40, s40, 13")
    A("s_load_dwordx2 s[10:11], s[0:1], %d" % KA["dbg"])
    A("s_waitcnt lgkmcnt(0)")
    G.srd(A, 12, 8, G.WS_WT, G.SZ_WT)
    G.srd(A, 20, 8, G.WS_Y, G.SZ_Y); G.srd(A, 24, 8, G.WS_Z, G.SZ_Z); G.srd(A, 32, 8, G.WS_S, G.SZ_S)
    G.srd(A, 16, 10, 0, 256)
    zero_flags(A, G, 8)
    def yload():
        for e in range(8):
            A("buffer_load_dwordx4 a[%d:%d], v%d, s[20:23], s40 offen offset:%d" % (DAT + 4 * e, DAT + 4 * e + 3, 6 if e < 4 else 7, (e & 3) * 1024))
    def wload():
        for e in range(8):
            A("buffer_load_dwordx4 v[%d:%d], v%d, s[12:15], s40 offen offset:%d" % (W + 4 * e, W + 4 * e + 3, 3 if e < 4 else 4, (e & 3) * 1024))
    yload(); wload()
    A("s_mov_b32 s46, 0x05040100")
    A("s_mov_b32 s48, 0")
    A("s_or_b32 s49, s2, s45"); A("s_cmp_eq_u32 s49, 0"); A("s_cselect_b32 s49, 5, 4")
    A("s_mov_b32 s50, 0xffff0000")
    G.stamp(A, 2); G.stamp(A, 3)
    A("s_waitcnt vmcnt(8)")
    G.stamp(A, 4)
    A.label("cf_loop")
    A("s_waitcnt vmcnt(8)")
    def q(f, r): return "%s[%d:%d]" % (f, r, r + 3)
    def p2(r): return "v[%d:%d]" % (r, r + 1)
    def mm(d, a, b, c=None):
        A("%s %s, %s, %s, %s" % (MF, q("v", d), a, b, "0" if c is None else q("v", c)))
    tctr = [0]
    def tw_quads(dsts, re, tc, conj, TMP=TMP):
        t = TMP + 8 * (tctr[0] % 4); tctr[0] += 1
        im = re + 4; ts = tc + 4
        neg = " neg_lo:[1,0,0] neg_hi:[1,0,0]"
        for h in (0, 2): A("v_pk_mul_f32 %s, %s, %s" % (p2(t + h), p2(re + h), p2(tc + h)))
        for h in (0, 2): A("v_pk_mul_f32 %s, %s, %s" % (p2(t + 4 + h), p2(im + h), p2(tc + h)))
        for h in (0, 2): A("v_pk_fma_f32 %s, %s, %s, %s%s" % (p2(t + h), p2(im + h), p2(ts + h), p2(t + h), neg if conj else ""))
        for h in (0, 2): A("v_pk_fma_f32 %s, %s, %s, %s%s" % (p2(t + 4 + h), p2(re + h), p2(ts + h), p2(t + 4 + h), "" if conj else neg))
        for r in range(4): A("v_cvt_pk_bf16_f32 v%d, v%d, v%d" % (dsts[r], t + r, t + 4 + r))
    def cm_pairs(items):
        ts = []
        for _ in items:
            ts.append(TMP + 2 * (tctr[0] % 8)); tctr[0] += 1
        for (dst, z, c, s_), t in zip(items, ts):
            A("v_pk_mul_f32 %s, %s, %s op_sel:[0,%d] op_sel_hi:[1,%d]" % (p2(t), p2(z), p2(c & ~1), c & 1, c & 1))
        for (dst, z, c, s_), t in zip(items, ts):
            A("v_pk_fma_f32 %s, %s, %s, %s op_sel:[1,%d,0] op_sel_hi:[0,%d,1] neg_lo:[1,0,0]" % (p2(t), p2(z), p2(s_ & ~1), p2(t), s_ & 1, s_ & 1))
        for (dst, z, c, s_), t in zip(items, ts):
            A("v_cvt_pk_bf16_f32 v%d, v%d, v%d" % (dst, t, t + 1))
    for e in range(8):
        mm(D + 8 * e, q("a", DAT + 4 * e), q("a", FA)); mm(D + 8 * e + 4, q("a", DAT + 4 * e), q("a", FA + 4))
    A("s_add_u32 s40, s40, s52"); A("s_cmp_eq_u32 s48, 3"); A("s_cselect_b32 s40, 0x%x, s40" % (512 * 8192))
    yload()
    for e in range(8): tw_quads([P + 4 * e + r for r in range(4)], D + 8 * e, T1, False)
    for e in range(8):
        mm(D + 8 * e, q("a", FA), q("v", P + 4 * e)); mm(D + 8 * e + 4, q("a", FA + 4), q("v", P + 4 * e))
    for e in range(8):
        if e == 0:
            for r in range(4): A("v_cvt_pk_bf16_f32 v%d, v%d, v%d" % (P + 8 * r, D + r, D + 4 + r))
        else: tw_quads([P + 8 * r + e for r in range(4)], D + 8 * e, T2 + 8 * (e - 1), False)
    def stageE():
        for r in range(4):
            for o in range(4): mm(D + 16 * r + 4 * o, q("a", FE + 8 * o), q("v", P + 8 * r))
            for o in range(4): mm(D + 16 * r + 4 * o, q("a", FE + 8 * o + 4), q("v", P + 8 * r + 4), D + 16 * r + 4 * o)
    stageE()
    A("s_waitcnt vmcnt(8)")
    U = TMP + 16
    for r in range(4):
        for eh in range(2):
            items = []
            for k in range(4):
                ep = 4 * eh + k; w = W + 4 * ep + r; u = U + 8 * (eh & 1) + 2 * k
                A("v_lshlrev_b32 v%d, 16, v%d" % (u, w)); A("v_and_b32 v%d, s50, v%d" % (u + 1, w))
                items.append((P + 8 * r + ep, D + 16 * r + 2 * ep, u, u + 1))
            cm_pairs(items)
    wload()
    stageE()
    for r in range(4):
        A("v_cvt_pk_bf16_f32 v%d, v%d, v%d" % (P + r, D + 16 * r, D + 16 * r + 1))
        for xs in ((1, 2, 3, 4), (5, 6, 7)):
            cm_pairs([(P + 4 * (8 - x) + r, D + 16 * r + 2 * x, T2 + 8 * (7 - x) + r, T2 + 8 * (7 - x) + 4 + r) for x in xs])
    for e in range(8):
        mm(D + 8 * e, q("v", P + 4 * e), q("a", FA + 8)); mm(D + 8 * e + 4, q("v", P + 4 * e), q("a", FA + 12))
    for e in range(8): tw_quads([P + 4 * e + r for r in range(4)], D + 8 * e, T1, True)
    for e in range(8):
        mm(D + 8 * e, q("v", P + 4 * e), q("a", FA + 8)); mm(D + 8 * e + 4, q("v", P + 4 * e), q("a", FA + 12))
    for e in range(8):
        for r in range(4): A("v_cvt_pk_bf16_f32 v%d, v%d, v%d" % (P + 4 * e + r, D + 8 * e + r, D + 8 * e + 4 + r))
    for cc in range(4):
        A("s_cmp_eq_u32 s48, %d" % cc); A("s_cbranch_scc0 cf_o%d" % cc)
        for qq in range(32): A("v_accvgpr_write_b32 a%d, v%d" % (4 * qq + cc, P + qq))
        A.label("cf_o%d" % cc)
    A("s_cmp_eq_u32 s48, 4"); A("s_cbranch_scc0 cf_o4")
    for qq in range(32): A("v_accvgpr_read_b32 v%d, a%d" % (D + qq, 4 * qq))
    for qq in range(32): A("v_perm_b32 v%d, v%d, v%d, s46" % (D + qq, P + qq, D + qq))
    for qq in range(32): A("v_accvgpr_write_b32 a%d, v%d" % (4 * qq, D + qq))
    A.label("cf_o4")
    A("s_add_u32 s48, s48, 1"); A("s_cmp_lt_u32 s48, s49"); A("s_cbranch_scc1 cf_loop")
    G.stamp(A, 5)
    A("v_and_b32 v4, 15, v1"); A("v_lshlrev_b32 v4, 4, v4"); A("v_lshrrev_b32 v5, 4, v1")
    A("v_lshl_add_u32 v4, v5, 20, v4")
    A("s_lshl_b32 s41, s51, 8")
    for r in range(4):
        for e in range(8):
            qq = 4 * e + r
            A("s_add_u32 s42, s41, 0x%x" % ((8 * r + e) * 32768))
            A("buffer_store_dwordx4 a[%d:%d], v4, s[24:27], s42 offen sc0 sc1" % (4 * qq, 4 * qq + 3))
    I1, I1S, I2, ITW = 128, 160, 176, 40
    A("s_waitcnt vmcnt(0)")
    A("s_barrier")
    A("s_cmp_lg_u32 s45, 0"); A("s_cbranch_scc1 cf_noadd")
    A("v_mov_b32 v20, 0"); A("v_mov_b32 v21, 1")
    A("s_mov_b64 exec, 1")
    A("buffer_atomic_add v21, v20, s[16:19], 0 offen sc1")
    A("s_mov_b64 exec, -1")
    A.label("cf_noadd")
    for bh in range(2):
        for part in range(2):
            for dh in range(2): G.tab_load(A, ar(I1 + 16 * bh + 8 * part + 4 * dh, 4), "i1_%d%d%d" % (bh, part, dh), 3, 28, 42)
            G.tab_load(A, ar(I1S + 8 * bh + 4 * part, 4), "i1s_%d%d" % (bh, part), 3, 28, 42)
            G.tab_load(A, vr(ITW + 8 * bh + 4 * part, 4), "itw%d%d" % (bh, part), 3, 28, 42)
        G.tab_load(A, ar(I2 + 4 * bh, 4), "i2_%d" % bh, 3, 28, 42)
    A("v_and_b32 v8, 15, v1"); A("v_lshrrev_b32 v9, 4, v1"); A("s_lshl_b32 s41, s45, 15")
    for k in range(4):
        A("v_add_u32 v10, %d, v9" % (4 * k)); A("v_xor_b32 v11, v10, v8"); A("v_lshlrev_b32 v10, 8, v10")
        A("v_lshl_add_u32 v%d, v11, 4, v10" % (12 + k)); A("v_add_u32 v%d, s41, v%d" % (12 + k, 12 + k))
    A("v_lshlrev_b32 v16, 8, v1"); A("v_add_u32 v16, s41, v16")
    A("v_add_u32 v4, 0x1000, v3")
    A("v_mov_b32 v20, 0"); A("s_mov_b32 s43, 0x40000")
    A.label("cf_poll")
    A("buffer_load_dword v21, v20, s[16:19], 0 offen sc0 sc1")
    A("s_waitcnt vmcnt(0)")
    A("v_readfirstlane_b32 s42, v21")
    A("s_sub_u32 s43, s43, 1"); A("s_cmp_eq_u32 s43, 0"); A("s_cbranch_scc1 cf_go")
    A("s_cmp_lt_u32 s42, 32"); A("s_cbranch_scc1 cf_poll")
    A.label("cf_go")
    G.stamp(A, 6)
    A("s_lshl_b32 s41, s51, 15")
    for p in range(32):
        if p % 8 == 0 and p: A("s_add_u32 s41, s41, 0x2000")
        A("buffer_load_dwordx4 a[%d:%d], v%d, s[24:27], s41 offen offset:%d sc0 sc1" % (4 * p, 4 * p + 3, 3 if (p & 7) < 4 else 4, (p & 3) * 1024))
    for p in range(32):
        A("s_waitcnt vmcnt(%d)" % (31 - p))
        A("ds_write_b128 v%d, a[%d:%d] offset:%d" % (12 + (p & 3), 4 * p, 4 * p + 3, (p >> 2) * 4096))
    A("s_mov_b32 s48, 0")
    A("s_lshl_b32 s41, s51, 11")
    A("s_mov_b64 s[46:47], 0xffff")
    A("s_waitcnt lgkmcnt(0)")
    NR = 4
    ZD, D1, DS, PK = 0, 64, 128, 192
    def rd():
        for k in range(NR):
            A("s_add_u32 s42, s48, %d" % k); A("v_xor_b32 v17, s42, v8"); A("v_lshl_add_u32 v17, v17, 4, v16")
            for dh in range(2): A("ds_read_b128 a[%d:%d], v17 offset:%d" % (ZD + 8 * k + 4 * dh, ZD + 8 * k + 4 * dh + 3, dh * 16384))
    rd()
    A.label("ci_loop")
    A("s_waitcnt lgkmcnt(0)")
    for k in range(NR):
        for dh in range(2):
            for bh in range(2):
                for part in range(2):
                    d = D1 + 16 * k + 8 * bh + 4 * part
                    mm(d, q("a", ZD + 8 * k + 4 * dh), q("a", I1 + 16 * bh + 8 * part + 4 * dh), None if dh == 0 else d)
        for bh in range(2):
            for part in range(2):
                mm(DS + 16 * k + 8 * bh + 4 * part, q("a", ZD + 8 * k + 4 * part), q("a", I1S + 8 * bh + 4 * part))
    A("s_add_u32 s48, s48, %d" % NR)
    rd()
    TMP = 224
    for k in range(NR):
        for x in range(4):
            A("v_cndmask_b32 v%d, v%d, v%d, s[46:47]" % (D1 + 16 * k + 4 * x, D1 + 16 * k + 4 * x, DS + 16 * k + 4 * x))
        for bh in range(2): tw_quads([PK + 8 * k + 4 * bh + r for r in range(4)], D1 + 16 * k + 8 * bh, ITW + 8 * bh, True, TMP)
    for k in range(NR):
        for ah in range(2):
            for bh in range(2): mm(D1 + 16 * k + 8 * ah + 4 * bh, q("v", PK + 8 * k + 4 * bh), q("a", I2 + 4 * ah))
    for k in range(NR):
        for x in range(8): A("v_cvt_pk_bf16_f32 v%d, v%d, v%d" % (DS + 8 * k + x, D1 + 16 * k + 2 * x, D1 + 16 * k + 2 * x + 1))
        for ah in range(2): A("buffer_store_dwordx4 %s, v6, s[32:35], s41 offen offset:%d" % (q("v", DS + 8 * k + 4 * ah), ah * 1024))
        A("s_add_u32 s41, s41, 0x40000")
    A("s_cmp_lt_u32 s48, 16"); A("s_cbranch_scc1 ci_loop")
    G.stamp(A, 7)
    if G.STAMP: A("s_waitcnt vmcnt(0)")
    G.stamp(A, 8); G.stamp(A, 9, True)
    G.stamp_out(A, 1, 10, 8, "cf")
    A("s_endpgm")

def gen_k2(G):
    A = Asm(); G.kernel_head(A, "k2_kernel")
    A("s_cmp_ge_u32 s2, 256"); A("s_cbranch_scc1 k2_done")
    import os
    dbg = os.environ.get("K2DBG", "")
    A("s_cmp_lt_u32 s2, 32"); A("s_cbranch_scc1 %s" % ("k2_done" if dbg == "nofft" else "k2_fft"))
    if dbg == "nogemm": A("s_endpgm")
    gen_gemm1(A, G)
    A.label("k2_fft")
    gen_colfft(A, G)
    A.label("k2_done"); A("s_endpgm")
    A.fix()
    return A.text() + G.kernel_desc("k2_kernel", 512, 256, 64)
```

```python
from asmlib import *
import math, os
K3_LDS = 128 * 1024
MF = "v_mfma_f32_32x32x16_bf16"

def gen_k3(G):
    KA = G.KA
    A = Asm(); G.kernel_head(A, "k3_kernel")
    A("s_cmp_ge_u32 s2, 256"); A("s_cbranch_scc1 k3_done")
    G.stamp(A, 0); G.stamp(A, 1, True)
    A("s_load_dwordx2 s[4:5], s[0:1], %d" % KA["x"])
    A("s_load_dwordx4 s[8:11], s[0:1], %d" % KA["wd"])
    A("s_load_dwordx2 s[6:7], s[0:1], %d" % KA["ws"])
    A("s_and_b32 s44, s2, 1"); A("s_bfe_u32 s42, s2, 0x20001"); A("s_lshl_b32 s42, s42, 2"); A("s_bfe_u32 s43, s2, 0x20003"); A("s_add_u32 s42, s42, s43")
    A("s_lshr_b32 s43, s2, 5")
    A("s_xor_b32 s58, s44, s42"); A("s_and_b32 s58, s58, 1")
    A("v_and_b32 v1, 63, v0"); A("v_lshrrev_b32 v2, 6, v0")
    A("v_readfirstlane_b32 s45, v2")
    A("v_lshlrev_b32 v3, 4, v1")
    A("v_and_b32 v20, 15, v1"); A("v_lshlrev_b32 v4, 4, v20"); A("v_lshl_add_u32 v4, v2, 11, v4")
    A("v_bfe_u32 v21, v1, 4, 1"); A("v_lshl_add_u32 v4, v21, 10, v4"); A("v_lshrrev_b32 v22, 5, v1"); A("v_lshl_add_u32 v4, v22, 8, v4")
    A("v_bfe_u32 v23, v1, 2, 2")
    A("v_lshl_add_u32 v24, v22, 2, v23"); A("v_lshlrev_b32 v24, 8, v24"); A("v_and_b32 v25, 3, v1"); A("v_lshl_add_u32 v24, v25, 3, v24")
    A("v_lshl_or_b32 v25, v23, 1, v22"); A("v_xor_b32 v25, v25, v21"); A("s_lshl_b32 s46, s58, 2"); A("v_xor_b32 v25, s46, v25")
    for t in range(4):
        A("v_xor_b32 v26, %d, v25" % (2 * t)); A("v_lshl_add_u32 v%d, v26, 5, v24" % (12 + t))
    A("v_lshrrev_b32 v21, 4, v1")
    A("v_lshl_add_u32 v23, v2, 5, v21"); A("v_lshlrev_b32 v23, 11, v23")
    A("v_lshlrev_b32 v22, 2, v21"); A("v_xor_b32 v22, v22, v20")
    for p in range(4):
        A("v_xor_b32 v24, %d, v22" % (2 * (p & 1)))
        A("v_lshl_add_u32 v%d, v24, 4, v23" % (8 + p))
        if p: A("v_add_u32 v%d, 0x%x, v%d" % (8 + p, p * (4 * 2048 - 1024), 8 + p))
    A("s_mul_i32 s32, s42, 112"); A("s_mul_i32 s46, s44, 56"); A("s_add_u32 s32, s32, s46"); A("s_lshl_b32 s32, s32, 13")
    A("s_mul_i32 s46, s44, %d" % (1792 * 2048)); A("s_lshl_b32 s33, s43, 8"); A("s_add_u32 s33, s33, s46")
    A("s_lshl_b32 s34, s45, 13")
    A("s_waitcnt lgkmcnt(0)")
    G.srd(A, 12, 6, G.WS_H, G.SZ_H); A("s_add_u32 s14, s32, %d" % (56 * 8192))
    G.srd(A, 16, 8, 0, 3584 * 2048); A("s_add_u32 s18, s46, %d" % (1792 * 2048))
    ACC = 32
    AF, HR = 0, 128
    def dma(par, p):
        o = []
        if p % 4 == 0: o.append("s_add_u32 m0, s34, 0x%x" % (par * 32768 + (p >> 2) * 4096))
        o.append("buffer_load_dwordx4 v%d, s[16:19], s33 offen offset:%d lds" % (8 + (p & 3), (p & 3) * 1024) if p & 3 else "buffer_load_dwordx4 v8, s[16:19], s33 offen lds")
        if p == 3: o.append("s_add_u32 s33, s33, 0x8000")
        if p == 7:
            o.append("s_add_u32 s33, s33, 0x%x" % (128 * 2048 - 0x8000))
            if par == 1: o.append("s_xor_b32 s34, s34, 0x10000")
        return o
    def hload(s, kk):
        r = HR + 8 * (s & 7) + 4 * kk
        o = ["buffer_load_dwordx4 a[%d:%d], v4, s[12:15], s32 offen offset:%d" % (r, r + 3, kk * 512)]
        if kk: o.append("s_add_u32 s32, s32, 0x2000")
        return o
    def reads(s):
        o = []
        for kk in range(2):
            for t in range(4):
                for h in range(2):
                    r = AF + 32 * (s & 3) + 16 * kk + 4 * t + 2 * h
                    o.append("ds_read_b64_tr_b16 a[%d:%d], v%d offset:%d" % (r, r + 1, 12 + t, (s & 7) * 8192 + h * 4096 + kk * 2048))
        return o
    def dma_of(s):
        u = (s - 2) & 7; par = u >> 2; p = 2 * (u & 3)
        return dma(par, p), dma(par, p + 1)
    def kstep(s):
        if (s & 3) == 2:
            A("s_waitcnt vmcnt(28) lgkmcnt(0)"); A("s_barrier")
        else: A("s_waitcnt vmcnt(28) lgkmcnt(15)")
        rd = reads(s + 2); d0, d1 = dma_of(s)
        cnt = [3, 3, 3, 3, 2, 2, 0, 0] if (s & 3) == 1 else [2] * 8
        k = 0
        for kk in range(2):
            for t in range(4):
                d = ACC + 16 * t; a = AF + 32 * (s & 3) + 16 * kk + 4 * t; b = HR + 8 * (s & 7) + 4 * kk
                A("%s v[%d:%d], a[%d:%d], a[%d:%d], v[%d:%d]" % (MF, d, d + 15, a, a + 3, b, b + 3, d, d + 15))
                if (s & 7) == 6 and kk == 0 and t == 0:
                    for tt in range(4): A("v_xor_b32 v%d, 0x10000, v%d" % (12 + tt, 12 + tt))
                for _ in range(cnt[4 * kk + t]):
                    A(rd[k]); k += 1
                if t == 1:
                    for y in (d0 if kk == 0 else d1): A(y)
            for y in hload(s, kk): A(y)
    for p in range(8):
        for y in dma(0, p): A(y)
    for p in range(4):
        for y in dma(1, p): A(y)
    for s in range(-8, 0):
        d0, d1 = dma_of(s)
        for y in d0 + hload(s, 0) + d1 + hload(s, 1): A(y)
    for i in range(64): A("v_mov_b32 v%d, 0" % (ACC + i))
    G.srd(A, 20, 6, G.WS_S, G.SZ_S); G.srd(A, 24, 4, 0, 4 << 20); G.srd(A, 28, 10, 0, 4 << 20)
    G.srd(A, 48, 6, G.WS_XC, G.SZ_XC); G.srd(A, 52, 6, G.WS_FL, G.SZ_FL)
    A("v_lshrrev_b32 v20, 3, v1"); A("v_lshlrev_b32 v20, 18, v20"); A("v_lshl_add_u32 v20, v2, 12, v20")
    A("v_and_b32 v21, 7, v1"); A("v_lshl_add_u32 v20, v21, 4, v20")
    A("s_lshl_b32 s38, s42, 14"); A("s_lshl_b32 s39, s43, 8"); A("s_add_u32 s38, s38, s39"); A("s_lshl_b32 s39, s58, 7"); A("s_add_u32 s38, s38, s39")
    A("s_add_u32 s39, s38, 0x200000")
    XR, SR, PR = 96, 112, 128
    for i in range(4):
        A("buffer_load_dwordx4 v[%d:%d], v20, s[24:27], s%d offen offset:%d" % (XR + 4 * i, XR + 4 * i + 3, 38 + (i & 1), (i >> 1) * 2048))
        A("buffer_load_dwordx4 v[%d:%d], v20, s[20:23], s%d offen offset:%d" % (SR + 4 * i, SR + 4 * i + 3, 38 + (i & 1), (i >> 1) * 2048))
    A("v_and_b32 v21, 31, v1"); A("v_mul_u32_u24 v16, 144, v21"); A("v_lshrrev_b32 v21, 5, v1"); A("v_lshl_add_u32 v16, v21, 3, v16"); A("v_lshl_add_u32 v16, v2, 13, v16")
    A("v_lshrrev_b32 v21, 3, v1"); A("v_mul_u32_u24 v17, 144, v21"); A("v_and_b32 v21, 7, v1"); A("v_lshl_add_u32 v17, v21, 4, v17"); A("v_lshl_add_u32 v17, v2, 13, v17")
    G.stamp(A, 2)
    A("s_waitcnt vmcnt(44)"); A("s_barrier")
    G.stamp(A, 3)
    for x in reads(0) + reads(1): A(x)
    G.stamp(A, 4)
    A("s_mov_b32 s35, 7")
    A.raw(".p2align 6")
    A.label("g2_loop")
    for s in range(8): kstep(s)
    if os.environ.get("K3IT"):
        for it, k in ((6, 2), (4, 3), (2, 4)):
            A("s_cmp_eq_u32 s35, %d" % it); A("s_cbranch_scc0 k3it%d" % it); G.stamp(A, k); A.label("k3it%d" % it)
    A("s_sub_u32 s35, s35, 1"); A("s_cmp_lg_u32 s35, 0"); A("s_cbranch_scc1 g2_loop")
    G.stamp(A, 5)
    A("s_lshl_b32 s36, s2, 15"); A("s_lshl_b32 s37, s45, 13"); A("s_add_u32 s36, s36, s37"); A("s_add_u32 s37, s36, 0x1000")
    for i in range(8):
        A("buffer_store_dwordx4 v[%d:%d], v3, s[48:51], s%d offen offset:%d sc0 sc1" % (ACC + 32 + 4 * i, ACC + 35 + 4 * i, 36 + (i >> 2), (i & 3) * 1024))
    A("s_lshl_b32 s40, s2, 8"); A("s_lshl_b32 s41, s45, 6"); A("s_add_u32 s40, s40, s41"); A("s_xor_b32 s41, s40, 0x100")
    A("v_mov_b32 v22, 0"); A("v_mov_b32 v23, 1")
    nl2e = -math.log2(math.e)
    A("s_mov_b32 s56, 0x%x" % G.f32(nl2e)); A("s_mov_b32 s57, s56"); A("s_mov_b32 s59, 0xffff0000")
    A("v_mov_b32 v26, 1.0"); A("v_mov_b32 v27, 1.0")
    UX, US = 160, 192
    for i in range(16):
        A("v_lshlrev_b32 v%d, 16, v%d" % (UX + 2 * i, XR + i)); A("v_and_b32 v%d, s59, v%d" % (UX + 2 * i + 1, XR + i))
        A("v_lshlrev_b32 v%d, 16, v%d" % (US + 2 * i, SR + i)); A("v_and_b32 v%d, s59, v%d" % (US + 2 * i + 1, SR + i))
    A("s_waitcnt vmcnt(0) lgkmcnt(0)")
    if os.environ.get("K3IT"): G.stamp(A, 10)
    A("s_mov_b64 exec, 1")
    A("buffer_store_dword v23, v22, s[52:55], s40 offen sc0 sc1")
    A("s_mov_b64 exec, -1")
    A("s_barrier")
    A("s_xor_b32 s36, s36, 0x8000"); A("s_xor_b32 s37, s37, 0x8000")
    A("s_mov_b32 s47, 0x40000")
    A.label("k3_poll")
    A("buffer_load_dword v24, v22, s[52:55], s41 offen sc0 sc1")
    A("s_waitcnt vmcnt(0)")
    A("v_readfirstlane_b32 s46, v24")
    A("s_sub_u32 s47, s47, 1"); A("s_cmp_eq_u32 s47, 0"); A("s_cbranch_scc1 k3_go")
    A("s_cmp_eq_u32 s46, 0"); A("s_cbranch_scc1 k3_poll")
    A.label("k3_go")
    G.stamp(A, 6)
    for i in range(8):
        A("buffer_load_dwordx4 v[%d:%d], v3, s[48:51], s%d offen offset:%d sc0 sc1" % (PR + 4 * i, PR + 3 + 4 * i, 36 + (i >> 2), (i & 3) * 1024))
    def p2(r): return "v[%d:%d]" % (r, r + 1)
    H4 = range(0, 8, 2)
    for t in range(4):
        b = 8 * t; T = 224 + 8 * (t & 1)
        A("s_waitcnt vmcnt(%d)" % (6 - 2 * t))
        for e in H4: A("v_pk_add_f32 %s, %s, %s" % (p2(ACC + b + e), p2(ACC + b + e), p2(PR + b + e)))
        for e in H4: A("v_pk_mul_f32 %s, %s, s[56:57]" % (p2(T + e), p2(ACC + b + e)))
        for e in range(8): A("v_exp_f32 v%d, v%d" % (T + e, T + e))
        A("s_nop 0")
        for e in H4: A("v_pk_add_f32 %s, %s, v[26:27]" % (p2(T + e), p2(T + e)))
        for e in range(8): A("v_rcp_f32 v%d, v%d" % (T + e, T + e))
        A("s_nop 0")
        for e in H4: A("v_pk_mul_f32 %s, %s, %s" % (p2(ACC + b + e), p2(ACC + b + e), p2(T + e)))
        for e in range(4): A("v_cvt_pk_bf16_f32 v%d, v%d, v%d" % (PR + b + e, ACC + b + 2 * e, ACC + b + 2 * e + 1))
        for u in range(2):
            A("ds_write_b64 v16, %s offset:%d" % (p2(PR + b + 2 * u), (t >> 1) * 64 + (2 * (t & 1) + u) * 16))
    A("s_waitcnt lgkmcnt(0)")
    for i in range(4): A("ds_read_b128 v[%d:%d], v17 offset:%d" % (ACC + 4 * i, ACC + 4 * i + 3, i * 8 * 144))
    for i in range(4):
        A("s_waitcnt lgkmcnt(%d)" % (3 - i))
        T = 224 + 8 * (i & 1)
        for e in range(4):
            A("v_lshlrev_b32 v%d, 16, v%d" % (T + 2 * e, ACC + 4 * i + e)); A("v_and_b32 v%d, s59, v%d" % (T + 2 * e + 1, ACC + 4 * i + e))
        for e in H4: A("v_pk_fma_f32 %s, %s, %s, %s" % (p2(UX + 8 * i + e), p2(US + 8 * i + e), p2(T + e), p2(UX + 8 * i + e)))
        for e in range(4): A("v_cvt_pk_bf16_f32 v%d, v%d, v%d" % (XR + 4 * i + e, UX + 8 * i + 2 * e, UX + 8 * i + 2 * e + 1))
        A("buffer_store_dwordx4 v[%d:%d], v20, s[28:31], s%d offen offset:%d" % (XR + 4 * i, XR + 4 * i + 3, 38 + (i & 1), (i >> 1) * 2048))
    G.stamp(A, 7)
    if G.STAMP: A("s_waitcnt vmcnt(0)")
    G.stamp(A, 8); G.stamp(A, 9, True)
    G.stamp_out(A, 2, 11 if os.environ.get("K3IT") else 10, 6, "k3")
    A.label("k3_done"); A("s_endpgm")
    A.fix()
    return A.text() + G.kernel_desc("k3_kernel", 448, 256, 64)
```

```python
import sys, math, struct
import numpy as np
from asmlib import *

NAME = "recurrent_scan__spectral_gfnet__geglu_ffn__prompt"
WS_XN = 0;            SZ_XN = 4 << 20
WS_Y = 4 << 20;       SZ_Y = 513 * 8192
WS_WT = 9 << 20;      SZ_WT = 513 * 8192
WS_Z = 14 << 20;      SZ_Z = 4 << 20
WS_S = 18 << 20;      SZ_S = 4 << 20
WS_H = 22 << 20;      SZ_H = 16 * 112 * 8192
WS_FL = 36 << 20;     SZ_FL = 65536
WS_XC = 37 << 20;     SZ_XC = 8 << 20
KA = dict(x=0, wr=8, wi=16, bx=24, wg=32, wu=40, wd=48, out=56, dbg=64, ws=72)

import os
STAMP = os.environ.get("STAMP", "") != ""
def f32(x): return struct.unpack("<I", struct.pack("<f", x))[0]
def bf16(x):
    u = f32(x); return ((u + 0x7FFF + ((u >> 16) & 1)) >> 16) & 0xFFFF
def pk(lo, hi): return bf16(lo) | (bf16(hi) << 16)

class Table:
    def __init__(self): self.blocks = []; self.names = {}
    def add(self, name, fn):
        self.names[name] = len(self.blocks)
        self.blocks.append([d for l in range(64) for d in fn(l)])
    def off(self, name): return self.names[name] * 1024
TAB = Table()
def cs(num, den):
    a = 2 * math.pi * (num % den) / den
    c, s = math.cos(a), math.sin(a)
    if abs(c) < 1e-12: c = 0.0
    if abs(s) < 1e-12: s = 0.0
    return c, s

def build_tables():
    def slot_a(g, j): return 4 * g + j if j < 4 else 16 + 4 * g + (j - 4)
    def f1(part):
        def fn(l):
            g, c = l >> 4, l & 15
            v = []
            for j in range(8):
                a = slot_a(g, j)
                if part == 0: v.append(cs(a * c, 32)[0])
                else: v.append(-cs(a * c, 32)[1] if c else cs(a * 16, 32)[0])
            return [pk(v[2 * i], v[2 * i + 1]) for i in range(4)]
        return fn
    TAB.add("f1re", f1(0)); TAB.add("f1im", f1(1))
    for bh in range(2):
        for t in range(2):
            TAB.add("tw%d%d" % (bh, t), lambda l, bh=bh, t=t: [f32(cs((16 * bh + 4 * (l >> 4) + r) * (l & 15), 1024)[t]) for r in range(4)])
    for dh in range(2):
        for part in range(2):
            for bh in range(2):
                def fn(l, dh=dh, part=part, bh=bh):
                    g, i = l >> 4, l & 15
                    d = 16 * dh + i; o = []
                    for r in range(4):
                        b = 16 * bh + 4 * g + r
                        c, s = cs(b * d, 32)
                        if part == 0: o.append(pk(c, s))
                        else: o.append(pk(-s, c) if dh == 0 else pk(s, -c))
                    return o
                TAB.add("f2_%d%d%d" % (dh, part, bh), fn)
    for part in range(2):
        for bh in range(2):
            def fn(l, part=part, bh=bh):
                g, i = l >> 4, l & 15
                o = []
                for r in range(4):
                    b = 16 * bh + 4 * g + r
                    c, s = cs(b * i, 32)
                    lo = c if part == 0 else (-s if i else cs(b * 16, 32)[0])
                    u = 15 - i
                    c2, s2 = cs(b * (2 * u + 1), 64)
                    hi = c2 if part == 0 else -s2
                    o.append(pk(lo, hi))
                return o
            TAB.add("f2s_%d%d" % (part, bh), fn)
    for inv in range(2):
        for part in range(2):
            def fn(l, inv=inv, part=part):
                g, n = l >> 4, l & 15
                o = []
                for jj in range(4):
                    c, s = cs((4 * g + jj) * n, 16)
                    if inv: s = -s
                    o.append(pk(c, s) if part == 0 else pk(-s, c))
                return o
            TAB.add("fa_%d%d" % (inv, part), fn)
    for o_ in range(4):
        for ih in range(2):
            def fn(l, o_=o_, ih=ih):
                gk, i = l >> 4, l & 15
                if (i >> 2) != gk: return [0, 0, 0, 0]
                r2 = i & 3; ep = 2 * o_ + (r2 >> 1); part = r2 & 1
                o = []
                for jj in range(4):
                    c, s = cs((4 * ih + jj) * ep, 8)
                    o.append(pk(c, s) if part == 0 else pk(-s, c))
                return o
            TAB.add("fe_%d%d" % (o_, ih), fn)
    for t in range(2):
        TAB.add("t1_%d" % t, lambda l, t=t: [f32(cs((4 * (l >> 4) + r) * (l & 15), 256)[t]) for r in range(4)])
    for e in range(1, 8):
        for t in range(2):
            TAB.add("t2_%d%d" % (e, t), lambda l, e=e, t=t: [f32(cs(e * ((l & 15) + 16 * (4 * (l >> 4) + r)), 2048)[t]) for r in range(4)])

def build_tables_inv():
    def bmap(n, bh): return 8 * (n >> 2) + 4 * bh + (n & 3)
    for bh in range(2):
        for part in range(2):
            for dh in range(2):
                def fn(l, bh=bh, part=part, dh=dh):
                    g, n = l >> 4, l & 15; b = bmap(n, bh); o = []
                    for r in range(4):
                        c, s = cs(b * (16 * dh + 4 * g + r), 32)
                        sg = 1.0 if dh == 0 else -1.0
                        o.append(pk(c, -s * sg) if part == 0 else pk(s, c * sg))
                    return o
                TAB.add("i1_%d%d%d" % (bh, part, dh), fn)
    for bh in range(2):
        for part in range(2):
            def fn(l, bh=bh, part=part):
                g, n = l >> 4, l & 15; b = bmap(n, bh); o = []
                for r in range(4):
                    d = 4 * g + r
                    if part == 0:
                        if d == 0: o.append(pk(1.0, (-1.0) ** b))
                        else:
                            c, s = cs(b * d, 32); o.append(pk(2 * c, -2 * s))
                    else:
                        u = 15 - d
                        c, s = cs(b * (2 * u + 1), 64); o.append(pk(2 * c, -2 * s))
                return o
            TAB.add("i1s_%d%d" % (bh, part), fn)
    for ah in range(2):
        def fn(l, ah=ah):
            g, n = l >> 4, l & 15; a = 16 * ah + n; o = []; sc = 2.0 ** -21
            for r in range(4):
                c_ = 4 * g + r
                if c_ == 0: o.append(pk(sc, sc * (-1.0) ** a))
                else:
                    c, s = cs(a * c_, 32); o.append(pk(2 * c * sc, -2 * s * sc))
            return o
        TAB.add("i2_%d" % ah, fn)
    for bh in range(2):
        for t in range(2):
            TAB.add("itw%d%d" % (bh, t), lambda l, bh=bh, t=t: [f32(cs(bmap(l & 15, bh) * (4 * (l >> 4) + r), 1024)[t]) for r in range(4)])

def srd(A, d, base, off, size):
    if off >= 0:
        A("s_add_u32 s%d, s%d, 0x%x" % (d, base, off)); A("s_addc_u32 s%d, s%d, 0" % (d + 1, base + 1))
    else:
        A("s_sub_u32 s%d, s%d, 0x%x" % (d, base, -off)); A("s_subb_u32 s%d, s%d, 0" % (d + 1, base + 1))
    A("s_and_b32 s%d, s%d, 0xffff" % (d + 1, d + 1))
    A("s_mov_b32 s%d, 0x%x" % (d + 2, size)); A("s_mov_b32 s%d, 0x20000" % (d + 3))

def tab_srd(A, d, tag):
    A("s_getpc_b64 s[%d:%d]" % (d, d + 1))
    A("s_add_u32 s%d, s%d, gf_tab@rel32@lo+4" % (d, d))
    A("s_addc_u32 s%d, s%d, gf_tab@rel32@hi+12" % (d + 1, d + 1))
    A("s_and_b32 s%d, s%d, 0xffff" % (d + 1, d + 1))
    A("s_mov_b32 s%d, 0x%x" % (d + 2, len(TAB.blocks) * 1024)); A("s_mov_b32 s%d, 0x20000" % (d + 3))

def tab_load(A, dst, name, vlane16, srdt, stmp):
    o = TAB.off(name)
    A("s_mov_b32 s%d, 0x%x" % (stmp, o))
    A("buffer_load_dwordx4 %s, v%d, s[%d:%d], s%d offen" % (dst, vlane16, srdt, srdt + 3, stmp))

def kernel_head(A, name):
    A.raw(".text"); A.raw(".globl %s" % name); A.raw(".p2align 8"); A.raw(".type %s,@function" % name)
    A.label(name)

def kernel_desc(name, nv, acc_off, ns=102):
    if STAMP: ns = 102
    return """.section .rodata,"a"
.p2align 6
.amdhsa_kernel %s
  .amdhsa_next_free_vgpr %d
  .amdhsa_next_free_sgpr %d
  .amdhsa_accum_offset %d
  .amdhsa_group_segment_fixed_size 0
  .amdhsa_kernarg_size 80
  .amdhsa_user_sgpr_count 2
  .amdhsa_user_sgpr_kernarg_segment_ptr 1
  .amdhsa_system_sgpr_workgroup_id_x 1
  .amdhsa_float_denorm_mode_32 3
.end_amdhsa_kernel
""" % (name, nv, ns, acc_off)

def allreduce_add(A, regs, tmps):
    for mod in ("quad_perm:[1,0,3,2]", "quad_perm:[2,3,0,1]", "row_half_mirror", "row_mirror"):
        for r in regs:
            A("v_add_f32_dpp v%d, v%d, v%d %s row_mask:0xf bank_mask:0xf" % (r, r, r, mod))
    for sw in ("v_permlane16_swap_b32", "v_permlane32_swap_b32"):
        for r, t in zip(regs, tmps): A("v_mov_b32 v%d, v%d" % (t, r))
        for r, t in zip(regs, tmps): A("%s v%d, v%d" % (sw, r, t))
        for r, t in zip(regs, tmps): A("v_add_f32 v%d, v%d, v%d" % (r, r, t))

MF = "v_mfma_f32_16x16x32_bf16"

import os
STAMP = os.environ.get("STAMP", "") != ""
WS_STAMP = 64 << 20
def stamp(A, i, real=False):
    if STAMP: A("%s s[%d:%d]" % ("s_memrealtime" if real else "s_memtime", 72 + 2 * i, 73 + 2 * i))
def stamp_out(A, kidx, n, wsreg, tag):
    if not STAMP: return
    A("s_waitcnt vmcnt(0) lgkmcnt(0)")
    if os.environ.get("STAMP") == "dbg":
        if tag == "cf": return
        A("s_cmp_lg_u32 s2, 40"); A("s_cbranch_scc1 so_skip_%s" % tag)
        A("s_load_dwordx2 s[68:69], s[0:1], %d" % KA["dbg"]); A("s_waitcnt lgkmcnt(0)")
        srd(A, 96, 68, 512 * (2 - kidx), 256)
        A("v_mov_b32 v1, 0")
        sel = [1, n - 1] + ([3, 5, 7] if kidx == 0 else [4, 6, 8])
        for i, k in enumerate(sel):
            if i >= 2: A("s_sub_u32 s70, s%d, s72" % (72 + 2 * k))
            else: A("s_mov_b32 s70, s%d" % (72 + 2 * k))
            A("v_mov_b32 v2, s70")
            A("buffer_store_dword v2, v1, s[96:99], 0 offen offset:%d" % (4 * (5 * kidx + i)))
            A("s_nop 1")
        A.label("so_skip_%s" % tag)
        return
    srd(A, 96, wsreg, WS_STAMP + kidx * 65536, 65536)
    A("v_lshrrev_b32 v1, 6, v0"); A("v_lshlrev_b32 v1, 6, v1"); A("s_lshl_b32 s68, s2, 8"); A("v_add_u32 v1, s68, v1")
    for i in range(n):
        A("v_mov_b32 v2, s%d" % (72 + 2 * i))
        A("buffer_store_dword v2, v1, s[96:99], 0 offen offset:%d" % (4 * i))
        A("s_nop 1")

K1_LDS = 8 * 2080 + 16384
def gen_k1_help(A):
    A("s_load_dwordx4 s[4:7], s[0:1], %d" % KA["wr"])
    A("s_load_dwordx4 s[8:11], s[0:1], %d" % KA["wg"])
    A("s_load_dwordx2 s[12:13], s[0:1], %d" % KA["ws"])
    A("s_sub_u32 s3, s2, 256")
    A("s_and_b32 s36, s3, 3"); A("s_bfe_u32 s37, s3, 0x10002"); A("s_bfe_u32 s38, s3, 0x20003"); A("s_lshr_b32 s39, s3, 5")
    A("s_lshl_b32 s40, s37, 3"); A("s_lshl_b32 s41, s38, 6"); A("s_add_u32 s40, s40, s41"); A("s_lshl_b32 s41, s39, 8"); A("s_add_u32 s40, s40, s41")
    A("s_mul_i32 s40, s40, 1026"); A("s_lshl_b32 s41, s36, 8"); A("s_add_u32 s40, s40, s41")
    A("v_and_b32 v1, 7, v0"); A("v_lshrrev_b32 v2, 3, v0")
    A("v_mul_u32_u24 v3, 1026, v1"); A("v_lshl_add_u32 v3, v2, 3, v3")
    A("v_lshlrev_b32 v4, 15, v2"); A("v_lshl_add_u32 v4, v1, 4, v4")
    A("s_lshl_b32 s42, s36, 20"); A("s_lshl_b32 s41, s39, 10"); A("s_add_u32 s42, s42, s41"); A("s_lshl_b32 s41, s38, 8"); A("s_add_u32 s42, s42, s41")
    A("s_lshl_b32 s41, s37, 7"); A("s_add_u32 s42, s42, s41")
    A("s_mov_b32 s46, 0x05040100"); A("s_mov_b32 s47, 0x07060302")
    A("v_lshlrev_b32 v5, 6, v0")
    A("s_mul_i32 s43, s3, %d" % (1024 * 7168 // 256))
    A("s_waitcnt lgkmcnt(0)")
    WSZ = 2048 * 1026
    srd(A, 16, 4, 0, WSZ); srd(A, 20, 6, 0, WSZ); srd(A, 24, 12, WS_WT, SZ_WT)
    srd(A, 28, 8, 0, 1024 * 7168); srd(A, 32, 10, 0, 1024 * 7168)
    for r in range(4):
        A("s_add_u32 s41, s40, %d" % (16 * r * 1026))
        A("buffer_load_dwordx2 v[%d:%d], v3, s[16:19], s41 offen" % (8 + 4 * r, 9 + 4 * r))
        A("buffer_load_dwordx2 v[%d:%d], v3, s[20:23], s41 offen" % (10 + 4 * r, 11 + 4 * r))
    A("v_mul_u32_u24 v6, 1026, v1")
    for r in range(4):
        A("s_add_u32 s41, s40, %d" % (16 * r * 1026 + 256))
        A("buffer_load_ushort v%d, v6, s[16:19], s41 offen" % (48 + r))
        A("buffer_load_ushort v%d, v6, s[20:23], s41 offen" % (52 + r))
    PFM = os.environ.get("PFM", "x4")
    if PREFETCH and PFM == "x4":
        A("v_lshlrev_b32 v5, 4, v0")
        NPF = int(os.environ.get("NPF", "7"))
        for i in range(NPF):
            A("buffer_load_dwordx4 v[%d:%d], v5, s[28:31], s43 offen" % (64 + 8 * i, 67 + 8 * i))
            A("buffer_load_dwordx4 v[%d:%d], v5, s[32:35], s43 offen" % (68 + 8 * i, 71 + 8 * i))
            A("s_add_u32 s43, s43, 4096")
        A("s_waitcnt vmcnt(%d)" % (2 * NPF))
    elif PREFETCH and PFM == "d128":
        A("v_lshlrev_b32 v5, 7, v0")
        A("v_cmp_gt_u32 vcc, 224, v0"); A("s_and_saveexec_b64 s[44:45], vcc")
        A("buffer_load_dword v62, v5, s[28:31], s43 offen"); A("buffer_load_dword v63, v5, s[32:35], s43 offen")
        A("s_mov_b64 exec, s[44:45]")
        A("s_waitcnt vmcnt(2)")
    else:
        A("s_waitcnt vmcnt(0)")
    for c in range(4):
        for r in range(4):
            A("v_perm_b32 v%d, v%d, v%d, s%d" % (24 + 4 * c + r, 10 + 4 * r + (c >> 1), 8 + 4 * r + (c >> 1), 46 + (c & 1)))
        A("s_add_u32 s41, s42, %d" % (c * 8192))
        A("buffer_store_dwordx4 v[%d:%d], v4, s[24:27], s41 offen%s" % (24 + 4 * c, 27 + 4 * c, WT_FLAGS))
    A("s_cmp_lg_u32 s36, 3"); A("s_cbranch_scc1 k1_done")
    for r in range(4): A("v_lshl_or_b32 v%d, v%d, 16, v%d" % (48 + r, 52 + r, 48 + r))
    A("s_add_u32 s41, s42, %d" % (128 * 8192))
    A("v_cmp_gt_u32 vcc, 8, v0"); A("s_and_saveexec_b64 s[44:45], vcc"); A("s_cbranch_execz k1_done")
    A("buffer_store_dwordx4 v[48:51], v4, s[24:27], s41 offen%s" % WT_FLAGS)

PREFETCH = os.environ.get("NOPF", "") == ""
WT_FLAGS = os.environ.get("WTFL", " sc0 sc1")
H_FLAGS = os.environ.get("HFL", "")
def gen_k1():
    A = Asm(); kernel_head(A, "k1_kernel")
    RS = 2080; YT = 8 * RS
    A("s_cmp_ge_u32 s2, 512"); A("s_cbranch_scc1 k1_done")
    A("s_cmp_ge_u32 s2, 256"); A("s_cbranch_scc1 k1_help")
    stamp(A, 0); stamp(A, 1, True)
    A("s_load_dwordx2 s[4:5], s[0:1], %d" % KA["x"])
    A("s_load_dwordx2 s[6:7], s[0:1], %d" % KA["ws"])
    tab_srd(A, 20, "k1")
    A("s_and_b32 s24, s2, 7"); A("s_bfe_u32 s25, s2, 0x10003"); A("s_lshr_b32 s26, s2, 4")
    A("s_lshl_b32 s27, s26, 3"); A("s_add_u32 s27, s27, s24")
    A("v_and_b32 v1, 63, v0"); A("v_lshrrev_b32 v2, 6, v0")
    A("v_lshlrev_b32 v3, 4, v1")
    A("s_lshl_b32 s28, s25, 21"); A("s_lshl_b32 s29, s27, 11"); A("s_add_u32 s28, s28, s29")
    A("v_lshl_add_u32 v4, v2, 19, v3")
    A("s_add_u32 s29, s28, 0x40000")
    A("s_waitcnt lgkmcnt(0)")
    srd(A, 8, 4, 0, 4 << 20); srd(A, 12, 6, WS_XN, SZ_XN); srd(A, 16, 6, WS_Y, SZ_Y)
    X = 8
    A("buffer_load_dwordx4 v[8:11], v4, s[8:11], s28 offen")
    A("buffer_load_dwordx4 v[12:15], v4, s[8:11], s28 offen offset:1024")
    A("buffer_load_dwordx4 v[16:19], v4, s[8:11], s29 offen")
    A("buffer_load_dwordx4 v[20:23], v4, s[8:11], s29 offen offset:1024")
    F1 = 64; TW = 72; F2 = 88; F2S = 120
    names = [("f1re", F1), ("f1im", F1 + 4)]
    for bh in range(2):
        for t in range(2): names.append(("tw%d%d" % (bh, t), TW + 8 * bh + 4 * t))
    for dh in range(2):
        for part in range(2):
            for bh in range(2): names.append(("f2_%d%d%d" % (dh, part, bh), F2 + 16 * dh + 8 * part + 4 * bh))
    for part in range(2):
        for bh in range(2): names.append(("f2s_%d%d" % (part, bh), F2S + 8 * part + 4 * bh))
    for nm, r in names: tab_load(A, vr(r, 4), nm, 3, 20, 30)
    NT = len(names)
    A("s_mov_b32 s31, 0xffff0000")
    A("v_and_b32 v5, 15, v1"); A("v_lshrrev_b32 v6, 4, v1")
    A("v_cmp_eq_u32 vcc, 0, v5")
    A("v_mov_b32 v7, 0xffff")
    MG, MP, MQ = 136, 137, 138
    A("v_cndmask_b32 v%d, -1, 0, vcc" % MG)
    A("v_cndmask_b32 v%d, 0, v7, vcc" % MP)
    A("v_lshlrev_b32 v%d, 16, v%d" % (MQ, MP))
    YB0, YB1 = 139, 140
    A("v_lshl_add_u32 v%d, v6, 7, v5" % YB0); A("v_lshlrev_b32 v%d, 5, v%d" % (YB0, YB0))
    A("v_lshl_add_u32 v%d, v2, 3, v%d" % (YB0, YB0))
    A("v_sub_u32 v7, 32, v5"); A("v_cndmask_b32 v7, v7, 16, vcc")
    A("v_lshlrev_b32 v%d, 7, v6" % YB1); A("v_sub_u32 v%d, 384, v%d" % (YB1, YB1)); A("v_add_u32 v%d, v%d, v7" % (YB1, YB1))
    A("v_lshlrev_b32 v%d, 5, v%d" % (YB1, YB1)); A("v_lshl_add_u32 v%d, v2, 3, v%d" % (YB1, YB1))
    XW = 141
    A("v_mul_u32_u24 v%d, %d, v2" % (XW, 2 * RS)); A("v_add_u32 v%d, v%d, v3" % (XW, XW))
    TR = 142
    A("v_lshrrev_b32 v7, 2, v1"); A("v_lshlrev_b32 v7, 6, v7"); A("v_and_b32 v%d, 3, v1" % TR)
    A("v_lshl_add_u32 v7, v%d, 3, v7" % TR); A("v_mul_u32_u24 v%d, %d, v2" % (TR, 2 * RS)); A("v_add_u32 v%d, v%d, v7" % (TR, TR))
    XR = 143
    A("v_and_b32 v7, 7, v1"); A("v_mul_u32_u24 v%d, %d, v7" % (XR, RS))
    A("v_bfe_u32 v7, v1, 3, 2"); A("v_lshl_add_u32 v%d, v7, 3, v%d" % (XR, XR))
    A("v_lshrrev_b32 v7, 5, v0"); A("v_lshl_add_u32 v%d, v7, 6, v%d" % (XR, XR))
    XG = 144
    A("v_lshrrev_b32 v7, 5, v0"); A("v_lshlrev_b32 v%d, 14, v7" % XG)
    A("v_bfe_u32 v7, v1, 3, 2"); A("v_lshl_add_u32 v%d, v7, 8, v%d" % (XG, XG))
    A("v_and_b32 v7, 7, v1"); A("v_lshl_add_u32 v%d, v7, 4, v%d" % (XG, XG))
    A("s_lshr_b32 s32, s27, 4"); A("s_lshl_b32 s32, s32, 19"); A("s_and_b32 s33, s27, 15"); A("s_lshl_b32 s33, s33, 10")
    A("s_add_u32 s32, s32, s33"); A("s_lshl_b32 s33, s25, 7"); A("s_add_u32 s32, s32, s33")
    YG = 145; YR = 146
    A("v_lshrrev_b32 v7, 1, v0"); A("v_lshlrev_b32 v%d, 13, v7" % YG); A("v_and_b32 v7, 1, v0"); A("v_lshl_add_u32 v%d, v7, 4, v%d" % (YG, YG))
    A("s_lshl_b32 s34, s24, 10"); A("s_lshl_b32 s35, s26, 6"); A("s_add_u32 s34, s34, s35"); A("s_lshl_b32 s35, s25, 5"); A("s_add_u32 s34, s34, s35")
    A("v_lshlrev_b32 v%d, 4, v0" % YR)
    stamp(A, 2)
    A("s_waitcnt vmcnt(%d)" % NT)
    stamp(A, 3)
    U = 24
    for row in range(2):
        for i in range(8):
            A("v_lshlrev_b32 v%d, 16, v%d" % (U + 16 * row + 2 * i, X + 8 * row + i))
            A("v_and_b32 v%d, s31, v%d" % (U + 16 * row + 2 * i + 1, X + 8 * row + i))
    S = [56, 57]; T = [58, 59]
    for row in range(2):
        b = U + 16 * row
        for i in range(8): A("v_add_f32 v%d, v%d, v%d" % (X + 8 * row + i, b + 2 * i, b + 2 * i + 1))
    for wdt in (4, 2, 1):
        for row in range(2):
            for i in range(wdt):
                d = S[row] if wdt == 1 else X + 8 * row + i
                A("v_add_f32 v%d, v%d, v%d" % (d, X + 8 * row + i, X + 8 * row + i + wdt))
    allreduce_add(A, S, T)
    A("s_mov_b32 s36, 0x%x" % f32(1.0 / 1024))
    for row in range(2): A("v_mul_f32 v%d, s36, v%d" % (S[row], S[row]))
    Q = [60, 61]
    for row in range(2):
        b = U + 16 * row
        for i in range(8):
            A("v_sub_f32 v%d, v%d, v%d" % (X + 8 * row + i, b + 2 * i, S[row]))
            A("v_mul_f32 v%d, v%d, v%d" % (X + 8 * row + i, X + 8 * row + i, X + 8 * row + i))
            A("v_sub_f32 v7, v%d, v%d" % (b + 2 * i + 1, S[row]))
            A("v_fmac_f32 v%d, v7, v7" % (X + 8 * row + i))
    for wdt in (4, 2, 1):
        for row in range(2):
            for i in range(wdt):
                d = Q[row] if wdt == 1 else X + 8 * row + i
                A("v_add_f32 v%d, v%d, v%d" % (d, X + 8 * row + i, X + 8 * row + i + wdt))
    allreduce_add(A, Q, T)
    for row in range(2): A("v_mul_f32 v%d, s36, v%d" % (Q[row], Q[row]))
    for row in range(2): A("v_cvt_pk_bf16_f32 v%d, v%d, v%d" % (T[row], S[row], Q[row]))
    for row in range(2):
        A("v_lshlrev_b32 v%d, 16, v%d" % (S[row], T[row])); A("v_and_b32 v%d, s31, v%d" % (Q[row], T[row]))
    for row in range(2): A("v_add_f32 v%d, 0x%x, v%d" % (Q[row], f32(1e-5), Q[row]))
    A("v_cvt_pk_bf16_f32 v%d, v%d, v%d" % (T[0], Q[0], Q[1]))
    A("v_lshlrev_b32 v%d, 16, v%d" % (Q[0], T[0])); A("v_and_b32 v%d, s31, v%d" % (Q[1], T[0]))
    for row in range(2): A("v_sqrt_f32 v%d, v%d" % (Q[row], Q[row]))
    A("v_cvt_pk_bf16_f32 v%d, v%d, v%d" % (T[0], Q[0], Q[1]))
    A("v_lshlrev_b32 v%d, 16, v%d" % (Q[0], T[0])); A("v_and_b32 v%d, s31, v%d" % (Q[1], T[0]))
    for row in range(2): A("v_rcp_f32 v%d, v%d" % (Q[row], Q[row]))
    for row in range(2):
        b = U + 16 * row
        for i in range(16): A("v_sub_f32 v%d, v%d, v%d" % (b + i, b + i, S[row]))
        for i in range(8): A("v_cvt_pk_bf16_f32 v%d, v%d, v%d" % (X + 8 * row + i, b + 2 * i, b + 2 * i + 1))
        for i in range(8):
            A("v_lshlrev_b32 v%d, 16, v%d" % (b + 2 * i, X + 8 * row + i)); A("v_and_b32 v%d, s31, v%d" % (b + 2 * i + 1, X + 8 * row + i))
        for i in range(16): A("v_mul_f32 v%d, v%d, v%d" % (b + i, b + i, Q[row]))
        for i in range(8): A("v_cvt_pk_bf16_f32 v%d, v%d, v%d" % (X + 8 * row + i, b + 2 * i, b + 2 * i + 1))
        A("ds_write_b128 v%d, v[%d:%d] offset:%d" % (XW, X + 8 * row, X + 8 * row + 3, row * RS))
        A("ds_write_b128 v%d, v[%d:%d] offset:%d" % (XW, X + 8 * row + 4, X + 8 * row + 7, row * RS + 1024))
    A("s_waitcnt lgkmcnt(0)")
    for row in range(2):
        for bh in range(2):
            for hh in range(2):
                r = X + 8 * row + 4 * bh + 2 * hh
                A("ds_read_b64_tr_b16 v[%d:%d], v%d offset:%d" % (r, r + 1, TR, row * RS + hh * 1024 + bh * 32))
    A("s_barrier")
    XO = 148
    for it in range(4):
        A("ds_read_b64 v[%d:%d], v%d offset:%d" % (XO + 4 * it, XO + 4 * it + 1, XR, it * 512))
        A("ds_read_b64 v[%d:%d], v%d offset:%d" % (XO + 4 * it + 2, XO + 4 * it + 3, XR, it * 512 + 32))
    stamp(A, 4)
    A("s_waitcnt vmcnt(0) lgkmcnt(8)")
    stamp(A, 5)
    for row in range(2):
        for bh in range(2):
            for part in range(2):
                d = U + 16 * row + 8 * bh + 4 * part
                A("%s v[%d:%d], v[%d:%d], v[%d:%d], 0" % (MF, d, d + 3, X + 8 * row + 4 * bh, X + 8 * row + 4 * bh + 3, F1 + 4 * part, F1 + 4 * part + 3))
    A("s_waitcnt lgkmcnt(0)")
    for it in range(4):
        A("s_add_u32 s33, s32, 0x%x" % (it * 8 * 16384))
        A("buffer_store_dwordx4 v[%d:%d], v%d, s[12:15], s33 offen" % (XO + 4 * it, XO + 4 * it + 3, XG))
    PP, PQ = 164, 180
    for row in range(2):
        for bh in range(2):
            for r in range(4):
                re = U + 16 * row + 8 * bh + r; im = re + 4
                tc = TW + 8 * bh + r; ts = tc + 4
                A("v_mul_f32 v56, v%d, v%d" % (re, tc)); A("v_mul_f32 v57, v%d, v%d" % (im, tc))
                A("v_fmac_f32 v56, v%d, v%d" % (im, ts)); A("v_fma_f32 v57, -v%d, v%d, v57" % (re, ts))
                o = 8 * row + 4 * bh + r
                A("v_cvt_pk_bf16_f32 v58, v56, v57")
                A("v_and_b32 v%d, v58, v%d" % (X + o, MG)); A("v_and_b32 v%d, v58, v%d" % (PP + o, MP)); A("v_and_b32 v%d, v58, v%d" % (PQ + o, MQ))
    for row in range(2):
        for bh in range(2):
            for dh in range(2):
                for part in range(2):
                    d = U + 16 * row + 8 * dh + 4 * part
                    a = F2 + 16 * dh + 8 * part + 4 * bh; b = X + 8 * row + 4 * bh
                    A("%s v[%d:%d], v[%d:%d], v[%d:%d], %s" % (MF, d, d + 3, a, a + 3, b, b + 3, "0" if bh == 0 else "v[%d:%d]" % (d, d + 3)))
        for bh in range(2):
            for dh in range(2):
                for part in range(2):
                    d = U + 16 * row + 8 * dh + 4 * part
                    a = F2S + 8 * part + 4 * bh; b = (PP if dh == 0 else PQ) + 8 * row + 4 * bh
                    A("%s v[%d:%d], v[%d:%d], v[%d:%d], v[%d:%d]" % (MF, d, d + 3, a, a + 3, b, b + 3, d, d + 3))
    YP = 64
    for row in range(2):
        for dh in range(2):
            for r in range(4):
                re = U + 16 * row + 8 * dh + r
                A("v_cvt_pk_bf16_f32 v%d, v%d, v%d" % (YP + 8 * dh + 2 * r + row, re, re + 4))
    for dh in range(2):
        for r in range(4):
            p = YP + 8 * dh + 2 * r
            A("ds_write_b64 v%d, v[%d:%d] offset:%d" % (YB0 if dh == 0 else YB1, p, p + 1, YT + (r if dh == 0 else 3 - r) * 1024))
    A("s_waitcnt lgkmcnt(0)"); A("s_barrier")
    for it in range(4): A("ds_read_b128 v[%d:%d], v%d offset:%d" % (8 + 4 * it, 11 + 4 * it, YR, YT + it * 4096))
    for it in range(4):
        A("s_add_u32 s35, s34, 0x%x" % (it * 128 * 8192))
        A("s_waitcnt lgkmcnt(%d)" % (3 - it))
        if it == 0:
            A("v_cmp_gt_u32 vcc, 2, v0"); A("v_mov_b32 v7, 0xffff"); A("v_cndmask_b32 v7, -1, v7, vcc")
            for i in range(4): A("v_lshrrev_b32 v%d, 16, v%d" % (24 + i, 8 + i))
            for i in range(4): A("v_and_b32 v%d, v7, v%d" % (8 + i, 8 + i))
        A("buffer_store_dwordx4 v[%d:%d], v%d, s[16:19], s35 offen" % (8 + 4 * it, 11 + 4 * it, YG))
    A("s_add_u32 s35, s34, 0x%x" % (512 * 8192))
    A("s_and_saveexec_b64 s[38:39], vcc"); A("s_cbranch_execz k1_n512")
    A("buffer_store_dwordx4 v[24:27], v%d, s[16:19], s35 offen" % YG)
    A.label("k1_n512")
    A("s_mov_b64 exec, s[38:39]")
    stamp(A, 6)
    if STAMP: A("s_waitcnt vmcnt(0)")
    stamp(A, 7); stamp(A, 8, True)
    stamp_out(A, 0, 9, 6, "k1")
    A("s_endpgm")
    A.label("k1_help")
    gen_k1_help(A)
    A.label("k1_done"); A("s_endpgm")
    A.fix()
    return A.text() + kernel_desc("k1_kernel", 200, 200, 48)

from gen_k2 import gen_k2, K2_LDS
from gen_k3 import gen_k3, K3_LDS

def main():
    build_tables(); build_tables_inv()
    stub = open("cdna_kernels/%s.s.ref" % NAME).read().split("\n")
    head = [l for l in stub if l.startswith(";") and "@launch" not in l and "Override" not in l and "grid=ceil" not in l]
    o = "\n".join(head[:12]) + "\n"
    o += "; @launch kernel=k1_kernel grid=(512,1,1) block=(256,1,1) lds=%d\n" % K1_LDS
    o += "; @launch kernel=k2_kernel grid=(256,1,1) block=(256,1,1) lds=%d\n" % K2_LDS
    o += "; @launch kernel=k3_kernel grid=(256,1,1) block=(256,1,1) lds=%d\n" % K3_LDS
    o += '.amdgcn_target "amdgcn-amd-amdhsa--gfx950"\n'
    import gen as G
    o += gen_k1() + gen_k2(sys.modules[__name__]) + gen_k3(sys.modules[__name__])
    o += '.section .rodata,"a"\n.p2align 8\n.type gf_tab,@object\ngf_tab:\n'
    for b in TAB.blocks:
        for i in range(0, 256, 8): o += ".long " + ",".join("0x%x" % x for x in b[i:i + 8]) + "\n"
    o += ".size gf_tab, %d\n" % (len(TAB.blocks) * 1024)
    path = sys.argv[1] if len(sys.argv) > 1 else "cdna_kernels/%s.s" % NAME
    open(path, "w").write(o)
    print("wrote", path, len(o), "bytes")

if __name__ == "__main__":
    main()
```

```python
import sys, math, struct
import numpy as np
from asmlib import *

NAME = "recurrent_scan__spectral_gfnet__geglu_ffn__prompt"
WS_XN = 0;            SZ_XN = 4 << 20
WS_Y = 4 << 20;       SZ_Y = 513 * 8192
WS_WT = 9 << 20;      SZ_WT = 513 * 8192
WS_Z = 14 << 20;      SZ_Z = 4 << 20
WS_S = 18 << 20;      SZ_S = 4 << 20
WS_H = 22 << 20;      SZ_H = 16 * 112 * 8192
WS_FL = 36 << 20;     SZ_FL = 131072
WS_XC = 37 << 20;     SZ_XC = 8 << 20
KA = dict(x=0, wr=8, wi=16, bx=24, wg=32, wu=40, wd=48, out=56, dbg=64, ws=72)

import os
STAMP = os.environ.get("STAMP", "") != ""
def f32(x): return struct.unpack("<I", struct.pack("<f", x))[0]
def bf16(x):
    u = f32(x); return ((u + 0x7FFF + ((u >> 16) & 1)) >> 16) & 0xFFFF
def pk(lo, hi): return bf16(lo) | (bf16(hi) << 16)

class Table:
    def __init__(self): self.blocks = []; self.names = {}
    def add(self, name, fn):
        self.names[name] = len(self.blocks)
        self.blocks.append([d for l in range(64) for d in fn(l)])
    def off(self, name): return self.names[name] * 1024
TAB = Table()
def cs(num, den):
    a = 2 * math.pi * (num % den) / den
    c, s = math.cos(a), math.sin(a)
    if abs(c) < 1e-12: c = 0.0
    if abs(s) < 1e-12: s = 0.0
    return c, s

def build_tables():
    def slot_a(g, j): return 4 * g + j if j < 4 else 16 + 4 * g + (j - 4)
    def f1(part):
        def fn(l):
            g, c = l >> 4, l & 15
            v = []
            for j in range(8):
                a = slot_a(g, j)
                if part == 0: v.append(cs(a * c, 32)[0])
                else: v.append(-cs(a * c, 32)[1] if c else cs(a * 16, 32)[0])
            return [pk(v[2 * i], v[2 * i + 1]) for i in range(4)]
        return fn
    TAB.add("f1re", f1(0)); TAB.add("f1im", f1(1))
    for bh in range(2):
        for t in range(2):
            TAB.add("tw%d%d" % (bh, t), lambda l, bh=bh, t=t: [f32(cs((16 * bh + 4 * (l >> 4) + r) * (l & 15), 1024)[t]) for r in range(4)])
    for dh in range(2):
        for part in range(2):
            for bh in range(2):
                def fn(l, dh=dh, part=part, bh=bh):
                    g, i = l >> 4, l & 15
                    d = 16 * dh + i; o = []
                    for r in range(4):
                        b = 16 * bh + 4 * g + r
                        c, s = cs(b * d, 32)
                        if part == 0: o.append(pk(c, s))
                        else: o.append(pk(-s, c) if dh == 0 else pk(s, -c))
                    return o
                TAB.add("f2_%d%d%d" % (dh, part, bh), fn)
    for part in range(2):
        for bh in range(2):
            def fn(l, part=part, bh=bh):
                g, i = l >> 4, l & 15
                o = []
                for r in range(4):
                    b = 16 * bh + 4 * g + r
                    c, s = cs(b * i, 32)
                    lo = c if part == 0 else (-s if i else cs(b * 16, 32)[0])
                    u = 15 - i
                    c2, s2 = cs(b * (2 * u + 1), 64)
                    hi = c2 if part == 0 else -s2
                    o.append(pk(lo, hi))
                return o
            TAB.add("f2s_%d%d" % (part, bh), fn)
    for inv in range(2):
        for part in range(2):
            def fn(l, inv=inv, part=part):
                g, n = l >> 4, l & 15
                o = []
                for jj in range(4):
                    c, s = cs((4 * g + jj) * n, 16)
                    if inv: s = -s
                    o.append(pk(c, s) if part == 0 else pk(-s, c))
                return o
            TAB.add("fa_%d%d" % (inv, part), fn)
    for o_ in range(4):
        for ih in range(2):
            def fn(l, o_=o_, ih=ih):
                gk, i = l >> 4, l & 15
                if (i >> 2) != gk: return [0, 0, 0, 0]
                r2 = i & 3; ep = 2 * o_ + (r2 >> 1); part = r2 & 1
                o = []
                for jj in range(4):
                    c, s = cs((4 * ih + jj) * ep, 8)
                    o.append(pk(c, s) if part == 0 else pk(-s, c))
                return o
            TAB.add("fe_%d%d" % (o_, ih), fn)
    for t in range(2):
        TAB.add("t1_%d" % t, lambda l, t=t: [f32(cs((4 * (l >> 4) + r) * (l & 15), 256)[t]) for r in range(4)])
    for e in range(1, 8):
        for t in range(2):
            TAB.add("t2_%d%d" % (e, t), lambda l, e=e, t=t: [f32(cs(e * ((l & 15) + 16 * (4 * (l >> 4) + r)), 2048)[t]) for r in range(4)])

def build_tables_inv():
    def bmap(n, bh): return 8 * (n >> 2) + 4 * bh + (n & 3)
    for bh in range(2):
        for part in range(2):
            for dh in range(2):
                def fn(l, bh=bh, part=part, dh=dh):
                    g, n = l >> 4, l & 15; b = bmap(n, bh); o = []
                    for r in range(4):
                        c, s = cs(b * (16 * dh + 4 * g + r), 32)
                        sg = 1.0 if dh == 0 else -1.0
                        o.append(pk(c, -s * sg) if part == 0 else pk(s, c * sg))
                    return o
                TAB.add("i1_%d%d%d" % (bh, part, dh), fn)
    for bh in range(2):
        for part in range(2):
            def fn(l, bh=bh, part=part):
                g, n = l >> 4, l & 15; b = bmap(n, bh); o = []
                for r in range(4):
                    d = 4 * g + r
                    if part == 0:
                        if d == 0: o.append(pk(1.0, (-1.0) ** b))
                        else:
                            c, s = cs(b * d, 32); o.append(pk(2 * c, -2 * s))
                    else:
                        u = 15 - d
                        c, s = cs(b * (2 * u + 1), 64); o.append(pk(2 * c, -2 * s))
                return o
            TAB.add("i1s_%d%d" % (bh, part), fn)
    for ah in range(2):
        def fn(l, ah=ah):
            g, n = l >> 4, l & 15; a = 16 * ah + n; o = []; sc = 2.0 ** -21
            for r in range(4):
                c_ = 4 * g + r
                if c_ == 0: o.append(pk(sc, sc * (-1.0) ** a))
                else:
                    c, s = cs(a * c_, 32); o.append(pk(2 * c * sc, -2 * s * sc))
            return o
        TAB.add("i2_%d" % ah, fn)
    for bh in range(2):
        for t in range(2):
            TAB.add("itw%d%d" % (bh, t), lambda l, bh=bh, t=t: [f32(cs(bmap(l & 15, bh) * (4 * (l >> 4) + r), 1024)[t]) for r in range(4)])

def srd(A, d, base, off, size):
    if off >= 0:
        A("s_add_u32 s%d, s%d, 0x%x" % (d, base, off)); A("s_addc_u32 s%d, s%d, 0" % (d + 1, base + 1))
    else:
        A("s_sub_u32 s%d, s%d, 0x%x" % (d, base, -off)); A("s_subb_u32 s%d, s%d, 0" % (d + 1, base + 1))
    A("s_and_b32 s%d, s%d, 0xffff" % (d + 1, d + 1))
    A("s_mov_b32 s%d, 0x%x" % (d + 2, size)); A("s_mov_b32 s%d, 0x20000" % (d + 3))

def tab_srd(A, d, tag):
    A("s_getpc_b64 s[%d:%d]" % (d, d + 1))
    A("s_add_u32 s%d, s%d, gf_tab@rel32@lo+4" % (d, d))
    A("s_addc_u32 s%d, s%d, gf_tab@rel32@hi+12" % (d + 1, d + 1))
    A("s_and_b32 s%d, s%d, 0xffff" % (d + 1, d + 1))
    A("s_mov_b32 s%d, 0x%x" % (d + 2, len(TAB.blocks) * 1024)); A("s_mov_b32 s%d, 0x20000" % (d + 3))

def tab_load(A, dst, name, vlane16, srdt, stmp):
    o = TAB.off(name)
    A("s_mov_b32 s%d, 0x%x" % (stmp, o))
    A("buffer_load_dwordx4 %s, v%d, s[%d:%d], s%d offen" % (dst, vlane16, srdt, srdt + 3, stmp))

def kernel_head(A, name):
    A.raw(".text"); A.raw(".globl %s" % name); A.raw(".p2align 8"); A.raw(".type %s,@function" % name)
    A.label(name)

def kernel_desc(name, nv, acc_off, ns=102):
    if STAMP: ns = 102
    return """.section .rodata,"a"
.p2align 6
.amdhsa_kernel %s
  .amdhsa_next_free_vgpr %d
  .amdhsa_next_free_sgpr %d
  .amdhsa_accum_offset %d
  .amdhsa_group_segment_fixed_size 0
  .amdhsa_kernarg_size 80
  .amdhsa_user_sgpr_count 2
  .amdhsa_user_sgpr_kernarg_segment_ptr 1
  .amdhsa_system_sgpr_workgroup_id_x 1
  .amdhsa_float_denorm_mode_32 3
.end_amdhsa_kernel
""" % (name, nv, ns, acc_off)

def allreduce_add(A, regs, tmps):
    for mod in ("quad_perm:[1,0,3,2]", "quad_perm:[2,3,0,1]", "row_half_mirror", "row_mirror"):
        for r in regs:
            A("v_add_f32_dpp v%d, v%d, v%d %s row_mask:0xf bank_mask:0xf" % (r, r, r, mod))
    for sw in ("v_permlane16_swap_b32", "v_permlane32_swap_b32"):
        for r, t in zip(regs, tmps): A("v_mov_b32 v%d, v%d" % (t, r))
        for r, t in zip(regs, tmps): A("%s v%d, v%d" % (sw, r, t))
        for r, t in zip(regs, tmps): A("v_add_f32 v%d, v%d, v%d" % (r, r, t))

MF = "v_mfma_f32_16x16x32_bf16"

import os
STAMP = os.environ.get("STAMP", "") != ""
WS_STAMP = 64 << 20
def stamp(A, i, real=False, force=False):
    if os.environ.get("CLK") and 2 <= i <= 7 and not force: return
    if STAMP: A("%s s[%d:%d]" % ("s_memrealtime" if real else "s_memtime", 72 + 2 * i, 73 + 2 * i))
def stamp_out(A, kidx, n, wsreg, tag):
    if not STAMP: return
    A("s_waitcnt vmcnt(0) lgkmcnt(0)")
    if os.environ.get("STAMP") == "dbg":
        if tag == "cf": return
        A("s_cmp_lg_u32 s2, 40"); A("s_cbranch_scc1 so_skip_%s" % tag)
        A("s_load_dwordx2 s[68:69], s[0:1], %d" % KA["dbg"]); A("s_waitcnt lgkmcnt(0)")
        srd(A, 96, 68, 512 * (2 - kidx), 256)
        A("v_mov_b32 v1, 0")
        sel = [1, n - 1] + ([3, 5, 7] if kidx == 0 else [4, 6, 8])
        for i, k in enumerate(sel):
            if i >= 2: A("s_sub_u32 s70, s%d, s72" % (72 + 2 * k))
            else: A("s_mov_b32 s70, s%d" % (72 + 2 * k))
            A("v_mov_b32 v2, s70")
            A("buffer_store_dword v2, v1, s[96:99], 0 offen offset:%d" % (4 * (5 * kidx + i)))
            A("s_nop 1")
        A.label("so_skip_%s" % tag)
        return
    srd(A, 96, wsreg, WS_STAMP + kidx * 65536, 65536)
    A("v_lshrrev_b32 v1, 6, v0"); A("v_lshlrev_b32 v1, 6, v1"); A("s_lshl_b32 s68, s2, 8"); A("v_add_u32 v1, s68, v1")
    for i in range(n):
        A("v_mov_b32 v2, s%d" % (72 + 2 * i))
        A("buffer_store_dword v2, v1, s[96:99], 0 offen offset:%d" % (4 * i))
        A("s_nop 1")

K1_LDS = 8 * 2080 + 16384
def gen_k1_help(A):
    A("s_load_dwordx4 s[4:7], s[0:1], %d" % KA["wr"])
    A("s_load_dwordx4 s[8:11], s[0:1], %d" % KA["wg"])
    A("s_load_dwordx2 s[12:13], s[0:1], %d" % KA["ws"])
    A("s_sub_u32 s3, s2, 256")
    A("s_and_b32 s36, s3, 3"); A("s_bfe_u32 s37, s3, 0x10002"); A("s_bfe_u32 s38, s3, 0x20003"); A("s_lshr_b32 s39, s3, 5")
    A("s_lshl_b32 s40, s37, 3"); A("s_lshl_b32 s41, s38, 6"); A("s_add_u32 s40, s40, s41"); A("s_lshl_b32 s41, s39, 8"); A("s_add_u32 s40, s40, s41")
    A("s_mul_i32 s40, s40, 1026"); A("s_lshl_b32 s41, s36, 8"); A("s_add_u32 s40, s40, s41")
    A("v_and_b32 v1, 7, v0"); A("v_lshrrev_b32 v2, 3, v0")
    A("v_mul_u32_u24 v3, 1026, v1"); A("v_lshl_add_u32 v3, v2, 3, v3")
    A("v_lshlrev_b32 v4, 15, v2"); A("v_lshl_add_u32 v4, v1, 4, v4")
    A("s_lshl_b32 s42, s36, 20"); A("s_lshl_b32 s41, s39, 10"); A("s_add_u32 s42, s42, s41"); A("s_lshl_b32 s41, s38, 8"); A("s_add_u32 s42, s42, s41")
    A("s_lshl_b32 s41, s37, 7"); A("s_add_u32 s42, s42, s41")
    A("s_mov_b32 s46, 0x05040100"); A("s_mov_b32 s47, 0x07060302")
    A("v_lshlrev_b32 v5, 6, v0")
    A("s_mul_i32 s43, s3, %d" % (1024 * 7168 // 256))
    A("s_waitcnt lgkmcnt(0)")
    WSZ = 2048 * 1026
    srd(A, 16, 4, 0, WSZ); srd(A, 20, 6, 0, WSZ); srd(A, 24, 12, WS_WT, SZ_WT)
    srd(A, 28, 8, 0, 1024 * 7168); srd(A, 32, 10, 0, 1024 * 7168)
    for r in range(4):
        A("s_add_u32 s41, s40, %d" % (16 * r * 1026))
        A("buffer_load_dwordx2 v[%d:%d], v3, s[16:19], s41 offen" % (8 + 4 * r, 9 + 4 * r))
        A("buffer_load_dwordx2 v[%d:%d], v3, s[20:23], s41 offen" % (10 + 4 * r, 11 + 4 * r))
    A("v_mul_u32_u24 v6, 1026, v1")
    for r in range(4):
        A("s_add_u32 s41, s40, %d" % (16 * r * 1026 + 256))
        A("buffer_load_ushort v%d, v6, s[16:19], s41 offen" % (48 + r))
        A("buffer_load_ushort v%d, v6, s[20:23], s41 offen" % (52 + r))
    PFM = os.environ.get("PFM", "x4")
    if PREFETCH and PFM == "x4":
        A("v_lshlrev_b32 v5, 4, v0")
        NPF = int(os.environ.get("NPF", "7"))
        for i in range(NPF):
            A("buffer_load_dwordx4 v[%d:%d], v5, s[28:31], s43 offen" % (64 + 8 * i, 67 + 8 * i))
            A("buffer_load_dwordx4 v[%d:%d], v5, s[32:35], s43 offen" % (68 + 8 * i, 71 + 8 * i))
            A("s_add_u32 s43, s43, 4096")
        A("s_waitcnt vmcnt(%d)" % (2 * NPF))
    elif PREFETCH and PFM == "d128":
        A("v_lshlrev_b32 v5, 7, v0")
        A("v_cmp_gt_u32 vcc, 224, v0"); A("s_and_saveexec_b64 s[44:45], vcc")
        A("buffer_load_dword v62, v5, s[28:31], s43 offen"); A("buffer_load_dword v63, v5, s[32:35], s43 offen")
        A("s_mov_b64 exec, s[44:45]")
        A("s_waitcnt vmcnt(2)")
    else:
        A("s_waitcnt vmcnt(0)")
    for c in range(4):
        for r in range(4):
            A("v_perm_b32 v%d, v%d, v%d, s%d" % (24 + 4 * c + r, 10 + 4 * r + (c >> 1), 8 + 4 * r + (c >> 1), 46 + (c & 1)))
        A("s_add_u32 s41, s42, %d" % (c * 8192))
        A("buffer_store_dwordx4 v[%d:%d], v4, s[24:27], s41 offen%s" % (24 + 4 * c, 27 + 4 * c, WT_FLAGS))
    A("s_cmp_lg_u32 s36, 3"); A("s_cbranch_scc1 k1_done")
    for r in range(4): A("v_lshl_or_b32 v%d, v%d, 16, v%d" % (48 + r, 52 + r, 48 + r))
    A("s_add_u32 s41, s42, %d" % (128 * 8192))
    A("v_cmp_gt_u32 vcc, 8, v0"); A("s_and_saveexec_b64 s[44:45], vcc"); A("s_cbranch_execz k1_done")
    A("buffer_store_dwordx4 v[48:51], v4, s[24:27], s41 offen%s" % WT_FLAGS)

PREFETCH = os.environ.get("NOPF", "") == ""
WT_FLAGS = os.environ.get("WTFL", " sc1")
H_FLAGS = os.environ.get("HFL", "")
def gen_k1():
    A = Asm(); kernel_head(A, "k1_kernel")
    RS = 2080; YT = 8 * RS
    A("s_cmp_ge_u32 s2, 512"); A("s_cbranch_scc1 k1_done")
    A("s_cmp_ge_u32 s2, 256"); A("s_cbranch_scc1 k1_help")
    stamp(A, 0); stamp(A, 1, True)
    A("s_load_dwordx2 s[4:5], s[0:1], %d" % KA["x"])
    A("s_load_dwordx2 s[6:7], s[0:1], %d" % KA["ws"])
    tab_srd(A, 20, "k1")
    A("s_and_b32 s24, s2, 7"); A("s_bfe_u32 s25, s2, 0x10003"); A("s_lshr_b32 s26, s2, 4")
    A("s_lshl_b32 s27, s26, 3"); A("s_add_u32 s27, s27, s24")
    A("v_and_b32 v1, 63, v0"); A("v_lshrrev_b32 v2, 6, v0")
    A("v_lshlrev_b32 v3, 4, v1")
    A("s_lshl_b32 s28, s25, 21"); A("s_lshl_b32 s29, s27, 11"); A("s_add_u32 s28, s28, s29")
    A("v_lshl_add_u32 v4, v2, 19, v3")
    A("s_add_u32 s29, s28, 0x40000")
    A("s_waitcnt lgkmcnt(0)")
    srd(A, 8, 4, 0, 4 << 20); srd(A, 12, 6, WS_XN, SZ_XN); srd(A, 16, 6, WS_Y, SZ_Y)
    X = 8
    A("buffer_load_dwordx4 v[8:11], v4, s[8:11], s28 offen")
    A("buffer_load_dwordx4 v[12:15], v4, s[8:11], s28 offen offset:1024")
    A("buffer_load_dwordx4 v[16:19], v4, s[8:11], s29 offen")
    A("buffer_load_dwordx4 v[20:23], v4, s[8:11], s29 offen offset:1024")
    F1 = 64; TW = 72; F2 = 88; F2S = 120
    names = [("f1re", F1), ("f1im", F1 + 4)]
    for bh in range(2):
        for t in range(2): names.append(("tw%d%d" % (bh, t), TW + 8 * bh + 4 * t))
    for dh in range(2):
        for part in range(2):
            for bh in range(2): names.append(("f2_%d%d%d" % (dh, part, bh), F2 + 16 * dh + 8 * part + 4 * bh))
    for part in range(2):
        for bh in range(2): names.append(("f2s_%d%d" % (part, bh), F2S + 8 * part + 4 * bh))
    for nm, r in names: tab_load(A, vr(r, 4), nm, 3, 20, 30)
    NT = len(names)
    A("s_mov_b32 s31, 0xffff0000")
    A("v_and_b32 v5, 15, v1"); A("v_lshrrev_b32 v6, 4, v1")
    A("v_cmp_eq_u32 vcc, 0, v5")
    A("v_mov_b32 v7, 0xffff")
    MG, MP, MQ = 136, 137, 138
    A("v_cndmask_b32 v%d, -1, 0, vcc" % MG)
    A("v_cndmask_b32 v%d, 0, v7, vcc" % MP)
    A("v_lshlrev_b32 v%d, 16, v%d" % (MQ, MP))
    YB0, YB1 = 139, 140
    A("v_lshl_add_u32 v%d, v6, 7, v5" % YB0); A("v_lshlrev_b32 v%d, 5, v%d" % (YB0, YB0))
    A("v_lshl_add_u32 v%d, v2, 3, v%d" % (YB0, YB0))
    A("v_sub_u32 v7, 32, v5"); A("v_cndmask_b32 v7, v7, 16, vcc")
    A("v_lshlrev_b32 v%d, 7, v6" % YB1); A("v_sub_u32 v%d, 384, v%d" % (YB1, YB1)); A("v_add_u32 v%d, v%d, v7" % (YB1, YB1))
    A("v_lshlrev_b32 v%d, 5, v%d" % (YB1, YB1)); A("v_lshl_add_u32 v%d, v2, 3, v%d" % (YB1, YB1))
    XW = 141
    A("v_mul_u32_u24 v%d, %d, v2" % (XW, 2 * RS)); A("v_add_u32 v%d, v%d, v3" % (XW, XW))
    TR = 142
    A("v_lshrrev_b32 v7, 2, v1"); A("v_lshlrev_b32 v7, 6, v7"); A("v_and_b32 v%d, 3, v1" % TR)
    A("v_lshl_add_u32 v7, v%d, 3, v7" % TR); A("v_mul_u32_u24 v%d, %d, v2" % (TR, 2 * RS)); A("v_add_u32 v%d, v%d, v7" % (TR, TR))
    XR = 143
    A("v_and_b32 v7, 7, v1"); A("v_mul_u32_u24 v%d, %d, v7" % (XR, RS))
    A("v_bfe_u32 v7, v1, 3, 2"); A("v_lshl_add_u32 v%d, v7, 3, v%d" % (XR, XR))
    A("v_lshrrev_b32 v7, 5, v0"); A("v_lshl_add_u32 v%d, v7, 6, v%d" % (XR, XR))
    XG = 144
    A("v_lshrrev_b32 v7, 5, v0"); A("v_lshlrev_b32 v%d, 14, v7" % XG)
    A("v_bfe_u32 v7, v1, 3, 2"); A("v_lshl_add_u32 v%d, v7, 8, v%d" % (XG, XG))
    A("v_and_b32 v7, 7, v1"); A("v_lshl_add_u32 v%d, v7, 4, v%d" % (XG, XG))
    A("s_lshr_b32 s32, s27, 4"); A("s_lshl_b32 s32, s32, 19"); A("s_and_b32 s33, s27, 15"); A("s_lshl_b32 s33, s33, 10")
    A("s_add_u32 s32, s32, s33"); A("s_lshl_b32 s33, s25, 7"); A("s_add_u32 s32, s32, s33")
    YG = 145; YR = 146
    A("v_lshrrev_b32 v7, 1, v0"); A("v_lshlrev_b32 v%d, 13, v7" % YG); A("v_and_b32 v7, 1, v0"); A("v_lshl_add_u32 v%d, v7, 4, v%d" % (YG, YG))
    A("s_lshl_b32 s34, s24, 10"); A("s_lshl_b32 s35, s26, 6"); A("s_add_u32 s34, s34, s35"); A("s_lshl_b32 s35, s25, 5"); A("s_add_u32 s34, s34, s35")
    A("v_lshlrev_b32 v%d, 4, v0" % YR)
    stamp(A, 2)
    A("s_waitcnt vmcnt(%d)" % NT)
    stamp(A, 3)
    U = 24
    for row in range(2):
        for i in range(8):
            A("v_lshlrev_b32 v%d, 16, v%d" % (U + 16 * row + 2 * i, X + 8 * row + i))
            A("v_and_b32 v%d, s31, v%d" % (U + 16 * row + 2 * i + 1, X + 8 * row + i))
    S = [56, 57]; T = [58, 59]
    for row in range(2):
        b = U + 16 * row
        for i in range(8): A("v_add_f32 v%d, v%d, v%d" % (X + 8 * row + i, b + 2 * i, b + 2 * i + 1))
    for wdt in (4, 2, 1):
        for row in range(2):
            for i in range(wdt):
                d = S[row] if wdt == 1 else X + 8 * row + i
                A("v_add_f32 v%d, v%d, v%d" % (d, X + 8 * row + i, X + 8 * row + i + wdt))
    allreduce_add(A, S, T)
    A("s_mov_b32 s36, 0x%x" % f32(1.0 / 1024))
    for row in range(2): A("v_mul_f32 v%d, s36, v%d" % (S[row], S[row]))
    Q = [60, 61]
    for row in range(2):
        b = U + 16 * row
        for i in range(8):
            A("v_sub_f32 v%d, v%d, v%d" % (X + 8 * row + i, b + 2 * i, S[row]))
            A("v_mul_f32 v%d, v%d, v%d" % (X + 8 * row + i, X + 8 * row + i, X + 8 * row + i))
            A("v_sub_f32 v7, v%d, v%d" % (b + 2 * i + 1, S[row]))
            A("v_fmac_f32 v%d, v7, v7" % (X + 8 * row + i))
    for wdt in (4, 2, 1):
        for row in range(2):
            for i in range(wdt):
                d = Q[row] if wdt == 1 else X + 8 * row + i
                A("v_add_f32 v%d, v%d, v%d" % (d, X + 8 * row + i, X + 8 * row + i + wdt))
    allreduce_add(A, Q, T)
    for row in range(2): A("v_mul_f32 v%d, s36, v%d" % (Q[row], Q[row]))
    for row in range(2): A("v_cvt_pk_bf16_f32 v%d, v%d, v%d" % (T[row], S[row], Q[row]))
    for row in range(2):
        A("v_lshlrev_b32 v%d, 16, v%d" % (S[row], T[row])); A("v_and_b32 v%d, s31, v%d" % (Q[row], T[row]))
    for row in range(2): A("v_add_f32 v%d, 0x%x, v%d" % (Q[row], f32(1e-5), Q[row]))
    A("v_cvt_pk_bf16_f32 v%d, v%d, v%d" % (T[0], Q[0], Q[1]))
    A("v_lshlrev_b32 v%d, 16, v%d" % (Q[0], T[0])); A("v_and_b32 v%d, s31, v%d" % (Q[1], T[0]))
    for row in range(2): A("v_sqrt_f32 v%d, v%d" % (Q[row], Q[row]))
    A("v_cvt_pk_bf16_f32 v%d, v%d, v%d" % (T[0], Q[0], Q[1]))
    A("v_lshlrev_b32 v%d, 16, v%d" % (Q[0], T[0])); A("v_and_b32 v%d, s31, v%d" % (Q[1], T[0]))
    for row in range(2): A("v_rcp_f32 v%d, v%d" % (Q[row], Q[row]))
    for row in range(2):
        b = U + 16 * row
        for i in range(16): A("v_sub_f32 v%d, v%d, v%d" % (b + i, b + i, S[row]))
        for i in range(8): A("v_cvt_pk_bf16_f32 v%d, v%d, v%d" % (X + 8 * row + i, b + 2 * i, b + 2 * i + 1))
        for i in range(8):
            A("v_lshlrev_b32 v%d, 16, v%d" % (b + 2 * i, X + 8 * row + i)); A("v_and_b32 v%d, s31, v%d" % (b + 2 * i + 1, X + 8 * row + i))
        for i in range(16): A("v_mul_f32 v%d, v%d, v%d" % (b + i, b + i, Q[row]))
        for i in range(8): A("v_cvt_pk_bf16_f32 v%d, v%d, v%d" % (X + 8 * row + i, b + 2 * i, b + 2 * i + 1))
        A("ds_write_b128 v%d, v[%d:%d] offset:%d" % (XW, X + 8 * row, X + 8 * row + 3, row * RS))
        A("ds_write_b128 v%d, v[%d:%d] offset:%d" % (XW, X + 8 * row + 4, X + 8 * row + 7, row * RS + 1024))
    A("s_waitcnt lgkmcnt(0)")
    for row in range(2):
        for bh in range(2):
            for hh in range(2):
                r = X + 8 * row + 4 * bh + 2 * hh
                A("ds_read_b64_tr_b16 v[%d:%d], v%d offset:%d" % (r, r + 1, TR, row * RS + hh * 1024 + bh * 32))
    A("s_barrier")
    XO = 148
    for it in range(4):
        A("ds_read_b64 v[%d:%d], v%d offset:%d" % (XO + 4 * it, XO + 4 * it + 1, XR, it * 512))
        A("ds_read_b64 v[%d:%d], v%d offset:%d" % (XO + 4 * it + 2, XO + 4 * it + 3, XR, it * 512 + 32))
    stamp(A, 4)
    A("s_waitcnt vmcnt(0) lgkmcnt(8)")
    stamp(A, 5)
    for row in range(2):
        for bh in range(2):
            for part in range(2):
                d = U + 16 * row + 8 * bh + 4 * part
                A("%s v[%d:%d], v[%d:%d], v[%d:%d], 0" % (MF, d, d + 3, X + 8 * row + 4 * bh, X + 8 * row + 4 * bh + 3, F1 + 4 * part, F1 + 4 * part + 3))
    A("s_waitcnt lgkmcnt(0)")
    for it in range(4):
        A("s_add_u32 s33, s32, 0x%x" % (it * 8 * 16384))
        A("buffer_store_dwordx4 v[%d:%d], v%d, s[12:15], s33 offen" % (XO + 4 * it, XO + 4 * it + 3, XG))
    PP, PQ = 164, 180
    for row in range(2):
        for bh in range(2):
            for r in range(4):
                re = U + 16 * row + 8 * bh + r; im = re + 4
                tc = TW + 8 * bh + r; ts = tc + 4
                A("v_mul_f32 v56, v%d, v%d" % (re, tc)); A("v_mul_f32 v57, v%d, v%d" % (im, tc))
                A("v_fmac_f32 v56, v%d, v%d" % (im, ts)); A("v_fma_f32 v57, -v%d, v%d, v57" % (re, ts))
                o = 8 * row + 4 * bh + r
                A("v_cvt_pk_bf16_f32 v58, v56, v57")
                A("v_and_b32 v%d, v58, v%d" % (X + o, MG)); A("v_and_b32 v%d, v58, v%d" % (PP + o, MP)); A("v_and_b32 v%d, v58, v%d" % (PQ + o, MQ))
    for row in range(2):
        for bh in range(2):
            for dh in range(2):
                for part in range(2):
                    d = U + 16 * row + 8 * dh + 4 * part
                    a = F2 + 16 * dh + 8 * part + 4 * bh; b = X + 8 * row + 4 * bh
                    A("%s v[%d:%d], v[%d:%d], v[%d:%d], %s" % (MF, d, d + 3, a, a + 3, b, b + 3, "0" if bh == 0 else "v[%d:%d]" % (d, d + 3)))
        for bh in range(2):
            for dh in range(2):
                for part in range(2):
                    d = U + 16 * row + 8 * dh + 4 * part
                    a = F2S + 8 * part + 4 * bh; b = (PP if dh == 0 else PQ) + 8 * row + 4 * bh
                    A("%s v[%d:%d], v[%d:%d], v[%d:%d], v[%d:%d]" % (MF, d, d + 3, a, a + 3, b, b + 3, d, d + 3))
    YP = 64
    for row in range(2):
        for dh in range(2):
            for r in range(4):
                re = U + 16 * row + 8 * dh + r
                A("v_cvt_pk_bf16_f32 v%d, v%d, v%d" % (YP + 8 * dh + 2 * r + row, re, re + 4))
    for dh in range(2):
        for r in range(4):
            p = YP + 8 * dh + 2 * r
            A("ds_write_b64 v%d, v[%d:%d] offset:%d" % (YB0 if dh == 0 else YB1, p, p + 1, YT + (r if dh == 0 else 3 - r) * 1024))
    A("s_waitcnt lgkmcnt(0)"); A("s_barrier")
    for it in range(4): A("ds_read_b128 v[%d:%d], v%d offset:%d" % (8 + 4 * it, 11 + 4 * it, YR, YT + it * 4096))
    for it in range(4):
        A("s_add_u32 s35, s34, 0x%x" % (it * 128 * 8192))
        A("s_waitcnt lgkmcnt(%d)" % (3 - it))
        if it == 0:
            A("v_cmp_gt_u32 vcc, 2, v0"); A("v_mov_b32 v7, 0xffff"); A("v_cndmask_b32 v7, -1, v7, vcc")
            for i in range(4): A("v_lshrrev_b32 v%d, 16, v%d" % (24 + i, 8 + i))
            for i in range(4): A("v_and_b32 v%d, v7, v%d" % (8 + i, 8 + i))
        A("buffer_store_dwordx4 v[%d:%d], v%d, s[16:19], s35 offen" % (8 + 4 * it, 11 + 4 * it, YG))
    A("s_add_u32 s35, s34, 0x%x" % (512 * 8192))
    A("s_and_saveexec_b64 s[38:39], vcc"); A("s_cbranch_execz k1_n512")
    A("buffer_store_dwordx4 v[24:27], v%d, s[16:19], s35 offen" % YG)
    A.label("k1_n512")
    A("s_mov_b64 exec, s[38:39]")
    stamp(A, 6)
    if STAMP: A("s_waitcnt vmcnt(0)")
    stamp(A, 7); stamp(A, 8, True)
    stamp_out(A, 0, 9, 6, "k1")
    A("s_endpgm")
    A.label("k1_help")
    gen_k1_help(A)
    A.label("k1_done"); A("s_endpgm")
    A.fix()
    return A.text() + kernel_desc("k1_kernel", 200, 200, 48)

from gen_k2 import gen_k2, K2_LDS
from gen_k3 import gen_k3, K3_LDS

def main():
    build_tables(); build_tables_inv()
    stub = open("cdna_kernels/%s.s.ref" % NAME).read().split("\n")
    head = [l for l in stub if l.startswith(";") and "@launch" not in l and "Override" not in l and "grid=ceil" not in l]
    o = "\n".join(head[:12]) + "\n"
    o += "; @launch kernel=k1_kernel grid=(512,1,1) block=(256,1,1) lds=%d\n" % K1_LDS
    o += "; @launch kernel=k2_kernel grid=(256,1,1) block=(256,1,1) lds=%d\n" % K2_LDS
    o += "; @launch kernel=k3_kernel grid=(256,1,1) block=(256,1,1) lds=%d\n" % K3_LDS
    o += '.amdgcn_target "amdgcn-amd-amdhsa--gfx950"\n'
    import gen as G
    o += gen_k1() + gen_k2(sys.modules[__name__]) + gen_k3(sys.modules[__name__])
    o += '.section .rodata,"a"\n.p2align 8\n.type gf_tab,@object\ngf_tab:\n'
    for b in TAB.blocks:
        for i in range(0, 256, 8): o += ".long " + ",".join("0x%x" % x for x in b[i:i + 8]) + "\n"
    o += ".size gf_tab, %d\n" % (len(TAB.blocks) * 1024)
    path = sys.argv[1] if len(sys.argv) > 1 else "cdna_kernels/%s.s" % NAME
    open(path, "w").write(o)
    print("wrote", path, len(o), "bytes")

if __name__ == "__main__":
    main()
```

```python
from asmlib import *
import math, os
import gen as G
from gen import stamp, f32
ENV = os.environ.get
MF = "v_mfma_f32_16x16x32_bf16"
MF32 = "v_mfma_f32_32x32x16_bf16"
def q(f, r): return "%s[%d:%d]" % (f, r, r + 3)
def p2(r): return "v[%d:%d]" % (r, r + 1)

ZL = 128 * 1024
I1, I1S, I2, ITWA = 160, 192, 208, 216
DV = [5, 6, 14, 15]
def g2_setup(A, M, DV=DV, t0=7, t1=13):
    W = M.WAVE
    A("s_bfe_u32 s44, s2, 0x10003"); A("s_bfe_u32 s42, s2, 0x20001"); A("s_lshl_b32 s42, s42, 2"); A("s_bfe_u32 s43, s2, 0x20004"); A("s_add_u32 s42, s42, s43")
    A("s_and_b32 s43, s2, 1"); A("s_lshl_b32 s43, s43, 2"); A("s_lshr_b32 s45, s2, 6"); A("s_add_u32 s43, s43, s45")
    d0, d1, d2, d3 = DV
    A("v_lshrrev_b32 v%d, 4, v1" % t0); A("v_lshl_add_u32 v%d, v2, 6, v%d" % (t1, t0)); A("v_lshlrev_b32 v%d, 11, v%d" % (t1, t1))
    A("v_lshlrev_b32 v%d, 2, v%d" % (t0, t0)); A("v_and_b32 v%d, 15, v1" % d0); A("v_xor_b32 v%d, v%d, v%d" % (t0, t0, d0))
    A("v_lshl_add_u32 v%d, v%d, 4, v%d" % (d0, t0, t1)); A("v_xor_b32 v%d, 32, v%d" % (d1, d0))
    A("v_add_u32 v%d, 0x%x, v%d" % (d2, 2 * 7168, d0)); A("v_add_u32 v%d, 0x%x, v%d" % (d3, 3 * 7168, d1)); A("v_add_u32 v%d, 0x%x, v%d" % (d1, 7168, d1))
    M.srd(A, 48, M.PWD, 0, 3584 * 2048)
    A("s_mul_i32 s45, s44, %d" % (1792 * 2048)); A("s_add_u32 s50, s45, %d" % (1792 * 2048))
    A("s_lshl_b32 s61, s43, 8"); A("s_add_u32 s61, s61, s45"); A("s_add_u32 s62, s61, %d" % (1792 * 2048))
    A("s_lshl_b32 s64, s%d, 13" % W)
def g2_dma(par, p, DV=DV):
    o = []
    if p % 4 == 0: o.append("s_add_u32 m0, s64, 0x%x" % (par * 32768 + (p >> 2) * 4096))
    o.append("buffer_load_dwordx4 v%d, s[48:51], s61 offen%s lds" % (DV[p & 3], " offset:%d" % ((p & 3) * 1024) if p & 3 else ""))
    if p == 3: o.append("s_add_u32 s61, s61, 0x8000")
    if p == 7:
        o.append("s_add_u32 s61, s61, 0x%x" % (256 * 2048 - 0x8000))
        o += ["s_cmp_ge_u32 s61, s62", "s_cselect_b32 s65, %d, 0" % ((1792 - 32) * 2048), "s_cselect_b32 s62, -1, s62", "s_sub_u32 s61, s61, s65"]
        if par == 1: o.append("s_xor_b32 s64, s64, 0x10000")
    return o
def g2_dma_of(s):
    u = (s + 2) & 7; par = u >> 2; p = 2 * (u & 3)
    return g2_dma(par, p), g2_dma(par, p + 1)
def z_fetch(A, M, t0=7, t1=13):
    W = M.WAVE
    M.srd(A, 56, M.PWS, M.WS_Z, M.SZ_Z)
    A("v_lshrrev_b32 v%d, 4, v1" % t0); A("v_and_b32 v%d, 7, v1" % t1); A("v_xor_b32 v%d, v%d, v%d" % (t0, t0, t1)); A("v_lshlrev_b32 v%d, 4, v%d" % (t0, t0))
    A("v_lshrrev_b32 v%d, 3, v1" % t1); A("v_lshl_add_u32 v%d, v%d, 8, v%d" % (t0, t1, t0)); A("v_xor_b32 v%d, 64, v%d" % (t1, t0))
    A("s_lshr_b32 s40, s2, 1"); A("s_lshl_b32 s40, s40, 15"); A("s_and_b32 s41, s2, 1"); A("s_lshl_b32 s41, s41, 7"); A("s_add_u32 s40, s40, s41")
    A("s_lshl_b32 s41, s%d, 13" % W); A("s_add_u32 s40, s40, s41")
    A("s_lshl_b32 s41, s%d, 12" % W); A("s_add_u32 m0, s41, 0x%x" % ZL)
    for p in range(4):
        A("buffer_load_dwordx4 v%d, s[56:59], s40 offen%s sc1 lds" % (t0 if p % 2 == 0 else t1, " offset:%d" % (p * 1024) if p else ""))
        A("s_add_u32 s40, s40, 1024")
def i_tabs(A, M):
    for bh in range(2):
        for part in range(2):
            for dh in range(2): G.tab_load(A, ar(I1 + 16 * bh + 8 * part + 4 * dh, 4), "i1_%d%d%d" % (bh, part, dh), 3, M.STAB, 71)
            G.tab_load(A, ar(I1S + 8 * bh + 4 * part, 4), "i1s_%d%d" % (bh, part), 3, M.STAB, 71)
            G.tab_load(A, ar(ITWA + 8 * bh + 4 * part, 4), "itw%d%d" % (bh, part), 3, M.STAB, 71)
        G.tab_load(A, ar(I2 + 4 * bh, 4), "i2_%d" % bh, 3, M.STAB, 71)
def g2_early(A):
    for s in range(-10, 0):
        d0, d1 = g2_dma_of(s)
        for y in d0 + d1: A(y)
HB = [192, 196, 208, 212, 224, 228, 240, 244]

def gemm1(A, M):
    W = M.WAVE; VWD = M.VWD
    A("v_mov_b32 v4, v%d" % VWD)
    A("s_lshl_b32 s48, s47, 13") if False else None
    A("s_lshl_b32 s40, s47, 13"); A("v_add_u32 v5, s40, v3"); A("v_add_u32 v6, 0x10000, v5")
    A("v_bfe_u32 v7, v1, 4, 1"); A("v_lshlrev_b32 v16, 12, v7")
    A("v_bfe_u32 v7, v1, 5, 1"); A("v_lshl_add_u32 v16, v7, 10, v16")
    A("v_bfe_u32 v7, v1, 2, 2"); A("v_lshl_add_u32 v16, v7, 8, v16")
    A("v_and_b32 v7, 3, v1"); A("v_lshl_add_u32 v16, v7, 3, v16"); A("v_add_u32 v16, 0x4000, v16")
    A("v_bfe_u32 v7, v1, 2, 3")
    A("s_lshl_b32 s40, s46, 2")
    A("v_lshlrev_b32 v28, 7, v1"); A("v_mov_b32 v29, 0")
    A("s_lshl_b32 s44, s42, 12")
    M.poll(A, "f1", 44, 28, 31, 32)
    stamp(A, 5)
    for b in range(3): M.flat(A, M.dmaX(b))
    M.late_stores(A, "g")
    for t in range(4):
        A("s_add_u32 s41, s40, %d" % t)
        A("v_xor_b32 v17, s41, v7"); A("v_lshl_add_u32 v%d, v17, 5, v16" % (8 + t)); A("v_add_u32 v%d, 0x10000, v%d" % (12 + t, 8 + t))
    def dma(b): return M.dmaX(b) + M.dmaW(b, 4)
    def acc(it, jt):
        return ("v", 32 + (jt * 8 + it) * 4) if jt < 7 else ("a", 128 + it * 4)
    def reads(buf, st):
        base = 64 * st; hi = buf >> 1; off = (buf & 1) * 32768
        o = []; la = []; lb = []
        for it in range(8):
            mat, t = it >> 2, it & 3
            for h in range(2):
                r = base + 4 * it + 2 * h
                la.append("ds_read_b64_tr_b16 a[%d:%d], v%d offset:%d" % (r, r + 1, (12 if hi else 8) + t, off + h * 8192 + mat * 2048))
        for jt in range(8):
            r = base + 32 + 4 * jt
            lb.append("ds_read_b128 a[%d:%d], v%d offset:%d" % (r, r + 3, 6 if hi else 5, off + jt * 1024))
        for i in range(8): o += [lb[i], la[2 * i], la[2 * i + 1]]
        return o
    def mfmas(st, first=False):
        base = 64 * st; o = []
        for jt in range(8):
            for it in range(8):
                f, d = acc(it, jt); dd = q(f, d)
                o.append("%s %s, %s, %s, %s" % (MF, dd, q("a", base + 4 * it), q("a", base + 32 + 4 * jt), "0" if first else dd))
        return o
    def step(i, dmas, do_read, vm, first=False, rd0=1, mid=None, extra=None):
        m = mfmas(i & 1, first)
        s1 = interleave(m, reads((i + 1) & 3, (i + 1) & 1), rd0, 56 if rd0 > 1 else 52) if do_read else [[] for _ in m]
        dl = []
        for b_ in dmas: dl += dma(b_)
        if extra: dl += extra
        s2 = interleave(m, dl, 0, 64) if dl else [[] for _ in m]
        for k, x in enumerate(m):
            A(x)
            if mid is not None and k == rd0 - 1:
                nv = sum(1 for kk in range(k + 1) for y in s2[kk] if y.startswith("buffer"))
                for y in s2[k]: A(y)
                A("s_waitcnt vmcnt(%d)" % (mid + nv)); A("s_barrier")
                continue
            for y in s2[k] + s1[k]: A(y)
        if vm is not None:
            A("s_waitcnt vmcnt(%d) lgkmcnt(0)" % vm); A("s_barrier")
    A("s_waitcnt vmcnt(16)"); A("s_barrier")
    for x in reads(0, 0): A(x)
    A("s_waitcnt lgkmcnt(0)")
    stamp(A, 6)
    step(0, [3, 0], True, 24, first=True, rd0=8, mid=12)
    step(1, [1], True, 16)
    M.set_flag_w0(A, "f2g", 63, 29, 30)
    for i in range(2, 4): step(i, [i & 3], True, 16)
    A("s_mov_b32 s45, 6")
    A.raw(".p2align 6")
    A.label("g1_loop")
    for i in range(4): step(i, [i], True, 16)
    A("s_cmp_lg_u32 s45, 3"); A("s_cbranch_scc1 g1_npf")
    M.srd(A, 36, M.PWD, 0, 3584 * 2048)
    A("s_sub_u32 s40, s2, 32"); A("s_lshl_b32 s40, s40, 15"); A("v_lshlrev_b32 v17, 7, v0")
    A("buffer_load_dword v18, v17, s[36:39], s40 offen")
    A.label("g1_npf")
    A("s_sub_u32 s45, s45, 1"); A("s_cmp_lg_u32 s45, 0"); A("s_cbranch_scc1 g1_loop")
    M.srd(A, 36, M.PWS, M.WS_H, M.SZ_H)
    A("s_lshl_b32 s52, s42, 1"); A("s_add_u32 s52, s52, s47"); A("s_lshl_b32 s54, s52, 13"); A("s_mul_i32 s52, s52, 112")
    A("s_lshl_b32 s53, s43, 1"); A("s_add_u32 s53, s53, s46"); A("s_add_u32 s52, s52, s53")
    A("s_cmp_ge_u32 s53, 28"); A("s_cselect_b32 s55, 28, 0"); A("s_cselect_b32 s40, 4, 0"); A("s_add_u32 s52, s52, s55"); A("s_lshl_b32 s52, s52, 13")
    A("s_add_u32 s53, s53, s40"); A("s_lshr_b32 s55, s53, 1"); A("s_lshl_b32 s53, s53, 7"); A("s_add_u32 s54, s54, s53"); A("s_add_u32 s54, s54, %d" % M.FH)
    A("s_lshl_b32 s53, s42, 5"); A("s_add_u32 s55, s55, s53"); A("s_lshl_b32 s55, s55, 7"); A("s_add_u32 s55, s55, %d" % M.FB)
    A("s_mov_b32 s46, %d" % M.F3)
    DT = [24, 25, 26, 27]
    def grp(B):
        o = [[]]
        for k, t in B.items:
            o[-1].append(t)
            if t.startswith("buffer"): o.append([])
        return [x for x in o if x]
    nv = lambda l: sum(1 for x in l for y in x if y.startswith("buffer"))
    B = Asm(); g2_setup(B, M, DT, 22, 23); su = [[t] for k, t in B.items]
    B = Asm(); i_tabs(B, M); tb = grp(B)
    fl = [["s_bfm_b64 exec, 32, 0", "buffer_load_dword v20, v28, s[%d:%d], s46 offen sc1" % (M.SFL, M.SFL + 3), "s_mov_b64 exec, -1"]]
    e0 = fl + su + [g2_dma(0, p, DT) for p in range(8)]
    e1 = [g2_dma(1, p, DT) for p in range(8)] + tb[:4]
    e2 = [g2_dma(0, p, DT) for p in range(4)] + tb[4:12]
    step(0, [], True, 8 + nv(e0), extra=e0); step(1, [], True, nv(e0) + nv(e1) - 1, extra=e1); step(2, [], True, 63, extra=e2)
    A("v_cmp_ne_u32 vcc, s%d, v20" % M.TOK); A("s_nop 1"); A("s_mov_b32 vcc_hi, 0"); A("s_nop 3")
    A("s_cbranch_vccz pd_f3g")
    M.poll(A, "f3g", 46, 28, 20, 32, sleep=8)
    B = Asm(); z_fetch(B, M)
    e3 = [["v_mov_b32 v%d, v%d" % (DV[i], DT[i])] for i in range(4)] + [[t] for k, t in B.items] + tb[12:]
    step(3, [], False, None, extra=e3)
    stamp(A, 7)
    c0 = math.sqrt(2 / math.pi)
    c1 = -2 * c0 * math.log2(math.e); c2 = c1 * 0.044715
    A("s_mov_b32 s56, 0x%x" % f32(c2)); A("s_mov_b32 s57, s56")
    A("v_mov_b32 v8, 0x%x" % f32(c1)); A("v_mov_b32 v9, v8"); A("v_mov_b32 v10, 1.0"); A("v_mov_b32 v11, 1.0"); A("v_mov_b32 v12, 0")
    n = 0
    for p in range(2):
        for jt in range(8):
            b0 = 32 + (jt % 7) * 32
            g = b0 + 8 * p; u = b0 + 16 + 8 * p
            if jt == 7:
                for i in range(8):
                    A("v_accvgpr_read_b32 v%d, a%d" % (g + i, 128 + 8 * p + i)); A("v_accvgpr_read_b32 v%d, a%d" % (u + i, 144 + 8 * p + i))
            T = 16 + 8 * (n % 2); n += 1
            H4 = range(0, 8, 2)
            for e in H4: A("v_pk_mul_f32 %s, %s, %s" % (p2(T + e), p2(g + e), p2(g + e)))
            for e in H4: A("v_pk_fma_f32 %s, %s, s[56:57], v[8:9]" % (p2(T + e), p2(T + e)))
            for e in H4: A("v_pk_mul_f32 %s, %s, %s" % (p2(T + e), p2(T + e), p2(g + e)))
            for e in range(8): A("v_exp_f32 v%d, v%d" % (T + e, T + e))
            for e in H4: A("v_pk_mul_f32 %s, %s, %s" % (p2(u + e), p2(u + e), p2(g + e)))
            for e in H4: A("v_pk_add_f32 %s, %s, v[10:11]" % (p2(T + e), p2(T + e)))
            for e in range(8): A("v_rcp_f32 v%d, v%d" % (T + e, T + e))
            if p == 0: A("s_add_u32 s53, s52, 0x%x" % ((jt >> 2) * 4096))
            for e in H4: A("v_pk_mul_f32 %s, %s, %s" % (p2(u + e), p2(u + e), p2(T + e)))
            dst = g if p == 0 else HB[jt]
            for e in range(4): A("v_cvt_pk_bf16_f32 v%d, v%d, v%d" % (dst + e, u + 2 * e, u + 2 * e + 1))
            if p == 0: A("buffer_store_dwordx4 %s, v3, s[36:39], s53 offen offset:%d sc1" % (q("v", g), (jt & 3) * 1024))
            if p == 1 and jt == int(ENV("FLAGA", "5")):
                A("s_waitcnt vmcnt(0)")
                M.set_flag(A, 54, 12, 13)
    A("s_add_u32 s52, s52, %d" % (28 * 8192)); A("s_add_u32 s53, s52, 4096")
    A("s_mov_b32 s58, 1")

def gemm2(A, M):
    W = M.WAVE
    stamp(A, 8)
    A("s_barrier")
    ZD, D1, DS, PK, ITW, TT = 32, 48, 80, 112, 128, 144
    A("v_lshrrev_b32 v20, 1, v1"); A("v_and_b32 v20, 7, v20"); A("v_lshlrev_b32 v21, 1, v2"); A("v_xor_b32 v20, v20, v21"); A("v_lshlrev_b32 v20, 4, v20")
    A("v_lshl_add_u32 v20, v1, 7, v20"); A("v_add_u32 v20, 0x%x, v20" % ZL); A("v_xor_b32 v21, 16, v20")
    for k in range(2):
        for dh in range(2): A("ds_read_b128 %s, v%d offset:%d" % (q("v", ZD + 8 * k + 4 * dh), 20 + k, dh * 8192))
    for i in range(16): A("v_accvgpr_read_b32 v%d, a%d" % (ITW + i, ITWA + i))
    A("v_and_b32 v22, 15, v1"); A("v_lshlrev_b32 v22, 6, v22"); A("v_lshrrev_b32 v23, 4, v1"); A("v_lshl_add_u32 v22, v23, 4, v22")
    A("s_and_b32 s40, s2, 1"); A("s_lshl_b32 s40, s40, 21"); A("s_lshl_b32 s41, s%d, 19" % W); A("s_add_u32 s40, s40, s41")
    A("s_lshr_b32 s41, s2, 1"); A("s_lshl_b32 s41, s41, 11"); A("s_add_u32 s40, s40, s41"); A("s_add_u32 s41, s40, 0x40000")
    A("s_mov_b32 s69, s58")
    M.srd(A, 56, M.PWS, M.WS_S, M.SZ_S)
    A("s_mov_b64 s[46:47], 0xffff")
    A("s_waitcnt lgkmcnt(0)")
    def mm(d, a, b, c=None):
        A("%s %s, %s, %s, %s" % (MF, q("v", d), a, b, "0" if c is None else q("v", c)))
    for k in range(2):
        for dh in range(2):
            for bh in range(2):
                for part in range(2):
                    d = D1 + 16 * k + 8 * bh + 4 * part
                    mm(d, q("v", ZD + 8 * k + 4 * dh), q("a", I1 + 16 * bh + 8 * part + 4 * dh), None if dh == 0 else d)
        for bh in range(2):
            for part in range(2):
                mm(DS + 16 * k + 8 * bh + 4 * part, q("v", ZD + 8 * k + 4 * part), q("a", I1S + 8 * bh + 4 * part))
    neg = " neg_lo:[1,0,0] neg_hi:[1,0,0]"
    for k in range(2):
        for x in range(4):
            A("v_cndmask_b32 v%d, v%d, v%d, s[46:47]" % (D1 + 16 * k + 4 * x, D1 + 16 * k + 4 * x, DS + 16 * k + 4 * x))
        for bh in range(2):
            re = D1 + 16 * k + 8 * bh; im = re + 4; tc = ITW + 8 * bh; ts = tc + 4; t = TT + 8 * bh
            for h in (0, 2): A("v_pk_mul_f32 %s, %s, %s" % (p2(t + h), p2(re + h), p2(tc + h)))
            for h in (0, 2): A("v_pk_mul_f32 %s, %s, %s" % (p2(t + 4 + h), p2(im + h), p2(tc + h)))
            for h in (0, 2): A("v_pk_fma_f32 %s, %s, %s, %s%s" % (p2(t + h), p2(im + h), p2(ts + h), p2(t + h), neg))
            for h in (0, 2): A("v_pk_fma_f32 %s, %s, %s, %s" % (p2(t + 4 + h), p2(re + h), p2(ts + h), p2(t + 4 + h)))
            for r in range(4): A("v_cvt_pk_bf16_f32 v%d, v%d, v%d" % (PK + 8 * k + 4 * bh + r, t + r, t + 4 + r))
    for k in range(2):
        for ah in range(2):
            for bh in range(2): mm(D1 + 16 * k + 8 * ah + 4 * bh, q("v", PK + 8 * k + 4 * bh), q("a", I2 + 4 * ah))
    ACC = 32; AF, HR = 0, 128
    def hreg(s, kk):
        i = 8 * (s & 7) + 4 * kk
        return 128 + i if i < 32 else 224 + i - 32
    A("v_and_b32 v24, 15, v1"); A("v_lshlrev_b32 v4, 4, v24"); A("v_lshl_add_u32 v4, v2, 11, v4")
    A("v_bfe_u32 v25, v1, 4, 1"); A("v_lshl_add_u32 v4, v25, 10, v4"); A("v_lshrrev_b32 v26, 5, v1"); A("v_lshl_add_u32 v4, v26, 8, v4")
    A("v_bfe_u32 v27, v1, 2, 2")
    A("v_lshl_add_u32 v28, v26, 2, v27"); A("v_lshlrev_b32 v28, 8, v28"); A("v_and_b32 v29, 3, v1"); A("v_lshl_add_u32 v28, v29, 3, v28")
    A("v_lshl_or_b32 v29, v27, 1, v26"); A("v_xor_b32 v29, v29, v25"); A("s_lshl_b32 s45, s44, 2"); A("v_xor_b32 v29, s45, v29")
    for t in range(4):
        A("v_xor_b32 v30, %d, v29" % (2 * t)); A("v_lshl_add_u32 v%d, v30, 5, v28" % (8 + t))
    A("v_mov_b32 v12, 0"); A("v_lshlrev_b32 v13, 7, v1")
    SO = 160
    for k in range(2):
        for x in range(8): A("v_cvt_pk_bf16_f32 v%d, v%d, v%d" % (SO + 8 * k + x, D1 + 16 * k + 2 * x, D1 + 16 * k + 2 * x + 1))
    A("s_lshl_b32 s60, s42, 1"); A("s_add_u32 s60, s60, s44"); A("s_lshl_b32 s46, s60, 12"); A("s_mul_i32 s60, s60, %d" % (56 * 8192))
    A("s_add_u32 s46, s46, %d" % M.FH)
    A("s_and_b32 s47, s42, -2"); A("s_add_u32 s47, s47, s44"); A("s_lshl_b32 s47, s47, 11"); A("s_add_u32 s47, s47, %d" % M.FB)
    M.poll(A, "fa", 46, 13, 31, 28, sleep=4)
    stamp(A, 9)
    M.srd(A, 32, M.PWS, M.WS_H, M.SZ_H); A("s_add_u32 s34, s60, %d" % (56 * 8192))
    def hload(s, kk):
        o = ["buffer_load_dwordx4 %s, v4, s[32:35], s60 offen offset:%d%s" % (q("a", hreg(s, kk)), kk * 512, M.BULK)]
        if kk: o.append("s_add_u32 s60, s60, 0x2000")
        return o
    def reads(s):
        o = []
        for kk in range(2):
            for t in range(4):
                for h in range(2):
                    r = AF + 32 * (s & 3) + 16 * kk + 4 * t + 2 * h
                    o.append("ds_read_b64_tr_b16 a[%d:%d], v%d offset:%d" % (r, r + 1, 8 + t, (s & 7) * 8192 + h * 4096 + kk * 2048))
        return o
    for s in range(8):
        for y in hload(s, 0) + hload(s, 1): A(y)
    for x in reads(0) + reads(1): A(x)
    A("s_mov_b32 s10, s52"); A("s_mov_b32 s11, s53"); A("s_mov_b32 s6, s40"); A("s_mov_b32 s7, s41")
    A("s_getreg_b32 s63, hwreg(HW_REG_XCC_ID, 0, 4)"); A("s_lshl_b32 s63, s63, 1"); A("s_add_u32 s63, s63, 2"); A("s_add_u32 s63, s63, s%d" % M.TOK)
    A("s_lshl_b32 s52, s2, 9"); A("s_lshl_b32 s53, s%d, 7" % W); A("s_add_u32 s52, s52, s53"); A("s_xor_b32 s53, s52, 0x1000")
    A("s_add_u32 s52, s52, %d" % M.FX); A("s_add_u32 s53, s53, %d" % M.FX)
    A("v_mov_b32 v23, s63"); A("s_mov_b64 exec, 1")
    A("buffer_store_dword v23, v12, s[%d:%d], s52 offen sc1" % (M.SFL, M.SFL + 3)); A("s_mov_b64 exec, -1")
    A("s_lshl_b32 s54, s2, 7"); A("s_add_u32 s54, s54, %d" % M.FS)
    A("s_lshl_b32 s46, s42, 11"); A("s_lshl_b32 s45, s%d, 9" % W); A("s_add_u32 s46, s46, s45"); A("s_add_u32 s46, s46, %d" % M.FS)
    M.srd(A, 12, M.PX, 0, 4 << 20)
    A("v_lshrrev_b32 v20, 3, v1"); A("v_lshlrev_b32 v20, 18, v20"); A("v_lshl_add_u32 v20, v2, 12, v20")
    A("v_and_b32 v21, 7, v1"); A("v_lshl_add_u32 v20, v21, 4, v20")
    A("s_lshl_b32 s40, s42, 14"); A("s_lshl_b32 s41, s43, 8"); A("s_add_u32 s40, s40, s41"); A("s_lshl_b32 s41, s44, 7"); A("s_add_u32 s40, s40, s41"); A("s_add_u32 s41, s40, 0x200000")
    XR, SR = 96, 112
    for i in range(4):
        A("buffer_load_dwordx4 %s, v20, s[12:15], s%d offen offset:%d" % (q("v", XR + 4 * i), 40 + (i & 1), (i >> 1) * 2048))
    for i in range(64): A("v_mov_b32 v%d, 0" % (ACC + i))
    A("v_and_b32 v21, 31, v1"); A("v_mul_u32_u24 v16, 144, v21"); A("v_lshrrev_b32 v21, 5, v1"); A("v_lshl_add_u32 v16, v21, 3, v16"); A("v_lshl_add_u32 v16, v2, 13, v16")
    A("v_lshrrev_b32 v21, 3, v1"); A("v_mul_u32_u24 v17, 144, v21"); A("v_and_b32 v21, 7, v1"); A("v_lshl_add_u32 v17, v21, 4, v17"); A("v_lshl_add_u32 v17, v2, 13, v17")
    FL = "s[%d:%d]" % (M.SFL, M.SFL + 3)
    def quick(tag, vd, nl, soff):
        A("v_cmp_ne_u32 vcc, s%d, v%d" % (M.TOK, vd)); A("s_nop 1"); A("s_bfm_b64 s[66:67], %d, 0" % nl); A("s_and_b64 vcc, vcc, s[66:67]"); A("s_nop 3")
        A("s_cbranch_vccz pd_%s" % tag)
        M.poll(A, tag, soff, 13, vd, nl)
    def kstep(s):
        if (s & 3) == 2:
            A("s_waitcnt vmcnt(17) lgkmcnt(15)"); A("s_barrier")
        else: A("s_waitcnt vmcnt(28) lgkmcnt(15)")
        if s in (2, 6):
            A("s_cmp_lg_u32 s45, 6"); A("s_cbranch_scc1 g2_np%d" % s)
            A("s_cmp_lg_u32 s%d, 0" % W); A("s_cbranch_scc1 g2_np%d" % s)
            if s == 2:
                A("s_cmp_eq_u32 s69, 0"); A("s_cbranch_scc1 g2_np%d" % s)
            M.set_flag(A, 55 if s == 2 else 54, 12, 31)
            A.label("g2_np%d" % s)
        if s == 0:
            A("s_cmp_lg_u32 s45, 1"); A("s_cbranch_scc1 g2_ns")
            quick("fs", 19, 4, 46)
            for i in range(4):
                A("buffer_load_dwordx4 %s, v20, s[56:59], s%d offen offset:%d sc1" % (q("v", SR + 4 * i), 40 + (i & 1), (i >> 1) * 2048))
            A.label("g2_ns")
            A("s_cmp_lg_u32 s45, 2"); A("s_cbranch_scc1 g2_n2")
            A("s_bfm_b64 exec, 4, 0"); A("buffer_load_dword v19, v13, %s, s46 offen sc1" % FL)
            A("s_mov_b64 exec, 1"); A("buffer_load_dword v24, v12, %s, s53 offen sc1" % FL); A("s_mov_b64 exec, -1")
            A.label("g2_n2")
        if s == 5:
            A("s_cmp_lg_u32 s45, 6"); A("s_cbranch_scc1 g2_n6")
            A("s_bfm_b64 exec, 14, 0"); A("buffer_load_dword v18, v13, %s, s47 offen sc1" % FL); A("s_mov_b64 exec, -1")
            A.label("g2_n6")
        if s == 4:
            A("s_cmp_lg_u32 s45, 5"); A("s_cbranch_scc1 pd_fb")
            quick("fb", 18, 14, 47)
        rd = reads(s + 2); d0, d1 = g2_dma_of(s); k = 0
        for kk in range(2):
            for t in range(4):
                d = ACC + 16 * t
                A("%s v[%d:%d], %s, %s, v[%d:%d]" % (MF32, d, d + 15, q("a", AF + 32 * (s & 3) + 16 * kk + 4 * t), q("a", hreg(s, kk)), d, d + 15))
                if (s & 7) == 6 and kk == 0 and t == 0:
                    for tt in range(4): A("v_xor_b32 v%d, 0x10000, v%d" % (8 + tt, 8 + tt))
                A(rd[k]); A(rd[k + 1]); k += 2
                if t == 1:
                    for y in (d0 if kk == 0 else d1): A(y)
                if t == 2 and (s < 4 or kk == 0):
                    A("s_cmp_lg_u32 s45, s%d" % (8 if s < 4 else 9)); A("s_cbranch_scc1 g2_st%d%d" % (s, kk))
                    if s < 4:
                        jt = 2 * s + kk
                        A("buffer_store_dwordx4 %s, v3, s[36:39], s%d offen offset:%d sc1" % (q("v", HB[jt]), 10 + (jt >> 2), (jt & 3) * 1024))
                    else:
                        A("buffer_store_dwordx4 %s, v22, s[56:59], s%d offen offset:%d sc1" % (q("v", SO + 4 * (s - 4)), 6 + ((s - 4) >> 1), (s & 1) * 1024))
                    A.label("g2_st%d%d" % (s, kk))
            for y in hload(s, kk): A(y)
    A("s_mul_i32 s8, s69, 7"); A("s_mov_b32 s9, 7")
    A("s_waitcnt vmcnt(11)")
    A("s_mov_b32 s45, 7")
    A.raw(".p2align 6")
    A.label("g2_loop")
    if ENV("G2IT"):
        for it, k in ((7, 2), (6, 3), (5, 4), (4, 5), (3, 6), (2, 7)):
            A("s_cmp_eq_u32 s45, %d" % it); A("s_cbranch_scc0 g2it%d" % it); stamp(A, k); A.label("g2it%d" % it)
    for s in range(8): kstep(s)
    A("s_sub_u32 s45, s45, 1"); A("s_cmp_lg_u32 s45, 0"); A("s_cbranch_scc1 g2_loop")
    stamp(A, 10)
    PR, UX, US, PB = 128, 160, 192, 64
    for i in range(16): A("v_cvt_pk_bf16_f32 v%d, v%d, v%d" % (PR + i, ACC + 32 + 2 * i, ACC + 33 + 2 * i))
    M.srd(A, 36, M.POUT, 0, 4 << 20)
    A("s_xor_b32 s46, s40, 0x80"); A("s_xor_b32 s47, s41, 0x80")
    nl2e = -math.log2(math.e)
    A("s_mov_b32 s56, 0x%x" % f32(nl2e)); A("s_mov_b32 s57, s56"); A("s_mov_b32 s59, 0xffff0000")
    A("v_mov_b32 v26, 1.0"); A("v_mov_b32 v27, 1.0"); A("v_mov_b32 v23, s%d" % M.TOK)
    A("s_waitcnt vmcnt(0) lgkmcnt(0)")
    A("v_readfirstlane_b32 s45, v24")
    A("s_cmp_eq_u32 s45, s63"); A("s_cbranch_scc1 g2_near")
    for fl in (" sc1", ""):
        for i in range(4):
            A("buffer_store_dwordx4 %s, v20, s[36:39], s%d offen offset:%d%s" % (q("v", PR + 4 * i), 46 + (i & 1), (i >> 1) * 2048, fl))
        A("s_waitcnt vmcnt(0)")
        A("s_mov_b64 exec, 1")
        A("buffer_store_dword v23, v12, %s, s52 offen offset:64%s" % (FL, fl))
        A("s_mov_b64 exec, -1")
        if fl:
            A("s_branch g2_sent"); A.label("g2_near")
    A.label("g2_sent")
    A("s_barrier")
    for i in range(16):
        A("v_lshlrev_b32 v%d, 16, v%d" % (UX + 2 * i, XR + i)); A("v_and_b32 v%d, s59, v%d" % (UX + 2 * i + 1, XR + i))
        A("v_lshlrev_b32 v%d, 16, v%d" % (US + 2 * i, SR + i)); A("v_and_b32 v%d, s59, v%d" % (US + 2 * i + 1, SR + i))
    A("s_add_u32 s53, s53, 64")
    M.poll(A, "fx", 53, 12, 24, 1)
    for i in range(4):
        A("buffer_load_dwordx4 %s, v20, s[36:39], s%d offen offset:%d sc1" % (q("v", PB + 4 * i), 40 + (i & 1), (i >> 1) * 2048))
    H4 = range(0, 8, 2)
    for t in range(4):
        b = 8 * t; T = 224 + 8 * (t & 1)
        A("s_waitcnt vmcnt(%d)" % (3 - t))
        for e in range(4):
            A("v_lshlrev_b32 v%d, 16, v%d" % (T + 2 * e, PB + 4 * t + e)); A("v_and_b32 v%d, s59, v%d" % (T + 2 * e + 1, PB + 4 * t + e))
        for e in H4: A("v_pk_add_f32 %s, %s, %s" % (p2(ACC + b + e), p2(ACC + b + e), p2(T + e)))
        for e in H4: A("v_pk_mul_f32 %s, %s, s[56:57]" % (p2(T + e), p2(ACC + b + e)))
        for e in range(8): A("v_exp_f32 v%d, v%d" % (T + e, T + e))
        A("s_nop 0")
        for e in H4: A("v_pk_add_f32 %s, %s, v[26:27]" % (p2(T + e), p2(T + e)))
        for e in range(8): A("v_rcp_f32 v%d, v%d" % (T + e, T + e))
        A("s_nop 0")
        for e in H4: A("v_pk_mul_f32 %s, %s, %s" % (p2(ACC + b + e), p2(ACC + b + e), p2(T + e)))
        for e in range(4): A("v_cvt_pk_bf16_f32 v%d, v%d, v%d" % (PR + b + e, ACC + b + 2 * e, ACC + b + 2 * e + 1))
        for u in range(2):
            A("ds_write_b64 v16, %s offset:%d" % (p2(PR + b + 2 * u), (t >> 1) * 64 + (2 * (t & 1) + u) * 16))
    A("s_waitcnt lgkmcnt(0)")
    for i in range(4): A("ds_read_b128 %s, v17 offset:%d" % (q("v", ACC + 4 * i), i * 8 * 144))
    for i in range(4):
        A("s_waitcnt lgkmcnt(%d)" % (3 - i))
        T = 224 + 8 * (i & 1)
        for e in range(4):
            A("v_lshlrev_b32 v%d, 16, v%d" % (T + 2 * e, ACC + 4 * i + e)); A("v_and_b32 v%d, s59, v%d" % (T + 2 * e + 1, ACC + 4 * i + e))
        for e in H4: A("v_pk_fma_f32 %s, %s, %s, %s" % (p2(UX + 8 * i + e), p2(US + 8 * i + e), p2(T + e), p2(UX + 8 * i + e)))
        for e in range(4): A("v_cvt_pk_bf16_f32 v%d, v%d, v%d" % (XR + 4 * i + e, UX + 8 * i + 2 * e, UX + 8 * i + 2 * e + 1))
        A("buffer_store_dwordx4 %s, v20, s[36:39], s%d offen offset:%d" % (q("v", XR + 4 * i), 40 + (i & 1), (i >> 1) * 2048))
    if G.STAMP:
        A("s_waitcnt vmcnt(0)")
        stamp(A, 11); A("s_memrealtime s[100:101]"); A("s_waitcnt lgkmcnt(0)")
        G.stamp_out(A, 0, 12, M.PWS, "all")
        A("v_mov_b32 v2, s100"); A("buffer_store_dword v2, v1, s[96:99], 0 offen offset:48")

def colfft(A, M):
    W_ = M.WAVE
    DAT, FA, FE = 128, 160, 176
    W, T1, T2, D, P, TMP = 8, 40, 48, 104, 168, 200
    A("s_waitcnt vmcnt(0)")
    M.late_stores(A, "f")
    A("s_waitcnt vmcnt(0)")
    A("v_mov_b32 v240, 0"); A("v_lshlrev_b32 v242, 7, v1")
    A("s_barrier")
    M.set_flag_w0(A, "f2f", 63, 240, 241)
    names = []
    for inv in range(2):
        for part in range(2): names.append(("fa_%d%d" % (inv, part), ar(FA + 8 * inv + 4 * part, 4)))
    for t in range(2): names.append(("t1_%d" % t, vr(T1 + 4 * t, 4)))
    for e in range(1, 8):
        for t in range(2): names.append(("t2_%d%d" % (e, t), vr(T2 + 8 * (e - 1) + 4 * t, 4)))
    for o in range(4):
        for ih in range(2): names.append(("fe_%d%d" % (o, ih), ar(FE + 8 * o + 4 * ih, 4)))
    for nm, r in names: G.tab_load(A, r, nm, 3, M.STAB, 42)
    A("v_and_b32 v4, 15, v1"); A("v_lshrrev_b32 v5, 4, v1")
    A("v_lshlrev_b32 v6, 6, v4"); A("v_lshl_add_u32 v6, v5, 4, v6")
    for k in range(4):
        A("v_add_u32 v7, %d, v5" % (4 * k)); A("v_xor_b32 v7, v7, v4"); A("v_lshlrev_b32 v7, 4, v7"); A("v_lshl_add_u32 v%d, v5, 8, v7" % (232 + k))
    A("v_lshrrev_b32 v7, 5, v1"); A("v_lshlrev_b32 v7, 3, v7"); A("v_bfe_u32 v236, v1, 4, 1"); A("v_or_b32 v7, v7, v236"); A("v_xor_b32 v7, v7, v4")
    A("v_lshlrev_b32 v7, 4, v7"); A("v_lshl_add_u32 v236, v4, 8, v7"); A("v_lshl_add_u32 v236, v2, 15, v236")
    A("v_add_u32 v4, 0x1000, v3")
    A("s_lshl_b32 s51, s2, 2"); A("s_add_u32 s51, s51, s%d" % W_)
    A("s_and_b32 s41, s51, 15"); A("s_bfe_u32 s42, s51, 0x20004"); A("s_lshl_b32 s42, s42, 7")
    A("s_add_u32 s40, s41, s42")
    A("s_sub_u32 s43, 32, s41"); A("s_cmp_eq_u32 s41, 0"); A("s_cselect_b32 s43, 16, s43")
    A("s_add_u32 s43, s43, 480"); A("s_sub_u32 s43, s43, s42")
    A("s_cmp_ge_u32 s51, 64"); A("s_cselect_b32 s40, s43, s40"); A("s_cselect_b32 s50, -1, 1"); A("s_lshl_b32 s50, s50, 18")
    A("s_lshl_b32 s40, s40, 13")
    M.srd(A, 52, M.PWS, M.WS_Y, M.SZ_Y); M.srd(A, 56, M.PWS, M.WS_Z, M.SZ_Z)
    A("s_lshl_b32 s44, s%d, 13" % W_); A("s_add_u32 s44, s44, %d" % M.F2)
    M.poll(A, "f2", 44, 242, 244, 64, sleep=8)
    A("s_barrier")
    stamp(A, 5)
    A("s_lshl_b32 s41, s51, 15"); A("s_lshl_b32 s42, s%d, 15" % W_)
    for e in range(8):
        A("s_add_u32 m0, s42, %d" % (e * 4096))
        for k in range(4): A("buffer_load_dwordx4 v%d, s[52:55], s41 offen offset:%d sc1 lds" % (232 + k, k * 1024))
        A("s_add_u32 s41, s41, 4096")
    def wload(dst, f, so):
        for e in range(8):
            A("buffer_load_dwordx4 %s, v%d, s[36:39], s%d offen offset:%d sc1" % (q(f, dst + 4 * e), 3 if e < 4 else 4, so, (e & 3) * 1024))
    A("s_cmp_eq_u32 s51, 0"); A("s_cselect_b32 s43, 0x%x, s40" % (512 * 8192))
    wload(W, "v", 43)
    A("s_mov_b32 s48, 0"); A("s_mov_b32 s49, 0xffff0000")
    def yread():
        for e in range(8): A("ds_read_b128 %s, v237 offset:%d" % (q("a", DAT + 4 * e), e * 4096))
    A("v_mov_b32 v237, v236")
    A("s_waitcnt vmcnt(8)")
    yread()
    stamp(A, 6)
    A.label("cf_loop")
    A("s_waitcnt lgkmcnt(0)")
    def mm(d, a, b, c=None):
        A("%s %s, %s, %s, %s" % (MF, q("v", d), a, b, "0" if c is None else q("v", c)))
    tctr = [0]
    def tw_quads(dsts, re, tc, conj, TMP=TMP):
        t = TMP + 8 * (tctr[0] % 4); tctr[0] += 1
        im = re + 4; ts = tc + 4
        neg = " neg_lo:[1,0,0] neg_hi:[1,0,0]"
        for h in (0, 2): A("v_pk_mul_f32 %s, %s, %s" % (p2(t + h), p2(re + h), p2(tc + h)))
        for h in (0, 2): A("v_pk_mul_f32 %s, %s, %s" % (p2(t + 4 + h), p2(im + h), p2(tc + h)))
        for h in (0, 2): A("v_pk_fma_f32 %s, %s, %s, %s%s" % (p2(t + h), p2(im + h), p2(ts + h), p2(t + h), neg if conj else ""))
        for h in (0, 2): A("v_pk_fma_f32 %s, %s, %s, %s%s" % (p2(t + 4 + h), p2(re + h), p2(ts + h), p2(t + 4 + h), "" if conj else neg))
        for r in range(4): A("v_cvt_pk_bf16_f32 v%d, v%d, v%d" % (dsts[r], t + r, t + 4 + r))
    def cm_pairs(items):
        ts = []
        for _ in items:
            ts.append(TMP + 2 * (tctr[0] % 8)); tctr[0] += 1
        for (dst, z, c, s_), t in zip(items, ts):
            A("v_pk_mul_f32 %s, %s, %s op_sel:[0,%d] op_sel_hi:[1,%d]" % (p2(t), p2(z), p2(c & ~1), c & 1, c & 1))
        for (dst, z, c, s_), t in zip(items, ts):
            A("v_pk_fma_f32 %s, %s, %s, %s op_sel:[1,%d,0] op_sel_hi:[0,%d,1] neg_lo:[1,0,0]" % (p2(t), p2(z), p2(s_ & ~1), p2(t), s_ & 1, s_ & 1))
        for (dst, z, c, s_), t in zip(items, ts):
            A("v_cvt_pk_bf16_f32 v%d, v%d, v%d" % (dst, t, t + 1))
    for e in range(8):
        mm(D + 8 * e, q("a", DAT + 4 * e), q("a", FA)); mm(D + 8 * e + 4, q("a", DAT + 4 * e), q("a", FA + 4))
    A("s_add_u32 s40, s40, s50")
    A("s_add_u32 s43, s48, 1"); A("s_and_b32 s43, s43, 3"); A("s_lshl_b32 s43, s43, 5"); A("v_xor_b32 v237, s43, v236")
    yread()
    for e in range(8): tw_quads([P + 4 * e + r for r in range(4)], D + 8 * e, T1, False)
    for e in range(8):
        mm(D + 8 * e, q("a", FA), q("v", P + 4 * e)); mm(D + 8 * e + 4, q("a", FA + 4), q("v", P + 4 * e))
    for e in range(8):
        if e == 0:
            for r in range(4): A("v_cvt_pk_bf16_f32 v%d, v%d, v%d" % (P + 8 * r, D + r, D + 4 + r))
        else: tw_quads([P + 8 * r + e for r in range(4)], D + 8 * e, T2 + 8 * (e - 1), False)
    def stageE():
        for r in range(4):
            for o in range(4): mm(D + 16 * r + 4 * o, q("a", FE + 8 * o), q("v", P + 8 * r))
            for o in range(4): mm(D + 16 * r + 4 * o, q("a", FE + 8 * o + 4), q("v", P + 8 * r + 4), D + 16 * r + 4 * o)
    stageE()
    A("s_waitcnt vmcnt(0)")
    U = TMP + 16
    A("s_or_b32 s43, s51, s48"); A("s_cmp_eq_u32 s43, 0"); A("s_cbranch_scc1 cf_pack")
    for r in range(4):
        for eh in range(2):
            items = []
            for k in range(4):
                ep = 4 * eh + k; w = W + 4 * ep + r; u = U + 8 * (eh & 1) + 2 * k
                A("v_lshlrev_b32 v%d, 16, v%d" % (u, w)); A("v_and_b32 v%d, s49, v%d" % (u + 1, w))
                items.append((P + 8 * r + ep, D + 16 * r + 2 * ep, u, u + 1))
            cm_pairs(items)
    A.label("cf_mul_done")
    wload(W, "v", 40)
    stageE()
    for r in range(4):
        A("v_cvt_pk_bf16_f32 v%d, v%d, v%d" % (P + r, D + 16 * r, D + 16 * r + 1))
        for xs in ((1, 2, 3, 4), (5, 6, 7)):
            cm_pairs([(P + 4 * (8 - x) + r, D + 16 * r + 2 * x, T2 + 8 * (7 - x) + r, T2 + 8 * (7 - x) + 4 + r) for x in xs])
    for e in range(8):
        mm(D + 8 * e, q("v", P + 4 * e), q("a", FA + 8)); mm(D + 8 * e + 4, q("v", P + 4 * e), q("a", FA + 12))
    for e in range(8): tw_quads([P + 4 * e + r for r in range(4)], D + 8 * e, T1, True)
    for e in range(8):
        mm(D + 8 * e, q("v", P + 4 * e), q("a", FA + 8)); mm(D + 8 * e + 4, q("v", P + 4 * e), q("a", FA + 12))
    for e in range(8):
        for r in range(4): A("v_cvt_pk_bf16_f32 v%d, v%d, v%d" % (P + 4 * e + r, D + 8 * e + r, D + 8 * e + 4 + r))
    for cc in range(4):
        A("s_cmp_eq_u32 s48, %d" % cc); A("s_cbranch_scc0 cf_o%d" % cc)
        for qq in range(32): A("v_accvgpr_write_b32 a%d, v%d" % (4 * qq + cc, P + qq))
        A.label("cf_o%d" % cc)
    A("s_add_u32 s48, s48, 1"); A("s_cmp_lt_u32 s48, 4"); A("s_cbranch_scc1 cf_loop")
    stamp(A, 7)
    A("v_and_b32 v238, 15, v1"); A("v_lshlrev_b32 v238, 4, v238"); A("v_lshl_add_u32 v238, v5, 20, v238")
    A("s_lshl_b32 s41, s51, 8")
    for r in range(4):
        for e in range(8):
            qq = 4 * e + r
            A("s_add_u32 s42, s41, 0x%x" % ((8 * r + e) * 32768))
            A("buffer_store_dwordx4 %s, v238, s[56:59], s42 offen sc1" % q("a", 4 * qq))
    A("s_waitcnt vmcnt(0) lgkmcnt(0)")
    A("s_lshl_b32 s44, s2, 7"); A("s_add_u32 s44, s44, %d" % M.F3)
    A("s_barrier")
    M.set_flag_w0(A, "f3", 44, 240, 241)
    A("s_mov_b32 s44, %d" % M.F3)
    M.poll(A, "f3", 44, 242, 244, 32, sleep=8)
    z_fetch(A, M); i_tabs(A, M); g2_setup(A, M); g2_early(A)
    A("s_mov_b32 s58, 0"); A("s_mov_b32 s55, 0"); A("s_mov_b32 s52, 0"); A("s_mov_b32 s53, 0")
    A("s_waitcnt vmcnt(0)")
    A("s_branch cf_end")
    A.label("cf_pack")
    A("s_nop 7")
    SC = M.LDS_SCR
    A("v_and_b32 v238, 15, v1"); A("v_lshl_add_u32 v238, v5, 6, v238")
    A("v_sub_u32 v239, %d, v238" % (2048 - 48 - 1792)); A("v_lshlrev_b32 v238, 3, v238"); A("v_lshlrev_b32 v239, 3, v239")
    A("v_add_u32 v238, 0x%x, v238" % SC); A("v_add_u32 v239, 0x%x, v239" % SC)
    for r in range(4):
        for ep in range(8): A("ds_write_b64 v238, %s offset:%d" % (p2(D + 16 * r + 2 * ep), 8 * (16 * r + 256 * ep)))
    A("s_mov_b64 exec, 1"); A("ds_write_b64 v238, %s offset:%d" % (p2(D), 8 * 2048)); A("s_mov_b64 exec, -1")
    A("s_mov_b32 s43, 0x%x" % (513 * 8192))
    wload(208, "a", 43)
    for r in range(4):
        for ep in range(8):
            w = W + 4 * ep + r; z = D + 16 * r + 2 * ep; u = U + 2 * (ep & 3); t = TMP + 2 * (ep & 3)
            A("v_lshlrev_b32 v%d, 16, v%d" % (u, w)); A("v_and_b32 v%d, s49, v%d" % (u + 1, w))
            A("v_pk_mul_f32 %s, %s, %s op_sel:[0,0] op_sel_hi:[1,0]" % (p2(t), p2(z), p2(u)))
            A("v_pk_fma_f32 %s, %s, %s, %s op_sel:[1,1,0] op_sel_hi:[0,1,1] neg_lo:[1,0,0]" % (p2(z), p2(z), p2(u), p2(t)))
    A("s_waitcnt vmcnt(0) lgkmcnt(0)")
    for rh in range(2):
        for r in (2 * rh, 2 * rh + 1):
            for ep in range(8): A("ds_read_b64 %s, v239 offset:%d" % (p2(W + 16 * (r & 1) + 2 * ep), 8 * (16 * (3 - r) + 256 * (7 - ep))))
        A("s_waitcnt lgkmcnt(0)")
        for r in (2 * rh, 2 * rh + 1):
            for ep in range(8):
                m = W + 16 * (r & 1) + 2 * ep; z = D + 16 * r + 2 * ep; u = U + 2 * (ep & 3)
                A("v_accvgpr_read_b32 v%d, a%d" % (u + 1, 208 + 4 * ep + r))
                A("v_lshlrev_b32 v%d, 16, v%d" % (u, u + 1)); A("v_and_b32 v%d, s49, v%d" % (u + 1, u + 1))
                A("v_pk_fma_f32 %s, %s, %s, %s op_sel:[0,0,0] op_sel_hi:[1,0,1] neg_hi:[1,0,0]" % (p2(z), p2(m), p2(u), p2(z)))
                A("v_pk_fma_f32 %s, %s, %s, %s op_sel:[1,1,0] op_sel_hi:[0,1,1]" % (p2(z), p2(m), p2(u), p2(z)))
                A("v_cvt_pk_bf16_f32 v%d, v%d, v%d" % (P + 8 * r + ep, z, z + 1))
    A("s_nop 1")
    A("s_branch cf_mul_done")
    A.label("cf_end")
```

```python
from asmlib import *
import math, os
K2_LDS = 128 * 1024
MF = "v_mfma_f32_16x16x32_bf16"

def zero_flags(A, G, wsreg):
    G.srd(A, 56, wsreg, G.WS_FL, G.SZ_FL)
    A("v_lshlrev_b32 v20, 3, v1"); A("v_mov_b32 v22, 0"); A("v_mov_b32 v23, 0"); A("s_lshl_b32 s60, s2, 9")
    A("buffer_store_dwordx2 v[22:23], v20, s[56:59], s60 offen")

def gen_gemm1(A, G):
    KA = G.KA
    G.stamp(A, 0); G.stamp(A, 1, True)
    A("s_load_dwordx4 s[4:7], s[0:1], %d" % KA["wg"])
    A("s_load_dwordx2 s[8:9], s[0:1], %d" % KA["ws"])
    A("s_load_dwordx2 s[10:11], s[0:1], %d" % KA["wd"])
    A("s_and_b32 s40, s2, 7"); A("s_lshr_b32 s41, s2, 3"); A("s_sub_u32 s41, s41, 4")
    import os
    if os.environ.get("G1MAP", "old") == "old":
        A("s_and_b32 s42, s40, 1"); A("s_lshl_b32 s42, s42, 2"); A("s_and_b32 s43, s41, 3"); A("s_add_u32 s42, s42, s43")
        A("s_lshr_b32 s43, s40, 1"); A("s_mul_i32 s43, s43, 7"); A("s_lshr_b32 s44, s41, 2"); A("s_add_u32 s43, s43, s44")
    else:
        A("s_and_b32 s42, s40, 6"); A("s_and_b32 s43, s41, 1"); A("s_add_u32 s42, s42, s43")
        A("s_and_b32 s43, s40, 1"); A("s_mul_i32 s43, s43, 14"); A("s_lshr_b32 s44, s41, 1"); A("s_add_u32 s43, s43, s44")
    A("v_and_b32 v1, 63, v0"); A("v_lshrrev_b32 v2, 6, v0")
    A("v_readfirstlane_b32 s45, v2")
    A("v_lshlrev_b32 v3, 4, v1")
    A("s_and_b32 s46, s45, 1"); A("s_lshr_b32 s47, s45, 1")
    A("v_lshrrev_b32 v4, 4, v1")
    A("s_lshl_b32 s48, s46, 2"); A("v_add_u32 v4, s48, v4")
    A("v_lshlrev_b32 v5, 1, v4"); A("v_and_b32 v6, 15, v1"); A("v_xor_b32 v5, v5, v6")
    A("s_lshl_b32 s48, s47, 4"); A("v_add_u32 v4, s48, v4")
    A("v_mul_u32_u24 v4, 7168, v4"); A("v_lshl_add_u32 v4, v5, 4, v4")
    A("s_lshl_b32 s48, s47, 13"); A("v_add_u32 v5, s48, v3"); A("v_add_u32 v6, 0x10000, v5")
    A("v_bfe_u32 v7, v1, 4, 1"); A("v_lshlrev_b32 v16, 12, v7")
    A("v_bfe_u32 v7, v1, 5, 1"); A("v_lshl_add_u32 v16, v7, 10, v16")
    A("v_bfe_u32 v7, v1, 2, 2"); A("v_lshl_add_u32 v16, v7, 8, v16")
    A("v_and_b32 v7, 3, v1"); A("v_lshl_add_u32 v16, v7, 3, v16"); A("v_add_u32 v16, 0x4000, v16")
    A("v_bfe_u32 v7, v1, 2, 3")
    A("s_lshl_b32 s48, s46, 2")
    for t in range(4):
        A("s_add_u32 s49, s48, %d" % t)
        A("v_xor_b32 v17, s49, v7"); A("v_lshl_add_u32 v%d, v17, 5, v16" % (8 + t)); A("v_add_u32 v%d, 0x10000, v%d" % (12 + t, 8 + t))
    A("s_waitcnt lgkmcnt(0)")
    G.srd(A, 12, 8, G.WS_XN, G.SZ_XN)
    G.srd(A, 16, 4, 0, 1024 * 7168)
    G.srd(A, 20, 6, -2048, 1024 * 7168 + 2048)
    G.srd(A, 24, 8, G.WS_H, G.SZ_H)
    zero_flags(A, G, 8)
    G.srd(A, 52, 10, 0, 3584 * 2048)
    A("s_lshl_b32 s30, s42, 19"); A("s_lshl_b32 s48, s45, 12"); A("s_add_u32 s30, s30, s48")
    A("s_lshl_b32 s31, s43, 8"); A("s_add_u32 s32, s31, %d" % (57344 - 1024))
    A("s_lshl_b32 s33, s45, 12"); A("s_add_u32 s34, s33, 0x4000")

    def dma(buf):
        o = []
        o.append(["s_add_u32 m0, s33, 0x%x" % (buf * 32768), "buffer_load_dwordx4 v3, s[12:15], s30 offen lds"])
        for p in range(1, 4): o.append(["buffer_load_dwordx4 v3, s[12:15], s30 offen offset:%d lds" % (p * 1024)])
        o[-1].append("s_add_u32 s30, s30, 0x4000")
        o.append(["s_add_u32 m0, s34, 0x%x" % (buf * 32768), "buffer_load_dwordx4 v4, s[16:19], s31 offen lds"])
        o.append(["buffer_load_dwordx4 v4, s[16:19], s32 offen offset:1024 lds"])
        o.append(["buffer_load_dwordx4 v4, s[20:23], s31 offen offset:2048 lds", "s_add_u32 s31, s31, %d" % (32 * 7168)])
        o.append(["buffer_load_dwordx4 v4, s[20:23], s32 offen offset:3072 lds", "s_add_u32 s32, s32, %d" % (32 * 7168)])
        return o
    def acc(it, jt):
        return ("v", 32 + (jt * 8 + it) * 4) if jt < 7 else ("a", 128 + it * 4)
    def reads(buf, st):
        base = 64 * st; hi = buf >> 1; off = (buf & 1) * 32768
        o = []; la = []; lb = []
        for it in range(8):
            mat, t = it >> 2, it & 3
            for h in range(2):
                r = base + 4 * it + 2 * h
                la.append("ds_read_b64_tr_b16 a[%d:%d], v%d offset:%d" % (r, r + 1, (12 if hi else 8) + t, off + h * 8192 + mat * 2048))
        for jt in range(8):
            r = base + 32 + 4 * jt
            lb.append("ds_read_b128 a[%d:%d], v%d offset:%d" % (r, r + 3, 6 if hi else 5, off + jt * 1024))
        for i in range(8): o += [lb[i], la[2 * i], la[2 * i + 1]]
        return o
    def mfmas(st, first=False):
        base = 64 * st; o = []
        for jt in range(8):
            for it in range(8):
                f, d = acc(it, jt); dd = "%s[%d:%d]" % (f, d, d + 3)
                o.append("%s %s, a[%d:%d], a[%d:%d], %s" % (MF, dd, base + 4 * it, base + 4 * it + 3, base + 32 + 4 * jt, base + 35 + 4 * jt, "0" if first else dd))
        return o
    def step(i, dmas, do_read, vm, first=False, rd0=1, mid=None, extra=None):
        m = mfmas(i & 1, first)
        s1 = interleave(m, reads((i + 1) & 3, (i + 1) & 1), rd0, 56 if rd0 > 1 else 52) if do_read else [[] for _ in m]
        dl = []
        for b_ in dmas: dl += dma(b_)
        if extra: dl += extra
        s2 = interleave(m, dl, 0, 64) if dl else [[] for _ in m]
        for k, x in enumerate(m):
            A(x)
            if mid is not None and k == rd0 - 1:
                nv = sum(1 for kk in range(k + 1) for y in s2[kk] if y.startswith("buffer"))
                for y in s2[k]: A(y)
                A("s_waitcnt vmcnt(%d)" % (mid + nv)); A("s_barrier")
                continue
            for y in s2[k] + s1[k]: A(y)
            for u in range(int(os.environ.get("G1FILL", "0"))): A("v_fma_f32 v%d, v%d, v%d, v%d" % (24 + (k + u) % 8, 24 + (k + u) % 8, 8, 9))
        if vm is not None:
            A("s_waitcnt vmcnt(%d) lgkmcnt(0)" % vm); A("s_barrier")
    def flat(l):
        for x in l:
            for y in x: A(y)
    flat(dma(0)); flat(dma(1))
    G.stamp(A, 2)
    A("s_waitcnt vmcnt(8)"); A("s_barrier")
    G.stamp(A, 3)
    for x in reads(0, 0): A(x)
    flat(dma(2))
    A("s_waitcnt lgkmcnt(0)")
    G.stamp(A, 4)
    step(0, [3, 0], True, 16, first=True, rd0=24, mid=8)
    for i in range(1, 4): step(i, [i & 3], True, 16)
    A("s_mov_b32 s35, 6")
    A.raw(".p2align 6")
    A.label("g1_loop")
    for i in range(4): step(i, [i], True, 16)
    if os.environ.get("CLK"):
        for it, k in ((6, 2), (4, 4), (1, 6)):
            A("s_cmp_eq_u32 s35, %d" % it); A("s_cbranch_scc0 g1it%d" % it); G.stamp(A, k, force=True); G.stamp(A, k + 1, True, force=True); A.label("g1it%d" % it)
    A("s_sub_u32 s35, s35, 1"); A("s_cmp_lg_u32 s35, 0"); A("s_cbranch_scc1 g1_loop")
    G.stamp(A, 5)
    pf = []
    if G.PREFETCH:
        A("s_sub_u32 s50, s2, 32"); A("s_lshl_b32 s50, s50, 15"); A("s_add_u32 s51, s50, 16384")
        A("v_lshlrev_b32 v17, 6, v0")
        pf = [["buffer_load_dword v1, v17, s[52:55], s50 offen"], ["buffer_load_dword v2, v17, s[52:55], s51 offen"]]
    step(0, [], True, 8); step(1, [], True, 0); step(2, [], True, None, extra=pf)
    A("s_waitcnt lgkmcnt(0)")
    step(3, [], False, None)
    G.stamp(A, 6)
    if os.environ.get("CLK"): G.stamp(A, 10, force=True); G.stamp(A, 11, True, force=True)
    A("s_lshl_b32 s36, s42, 1"); A("s_add_u32 s36, s36, s47"); A("s_mul_i32 s36, s36, 112")
    A("s_lshl_b32 s37, s43, 2"); A("s_add_u32 s36, s36, s37"); A("s_lshl_b32 s37, s46, 1"); A("s_add_u32 s36, s36, s37")
    A("s_lshl_b32 s36, s36, 13")
    c0 = math.sqrt(2 / math.pi)
    c1 = -2 * c0 * math.log2(math.e); c2 = c1 * 0.044715
    A("s_mov_b32 s38, 0x%x" % G.f32(c2)); A("s_mov_b32 s39, s38")
    A("v_mov_b32 v8, 0x%x" % G.f32(c1)); A("v_mov_b32 v9, v8"); A("v_mov_b32 v10, 1.0"); A("v_mov_b32 v11, 1.0")
    def p2(r): return "v[%d:%d]" % (r, r + 1)
    n = 0
    for jt in range(8):
        if jt == 7:
            for i in range(32): A("v_accvgpr_read_b32 v%d, a%d" % (32 + i, 128 + i))
        for p in range(2):
            b0 = 32 + (jt % 7) * 32
            g = b0 + 8 * p; u = b0 + 16 + 8 * p
            T = 16 + 8 * (n % 2); n += 1
            H4 = range(0, 8, 2)
            for e in H4: A("v_pk_mul_f32 %s, %s, %s" % (p2(T + e), p2(g + e), p2(g + e)))
            for e in H4: A("v_pk_fma_f32 %s, %s, s[38:39], v[8:9]" % (p2(T + e), p2(T + e)))
            for e in H4: A("v_pk_mul_f32 %s, %s, %s" % (p2(T + e), p2(T + e), p2(g + e)))
            for e in range(8): A("v_exp_f32 v%d, v%d" % (T + e, T + e))
            for e in H4: A("v_pk_mul_f32 %s, %s, %s" % (p2(u + e), p2(u + e), p2(g + e)))
            for e in H4: A("v_pk_add_f32 %s, %s, v[10:11]" % (p2(T + e), p2(T + e)))
            for e in range(8): A("v_rcp_f32 v%d, v%d" % (T + e, T + e))
            A("s_add_u32 s37, s36, 0x%x" % (p * 8192 + (jt >> 2) * 4096))
            for e in H4: A("v_pk_mul_f32 %s, %s, %s" % (p2(u + e), p2(u + e), p2(T + e)))
            for e in range(4): A("v_cvt_pk_bf16_f32 v%d, v%d, v%d" % (g + e, u + 2 * e, u + 2 * e + 1))
            A("buffer_store_dwordx4 v[%d:%d], v3, s[24:27], s37 offen offset:%d%s" % (g, g + 3, (jt & 3) * 1024, G.H_FLAGS))
    G.stamp(A, 7)
    if G.STAMP: A("s_waitcnt vmcnt(0)")
    G.stamp(A, 8); G.stamp(A, 9, True)
    G.stamp_out(A, 1, 12 if os.environ.get("CLK") else 10, 8, "g1")
    A("s_endpgm")

def gen_colfft(A, G):
    KA = G.KA
    G.stamp(A, 0); G.stamp(A, 1, True)
    A("s_load_dwordx2 s[8:9], s[0:1], %d" % KA["ws"])
    G.tab_srd(A, 28, "k2")
    A("v_and_b32 v1, 63, v0"); A("v_lshrrev_b32 v2, 6, v0")
    A("v_readfirstlane_b32 s45, v2")
    A("v_lshlrev_b32 v3, 4, v1")
    DAT, FA, FE = 128, 160, 176
    W, T1, T2, D, P, TMP = 8, 40, 48, 104, 168, 200
    names = []
    for inv in range(2):
        for part in range(2): names.append(("fa_%d%d" % (inv, part), ar(FA + 8 * inv + 4 * part, 4)))
    for t in range(2): names.append(("t1_%d" % t, vr(T1 + 4 * t, 4)))
    for e in range(1, 8):
        for t in range(2): names.append(("t2_%d%d" % (e, t), vr(T2 + 8 * (e - 1) + 4 * t, 4)))
    for o in range(4):
        for ih in range(2): names.append(("fe_%d%d" % (o, ih), ar(FE + 8 * o + 4 * ih, 4)))
    for nm, r in names: G.tab_load(A, r, nm, 3, 28, 42)
    A("v_and_b32 v4, 15, v1"); A("v_lshrrev_b32 v5, 4, v1")
    A("v_lshlrev_b32 v6, 6, v4"); A("v_lshl_add_u32 v6, v5, 4, v6")
    A("v_add_u32 v7, 0x1000, v6"); A("v_add_u32 v4, 0x1000, v3")
    A("s_lshl_b32 s51, s2, 2"); A("s_add_u32 s51, s51, s45")
    A("s_and_b32 s41, s51, 15"); A("s_bfe_u32 s42, s51, 0x20004"); A("s_lshl_b32 s42, s42, 7")
    A("s_add_u32 s40, s41, s42")
    A("s_sub_u32 s43, 32, s41"); A("s_cmp_eq_u32 s41, 0"); A("s_cselect_b32 s43, 16, s43")
    A("s_add_u32 s43, s43, 480"); A("s_sub_u32 s43, s43, s42")
    A("s_cmp_ge_u32 s51, 64"); A("s_cselect_b32 s40, s43, s40"); A("s_cselect_b32 s52, -1, 1"); A("s_lshl_b32 s52, s52, 18")
    A("s_lshl_b32 s40, s40, 13")
    A("s_load_dwordx2 s[10:11], s[0:1], %d" % KA["dbg"])
    A("s_waitcnt lgkmcnt(0)")
    G.srd(A, 12, 8, G.WS_WT, G.SZ_WT)
    G.srd(A, 20, 8, G.WS_Y, G.SZ_Y); G.srd(A, 24, 8, G.WS_Z, G.SZ_Z); G.srd(A, 32, 8, G.WS_S, G.SZ_S)
    G.srd(A, 16, 10, 0, 256)
    def yload():
        for e in range(8):
            A("buffer_load_dwordx4 a[%d:%d], v%d, s[20:23], s40 offen offset:%d" % (DAT + 4 * e, DAT + 4 * e + 3, 6 if e < 4 else 7, (e & 3) * 1024))
    def wload():
        for e in range(8):
            A("buffer_load_dwordx4 v[%d:%d], v%d, s[12:15], s40 offen offset:%d" % (W + 4 * e, W + 4 * e + 3, 3 if e < 4 else 4, (e & 3) * 1024))
    yload(); wload()
    A("s_mov_b32 s46, 0x05040100")
    A("s_mov_b32 s48, 0")
    A("s_or_b32 s49, s2, s45"); A("s_cmp_eq_u32 s49, 0"); A("s_cselect_b32 s49, 5, 4")
    A("s_mov_b32 s50, 0xffff0000")
    G.stamp(A, 2); G.stamp(A, 3)
    A("s_waitcnt vmcnt(8)")
    G.stamp(A, 4)
    A.label("cf_loop")
    A("s_waitcnt vmcnt(8)")
    def q(f, r): return "%s[%d:%d]" % (f, r, r + 3)
    def p2(r): return "v[%d:%d]" % (r, r + 1)
    def mm(d, a, b, c=None):
        A("%s %s, %s, %s, %s" % (MF, q("v", d), a, b, "0" if c is None else q("v", c)))
    tctr = [0]
    def tw_quads(dsts, re, tc, conj, TMP=TMP):
        t = TMP + 8 * (tctr[0] % 4); tctr[0] += 1
        im = re + 4; ts = tc + 4
        neg = " neg_lo:[1,0,0] neg_hi:[1,0,0]"
        for h in (0, 2): A("v_pk_mul_f32 %s, %s, %s" % (p2(t + h), p2(re + h), p2(tc + h)))
        for h in (0, 2): A("v_pk_mul_f32 %s, %s, %s" % (p2(t + 4 + h), p2(im + h), p2(tc + h)))
        for h in (0, 2): A("v_pk_fma_f32 %s, %s, %s, %s%s" % (p2(t + h), p2(im + h), p2(ts + h), p2(t + h), neg if conj else ""))
        for h in (0, 2): A("v_pk_fma_f32 %s, %s, %s, %s%s" % (p2(t + 4 + h), p2(re + h), p2(ts + h), p2(t + 4 + h), "" if conj else neg))
        for r in range(4): A("v_cvt_pk_bf16_f32 v%d, v%d, v%d" % (dsts[r], t + r, t + 4 + r))
    def cm_pairs(items):
        ts = []
        for _ in items:
            ts.append(TMP + 2 * (tctr[0] % 8)); tctr[0] += 1
        for (dst, z, c, s_), t in zip(items, ts):
            A("v_pk_mul_f32 %s, %s, %s op_sel:[0,%d] op_sel_hi:[1,%d]" % (p2(t), p2(z), p2(c & ~1), c & 1, c & 1))
        for (dst, z, c, s_), t in zip(items, ts):
            A("v_pk_fma_f32 %s, %s, %s, %s op_sel:[1,%d,0] op_sel_hi:[0,%d,1] neg_lo:[1,0,0]" % (p2(t), p2(z), p2(s_ & ~1), p2(t), s_ & 1, s_ & 1))
        for (dst, z, c, s_), t in zip(items, ts):
            A("v_cvt_pk_bf16_f32 v%d, v%d, v%d" % (dst, t, t + 1))
    for e in range(8):
        mm(D + 8 * e, q("a", DAT + 4 * e), q("a", FA)); mm(D + 8 * e + 4, q("a", DAT + 4 * e), q("a", FA + 4))
    A("s_add_u32 s40, s40, s52"); A("s_cmp_eq_u32 s48, 3"); A("s_cselect_b32 s40, 0x%x, s40" % (512 * 8192))
    yload()
    for e in range(8): tw_quads([P + 4 * e + r for r in range(4)], D + 8 * e, T1, False)
    for e in range(8):
        mm(D + 8 * e, q("a", FA), q("v", P + 4 * e)); mm(D + 8 * e + 4, q("a", FA + 4), q("v", P + 4 * e))
    for e in range(8):
        if e == 0:
            for r in range(4): A("v_cvt_pk_bf16_f32 v%d, v%d, v%d" % (P + 8 * r, D + r, D + 4 + r))
        else: tw_quads([P + 8 * r + e for r in range(4)], D + 8 * e, T2 + 8 * (e - 1), False)
    def stageE():
        for r in range(4):
            for o in range(4): mm(D + 16 * r + 4 * o, q("a", FE + 8 * o), q("v", P + 8 * r))
            for o in range(4): mm(D + 16 * r + 4 * o, q("a", FE + 8 * o + 4), q("v", P + 8 * r + 4), D + 16 * r + 4 * o)
    stageE()
    A("s_waitcnt vmcnt(8)")
    U = TMP + 16
    for r in range(4):
        for eh in range(2):
            items = []
            for k in range(4):
                ep = 4 * eh + k; w = W + 4 * ep + r; u = U + 8 * (eh & 1) + 2 * k
                A("v_lshlrev_b32 v%d, 16, v%d" % (u, w)); A("v_and_b32 v%d, s50, v%d" % (u + 1, w))
                items.append((P + 8 * r + ep, D + 16 * r + 2 * ep, u, u + 1))
            cm_pairs(items)
    wload()
    stageE()
    for r in range(4):
        A("v_cvt_pk_bf16_f32 v%d, v%d, v%d" % (P + r, D + 16 * r, D + 16 * r + 1))
        for xs in ((1, 2, 3, 4), (5, 6, 7)):
            cm_pairs([(P + 4 * (8 - x) + r, D + 16 * r + 2 * x, T2 + 8 * (7 - x) + r, T2 + 8 * (7 - x) + 4 + r) for x in xs])
    for e in range(8):
        mm(D + 8 * e, q("v", P + 4 * e), q("a", FA + 8)); mm(D + 8 * e + 4, q("v", P + 4 * e), q("a", FA + 12))
    for e in range(8): tw_quads([P + 4 * e + r for r in range(4)], D + 8 * e, T1, True)
    for e in range(8):
        mm(D + 8 * e, q("v", P + 4 * e), q("a", FA + 8)); mm(D + 8 * e + 4, q("v", P + 4 * e), q("a", FA + 12))
    for e in range(8):
        for r in range(4): A("v_cvt_pk_bf16_f32 v%d, v%d, v%d" % (P + 4 * e + r, D + 8 * e + r, D + 8 * e + 4 + r))
    for cc in range(4):
        A("s_cmp_eq_u32 s48, %d" % cc); A("s_cbranch_scc0 cf_o%d" % cc)
        for qq in range(32): A("v_accvgpr_write_b32 a%d, v%d" % (4 * qq + cc, P + qq))
        A.label("cf_o%d" % cc)
    A("s_cmp_eq_u32 s48, 4"); A("s_cbranch_scc0 cf_o4")
    for qq in range(32): A("v_accvgpr_read_b32 v%d, a%d" % (D + qq, 4 * qq))
    for qq in range(32): A("v_perm_b32 v%d, v%d, v%d, s46" % (D + qq, P + qq, D + qq))
    for qq in range(32): A("v_accvgpr_write_b32 a%d, v%d" % (4 * qq, D + qq))
    A.label("cf_o4")
    A("s_add_u32 s48, s48, 1"); A("s_cmp_lt_u32 s48, s49"); A("s_cbranch_scc1 cf_loop")
    G.stamp(A, 5)
    A("v_and_b32 v4, 15, v1"); A("v_lshlrev_b32 v4, 4, v4"); A("v_lshrrev_b32 v5, 4, v1")
    A("v_lshl_add_u32 v4, v5, 20, v4")
    A("s_lshl_b32 s41, s51, 8")
    for r in range(4):
        for e in range(8):
            qq = 4 * e + r
            A("s_add_u32 s42, s41, 0x%x" % ((8 * r + e) * 32768))
            A("buffer_store_dwordx4 a[%d:%d], v4, s[24:27], s42 offen sc1" % (4 * qq, 4 * qq + 3))
    I1, I1S, I2, ITW = 128, 160, 176, 40
    A("s_waitcnt vmcnt(0)")
    A("s_barrier")
    A("s_cmp_lg_u32 s45, 0"); A("s_cbranch_scc1 cf_noadd")
    A("v_mov_b32 v24, 0"); A("v_mov_b32 v25, 1")
    A("s_mov_b64 exec, 1")
    A("buffer_atomic_add v25, v24, s[16:19], 0 offen sc1")
    A("s_mov_b64 exec, -1")
    A.label("cf_noadd")
    zero_flags(A, G, 8)
    for bh in range(2):
        for part in range(2):
            for dh in range(2): G.tab_load(A, ar(I1 + 16 * bh + 8 * part + 4 * dh, 4), "i1_%d%d%d" % (bh, part, dh), 3, 28, 42)
            G.tab_load(A, ar(I1S + 8 * bh + 4 * part, 4), "i1s_%d%d" % (bh, part), 3, 28, 42)
            G.tab_load(A, vr(ITW + 8 * bh + 4 * part, 4), "itw%d%d" % (bh, part), 3, 28, 42)
        G.tab_load(A, ar(I2 + 4 * bh, 4), "i2_%d" % bh, 3, 28, 42)
    A("v_and_b32 v8, 15, v1"); A("v_lshrrev_b32 v9, 4, v1"); A("s_lshl_b32 s41, s45, 15")
    for k in range(4):
        A("v_add_u32 v10, %d, v9" % (4 * k)); A("v_xor_b32 v11, v10, v8"); A("v_lshlrev_b32 v10, 8, v10")
        A("v_lshl_add_u32 v%d, v11, 4, v10" % (12 + k)); A("v_add_u32 v%d, s41, v%d" % (12 + k, 12 + k))
    A("v_lshlrev_b32 v16, 8, v1"); A("v_add_u32 v16, s41, v16")
    A("v_add_u32 v4, 0x1000, v3")
    A("v_mov_b32 v26, 0"); A("s_mov_b32 s43, 0x40000")
    A.label("cf_poll")
    A("buffer_load_dword v27, v26, s[16:19], 0 offen sc1")
    A("s_waitcnt vmcnt(0)")
    A("v_readfirstlane_b32 s42, v27")
    A("s_sub_u32 s43, s43, 1"); A("s_cmp_eq_u32 s43, 0"); A("s_cbranch_scc1 cf_go")
    A("s_cmp_lt_u32 s42, 32"); A("s_cbranch_scc1 cf_poll")
    A.label("cf_go")
    G.stamp(A, 6)
    A("s_lshl_b32 s41, s51, 15")
    for p in range(32):
        if p % 8 == 0 and p: A("s_add_u32 s41, s41, 0x2000")
        A("buffer_load_dwordx4 a[%d:%d], v%d, s[24:27], s41 offen offset:%d sc1" % (4 * p, 4 * p + 3, 3 if (p & 7) < 4 else 4, (p & 3) * 1024))
    for p in range(32):
        A("s_waitcnt vmcnt(%d)" % (31 - p))
        A("ds_write_b128 v%d, a[%d:%d] offset:%d" % (12 + (p & 3), 4 * p, 4 * p + 3, (p >> 2) * 4096))
    A("s_mov_b32 s48, 0")
    A("s_lshl_b32 s41, s51, 11")
    A("s_mov_b64 s[46:47], 0xffff")
    A("s_waitcnt lgkmcnt(0)")
    NR = 4
    ZD, D1, DS, PK = 0, 64, 128, 192
    def rd():
        for k in range(NR):
            A("s_add_u32 s42, s48, %d" % k); A("v_xor_b32 v17, s42, v8"); A("v_lshl_add_u32 v17, v17, 4, v16")
            for dh in range(2): A("ds_read_b128 a[%d:%d], v17 offset:%d" % (ZD + 8 * k + 4 * dh, ZD + 8 * k + 4 * dh + 3, dh * 16384))
    rd()
    A.label("ci_loop")
    A("s_waitcnt lgkmcnt(0)")
    for k in range(NR):
        for dh in range(2):
            for bh in range(2):
                for part in range(2):
                    d = D1 + 16 * k + 8 * bh + 4 * part
                    mm(d, q("a", ZD + 8 * k + 4 * dh), q("a", I1 + 16 * bh + 8 * part + 4 * dh), None if dh == 0 else d)
        for bh in range(2):
            for part in range(2):
                mm(DS + 16 * k + 8 * bh + 4 * part, q("a", ZD + 8 * k + 4 * part), q("a", I1S + 8 * bh + 4 * part))
    A("s_add_u32 s48, s48, %d" % NR)
    rd()
    TMP = 224
    for k in range(NR):
        for x in range(4):
            A("v_cndmask_b32 v%d, v%d, v%d, s[46:47]" % (D1 + 16 * k + 4 * x, D1 + 16 * k + 4 * x, DS + 16 * k + 4 * x))
        for bh in range(2): tw_quads([PK + 8 * k + 4 * bh + r for r in range(4)], D1 + 16 * k + 8 * bh, ITW + 8 * bh, True, TMP)
    for k in range(NR):
        for ah in range(2):
            for bh in range(2): mm(D1 + 16 * k + 8 * ah + 4 * bh, q("v", PK + 8 * k + 4 * bh), q("a", I2 + 4 * ah))
    for k in range(NR):
        for x in range(8): A("v_cvt_pk_bf16_f32 v%d, v%d, v%d" % (DS + 8 * k + x, D1 + 16 * k + 2 * x, D1 + 16 * k + 2 * x + 1))
        for ah in range(2): A("buffer_store_dwordx4 %s, v6, s[32:35], s41 offen offset:%d" % (q("v", DS + 8 * k + 4 * ah), ah * 1024))
        A("s_add_u32 s41, s41, 0x40000")
    A("s_cmp_lt_u32 s48, 16"); A("s_cbranch_scc1 ci_loop")
    G.stamp(A, 7)
    if G.STAMP: A("s_waitcnt vmcnt(0)")
    G.stamp(A, 8); G.stamp(A, 9, True)
    G.stamp_out(A, 1, 10, 8, "cf")
    A("s_endpgm")

def gen_k2(G):
    A = Asm(); G.kernel_head(A, "k2_kernel")
    A("s_cmp_ge_u32 s2, 256"); A("s_cbranch_scc1 k2_done")
    import os
    dbg = os.environ.get("K2DBG", "")
    A("s_cmp_lt_u32 s2, 32"); A("s_cbranch_scc1 %s" % ("k2_done" if dbg == "nofft" else "k2_fft"))
    if dbg == "nogemm": A("s_endpgm")
    gen_gemm1(A, G)
    A.label("k2_fft")
    gen_colfft(A, G)
    A.label("k2_done"); A("s_endpgm")
    A.fix()
    return A.text() + G.kernel_desc("k2_kernel", 512, 256, 64)
```

```python
from asmlib import *
import math, os
K3_LDS = 128 * 1024
MF = "v_mfma_f32_32x32x16_bf16"

def gen_k3(G):
    KA = G.KA
    A = Asm(); G.kernel_head(A, "k3_kernel")
    A("s_cmp_ge_u32 s2, 256"); A("s_cbranch_scc1 k3_done")
    G.stamp(A, 0); G.stamp(A, 1, True)
    A("s_load_dwordx2 s[4:5], s[0:1], %d" % KA["x"])
    A("s_load_dwordx4 s[8:11], s[0:1], %d" % KA["wd"])
    A("s_load_dwordx2 s[6:7], s[0:1], %d" % KA["ws"])
    A("s_bfe_u32 s44, s2, 0x10003"); A("s_bfe_u32 s42, s2, 0x20001"); A("s_lshl_b32 s42, s42, 2"); A("s_bfe_u32 s43, s2, 0x20004"); A("s_add_u32 s42, s42, s43")
    A("s_and_b32 s43, s2, 1"); A("s_lshl_b32 s43, s43, 2"); A("s_lshr_b32 s46, s2, 6"); A("s_add_u32 s43, s43, s46")
    A("s_mov_b32 s58, s44")
    A("s_getreg_b32 s60, hwreg(HW_REG_XCC_ID, 0, 4)"); A("s_add_u32 s60, s60, 1")
    A("v_and_b32 v1, 63, v0"); A("v_lshrrev_b32 v2, 6, v0")
    A("v_readfirstlane_b32 s45, v2")
    A("v_lshlrev_b32 v3, 4, v1")
    A("v_and_b32 v20, 15, v1"); A("v_lshlrev_b32 v4, 4, v20"); A("v_lshl_add_u32 v4, v2, 11, v4")
    A("v_bfe_u32 v21, v1, 4, 1"); A("v_lshl_add_u32 v4, v21, 10, v4"); A("v_lshrrev_b32 v22, 5, v1"); A("v_lshl_add_u32 v4, v22, 8, v4")
    A("v_bfe_u32 v23, v1, 2, 2")
    A("v_lshl_add_u32 v24, v22, 2, v23"); A("v_lshlrev_b32 v24, 8, v24"); A("v_and_b32 v25, 3, v1"); A("v_lshl_add_u32 v24, v25, 3, v24")
    A("v_lshl_or_b32 v25, v23, 1, v22"); A("v_xor_b32 v25, v25, v21"); A("s_lshl_b32 s46, s58, 2"); A("v_xor_b32 v25, s46, v25")
    for t in range(4):
        A("v_xor_b32 v26, %d, v25" % (2 * t)); A("v_lshl_add_u32 v%d, v26, 5, v24" % (12 + t))
    A("v_lshrrev_b32 v21, 4, v1")
    A("v_lshl_add_u32 v23, v2, 5, v21"); A("v_lshlrev_b32 v23, 11, v23")
    A("v_lshlrev_b32 v22, 2, v21"); A("v_xor_b32 v22, v22, v20")
    for p in range(4):
        A("v_xor_b32 v24, %d, v22" % (2 * (p & 1)))
        A("v_lshl_add_u32 v%d, v24, 4, v23" % (8 + p))
        if p: A("v_add_u32 v%d, 0x%x, v%d" % (8 + p, p * (4 * 2048 - 1024), 8 + p))
    A("s_mul_i32 s32, s42, 112"); A("s_mul_i32 s46, s44, 56"); A("s_add_u32 s32, s32, s46"); A("s_lshl_b32 s32, s32, 13")
    A("s_mul_i32 s46, s44, %d" % (1792 * 2048)); A("s_lshl_b32 s33, s43, 8"); A("s_add_u32 s33, s33, s46")
    A("s_lshl_b32 s34, s45, 13")
    A("s_waitcnt lgkmcnt(0)")
    G.srd(A, 12, 6, G.WS_H, G.SZ_H); A("s_add_u32 s14, s32, %d" % (56 * 8192))
    G.srd(A, 16, 8, 0, 3584 * 2048); A("s_add_u32 s18, s46, %d" % (1792 * 2048))
    ACC = 32
    AF, HR = 0, 128
    def dma(par, p):
        o = []
        if p % 4 == 0: o.append("s_add_u32 m0, s34, 0x%x" % (par * 32768 + (p >> 2) * 4096))
        o.append("buffer_load_dwordx4 v%d, s[16:19], s33 offen offset:%d lds" % (8 + (p & 3), (p & 3) * 1024) if p & 3 else "buffer_load_dwordx4 v8, s[16:19], s33 offen lds")
        if p == 3: o.append("s_add_u32 s33, s33, 0x8000")
        if p == 7:
            o.append("s_add_u32 s33, s33, 0x%x" % (128 * 2048 - 0x8000))
            if par == 1: o.append("s_xor_b32 s34, s34, 0x10000")
        return o
    def hload(s, kk):
        r = HR + 8 * (s & 7) + 4 * kk
        o = ["buffer_load_dwordx4 a[%d:%d], v4, s[12:15], s32 offen offset:%d" % (r, r + 3, kk * 512)]
        if kk: o.append("s_add_u32 s32, s32, 0x2000")
        return o
    def reads(s):
        o = []
        for kk in range(2):
            for t in range(4):
                for h in range(2):
                    r = AF + 32 * (s & 3) + 16 * kk + 4 * t + 2 * h
                    o.append("ds_read_b64_tr_b16 a[%d:%d], v%d offset:%d" % (r, r + 1, 12 + t, (s & 7) * 8192 + h * 4096 + kk * 2048))
        return o
    def dma_of(s):
        u = (s + 2) & 7; par = u >> 2; p = 2 * (u & 3)
        return dma(par, p), dma(par, p + 1)
    def kstep(s):
        if (s & 3) == 2:
            A("s_waitcnt vmcnt(%d) lgkmcnt(15)" % int(os.environ.get("K3WIN", "17"))); A("s_barrier")
        else: A("s_waitcnt vmcnt(%d) lgkmcnt(15)" % int(os.environ.get("K3WIN", "28")))
        rd = reads(s + 2); d0, d1 = dma_of(s)
        cnt = [2] * 8
        k = 0
        for kk in range(2):
            for t in range(4):
                d = ACC + 16 * t; a = AF + 32 * (s & 3) + 16 * kk + 4 * t; b = HR + 8 * (s & 7) + 4 * kk
                if not os.environ.get("K3NOMM"): A("%s v[%d:%d], a[%d:%d], a[%d:%d], v[%d:%d]" % (MF, d, d + 15, a, a + 3, b, b + 3, d, d + 15))
                if (s & 7) == 6 and kk == 0 and t == 0:
                    for tt in range(4): A("v_xor_b32 v%d, 0x10000, v%d" % (12 + tt, 12 + tt))
                for _ in range(cnt[4 * kk + t]):
                    if os.environ.get("K3NOMM", "") != "2": A(rd[k])
                    k += 1
                if t == 1:
                    for y in (d0 if kk == 0 else d1): A(y)
                if s == 0 and kk == 0 and t == 2: A("buffer_load_dword v24, v22, s[52:55], s41 offen sc1")
            for y in hload(s, kk): A(y)
    for p in range(4):
        for y in dma(0, p): A(y)
    for s in range(-8, 0):
        d0, d1 = dma_of(s)
        for y in d0 + hload(s, 0) + d1 + hload(s, 1): A(y)
    for i in range(64): A("v_mov_b32 v%d, 0" % (ACC + i))
    G.srd(A, 20, 6, G.WS_S, G.SZ_S); G.srd(A, 24, 4, 0, 4 << 20); G.srd(A, 28, 10, 0, 4 << 20)
    G.srd(A, 52, 6, G.WS_FL, G.SZ_FL)
    A("v_lshrrev_b32 v20, 3, v1"); A("v_lshlrev_b32 v20, 18, v20"); A("v_lshl_add_u32 v20, v2, 12, v20")
    A("v_and_b32 v21, 7, v1"); A("v_lshl_add_u32 v20, v21, 4, v20")
    A("s_lshl_b32 s38, s42, 14"); A("s_lshl_b32 s39, s43, 8"); A("s_add_u32 s38, s38, s39"); A("s_lshl_b32 s39, s58, 7"); A("s_add_u32 s38, s38, s39")
    A("s_add_u32 s39, s38, 0x200000")
    XR, SR, PR = 96, 112, 128
    for i in range(4):
        A("buffer_load_dwordx4 v[%d:%d], v20, s[24:27], s%d offen offset:%d" % (XR + 4 * i, XR + 4 * i + 3, 38 + (i & 1), (i >> 1) * 2048))
        A("buffer_load_dwordx4 v[%d:%d], v20, s[20:23], s%d offen offset:%d" % (SR + 4 * i, SR + 4 * i + 3, 38 + (i & 1), (i >> 1) * 2048))
    A("s_lshl_b32 s40, s2, 9"); A("s_lshl_b32 s41, s45, 7"); A("s_add_u32 s40, s40, s41"); A("s_xor_b32 s41, s40, 0x1000")
    A("v_mov_b32 v22, 0"); A("v_mov_b32 v23, s60")
    A("s_mov_b64 exec, 1")
    A("buffer_store_dword v23, v22, s[52:55], s40 offen sc1")
    A("s_mov_b64 exec, -1")
    A("v_and_b32 v21, 31, v1"); A("v_mul_u32_u24 v16, 144, v21"); A("v_lshrrev_b32 v21, 5, v1"); A("v_lshl_add_u32 v16, v21, 3, v16"); A("v_lshl_add_u32 v16, v2, 13, v16")
    A("v_lshrrev_b32 v21, 3, v1"); A("v_mul_u32_u24 v17, 144, v21"); A("v_and_b32 v21, 7, v1"); A("v_lshl_add_u32 v17, v21, 4, v17"); A("v_lshl_add_u32 v17, v2, 13, v17")
    G.stamp(A, 2)
    A("s_waitcnt vmcnt(34)"); A("s_barrier")
    G.stamp(A, 3)
    for x in reads(0) + reads(1): A(x)
    G.stamp(A, 4)
    A("s_mov_b32 s35, 7")
    A.raw(".p2align 6")
    A.label("g2_loop")
    for s in range(8): kstep(s)
    if os.environ.get("K3IT"):
        for it, k in ((6, 10),):
            A("s_cmp_eq_u32 s35, %d" % it); A("s_cbranch_scc0 k3it%d" % it); G.stamp(A, k); A.label("k3it%d" % it)
    A("s_sub_u32 s35, s35, 1"); A("s_cmp_lg_u32 s35, 0"); A("s_cbranch_scc1 g2_loop")
    G.stamp(A, 5)
    for i in range(16): A("v_cvt_pk_bf16_f32 v%d, v%d, v%d" % (PR + i, ACC + 32 + 2 * i, ACC + 33 + 2 * i))
    A("s_xor_b32 s36, s38, 0x80"); A("s_xor_b32 s37, s39, 0x80")
    nl2e = -math.log2(math.e)
    A("s_mov_b32 s56, 0x%x" % G.f32(nl2e)); A("s_mov_b32 s57, s56"); A("s_mov_b32 s59, 0xffff0000")
    A("v_mov_b32 v26, 1.0"); A("v_mov_b32 v27, 1.0")
    A("s_waitcnt vmcnt(0) lgkmcnt(0)")
    A("v_readfirstlane_b32 s46, v24")
    A("s_cmp_eq_u32 s46, s60"); A("s_cbranch_scc1 k3_near")
    for fl in (" sc1", ""):
        for i in range(4):
            A("buffer_store_dwordx4 v[%d:%d], v20, s[28:31], s%d offen offset:%d%s" % (PR + 4 * i, PR + 4 * i + 3, 36 + (i & 1), (i >> 1) * 2048, fl))
        A("s_waitcnt vmcnt(0)")
        A("s_mov_b64 exec, 1")
        A("buffer_store_dword v23, v22, s[52:55], s40 offen offset:64%s" % fl)
        A("s_mov_b64 exec, -1")
        if fl:
            A("s_branch k3_sent"); A.label("k3_near")
    A.label("k3_sent")
    if os.environ.get("K3IT"): G.stamp(A, 2)
    A("s_barrier")
    A("s_mov_b32 s47, 0x20000")
    A.label("k3_poll")
    A("buffer_load_dword v24, v22, s[52:55], s41 offen offset:64 sc1")
    A("s_waitcnt vmcnt(0)")
    A("v_readfirstlane_b32 s46, v24")
    A("s_sub_u32 s47, s47, 1"); A("s_cmp_eq_u32 s47, 0"); A("s_cbranch_scc1 k3_go")
    A("s_cmp_eq_u32 s46, 0"); A("s_cbranch_scc1 k3_poll")
    A.label("k3_go")
    G.stamp(A, 6)
    if os.environ.get("K3IT"): A("s_mov_b32 s94, s47")
    UX, US = 160, 192
    PB = 64
    for i in range(4):
        A("buffer_load_dwordx4 v[%d:%d], v20, s[28:31], s%d offen offset:%d sc1" % (PB + 4 * i, PB + 4 * i + 3, 38 + (i & 1), (i >> 1) * 2048))
    def unp(i):
        A("v_lshlrev_b32 v%d, 16, v%d" % (UX + 2 * i, XR + i)); A("v_and_b32 v%d, s59, v%d" % (UX + 2 * i + 1, XR + i))
        A("v_lshlrev_b32 v%d, 16, v%d" % (US + 2 * i, SR + i)); A("v_and_b32 v%d, s59, v%d" % (US + 2 * i + 1, SR + i))
    for i in range(16): unp(i)
    def p2(r): return "v[%d:%d]" % (r, r + 1)
    H4 = range(0, 8, 2)
    for t in range(4):
        b = 8 * t; T = 224 + 8 * (t & 1)
        A("s_waitcnt vmcnt(%d)" % (3 - t))
        if t == 0 and os.environ.get("K3IT"): G.stamp(A, 3)
        for e in range(4):
            A("v_lshlrev_b32 v%d, 16, v%d" % (T + 2 * e, PB + 4 * t + e)); A("v_and_b32 v%d, s59, v%d" % (T + 2 * e + 1, PB + 4 * t + e))
        for e in H4: A("v_pk_add_f32 %s, %s, %s" % (p2(ACC + b + e), p2(ACC + b + e), p2(T + e)))
        for e in H4: A("v_pk_mul_f32 %s, %s, s[56:57]" % (p2(T + e), p2(ACC + b + e)))
        for e in range(8): A("v_exp_f32 v%d, v%d" % (T + e, T + e))
        A("s_nop 0")
        for e in H4: A("v_pk_add_f32 %s, %s, v[26:27]" % (p2(T + e), p2(T + e)))
        for e in range(8): A("v_rcp_f32 v%d, v%d" % (T + e, T + e))
        A("s_nop 0")
        for e in H4: A("v_pk_mul_f32 %s, %s, %s" % (p2(ACC + b + e), p2(ACC + b + e), p2(T + e)))
        for e in range(4): A("v_cvt_pk_bf16_f32 v%d, v%d, v%d" % (PR + b + e, ACC + b + 2 * e, ACC + b + 2 * e + 1))
        for u in range(2):
            A("ds_write_b64 v16, %s offset:%d" % (p2(PR + b + 2 * u), (t >> 1) * 64 + (2 * (t & 1) + u) * 16))
    A("s_waitcnt lgkmcnt(0)")
    for i in range(4): A("ds_read_b128 v[%d:%d], v17 offset:%d" % (ACC + 4 * i, ACC + 4 * i + 3, i * 8 * 144))
    for i in range(4):
        A("s_waitcnt lgkmcnt(%d)" % (3 - i))
        T = 224 + 8 * (i & 1)
        for e in range(4):
            A("v_lshlrev_b32 v%d, 16, v%d" % (T + 2 * e, ACC + 4 * i + e)); A("v_and_b32 v%d, s59, v%d" % (T + 2 * e + 1, ACC + 4 * i + e))
        for e in H4: A("v_pk_fma_f32 %s, %s, %s, %s" % (p2(UX + 8 * i + e), p2(US + 8 * i + e), p2(T + e), p2(UX + 8 * i + e)))
        for e in range(4): A("v_cvt_pk_bf16_f32 v%d, v%d, v%d" % (XR + 4 * i + e, UX + 8 * i + 2 * e, UX + 8 * i + 2 * e + 1))
        A("buffer_store_dwordx4 v[%d:%d], v20, s[28:31], s%d offen offset:%d" % (XR + 4 * i, XR + 4 * i + 3, 38 + (i & 1), (i >> 1) * 2048))
    G.stamp(A, 7)
    if G.STAMP: A("s_waitcnt vmcnt(0)")
    G.stamp(A, 8); G.stamp(A, 9, True)
    G.stamp_out(A, 2, 12 if os.environ.get("K3IT") else 10, 6, "k3")
    A.label("k3_done"); A("s_endpgm")
    A.fix()
    return A.text() + G.kernel_desc("k3_kernel", 448, 256, 64)
```

```python
import sys, math, os
from asmlib import *
import gen as G
from gen import f32, bf16, TAB, KA, NAME, allreduce_add, stamp, STAMP

KN = NAME + "_kernel"
WS_XN = 0;            SZ_XN = 4 << 20
WS_Y = 4 << 20;       SZ_Y = 4 << 20
WS_WT = 8 << 20;      SZ_WT = 514 * 8192
WS_Z = 13 << 20;      SZ_Z = 4 << 20
WS_S = 17 << 20;      SZ_S = 4 << 20
WS_H = 21 << 20;      SZ_H = 16 * 112 * 8192
WS_FL = 35 << 20;     SZ_FL = 0x80000
F1, F2, F3, FB, FS, FH, FX = 0, 0x8000, 0x10000, 0x18000, 0x20000, 0x40000, 0x60000
LDS_SCR = 128 * 1024
LDS_SIZE = LDS_SCR + 8 * 2080
MF = "v_mfma_f32_16x16x32_bf16"
MF32 = "v_mfma_f32_32x32x16_bf16"
PX, PWR, PWI, PWG, PWU, PWD, POUT, PDBG, PWS = 4, 6, 8, 12, 14, 16, 18, 20, 22
SFL, STAB, SDBG = 24, 28, 32
TOK, WAVE = 70, 3
ENV = os.environ.get
BULK = ENV('BULK', ' sc1')

def srd(A, d, base, off, size): G.srd(A, d, base, off, size)
def q(f, r): return "%s[%d:%d]" % (f, r, r + 3)
def p2(r): return "v[%d:%d]" % (r, r + 1)

def set_flag(A, soff, vz, vt):
    A("v_mov_b32 v%d, s%d" % (vt, TOK))
    A("s_mov_b64 exec, 1")
    A("buffer_store_dword v%d, v%d, s[%d:%d], s%d offen sc1" % (vt, vz, SFL, SFL + 3, soff))
    A("s_mov_b64 exec, -1")

def set_flag_w0(A, tag, soff, vz, vt):
    A("s_cmp_lg_u32 s%d, 0" % WAVE); A("s_cbranch_scc1 sf_%s" % tag)
    set_flag(A, soff, vz, vt)
    A.label("sf_%s" % tag)

def poll(A, tag, soff, vaddr, vd, nl, width=1, first_hook=None, sleep=2):
    A("s_mov_b32 s68, 0x20000")
    ld = {1: "buffer_load_dword v%d" % vd, 4: "buffer_load_dwordx4 v[%d:%d]" % (vd, vd + 3)}[width]
    def rnd():
        if nl < 64: A("s_bfm_b64 exec, %d, 0" % nl)
        A("%s, v%d, s[%d:%d], s%d offen sc1" % (ld, vaddr, SFL, SFL + 3, soff))
        if nl < 64: A("s_mov_b64 exec, -1")
        A("s_waitcnt vmcnt(0)")
    def chk():
        if width == 4:
            for i in range(4): A("v_xor_b32 v%d, s%d, v%d" % (vd + i, TOK, vd + i))
            A("v_or3_b32 v%d, v%d, v%d, v%d" % (vd, vd, vd + 1, vd + 2)); A("v_or_b32 v%d, v%d, v%d" % (vd, vd, vd + 3))
            A("v_cmp_ne_u32 vcc, 0, v%d" % vd)
        else: A("v_cmp_ne_u32 vcc, s%d, v%d" % (TOK, vd))
        if nl < 64:
            A("s_nop 1")
            A("s_bfm_b64 s[66:67], %d, 0" % nl); A("s_and_b64 vcc, vcc, s[66:67]")
        A("s_nop 3")
    if first_hook:
        rnd(); first_hook(); chk(); A("s_cbranch_vccz pd_%s" % tag)
    A.label("pl_%s" % tag)
    rnd(); chk()
    A("s_cbranch_vccz pd_%s" % tag)
    A("s_sleep %d" % sleep)
    A("s_sub_u32 s68, s68, 1"); A("s_cmp_lg_u32 s68, 0"); A("s_cbranch_scc1 pl_%s" % tag)
    A.label("pd_%s" % tag)

VWD = 244
def g1_decode(A):
    A("s_and_b32 s40, s2, 7"); A("s_lshr_b32 s41, s2, 3"); A("s_sub_u32 s41, s41, 4")
    A("s_and_b32 s42, s40, 1"); A("s_lshl_b32 s42, s42, 2"); A("s_and_b32 s43, s41, 3"); A("s_add_u32 s42, s42, s43")
    A("s_lshr_b32 s43, s40, 1"); A("s_mul_i32 s43, s43, 7"); A("s_lshr_b32 s44, s41, 2"); A("s_add_u32 s43, s43, s44")
    A("s_and_b32 s46, s%d, 1" % WAVE); A("s_lshr_b32 s47, s%d, 1" % WAVE)
def dmaX(buf):
    o = [["s_add_u32 m0, s64, 0x%x" % (buf * 32768), "buffer_load_dwordx4 v3, s[48:51], s60 offen%s lds" % BULK]]
    for p in range(1, 4): o.append(["buffer_load_dwordx4 v3, s[48:51], s60 offen offset:%d%s lds" % (p * 1024, BULK)])
    o[-1].append("s_add_u32 s60, s60, 0x4000")
    return o
def dmaW(buf, v):
    return [["s_add_u32 m0, s65, 0x%x" % (buf * 32768), "buffer_load_dwordx4 v%d, s[52:55], s61 offen lds" % v],
            ["buffer_load_dwordx4 v%d, s[52:55], s62 offen offset:1024 lds" % v],
            ["buffer_load_dwordx4 v%d, s[56:59], s61 offen offset:2048 lds" % v, "s_add_u32 s61, s61, %d" % (32 * 7168)],
            ["buffer_load_dwordx4 v%d, s[56:59], s62 offen offset:3072 lds" % v, "s_add_u32 s62, s62, %d" % (32 * 7168)]]
def flat(A, l):
    for x in l:
        for y in x: A(y)

def phase_a(A):
    RS = 2080; XS = LDS_SCR; YT = 96 * 1024
    A("s_load_dwordx16 s[4:19], s[0:1], 0"); A("s_load_dwordx4 s[20:23], s[0:1], 64")
    A("s_memrealtime s[66:67]")
    G.tab_srd(A, STAB, "a")
    A("v_and_b32 v1, 63, v0"); A("v_lshrrev_b32 v2, 6, v0")
    A("v_readfirstlane_b32 s%d, v2" % WAVE)
    A("v_lshlrev_b32 v3, 4, v1")
    A("s_and_b32 s36, s2, 7"); A("s_bfe_u32 s37, s2, 0x10003"); A("s_lshr_b32 s38, s2, 4")
    A("s_lshl_b32 s39, s38, 3"); A("s_add_u32 s39, s39, s36")
    A("s_lshl_b32 s44, s37, 21"); A("s_lshl_b32 s45, s39, 11"); A("s_add_u32 s63, s44, s45"); A("s_add_u32 s69, s63, 0x40000")
    A("v_lshl_add_u32 v4, v2, 19, v3")
    g1_decode(A)
    A("v_lshrrev_b32 v5, 4, v1"); A("s_lshl_b32 s48, s46, 2"); A("v_add_u32 v5, s48, v5")
    A("v_lshlrev_b32 v6, 1, v5"); A("v_and_b32 v7, 15, v1"); A("v_xor_b32 v6, v6, v7")
    A("s_lshl_b32 s48, s47, 4"); A("v_add_u32 v5, s48, v5")
    A("v_mul_u32_u24 v5, 7168, v5"); A("v_lshl_add_u32 v%d, v6, 4, v5" % VWD)
    A("s_lshl_b32 s61, s43, 8"); A("s_add_u32 s62, s61, %d" % (57344 - 1024))
    A("s_lshl_b32 s64, s%d, 12" % WAVE); A("s_add_u32 s65, s64, 0x4000")
    A("s_lshl_b32 s60, s42, 19"); A("s_add_u32 s60, s60, s64")
    A("s_waitcnt lgkmcnt(0)")
    srd(A, 48, PX, 0, 4 << 20)
    X = 8
    A("buffer_load_dwordx4 v[8:11], v4, s[48:51], s63 offen")
    A("buffer_load_dwordx4 v[12:15], v4, s[48:51], s63 offen offset:1024")
    A("buffer_load_dwordx4 v[16:19], v4, s[48:51], s69 offen")
    A("buffer_load_dwordx4 v[20:23], v4, s[48:51], s69 offen offset:1024")
    srd(A, SDBG, PDBG, 0, 256); srd(A, SFL, PWS, WS_FL, SZ_FL)
    VZ = 245
    A("v_mov_b32 v%d, 0" % VZ)
    A("s_or_b32 s44, s2, s%d" % WAVE); A("s_cmp_lg_u32 s44, 0"); A("s_cbranch_scc1 a_notok")
    A("s_or_b32 s66, s66, 1"); A("v_mov_b32 v246, s66")
    A("s_mov_b64 exec, 1")
    A("buffer_store_dword v246, v%d, s[%d:%d], 0 offen sc1" % (VZ, SDBG, SDBG + 3))
    A("s_mov_b64 exec, -1")
    A.label("a_notok")
    F1r = 64; TW = 72; F2r = 88; F2S = 120
    names = [("f1re", F1r), ("f1im", F1r + 4)]
    for bh in range(2):
        for t in range(2): names.append(("tw%d%d" % (bh, t), TW + 8 * bh + 4 * t))
    for dh in range(2):
        for part in range(2):
            for bh in range(2): names.append(("f2_%d%d%d" % (dh, part, bh), F2r + 16 * dh + 8 * part + 4 * bh))
    for part in range(2):
        for bh in range(2): names.append(("f2s_%d%d" % (part, bh), F2S + 8 * part + 4 * bh))
    WSZ = 2048 * 1026
    HL = 200; AB = 248
    def rel_loads():
        srd(A, 52, PWR, 0, WSZ); srd(A, 56, PWI, 0, WSZ)
        A("s_bfe_u32 s40, s2, 0x10002"); A("s_lshl_b32 s40, s40, 3"); A("s_lshr_b32 s41, s2, 3"); A("s_lshl_b32 s41, s41, 6"); A("s_add_u32 s40, s40, s41")
        A("s_mul_i32 s40, s40, 1026"); A("s_and_b32 s41, s2, 3"); A("s_lshl_b32 s41, s41, 8"); A("s_add_u32 s40, s40, s41")
        A("v_and_b32 v232, 7, v0"); A("v_lshrrev_b32 v233, 3, v0")
        A("v_mul_u32_u24 v234, 1026, v232"); A("v_lshl_add_u32 v234, v233, 3, v234"); A("v_and_b32 v234, -4, v234")
        A("v_lshlrev_b32 v235, 15, v233"); A("v_lshl_add_u32 v235, v232, 4, v235")
        for r in range(4):
            A("s_add_u32 s41, s40, %d" % (16 * r * 1026))
            A("buffer_load_dwordx3 v[%d:%d], v234, s[52:55], s41 offen" % (HL + 8 * r, HL + 8 * r + 2))
            A("buffer_load_dwordx3 v[%d:%d], v234, s[56:59], s41 offen" % (HL + 8 * r + 4, HL + 8 * r + 6))
        A("s_lshl_b32 s41, s2, 3"); A("v_add_u32 v236, s41, v232")
        A("v_sub_u32 v237, 2048, v236"); A("v_and_b32 v237, 0x7ff, v237")
        A("v_mul_u32_u24 v238, 1026, v236"); A("v_mul_u32_u24 v237, 1026, v237")
        A("s_mov_b64 exec, 0xff")
        for i, (va, sd, off) in enumerate([(238, 52, 0), (238, 56, 0), (237, 52, 0), (237, 56, 0), (238, 52, 1024), (238, 56, 1024), (237, 52, 1024), (237, 56, 1024)]):
            A("buffer_load_ushort v%d, v%d, s[%d:%d], 0 offen offset:%d" % (AB + i, va, sd, sd + 3, off))
        A("s_mov_b64 exec, -1")
    RELPOS = ENV("RELPOS", "1")
    NY = 0
    if RELPOS == "0": rel_loads(); NY += 16
    A("s_cmp_lt_u32 s2, 32"); A("s_cbranch_scc1 a_now")
    srd(A, 52, PWG, 0, 1024 * 7168); srd(A, 56, PWU, -2048, 1024 * 7168 + 2048)
    for b in range(3): flat(A, dmaW(b, VWD))
    A("s_waitcnt vmcnt(%d)" % (NY + 12)); A("s_branch a_w")
    A.label("a_now")
    A("s_waitcnt vmcnt(%d)" % NY)
    A.label("a_w")
    stamp(A, 2)
    A0 = A; A = Asm()
    A("s_mov_b32 s45, 0xffff0000")
    U = 24
    for row in range(2):
        for i in range(8):
            A("v_lshlrev_b32 v%d, 16, v%d" % (U + 16 * row + 2 * i, X + 8 * row + i))
            A("v_and_b32 v%d, s45, v%d" % (U + 16 * row + 2 * i + 1, X + 8 * row + i))
    S = [56, 57]; T = [58, 59]; Q = [60, 61]
    def tree(dst):
        for row in range(2):
            b = X + 8 * row
            A("v_pk_add_f32 %s, %s, %s" % (p2(b), p2(b), p2(b + 4))); A("v_pk_add_f32 %s, %s, %s" % (p2(b + 2), p2(b + 2), p2(b + 6)))
        for row in range(2): A("v_pk_add_f32 %s, %s, %s" % (p2(X + 8 * row), p2(X + 8 * row), p2(X + 8 * row + 2)))
        for row in range(2): A("v_add_f32 v%d, v%d, v%d" % (dst[row], X + 8 * row, X + 8 * row + 1))
    for row in range(2):
        for i in range(4): A("v_pk_add_f32 %s, %s, %s" % (p2(X + 8 * row + 2 * i), p2(U + 16 * row + 2 * i), p2(U + 16 * row + 8 + 2 * i)))
    tree(S)
    allreduce_add(A, S, T)
    A("s_mov_b32 s44, 0x%x" % f32(1.0 / 1024))
    for row in range(2): A("v_mul_f32 v%d, s44, v%d" % (S[row], S[row]))
    DV = 164
    sel = lambda row: " op_sel:[0,%d] op_sel_hi:[1,%d] neg_lo:[0,1] neg_hi:[0,1]" % (row, row)
    for row in range(2):
        for i in range(8): A("v_pk_add_f32 %s, %s, v[56:57]%s" % (p2(DV + 16 * row + 2 * i), p2(U + 16 * row + 2 * i), sel(row)))
    for row in range(2):
        for i in range(4): A("v_pk_mul_f32 %s, %s, %s" % (p2(X + 8 * row + 2 * i), p2(DV + 16 * row + 2 * i), p2(DV + 16 * row + 2 * i)))
    for row in range(2):
        for i in range(4): A("v_pk_fma_f32 %s, %s, %s, %s" % (p2(X + 8 * row + 2 * i), p2(DV + 16 * row + 8 + 2 * i), p2(DV + 16 * row + 8 + 2 * i), p2(X + 8 * row + 2 * i)))
    tree(Q)
    A("v_cvt_pk_bf16_f32 v62, v56, v57")
    allreduce_add(A, Q, T)
    A("v_lshlrev_b32 v56, 16, v62"); A("v_and_b32 v57, s45, v62")
    for row in range(2): A("v_mul_f32 v%d, s44, v%d" % (Q[row], Q[row]))
    def rnd2():
        A("v_cvt_pk_bf16_f32 v58, v60, v61"); A("v_lshlrev_b32 v60, 16, v58"); A("v_and_b32 v61, s45, v58")
    rnd2()
    for row in range(2): A("v_add_f32 v%d, 0x%x, v%d" % (Q[row], f32(1e-5), Q[row]))
    rnd2()
    for row in range(2): A("v_sqrt_f32 v%d, v%d" % (Q[row], Q[row]))
    rnd2()
    for row in range(2): A("v_rcp_f32 v%d, v%d" % (Q[row], Q[row]))
    XW = 141
    A("v_mul_u32_u24 v%d, %d, v2" % (XW, 2 * RS)); A("v_add_u32 v%d, v%d, v3" % (XW, XW)); A("v_add_u32 v%d, 0x%x, v%d" % (XW, XS, XW))
    for row in range(2):
        b = U + 16 * row
        for i in range(8): A("v_pk_add_f32 %s, %s, v[56:57]%s" % (p2(b + 2 * i), p2(b + 2 * i), sel(row)))
        for i in range(8): A("v_cvt_pk_bf16_f32 v%d, v%d, v%d" % (X + 8 * row + i, b + 2 * i, b + 2 * i + 1))
        for i in range(8):
            A("v_lshlrev_b32 v%d, 16, v%d" % (b + 2 * i, X + 8 * row + i)); A("v_and_b32 v%d, s45, v%d" % (b + 2 * i + 1, X + 8 * row + i))
        for i in range(8): A("v_pk_mul_f32 %s, %s, v[60:61] op_sel:[0,%d] op_sel_hi:[1,%d]" % (p2(b + 2 * i), p2(b + 2 * i), row, row))
        for i in range(8): A("v_cvt_pk_bf16_f32 v%d, v%d, v%d" % (X + 8 * row + i, b + 2 * i, b + 2 * i + 1))
        A("ds_write_b128 v%d, v[%d:%d] offset:%d" % (XW, X + 8 * row, X + 8 * row + 3, row * RS))
        A("ds_write_b128 v%d, v[%d:%d] offset:%d" % (XW, X + 8 * row + 4, X + 8 * row + 7, row * RS + 1024))
    ln = A.items; A = A0
    tl = []
    for nm, r in names:
        B = Asm(); G.tab_load(B, vr(r, 4), nm, 3, STAB, 71); tl.append(B.items)
    stride = (len(ln) - 20) // len(tl)
    for i, it in enumerate(ln):
        A.items.append(it)
        if i % stride == 0 and i // stride < len(tl): A.items += tl[i // stride]
    TR, XR, XG = 142, 143, 144
    A("v_lshrrev_b32 v7, 2, v1"); A("v_lshlrev_b32 v7, 6, v7"); A("v_and_b32 v%d, 3, v1" % TR)
    A("v_lshl_add_u32 v7, v%d, 3, v7" % TR); A("v_mul_u32_u24 v%d, %d, v2" % (TR, 2 * RS)); A("v_add_u32 v%d, v%d, v7" % (TR, TR)); A("v_add_u32 v%d, 0x%x, v%d" % (TR, XS, TR))
    A("v_and_b32 v7, 7, v1"); A("v_mul_u32_u24 v%d, %d, v7" % (XR, RS)); A("v_lshlrev_b32 v%d, 4, v7" % XG)
    A("v_bfe_u32 v7, v1, 3, 2"); A("v_lshl_add_u32 v%d, v7, 3, v%d" % (XR, XR)); A("v_lshl_add_u32 v%d, v7, 8, v%d" % (XG, XG))
    A("v_lshrrev_b32 v7, 5, v0"); A("v_lshl_add_u32 v%d, v7, 6, v%d" % (XR, XR)); A("v_lshl_add_u32 v%d, v7, 14, v%d" % (XG, XG))
    A("v_add_u32 v%d, 0x%x, v%d" % (XR, XS, XR))
    A("s_lshr_b32 s40, s39, 4"); A("s_lshl_b32 s40, s40, 19"); A("s_and_b32 s41, s39, 15"); A("s_lshl_b32 s41, s41, 10")
    A("s_add_u32 s40, s40, s41"); A("s_lshl_b32 s41, s37, 7"); A("s_add_u32 s40, s40, s41")
    srd(A, 48, PWS, WS_XN, SZ_XN)
    A("s_waitcnt lgkmcnt(0)")
    for row in range(2):
        for bh in range(2):
            for hh in range(2):
                r = X + 8 * row + 4 * bh + 2 * hh
                A("ds_read_b64_tr_b16 v[%d:%d], v%d offset:%d" % (r, r + 1, TR, row * RS + hh * 1024 + bh * 32))
    A("s_barrier")
    XO = 148
    for it in range(4):
        A("ds_read_b64 v[%d:%d], v%d offset:%d" % (XO + 4 * it, XO + 4 * it + 1, XR, it * 512))
        A("ds_read_b64 v[%d:%d], v%d offset:%d" % (XO + 4 * it + 2, XO + 4 * it + 3, XR, it * 512 + 32))
    for it in range(4):
        A("s_add_u32 s41, s40, 0x%x" % (it * 8 * 16384))
        A("s_waitcnt lgkmcnt(%d)" % (6 - 2 * it))
        A("buffer_store_dwordx4 v[%d:%d], v%d, s[48:51], s41 offen sc1" % (XO + 4 * it, XO + 4 * it + 3, XG))
    A("buffer_load_dword v247, v%d, s[%d:%d], 0 offen sc1" % (VZ, SDBG, SDBG + 3))
    stamp(A, 3)
    A("s_waitcnt vmcnt(5)")
    for row in range(2):
        for bh in range(2):
            for part in range(2):
                d = U + 16 * row + 8 * bh + 4 * part
                A("%s %s, %s, %s, 0" % (MF, q("v", d), q("v", X + 8 * row + 4 * bh), q("v", F1r + 4 * part)))
    MG, MP, MQ, YB, YR, YG = 136, 137, 138, 139, 146, 145
    A("v_and_b32 v5, 15, v1"); A("v_cmp_eq_u32 vcc, 0, v5"); A("v_mov_b32 v7, 0xffff")
    A("v_cndmask_b32 v%d, -1, 0, vcc" % MG); A("v_cndmask_b32 v%d, 0, v7, vcc" % MP); A("v_lshlrev_b32 v%d, 16, v%d" % (MQ, MP))
    A("v_and_b32 v7, 3, v1"); A("v_lshlrev_b32 v7, 5, v7"); A("v_lshl_add_u32 v%d, v1, 7, v7" % YB); A("v_lshl_add_u32 v%d, v2, 3, v%d" % (YB, YB))
    A("v_add_u32 v%d, 0x%x, v%d" % (YB, YT, YB))
    for r in range(1, 4): A("v_xor_b32 v%d, %d, v%d" % (196 + r, 32 * r, YB))
    A("v_lshlrev_b32 v%d, 4, v0" % YR); A("v_add_u32 v%d, 0x%x, v%d" % (YR, YT, YR))
    A("v_lshrrev_b32 v7, 3, v0"); A("v_lshlrev_b32 v%d, 15, v7" % YG); A("v_and_b32 v7, 3, v7"); A("v_lshlrev_b32 v7, 1, v7")
    A("v_and_b32 v6, 7, v0"); A("v_xor_b32 v7, v7, v6"); A("v_lshl_add_u32 v%d, v7, 4, v%d" % (YG, YG))
    PP, PQ = 164, 180
    neg = " neg_lo:[1,0,0] neg_hi:[1,0,0]"
    for row in range(2):
        for bh in range(2):
            re = U + 16 * row + 8 * bh; im = re + 4; tc = TW + 8 * bh; ts = tc + 4; t = 56
            for h in (0, 2): A("v_pk_mul_f32 %s, %s, %s" % (p2(t + h), p2(re + h), p2(tc + h)))
            for h in (0, 2): A("v_pk_mul_f32 %s, %s, %s" % (p2(t + 4 + h), p2(im + h), p2(tc + h)))
            for h in (0, 2): A("v_pk_fma_f32 %s, %s, %s, %s" % (p2(t + h), p2(im + h), p2(ts + h), p2(t + h)))
            for h in (0, 2): A("v_pk_fma_f32 %s, %s, %s, %s%s" % (p2(t + 4 + h), p2(re + h), p2(ts + h), p2(t + 4 + h), neg))
            for r in range(4): A("v_cvt_pk_bf16_f32 v%d, v%d, v%d" % (re + r, t + r, t + 4 + r))
            for r in range(4):
                o = 8 * row + 4 * bh + r
                A("v_and_b32 v%d, v%d, v%d" % (X + o, re + r, MG)); A("v_and_b32 v%d, v%d, v%d" % (PP + o, re + r, MP)); A("v_and_b32 v%d, v%d, v%d" % (PQ + o, re + r, MQ))
    for row in range(2):
        for bh in range(2):
            for dh in range(2):
                for part in range(2):
                    d = U + 16 * row + 8 * dh + 4 * part
                    A("%s %s, %s, %s, %s" % (MF, q("v", d), q("v", F2r + 16 * dh + 8 * part + 4 * bh), q("v", X + 8 * row + 4 * bh), "0" if bh == 0 else q("v", d)))
        for bh in range(2):
            for dh in range(2):
                for part in range(2):
                    d = U + 16 * row + 8 * dh + 4 * part
                    A("%s %s, %s, %s, %s" % (MF, q("v", d), q("v", F2S + 8 * part + 4 * bh), q("v", (PP if dh == 0 else PQ) + 8 * row + 4 * bh), q("v", d)))
    YP = 64
    for row in range(2):
        for dh in range(2):
            for r in range(4):
                re = U + 16 * row + 8 * dh + r
                A("v_cvt_pk_bf16_f32 v%d, v%d, v%d" % (YP + 8 * dh + 2 * r + row, re, re + 4))
    for dh in range(2):
        for r in range(4):
            A("ds_write_b64 v%d, %s offset:%d" % (YB if r == 0 else 196 + r, p2(YP + 8 * dh + 2 * r), dh * 8192))
    A("s_waitcnt vmcnt(0) lgkmcnt(0)")
    A("v_readfirstlane_b32 s%d, v247" % TOK)
    A("s_barrier")
    for it in range(4): A("ds_read_b128 v[%d:%d], v%d offset:%d" % (88 + 4 * it, 91 + 4 * it, YR, it * 4096))
    A("s_cmp_lg_u32 s%d, 0" % TOK); A("s_cbranch_scc1 a_tok")
    A("s_mov_b32 s68, 0x20000")
    A.label("a_tokl")
    A("buffer_load_dword v247, v%d, s[%d:%d], 0 offen sc1" % (VZ, SDBG, SDBG + 3)); A("s_waitcnt vmcnt(0)")
    A("v_readfirstlane_b32 s%d, v247" % TOK)
    A("s_sub_u32 s68, s68, 1"); A("s_cmp_eq_u32 s68, 0"); A("s_cbranch_scc1 a_tok")
    A("s_cmp_eq_u32 s%d, 0" % TOK); A("s_cbranch_scc1 a_tokl")
    A.label("a_tok")
    A("s_cmp_lg_u32 s%d, 0" % WAVE); A("s_cbranch_scc1 a_nof1")
    A("s_lshl_b32 s41, s2, 7")
    set_flag(A, 41, VZ, 246)
    A.label("a_nof1")
    stamp(A, 4)
    if RELPOS == "1":
        rel_loads()
        srd(A, 52, PWG, 0, 1024 * 7168); srd(A, 56, PWU, -2048, 1024 * 7168 + 2048)
    A("s_lshl_b32 s69, s36, 12"); A("s_lshl_b32 s41, s38, 8"); A("s_add_u32 s69, s69, s41"); A("s_lshl_b32 s41, s37, 7"); A("s_add_u32 s69, s69, s41")
    A("s_waitcnt lgkmcnt(0)")
    A("s_lshl_b32 s63, s2, 7"); A("s_add_u32 s63, s63, %d" % F2)

def late_stores(A, tag):
    HL = 200; AB = 248
    A("v_and_b32 v239, 1, v0"); A("v_lshlrev_b32 v239, 4, v239")
    for r in range(4):
        for m in range(2):
            b = HL + 8 * r + 4 * m
            A("v_alignbit_b32 v%d, v%d, v%d, v239" % (b, b + 1, b)); A("v_alignbit_b32 v%d, v%d, v%d, v239" % (b + 1, b + 2, b + 1))
    A("s_mov_b32 s66, 0x05040100"); A("s_mov_b32 s67, 0x07060302")
    for c in range(4):
        for r in range(4): A("v_perm_b32 v%d, v%d, v%d, s%d" % (104 + 4 * c + r, HL + 8 * r + 4 + (c >> 1), HL + 8 * r + (c >> 1), 66 + (c & 1)))
    for i in range(8): A("v_lshlrev_b32 v%d, 16, v%d" % (AB + i, AB + i))
    A("v_add_f32 v80, v248, v250"); A("v_sub_f32 v81, v249, v251"); A("v_add_f32 v82, v252, v254"); A("v_sub_f32 v83, v253, v255")
    A("v_add_f32 v84, v80, v82"); A("v_add_f32 v85, v81, v83"); A("v_sub_f32 v86, v80, v82"); A("v_sub_f32 v87, v81, v83")
    for i in range(4): A("v_mul_f32 v%d, 0x3e800000, v%d" % (84 + i, 84 + i))
    A("v_cvt_pk_bf16_f32 v84, v84, v85"); A("v_cvt_pk_bf16_f32 v86, v86, v87")
    A("v_and_b32 v80, 15, v236"); A("v_lshlrev_b32 v80, 4, v80"); A("v_bfe_u32 v81, v236, 4, 2"); A("v_lshl_add_u32 v80, v81, 2, v80")
    A("v_lshrrev_b32 v81, 6, v236"); A("v_lshl_add_u32 v80, v81, 8, v80")
    srd(A, 36, PWS, WS_Y, SZ_Y)
    for it in range(4):
        A("s_add_u32 s41, s69, 0x%x" % (it * 32 * 32768))
        A("buffer_store_dwordx4 v[%d:%d], v145, s[36:39], s41 offen sc1" % (88 + 4 * it, 91 + 4 * it))
    srd(A, 36, PWS, WS_WT, SZ_WT)
    A("s_and_b32 s69, s2, 3"); A("s_lshl_b32 s69, s69, 20"); A("s_lshr_b32 s41, s2, 2"); A("s_lshl_b32 s41, s41, 7"); A("s_add_u32 s69, s69, s41")
    for c in range(4):
        A("s_add_u32 s41, s69, %d" % (c * 8192))
        A("buffer_store_dwordx4 %s, v235, s[36:39], s41 offen sc1" % q("v", 104 + 4 * c))
    A("s_mov_b32 s69, 0x%x" % (512 * 8192)); A("s_mov_b32 s41, 0x%x" % (513 * 8192))
    A("s_cmp_lg_u32 s%d, 0" % WAVE); A("s_cbranch_scc1 ls_noab_%s" % tag)
    A("s_mov_b64 exec, 0xff")
    A("buffer_store_dword v84, v80, s[36:39], s69 offen sc1"); A("buffer_store_dword v86, v80, s[36:39], s41 offen sc1")
    A("s_mov_b64 exec, -1")
    A.label("ls_noab_%s" % tag)

from gen2b import gemm1, colfft, gemm2

def main():
    G.build_tables(); G.build_tables_inv()
    A = Asm(); G.kernel_head(A, KN)
    A("s_cmp_ge_u32 s2, 256"); A("s_cbranch_scc1 k_done")
    stamp(A, 0); stamp(A, 1, True)
    M = sys.modules[__name__]
    phase_a(A)
    A("s_cmp_lt_u32 s2, 32"); A("s_cbranch_scc1 k_fft")
    gemm1(A, M)
    A.label("k_g2")
    gemm2(A, M)
    A("s_endpgm")
    A.label("k_fft")
    colfft(A, M)
    A("s_branch k_g2")
    A.label("k_done"); A("s_endpgm")
    A.fix()
    stub = open("cdna_kernels/%s.s.ref" % NAME).read().split("\n")
    head = [l for l in stub if l.startswith(";") and "@launch" not in l and "Override" not in l and "grid=ceil" not in l]
    o = "\n".join(head[:12]) + "\n"
    if ENV("ASLIST"): o += "; @launch kernel=%s grid=(256,1,1) block=(256,1,1) lds=%d\n" % (KN, LDS_SIZE)
    else: o += "; @launch grid=(256,1,1) block=(256,1,1) lds=%d\n" % LDS_SIZE
    o += '.amdgcn_target "amdgcn-amd-amdhsa--gfx950"\n'
    o += A.text() + G.kernel_desc(KN, 512, 256, 72)
    o += '.section .rodata,"a"\n.p2align 8\n.type gf_tab,@object\ngf_tab:\n'
    for b in TAB.blocks:
        for i in range(0, 256, 8): o += ".long " + ",".join("0x%x" % x for x in b[i:i + 8]) + "\n"
    o += ".size gf_tab, %d\n" % (len(TAB.blocks) * 1024)
    path = sys.argv[1] if len(sys.argv) > 1 else "cdna_kernels/%s.s" % NAME
    open(path, "w").write(o)
    print("wrote", path, len(o), "bytes")

if __name__ == "__main__":
    main()
```

```python
import sys, math, struct
import numpy as np
from asmlib import *

NAME = "recurrent_scan__spectral_gfnet__geglu_ffn__prompt"
WS_XN = 0;            SZ_XN = 4 << 20
WS_Y = 4 << 20;       SZ_Y = 513 * 8192
WS_WT = 9 << 20;      SZ_WT = 513 * 8192
WS_Z = 14 << 20;      SZ_Z = 4 << 20
WS_S = 18 << 20;      SZ_S = 4 << 20
WS_H = 22 << 20;      SZ_H = 16 * 112 * 8192
WS_FL = 36 << 20;     SZ_FL = 131072
WS_XC = 37 << 20;     SZ_XC = 8 << 20
KA = dict(x=0, wr=8, wi=16, bx=24, wg=32, wu=40, wd=48, out=56, dbg=64, ws=72)

import os
STAMP = os.environ.get("STAMP", "") != ""
def f32(x): return struct.unpack("<I", struct.pack("<f", x))[0]
def bf16(x):
    u = f32(x); return ((u + 0x7FFF + ((u >> 16) & 1)) >> 16) & 0xFFFF
def pk(lo, hi): return bf16(lo) | (bf16(hi) << 16)

class Table:
    def __init__(self): self.blocks = []; self.names = {}
    def add(self, name, fn):
        self.names[name] = len(self.blocks)
        self.blocks.append([d for l in range(64) for d in fn(l)])
    def off(self, name): return self.names[name] * 1024
TAB = Table()
def cs(num, den):
    a = 2 * math.pi * (num % den) / den
    c, s = math.cos(a), math.sin(a)
    if abs(c) < 1e-12: c = 0.0
    if abs(s) < 1e-12: s = 0.0
    return c, s

def build_tables():
    def slot_a(g, j): return 4 * g + j if j < 4 else 16 + 4 * g + (j - 4)
    def f1(part):
        def fn(l):
            g, c = l >> 4, l & 15
            v = []
            for j in range(8):
                a = slot_a(g, j)
                if part == 0: v.append(cs(a * c, 32)[0])
                else: v.append(-cs(a * c, 32)[1] if c else cs(a * 16, 32)[0])
            return [pk(v[2 * i], v[2 * i + 1]) for i in range(4)]
        return fn
    TAB.add("f1re", f1(0)); TAB.add("f1im", f1(1))
    for bh in range(2):
        for t in range(2):
            TAB.add("tw%d%d" % (bh, t), lambda l, bh=bh, t=t: [f32(cs((16 * bh + 4 * (l >> 4) + r) * (l & 15), 1024)[t]) for r in range(4)])
    for dh in range(2):
        for part in range(2):
            for bh in range(2):
                def fn(l, dh=dh, part=part, bh=bh):
                    g, i = l >> 4, l & 15
                    d = 16 * dh + i; o = []
                    for r in range(4):
                        b = 16 * bh + 4 * g + r
                        c, s = cs(b * d, 32)
                        if part == 0: o.append(pk(c, s))
                        else: o.append(pk(-s, c) if dh == 0 else pk(s, -c))
                    return o
                TAB.add("f2_%d%d%d" % (dh, part, bh), fn)
    for part in range(2):
        for bh in range(2):
            def fn(l, part=part, bh=bh):
                g, i = l >> 4, l & 15
                o = []
                for r in range(4):
                    b = 16 * bh + 4 * g + r
                    c, s = cs(b * i, 32)
                    lo = c if part == 0 else (-s if i else cs(b * 16, 32)[0])
                    u = 15 - i
                    c2, s2 = cs(b * (2 * u + 1), 64)
                    hi = c2 if part == 0 else -s2
                    o.append(pk(lo, hi))
                return o
            TAB.add("f2s_%d%d" % (part, bh), fn)
    for inv in range(2):
        for part in range(2):
            def fn(l, inv=inv, part=part):
                g, n = l >> 4, l & 15
                o = []
                for jj in range(4):
                    c, s = cs((4 * g + jj) * n, 16)
                    if inv: s = -s
                    o.append(pk(c, s) if part == 0 else pk(-s, c))
                return o
            TAB.add("fa_%d%d" % (inv, part), fn)
    for ih in range(2):
        def fn(l, ih=ih):
            hk, m = l >> 5, l & 31
            if ((m >> 2) & 1) != hk: return [0, 0, 0, 0]
            rho = (m & 3) + 4 * (m >> 3); ep = rho >> 1; part = rho & 1
            o = []
            for jj in range(4):
                c, s = cs((4 * ih + jj) * ep, 8)
                o.append(pk(c, s) if part == 0 else pk(-s, c))
            return o
        TAB.add("fe32_%d" % ih, fn)
    for t in range(2):
        TAB.add("t1_%d" % t, lambda l, t=t: [f32(cs((4 * (l >> 4) + r) * (l & 15), 256)[t]) for r in range(4)])
    for e in range(1, 8):
        for t in range(2):
            TAB.add("t2_%d%d" % (e, t), lambda l, e=e, t=t: [f32(cs(e * ((l & 15) + 16 * (4 * (l >> 4) + r)), 2048)[t]) for r in range(4)])

def build_tables_inv():
    def bmap(n, bh): return 8 * (n >> 2) + 4 * bh + (n & 3)
    for bh in range(2):
        for part in range(2):
            for dh in range(2):
                def fn(l, bh=bh, part=part, dh=dh):
                    g, n = l >> 4, l & 15; b = bmap(n, bh); o = []
                    for r in range(4):
                        c, s = cs(b * (16 * dh + 4 * g + r), 32)
                        sg = 1.0 if dh == 0 else -1.0
                        o.append(pk(c, -s * sg) if part == 0 else pk(s, c * sg))
                    return o
                TAB.add("i1_%d%d%d" % (bh, part, dh), fn)
    for bh in range(2):
        for part in range(2):
            def fn(l, bh=bh, part=part):
                g, n = l >> 4, l & 15; b = bmap(n, bh); o = []
                for r in range(4):
                    d = 4 * g + r
                    if part == 0:
                        if d == 0: o.append(pk(1.0, (-1.0) ** b))
                        else:
                            c, s = cs(b * d, 32); o.append(pk(2 * c, -2 * s))
                    else:
                        u = 15 - d
                        c, s = cs(b * (2 * u + 1), 64); o.append(pk(2 * c, -2 * s))
                return o
            TAB.add("i1s_%d%d" % (bh, part), fn)
    for ah in range(2):
        def fn(l, ah=ah):
            g, n = l >> 4, l & 15; a = 16 * ah + n; o = []; sc = 2.0 ** -21
            for r in range(4):
                c_ = 4 * g + r
                if c_ == 0: o.append(pk(sc, sc * (-1.0) ** a))
                else:
                    c, s = cs(a * c_, 32); o.append(pk(2 * c * sc, -2 * s * sc))
            return o
        TAB.add("i2_%d" % ah, fn)
    for bh in range(2):
        for t in range(2):
            TAB.add("itw%d%d" % (bh, t), lambda l, bh=bh, t=t: [f32(cs(bmap(l & 15, bh) * (4 * (l >> 4) + r), 1024)[t]) for r in range(4)])

def srd(A, d, base, off, size):
    if off >= 0:
        A("s_add_u32 s%d, s%d, 0x%x" % (d, base, off)); A("s_addc_u32 s%d, s%d, 0" % (d + 1, base + 1))
    else:
        A("s_sub_u32 s%d, s%d, 0x%x" % (d, base, -off)); A("s_subb_u32 s%d, s%d, 0" % (d + 1, base + 1))
    A("s_and_b32 s%d, s%d, 0xffff" % (d + 1, d + 1))
    A("s_mov_b32 s%d, 0x%x" % (d + 2, size)); A("s_mov_b32 s%d, 0x20000" % (d + 3))

def tab_srd(A, d, tag):
    A("s_getpc_b64 s[%d:%d]" % (d, d + 1))
    A("s_add_u32 s%d, s%d, gf_tab@rel32@lo+4" % (d, d))
    A("s_addc_u32 s%d, s%d, gf_tab@rel32@hi+12" % (d + 1, d + 1))
    A("s_and_b32 s%d, s%d, 0xffff" % (d + 1, d + 1))
    A("s_mov_b32 s%d, 0x%x" % (d + 2, len(TAB.blocks) * 1024)); A("s_mov_b32 s%d, 0x20000" % (d + 3))

def tab_load(A, dst, name, vlane16, srdt, stmp):
    o = TAB.off(name)
    A("s_mov_b32 s%d, 0x%x" % (stmp, o))
    A("buffer_load_dwordx4 %s, v%d, s[%d:%d], s%d offen" % (dst, vlane16, srdt, srdt + 3, stmp))

def kernel_head(A, name):
    A.raw(".text"); A.raw(".globl %s" % name); A.raw(".p2align 8"); A.raw(".type %s,@function" % name)
    A.label(name)

def kernel_desc(name, nv, acc_off, ns=102):
    if STAMP: ns = 102
    return """.section .rodata,"a"
.p2align 6
.amdhsa_kernel %s
  .amdhsa_next_free_vgpr %d
  .amdhsa_next_free_sgpr %d
  .amdhsa_accum_offset %d
  .amdhsa_group_segment_fixed_size 0
  .amdhsa_kernarg_size 80
  .amdhsa_user_sgpr_count 2
  .amdhsa_user_sgpr_kernarg_segment_ptr 1
  .amdhsa_system_sgpr_workgroup_id_x 1
  .amdhsa_float_denorm_mode_32 3
.end_amdhsa_kernel
""" % (name, nv, ns, acc_off)

def allreduce_add(A, regs, tmps):
    for mod in ("quad_perm:[1,0,3,2]", "quad_perm:[2,3,0,1]", "row_half_mirror", "row_mirror"):
        for r in regs:
            A("v_add_f32_dpp v%d, v%d, v%d %s row_mask:0xf bank_mask:0xf" % (r, r, r, mod))
    for sw in ("v_permlane16_swap_b32", "v_permlane32_swap_b32"):
        for r, t in zip(regs, tmps): A("v_mov_b32 v%d, v%d" % (t, r))
        for r, t in zip(regs, tmps): A("%s v%d, v%d" % (sw, r, t))
        for r, t in zip(regs, tmps): A("v_add_f32 v%d, v%d, v%d" % (r, r, t))

MF = "v_mfma_f32_16x16x32_bf16"

import os
STAMP = os.environ.get("STAMP", "") != ""
WS_STAMP = 64 << 20
def stamp(A, i, real=False, force=False):
    if os.environ.get("CLK") and 2 <= i <= 7 and not force: return
    if os.environ.get("AIT") and 7 <= i <= 10 and not force: return
    if os.environ.get("RT"): real = True
    if STAMP: A("%s s[%d:%d]" % ("s_memrealtime" if real else "s_memtime", 72 + 2 * i, 73 + 2 * i))
def stamp_out(A, kidx, n, wsreg, tag):
    if not STAMP: return
    A("s_waitcnt vmcnt(0) lgkmcnt(0)")
    if os.environ.get("STAMP") == "dbg":
        if tag == "cf": return
        A("s_cmp_lg_u32 s2, 40"); A("s_cbranch_scc1 so_skip_%s" % tag)
        A("s_load_dwordx2 s[68:69], s[0:1], %d" % KA["dbg"]); A("s_waitcnt lgkmcnt(0)")
        srd(A, 96, 68, 512 * (2 - kidx), 256)
        A("v_mov_b32 v1, 0")
        sel = [1, n - 1] + ([3, 5, 7] if kidx == 0 else [4, 6, 8])
        for i, k in enumerate(sel):
            if i >= 2: A("s_sub_u32 s70, s%d, s72" % (72 + 2 * k))
            else: A("s_mov_b32 s70, s%d" % (72 + 2 * k))
            A("v_mov_b32 v2, s70")
            A("buffer_store_dword v2, v1, s[96:99], 0 offen offset:%d" % (4 * (5 * kidx + i)))
            A("s_nop 1")
        A.label("so_skip_%s" % tag)
        return
    srd(A, 96, wsreg, WS_STAMP + kidx * 65536, 65536)
    A("v_lshrrev_b32 v1, 6, v0"); A("v_lshlrev_b32 v1, 6, v1"); A("s_lshl_b32 s68, s2, 8"); A("v_add_u32 v1, s68, v1")
    for i in range(n):
        A("v_mov_b32 v2, s%d" % (72 + 2 * i))
        A("buffer_store_dword v2, v1, s[96:99], 0 offen offset:%d" % (4 * i))
        A("s_nop 1")

K1_LDS = 8 * 2080 + 16384
def gen_k1_help(A):
    A("s_load_dwordx4 s[4:7], s[0:1], %d" % KA["wr"])
    A("s_load_dwordx4 s[8:11], s[0:1], %d" % KA["wg"])
    A("s_load_dwordx2 s[12:13], s[0:1], %d" % KA["ws"])
    A("s_sub_u32 s3, s2, 256")
    A("s_and_b32 s36, s3, 3"); A("s_bfe_u32 s37, s3, 0x10002"); A("s_bfe_u32 s38, s3, 0x20003"); A("s_lshr_b32 s39, s3, 5")
    A("s_lshl_b32 s40, s37, 3"); A("s_lshl_b32 s41, s38, 6"); A("s_add_u32 s40, s40, s41"); A("s_lshl_b32 s41, s39, 8"); A("s_add_u32 s40, s40, s41")
    A("s_mul_i32 s40, s40, 1026"); A("s_lshl_b32 s41, s36, 8"); A("s_add_u32 s40, s40, s41")
    A("v_and_b32 v1, 7, v0"); A("v_lshrrev_b32 v2, 3, v0")
    A("v_mul_u32_u24 v3, 1026, v1"); A("v_lshl_add_u32 v3, v2, 3, v3")
    A("v_lshlrev_b32 v4, 15, v2"); A("v_lshl_add_u32 v4, v1, 4, v4")
    A("s_lshl_b32 s42, s36, 20"); A("s_lshl_b32 s41, s39, 10"); A("s_add_u32 s42, s42, s41"); A("s_lshl_b32 s41, s38, 8"); A("s_add_u32 s42, s42, s41")
    A("s_lshl_b32 s41, s37, 7"); A("s_add_u32 s42, s42, s41")
    A("s_mov_b32 s46, 0x05040100"); A("s_mov_b32 s47, 0x07060302")
    A("v_lshlrev_b32 v5, 6, v0")
    A("s_mul_i32 s43, s3, %d" % (1024 * 7168 // 256))
    A("s_waitcnt lgkmcnt(0)")
    WSZ = 2048 * 1026
    srd(A, 16, 4, 0, WSZ); srd(A, 20, 6, 0, WSZ); srd(A, 24, 12, WS_WT, SZ_WT)
    srd(A, 28, 8, 0, 1024 * 7168); srd(A, 32, 10, 0, 1024 * 7168)
    for r in range(4):
        A("s_add_u32 s41, s40, %d" % (16 * r * 1026))
        A("buffer_load_dwordx2 v[%d:%d], v3, s[16:19], s41 offen" % (8 + 4 * r, 9 + 4 * r))
        A("buffer_load_dwordx2 v[%d:%d], v3, s[20:23], s41 offen" % (10 + 4 * r, 11 + 4 * r))
    A("v_mul_u32_u24 v6, 1026, v1")
    for r in range(4):
        A("s_add_u32 s41, s40, %d" % (16 * r * 1026 + 256))
        A("buffer_load_ushort v%d, v6, s[16:19], s41 offen" % (48 + r))
        A("buffer_load_ushort v%d, v6, s[20:23], s41 offen" % (52 + r))
    PFM = os.environ.get("PFM", "x4")
    if PREFETCH and PFM == "x4":
        A("v_lshlrev_b32 v5, 4, v0")
        NPF = int(os.environ.get("NPF", "7"))
        for i in range(NPF):
            A("buffer_load_dwordx4 v[%d:%d], v5, s[28:31], s43 offen" % (64 + 8 * i, 67 + 8 * i))
            A("buffer_load_dwordx4 v[%d:%d], v5, s[32:35], s43 offen" % (68 + 8 * i, 71 + 8 * i))
            A("s_add_u32 s43, s43, 4096")
        A("s_waitcnt vmcnt(%d)" % (2 * NPF))
    elif PREFETCH and PFM == "d128":
        A("v_lshlrev_b32 v5, 7, v0")
        A("v_cmp_gt_u32 vcc, 224, v0"); A("s_and_saveexec_b64 s[44:45], vcc")
        A("buffer_load_dword v62, v5, s[28:31], s43 offen"); A("buffer_load_dword v63, v5, s[32:35], s43 offen")
        A("s_mov_b64 exec, s[44:45]")
        A("s_waitcnt vmcnt(2)")
    else:
        A("s_waitcnt vmcnt(0)")
    for c in range(4):
        for r in range(4):
            A("v_perm_b32 v%d, v%d, v%d, s%d" % (24 + 4 * c + r, 10 + 4 * r + (c >> 1), 8 + 4 * r + (c >> 1), 46 + (c & 1)))
        A("s_add_u32 s41, s42, %d" % (c * 8192))
        A("buffer_store_dwordx4 v[%d:%d], v4, s[24:27], s41 offen%s" % (24 + 4 * c, 27 + 4 * c, WT_FLAGS))
    A("s_cmp_lg_u32 s36, 3"); A("s_cbranch_scc1 k1_done")
    for r in range(4): A("v_lshl_or_b32 v%d, v%d, 16, v%d" % (48 + r, 52 + r, 48 + r))
    A("s_add_u32 s41, s42, %d" % (128 * 8192))
    A("v_cmp_gt_u32 vcc, 8, v0"); A("s_and_saveexec_b64 s[44:45], vcc"); A("s_cbranch_execz k1_done")
    A("buffer_store_dwordx4 v[48:51], v4, s[24:27], s41 offen%s" % WT_FLAGS)

PREFETCH = os.environ.get("NOPF", "") == ""
WT_FLAGS = os.environ.get("WTFL", " sc1")
H_FLAGS = os.environ.get("HFL", "")
def gen_k1():
    A = Asm(); kernel_head(A, "k1_kernel")
    RS = 2080; YT = 8 * RS
    A("s_cmp_ge_u32 s2, 512"); A("s_cbranch_scc1 k1_done")
    A("s_cmp_ge_u32 s2, 256"); A("s_cbranch_scc1 k1_help")
    stamp(A, 0); stamp(A, 1, True)
    A("s_load_dwordx2 s[4:5], s[0:1], %d" % KA["x"])
    A("s_load_dwordx2 s[6:7], s[0:1], %d" % KA["ws"])
    tab_srd(A, 20, "k1")
    A("s_and_b32 s24, s2, 7"); A("s_bfe_u32 s25, s2, 0x10003"); A("s_lshr_b32 s26, s2, 4")
    A("s_lshl_b32 s27, s26, 3"); A("s_add_u32 s27, s27, s24")
    A("v_and_b32 v1, 63, v0"); A("v_lshrrev_b32 v2, 6, v0")
    A("v_lshlrev_b32 v3, 4, v1")
    A("s_lshl_b32 s28, s25, 21"); A("s_lshl_b32 s29, s27, 11"); A("s_add_u32 s28, s28, s29")
    A("v_lshl_add_u32 v4, v2, 19, v3")
    A("s_add_u32 s29, s28, 0x40000")
    A("s_waitcnt lgkmcnt(0)")
    srd(A, 8, 4, 0, 4 << 20); srd(A, 12, 6, WS_XN, SZ_XN); srd(A, 16, 6, WS_Y, SZ_Y)
    X = 8
    A("buffer_load_dwordx4 v[8:11], v4, s[8:11], s28 offen")
    A("buffer_load_dwordx4 v[12:15], v4, s[8:11], s28 offen offset:1024")
    A("buffer_load_dwordx4 v[16:19], v4, s[8:11], s29 offen")
    A("buffer_load_dwordx4 v[20:23], v4, s[8:11], s29 offen offset:1024")
    F1 = 64; TW = 72; F2 = 88; F2S = 120
    names = [("f1re", F1), ("f1im", F1 + 4)]
    for bh in range(2):
        for t in range(2): names.append(("tw%d%d" % (bh, t), TW + 8 * bh + 4 * t))
    for dh in range(2):
        for part in range(2):
            for bh in range(2): names.append(("f2_%d%d%d" % (dh, part, bh), F2 + 16 * dh + 8 * part + 4 * bh))
    for part in range(2):
        for bh in range(2): names.append(("f2s_%d%d" % (part, bh), F2S + 8 * part + 4 * bh))
    for nm, r in names: tab_load(A, vr(r, 4), nm, 3, 20, 30)
    NT = len(names)
    A("s_mov_b32 s31, 0xffff0000")
    A("v_and_b32 v5, 15, v1"); A("v_lshrrev_b32 v6, 4, v1")
    A("v_cmp_eq_u32 vcc, 0, v5")
    A("v_mov_b32 v7, 0xffff")
    MG, MP, MQ = 136, 137, 138
    A("v_cndmask_b32 v%d, -1, 0, vcc" % MG)
    A("v_cndmask_b32 v%d, 0, v7, vcc" % MP)
    A("v_lshlrev_b32 v%d, 16, v%d" % (MQ, MP))
    YB0, YB1 = 139, 140
    A("v_lshl_add_u32 v%d, v6, 7, v5" % YB0); A("v_lshlrev_b32 v%d, 5, v%d" % (YB0, YB0))
    A("v_lshl_add_u32 v%d, v2, 3, v%d" % (YB0, YB0))
    A("v_sub_u32 v7, 32, v5"); A("v_cndmask_b32 v7, v7, 16, vcc")
    A("v_lshlrev_b32 v%d, 7, v6" % YB1); A("v_sub_u32 v%d, 384, v%d" % (YB1, YB1)); A("v_add_u32 v%d, v%d, v7" % (YB1, YB1))
    A("v_lshlrev_b32 v%d, 5, v%d" % (YB1, YB1)); A("v_lshl_add_u32 v%d, v2, 3, v%d" % (YB1, YB1))
    XW = 141
    A("v_mul_u32_u24 v%d, %d, v2" % (XW, 2 * RS)); A("v_add_u32 v%d, v%d, v3" % (XW, XW))
    TR = 142
    A("v_lshrrev_b32 v7, 2, v1"); A("v_lshlrev_b32 v7, 6, v7"); A("v_and_b32 v%d, 3, v1" % TR)
    A("v_lshl_add_u32 v7, v%d, 3, v7" % TR); A("v_mul_u32_u24 v%d, %d, v2" % (TR, 2 * RS)); A("v_add_u32 v%d, v%d, v7" % (TR, TR))
    XR = 143
    A("v_and_b32 v7, 7, v1"); A("v_mul_u32_u24 v%d, %d, v7" % (XR, RS))
    A("v_bfe_u32 v7, v1, 3, 2"); A("v_lshl_add_u32 v%d, v7, 3, v%d" % (XR, XR))
    A("v_lshrrev_b32 v7, 5, v0"); A("v_lshl_add_u32 v%d, v7, 6, v%d" % (XR, XR))
    XG = 144
    A("v_lshrrev_b32 v7, 5, v0"); A("v_lshlrev_b32 v%d, 14, v7" % XG)
    A("v_bfe_u32 v7, v1, 3, 2"); A("v_lshl_add_u32 v%d, v7, 8, v%d" % (XG, XG))
    A("v_and_b32 v7, 7, v1"); A("v_lshl_add_u32 v%d, v7, 4, v%d" % (XG, XG))
    A("s_lshr_b32 s32, s27, 4"); A("s_lshl_b32 s32, s32, 19"); A("s_and_b32 s33, s27, 15"); A("s_lshl_b32 s33, s33, 10")
    A("s_add_u32 s32, s32, s33"); A("s_lshl_b32 s33, s25, 7"); A("s_add_u32 s32, s32, s33")
    YG = 145; YR = 146
    A("v_lshrrev_b32 v7, 1, v0"); A("v_lshlrev_b32 v%d, 13, v7" % YG); A("v_and_b32 v7, 1, v0"); A("v_lshl_add_u32 v%d, v7, 4, v%d" % (YG, YG))
    A("s_lshl_b32 s34, s24, 10"); A("s_lshl_b32 s35, s26, 6"); A("s_add_u32 s34, s34, s35"); A("s_lshl_b32 s35, s25, 5"); A("s_add_u32 s34, s34, s35")
    A("v_lshlrev_b32 v%d, 4, v0" % YR)
    stamp(A, 2)
    A("s_waitcnt vmcnt(%d)" % NT)
    stamp(A, 3)
    U = 24
    for row in range(2):
        for i in range(8):
            A("v_lshlrev_b32 v%d, 16, v%d" % (U + 16 * row + 2 * i, X + 8 * row + i))
            A("v_and_b32 v%d, s31, v%d" % (U + 16 * row + 2 * i + 1, X + 8 * row + i))
    S = [56, 57]; T = [58, 59]
    for row in range(2):
        b = U + 16 * row
        for i in range(8): A("v_add_f32 v%d, v%d, v%d" % (X + 8 * row + i, b + 2 * i, b + 2 * i + 1))
    for wdt in (4, 2, 1):
        for row in range(2):
            for i in range(wdt):
                d = S[row] if wdt == 1 else X + 8 * row + i
                A("v_add_f32 v%d, v%d, v%d" % (d, X + 8 * row + i, X + 8 * row + i + wdt))
    allreduce_add(A, S, T)
    A("s_mov_b32 s36, 0x%x" % f32(1.0 / 1024))
    for row in range(2): A("v_mul_f32 v%d, s36, v%d" % (S[row], S[row]))
    Q = [60, 61]
    for row in range(2):
        b = U + 16 * row
        for i in range(8):
            A("v_sub_f32 v%d, v%d, v%d" % (X + 8 * row + i, b + 2 * i, S[row]))
            A("v_mul_f32 v%d, v%d, v%d" % (X + 8 * row + i, X + 8 * row + i, X + 8 * row + i))
            A("v_sub_f32 v7, v%d, v%d" % (b + 2 * i + 1, S[row]))
            A("v_fmac_f32 v%d, v7, v7" % (X + 8 * row + i))
    for wdt in (4, 2, 1):
        for row in range(2):
            for i in range(wdt):
                d = Q[row] if wdt == 1 else X + 8 * row + i
                A("v_add_f32 v%d, v%d, v%d" % (d, X + 8 * row + i, X + 8 * row + i + wdt))
    allreduce_add(A, Q, T)
    for row in range(2): A("v_mul_f32 v%d, s36, v%d" % (Q[row], Q[row]))
    for row in range(2): A("v_cvt_pk_bf16_f32 v%d, v%d, v%d" % (T[row], S[row], Q[row]))
    for row in range(2):
        A("v_lshlrev_b32 v%d, 16, v%d" % (S[row], T[row])); A("v_and_b32 v%d, s31, v%d" % (Q[row], T[row]))
    for row in range(2): A("v_add_f32 v%d, 0x%x, v%d" % (Q[row], f32(1e-5), Q[row]))
    A("v_cvt_pk_bf16_f32 v%d, v%d, v%d" % (T[0], Q[0], Q[1]))
    A("v_lshlrev_b32 v%d, 16, v%d" % (Q[0], T[0])); A("v_and_b32 v%d, s31, v%d" % (Q[1], T[0]))
    for row in range(2): A("v_sqrt_f32 v%d, v%d" % (Q[row], Q[row]))
    A("v_cvt_pk_bf16_f32 v%d, v%d, v%d" % (T[0], Q[0], Q[1]))
    A("v_lshlrev_b32 v%d, 16, v%d" % (Q[0], T[0])); A("v_and_b32 v%d, s31, v%d" % (Q[1], T[0]))
    for row in range(2): A("v_rcp_f32 v%d, v%d" % (Q[row], Q[row]))
    for row in range(2):
        b = U + 16 * row
        for i in range(16): A("v_sub_f32 v%d, v%d, v%d" % (b + i, b + i, S[row]))
        for i in range(8): A("v_cvt_pk_bf16_f32 v%d, v%d, v%d" % (X + 8 * row + i, b + 2 * i, b + 2 * i + 1))
        for i in range(8):
            A("v_lshlrev_b32 v%d, 16, v%d" % (b + 2 * i, X + 8 * row + i)); A("v_and_b32 v%d, s31, v%d" % (b + 2 * i + 1, X + 8 * row + i))
        for i in range(16): A("v_mul_f32 v%d, v%d, v%d" % (b + i, b + i, Q[row]))
        for i in range(8): A("v_cvt_pk_bf16_f32 v%d, v%d, v%d" % (X + 8 * row + i, b + 2 * i, b + 2 * i + 1))
        A("ds_write_b128 v%d, v[%d:%d] offset:%d" % (XW, X + 8 * row, X + 8 * row + 3, row * RS))
        A("ds_write_b128 v%d, v[%d:%d] offset:%d" % (XW, X + 8 * row + 4, X + 8 * row + 7, row * RS + 1024))
    A("s_waitcnt lgkmcnt(0)")
    for row in range(2):
        for bh in range(2):
            for hh in range(2):
                r = X + 8 * row + 4 * bh + 2 * hh
                A("ds_read_b64_tr_b16 v[%d:%d], v%d offset:%d" % (r, r + 1, TR, row * RS + hh * 1024 + bh * 32))
    A("s_barrier")
    XO = 148
    for it in range(4):
        A("ds_read_b64 v[%d:%d], v%d offset:%d" % (XO + 4 * it, XO + 4 * it + 1, XR, it * 512))
        A("ds_read_b64 v[%d:%d], v%d offset:%d" % (XO + 4 * it + 2, XO + 4 * it + 3, XR, it * 512 + 32))
    stamp(A, 4)
    A("s_waitcnt vmcnt(0) lgkmcnt(8)")
    stamp(A, 5)
    for row in range(2):
        for bh in range(2):
            for part in range(2):
                d = U + 16 * row + 8 * bh + 4 * part
                A("%s v[%d:%d], v[%d:%d], v[%d:%d], 0" % (MF, d, d + 3, X + 8 * row + 4 * bh, X + 8 * row + 4 * bh + 3, F1 + 4 * part, F1 + 4 * part + 3))
    A("s_waitcnt lgkmcnt(0)")
    for it in range(4):
        A("s_add_u32 s33, s32, 0x%x" % (it * 8 * 16384))
        A("buffer_store_dwordx4 v[%d:%d], v%d, s[12:15], s33 offen" % (XO + 4 * it, XO + 4 * it + 3, XG))
    PP, PQ = 164, 180
    for row in range(2):
        for bh in range(2):
            for r in range(4):
                re = U + 16 * row + 8 * bh + r; im = re + 4
                tc = TW + 8 * bh + r; ts = tc + 4
                A("v_mul_f32 v56, v%d, v%d" % (re, tc)); A("v_mul_f32 v57, v%d, v%d" % (im, tc))
                A("v_fmac_f32 v56, v%d, v%d" % (im, ts)); A("v_fma_f32 v57, -v%d, v%d, v57" % (re, ts))
                o = 8 * row + 4 * bh + r
                A("v_cvt_pk_bf16_f32 v58, v56, v57")
                A("v_and_b32 v%d, v58, v%d" % (X + o, MG)); A("v_and_b32 v%d, v58, v%d" % (PP + o, MP)); A("v_and_b32 v%d, v58, v%d" % (PQ + o, MQ))
    for row in range(2):
        for bh in range(2):
            for dh in range(2):
                for part in range(2):
                    d = U + 16 * row + 8 * dh + 4 * part
                    a = F2 + 16 * dh + 8 * part + 4 * bh; b = X + 8 * row + 4 * bh
                    A("%s v[%d:%d], v[%d:%d], v[%d:%d], %s" % (MF, d, d + 3, a, a + 3, b, b + 3, "0" if bh == 0 else "v[%d:%d]" % (d, d + 3)))
        for bh in range(2):
            for dh in range(2):
                for part in range(2):
                    d = U + 16 * row + 8 * dh + 4 * part
                    a = F2S + 8 * part + 4 * bh; b = (PP if dh == 0 else PQ) + 8 * row + 4 * bh
                    A("%s v[%d:%d], v[%d:%d], v[%d:%d], v[%d:%d]" % (MF, d, d + 3, a, a + 3, b, b + 3, d, d + 3))
    YP = 64
    for row in range(2):
        for dh in range(2):
            for r in range(4):
                re = U + 16 * row + 8 * dh + r
                A("v_cvt_pk_bf16_f32 v%d, v%d, v%d" % (YP + 8 * dh + 2 * r + row, re, re + 4))
    for dh in range(2):
        for r in range(4):
            p = YP + 8 * dh + 2 * r
            A("ds_write_b64 v%d, v[%d:%d] offset:%d" % (YB0 if dh == 0 else YB1, p, p + 1, YT + (r if dh == 0 else 3 - r) * 1024))
    A("s_waitcnt lgkmcnt(0)"); A("s_barrier")
    for it in range(4): A("ds_read_b128 v[%d:%d], v%d offset:%d" % (8 + 4 * it, 11 + 4 * it, YR, YT + it * 4096))
    for it in range(4):
        A("s_add_u32 s35, s34, 0x%x" % (it * 128 * 8192))
        A("s_waitcnt lgkmcnt(%d)" % (3 - it))
        if it == 0:
            A("v_cmp_gt_u32 vcc, 2, v0"); A("v_mov_b32 v7, 0xffff"); A("v_cndmask_b32 v7, -1, v7, vcc")
            for i in range(4): A("v_lshrrev_b32 v%d, 16, v%d" % (24 + i, 8 + i))
            for i in range(4): A("v_and_b32 v%d, v7, v%d" % (8 + i, 8 + i))
        A("buffer_store_dwordx4 v[%d:%d], v%d, s[16:19], s35 offen" % (8 + 4 * it, 11 + 4 * it, YG))
    A("s_add_u32 s35, s34, 0x%x" % (512 * 8192))
    A("s_and_saveexec_b64 s[38:39], vcc"); A("s_cbranch_execz k1_n512")
    A("buffer_store_dwordx4 v[24:27], v%d, s[16:19], s35 offen" % YG)
    A.label("k1_n512")
    A("s_mov_b64 exec, s[38:39]")
    stamp(A, 6)
    if STAMP: A("s_waitcnt vmcnt(0)")
    stamp(A, 7); stamp(A, 8, True)
    stamp_out(A, 0, 9, 6, "k1")
    A("s_endpgm")
    A.label("k1_help")
    gen_k1_help(A)
    A.label("k1_done"); A("s_endpgm")
    A.fix()
    return A.text() + kernel_desc("k1_kernel", 200, 200, 48)

from gen_k2 import gen_k2, K2_LDS
from gen_k3 import gen_k3, K3_LDS

def main():
    build_tables(); build_tables_inv()
    stub = open("cdna_kernels/%s.s.ref" % NAME).read().split("\n")
    head = [l for l in stub if l.startswith(";") and "@launch" not in l and "Override" not in l and "grid=ceil" not in l]
    o = "\n".join(head[:12]) + "\n"
    o += "; @launch kernel=k1_kernel grid=(512,1,1) block=(256,1,1) lds=%d\n" % K1_LDS
    o += "; @launch kernel=k2_kernel grid=(256,1,1) block=(256,1,1) lds=%d\n" % K2_LDS
    o += "; @launch kernel=k3_kernel grid=(256,1,1) block=(256,1,1) lds=%d\n" % K3_LDS
    o += '.amdgcn_target "amdgcn-amd-amdhsa--gfx950"\n'
    import gen as G
    o += gen_k1() + gen_k2(sys.modules[__name__]) + gen_k3(sys.modules[__name__])
    o += '.section .rodata,"a"\n.p2align 8\n.type gf_tab,@object\ngf_tab:\n'
    for b in TAB.blocks:
        for i in range(0, 256, 8): o += ".long " + ",".join("0x%x" % x for x in b[i:i + 8]) + "\n"
    o += ".size gf_tab, %d\n" % (len(TAB.blocks) * 1024)
    path = sys.argv[1] if len(sys.argv) > 1 else "cdna_kernels/%s.s" % NAME
    open(path, "w").write(o)
    print("wrote", path, len(o), "bytes")

if __name__ == "__main__":
    main()
```

```python
from asmlib import *
import math, os
import gen as G
from gen import stamp, f32
ENV = os.environ.get
MF = "v_mfma_f32_16x16x32_bf16"
MF32 = "v_mfma_f32_32x32x16_bf16"
def q(f, r): return "%s[%d:%d]" % (f, r, r + 3)
def p2(r): return "v[%d:%d]" % (r, r + 1)

ZL = 128 * 1024
I1, I1S, I2 = 160, 192, 208
DV = [5, 6, 14, 15]
def g2_setup(A, M, DV=DV, t0=7, t1=13):
    W = M.WAVE
    A("s_and_b32 s44, s2, 1"); A("s_bfe_u32 s42, s2, 0x20001"); A("s_lshl_b32 s42, s42, 2"); A("s_bfe_u32 s43, s2, 0x20003"); A("s_add_u32 s42, s42, s43")
    A("s_lshr_b32 s43, s2, 5")
    d0, d1, d2, d3 = DV
    A("v_lshrrev_b32 v%d, 4, v1" % t0); A("v_lshl_add_u32 v%d, v2, 6, v%d" % (t1, t0)); A("v_lshlrev_b32 v%d, 11, v%d" % (t1, t1))
    A("v_lshlrev_b32 v%d, 2, v%d" % (t0, t0)); A("v_and_b32 v%d, 15, v1" % d0); A("v_xor_b32 v%d, v%d, v%d" % (t0, t0, d0))
    A("v_lshl_add_u32 v%d, v%d, 4, v%d" % (d0, t0, t1)); A("v_xor_b32 v%d, 32, v%d" % (d1, d0))
    A("v_add_u32 v%d, 0x%x, v%d" % (d2, 2 * 7168, d0)); A("v_add_u32 v%d, 0x%x, v%d" % (d3, 3 * 7168, d1)); A("v_add_u32 v%d, 0x%x, v%d" % (d1, 7168, d1))
    M.srd(A, 48, M.PWD, 0, 3584 * 2048)
    A("s_mul_i32 s45, s44, %d" % (1792 * 2048)); A("s_add_u32 s50, s45, %d" % (1792 * 2048))
    A("s_lshl_b32 s61, s43, 8"); A("s_add_u32 s61, s61, s45"); A("s_add_u32 s62, s61, %d" % (1792 * 2048))
    A("s_lshl_b32 s64, s%d, 13" % W)
def g2_dma(par, p, DV=DV):
    o = []
    if p % 4 == 0: o.append("s_add_u32 m0, s64, 0x%x" % (par * 32768 + (p >> 2) * 4096))
    o.append("buffer_load_dwordx4 v%d, s[48:51], s61 offen%s lds" % (DV[p & 3], " offset:%d" % ((p & 3) * 1024) if p & 3 else ""))
    if p == 3: o.append("s_add_u32 s61, s61, 0x8000")
    if p == 7:
        o.append("s_add_u32 s61, s61, 0x%x" % (256 * 2048 - 0x8000))
        o += ["s_cmp_ge_u32 s61, s62", "s_cselect_b32 s65, %d, 0" % ((1792 - 32) * 2048), "s_cselect_b32 s62, -1, s62", "s_sub_u32 s61, s61, s65"]
        if par == 1: o.append("s_xor_b32 s64, s64, 0x10000")
    return o
def g2_dma_of(s):
    u = (s + 2) & 7; par = u >> 2; p = 2 * (u & 3)
    return g2_dma(par, p), g2_dma(par, p + 1)
def z_fetch(A, M, t0=7, t1=13, zs=56):
    W = M.WAVE
    M.srd(A, zs, M.PWS, M.WS_Z, M.SZ_Z)
    A("v_lshrrev_b32 v%d, 4, v1" % t0); A("v_and_b32 v%d, 7, v1" % t1); A("v_xor_b32 v%d, v%d, v%d" % (t0, t0, t1)); A("v_lshlrev_b32 v%d, 4, v%d" % (t0, t0))
    A("v_lshrrev_b32 v%d, 3, v1" % t1); A("v_lshl_add_u32 v%d, v%d, 8, v%d" % (t0, t1, t0)); A("v_xor_b32 v%d, 64, v%d" % (t1, t0))
    A("s_lshr_b32 s40, s2, 1"); A("s_lshl_b32 s40, s40, 15"); A("s_and_b32 s41, s2, 1"); A("s_lshl_b32 s41, s41, 7"); A("s_add_u32 s40, s40, s41")
    A("s_lshl_b32 s41, s%d, 13" % W); A("s_add_u32 s40, s40, s41")
    A("s_lshl_b32 s41, s%d, 12" % W); A("s_add_u32 m0, s41, 0x%x" % ZL)
    for p in range(4):
        A("buffer_load_dwordx4 v%d, s[%d:%d], s40 offen%s sc1 lds" % (t0 if p % 2 == 0 else t1, zs, zs + 3, " offset:%d" % (p * 1024) if p else ""))
        A("s_add_u32 s40, s40, 1024")
def i_tabs(A, M): M.tab_dma(A, "i1_000", 96 * 1024, 112 * 1024)
def g2_early(A):
    for s in range(-10, 0):
        d0, d1 = g2_dma_of(s)
        for y in d0 + d1: A(y)
HB = [192, 196, 208, 212, 224, 228, 240, 244]

def gemm1(A, M):
    W = M.WAVE; VWD = M.VWD
    def dma(b): return (M.dmaW(b, 4) + M.dmaX(b)) if ENV('WFIRST', '0') == '1' else (M.dmaX(b) + M.dmaW(b, 4))
    def acc(it, jt):
        return ("v", 32 + (jt * 8 + it) * 4) if jt < 7 else ("a", 128 + it * 4)
    def reads(buf, st):
        base = 64 * st; hi = buf >> 1; off = (buf & 1) * 32768
        o = []; la = []; lb = []
        for it in range(8):
            mat, t = it >> 2, it & 3
            for h in range(2):
                r = base + 4 * it + 2 * h
                la.append("ds_read_b64_tr_b16 a[%d:%d], v%d offset:%d" % (r, r + 1, (12 if hi else 8) + t, off + h * 8192 + mat * 2048))
        for jt in range(8):
            r = base + 32 + 4 * jt
            lb.append("ds_read_b128 a[%d:%d], v%d offset:%d" % (r, r + 3, 6 if hi else 5, off + jt * 1024))
        for i in range(8): o += [lb[i], la[2 * i], la[2 * i + 1]]
        return o
    def mfmas(st, first=False):
        base = 64 * st; o = []
        for jt in range(8):
            for it in range(8):
                f, d = acc(it, jt); dd = q(f, d)
                o.append("%s %s, %s, %s, %s" % (MF, dd, q("a", base + 4 * it), q("a", base + 32 + 4 * jt), "0" if first else dd))
        return o
    def step(i, dmas, do_read, vm, first=False, rd0=1, mid=None, extra=None):
        m = mfmas(i & 1, first)
        s1 = interleave(m, reads((i + 1) & 3, (i + 1) & 1), rd0, 56 if rd0 > 1 else 52) if do_read else [[] for _ in m]
        dl = []
        for b_ in dmas: dl += dma(b_)
        if extra: dl += extra
        s2 = interleave(m, dl, rd0 if mid is not None else 0, 64) if dl else [[] for _ in m]
        for k, x in enumerate(m):
            A(x)
            if mid is not None and k == rd0 - 1:
                nv = sum(1 for kk in range(k + 1) for y in s2[kk] if y.startswith("buffer"))
                for y in s2[k]: A(y)
                A("s_waitcnt vmcnt(%d)" % (mid + nv)); A("s_barrier")
                continue
            for y in s2[k] + s1[k]: A(y)
        if vm is not None:
            A("s_waitcnt vmcnt(%d) lgkmcnt(0)" % vm); A("s_barrier")
    for x in reads(0, 0): A(x)
    A("s_waitcnt lgkmcnt(0)")
    stamp(A, 6)
    ls = M.late_stores()
    if ENV("S0", "0") == "0":
        step(0, [3], True, 12, first=True, rd0=8, mid=4, extra=ls[:4])
        if ENV("G1IT"): stamp(A, 2)
        step(1, [0], True, 16, extra=ls[4:])
        if ENV("G1IT"): stamp(A, 3)
        step(2, [1, 2], True, 20)
        step(3, [3], True, 16)
    else:
        step(0, [3, 0], True, 16, first=True, rd0=8, mid=4)
        if ENV("G1IT"): stamp(A, 2)
        step(1, [1], True, 20, extra=ls[:4])
        if ENV("G1IT"): stamp(A, 3)
        step(2, [2], True, 24, extra=ls[4:])
        step(3, [3], True, 8)
    M.set_flag_w0(A, "f2g", 63, 29, 30)
    if ENV("G1IT"): stamp(A, 4)
    A("s_mov_b32 s45, 6")
    A.raw(".p2align 6")
    A.label("g1_loop")
    for i in range(4): step(i, [i], True, 16)
    A("s_cmp_lg_u32 s45, 3"); A("s_cbranch_scc1 g1_npf")
    M.srd(A, 36, M.PWD, 0, 3584 * 2048)
    A("s_sub_u32 s40, s2, 32"); A("s_lshl_b32 s40, s40, 15"); A("v_lshlrev_b32 v17, 7, v0")
    A("buffer_load_dword v18, v17, s[36:39], s40 offen")
    if not ENV("NOCPF"):
        M.code_srd(A, 36, "g1_npf"); A("buffer_load_dword v19, v17, s[36:39], 0 offen")
    A.label("g1_npf")
    A("s_sub_u32 s45, s45, 1"); A("s_cmp_lg_u32 s45, 0"); A("s_cbranch_scc1 g1_loop")
    if ENV("G1IT"): stamp(A, 5)
    M.srd(A, 36, M.PWS, M.WS_H, M.SZ_H)
    A("s_lshl_b32 s52, s42, 1"); A("s_add_u32 s52, s52, s47"); A("s_lshl_b32 s54, s52, 13"); A("s_mul_i32 s52, s52, 112")
    A("s_lshl_b32 s53, s43, 1"); A("s_add_u32 s53, s53, s46"); A("s_add_u32 s52, s52, s53")
    A("s_cmp_ge_u32 s53, 28"); A("s_cselect_b32 s55, 28, 0"); A("s_cselect_b32 s40, 4, 0"); A("s_add_u32 s52, s52, s55"); A("s_lshl_b32 s52, s52, 13")
    A("s_add_u32 s53, s53, s40"); A("s_lshr_b32 s55, s53, 1"); A("s_lshl_b32 s53, s53, 7"); A("s_add_u32 s54, s54, s53"); A("s_add_u32 s54, s54, %d" % M.FH)
    A("s_lshl_b32 s53, s42, 5"); A("s_add_u32 s55, s55, s53"); A("s_lshl_b32 s55, s55, 7"); A("s_add_u32 s55, s55, %d" % M.FB)
    A("s_mov_b32 s46, %d" % M.F3)
    DT = [24, 25, 26, 27]
    def grp(B):
        o = [[]]
        for k, t in B.items:
            o[-1].append(t)
            if t.startswith("buffer"): o.append([])
        return [x for x in o if x]
    nv = lambda l: sum(1 for x in l for y in x if y.startswith("buffer"))
    B = Asm(); g2_setup(B, M, DT, 22, 23); su = [[t] for k, t in B.items]
    B = Asm(); i_tabs(B, M); tb = grp(B)
    fl = [["s_bfm_b64 exec, 32, 0", "buffer_load_dword v4, v28, s[%d:%d], s46 offen sc1" % (M.SFL, M.SFL + 3), "s_mov_b64 exec, -1"]]
    e0 = su + [g2_dma(0, p, DT) for p in range(8)]
    e1 = [g2_dma(1, p, DT) for p in range(8)]
    e2 = [g2_dma(0, p, DT) for p in range(4)]
    step(0, [], True, 8 + nv(e0), extra=e0); step(1, [], True, nv(e0) + nv(e1), extra=e1); step(2, [], True, 63, extra=e2)
    if ENV("G1IT"): stamp(A, 8); stamp(A, 9)
    e3 = [["v_mov_b32 v%d, v%d" % (DV[i], DT[i])] for i in range(4)] + tb + [["v_mov_b32 v7, v28"]] + fl
    step(3, [], False, None, extra=e3)
    stamp(A, 7)
    c0 = math.sqrt(2 / math.pi)
    c1 = -2 * c0 * math.log2(math.e); c2 = c1 * 0.044715
    A("s_mov_b32 s56, 0x%x" % f32(c2)); A("s_mov_b32 s57, s56")
    A("v_mov_b32 v8, 0x%x" % f32(c1)); A("v_mov_b32 v9, v8"); A("v_mov_b32 v10, 1.0"); A("v_mov_b32 v11, 1.0"); A("v_mov_b32 v12, 0")
    n = 0
    for p in range(2):
        for jt in range(8):
            b0 = 32 + (jt % 7) * 32
            g = b0 + 8 * p; u = b0 + 16 + 8 * p
            if jt == 7:
                for i in range(8):
                    A("v_accvgpr_read_b32 v%d, a%d" % (g + i, 128 + 8 * p + i)); A("v_accvgpr_read_b32 v%d, a%d" % (u + i, 144 + 8 * p + i))
            T = 16 + 8 * (n % 2); n += 1
            H4 = range(0, 8, 2)
            for e in H4: A("v_pk_mul_f32 %s, %s, %s" % (p2(T + e), p2(g + e), p2(g + e)))
            for e in H4: A("v_pk_fma_f32 %s, %s, s[56:57], v[8:9]" % (p2(T + e), p2(T + e)))
            for e in H4: A("v_pk_mul_f32 %s, %s, %s" % (p2(T + e), p2(T + e), p2(g + e)))
            for e in range(8): A("v_exp_f32 v%d, v%d" % (T + e, T + e))
            for e in H4: A("v_pk_mul_f32 %s, %s, %s" % (p2(u + e), p2(u + e), p2(g + e)))
            for e in H4: A("v_pk_add_f32 %s, %s, v[10:11]" % (p2(T + e), p2(T + e)))
            for e in range(8): A("v_rcp_f32 v%d, v%d" % (T + e, T + e))
            A("s_add_u32 s53, s52, 0x%x" % (p * 28 * 8192 + (jt >> 2) * 4096))
            for e in H4: A("v_pk_mul_f32 %s, %s, %s" % (p2(u + e), p2(u + e), p2(T + e)))
            dst = g
            for e in range(4): A("v_cvt_pk_bf16_f32 v%d, v%d, v%d" % (dst + e, u + 2 * e, u + 2 * e + 1))
            A("buffer_store_dwordx4 %s, v3, s[36:39], s53 offen offset:%d%s" % (q("v", g), (jt & 3) * 1024, " sc1"))
            if p == 0 and jt == 5:
                A("s_waitcnt vmcnt(6)")
                A("v_cmp_ne_u32 vcc, s%d, v4" % M.TOK); A("s_nop 1"); A("s_mov_b32 vcc_hi, 0"); A("s_nop 3")
                A("s_cbranch_vccz pd_f3g")
                M.poll(A, "f3g", 46, 7, 4, 32, sleep=4)
                z_fetch(A, M, zs=32)
            if p == 1 and jt == int(ENV("FLAGA", "5")):
                A("s_waitcnt vmcnt(%d)" % (jt + 1))
                M.set_flag(A, 54, 12, 13)
    A("s_mov_b32 s58, 1")

def gemm2(A, M):
    W = M.WAVE
    if not ENV("G1IT"): stamp(A, 8)
    A("s_barrier")
    ZD, D1, DS, PK, ITW, TT = 32, 48, 80, 112, 128, 144
    A("v_lshrrev_b32 v20, 1, v1"); A("v_and_b32 v20, 7, v20"); A("v_lshlrev_b32 v21, 1, v2"); A("v_xor_b32 v20, v20, v21"); A("v_lshlrev_b32 v20, 4, v20")
    A("v_lshl_add_u32 v20, v1, 7, v20"); A("v_add_u32 v20, 0x%x, v20" % ZL); A("v_xor_b32 v21, 16, v20")
    for k in range(2):
        for dh in range(2): A("ds_read_b128 %s, v%d offset:%d" % (q("v", ZD + 8 * k + 4 * dh), 20 + k, dh * 8192))
    A("v_add_u32 v23, 0x%x, v3" % (96 * 1024))
    for dh in range(2):
        for bh in range(2):
            for part in range(2): M.tab_read(A, q("a", I1 + 16 * bh + 8 * part + 4 * dh), "i1_%d%d%d" % (bh, part, dh), "i1_000", 23, 16384)
    for bh in range(2):
        for part in range(2): M.tab_read(A, q("a", I1S + 8 * bh + 4 * part), "i1s_%d%d" % (bh, part), "i1_000", 23, 16384)
    for bh in range(2):
        for part in range(2): M.tab_read(A, q("v", ITW + 8 * bh + 4 * part), "itw%d%d" % (bh, part), "i1_000", 23, 16384)
    for ah in range(2): M.tab_read(A, q("a", I2 + 4 * ah), "i2_%d" % ah, "i1_000", 23, 16384)
    A("v_and_b32 v22, 15, v1"); A("v_lshlrev_b32 v22, 6, v22"); A("v_lshrrev_b32 v23, 4, v1"); A("v_lshl_add_u32 v22, v23, 4, v22")
    A("s_and_b32 s40, s2, 1"); A("s_lshl_b32 s40, s40, 21"); A("s_lshl_b32 s41, s%d, 19" % W); A("s_add_u32 s40, s40, s41")
    A("s_lshr_b32 s41, s2, 1"); A("s_lshl_b32 s41, s41, 11"); A("s_add_u32 s40, s40, s41"); A("s_add_u32 s41, s40, 0x40000")
    A("s_mov_b32 s69, s58")
    M.srd(A, 56, M.PWS, M.WS_S, M.SZ_S)
    A("s_mov_b64 s[46:47], 0xffff")
    A("s_waitcnt lgkmcnt(6)")
    def mm(d, a, b, c=None):
        A("%s %s, %s, %s, %s" % (MF, q("v", d), a, b, "0" if c is None else q("v", c)))
    for k in range(2):
        for dh in range(2):
            for bh in range(2):
                for part in range(2):
                    d = D1 + 16 * k + 8 * bh + 4 * part
                    mm(d, q("v", ZD + 8 * k + 4 * dh), q("a", I1 + 16 * bh + 8 * part + 4 * dh), None if dh == 0 else d)
        for bh in range(2):
            for part in range(2):
                mm(DS + 16 * k + 8 * bh + 4 * part, q("v", ZD + 8 * k + 4 * part), q("a", I1S + 8 * bh + 4 * part))
    neg = " neg_lo:[1,0,0] neg_hi:[1,0,0]"
    A("s_waitcnt lgkmcnt(0)")
    for k in range(2):
        for x in range(4):
            A("v_cndmask_b32 v%d, v%d, v%d, s[46:47]" % (D1 + 16 * k + 4 * x, D1 + 16 * k + 4 * x, DS + 16 * k + 4 * x))
        for bh in range(2):
            re = D1 + 16 * k + 8 * bh; im = re + 4; tc = ITW + 8 * bh; ts = tc + 4; t = TT + 8 * bh
            for h in (0, 2): A("v_pk_mul_f32 %s, %s, %s" % (p2(t + h), p2(re + h), p2(tc + h)))
            for h in (0, 2): A("v_pk_mul_f32 %s, %s, %s" % (p2(t + 4 + h), p2(im + h), p2(tc + h)))
            for h in (0, 2): A("v_pk_fma_f32 %s, %s, %s, %s%s" % (p2(t + h), p2(im + h), p2(ts + h), p2(t + h), neg))
            for h in (0, 2): A("v_pk_fma_f32 %s, %s, %s, %s" % (p2(t + 4 + h), p2(re + h), p2(ts + h), p2(t + 4 + h)))
            for r in range(4): A("v_cvt_pk_bf16_f32 v%d, v%d, v%d" % (PK + 8 * k + 4 * bh + r, t + r, t + 4 + r))
    for k in range(2):
        for ah in range(2):
            for bh in range(2): mm(D1 + 16 * k + 8 * ah + 4 * bh, q("v", PK + 8 * k + 4 * bh), q("a", I2 + 4 * ah))
    ACC = 32; AF, HR = 0, 128
    def hreg(s, kk):
        i = 8 * (s & 7) + 4 * kk
        return 128 + i if i < 32 else 224 + i - 32
    A("v_and_b32 v24, 15, v1"); A("v_lshlrev_b32 v4, 4, v24"); A("v_lshl_add_u32 v4, v2, 11, v4")
    A("v_bfe_u32 v25, v1, 4, 1"); A("v_lshl_add_u32 v4, v25, 10, v4"); A("v_lshrrev_b32 v26, 5, v1"); A("v_lshl_add_u32 v4, v26, 8, v4")
    A("v_bfe_u32 v27, v1, 2, 2")
    A("v_lshl_add_u32 v28, v26, 2, v27"); A("v_lshlrev_b32 v28, 8, v28"); A("v_and_b32 v29, 3, v1"); A("v_lshl_add_u32 v28, v29, 3, v28")
    A("v_lshl_or_b32 v29, v27, 1, v26"); A("v_xor_b32 v29, v29, v25"); A("s_lshl_b32 s45, s44, 2"); A("v_xor_b32 v29, s45, v29")
    for t in range(4):
        A("v_xor_b32 v30, %d, v29" % (2 * t)); A("v_lshl_add_u32 v%d, v30, 5, v28" % (8 + t))
    A("v_mov_b32 v12, 0"); A("v_lshlrev_b32 v13, 7, v1")
    SO = 160
    for k in range(2):
        for x in range(8): A("v_cvt_pk_bf16_f32 v%d, v%d, v%d" % (SO + 8 * k + x, D1 + 16 * k + 2 * x, D1 + 16 * k + 2 * x + 1))
    A("s_lshl_b32 s60, s42, 1"); A("s_add_u32 s60, s60, s44"); A("s_lshl_b32 s46, s60, 12"); A("s_mul_i32 s60, s60, %d" % (56 * 8192))
    A("s_add_u32 s46, s46, %d" % M.FH)
    A("s_and_b32 s47, s42, -2"); A("s_add_u32 s47, s47, s44"); A("s_lshl_b32 s47, s47, 11"); A("s_add_u32 s47, s47, %d" % M.FB)
    M.poll(A, "fa", 46, 13, 31, 28, sleep=4)
    if not ENV("G1IT"): stamp(A, 9)
    M.srd(A, 32, M.PWS, M.WS_H, M.SZ_H); A("s_add_u32 s34, s60, %d" % (56 * 8192))
    def hload(s, kk):
        o = ["buffer_load_dwordx4 %s, v4, s[32:35], s60 offen offset:%d%s" % (q("a", hreg(s, kk)), kk * 512, M.HLD)]
        if kk: o.append("s_add_u32 s60, s60, 0x2000")
        return o
    def reads(s):
        o = []
        for kk in range(2):
            for t in range(4):
                for h in range(2):
                    r = AF + 32 * (s & 3) + 16 * kk + 4 * t + 2 * h
                    o.append("ds_read_b64_tr_b16 a[%d:%d], v%d offset:%d" % (r, r + 1, 8 + t, (s & 7) * 8192 + h * 4096 + kk * 2048))
        return o
    for s in range(8):
        for y in hload(s, 0) + hload(s, 1): A(y)
    for x in reads(0) + reads(1): A(x)
    A("s_mov_b32 s6, s40"); A("s_mov_b32 s7, s41")
    A("s_lshl_b32 s52, s2, 9"); A("s_lshl_b32 s53, s%d, 7" % W); A("s_add_u32 s52, s52, s53"); A("s_xor_b32 s53, s52, 0x200")
    A("s_add_u32 s52, s52, %d" % M.FX); A("s_add_u32 s53, s53, %d" % M.FX)
    A("s_lshl_b32 s54, s2, 7"); A("s_add_u32 s54, s54, %d" % M.FS)
    A("s_lshl_b32 s46, s42, 11"); A("s_lshl_b32 s45, s%d, 9" % W); A("s_add_u32 s46, s46, s45"); A("s_add_u32 s46, s46, %d" % M.FS)
    M.srd(A, 12, M.PX, 0, 4 << 20)
    A("v_lshrrev_b32 v20, 3, v1"); A("v_lshlrev_b32 v20, 18, v20"); A("v_lshl_add_u32 v20, v2, 12, v20")
    A("v_and_b32 v21, 7, v1"); A("v_lshl_add_u32 v20, v21, 4, v20")
    A("s_lshl_b32 s40, s42, 14"); A("s_lshl_b32 s41, s43, 8"); A("s_add_u32 s40, s40, s41"); A("s_lshl_b32 s41, s44, 7"); A("s_add_u32 s40, s40, s41"); A("s_add_u32 s41, s40, 0x200000")
    XR, SR = 96, 112
    for i in range(4):
        A("buffer_load_dwordx4 %s, v20, s[12:15], s%d offen offset:%d" % (q("v", XR + 4 * i), 40 + (i & 1), (i >> 1) * 2048))
    for i in range(64): A("v_mov_b32 v%d, 0" % (ACC + i))
    A("v_and_b32 v21, 31, v1"); A("v_mul_u32_u24 v16, 144, v21"); A("v_lshrrev_b32 v21, 5, v1"); A("v_lshl_add_u32 v16, v21, 3, v16"); A("v_lshl_add_u32 v16, v2, 13, v16")
    A("v_lshrrev_b32 v21, 3, v1"); A("v_mul_u32_u24 v17, 144, v21"); A("v_and_b32 v21, 7, v1"); A("v_lshl_add_u32 v17, v21, 4, v17"); A("v_lshl_add_u32 v17, v2, 13, v17")
    FL = "s[%d:%d]" % (M.SFL, M.SFL + 3)
    def quick(tag, vd, nl, soff):
        A("v_cmp_ne_u32 vcc, s%d, v%d" % (M.TOK, vd)); A("s_nop 1"); A("s_bfm_b64 s[66:67], %d, 0" % nl); A("s_and_b64 vcc, vcc, s[66:67]"); A("s_nop 3")
        A("s_cbranch_vccz pd_%s" % tag)
        M.poll(A, tag, soff, 13, vd, nl)
    NK = 56; R = int(ENV("G2R", "8"))
    PR, UX, US, PB = 128, 160, 192, 64
    vm = []
    for s_ in range(8): vm += [("H", s_), ("H", s_)]
    vm += [("x", 0)] * 4
    lg = [0] * 16 + [1] * 16
    def V(text, tag): A(text); vm.append(tag)
    def vwait(tags):
        last = max([i for i, t in enumerate(vm) if t in tags] + [-1])
        return min(63, len(vm) - 1 - last)
    def lwait(u):
        last = max(i for i, t in enumerate(lg) if t == u)
        return min(15, len(lg) - 1 - last)
    units = [[(s_, (0, 1, 2, 3))] for s_ in range(NK - R)]
    for tl in ((2, 3), (0, 1)):
        for s_ in range(NK - R, NK, 2): units.append([(s_, tl), (s_ + 1, tl)])
    def frs(u):
        o = []
        for s_, tl in units[u]:
            for kk in range(2):
                for t in tl: o.append((s_, kk, t, AF + 32 * (u & 3) + 4 * len(o)))
        return o
    def ureads(u):
        o = []
        for s_, kk, t, r in frs(u):
            for h in range(2):
                o.append("ds_read_b64_tr_b16 a[%d:%d], v%d offset:%d" % (r + 2 * h, r + 2 * h + 1, (8 if (s_ >> 3) & 1 == 0 else 28) + t, (s_ & 7) * 8192 + h * 4096 + kk * 2048))
        return o
    for t in range(4): A("v_add_u32 v%d, 0x10000, v%d" % (28 + t, 8 + t))
    cert = 0
    for u in range(len(units)):
        ks = [x[0] for x in units[u]]
        need = [("H", k) for k in ks]
        nxt = max(x[0] for x in units[u + 2]) >> 2 if u + 2 < len(units) else 0
        bar = nxt > cert
        if bar: need.append(("W", nxt))
        if u == 22: need += [("S", 0)]
        if u == 20: need += [("fb", 0)]
        if u == 40: need += [("fs", 0)]
        A("s_waitcnt vmcnt(%d) lgkmcnt(%d)" % (vwait(need), lwait(u)))
        if bar: A("s_barrier"); cert = nxt
        if u in (2, 22):
            assert bar
            A("s_cmp_lg_u32 s%d, 0" % W); A("s_cbranch_scc1 g2_np%d" % u)
            if u == 2:
                A("s_cmp_eq_u32 s69, 0"); A("s_cbranch_scc1 g2_np%d" % u)
                M.set_flag(A, 55, 12, 25)
            else: M.set_flag(A, 54, 12, 25)
            A.label("g2_np%d" % u)
        if u == 20: quick("fb", 18, 14, 47)
        if u == 40: quick("fs", 19, 4, 46)
        if ENV("G2IT") and u % 8 == 0 and u < 48: stamp(A, 2 + u // 8)
        rd = ureads(u + 2) if u + 2 < len(units) else []
        fr = frs(u)
        ex = [[] for _ in range(8)]
        if u < NK - R:
            iv = (u + 10) >> 2
            if iv < 14:
                d0, d1 = g2_dma_of(u); ex[1].append((d0, ("W", iv))); ex[5].append((d1, ("W", iv)))
            if u + 8 < NK:
                ex[3].append((hload(u, 0), ("H", u + 8))); ex[7].append((hload(u, 1), ("H", u + 8)))
        if u in (4, 7, 10, 13):
            i = (u - 4) // 3
            ex[2].append((["buffer_store_dwordx4 %s, v22, s[56:59], s%d offen offset:%d sc1" % (q("v", SO + 4 * i), 6 + (i >> 1), (i & 1) * 1024)], ("S", 0)))
        if u == int(ENV("FBLD", "12")): ex[2].append((["s_bfm_b64 exec, 14, 0", "buffer_load_dword v18, v13, %s, s47 offen sc1" % FL, "s_mov_b64 exec, -1"], ("fb", 0)))
        if u == 32: ex[2].append((["s_bfm_b64 exec, 4, 0", "buffer_load_dword v19, v13, %s, s46 offen sc1" % FL, "s_mov_b64 exec, -1"], ("fs", 0)))
        if 40 <= u < 44:
            i = u - 40
            ex[2].append((["buffer_load_dwordx4 %s, v20, s[56:59], s%d offen offset:%d sc1" % (q("v", SR + 4 * i), 40 + (i & 1), (i >> 1) * 2048)], ("s", 0)))
        snd = NK - R + R // 2
        if R and u == snd:
            B = Asm(); M.srd(B, 36, M.POUT, 0, 4 << 20); B("s_xor_b32 s46, s40, 0x80"); B("s_xor_b32 s47, s41, 0x80")
            ex[0].append(([t for k, t in B.items], None))
            for i in range(4):
                cv = ["v_cvt_pk_bf16_f32 v%d, v%d, v%d" % (PR + 4 * i + e, ACC + 32 + 8 * i + 2 * e, ACC + 33 + 8 * i + 2 * e) for e in range(4)]
                ex[2 + i].append((cv + ["buffer_store_dwordx4 %s, v20, s[36:39], s%d offen offset:%d sc1" % (q("v", PR + 4 * i), 46 + (i & 1), (i >> 1) * 2048)], ("X", 0)))
        for i, (s_, kk, t, r) in enumerate(fr):
            d = ACC + 16 * t
            A("%s v[%d:%d], %s, %s, v[%d:%d]" % (MF32, d, d + 15, q("a", r), q("a", hreg(s_, kk)), d, d + 15))
            for x in rd[2 * i:2 * i + 2]: A(x); lg.append(u + 2)
            for ins, tag in ex[i]:
                for y in ins:
                    A(y)
                    if y.startswith("buffer"): vm.append(tag)
    stamp(A, 10)
    nl2e = -math.log2(math.e)
    A("s_mov_b32 s56, 0x%x" % f32(nl2e)); A("s_mov_b32 s57, s56"); A("s_mov_b32 s59, 0xffff0000")
    A("v_mov_b32 v26, 1.0"); A("v_mov_b32 v27, 1.0"); A("v_mov_b32 v23, s%d" % M.TOK)
    A("s_waitcnt vmcnt(0)")
    M.set_flag(A, 52, 12, 23)
    A("s_barrier")
    for i in range(16):
        A("v_lshlrev_b32 v%d, 16, v%d" % (UX + 2 * i, XR + i)); A("v_and_b32 v%d, s59, v%d" % (UX + 2 * i + 1, XR + i))
        A("v_lshlrev_b32 v%d, 16, v%d" % (US + 2 * i, SR + i)); A("v_and_b32 v%d, s59, v%d" % (US + 2 * i + 1, SR + i))
    M.poll(A, "fx", 53, 12, 24, 1, sleep=1)
    for i in range(4):
        A("buffer_load_dwordx4 %s, v20, s[36:39], s%d offen offset:%d sc1" % (q("v", PB + 4 * i), 40 + (i & 1), (i >> 1) * 2048))
    H4 = range(0, 8, 2)
    for t in range(4):
        b = 8 * t; T = 224 + 8 * (t & 1)
        A("s_waitcnt vmcnt(%d)" % (3 - t))
        for e in range(4):
            A("v_lshlrev_b32 v%d, 16, v%d" % (T + 2 * e, PB + 4 * t + e)); A("v_and_b32 v%d, s59, v%d" % (T + 2 * e + 1, PB + 4 * t + e))
        for e in H4: A("v_pk_add_f32 %s, %s, %s" % (p2(ACC + b + e), p2(ACC + b + e), p2(T + e)))
        for e in H4: A("v_pk_mul_f32 %s, %s, s[56:57]" % (p2(T + e), p2(ACC + b + e)))
        for e in range(8): A("v_exp_f32 v%d, v%d" % (T + e, T + e))
        A("s_nop 0")
        for e in H4: A("v_pk_add_f32 %s, %s, v[26:27]" % (p2(T + e), p2(T + e)))
        for e in range(8): A("v_rcp_f32 v%d, v%d" % (T + e, T + e))
        A("s_nop 0")
        for e in H4: A("v_pk_mul_f32 %s, %s, %s" % (p2(ACC + b + e), p2(ACC + b + e), p2(T + e)))
        for e in range(4): A("v_cvt_pk_bf16_f32 v%d, v%d, v%d" % (PR + b + e, ACC + b + 2 * e, ACC + b + 2 * e + 1))
        for u in range(2):
            A("ds_write_b64 v16, %s offset:%d" % (p2(PR + b + 2 * u), (t >> 1) * 64 + (2 * (t & 1) + u) * 16))
    A("s_waitcnt lgkmcnt(0)")
    for i in range(4): A("ds_read_b128 %s, v17 offset:%d" % (q("v", ACC + 4 * i), i * 8 * 144))
    for i in range(4):
        A("s_waitcnt lgkmcnt(%d)" % (3 - i))
        T = 224 + 8 * (i & 1)
        for e in range(4):
            A("v_lshlrev_b32 v%d, 16, v%d" % (T + 2 * e, ACC + 4 * i + e)); A("v_and_b32 v%d, s59, v%d" % (T + 2 * e + 1, ACC + 4 * i + e))
        for e in H4: A("v_pk_fma_f32 %s, %s, %s, %s" % (p2(UX + 8 * i + e), p2(US + 8 * i + e), p2(T + e), p2(UX + 8 * i + e)))
        for e in range(4): A("v_cvt_pk_bf16_f32 v%d, v%d, v%d" % (XR + 4 * i + e, UX + 8 * i + 2 * e, UX + 8 * i + 2 * e + 1))
        A("buffer_store_dwordx4 %s, v20, s[36:39], s%d offen offset:%d" % (q("v", XR + 4 * i), 40 + (i & 1), (i >> 1) * 2048))
    if G.STAMP:
        A("s_waitcnt vmcnt(0)")
        stamp(A, 11); A("s_memrealtime s[100:101]"); A("s_waitcnt lgkmcnt(0)")
        G.stamp_out(A, 0, 12, M.PWS, "all")
        A("v_mov_b32 v2, s100"); A("buffer_store_dword v2, v1, s[96:99], 0 offen offset:48")

def colfft(A, M):
    W_ = M.WAVE
    DAT, FA, FE = 128, 160, 176
    W, T1, T2, D, P, TMP = 8, 40, 48, 104, 168, 200
    A("s_waitcnt lgkmcnt(0)")
    M.flat(A, M.late_stores())
    M.srd(A, 36, M.PWS, M.WS_WT, M.SZ_WT)
    A("s_waitcnt vmcnt(0)")
    A("v_mov_b32 v240, 0"); A("v_lshlrev_b32 v242, 7, v1")
    A("s_barrier")
    M.set_flag_w0(A, "f2f", 63, 240, 241)
    names = []
    for inv in range(2):
        for part in range(2): names.append(("fa_%d%d" % (inv, part), ar(FA + 8 * inv + 4 * part, 4)))
    for t in range(2): names.append(("t1_%d" % t, vr(T1 + 4 * t, 4)))
    for e in range(1, 8):
        for t in range(2): names.append(("t2_%d%d" % (e, t), vr(T2 + 8 * (e - 1) + 4 * t, 4)))
    for ih in range(2): names.append(("fe32_%d" % ih, ar(FE + 4 * ih, 4)))
    for nm, r in names: G.tab_load(A, r, nm, 3, M.STAB, 42)
    A("v_and_b32 v4, 15, v1"); A("v_lshrrev_b32 v5, 4, v1")
    A("v_lshlrev_b32 v6, 6, v4"); A("v_lshl_add_u32 v6, v5, 4, v6")
    for k in range(4):
        A("v_add_u32 v7, %d, v5" % (4 * k)); A("v_xor_b32 v7, v7, v4"); A("v_lshlrev_b32 v7, 4, v7"); A("v_lshl_add_u32 v%d, v5, 8, v7" % (232 + k))
    A("v_lshrrev_b32 v7, 5, v1"); A("v_lshlrev_b32 v7, 3, v7"); A("v_bfe_u32 v236, v1, 4, 1"); A("v_or_b32 v7, v7, v236"); A("v_xor_b32 v7, v7, v4")
    A("v_lshlrev_b32 v7, 4, v7"); A("v_lshl_add_u32 v236, v4, 8, v7"); A("v_lshl_add_u32 v236, v2, 15, v236")
    A("v_add_u32 v4, 0x1000, v3")
    A("s_lshl_b32 s51, s2, 2"); A("s_add_u32 s51, s51, s%d" % W_)
    A("s_and_b32 s41, s51, 15"); A("s_bfe_u32 s42, s51, 0x20004"); A("s_lshl_b32 s42, s42, 7")
    A("s_add_u32 s40, s41, s42")
    A("s_sub_u32 s43, 32, s41"); A("s_cmp_eq_u32 s41, 0"); A("s_cselect_b32 s43, 16, s43")
    A("s_add_u32 s43, s43, 480"); A("s_sub_u32 s43, s43, s42")
    A("s_cmp_ge_u32 s51, 64"); A("s_cselect_b32 s40, s43, s40"); A("s_cselect_b32 s50, -1, 1"); A("s_lshl_b32 s50, s50, 18")
    A("s_lshl_b32 s40, s40, 13")
    M.srd(A, 52, M.PWS, M.WS_Y, M.SZ_Y); M.srd(A, 56, M.PWS, M.WS_Z, M.SZ_Z)
    A("s_lshl_b32 s44, s%d, 13" % W_); A("s_add_u32 s44, s44, %d" % M.F2)
    M.poll(A, "f2", 44, 242, 244, 64, sleep=8)
    A("s_barrier")
    stamp(A, 5)
    A("s_lshl_b32 s41, s51, 15"); A("s_lshl_b32 s42, s%d, 15" % W_)
    for e in range(8):
        A("s_add_u32 m0, s42, %d" % (e * 4096))
        for k in range(4): A("buffer_load_dwordx4 v%d, s[52:55], s41 offen offset:%d sc1 lds" % (232 + k, k * 1024))
        A("s_add_u32 s41, s41, 4096")
    def wload(dst, f, so):
        for e in range(8):
            A("buffer_load_dwordx4 %s, v%d, s[36:39], s%d offen offset:%d sc1" % (q(f, dst + 4 * e), 3 if e < 4 else 4, so, (e & 3) * 1024))
    A("s_cmp_eq_u32 s51, 0"); A("s_cselect_b32 s43, 0x%x, s40" % (512 * 8192))
    wload(W, "v", 43)
    A("s_mov_b32 s48, 0"); A("s_mov_b32 s49, 0xffff0000")
    def yread():
        for e in range(8): A("ds_read_b128 %s, v237 offset:%d" % (q("a", DAT + 4 * e), e * 4096))
    A("v_mov_b32 v237, v236")
    A("s_waitcnt vmcnt(8)")
    yread()
    stamp(A, 6)
    A.label("cf_loop")
    A("s_waitcnt lgkmcnt(0)")
    def mm(d, a, b, c=None):
        A("%s %s, %s, %s, %s" % (MF, q("v", d), a, b, "0" if c is None else q("v", c)))
    tctr = [0]
    def tw_quads(dsts, re, tc, conj, TMP=TMP):
        t = TMP + 8 * (tctr[0] % 4); tctr[0] += 1
        im = re + 4; ts = tc + 4
        neg = " neg_lo:[1,0,0] neg_hi:[1,0,0]"
        for h in (0, 2): A("v_pk_mul_f32 %s, %s, %s" % (p2(t + h), p2(re + h), p2(tc + h)))
        for h in (0, 2): A("v_pk_mul_f32 %s, %s, %s" % (p2(t + 4 + h), p2(im + h), p2(tc + h)))
        for h in (0, 2): A("v_pk_fma_f32 %s, %s, %s, %s%s" % (p2(t + h), p2(im + h), p2(ts + h), p2(t + h), neg if conj else ""))
        for h in (0, 2): A("v_pk_fma_f32 %s, %s, %s, %s%s" % (p2(t + 4 + h), p2(re + h), p2(ts + h), p2(t + 4 + h), "" if conj else neg))
        for r in range(4): A("v_cvt_pk_bf16_f32 v%d, v%d, v%d" % (dsts[r], t + r, t + 4 + r))
    def cm_pairs(items):
        ts = []
        for _ in items:
            ts.append(TMP + 2 * (tctr[0] % 8)); tctr[0] += 1
        for (dst, z, c, s_), t in zip(items, ts):
            A("v_pk_mul_f32 %s, %s, %s op_sel:[0,%d] op_sel_hi:[1,%d]" % (p2(t), p2(z), p2(c & ~1), c & 1, c & 1))
        for (dst, z, c, s_), t in zip(items, ts):
            A("v_pk_fma_f32 %s, %s, %s, %s op_sel:[1,%d,0] op_sel_hi:[0,%d,1] neg_lo:[1,0,0]" % (p2(t), p2(z), p2(s_ & ~1), p2(t), s_ & 1, s_ & 1))
        for (dst, z, c, s_), t in zip(items, ts):
            A("v_cvt_pk_bf16_f32 v%d, v%d, v%d" % (dst, t, t + 1))
    for e in range(8):
        mm(D + 8 * e, q("a", DAT + 4 * e), q("a", FA)); mm(D + 8 * e + 4, q("a", DAT + 4 * e), q("a", FA + 4))
    A("s_add_u32 s40, s40, s50")
    A("s_add_u32 s43, s48, 1"); A("s_and_b32 s43, s43, 3"); A("s_lshl_b32 s43, s43, 5"); A("v_xor_b32 v237, s43, v236")
    yread()
    for e in range(8): tw_quads([P + 4 * e + r for r in range(4)], D + 8 * e, T1, False)
    for e in range(8):
        mm(D + 8 * e, q("a", FA), q("v", P + 4 * e)); mm(D + 8 * e + 4, q("a", FA + 4), q("v", P + 4 * e))
    for e in range(8):
        if e == 0:
            for r in range(4): A("v_cvt_pk_bf16_f32 v%d, v%d, v%d" % (P + 8 * r, D + r, D + 4 + r))
        else: tw_quads([P + 8 * r + e for r in range(4)], D + 8 * e, T2 + 8 * (e - 1), False)
    def stageE():
        for ih in range(2):
            for r in range(4):
                d = "v[%d:%d]" % (D + 16 * r, D + 16 * r + 15)
                A("%s %s, %s, %s, %s" % (MF32, d, q("a", FE + 4 * ih), q("v", P + 8 * r + 4 * ih), "0" if ih == 0 else d))
    stageE()
    A("s_waitcnt vmcnt(0)")
    U = TMP + 16
    A("s_or_b32 s43, s51, s48"); A("s_cmp_eq_u32 s43, 0"); A("s_cbranch_scc1 cf_pack")
    for r in range(4):
        for eh in range(2):
            items = []
            for k in range(4):
                ep = 4 * eh + k; w = W + 4 * ep + r; u = U + 8 * (eh & 1) + 2 * k
                A("v_lshlrev_b32 v%d, 16, v%d" % (u, w)); A("v_and_b32 v%d, s49, v%d" % (u + 1, w))
                items.append((P + 8 * r + ep, D + 16 * r + 2 * ep, u, u + 1))
            cm_pairs(items)
    A.label("cf_mul_done")
    wload(W, "v", 40)
    stageE()
    for r in range(4):
        A("v_cvt_pk_bf16_f32 v%d, v%d, v%d" % (P + r, D + 16 * r, D + 16 * r + 1))
        for xs in ((1, 2, 3, 4), (5, 6, 7)):
            cm_pairs([(P + 4 * (8 - x) + r, D + 16 * r + 2 * x, T2 + 8 * (7 - x) + r, T2 + 8 * (7 - x) + 4 + r) for x in xs])
    for e in range(8):
        mm(D + 8 * e, q("v", P + 4 * e), q("a", FA + 8)); mm(D + 8 * e + 4, q("v", P + 4 * e), q("a", FA + 12))
    for e in range(8): tw_quads([P + 4 * e + r for r in range(4)], D + 8 * e, T1, True)
    for e in range(8):
        mm(D + 8 * e, q("v", P + 4 * e), q("a", FA + 8)); mm(D + 8 * e + 4, q("v", P + 4 * e), q("a", FA + 12))
    for e in range(8):
        for r in range(4): A("v_cvt_pk_bf16_f32 v%d, v%d, v%d" % (P + 4 * e + r, D + 8 * e + r, D + 8 * e + 4 + r))
    for cc in range(4):
        A("s_cmp_eq_u32 s48, %d" % cc); A("s_cbranch_scc0 cf_o%d" % cc)
        for qq in range(32): A("v_accvgpr_write_b32 a%d, v%d" % (4 * qq + cc, P + qq))
        A.label("cf_o%d" % cc)
    A("s_add_u32 s48, s48, 1"); A("s_cmp_lt_u32 s48, 4"); A("s_cbranch_scc1 cf_loop")
    stamp(A, 7)
    A("v_and_b32 v238, 15, v1"); A("v_lshlrev_b32 v238, 4, v238"); A("v_lshl_add_u32 v238, v5, 20, v238")
    A("s_lshl_b32 s41, s51, 8")
    for r in range(4):
        for e in range(8):
            qq = 4 * e + r
            A("s_add_u32 s42, s41, 0x%x" % ((8 * r + e) * 32768))
            A("buffer_store_dwordx4 %s, v238, s[56:59], s42 offen sc1" % q("a", 4 * qq))
    A("s_waitcnt vmcnt(0) lgkmcnt(0)")
    A("s_lshl_b32 s44, s2, 7"); A("s_add_u32 s44, s44, %d" % M.F3)
    A("s_barrier")
    M.set_flag_w0(A, "f3", 44, 240, 241)
    A("s_mov_b32 s44, %d" % M.F3)
    M.poll(A, "f3", 44, 242, 244, 32, sleep=8)
    z_fetch(A, M); i_tabs(A, M); g2_setup(A, M); g2_early(A)
    A("s_mov_b32 s58, 0"); A("s_mov_b32 s55, 0"); A("s_mov_b32 s52, 0"); A("s_mov_b32 s53, 0")
    A("s_waitcnt vmcnt(0)")
    A("s_branch cf_end")
    A.label("cf_pack")
    A("s_nop 11")
    SC = M.LDS_SCR
    A("v_and_b32 v238, 15, v1"); A("v_lshl_add_u32 v238, v5, 6, v238")
    A("v_sub_u32 v239, %d, v238" % (2048 - 48 - 1792)); A("v_lshlrev_b32 v238, 3, v238"); A("v_lshlrev_b32 v239, 3, v239")
    A("v_add_u32 v238, 0x%x, v238" % SC); A("v_add_u32 v239, 0x%x, v239" % SC)
    for r in range(4):
        for ep in range(8): A("ds_write_b64 v238, %s offset:%d" % (p2(D + 16 * r + 2 * ep), 8 * (16 * r + 256 * ep)))
    A("s_mov_b64 exec, 1"); A("ds_write_b64 v238, %s offset:%d" % (p2(D), 8 * 2048)); A("s_mov_b64 exec, -1")
    A("s_mov_b32 s43, 0x%x" % (513 * 8192))
    wload(208, "a", 43)
    for r in range(4):
        for ep in range(8):
            w = W + 4 * ep + r; z = D + 16 * r + 2 * ep; u = U + 2 * (ep & 3); t = TMP + 2 * (ep & 3)
            A("v_lshlrev_b32 v%d, 16, v%d" % (u, w)); A("v_and_b32 v%d, s49, v%d" % (u + 1, w))
            A("v_pk_mul_f32 %s, %s, %s op_sel:[0,0] op_sel_hi:[1,0]" % (p2(t), p2(z), p2(u)))
            A("v_pk_fma_f32 %s, %s, %s, %s op_sel:[1,1,0] op_sel_hi:[0,1,1] neg_lo:[1,0,0]" % (p2(z), p2(z), p2(u), p2(t)))
    A("s_waitcnt vmcnt(0) lgkmcnt(0)")
    for rh in range(2):
        for r in (2 * rh, 2 * rh + 1):
            for ep in range(8): A("ds_read_b64 %s, v239 offset:%d" % (p2(W + 16 * (r & 1) + 2 * ep), 8 * (16 * (3 - r) + 256 * (7 - ep))))
        A("s_waitcnt lgkmcnt(0)")
        for r in (2 * rh, 2 * rh + 1):
            for ep in range(8):
                m = W + 16 * (r & 1) + 2 * ep; z = D + 16 * r + 2 * ep; u = U + 2 * (ep & 3)
                A("v_accvgpr_read_b32 v%d, a%d" % (u + 1, 208 + 4 * ep + r))
                A("v_lshlrev_b32 v%d, 16, v%d" % (u, u + 1)); A("v_and_b32 v%d, s49, v%d" % (u + 1, u + 1))
                A("v_pk_fma_f32 %s, %s, %s, %s op_sel:[0,0,0] op_sel_hi:[1,0,1] neg_hi:[1,0,0]" % (p2(z), p2(m), p2(u), p2(z)))
                A("v_pk_fma_f32 %s, %s, %s, %s op_sel:[1,1,0] op_sel_hi:[0,1,1]" % (p2(z), p2(m), p2(u), p2(z)))
                A("v_cvt_pk_bf16_f32 v%d, v%d, v%d" % (P + 8 * r + ep, z, z + 1))
    A("s_nop 1")
    A("s_branch cf_mul_done")
    A.label("cf_end")
```

```python
import sys, math, os
from asmlib import *
import gen as G
from gen import f32, bf16, TAB, KA, NAME, allreduce_add, stamp, STAMP

KN = NAME + "_kernel"
WS_XN = 0;            SZ_XN = 4 << 20
WS_Y = 4 << 20;       SZ_Y = 4 << 20
WS_WT = 8 << 20;      SZ_WT = 514 * 8192
WS_Z = 13 << 20;      SZ_Z = 4 << 20
WS_S = 17 << 20;      SZ_S = 4 << 20
WS_H = 21 << 20;      SZ_H = 16 * 112 * 8192
WS_FL = 35 << 20;     SZ_FL = 0x80000
F1, F2, F3, FB, FS, FD, FH, FX = 0, 0x8000, 0x10000, 0x18000, 0x20000, 0x28000, 0x40000, 0x60000
LDS_SCR = 128 * 1024
LDS_T2 = 145 * 1024
LDS_SIZE = LDS_T2 + 4096
MF = "v_mfma_f32_16x16x32_bf16"
MF32 = "v_mfma_f32_32x32x16_bf16"
PX, PWR, PWI, PWG, PWU, PWD, POUT, PDBG, PWS = 4, 6, 8, 12, 14, 16, 18, 20, 22
SFL, STAB, SDBG = 24, 28, 32
TOK, WAVE = 70, 3
ENV = os.environ.get
BULK = ENV('BULK', ' sc1')
HLD = ENV('HLD', ' sc1')

def srd(A, d, base, off, size): G.srd(A, d, base, off, size)
def q(f, r): return "%s[%d:%d]" % (f, r, r + 3)
def p2(r): return "v[%d:%d]" % (r, r + 1)

def set_flag(A, soff, vz, vt, val=None, fl=" sc1"):
    A("v_mov_b32 v%d, s%d" % (vt, TOK if val is None else val))
    A("s_mov_b64 exec, 1")
    A("buffer_store_dword v%d, v%d, s[%d:%d], s%d offen%s" % (vt, vz, SFL, SFL + 3, soff, fl))
    A("s_mov_b64 exec, -1")

def set_flag_w0(A, tag, soff, vz, vt):
    A("s_cmp_lg_u32 s%d, 0" % WAVE); A("s_cbranch_scc1 sf_%s" % tag)
    set_flag(A, soff, vz, vt)
    A.label("sf_%s" % tag)

def poll(A, tag, soff, vaddr, vd, nl, width=1, first_hook=None, sleep=2):
    A("s_mov_b32 s68, 0x20000")
    ld = {1: "buffer_load_dword v%d" % vd, 4: "buffer_load_dwordx4 v[%d:%d]" % (vd, vd + 3)}[width]
    def rnd():
        if nl < 64: A("s_bfm_b64 exec, %d, 0" % nl)
        A("%s, v%d, s[%d:%d], s%d offen sc1" % (ld, vaddr, SFL, SFL + 3, soff))
        if nl < 64: A("s_mov_b64 exec, -1")
        A("s_waitcnt vmcnt(0)")
    def chk():
        if width == 4:
            for i in range(4): A("v_xor_b32 v%d, s%d, v%d" % (vd + i, TOK, vd + i))
            A("v_or3_b32 v%d, v%d, v%d, v%d" % (vd, vd, vd + 1, vd + 2)); A("v_or_b32 v%d, v%d, v%d" % (vd, vd, vd + 3))
            A("v_cmp_ne_u32 vcc, 0, v%d" % vd)
        else: A("v_cmp_ne_u32 vcc, s%d, v%d" % (TOK, vd))
        if nl < 64:
            A("s_nop 1")
            A("s_bfm_b64 s[66:67], %d, 0" % nl); A("s_and_b64 vcc, vcc, s[66:67]")
        A("s_nop 3")
    if first_hook:
        rnd(); first_hook(); chk(); A("s_cbranch_vccz pd_%s" % tag)
    A.label("pl_%s" % tag)
    rnd(); chk()
    A("s_cbranch_vccz pd_%s" % tag)
    A("s_sleep %d" % sleep)
    A("s_sub_u32 s68, s68, 1"); A("s_cmp_lg_u32 s68, 0"); A("s_cbranch_scc1 pl_%s" % tag)
    A.label("pd_%s" % tag)

def tab_dma(A, first, lds0, lds1):
    o = TAB.off(first)
    A("s_lshl_b32 s71, s%d, 12" % WAVE); A("s_add_u32 m0, s71, 0x%x" % lds0); A("s_add_u32 s71, s71, 0x%x" % o)
    for p in range(4): A("buffer_load_dwordx4 v3, s[%d:%d], s71 offen%s lds" % (STAB, STAB + 3, " offset:%d" % (p * 1024) if p else ""))
    A("s_lshl_b32 s71, s%d, 10" % WAVE); A("s_add_u32 m0, s71, 0x%x" % lds1); A("s_add_u32 s71, s71, 0x%x" % (o + 16384))
    A("buffer_load_dwordx4 v3, s[%d:%d], s71 offen lds" % (STAB, STAB + 3))
def tab_read(A, dst, name, first, va, d1):
    i = (TAB.off(name) - TAB.off(first)) // 1024
    A("ds_read_b128 %s, v%d offset:%d" % (dst, va, i * 1024 if i < 16 else d1 + (i - 16) * 1024))

def code_srd(A, d, lab):
    A("s_getpc_b64 s[%d:%d]" % (d, d + 1))
    A.label("cs_%s" % lab)
    A("s_add_u32 s%d, s%d, %s-cs_%s" % (d, d, lab, lab)); A("s_addc_u32 s%d, s%d, 0" % (d + 1, d + 1))
    A("s_and_b32 s%d, s%d, 0xffff" % (d + 1, d + 1))
    A("s_mov_b32 s%d, k_done-%s" % (d + 2, lab)); A("s_mov_b32 s%d, 0x20000" % (d + 3))

VWD = 244
def g1_decode(A):
    A("s_and_b32 s40, s2, 7"); A("s_lshr_b32 s41, s2, 3"); A("s_sub_u32 s41, s41, 4")
    A("s_and_b32 s42, s40, 1"); A("s_lshl_b32 s42, s42, 2"); A("s_and_b32 s43, s41, 3"); A("s_add_u32 s42, s42, s43")
    A("s_lshr_b32 s43, s40, 1"); A("s_mul_i32 s43, s43, 7"); A("s_lshr_b32 s44, s41, 2"); A("s_add_u32 s43, s43, s44")
    A("s_and_b32 s46, s%d, 1" % WAVE); A("s_lshr_b32 s47, s%d, 1" % WAVE)
def dmaX(buf):
    o = [["s_add_u32 m0, s64, 0x%x" % (buf * 32768), "buffer_load_dwordx4 v3, s[48:51], s60 offen%s lds" % BULK]]
    for p in range(1, 4): o.append(["buffer_load_dwordx4 v3, s[48:51], s60 offen offset:%d%s lds" % (p * 1024, BULK)])
    o[-1].append("s_add_u32 s60, s60, 0x4000")
    return o
def dmaW(buf, v):
    return [["s_add_u32 m0, s65, 0x%x" % (buf * 32768), "buffer_load_dwordx4 v%d, s[52:55], s61 offen lds" % v],
            ["buffer_load_dwordx4 v%d, s[52:55], s62 offen offset:1024 lds" % v],
            ["buffer_load_dwordx4 v%d, s[56:59], s61 offen offset:2048 lds" % v, "s_add_u32 s61, s61, %d" % (32 * 7168)],
            ["buffer_load_dwordx4 v%d, s[56:59], s62 offen offset:3072 lds" % v, "s_add_u32 s62, s62, %d" % (32 * 7168)]]
def flat(A, l):
    for x in l:
        for y in x: A(y)

def g1_addr(A):
    A("v_mov_b32 v4, v%d" % VWD); A("v_lshlrev_b32 v243, 7, v1")
    A("s_lshl_b32 s40, s47, 13"); A("v_add_u32 v5, s40, v3"); A("v_add_u32 v6, 0x10000, v5")
    A("v_bfe_u32 v7, v1, 4, 1"); A("v_lshlrev_b32 v140, 12, v7")
    A("v_bfe_u32 v7, v1, 5, 1"); A("v_lshl_add_u32 v140, v7, 10, v140")
    A("v_bfe_u32 v7, v1, 2, 2"); A("v_lshl_add_u32 v140, v7, 8, v140")
    A("v_and_b32 v7, 3, v1"); A("v_lshl_add_u32 v140, v7, 3, v140"); A("v_add_u32 v140, 0x4000, v140")
    A("v_bfe_u32 v7, v1, 2, 3"); A("s_lshl_b32 s40, s46, 2"); A("v_xor_b32 v7, s40, v7")
    for t in range(4):
        A("v_xor_b32 v141, %d, v7" % t); A("v_lshl_add_u32 v%d, v141, 5, v140" % (8 + t)); A("v_add_u32 v%d, 0x10000, v%d" % (12 + t, 8 + t))

def phase_a(A):
    RS = 2080; XS = LDS_SCR; YT = 96 * 1024
    A("s_load_dwordx16 s[4:19], s[0:1], 0"); A("s_load_dwordx4 s[20:23], s[0:1], 64")
    A("s_memrealtime s[66:67]")
    if not ENV("NOCPF0"):
        code_srd(A, 36, "a_start"); A("v_lshlrev_b32 v5, 7, v0"); A("buffer_load_dword v243, v5, s[36:39], 0 offen")
        A.label("a_start")
    G.tab_srd(A, STAB, "a")
    A("v_and_b32 v1, 63, v0"); A("v_lshrrev_b32 v2, 6, v0")
    A("v_readfirstlane_b32 s%d, v2" % WAVE)
    A("v_lshlrev_b32 v3, 4, v1")
    A("s_and_b32 s36, s2, 7"); A("s_bfe_u32 s37, s2, 0x10003"); A("s_lshr_b32 s38, s2, 4")
    A("s_lshl_b32 s39, s38, 3"); A("s_add_u32 s39, s39, s36")
    A("s_lshl_b32 s44, s37, 21"); A("s_lshl_b32 s45, s39, 11"); A("s_add_u32 s63, s44, s45"); A("s_add_u32 s69, s63, 0x40000")
    A("v_lshl_add_u32 v4, v2, 19, v3")
    g1_decode(A)
    A("v_lshrrev_b32 v5, 4, v1"); A("s_lshl_b32 s48, s46, 2"); A("v_add_u32 v5, s48, v5")
    A("v_lshlrev_b32 v6, 1, v5"); A("v_and_b32 v7, 15, v1"); A("v_xor_b32 v6, v6, v7")
    A("s_lshl_b32 s48, s47, 4"); A("v_add_u32 v5, s48, v5")
    A("v_mul_u32_u24 v5, 7168, v5"); A("v_lshl_add_u32 v%d, v6, 4, v5" % VWD)
    A("s_lshl_b32 s61, s43, 8"); A("s_add_u32 s62, s61, %d" % (57344 - 1024))
    A("s_lshl_b32 s64, s%d, 12" % WAVE); A("s_add_u32 s65, s64, 0x4000")
    A("s_lshl_b32 s60, s42, 19"); A("s_add_u32 s60, s60, s64")
    A("s_waitcnt lgkmcnt(0)")
    srd(A, 48, PX, 0, 4 << 20)
    X = 8
    A("buffer_load_dwordx4 v[8:11], v4, s[48:51], s63 offen")
    A("buffer_load_dwordx4 v[12:15], v4, s[48:51], s63 offen offset:1024")
    A("buffer_load_dwordx4 v[16:19], v4, s[48:51], s69 offen")
    A("buffer_load_dwordx4 v[20:23], v4, s[48:51], s69 offen offset:1024")
    srd(A, SDBG, PDBG, 0, 256); srd(A, SFL, PWS, WS_FL, SZ_FL)
    VZ = 245
    A("v_mov_b32 v%d, 0" % VZ)
    A("s_or_b32 s44, s2, s%d" % WAVE); A("s_cmp_lg_u32 s44, 0"); A("s_cbranch_scc1 a_notok")
    A("s_or_b32 s66, s66, 1"); A("v_mov_b32 v246, s66")
    A("s_mov_b64 exec, 1")
    A("buffer_store_dword v246, v%d, s[%d:%d], 0 offen sc1" % (VZ, SDBG, SDBG + 3))
    A("s_mov_b64 exec, -1")
    A.label("a_notok")
    F1r = 64; TW = 72; F2r = 88; F2S = 120
    names = [("f1re", F1r), ("f1im", F1r + 4)]
    for bh in range(2):
        for t in range(2): names.append(("tw%d%d" % (bh, t), TW + 8 * bh + 4 * t))
    for dh in range(2):
        for part in range(2):
            for bh in range(2): names.append(("f2_%d%d%d" % (dh, part, bh), F2r + 16 * dh + 8 * part + 4 * bh))
    for part in range(2):
        for bh in range(2): names.append(("f2s_%d%d" % (part, bh), F2S + 8 * part + 4 * bh))
    WSZ = 2048 * 1026
    HL = 200; AB = 248
    def rel_loads(part):
      if part == 0:
        srd(A, 52, PWR, 0, WSZ); srd(A, 56, PWI, 0, WSZ)
        A("s_bfe_u32 s40, s2, 0x10002"); A("s_lshl_b32 s40, s40, 3"); A("s_lshr_b32 s41, s2, 3"); A("s_lshl_b32 s41, s41, 6"); A("s_add_u32 s40, s40, s41")
        A("s_mul_i32 s40, s40, 1026"); A("s_and_b32 s41, s2, 3"); A("s_lshl_b32 s41, s41, 8"); A("s_add_u32 s40, s40, s41")
        A("v_and_b32 v232, 7, v0"); A("v_lshrrev_b32 v233, 3, v0")
        A("v_lshrrev_b32 v234, 3, v1"); A("v_mul_u32_u24 v234, 1026, v234"); A("v_and_b32 v234, -16, v234")
        A("v_lshl_add_u32 v234, v232, 4, v234"); A("v_lshl_add_u32 v234, v2, 6, v234")
        A("v_lshlrev_b32 v235, 15, v233"); A("v_lshl_add_u32 v235, v232, 4, v235")
        A("s_mov_b32 s66, 0x1f1f1f1f"); A("s_mov_b32 s67, s66"); A("s_mov_b64 exec, s[66:67]")
        for mm_ in range(2):
            A("s_add_u32 m0, s64, 0x%x" % (mm_ * 32768))
            for r in range(4):
                A("s_add_u32 s41, s40, %d" % (r * (16 * 1026 - 1024)))
                A("buffer_load_dwordx4 v234, s[%d:%d], s41 offen%s lds" % (52 + 4 * mm_, 55 + 4 * mm_, " offset:%d" % (r * 1024) if r else ""))
        A("s_mov_b64 exec, -1")
      else:
        A("s_lshl_b32 s41, s2, 3"); A("v_add_u32 v236, s41, v232")
        A("v_sub_u32 v237, 2048, v236"); A("v_and_b32 v237, 0x7ff, v237")
        A("v_mul_u32_u24 v238, 1026, v236"); A("v_mul_u32_u24 v237, 1026, v237")
        A("s_cmp_lg_u32 s%d, 0" % WAVE); A("s_cbranch_scc1 a_noabl")
        A("s_mov_b64 exec, 0xff")
        for i, (va, sd, off) in enumerate([(238, 52, 0), (238, 56, 0), (237, 52, 0), (237, 56, 0), (238, 52, 1024), (238, 56, 1024), (237, 52, 1024), (237, 56, 1024)]):
            A("buffer_load_ushort v%d, v%d, s[%d:%d], 0 offen offset:%d" % (AB + i, va, sd, sd + 3, off))
        A("s_mov_b64 exec, -1")
        A.label("a_noabl")
    RELPOS = ENV("RELPOS", "1")
    NY = 0
    if RELPOS == "0": rel_loads(); NY += 16
    TR, XR, XG = 142, 143, 144
    A("v_lshrrev_b32 v7, 2, v1"); A("v_lshlrev_b32 v7, 6, v7"); A("v_and_b32 v%d, 3, v1" % TR)
    A("v_lshl_add_u32 v7, v%d, 3, v7" % TR); A("v_mul_u32_u24 v%d, %d, v2" % (TR, 2 * RS)); A("v_add_u32 v%d, v%d, v7" % (TR, TR)); A("v_add_u32 v%d, 0x%x, v%d" % (TR, XS, TR))
    A("v_and_b32 v7, 7, v1"); A("v_mul_u32_u24 v%d, %d, v7" % (XR, RS)); A("v_lshlrev_b32 v%d, 4, v7" % XG)
    A("v_bfe_u32 v7, v1, 3, 2"); A("v_lshl_add_u32 v%d, v7, 3, v%d" % (XR, XR)); A("v_lshl_add_u32 v%d, v7, 8, v%d" % (XG, XG))
    A("v_lshrrev_b32 v7, 5, v0"); A("v_lshl_add_u32 v%d, v7, 6, v%d" % (XR, XR)); A("v_lshl_add_u32 v%d, v7, 14, v%d" % (XG, XG))
    A("v_add_u32 v%d, 0x%x, v%d" % (XR, XS, XR))
    A("s_lshr_b32 s10, s39, 4"); A("s_lshl_b32 s10, s10, 19"); A("s_and_b32 s11, s39, 15"); A("s_lshl_b32 s11, s11, 10")
    A("s_add_u32 s10, s10, s11"); A("s_lshl_b32 s11, s37, 7"); A("s_add_u32 s10, s10, s11")
    XW = 141
    A("v_mul_u32_u24 v%d, %d, v2" % (XW, 2 * RS)); A("v_add_u32 v%d, v%d, v3" % (XW, XW)); A("v_add_u32 v%d, 0x%x, v%d" % (XW, XS, XW))
    tab_dma(A, "f1re", 112 * 1024, LDS_T2)
    MG, MP, MQ, YB, YR, YG = 136, 137, 138, 139, 146, 145
    A("v_and_b32 v5, 15, v1"); A("v_cmp_eq_u32 vcc, 0, v5"); A("v_mov_b32 v7, 0xffff")
    A("v_cndmask_b32 v%d, -1, 0, vcc" % MG); A("v_cndmask_b32 v%d, 0, v7, vcc" % MP); A("v_lshlrev_b32 v%d, 16, v%d" % (MQ, MP))
    A("v_and_b32 v7, 3, v1"); A("v_lshlrev_b32 v7, 5, v7"); A("v_lshl_add_u32 v%d, v1, 7, v7" % YB); A("v_lshl_add_u32 v%d, v2, 3, v%d" % (YB, YB))
    A("v_add_u32 v%d, 0x%x, v%d" % (YB, YT, YB))
    for r in range(1, 4): A("v_xor_b32 v%d, %d, v%d" % (196 + r, 32 * r, YB))
    A("v_lshlrev_b32 v%d, 4, v0" % YR); A("v_add_u32 v%d, 0x%x, v%d" % (YR, YT, YR))
    A("v_lshrrev_b32 v7, 3, v0"); A("v_lshlrev_b32 v%d, 15, v7" % YG); A("v_and_b32 v7, 3, v7"); A("v_lshlrev_b32 v7, 1, v7")
    A("v_and_b32 v6, 7, v0"); A("v_xor_b32 v7, v7, v6"); A("v_lshl_add_u32 v%d, v7, 4, v%d" % (YG, YG))
    A("s_waitcnt vmcnt(5)")
    stamp(A, 2)
    A("s_mov_b32 s45, 0xffff0000")
    U = 24
    for row in range(2):
        for i in range(8):
            A("v_lshlrev_b32 v%d, 16, v%d" % (U + 16 * row + 2 * i, X + 8 * row + i))
            A("v_and_b32 v%d, s45, v%d" % (U + 16 * row + 2 * i + 1, X + 8 * row + i))
    rel_loads(0)
    S = [56, 57]; T = [58, 59]; Q = [60, 61]
    def tree(dst):
        for row in range(2):
            b = X + 8 * row
            A("v_pk_add_f32 %s, %s, %s" % (p2(b), p2(b), p2(b + 4))); A("v_pk_add_f32 %s, %s, %s" % (p2(b + 2), p2(b + 2), p2(b + 6)))
        for row in range(2): A("v_pk_add_f32 %s, %s, %s" % (p2(X + 8 * row), p2(X + 8 * row), p2(X + 8 * row + 2)))
        for row in range(2): A("v_add_f32 v%d, v%d, v%d" % (dst[row], X + 8 * row, X + 8 * row + 1))
    for row in range(2):
        for i in range(4): A("v_pk_add_f32 %s, %s, %s" % (p2(X + 8 * row + 2 * i), p2(U + 16 * row + 2 * i), p2(U + 16 * row + 8 + 2 * i)))
    tree(S)
    allreduce_add(A, S, T)
    A("s_mov_b32 s44, 0x%x" % f32(1.0 / 1024))
    for row in range(2): A("v_mul_f32 v%d, s44, v%d" % (S[row], S[row]))
    DV = 164
    sel = lambda row: " op_sel:[0,%d] op_sel_hi:[1,%d] neg_lo:[0,1] neg_hi:[0,1]" % (row, row)
    for row in range(2):
        for i in range(8): A("v_pk_add_f32 %s, %s, v[56:57]%s" % (p2(DV + 16 * row + 2 * i), p2(U + 16 * row + 2 * i), sel(row)))
    for row in range(2):
        for i in range(4): A("v_pk_mul_f32 %s, %s, %s" % (p2(X + 8 * row + 2 * i), p2(DV + 16 * row + 2 * i), p2(DV + 16 * row + 2 * i)))
    for row in range(2):
        for i in range(4): A("v_pk_fma_f32 %s, %s, %s, %s" % (p2(X + 8 * row + 2 * i), p2(DV + 16 * row + 8 + 2 * i), p2(DV + 16 * row + 8 + 2 * i), p2(X + 8 * row + 2 * i)))
    tree(Q)
    A("v_cvt_pk_bf16_f32 v62, v56, v57")
    allreduce_add(A, Q, T)
    A("v_lshlrev_b32 v56, 16, v62"); A("v_and_b32 v57, s45, v62")
    for row in range(2): A("v_mul_f32 v%d, s44, v%d" % (Q[row], Q[row]))
    def rnd2():
        A("v_cvt_pk_bf16_f32 v58, v60, v61"); A("v_lshlrev_b32 v60, 16, v58"); A("v_and_b32 v61, s45, v58")
    rnd2()
    for row in range(2): A("v_add_f32 v%d, 0x%x, v%d" % (Q[row], f32(1e-5), Q[row]))
    rnd2()
    for row in range(2): A("v_sqrt_f32 v%d, v%d" % (Q[row], Q[row]))
    rnd2()
    for row in range(2): A("v_rcp_f32 v%d, v%d" % (Q[row], Q[row]))
    A("buffer_load_dword v247, v%d, s[%d:%d], 0 offen sc1" % (VZ, SDBG, SDBG + 3))
    for row in range(2):
        b = U + 16 * row
        for i in range(8): A("v_pk_add_f32 %s, %s, v[56:57]%s" % (p2(b + 2 * i), p2(b + 2 * i), sel(row)))
        for i in range(8): A("v_cvt_pk_bf16_f32 v%d, v%d, v%d" % (X + 8 * row + i, b + 2 * i, b + 2 * i + 1))
        for i in range(8):
            A("v_lshlrev_b32 v%d, 16, v%d" % (b + 2 * i, X + 8 * row + i)); A("v_and_b32 v%d, s45, v%d" % (b + 2 * i + 1, X + 8 * row + i))
        for i in range(8): A("v_pk_mul_f32 %s, %s, v[60:61] op_sel:[0,%d] op_sel_hi:[1,%d]" % (p2(b + 2 * i), p2(b + 2 * i), row, row))
        for i in range(8): A("v_cvt_pk_bf16_f32 v%d, v%d, v%d" % (X + 8 * row + i, b + 2 * i, b + 2 * i + 1))
        A("ds_write_b128 v%d, v[%d:%d] offset:%d" % (XW, X + 8 * row, X + 8 * row + 3, row * RS))
        A("ds_write_b128 v%d, v[%d:%d] offset:%d" % (XW, X + 8 * row + 4, X + 8 * row + 7, row * RS + 1024))
    srd(A, 48, PWS, WS_XN, SZ_XN)
    A("s_waitcnt lgkmcnt(0)")
    for row in range(2):
        for bh in range(2):
            for hh in range(2):
                r = X + 8 * row + 4 * bh + 2 * hh
                A("ds_read_b64_tr_b16 v[%d:%d], v%d offset:%d" % (r, r + 1, TR, row * RS + hh * 1024 + bh * 32))
    A("s_waitcnt vmcnt(9)")
    A("s_barrier")
    XO = 148
    for it in range(4):
        A("ds_read_b64 v[%d:%d], v%d offset:%d" % (XO + 4 * it, XO + 4 * it + 1, XR, it * 512))
        A("ds_read_b64 v[%d:%d], v%d offset:%d" % (XO + 4 * it + 2, XO + 4 * it + 3, XR, it * 512 + 32))
    for it in range(4):
        A("s_add_u32 s41, s10, 0x%x" % (it * 8 * 16384))
        A("s_waitcnt lgkmcnt(%d)" % (6 - 2 * it))
        A("buffer_store_dwordx4 v[%d:%d], v%d, s[48:51], s41 offen sc1" % (XO + 4 * it, XO + 4 * it + 3, XG))
    stamp(A, 3)
    A("v_add_u32 v7, 0x%x, v3" % (112 * 1024))
    for nm, r in names: tab_read(A, vr(r, 4), nm, "f1re", 7, LDS_T2 - 112 * 1024)
    A("s_waitcnt lgkmcnt(12)")
    for row in range(2):
        for bh in range(2):
            for part in range(2):
                d = U + 16 * row + 8 * bh + 4 * part
                A("%s %s, %s, %s, 0" % (MF, q("v", d), q("v", X + 8 * row + 4 * bh), q("v", F1r + 4 * part)))
    PP, PQ = 164, 180
    neg = " neg_lo:[1,0,0] neg_hi:[1,0,0]"
    for row in range(2):
        for bh in range(2):
            re = U + 16 * row + 8 * bh; im = re + 4; tc = TW + 8 * bh; ts = tc + 4; t = 56
            for h in (0, 2): A("v_pk_mul_f32 %s, %s, %s" % (p2(t + h), p2(re + h), p2(tc + h)))
            for h in (0, 2): A("v_pk_mul_f32 %s, %s, %s" % (p2(t + 4 + h), p2(im + h), p2(tc + h)))
            for h in (0, 2): A("v_pk_fma_f32 %s, %s, %s, %s" % (p2(t + h), p2(im + h), p2(ts + h), p2(t + h)))
            for h in (0, 2): A("v_pk_fma_f32 %s, %s, %s, %s%s" % (p2(t + 4 + h), p2(re + h), p2(ts + h), p2(t + 4 + h), neg))
            for r in range(4): A("v_cvt_pk_bf16_f32 v%d, v%d, v%d" % (re + r, t + r, t + 4 + r))
            for r in range(4):
                o = 8 * row + 4 * bh + r
                A("v_and_b32 v%d, v%d, v%d" % (X + o, re + r, MG)); A("v_and_b32 v%d, v%d, v%d" % (PP + o, re + r, MP)); A("v_and_b32 v%d, v%d, v%d" % (PQ + o, re + r, MQ))
    A("v_lshlrev_b32 v240, 1, v232"); A("v_and_b32 v240, 12, v240"); A("v_lshl_add_u32 v240, v232, 7, v240")
    A("v_and_b32 v241, 0x38, v1"); A("v_add_u32 v240, v240, v241"); A("v_lshl_add_u32 v240, v2, 12, v240")
    A("v_and_b32 v239, 1, v0"); A("v_lshlrev_b32 v239, 4, v239")
    A("s_waitcnt vmcnt(5)")
    for r in range(4):
        for mm_ in range(2):
            b = HL + 8 * r + 4 * mm_
            for d in range(3): A("ds_read_b32 v%d, v240 offset:%d" % (b + d, mm_ * 32768 + r * 1024 + 4 * d))
    A("s_waitcnt vmcnt(0)")
    A("v_readfirstlane_b32 s%d, v247" % TOK)
    A("s_barrier")
    A("s_cmp_lg_u32 s%d, 0" % TOK); A("s_cbranch_scc1 a_tok")
    A("s_mov_b32 s68, 0x20000")
    A.label("a_tokl")
    A("buffer_load_dword v247, v%d, s[%d:%d], 0 offen sc1" % (VZ, SDBG, SDBG + 3)); A("s_waitcnt vmcnt(0)")
    A("v_readfirstlane_b32 s%d, v247" % TOK)
    A("s_sub_u32 s68, s68, 1"); A("s_cmp_eq_u32 s68, 0"); A("s_cbranch_scc1 a_tok")
    A("s_cmp_eq_u32 s%d, 0" % TOK); A("s_cbranch_scc1 a_tokl")
    A.label("a_tok")
    A("s_cmp_lg_u32 s%d, 0" % WAVE); A("s_cbranch_scc1 a_nof1")
    A("s_lshl_b32 s41, s2, 7")
    set_flag(A, 41, VZ, 246)
    A.label("a_nof1")
    stamp(A, 4)
    rel_loads(1)
    srd(A, 52, PWG, 0, 1024 * 7168); srd(A, 56, PWU, -2048, 1024 * 7168 + 2048)
    A("s_cmp_lt_u32 s2, 32"); A("s_cselect_b32 s54, 0, s54"); A("s_cselect_b32 s58, 0, s58")
    A("s_waitcnt lgkmcnt(0)")
    A("s_mov_b32 s66, 0x05040100"); A("s_mov_b32 s67, 0x07060302")
    m = []
    for row in range(2):
        for bh in range(2):
            for dh in range(2):
                for part in range(2):
                    d = U + 16 * row + 8 * dh + 4 * part
                    m.append("%s %s, %s, %s, %s" % (MF, q("v", d), q("v", F2r + 16 * dh + 8 * part + 4 * bh), q("v", X + 8 * row + 4 * bh), "0" if bh == 0 else q("v", d)))
        for bh in range(2):
            for dh in range(2):
                for part in range(2):
                    d = U + 16 * row + 8 * dh + 4 * part
                    m.append("%s %s, %s, %s, %s" % (MF, q("v", d), q("v", F2S + 8 * part + 4 * bh), q("v", (PP if dh == 0 else PQ) + 8 * row + 4 * bh), q("v", d)))
    B = Asm()
    WO = 148
    for r in range(4):
        for mm_ in range(2):
            b = HL + 8 * r + 4 * mm_
            B("v_alignbit_b32 v%d, v%d, v%d, v239" % (b, b + 1, b)); B("v_alignbit_b32 v%d, v%d, v%d, v239" % (b + 1, b + 2, b + 1))
    for c in range(4):
        for r in range(4): B("v_perm_b32 v%d, v%d, v%d, s%d" % (WO + 4 * c + r, HL + 8 * r + 4 + (c >> 1), HL + 8 * r + (c >> 1), 66 + (c & 1)))
    for i in range(16): B("v_accvgpr_write_b32 a%d, v%d" % (176 + i, WO + i))
    s2 = interleave(m, dmaW(0, VWD) + dmaW(1, VWD) + dmaW(2, VWD), 0, 32)
    C = Asm(); g1_addr(C)
    s1 = interleave(m, [t for k, t in C.items], 17, 32)
    s3 = interleave(m, [t for k, t in B.items], 0, 20)
    for k, x in enumerate(m):
        A(x)
        for y in s2[k] + s1[k] + s3[k]: A(y)
    A("s_cmp_lt_u32 s2, 32"); A("s_cbranch_scc1 a_nox")
    A("s_lshl_b32 s44, s42, 12")
    if ENV("AIT"): stamp(A, 8, force=True)
    poll(A, "f1", 44, 243, 246, 32)
    stamp(A, 5)
    for b in range(3): flat(A, dmaX(b))
    A("s_branch a_x")
    A.label("a_nox")
    A("s_waitcnt vmcnt(0)")
    A.label("a_x")
    if ENV("AIT") == "2": stamp(A, 7, force=True)
    srd(A, 32, PWS, WS_Y, (WS_WT - WS_Y) + SZ_WT)
    A("s_cmp_lg_u32 s%d, 0" % WAVE); A("s_cbranch_scc1 a_noab")
    for i in range(8): A("v_lshlrev_b32 v%d, 16, v%d" % (AB + i, AB + i))
    A("v_add_f32 v80, v248, v250"); A("v_sub_f32 v81, v249, v251"); A("v_add_f32 v82, v252, v254"); A("v_sub_f32 v83, v253, v255")
    A("v_add_f32 v84, v80, v82"); A("v_add_f32 v85, v81, v83"); A("v_sub_f32 v86, v80, v82"); A("v_sub_f32 v87, v81, v83")
    for i in range(4): A("v_mul_f32 v%d, 0x3e800000, v%d" % (84 + i, 84 + i))
    A("v_cvt_pk_bf16_f32 v84, v84, v85"); A("v_cvt_pk_bf16_f32 v86, v86, v87")
    A("v_and_b32 v80, 15, v236"); A("v_lshlrev_b32 v80, 4, v80"); A("v_bfe_u32 v81, v236, 4, 2"); A("v_lshl_add_u32 v80, v81, 2, v80")
    A("v_lshrrev_b32 v81, 6, v236"); A("v_lshl_add_u32 v80, v81, 8, v80")
    A("s_mov_b32 s40, 0x%x" % (WS_WT - WS_Y + 512 * 8192)); A("s_mov_b32 s41, 0x%x" % (WS_WT - WS_Y + 513 * 8192))
    A("s_mov_b64 exec, 0xff")
    A("buffer_store_dword v84, v80, s[32:35], s40 offen sc1"); A("buffer_store_dword v86, v80, s[32:35], s41 offen sc1")
    A("s_mov_b64 exec, -1")
    A.label("a_noab")
    A("s_nop 4")
    YP = 64
    for row in range(2):
        for dh in range(2):
            for r in range(4):
                re = U + 16 * row + 8 * dh + r
                A("v_cvt_pk_bf16_f32 v%d, v%d, v%d" % (YP + 8 * dh + 2 * r + row, re, re + 4))
    for dh in range(2):
        for r in range(4):
            A("ds_write_b64 v%d, %s offset:%d" % (YB if r == 0 else 196 + r, p2(YP + 8 * dh + 2 * r), dh * 8192))
    A("s_lshl_b32 s10, s36, 12"); A("s_lshl_b32 s41, s38, 8"); A("s_add_u32 s10, s10, s41"); A("s_lshl_b32 s41, s37, 7"); A("s_add_u32 s10, s10, s41")
    A("s_and_b32 s11, s2, 3"); A("s_lshl_b32 s11, s11, 20"); A("s_lshr_b32 s41, s2, 2"); A("s_lshl_b32 s41, s41, 7"); A("s_add_u32 s11, s11, s41")
    A("s_add_u32 s11, s11, 0x%x" % (WS_WT - WS_Y))
    A("s_lshl_b32 s63, s2, 7"); A("s_add_u32 s63, s63, %d" % F2)
    A("v_mov_b32 v18, v%d" % YG); A("v_mov_b32 v19, v235")
    if ENV("AIT") == "2": stamp(A, 9, force=True)
    A("v_mov_b32 v28, v243"); A("v_mov_b32 v29, 0")
    A("s_waitcnt vmcnt(8) lgkmcnt(0)")
    if ENV("AIT") == "2": stamp(A, 10, force=True)
    A("s_barrier")
    for it in range(4): A("ds_read_b128 %s, v%d offset:%d" % (q("a", 160 + 4 * it), YR, it * 4096))

def late_stores():
    o = []
    for it in range(4):
        o.append(["buffer_store_dwordx4 %s, v18, s[32:35], s10 offen sc1" % q("a", 160 + 4 * it), "s_add_u32 s10, s10, 0x%x" % (32 * 32768)])
    for c in range(4):
        o.append(["buffer_store_dwordx4 %s, v19, s[32:35], s11 offen sc1" % q("a", 176 + 4 * c), "s_add_u32 s11, s11, 8192"])
    return o

from gen2b import gemm1, colfft, gemm2

def main():
    G.build_tables(); G.build_tables_inv()
    A = Asm(); G.kernel_head(A, KN)
    A("s_cmp_ge_u32 s2, 256"); A("s_cbranch_scc1 k_done")
    stamp(A, 0); stamp(A, 1, True)
    M = sys.modules[__name__]
    phase_a(A)
    A("s_cmp_lt_u32 s2, 32"); A("s_cbranch_scc1 k_fft")
    gemm1(A, M)
    A.label("k_g2")
    gemm2(A, M)
    A("s_endpgm")
    A.label("k_fft")
    colfft(A, M)
    A("s_branch k_g2")
    A.label("k_done"); A("s_endpgm")
    A.fix()
    stub = open("cdna_kernels/%s.s.ref" % NAME).read().split("\n")
    head = [l for l in stub if l.startswith(";") and "@launch" not in l and "Override" not in l and "grid=ceil" not in l]
    o = "\n".join(head[:12]) + "\n"
    if ENV("ASLIST"): o += "; @launch kernel=%s grid=(256,1,1) block=(256,1,1) lds=%d\n" % (KN, LDS_SIZE)
    else: o += "; @launch grid=(256,1,1) block=(256,1,1) lds=%d\n" % LDS_SIZE
    o += '.amdgcn_target "amdgcn-amd-amdhsa--gfx950"\n'
    o += A.text() + G.kernel_desc(KN, 512, 256, 72)
    o += '.section .rodata,"a"\n.p2align 8\n.type gf_tab,@object\ngf_tab:\n'
    for b in TAB.blocks:
        for i in range(0, 256, 8): o += ".long " + ",".join("0x%x" % x for x in b[i:i + 8]) + "\n"
    o += ".size gf_tab, %d\n" % (len(TAB.blocks) * 1024)
    path = sys.argv[1] if len(sys.argv) > 1 else "cdna_kernels/%s.s" % NAME
    open(path, "w").write(o)
    print("wrote", path, len(o), "bytes")

if __name__ == "__main__":
    main()
```

```python
from asmlib import *
import math, os
import gen as G
from gen import stamp, f32
ENV = os.environ.get
MF = "v_mfma_f32_16x16x32_bf16"
MF32 = "v_mfma_f32_32x32x16_bf16"
def q(f, r): return "%s[%d:%d]" % (f, r, r + 3)
def p2(r): return "v[%d:%d]" % (r, r + 1)

ZL = 128 * 1024
I1, I1S, I2 = 160, 192, 208
DV = [5, 6, 14, 15]
def g2_setup(A, M, DV=DV, t0=7, t1=13):
    W = M.WAVE
    A("s_and_b32 s44, s2, 1"); A("s_bfe_u32 s42, s2, 0x20001"); A("s_lshl_b32 s42, s42, 2"); A("s_bfe_u32 s43, s2, 0x20003"); A("s_add_u32 s42, s42, s43")
    A("s_lshr_b32 s43, s2, 5")
    d0, d1, d2, d3 = DV
    A("v_lshrrev_b32 v%d, 4, v1" % t0); A("v_lshl_add_u32 v%d, v2, 6, v%d" % (t1, t0)); A("v_lshlrev_b32 v%d, 11, v%d" % (t1, t1))
    A("v_lshlrev_b32 v%d, 2, v%d" % (t0, t0)); A("v_and_b32 v%d, 15, v1" % d0); A("v_xor_b32 v%d, v%d, v%d" % (t0, t0, d0))
    A("v_lshl_add_u32 v%d, v%d, 4, v%d" % (d0, t0, t1)); A("v_xor_b32 v%d, 32, v%d" % (d1, d0))
    A("v_add_u32 v%d, 0x%x, v%d" % (d2, 2 * 7168, d0)); A("v_add_u32 v%d, 0x%x, v%d" % (d3, 3 * 7168, d1)); A("v_add_u32 v%d, 0x%x, v%d" % (d1, 7168, d1))
    M.srd(A, 48, M.PWD, 0, 3584 * 2048)
    A("s_mul_i32 s45, s44, %d" % (1792 * 2048)); A("s_add_u32 s50, s45, %d" % (1792 * 2048))
    A("s_lshl_b32 s61, s43, 8"); A("s_add_u32 s61, s61, s45"); A("s_add_u32 s62, s61, %d" % (1792 * 2048))
    A("s_lshl_b32 s64, s%d, 13" % W)
def g2_dma(par, p, DV=DV):
    o = []
    if p % 4 == 0: o.append("s_add_u32 m0, s64, 0x%x" % (par * 32768 + (p >> 2) * 4096))
    o.append("buffer_load_dwordx4 v%d, s[48:51], s61 offen%s lds" % (DV[p & 3], " offset:%d" % ((p & 3) * 1024) if p & 3 else ""))
    if p == 3: o.append("s_add_u32 s61, s61, 0x8000")
    if p == 7:
        o.append("s_add_u32 s61, s61, 0x%x" % (256 * 2048 - 0x8000))
        o += ["s_cmp_ge_u32 s61, s62", "s_cselect_b32 s65, %d, 0" % ((1792 - 32) * 2048), "s_cselect_b32 s62, -1, s62", "s_sub_u32 s61, s61, s65"]
        if par == 1: o.append("s_xor_b32 s64, s64, 0x10000")
    return o
def g2_dma_of(s):
    u = (s + 2) & 7; par = u >> 2; p = 2 * (u & 3)
    return g2_dma(par, p), g2_dma(par, p + 1)
def z_fetch(A, M, t0=7, t1=13, zs=56):
    W = M.WAVE
    M.srd(A, zs, M.PWS, M.WS_Z, M.SZ_Z)
    A("v_lshrrev_b32 v%d, 4, v1" % t0); A("v_and_b32 v%d, 7, v1" % t1); A("v_xor_b32 v%d, v%d, v%d" % (t0, t0, t1)); A("v_lshlrev_b32 v%d, 4, v%d" % (t0, t0))
    A("v_lshrrev_b32 v%d, 3, v1" % t1); A("v_lshl_add_u32 v%d, v%d, 8, v%d" % (t0, t1, t0)); A("v_xor_b32 v%d, 64, v%d" % (t1, t0))
    A("s_lshr_b32 s40, s2, 1"); A("s_lshl_b32 s40, s40, 15"); A("s_and_b32 s41, s2, 1"); A("s_lshl_b32 s41, s41, 7"); A("s_add_u32 s40, s40, s41")
    A("s_lshl_b32 s41, s%d, 13" % W); A("s_add_u32 s40, s40, s41")
    A("s_lshl_b32 s41, s%d, 12" % W); A("s_add_u32 m0, s41, 0x%x" % ZL)
    for p in range(4):
        A("buffer_load_dwordx4 v%d, s[%d:%d], s40 offen%s sc1 lds" % (t0 if p % 2 == 0 else t1, zs, zs + 3, " offset:%d" % (p * 1024) if p else ""))
        A("s_add_u32 s40, s40, 1024")
def i_tabs(A, M): M.tab_dma(A, "i1_000", 96 * 1024, 112 * 1024)
def g2_early(A):
    for s in range(-10, 0):
        d0, d1 = g2_dma_of(s)
        for y in d0 + d1: A(y)
HB = [192, 196, 208, 212, 224, 228, 240, 244]

def gemm1(A, M):
    W = M.WAVE; VWD = M.VWD
    def dma(b): return (M.dmaW(b, 4) + M.dmaX(b)) if ENV('WFIRST', '0') == '1' else (M.dmaX(b) + M.dmaW(b, 4))
    def acc(it, jt):
        return ("v", 32 + (jt * 8 + it) * 4) if jt < 7 else ("a", 128 + it * 4)
    def reads(buf, st):
        base = 64 * st; hi = buf >> 1; off = (buf & 1) * 32768
        o = []; la = []; lb = []
        for it in range(8):
            mat, t = it >> 2, it & 3
            for h in range(2):
                r = base + 4 * it + 2 * h
                la.append("ds_read_b64_tr_b16 a[%d:%d], v%d offset:%d" % (r, r + 1, (12 if hi else 8) + t, off + h * 8192 + mat * 2048))
        for jt in range(8):
            r = base + 32 + 4 * jt
            lb.append("ds_read_b128 a[%d:%d], v%d offset:%d" % (r, r + 3, 6 if hi else 5, off + jt * 1024))
        for i in range(8): o += [lb[i], la[2 * i], la[2 * i + 1]]
        return o
    def mfmas(st, first=False):
        base = 64 * st; o = []
        for jt in range(8):
            for it in range(8):
                f, d = acc(it, jt); dd = q(f, d)
                o.append("%s %s, %s, %s, %s" % (MF, dd, q("a", base + 4 * it), q("a", base + 32 + 4 * jt), "0" if first else dd))
        return o
    def step(i, dmas, do_read, vm, first=False, rd0=1, mid=None, extra=None):
        m = mfmas(i & 1, first)
        s1 = interleave(m, reads((i + 1) & 3, (i + 1) & 1), rd0, 56 if rd0 > 1 else 52) if do_read else [[] for _ in m]
        dl = []
        for b_ in dmas: dl += dma(b_)
        if extra: dl += extra
        s2 = interleave(m, dl, rd0 if mid is not None else 0, 64) if dl else [[] for _ in m]
        for k, x in enumerate(m):
            A(x)
            if mid is not None and k == rd0 - 1:
                nv = sum(1 for kk in range(k + 1) for y in s2[kk] if y.startswith("buffer"))
                for y in s2[k]: A(y)
                A("s_waitcnt vmcnt(%d)" % (mid + nv)); A("s_barrier")
                continue
            for y in s2[k] + s1[k]: A(y)
        if vm is not None:
            A("s_waitcnt vmcnt(%d) lgkmcnt(0)" % vm); A("s_barrier")
    for x in reads(0, 0): A(x)
    A("s_waitcnt lgkmcnt(0)")
    stamp(A, 6)
    ls = M.late_stores()
    if ENV("S0", "0") == "0":
        step(0, [3], True, 12, first=True, rd0=8, mid=4, extra=ls[:4])
        if ENV("G1IT"): stamp(A, 2)
        step(1, [0], True, 16, extra=ls[4:])
        if ENV("G1IT"): stamp(A, 3)
        step(2, [1, 2], True, 20)
        step(3, [3], True, 16)
    else:
        step(0, [3, 0], True, 16, first=True, rd0=8, mid=4)
        if ENV("G1IT"): stamp(A, 2)
        step(1, [1], True, 20, extra=ls[:4])
        if ENV("G1IT"): stamp(A, 3)
        step(2, [2], True, 24, extra=ls[4:])
        step(3, [3], True, 8)
    M.set_flag_w0(A, "f2g", 63, 29, 30)
    if ENV("G1IT"): stamp(A, 4)
    A("s_mov_b32 s45, 6")
    A.raw(".p2align 6")
    A.label("g1_loop")
    for i in range(4): step(i, [i], True, 16)
    A("s_cmp_lg_u32 s45, 3"); A("s_cbranch_scc1 g1_npf")
    M.srd(A, 36, M.PWD, 0, 3584 * 2048)
    A("s_sub_u32 s40, s2, 32"); A("s_lshl_b32 s40, s40, 15"); A("v_lshlrev_b32 v17, 7, v0")
    A("buffer_load_dword v18, v17, s[36:39], s40 offen")
    if not ENV("NOCPF"):
        M.code_srd(A, 36, "g1_npf"); A("buffer_load_dword v19, v17, s[36:39], 0 offen")
    A.label("g1_npf")
    A("s_sub_u32 s45, s45, 1"); A("s_cmp_lg_u32 s45, 0"); A("s_cbranch_scc1 g1_loop")
    if ENV("G1IT"): stamp(A, 5)
    M.srd(A, 36, M.PWS, M.WS_H, M.SZ_H)
    A("s_lshl_b32 s52, s42, 1"); A("s_add_u32 s52, s52, s47"); A("s_lshl_b32 s54, s52, 13"); A("s_mul_i32 s52, s52, 112")
    A("s_lshl_b32 s53, s43, 1"); A("s_add_u32 s53, s53, s46"); A("s_add_u32 s52, s52, s53")
    A("s_cmp_ge_u32 s53, 28"); A("s_cselect_b32 s55, 28, 0"); A("s_cselect_b32 s40, 4, 0"); A("s_add_u32 s52, s52, s55"); A("s_lshl_b32 s52, s52, 13")
    A("s_add_u32 s53, s53, s40"); A("s_lshr_b32 s55, s53, 1"); A("s_lshl_b32 s53, s53, 7"); A("s_add_u32 s54, s54, s53"); A("s_add_u32 s54, s54, %d" % M.FH)
    A("s_lshl_b32 s53, s42, 5"); A("s_add_u32 s55, s55, s53"); A("s_lshl_b32 s55, s55, 7"); A("s_add_u32 s55, s55, %d" % M.FB)
    A("s_mov_b32 s46, %d" % M.F3)
    DT = [24, 25, 26, 27]
    def grp(B):
        o = [[]]
        for k, t in B.items:
            o[-1].append(t)
            if t.startswith("buffer"): o.append([])
        return [x for x in o if x]
    nv = lambda l: sum(1 for x in l for y in x if y.startswith("buffer"))
    B = Asm(); g2_setup(B, M, DT, 22, 23); su = [[t] for k, t in B.items]
    B = Asm(); i_tabs(B, M); tb = grp(B)
    fl = [["s_bfm_b64 exec, 32, 0", "buffer_load_dword v4, v28, s[%d:%d], s46 offen sc1" % (M.SFL, M.SFL + 3), "s_mov_b64 exec, -1"]]
    e0 = su + [g2_dma(0, p, DT) for p in range(8)]
    e1 = [g2_dma(1, p, DT) for p in range(8)]
    e2 = [g2_dma(0, p, DT) for p in range(4)]
    step(0, [], True, 8 + nv(e0), extra=e0); step(1, [], True, nv(e0) + nv(e1), extra=e1); step(2, [], True, 63, extra=e2)
    if ENV("G1IT"): stamp(A, 8); stamp(A, 9)
    e3 = [["v_mov_b32 v%d, v%d" % (DV[i], DT[i])] for i in range(4)] + tb + [["v_mov_b32 v7, v28"]] + fl
    step(3, [], False, None, extra=e3)
    stamp(A, 7)
    c0 = math.sqrt(2 / math.pi)
    c1 = -2 * c0 * math.log2(math.e); c2 = c1 * 0.044715
    A("s_mov_b32 s56, 0x%x" % f32(c2)); A("s_mov_b32 s57, s56")
    A("v_mov_b32 v8, 0x%x" % f32(c1)); A("v_mov_b32 v9, v8"); A("v_mov_b32 v10, 1.0"); A("v_mov_b32 v11, 1.0"); A("v_mov_b32 v12, 0")
    n = 0
    for p in range(2):
        for jt in range(8):
            b0 = 32 + (jt % 7) * 32
            g = b0 + 8 * p; u = b0 + 16 + 8 * p
            if jt == 7:
                for i in range(8):
                    A("v_accvgpr_read_b32 v%d, a%d" % (g + i, 128 + 8 * p + i)); A("v_accvgpr_read_b32 v%d, a%d" % (u + i, 144 + 8 * p + i))
            T = 16 + 8 * (n % 2); n += 1
            H4 = range(0, 8, 2)
            for e in H4: A("v_pk_mul_f32 %s, %s, %s" % (p2(T + e), p2(g + e), p2(g + e)))
            for e in H4: A("v_pk_fma_f32 %s, %s, s[56:57], v[8:9]" % (p2(T + e), p2(T + e)))
            for e in H4: A("v_pk_mul_f32 %s, %s, %s" % (p2(T + e), p2(T + e), p2(g + e)))
            for e in range(8): A("v_exp_f32 v%d, v%d" % (T + e, T + e))
            for e in H4: A("v_pk_mul_f32 %s, %s, %s" % (p2(u + e), p2(u + e), p2(g + e)))
            for e in H4: A("v_pk_add_f32 %s, %s, v[10:11]" % (p2(T + e), p2(T + e)))
            for e in range(8): A("v_rcp_f32 v%d, v%d" % (T + e, T + e))
            A("s_add_u32 s53, s52, 0x%x" % (p * 28 * 8192 + (jt >> 2) * 4096))
            for e in H4: A("v_pk_mul_f32 %s, %s, %s" % (p2(u + e), p2(u + e), p2(T + e)))
            dst = g
            for e in range(4): A("v_cvt_pk_bf16_f32 v%d, v%d, v%d" % (dst + e, u + 2 * e, u + 2 * e + 1))
            A("buffer_store_dwordx4 %s, v3, s[36:39], s53 offen offset:%d%s" % (q("v", g), (jt & 3) * 1024, " sc1"))
            if p == 0 and jt == 5:
                A("s_waitcnt vmcnt(6)")
                A("v_cmp_ne_u32 vcc, s%d, v4" % M.TOK); A("s_nop 1"); A("s_mov_b32 vcc_hi, 0"); A("s_nop 3")
                A("s_cbranch_vccz pd_f3g")
                M.poll(A, "f3g", 46, 7, 4, 32, sleep=4)
                z_fetch(A, M, zs=32)
            if p == 1 and jt == int(ENV("FLAGA", "5")):
                A("s_waitcnt vmcnt(%d)" % (jt + 1))
                M.set_flag(A, 54, 12, 13)
    A("s_mov_b32 s58, 1")

def gemm2(A, M):
    W = M.WAVE
    if not ENV("G1IT"): stamp(A, 8)
    A("s_barrier")
    ZD, D1, DS, PK, ITW, TT = 32, 48, 80, 112, 128, 144
    A("v_lshrrev_b32 v20, 1, v1"); A("v_and_b32 v20, 7, v20"); A("v_lshlrev_b32 v21, 1, v2"); A("v_xor_b32 v20, v20, v21"); A("v_lshlrev_b32 v20, 4, v20")
    A("v_lshl_add_u32 v20, v1, 7, v20"); A("v_add_u32 v20, 0x%x, v20" % ZL); A("v_xor_b32 v21, 16, v20")
    for k in range(2):
        for dh in range(2): A("ds_read_b128 %s, v%d offset:%d" % (q("v", ZD + 8 * k + 4 * dh), 20 + k, dh * 8192))
    A("v_add_u32 v23, 0x%x, v3" % (96 * 1024))
    for dh in range(2):
        for bh in range(2):
            for part in range(2): M.tab_read(A, q("a", I1 + 16 * bh + 8 * part + 4 * dh), "i1_%d%d%d" % (bh, part, dh), "i1_000", 23, 16384)
    for bh in range(2):
        for part in range(2): M.tab_read(A, q("a", I1S + 8 * bh + 4 * part), "i1s_%d%d" % (bh, part), "i1_000", 23, 16384)
    for bh in range(2):
        for part in range(2): M.tab_read(A, q("v", ITW + 8 * bh + 4 * part), "itw%d%d" % (bh, part), "i1_000", 23, 16384)
    for ah in range(2): M.tab_read(A, q("a", I2 + 4 * ah), "i2_%d" % ah, "i1_000", 23, 16384)
    A("v_and_b32 v22, 15, v1"); A("v_lshlrev_b32 v22, 6, v22"); A("v_lshrrev_b32 v23, 4, v1"); A("v_lshl_add_u32 v22, v23, 4, v22")
    A("s_and_b32 s40, s2, 1"); A("s_lshl_b32 s40, s40, 21"); A("s_lshl_b32 s41, s%d, 19" % W); A("s_add_u32 s40, s40, s41")
    A("s_lshr_b32 s41, s2, 1"); A("s_lshl_b32 s41, s41, 11"); A("s_add_u32 s40, s40, s41"); A("s_add_u32 s41, s40, 0x40000")
    A("s_mov_b32 s69, s58")
    M.srd(A, 56, M.PWS, M.WS_S, M.SZ_S)
    A("s_mov_b64 s[46:47], 0xffff")
    A("s_waitcnt lgkmcnt(6)")
    def mm(d, a, b, c=None):
        A("%s %s, %s, %s, %s" % (MF, q("v", d), a, b, "0" if c is None else q("v", c)))
    for k in range(2):
        for dh in range(2):
            for bh in range(2):
                for part in range(2):
                    d = D1 + 16 * k + 8 * bh + 4 * part
                    mm(d, q("v", ZD + 8 * k + 4 * dh), q("a", I1 + 16 * bh + 8 * part + 4 * dh), None if dh == 0 else d)
        for bh in range(2):
            for part in range(2):
                mm(DS + 16 * k + 8 * bh + 4 * part, q("v", ZD + 8 * k + 4 * part), q("a", I1S + 8 * bh + 4 * part))
    neg = " neg_lo:[1,0,0] neg_hi:[1,0,0]"
    A("s_waitcnt lgkmcnt(0)")
    for k in range(2):
        for x in range(4):
            A("v_cndmask_b32 v%d, v%d, v%d, s[46:47]" % (D1 + 16 * k + 4 * x, D1 + 16 * k + 4 * x, DS + 16 * k + 4 * x))
        for bh in range(2):
            re = D1 + 16 * k + 8 * bh; im = re + 4; tc = ITW + 8 * bh; ts = tc + 4; t = TT + 8 * bh
            for h in (0, 2): A("v_pk_mul_f32 %s, %s, %s" % (p2(t + h), p2(re + h), p2(tc + h)))
            for h in (0, 2): A("v_pk_mul_f32 %s, %s, %s" % (p2(t + 4 + h), p2(im + h), p2(tc + h)))
            for h in (0, 2): A("v_pk_fma_f32 %s, %s, %s, %s%s" % (p2(t + h), p2(im + h), p2(ts + h), p2(t + h), neg))
            for h in (0, 2): A("v_pk_fma_f32 %s, %s, %s, %s" % (p2(t + 4 + h), p2(re + h), p2(ts + h), p2(t + 4 + h)))
            for r in range(4): A("v_cvt_pk_bf16_f32 v%d, v%d, v%d" % (PK + 8 * k + 4 * bh + r, t + r, t + 4 + r))
    for k in range(2):
        for ah in range(2):
            for bh in range(2): mm(D1 + 16 * k + 8 * ah + 4 * bh, q("v", PK + 8 * k + 4 * bh), q("a", I2 + 4 * ah))
    ACC = 32; AF, HR = 0, 128
    def hreg(s, kk):
        i = 8 * (s & 7) + 4 * kk
        return 128 + i if i < 32 else 224 + i - 32
    A("v_and_b32 v24, 15, v1"); A("v_lshlrev_b32 v4, 4, v24"); A("v_lshl_add_u32 v4, v2, 11, v4")
    A("v_bfe_u32 v25, v1, 4, 1"); A("v_lshl_add_u32 v4, v25, 10, v4"); A("v_lshrrev_b32 v26, 5, v1"); A("v_lshl_add_u32 v4, v26, 8, v4")
    A("v_bfe_u32 v27, v1, 2, 2")
    A("v_lshl_add_u32 v28, v26, 2, v27"); A("v_lshlrev_b32 v28, 8, v28"); A("v_and_b32 v29, 3, v1"); A("v_lshl_add_u32 v28, v29, 3, v28")
    A("v_lshl_or_b32 v29, v27, 1, v26"); A("v_xor_b32 v29, v29, v25"); A("s_lshl_b32 s45, s44, 2"); A("v_xor_b32 v29, s45, v29")
    for t in range(4):
        A("v_xor_b32 v30, %d, v29" % (2 * t)); A("v_lshl_add_u32 v%d, v30, 5, v28" % (8 + t))
    A("v_mov_b32 v12, 0"); A("v_lshlrev_b32 v13, 7, v1")
    SO = 160
    for k in range(2):
        for x in range(8): A("v_cvt_pk_bf16_f32 v%d, v%d, v%d" % (SO + 8 * k + x, D1 + 16 * k + 2 * x, D1 + 16 * k + 2 * x + 1))
    A("s_lshl_b32 s60, s42, 1"); A("s_add_u32 s60, s60, s44"); A("s_lshl_b32 s46, s60, 12"); A("s_mul_i32 s60, s60, %d" % (56 * 8192))
    A("s_add_u32 s46, s46, %d" % M.FH)
    A("s_and_b32 s47, s42, -2"); A("s_add_u32 s47, s47, s44"); A("s_lshl_b32 s47, s47, 11"); A("s_add_u32 s47, s47, %d" % M.FB)
    M.poll(A, "fa", 46, 13, 31, 28, sleep=4)
    if not ENV("G1IT"): stamp(A, 9)
    M.srd(A, 32, M.PWS, M.WS_H, M.SZ_H); A("s_add_u32 s34, s60, %d" % (56 * 8192))
    def hload(s, kk):
        o = ["buffer_load_dwordx4 %s, v4, s[32:35], s60 offen offset:%d%s" % (q("a", hreg(s, kk)), kk * 512, M.HLD)]
        if kk: o.append("s_add_u32 s60, s60, 0x2000")
        return o
    def reads(s):
        o = []
        for kk in range(2):
            for t in range(4):
                for h in range(2):
                    r = AF + 32 * (s & 3) + 16 * kk + 4 * t + 2 * h
                    o.append("ds_read_b64_tr_b16 a[%d:%d], v%d offset:%d" % (r, r + 1, 8 + t, (s & 7) * 8192 + h * 4096 + kk * 2048))
        return o
    for s in range(8):
        for y in hload(s, 0) + hload(s, 1): A(y)
    for x in reads(0) + reads(1): A(x)
    A("s_mov_b32 s6, s40"); A("s_mov_b32 s7, s41")
    A("s_lshl_b32 s52, s2, 9"); A("s_lshl_b32 s53, s%d, 7" % W); A("s_add_u32 s52, s52, s53"); A("s_xor_b32 s53, s52, 0x200")
    A("s_add_u32 s52, s52, %d" % M.FX); A("s_add_u32 s53, s53, %d" % M.FX)
    A("s_lshl_b32 s54, s2, 7"); A("s_add_u32 s54, s54, %d" % M.FS)
    A("s_lshl_b32 s46, s42, 11"); A("s_lshl_b32 s45, s%d, 9" % W); A("s_add_u32 s46, s46, s45"); A("s_add_u32 s46, s46, %d" % M.FS)
    M.srd(A, 12, M.PX, 0, 4 << 20)
    A("v_lshrrev_b32 v20, 3, v1"); A("v_lshlrev_b32 v20, 18, v20"); A("v_lshl_add_u32 v20, v2, 12, v20")
    A("v_and_b32 v21, 7, v1"); A("v_lshl_add_u32 v20, v21, 4, v20")
    A("s_lshl_b32 s40, s42, 14"); A("s_lshl_b32 s41, s43, 8"); A("s_add_u32 s40, s40, s41"); A("s_lshl_b32 s41, s44, 7"); A("s_add_u32 s40, s40, s41"); A("s_add_u32 s41, s40, 0x200000")
    XR, SR = 96, 112
    for i in range(4):
        A("buffer_load_dwordx4 %s, v20, s[12:15], s%d offen offset:%d" % (q("v", XR + 4 * i), 40 + (i & 1), (i >> 1) * 2048))
    for i in range(64): A("v_mov_b32 v%d, 0" % (ACC + i))
    A("v_and_b32 v21, 31, v1"); A("v_mul_u32_u24 v16, 144, v21"); A("v_lshrrev_b32 v21, 5, v1"); A("v_lshl_add_u32 v16, v21, 3, v16"); A("v_lshl_add_u32 v16, v2, 13, v16")
    A("v_lshrrev_b32 v21, 3, v1"); A("v_mul_u32_u24 v17, 144, v21"); A("v_and_b32 v21, 7, v1"); A("v_lshl_add_u32 v17, v21, 4, v17"); A("v_lshl_add_u32 v17, v2, 13, v17")
    FL = "s[%d:%d]" % (M.SFL, M.SFL + 3)
    def quick(tag, vd, nl, soff):
        A("v_cmp_ne_u32 vcc, s%d, v%d" % (M.TOK, vd)); A("s_nop 1"); A("s_bfm_b64 s[66:67], %d, 0" % nl); A("s_and_b64 vcc, vcc, s[66:67]"); A("s_nop 3")
        A("s_cbranch_vccz pd_%s" % tag)
        M.poll(A, tag, soff, 13, vd, nl)
    NK = 56; R = int(ENV("G2R", "8"))
    PR, UX, US, PB = 128, 160, 192, 64
    vm = []
    for s_ in range(8): vm += [("H", s_), ("H", s_)]
    vm += [("x", 0)] * 4
    lg = [0] * 16 + [1] * 16
    def V(text, tag): A(text); vm.append(tag)
    def vwait(tags):
        last = max([i for i, t in enumerate(vm) if t in tags] + [-1])
        return min(63, len(vm) - 1 - last)
    def lwait(u):
        last = max(i for i, t in enumerate(lg) if t == u)
        return min(15, len(lg) - 1 - last)
    units = [[(s_, (0, 1, 2, 3))] for s_ in range(NK - R)]
    for tl in ((2, 3), (0, 1)):
        for s_ in range(NK - R, NK, 2): units.append([(s_, tl), (s_ + 1, tl)])
    def frs(u):
        o = []
        for s_, tl in units[u]:
            for kk in range(2):
                for t in tl: o.append((s_, kk, t, AF + 32 * (u & 3) + 4 * len(o)))
        return o
    def ureads(u):
        o = []
        for s_, kk, t, r in frs(u):
            for h in range(2):
                o.append("ds_read_b64_tr_b16 a[%d:%d], v%d offset:%d" % (r + 2 * h, r + 2 * h + 1, (8 if (s_ >> 3) & 1 == 0 else 28) + t, (s_ & 7) * 8192 + h * 4096 + kk * 2048))
        return o
    for t in range(4): A("v_add_u32 v%d, 0x10000, v%d" % (28 + t, 8 + t))
    cert = 0
    for u in range(len(units)):
        ks = [x[0] for x in units[u]]
        need = [("H", k) for k in ks]
        nxt = max(x[0] for x in units[u + 2]) >> 2 if u + 2 < len(units) else 0
        bar = nxt > cert
        if bar: need.append(("W", nxt))
        if u == 22: need += [("S", 0)]
        if u == 20: need += [("fb", 0)]
        if u == 40: need += [("fs", 0)]
        A("s_waitcnt vmcnt(%d) lgkmcnt(%d)" % (vwait(need), lwait(u)))
        if bar: A("s_barrier"); cert = nxt
        if u in (2, 22):
            assert bar
            A("s_cmp_lg_u32 s%d, 0" % W); A("s_cbranch_scc1 g2_np%d" % u)
            if u == 2:
                A("s_cmp_eq_u32 s69, 0"); A("s_cbranch_scc1 g2_np%d" % u)
                M.set_flag(A, 55, 12, 25)
            else: M.set_flag(A, 54, 12, 25)
            A.label("g2_np%d" % u)
        if u == 20: quick("fb", 18, 14, 47)
        if u == 40: quick("fs", 19, 4, 46)
        if ENV("G2IT") and u % 8 == 0 and u < 48: stamp(A, 2 + u // 8)
        rd = ureads(u + 2) if u + 2 < len(units) else []
        fr = frs(u)
        ex = [[] for _ in range(8)]
        if u < NK - R:
            iv = (u + 10) >> 2
            if iv < 14:
                d0, d1 = g2_dma_of(u); ex[1].append((d0, ("W", iv))); ex[5].append((d1, ("W", iv)))
            if u + 8 < NK:
                ex[3].append((hload(u, 0), ("H", u + 8))); ex[7].append((hload(u, 1), ("H", u + 8)))
        if u in (4, 7, 10, 13):
            i = (u - 4) // 3
            ex[2].append((["buffer_store_dwordx4 %s, v22, s[56:59], s%d offen offset:%d sc1" % (q("v", SO + 4 * i), 6 + (i >> 1), (i & 1) * 1024)], ("S", 0)))
        if u == int(ENV("FBLD", "12")): ex[2].append((["s_bfm_b64 exec, 14, 0", "buffer_load_dword v18, v13, %s, s47 offen sc1" % FL, "s_mov_b64 exec, -1"], ("fb", 0)))
        if u == 32: ex[2].append((["s_bfm_b64 exec, 4, 0", "buffer_load_dword v19, v13, %s, s46 offen sc1" % FL, "s_mov_b64 exec, -1"], ("fs", 0)))
        if 40 <= u < 44:
            i = u - 40
            ex[2].append((["buffer_load_dwordx4 %s, v20, s[56:59], s%d offen offset:%d sc1" % (q("v", SR + 4 * i), 40 + (i & 1), (i >> 1) * 2048)], ("s", 0)))
        snd = NK - R + R // 2
        if R and u == snd:
            B = Asm(); M.srd(B, 36, M.POUT, 0, 4 << 20); B("s_xor_b32 s46, s40, 0x80"); B("s_xor_b32 s47, s41, 0x80")
            ex[0].append(([t for k, t in B.items], None))
            for i in range(4):
                cv = ["v_cvt_pk_bf16_f32 v%d, v%d, v%d" % (PR + 4 * i + e, ACC + 32 + 8 * i + 2 * e, ACC + 33 + 8 * i + 2 * e) for e in range(4)]
                ex[2 + i].append((cv + ["buffer_store_dwordx4 %s, v20, s[36:39], s%d offen offset:%d sc1" % (q("v", PR + 4 * i), 46 + (i & 1), (i >> 1) * 2048)], ("X", 0)))
        for i, (s_, kk, t, r) in enumerate(fr):
            d = ACC + 16 * t
            A("%s v[%d:%d], %s, %s, v[%d:%d]" % (MF32, d, d + 15, q("a", r), q("a", hreg(s_, kk)), d, d + 15))
            for x in rd[2 * i:2 * i + 2]: A(x); lg.append(u + 2)
            for ins, tag in ex[i]:
                for y in ins:
                    A(y)
                    if y.startswith("buffer"): vm.append(tag)
    stamp(A, 10)
    nl2e = -math.log2(math.e)
    A("s_mov_b32 s56, 0x%x" % f32(nl2e)); A("s_mov_b32 s57, s56"); A("s_mov_b32 s59, 0xffff0000")
    A("v_mov_b32 v26, 1.0"); A("v_mov_b32 v27, 1.0"); A("v_mov_b32 v23, s%d" % M.TOK)
    A("s_waitcnt vmcnt(0)")
    M.set_flag(A, 52, 12, 23)
    A("s_barrier")
    for i in range(16):
        A("v_lshlrev_b32 v%d, 16, v%d" % (UX + 2 * i, XR + i)); A("v_and_b32 v%d, s59, v%d" % (UX + 2 * i + 1, XR + i))
        A("v_lshlrev_b32 v%d, 16, v%d" % (US + 2 * i, SR + i)); A("v_and_b32 v%d, s59, v%d" % (US + 2 * i + 1, SR + i))
    M.poll(A, "fx", 53, 12, 24, 1, sleep=1)
    for i in range(4):
        A("buffer_load_dwordx4 %s, v20, s[36:39], s%d offen offset:%d sc1" % (q("v", PB + 4 * i), 40 + (i & 1), (i >> 1) * 2048))
    H4 = range(0, 8, 2)
    for t in range(4):
        b = 8 * t; T = 224 + 8 * (t & 1)
        A("s_waitcnt vmcnt(%d)" % (3 - t))
        for e in range(4):
            A("v_lshlrev_b32 v%d, 16, v%d" % (T + 2 * e, PB + 4 * t + e)); A("v_and_b32 v%d, s59, v%d" % (T + 2 * e + 1, PB + 4 * t + e))
        for e in H4: A("v_pk_add_f32 %s, %s, %s" % (p2(ACC + b + e), p2(ACC + b + e), p2(T + e)))
        for e in H4: A("v_pk_mul_f32 %s, %s, s[56:57]" % (p2(T + e), p2(ACC + b + e)))
        for e in range(8): A("v_exp_f32 v%d, v%d" % (T + e, T + e))
        A("s_nop 0")
        for e in H4: A("v_pk_add_f32 %s, %s, v[26:27]" % (p2(T + e), p2(T + e)))
        for e in range(8): A("v_rcp_f32 v%d, v%d" % (T + e, T + e))
        A("s_nop 0")
        for e in H4: A("v_pk_mul_f32 %s, %s, %s" % (p2(ACC + b + e), p2(ACC + b + e), p2(T + e)))
        for e in range(4): A("v_cvt_pk_bf16_f32 v%d, v%d, v%d" % (PR + b + e, ACC + b + 2 * e, ACC + b + 2 * e + 1))
        for u in range(2):
            A("ds_write_b64 v16, %s offset:%d" % (p2(PR + b + 2 * u), (t >> 1) * 64 + (2 * (t & 1) + u) * 16))
    A("s_waitcnt lgkmcnt(0)")
    for i in range(4): A("ds_read_b128 %s, v17 offset:%d" % (q("v", ACC + 4 * i), i * 8 * 144))
    for i in range(4):
        A("s_waitcnt lgkmcnt(%d)" % (3 - i))
        T = 224 + 8 * (i & 1)
        for e in range(4):
            A("v_lshlrev_b32 v%d, 16, v%d" % (T + 2 * e, ACC + 4 * i + e)); A("v_and_b32 v%d, s59, v%d" % (T + 2 * e + 1, ACC + 4 * i + e))
        for e in H4: A("v_pk_fma_f32 %s, %s, %s, %s" % (p2(UX + 8 * i + e), p2(US + 8 * i + e), p2(T + e), p2(UX + 8 * i + e)))
        for e in range(4): A("v_cvt_pk_bf16_f32 v%d, v%d, v%d" % (XR + 4 * i + e, UX + 8 * i + 2 * e, UX + 8 * i + 2 * e + 1))
        A("buffer_store_dwordx4 %s, v20, s[36:39], s%d offen offset:%d" % (q("v", XR + 4 * i), 40 + (i & 1), (i >> 1) * 2048))
    if G.STAMP:
        A("s_waitcnt vmcnt(0)")
        stamp(A, 11); A("s_memrealtime s[100:101]"); A("s_waitcnt lgkmcnt(0)")
        G.stamp_out(A, 0, 12, M.PWS, "all")
        A("v_mov_b32 v2, s100"); A("buffer_store_dword v2, v1, s[96:99], 0 offen offset:48")

def colfft(A, M):
    W_ = M.WAVE
    DAT, FA, FE = 128, 160, 176
    W, T1, T2, D, P, TMP = 8, 40, 48, 104, 168, 200
    A("s_waitcnt lgkmcnt(0)")
    M.flat(A, M.late_stores())
    M.srd(A, 36, M.PWS, M.WS_WT, M.SZ_WT)
    A("s_waitcnt vmcnt(0)")
    A("v_mov_b32 v240, 0"); A("v_lshlrev_b32 v242, 7, v1")
    A("s_barrier")
    M.set_flag_w0(A, "f2f", 63, 240, 241)
    NP = int(ENV("P1", "13"))
    if NP:
        A("s_and_b32 s41, s%d, 1" % W_); A("s_cmp_eq_u32 s41, 0")
        A("s_cselect_b32 s52, s%d, s%d" % (M.PWG, M.PWU)); A("s_cselect_b32 s53, s%d, s%d" % (M.PWG + 1, M.PWU + 1))
        A("s_and_b32 s53, s53, 0xffff"); A("s_mov_b32 s54, %d" % (1024 * 7168)); A("s_mov_b32 s55, 0x20000")
        A("s_lshl_b32 s41, s2, 1"); A("s_lshr_b32 s42, s%d, 1" % W_); A("s_add_u32 s41, s41, s42"); A("s_lshl_b32 s41, s41, 13"); A("s_add_u32 s41, s41, %d" % (int(ENV("P1ROW", "128")) * 7168))
        for n in range(NP):
            A("buffer_load_dword v243, v242, s[52:55], s41 offen"); A("s_add_u32 s41, s41, 0x80000")
        if ENV("P1ST"): stamp(A, 3); A("s_waitcnt vmcnt(0)"); stamp(A, 4)
    names = []
    for inv in range(2):
        for part in range(2): names.append(("fa_%d%d" % (inv, part), ar(FA + 8 * inv + 4 * part, 4)))
    for t in range(2): names.append(("t1_%d" % t, vr(T1 + 4 * t, 4)))
    for e in range(1, 8):
        for t in range(2): names.append(("t2_%d%d" % (e, t), vr(T2 + 8 * (e - 1) + 4 * t, 4)))
    for ih in range(2): names.append(("fe32_%d" % ih, ar(FE + 4 * ih, 4)))
    for nm, r in names: G.tab_load(A, r, nm, 3, M.STAB, 42)
    A("v_and_b32 v4, 15, v1"); A("v_lshrrev_b32 v5, 4, v1")
    A("v_lshlrev_b32 v6, 6, v4"); A("v_lshl_add_u32 v6, v5, 4, v6")
    for k in range(4):
        A("v_add_u32 v7, %d, v5" % (4 * k)); A("v_xor_b32 v7, v7, v4"); A("v_lshlrev_b32 v7, 4, v7"); A("v_lshl_add_u32 v%d, v5, 8, v7" % (232 + k))
    A("v_lshrrev_b32 v7, 5, v1"); A("v_lshlrev_b32 v7, 3, v7"); A("v_bfe_u32 v236, v1, 4, 1"); A("v_or_b32 v7, v7, v236"); A("v_xor_b32 v7, v7, v4")
    A("v_lshlrev_b32 v7, 4, v7"); A("v_lshl_add_u32 v236, v4, 8, v7"); A("v_lshl_add_u32 v236, v2, 15, v236")
    A("v_add_u32 v4, 0x1000, v3")
    A("s_lshl_b32 s51, s2, 2"); A("s_add_u32 s51, s51, s%d" % W_)
    A("s_and_b32 s41, s51, 15"); A("s_bfe_u32 s42, s51, 0x20004"); A("s_lshl_b32 s42, s42, 7")
    A("s_add_u32 s40, s41, s42")
    A("s_sub_u32 s43, 32, s41"); A("s_cmp_eq_u32 s41, 0"); A("s_cselect_b32 s43, 16, s43")
    A("s_add_u32 s43, s43, 480"); A("s_sub_u32 s43, s43, s42")
    A("s_cmp_ge_u32 s51, 64"); A("s_cselect_b32 s40, s43, s40"); A("s_cselect_b32 s50, -1, 1"); A("s_lshl_b32 s50, s50, 18")
    A("s_lshl_b32 s40, s40, 13")
    M.srd(A, 52, M.PWS, M.WS_Y, M.SZ_Y); M.srd(A, 56, M.PWS, M.WS_Z, M.SZ_Z)
    A("s_lshl_b32 s44, s%d, 13" % W_); A("s_add_u32 s44, s44, %d" % M.F2)
    M.poll(A, "f2", 44, 242, 244, 64, sleep=8)
    A("s_barrier")
    stamp(A, 5)
    A("s_lshl_b32 s41, s51, 15"); A("s_lshl_b32 s42, s%d, 15" % W_)
    for e in range(8):
        A("s_add_u32 m0, s42, %d" % (e * 4096))
        for k in range(4): A("buffer_load_dwordx4 v%d, s[52:55], s41 offen offset:%d sc1 lds" % (232 + k, k * 1024))
        A("s_add_u32 s41, s41, 4096")
    def wload(dst, f, so):
        for e in range(8):
            A("buffer_load_dwordx4 %s, v%d, s[36:39], s%d offen offset:%d sc1" % (q(f, dst + 4 * e), 3 if e < 4 else 4, so, (e & 3) * 1024))
    A("s_cmp_eq_u32 s51, 0"); A("s_cselect_b32 s43, 0x%x, s40" % (512 * 8192))
    wload(W, "v", 43)
    A("s_mov_b32 s48, 0"); A("s_mov_b32 s49, 0xffff0000")
    def yread():
        for e in range(8): A("ds_read_b128 %s, v237 offset:%d" % (q("a", DAT + 4 * e), e * 4096))
    A("v_mov_b32 v237, v236")
    A("s_waitcnt vmcnt(8)")
    yread()
    stamp(A, 6)
    A.label("cf_loop")
    A("s_waitcnt lgkmcnt(0)")
    def mm(d, a, b, c=None):
        A("%s %s, %s, %s, %s" % (MF, q("v", d), a, b, "0" if c is None else q("v", c)))
    tctr = [0]
    def tw_quads(dsts, re, tc, conj, TMP=TMP):
        t = TMP + 8 * (tctr[0] % 4); tctr[0] += 1
        im = re + 4; ts = tc + 4
        neg = " neg_lo:[1,0,0] neg_hi:[1,0,0]"
        for h in (0, 2): A("v_pk_mul_f32 %s, %s, %s" % (p2(t + h), p2(re + h), p2(tc + h)))
        for h in (0, 2): A("v_pk_mul_f32 %s, %s, %s" % (p2(t + 4 + h), p2(im + h), p2(tc + h)))
        for h in (0, 2): A("v_pk_fma_f32 %s, %s, %s, %s%s" % (p2(t + h), p2(im + h), p2(ts + h), p2(t + h), neg if conj else ""))
        for h in (0, 2): A("v_pk_fma_f32 %s, %s, %s, %s%s" % (p2(t + 4 + h), p2(re + h), p2(ts + h), p2(t + 4 + h), "" if conj else neg))
        for r in range(4): A("v_cvt_pk_bf16_f32 v%d, v%d, v%d" % (dsts[r], t + r, t + 4 + r))
    def cm_pairs(items):
        ts = []
        for _ in items:
            ts.append(TMP + 2 * (tctr[0] % 8)); tctr[0] += 1
        for (dst, z, c, s_), t in zip(items, ts):
            A("v_pk_mul_f32 %s, %s, %s op_sel:[0,%d] op_sel_hi:[1,%d]" % (p2(t), p2(z), p2(c & ~1), c & 1, c & 1))
        for (dst, z, c, s_), t in zip(items, ts):
            A("v_pk_fma_f32 %s, %s, %s, %s op_sel:[1,%d,0] op_sel_hi:[0,%d,1] neg_lo:[1,0,0]" % (p2(t), p2(z), p2(s_ & ~1), p2(t), s_ & 1, s_ & 1))
        for (dst, z, c, s_), t in zip(items, ts):
            A("v_cvt_pk_bf16_f32 v%d, v%d, v%d" % (dst, t, t + 1))
    for e in range(8):
        mm(D + 8 * e, q("a", DAT + 4 * e), q("a", FA)); mm(D + 8 * e + 4, q("a", DAT + 4 * e), q("a", FA + 4))
    A("s_add_u32 s40, s40, s50")
    A("s_add_u32 s43, s48, 1"); A("s_and_b32 s43, s43, 3"); A("s_lshl_b32 s43, s43, 5"); A("v_xor_b32 v237, s43, v236")
    yread()
    for e in range(8): tw_quads([P + 4 * e + r for r in range(4)], D + 8 * e, T1, False)
    for e in range(8):
        mm(D + 8 * e, q("a", FA), q("v", P + 4 * e)); mm(D + 8 * e + 4, q("a", FA + 4), q("v", P + 4 * e))
    for e in range(8):
        if e == 0:
            for r in range(4): A("v_cvt_pk_bf16_f32 v%d, v%d, v%d" % (P + 8 * r, D + r, D + 4 + r))
        else: tw_quads([P + 8 * r + e for r in range(4)], D + 8 * e, T2 + 8 * (e - 1), False)
    def stageE():
        for ih in range(2):
            for r in range(4):
                d = "v[%d:%d]" % (D + 16 * r, D + 16 * r + 15)
                A("%s %s, %s, %s, %s" % (MF32, d, q("a", FE + 4 * ih), q("v", P + 8 * r + 4 * ih), "0" if ih == 0 else d))
    stageE()
    A("s_waitcnt vmcnt(0)")
    U = TMP + 16
    A("s_or_b32 s43, s51, s48"); A("s_cmp_eq_u32 s43, 0"); A("s_cbranch_scc1 cf_pack")
    for r in range(4):
        for eh in range(2):
            items = []
            for k in range(4):
                ep = 4 * eh + k; w = W + 4 * ep + r; u = U + 8 * (eh & 1) + 2 * k
                A("v_lshlrev_b32 v%d, 16, v%d" % (u, w)); A("v_and_b32 v%d, s49, v%d" % (u + 1, w))
                items.append((P + 8 * r + ep, D + 16 * r + 2 * ep, u, u + 1))
            cm_pairs(items)
    A.label("cf_mul_done")
    wload(W, "v", 40)
    stageE()
    for r in range(4):
        A("v_cvt_pk_bf16_f32 v%d, v%d, v%d" % (P + r, D + 16 * r, D + 16 * r + 1))
        for xs in ((1, 2, 3, 4), (5, 6, 7)):
            cm_pairs([(P + 4 * (8 - x) + r, D + 16 * r + 2 * x, T2 + 8 * (7 - x) + r, T2 + 8 * (7 - x) + 4 + r) for x in xs])
    for e in range(8):
        mm(D + 8 * e, q("v", P + 4 * e), q("a", FA + 8)); mm(D + 8 * e + 4, q("v", P + 4 * e), q("a", FA + 12))
    for e in range(8): tw_quads([P + 4 * e + r for r in range(4)], D + 8 * e, T1, True)
    for e in range(8):
        mm(D + 8 * e, q("v", P + 4 * e), q("a", FA + 8)); mm(D + 8 * e + 4, q("v", P + 4 * e), q("a", FA + 12))
    for e in range(8):
        for r in range(4): A("v_cvt_pk_bf16_f32 v%d, v%d, v%d" % (P + 4 * e + r, D + 8 * e + r, D + 8 * e + 4 + r))
    for cc in range(4):
        A("s_cmp_eq_u32 s48, %d" % cc); A("s_cbranch_scc0 cf_o%d" % cc)
        for qq in range(32): A("v_accvgpr_write_b32 a%d, v%d" % (4 * qq + cc, P + qq))
        A.label("cf_o%d" % cc)
    A("s_add_u32 s48, s48, 1"); A("s_cmp_lt_u32 s48, 4"); A("s_cbranch_scc1 cf_loop")
    stamp(A, 7)
    A("v_and_b32 v238, 15, v1"); A("v_lshlrev_b32 v238, 4, v238"); A("v_lshl_add_u32 v238, v5, 20, v238")
    A("s_lshl_b32 s41, s51, 8")
    for r in range(4):
        for e in range(8):
            qq = 4 * e + r
            A("s_add_u32 s42, s41, 0x%x" % ((8 * r + e) * 32768))
            A("buffer_store_dwordx4 %s, v238, s[56:59], s42 offen sc1" % q("a", 4 * qq))
    A("s_waitcnt vmcnt(0) lgkmcnt(0)")
    A("s_lshl_b32 s44, s2, 7"); A("s_add_u32 s44, s44, %d" % M.F3)
    A("s_barrier")
    M.set_flag_w0(A, "f3", 44, 240, 241)
    A("s_mov_b32 s44, %d" % M.F3)
    M.poll(A, "f3", 44, 242, 244, 32, sleep=8)
    z_fetch(A, M); i_tabs(A, M); g2_setup(A, M); g2_early(A)
    A("s_mov_b32 s58, 0"); A("s_mov_b32 s55, 0"); A("s_mov_b32 s52, 0"); A("s_mov_b32 s53, 0")
    A("s_waitcnt vmcnt(0)")
    A("s_branch cf_end")
    A.label("cf_pack")
    A("s_nop 11")
    SC = M.LDS_SCR
    A("v_and_b32 v238, 15, v1"); A("v_lshl_add_u32 v238, v5, 6, v238")
    A("v_sub_u32 v239, %d, v238" % (2048 - 48 - 1792)); A("v_lshlrev_b32 v238, 3, v238"); A("v_lshlrev_b32 v239, 3, v239")
    A("v_add_u32 v238, 0x%x, v238" % SC); A("v_add_u32 v239, 0x%x, v239" % SC)
    for r in range(4):
        for ep in range(8): A("ds_write_b64 v238, %s offset:%d" % (p2(D + 16 * r + 2 * ep), 8 * (16 * r + 256 * ep)))
    A("s_mov_b64 exec, 1"); A("ds_write_b64 v238, %s offset:%d" % (p2(D), 8 * 2048)); A("s_mov_b64 exec, -1")
    A("s_mov_b32 s43, 0x%x" % (513 * 8192))
    wload(208, "a", 43)
    for r in range(4):
        for ep in range(8):
            w = W + 4 * ep + r; z = D + 16 * r + 2 * ep; u = U + 2 * (ep & 3); t = TMP + 2 * (ep & 3)
            A("v_lshlrev_b32 v%d, 16, v%d" % (u, w)); A("v_and_b32 v%d, s49, v%d" % (u + 1, w))
            A("v_pk_mul_f32 %s, %s, %s op_sel:[0,0] op_sel_hi:[1,0]" % (p2(t), p2(z), p2(u)))
            A("v_pk_fma_f32 %s, %s, %s, %s op_sel:[1,1,0] op_sel_hi:[0,1,1] neg_lo:[1,0,0]" % (p2(z), p2(z), p2(u), p2(t)))
    A("s_waitcnt vmcnt(0) lgkmcnt(0)")
    for rh in range(2):
        for r in (2 * rh, 2 * rh + 1):
            for ep in range(8): A("ds_read_b64 %s, v239 offset:%d" % (p2(W + 16 * (r & 1) + 2 * ep), 8 * (16 * (3 - r) + 256 * (7 - ep))))
        A("s_waitcnt lgkmcnt(0)")
        for r in (2 * rh, 2 * rh + 1):
            for ep in range(8):
                m = W + 16 * (r & 1) + 2 * ep; z = D + 16 * r + 2 * ep; u = U + 2 * (ep & 3)
                A("v_accvgpr_read_b32 v%d, a%d" % (u + 1, 208 + 4 * ep + r))
                A("v_lshlrev_b32 v%d, 16, v%d" % (u, u + 1)); A("v_and_b32 v%d, s49, v%d" % (u + 1, u + 1))
                A("v_pk_fma_f32 %s, %s, %s, %s op_sel:[0,0,0] op_sel_hi:[1,0,1] neg_hi:[1,0,0]" % (p2(z), p2(m), p2(u), p2(z)))
                A("v_pk_fma_f32 %s, %s, %s, %s op_sel:[1,1,0] op_sel_hi:[0,1,1]" % (p2(z), p2(m), p2(u), p2(z)))
                A("v_cvt_pk_bf16_f32 v%d, v%d, v%d" % (P + 8 * r + ep, z, z + 1))
    A("s_nop 1")
    A("s_branch cf_mul_done")
    A.label("cf_end")
```

```python
from asmlib import *
import math, os
import gen as G
from gen import stamp, f32
ENV = os.environ.get
MF = "v_mfma_f32_16x16x32_bf16"
MF32 = "v_mfma_f32_32x32x16_bf16"
def q(f, r): return "%s[%d:%d]" % (f, r, r + 3)
def p2(r): return "v[%d:%d]" % (r, r + 1)

ZL = 128 * 1024
I1, I1S, I2 = 160, 192, 208
DV = [5, 6, 14, 15]
def g2_setup(A, M, DV=DV, t0=7, t1=13):
    W = M.WAVE
    A("s_and_b32 s44, s2, 1"); A("s_bfe_u32 s42, s2, 0x20001"); A("s_lshl_b32 s42, s42, 2"); A("s_bfe_u32 s43, s2, 0x20003"); A("s_add_u32 s42, s42, s43")
    A("s_lshr_b32 s43, s2, 5")
    d0, d1, d2, d3 = DV
    A("v_lshrrev_b32 v%d, 4, v1" % t0); A("v_lshl_add_u32 v%d, v2, 6, v%d" % (t1, t0)); A("v_lshlrev_b32 v%d, 11, v%d" % (t1, t1))
    A("v_lshlrev_b32 v%d, 2, v%d" % (t0, t0)); A("v_and_b32 v%d, 15, v1" % d0); A("v_xor_b32 v%d, v%d, v%d" % (t0, t0, d0))
    A("v_lshl_add_u32 v%d, v%d, 4, v%d" % (d0, t0, t1)); A("v_xor_b32 v%d, 32, v%d" % (d1, d0))
    A("v_add_u32 v%d, 0x%x, v%d" % (d2, 2 * 7168, d0)); A("v_add_u32 v%d, 0x%x, v%d" % (d3, 3 * 7168, d1)); A("v_add_u32 v%d, 0x%x, v%d" % (d1, 7168, d1))
    M.srd(A, 48, M.PWD, 0, 3584 * 2048)
    A("s_mul_i32 s45, s44, %d" % (1792 * 2048)); A("s_add_u32 s50, s45, %d" % (1792 * 2048))
    A("s_lshl_b32 s61, s43, 8"); A("s_add_u32 s61, s61, s45"); A("s_add_u32 s62, s61, %d" % (1792 * 2048))
    A("s_lshl_b32 s64, s%d, 13" % W)
def g2_dma(par, p, DV=DV):
    o = []
    if p % 4 == 0: o.append("s_add_u32 m0, s64, 0x%x" % (par * 32768 + (p >> 2) * 4096))
    o.append("buffer_load_dwordx4 v%d, s[48:51], s61 offen%s lds" % (DV[p & 3], " offset:%d" % ((p & 3) * 1024) if p & 3 else ""))
    if p == 3: o.append("s_add_u32 s61, s61, 0x8000")
    if p == 7:
        o.append("s_add_u32 s61, s61, 0x%x" % (256 * 2048 - 0x8000))
        o += ["s_cmp_ge_u32 s61, s62", "s_cselect_b32 s65, %d, 0" % ((1792 - 32) * 2048), "s_cselect_b32 s62, -1, s62", "s_sub_u32 s61, s61, s65"]
        if par == 1: o.append("s_xor_b32 s64, s64, 0x10000")
    return o
def g2_dma_of(s):
    u = (s + 2) & 7; par = u >> 2; p = 2 * (u & 3)
    return g2_dma(par, p), g2_dma(par, p + 1)
def z_fetch(A, M, t0=7, t1=13, zs=56):
    W = M.WAVE
    M.srd(A, zs, M.PWS, M.WS_Z, M.SZ_Z)
    A("v_lshrrev_b32 v%d, 4, v1" % t0); A("v_and_b32 v%d, 7, v1" % t1); A("v_xor_b32 v%d, v%d, v%d" % (t0, t0, t1)); A("v_lshlrev_b32 v%d, 4, v%d" % (t0, t0))
    A("v_lshrrev_b32 v%d, 3, v1" % t1); A("v_lshl_add_u32 v%d, v%d, 8, v%d" % (t0, t1, t0)); A("v_xor_b32 v%d, 64, v%d" % (t1, t0))
    A("s_lshr_b32 s40, s2, 1"); A("s_lshl_b32 s40, s40, 15"); A("s_and_b32 s41, s2, 1"); A("s_lshl_b32 s41, s41, 7"); A("s_add_u32 s40, s40, s41")
    A("s_lshl_b32 s41, s%d, 13" % W); A("s_add_u32 s40, s40, s41")
    A("s_lshl_b32 s41, s%d, 12" % W); A("s_add_u32 m0, s41, 0x%x" % ZL)
    for p in range(4):
        A("buffer_load_dwordx4 v%d, s[%d:%d], s40 offen%s sc1 lds" % (t0 if p % 2 == 0 else t1, zs, zs + 3, " offset:%d" % (p * 1024) if p else ""))
        A("s_add_u32 s40, s40, 1024")
def i_tabs(A, M): M.tab_dma(A, "i1_000", 96 * 1024, 112 * 1024)
def g2_early(A):
    for s in range(-10, 0):
        d0, d1 = g2_dma_of(s)
        for y in d0 + d1: A(y)
HB = [192, 196, 208, 212, 224, 228, 240, 244]

def gemm1(A, M):
    W = M.WAVE; VWD = M.VWD
    def dma(b): return (M.dmaW(b, 4) + M.dmaX(b)) if ENV('WFIRST', '0') == '1' else (M.dmaX(b) + M.dmaW(b, 4))
    def acc(it, jt):
        return ("v", 32 + (jt * 8 + it) * 4) if jt < 7 else ("a", 128 + it * 4)
    def reads(buf, st):
        base = 64 * st; hi = buf >> 1; off = (buf & 1) * 32768
        o = []; la = []; lb = []
        for it in range(8):
            mat, t = it >> 2, it & 3
            for h in range(2):
                r = base + 4 * it + 2 * h
                la.append("ds_read_b64_tr_b16 a[%d:%d], v%d offset:%d" % (r, r + 1, (12 if hi else 8) + t, off + h * 8192 + mat * 2048))
        for jt in range(8):
            r = base + 32 + 4 * jt
            lb.append("ds_read_b128 a[%d:%d], v%d offset:%d" % (r, r + 3, 6 if hi else 5, off + jt * 1024))
        for i in range(8): o += [lb[i], la[2 * i], la[2 * i + 1]]
        return o
    def mfmas(st, first=False):
        base = 64 * st; o = []
        for jt in range(8):
            for it in range(8):
                f, d = acc(it, jt); dd = q(f, d)
                o.append("%s %s, %s, %s, %s" % (MF, dd, q("a", base + 4 * it), q("a", base + 32 + 4 * jt), "0" if first else dd))
        return o
    def step(i, dmas, do_read, vm, first=False, rd0=1, mid=None, extra=None):
        m = mfmas(i & 1, first)
        s1 = interleave(m, reads((i + 1) & 3, (i + 1) & 1), rd0, 56 if rd0 > 1 else 52) if do_read else [[] for _ in m]
        dl = []
        for b_ in dmas: dl += dma(b_)
        if extra: dl += extra
        s2 = interleave(m, dl, rd0 if mid is not None else 0, 64) if dl else [[] for _ in m]
        for k, x in enumerate(m):
            A(x)
            if mid is not None and k == rd0 - 1:
                nv = sum(1 for kk in range(k + 1) for y in s2[kk] if y.startswith("buffer"))
                for y in s2[k]: A(y)
                A("s_waitcnt vmcnt(%d)" % (mid + nv)); A("s_barrier")
                continue
            for y in s2[k] + s1[k]: A(y)
        if vm is not None:
            A("s_waitcnt vmcnt(%d) lgkmcnt(0)" % vm); A("s_barrier")
    for x in reads(0, 0): A(x)
    A("s_waitcnt lgkmcnt(0)")
    stamp(A, 6)
    ls = M.late_stores()
    wt = [] if ENV("NOWT") else [M.w_touch()]
    if ENV("S0", "0") == "0":
        step(0, [3], True, 12, first=True, rd0=8, mid=4, extra=ls[:4])
        if ENV("G1IT"): stamp(A, 2)
        step(1, [0], True, 16, extra=ls[4:])
        if ENV("G1IT"): stamp(A, 3)
        step(2, [1, 2], True, 20)
        step(3, [3], True, 16 + len(wt), extra=wt)
    else:
        step(0, [3, 0], True, 16, first=True, rd0=8, mid=4)
        if ENV("G1IT"): stamp(A, 2)
        step(1, [1], True, 20, extra=ls[:4])
        if ENV("G1IT"): stamp(A, 3)
        step(2, [2], True, 24, extra=ls[4:])
        step(3, [3], True, 8)
    M.set_flag_w0(A, "f2g", 63, 29, 30)
    if ENV("G1IT"): stamp(A, 4)
    A("s_mov_b32 s45, 6")
    A.raw(".p2align 6")
    A.label("g1_loop")
    for i in range(4): step(i, [i], True, 16 + (len(wt) if i != 2 else 0), extra=wt if i == 3 else None)
    A("s_cmp_lg_u32 s45, 3"); A("s_cbranch_scc1 g1_npf")
    M.srd(A, 32, M.PWD, 0, 3584 * 2048)
    A("s_sub_u32 s40, s2, 32"); A("s_lshl_b32 s40, s40, 15"); A("v_lshlrev_b32 v20, 7, v0")
    A("buffer_load_dword v18, v20, s[32:35], s40 offen")
    if not ENV("NOCPF"):
        M.code_srd(A, 32, "g1_npf"); A("buffer_load_dword v19, v20, s[32:35], 0 offen")
    A.label("g1_npf")
    A("s_sub_u32 s45, s45, 1"); A("s_cmp_lg_u32 s45, 0"); A("s_cbranch_scc1 g1_loop")
    if ENV("G1IT"): stamp(A, 5)
    M.srd(A, 36, M.PWS, M.WS_H, M.SZ_H)
    A("s_lshl_b32 s52, s42, 1"); A("s_add_u32 s52, s52, s47"); A("s_lshl_b32 s54, s52, 13"); A("s_mul_i32 s52, s52, 112")
    A("s_lshl_b32 s53, s43, 1"); A("s_add_u32 s53, s53, s46"); A("s_add_u32 s52, s52, s53")
    A("s_cmp_ge_u32 s53, 28"); A("s_cselect_b32 s55, 28, 0"); A("s_cselect_b32 s40, 4, 0"); A("s_add_u32 s52, s52, s55"); A("s_lshl_b32 s52, s52, 13")
    A("s_add_u32 s53, s53, s40"); A("s_lshr_b32 s55, s53, 1"); A("s_lshl_b32 s53, s53, 7"); A("s_add_u32 s54, s54, s53"); A("s_add_u32 s54, s54, %d" % M.FH)
    A("s_lshl_b32 s53, s42, 5"); A("s_add_u32 s55, s55, s53"); A("s_lshl_b32 s55, s55, 7"); A("s_add_u32 s55, s55, %d" % M.FB)
    A("s_mov_b32 s46, %d" % M.F3)
    DT = [24, 25, 26, 27]
    def grp(B):
        o = [[]]
        for k, t in B.items:
            o[-1].append(t)
            if t.startswith("buffer"): o.append([])
        return [x for x in o if x]
    nv = lambda l: sum(1 for x in l for y in x if y.startswith("buffer"))
    B = Asm(); g2_setup(B, M, DT, 22, 23); su = [[t] for k, t in B.items]
    B = Asm(); i_tabs(B, M); tb = grp(B)
    fl = [["s_bfm_b64 exec, 32, 0", "buffer_load_dword v4, v28, s[%d:%d], s46 offen sc1" % (M.SFL, M.SFL + 3), "s_mov_b64 exec, -1"]]
    e0 = su + [g2_dma(0, p, DT) for p in range(8)]
    e1 = [g2_dma(1, p, DT) for p in range(8)]
    e2 = [g2_dma(0, p, DT) for p in range(4)]
    step(0, [], True, 8 + nv(e0), extra=e0); step(1, [], True, nv(e0) + nv(e1), extra=e1); step(2, [], True, 63, extra=e2)
    if ENV("G1IT"): stamp(A, 8); stamp(A, 9)
    e3 = [["v_mov_b32 v%d, v%d" % (DV[i], DT[i])] for i in range(4)] + tb + [["v_mov_b32 v7, v28"]] + fl
    step(3, [], False, None, extra=e3)
    stamp(A, 7)
    c0 = math.sqrt(2 / math.pi)
    c1 = -2 * c0 * math.log2(math.e); c2 = c1 * 0.044715
    A("s_mov_b32 s56, 0x%x" % f32(c2)); A("s_mov_b32 s57, s56")
    A("v_mov_b32 v8, 0x%x" % f32(c1)); A("v_mov_b32 v9, v8"); A("v_mov_b32 v10, 1.0"); A("v_mov_b32 v11, 1.0"); A("v_mov_b32 v12, 0")
    n = 0
    for p in range(2):
        for jt in range(8):
            b0 = 32 + (jt % 7) * 32
            g = b0 + 8 * p; u = b0 + 16 + 8 * p
            if jt == 7:
                for i in range(8):
                    A("v_accvgpr_read_b32 v%d, a%d" % (g + i, 128 + 8 * p + i)); A("v_accvgpr_read_b32 v%d, a%d" % (u + i, 144 + 8 * p + i))
            T = 16 + 8 * (n % 2); n += 1
            H4 = range(0, 8, 2)
            for e in H4: A("v_pk_mul_f32 %s, %s, %s" % (p2(T + e), p2(g + e), p2(g + e)))
            for e in H4: A("v_pk_fma_f32 %s, %s, s[56:57], v[8:9]" % (p2(T + e), p2(T + e)))
            for e in H4: A("v_pk_mul_f32 %s, %s, %s" % (p2(T + e), p2(T + e), p2(g + e)))
            for e in range(8): A("v_exp_f32 v%d, v%d" % (T + e, T + e))
            for e in H4: A("v_pk_mul_f32 %s, %s, %s" % (p2(u + e), p2(u + e), p2(g + e)))
            for e in H4: A("v_pk_add_f32 %s, %s, v[10:11]" % (p2(T + e), p2(T + e)))
            for e in range(8): A("v_rcp_f32 v%d, v%d" % (T + e, T + e))
            A("s_add_u32 s53, s52, 0x%x" % (p * 28 * 8192 + (jt >> 2) * 4096))
            for e in H4: A("v_pk_mul_f32 %s, %s, %s" % (p2(u + e), p2(u + e), p2(T + e)))
            dst = g
            for e in range(4): A("v_cvt_pk_bf16_f32 v%d, v%d, v%d" % (dst + e, u + 2 * e, u + 2 * e + 1))
            A("buffer_store_dwordx4 %s, v3, s[36:39], s53 offen offset:%d%s" % (q("v", g), (jt & 3) * 1024, " sc1"))
            if p == 0 and jt == 5:
                A("s_waitcnt vmcnt(6)")
                A("v_cmp_ne_u32 vcc, s%d, v4" % M.TOK); A("s_nop 1"); A("s_mov_b32 vcc_hi, 0"); A("s_nop 3")
                A("s_cbranch_vccz pd_f3g")
                M.poll(A, "f3g", 46, 7, 4, 32, sleep=4)
                z_fetch(A, M, zs=32)
            if p == 1 and jt == int(ENV("FLAGA", "5")):
                A("s_waitcnt vmcnt(%d)" % (jt + 1))
                M.set_flag(A, 54, 12, 13)
    A("s_mov_b32 s58, 1")

def gemm2(A, M):
    W = M.WAVE
    if not ENV("G1IT"): stamp(A, 8)
    A("s_barrier")
    ZD, D1, DS, PK, ITW, TT = 32, 48, 80, 112, 128, 144
    A("v_lshrrev_b32 v20, 1, v1"); A("v_and_b32 v20, 7, v20"); A("v_lshlrev_b32 v21, 1, v2"); A("v_xor_b32 v20, v20, v21"); A("v_lshlrev_b32 v20, 4, v20")
    A("v_lshl_add_u32 v20, v1, 7, v20"); A("v_add_u32 v20, 0x%x, v20" % ZL); A("v_xor_b32 v21, 16, v20")
    for k in range(2):
        for dh in range(2): A("ds_read_b128 %s, v%d offset:%d" % (q("v", ZD + 8 * k + 4 * dh), 20 + k, dh * 8192))
    A("v_add_u32 v23, 0x%x, v3" % (96 * 1024))
    for dh in range(2):
        for bh in range(2):
            for part in range(2): M.tab_read(A, q("a", I1 + 16 * bh + 8 * part + 4 * dh), "i1_%d%d%d" % (bh, part, dh), "i1_000", 23, 16384)
    for bh in range(2):
        for part in range(2): M.tab_read(A, q("a", I1S + 8 * bh + 4 * part), "i1s_%d%d" % (bh, part), "i1_000", 23, 16384)
    for bh in range(2):
        for part in range(2): M.tab_read(A, q("v", ITW + 8 * bh + 4 * part), "itw%d%d" % (bh, part), "i1_000", 23, 16384)
    for ah in range(2): M.tab_read(A, q("a", I2 + 4 * ah), "i2_%d" % ah, "i1_000", 23, 16384)
    A("v_and_b32 v22, 15, v1"); A("v_lshlrev_b32 v22, 6, v22"); A("v_lshrrev_b32 v23, 4, v1"); A("v_lshl_add_u32 v22, v23, 4, v22")
    A("s_and_b32 s40, s2, 1"); A("s_lshl_b32 s40, s40, 21"); A("s_lshl_b32 s41, s%d, 19" % W); A("s_add_u32 s40, s40, s41")
    A("s_lshr_b32 s41, s2, 1"); A("s_lshl_b32 s41, s41, 11"); A("s_add_u32 s40, s40, s41"); A("s_add_u32 s41, s40, 0x40000")
    A("s_mov_b32 s69, s58")
    M.srd(A, 56, M.PWS, M.WS_S, M.SZ_S)
    A("s_mov_b64 s[46:47], 0xffff")
    A("s_waitcnt lgkmcnt(6)")
    def mm(d, a, b, c=None):
        A("%s %s, %s, %s, %s" % (MF, q("v", d), a, b, "0" if c is None else q("v", c)))
    for k in range(2):
        for dh in range(2):
            for bh in range(2):
                for part in range(2):
                    d = D1 + 16 * k + 8 * bh + 4 * part
                    mm(d, q("v", ZD + 8 * k + 4 * dh), q("a", I1 + 16 * bh + 8 * part + 4 * dh), None if dh == 0 else d)
        for bh in range(2):
            for part in range(2):
                mm(DS + 16 * k + 8 * bh + 4 * part, q("v", ZD + 8 * k + 4 * part), q("a", I1S + 8 * bh + 4 * part))
    neg = " neg_lo:[1,0,0] neg_hi:[1,0,0]"
    A("s_waitcnt lgkmcnt(0)")
    for k in range(2):
        for x in range(4):
            A("v_cndmask_b32 v%d, v%d, v%d, s[46:47]" % (D1 + 16 * k + 4 * x, D1 + 16 * k + 4 * x, DS + 16 * k + 4 * x))
        for bh in range(2):
            re = D1 + 16 * k + 8 * bh; im = re + 4; tc = ITW + 8 * bh; ts = tc + 4; t = TT + 8 * bh
            for h in (0, 2): A("v_pk_mul_f32 %s, %s, %s" % (p2(t + h), p2(re + h), p2(tc + h)))
            for h in (0, 2): A("v_pk_mul_f32 %s, %s, %s" % (p2(t + 4 + h), p2(im + h), p2(tc + h)))
            for h in (0, 2): A("v_pk_fma_f32 %s, %s, %s, %s%s" % (p2(t + h), p2(im + h), p2(ts + h), p2(t + h), neg))
            for h in (0, 2): A("v_pk_fma_f32 %s, %s, %s, %s" % (p2(t + 4 + h), p2(re + h), p2(ts + h), p2(t + 4 + h)))
            for r in range(4): A("v_cvt_pk_bf16_f32 v%d, v%d, v%d" % (PK + 8 * k + 4 * bh + r, t + r, t + 4 + r))
    for k in range(2):
        for ah in range(2):
            for bh in range(2): mm(D1 + 16 * k + 8 * ah + 4 * bh, q("v", PK + 8 * k + 4 * bh), q("a", I2 + 4 * ah))
    ACC = 32; AF, HR = 0, 128
    def hreg(s, kk):
        i = 8 * (s & 7) + 4 * kk
        return 128 + i if i < 32 else 224 + i - 32
    A("v_and_b32 v24, 15, v1"); A("v_lshlrev_b32 v4, 4, v24"); A("v_lshl_add_u32 v4, v2, 11, v4")
    A("v_bfe_u32 v25, v1, 4, 1"); A("v_lshl_add_u32 v4, v25, 10, v4"); A("v_lshrrev_b32 v26, 5, v1"); A("v_lshl_add_u32 v4, v26, 8, v4")
    A("v_bfe_u32 v27, v1, 2, 2")
    A("v_lshl_add_u32 v28, v26, 2, v27"); A("v_lshlrev_b32 v28, 8, v28"); A("v_and_b32 v29, 3, v1"); A("v_lshl_add_u32 v28, v29, 3, v28")
    A("v_lshl_or_b32 v29, v27, 1, v26"); A("v_xor_b32 v29, v29, v25"); A("s_lshl_b32 s45, s44, 2"); A("v_xor_b32 v29, s45, v29")
    for t in range(4):
        A("v_xor_b32 v30, %d, v29" % (2 * t)); A("v_lshl_add_u32 v%d, v30, 5, v28" % (8 + t))
    A("v_mov_b32 v12, 0"); A("v_lshlrev_b32 v13, 7, v1")
    SO = 160
    for k in range(2):
        for x in range(8): A("v_cvt_pk_bf16_f32 v%d, v%d, v%d" % (SO + 8 * k + x, D1 + 16 * k + 2 * x, D1 + 16 * k + 2 * x + 1))
    A("s_lshl_b32 s60, s42, 1"); A("s_add_u32 s60, s60, s44"); A("s_lshl_b32 s46, s60, 12"); A("s_mul_i32 s60, s60, %d" % (56 * 8192))
    A("s_add_u32 s46, s46, %d" % M.FH)
    A("s_and_b32 s47, s42, -2"); A("s_add_u32 s47, s47, s44"); A("s_lshl_b32 s47, s47, 11"); A("s_add_u32 s47, s47, %d" % M.FB)
    M.poll(A, "fa", 46, 13, 31, 28, sleep=4)
    if not ENV("G1IT"): stamp(A, 9)
    M.srd(A, 32, M.PWS, M.WS_H, M.SZ_H); A("s_add_u32 s34, s60, %d" % (56 * 8192))
    def hload(s, kk):
        o = ["buffer_load_dwordx4 %s, v4, s[32:35], s60 offen offset:%d%s" % (q("a", hreg(s, kk)), kk * 512, M.HLD)]
        if kk: o.append("s_add_u32 s60, s60, 0x2000")
        return o
    def reads(s):
        o = []
        for kk in range(2):
            for t in range(4):
                for h in range(2):
                    r = AF + 32 * (s & 3) + 16 * kk + 4 * t + 2 * h
                    o.append("ds_read_b64_tr_b16 a[%d:%d], v%d offset:%d" % (r, r + 1, 8 + t, (s & 7) * 8192 + h * 4096 + kk * 2048))
        return o
    for s in range(8):
        for y in hload(s, 0) + hload(s, 1): A(y)
    for x in reads(0) + reads(1): A(x)
    A("s_mov_b32 s6, s40"); A("s_mov_b32 s7, s41")
    A("s_lshl_b32 s52, s2, 9"); A("s_lshl_b32 s53, s%d, 7" % W); A("s_add_u32 s52, s52, s53"); A("s_xor_b32 s53, s52, 0x200")
    A("s_add_u32 s52, s52, %d" % M.FX); A("s_add_u32 s53, s53, %d" % M.FX)
    A("s_lshl_b32 s54, s2, 7"); A("s_add_u32 s54, s54, %d" % M.FS)
    A("s_lshl_b32 s46, s42, 11"); A("s_lshl_b32 s45, s%d, 9" % W); A("s_add_u32 s46, s46, s45"); A("s_add_u32 s46, s46, %d" % M.FS)
    M.srd(A, 12, M.PX, 0, 4 << 20)
    A("v_lshrrev_b32 v20, 3, v1"); A("v_lshlrev_b32 v20, 18, v20"); A("v_lshl_add_u32 v20, v2, 12, v20")
    A("v_and_b32 v21, 7, v1"); A("v_lshl_add_u32 v20, v21, 4, v20")
    A("s_lshl_b32 s40, s42, 14"); A("s_lshl_b32 s41, s43, 8"); A("s_add_u32 s40, s40, s41"); A("s_lshl_b32 s41, s44, 7"); A("s_add_u32 s40, s40, s41"); A("s_add_u32 s41, s40, 0x200000")
    XR, SR = 96, 112
    for i in range(4):
        A("buffer_load_dwordx4 %s, v20, s[12:15], s%d offen offset:%d" % (q("v", XR + 4 * i), 40 + (i & 1), (i >> 1) * 2048))
    for i in range(64): A("v_mov_b32 v%d, 0" % (ACC + i))
    A("v_and_b32 v21, 31, v1"); A("v_mul_u32_u24 v16, 144, v21"); A("v_lshrrev_b32 v21, 5, v1"); A("v_lshl_add_u32 v16, v21, 3, v16"); A("v_lshl_add_u32 v16, v2, 13, v16")
    A("v_lshrrev_b32 v21, 3, v1"); A("v_mul_u32_u24 v17, 144, v21"); A("v_and_b32 v21, 7, v1"); A("v_lshl_add_u32 v17, v21, 4, v17"); A("v_lshl_add_u32 v17, v2, 13, v17")
    FL = "s[%d:%d]" % (M.SFL, M.SFL + 3)
    def quick(tag, vd, nl, soff):
        A("v_cmp_ne_u32 vcc, s%d, v%d" % (M.TOK, vd)); A("s_nop 1"); A("s_bfm_b64 s[66:67], %d, 0" % nl); A("s_and_b64 vcc, vcc, s[66:67]"); A("s_nop 3")
        A("s_cbranch_vccz pd_%s" % tag)
        M.poll(A, tag, soff, 13, vd, nl)
    NK = 56; R = int(ENV("G2R", "8"))
    PR, UX, US, PB = 128, 160, 192, 64
    vm = []
    for s_ in range(8): vm += [("H", s_), ("H", s_)]
    vm += [("x", 0)] * 4
    lg = [0] * 16 + [1] * 16
    def V(text, tag): A(text); vm.append(tag)
    def vwait(tags):
        last = max([i for i, t in enumerate(vm) if t in tags] + [-1])
        return min(63, len(vm) - 1 - last)
    def lwait(u):
        last = max(i for i, t in enumerate(lg) if t == u)
        return min(15, len(lg) - 1 - last)
    units = [[(s_, (0, 1, 2, 3))] for s_ in range(NK - R)]
    for tl in ((2, 3), (0, 1)):
        for s_ in range(NK - R, NK, 2): units.append([(s_, tl), (s_ + 1, tl)])
    def frs(u):
        o = []
        for s_, tl in units[u]:
            for kk in range(2):
                for t in tl: o.append((s_, kk, t, AF + 32 * (u & 3) + 4 * len(o)))
        return o
    def ureads(u):
        o = []
        for s_, kk, t, r in frs(u):
            for h in range(2):
                o.append("ds_read_b64_tr_b16 a[%d:%d], v%d offset:%d" % (r + 2 * h, r + 2 * h + 1, (8 if (s_ >> 3) & 1 == 0 else 28) + t, (s_ & 7) * 8192 + h * 4096 + kk * 2048))
        return o
    for t in range(4): A("v_add_u32 v%d, 0x10000, v%d" % (28 + t, 8 + t))
    cert = 0
    for u in range(len(units)):
        ks = [x[0] for x in units[u]]
        need = [("H", k) for k in ks]
        nxt = max(x[0] for x in units[u + 2]) >> 2 if u + 2 < len(units) else 0
        bar = nxt > cert
        if bar: need.append(("W", nxt))
        if u == 22: need += [("S", 0)]
        if u == 20: need += [("fb", 0)]
        if u == 40: need += [("fs", 0)]
        A("s_waitcnt vmcnt(%d) lgkmcnt(%d)" % (vwait(need), lwait(u)))
        if bar: A("s_barrier"); cert = nxt
        if u in (2, 22):
            assert bar
            A("s_cmp_lg_u32 s%d, 0" % W); A("s_cbranch_scc1 g2_np%d" % u)
            if u == 2:
                A("s_cmp_eq_u32 s69, 0"); A("s_cbranch_scc1 g2_np%d" % u)
                M.set_flag(A, 55, 12, 25)
            else: M.set_flag(A, 54, 12, 25)
            A.label("g2_np%d" % u)
        if u == 20: quick("fb", 18, 14, 47)
        if u == 40: quick("fs", 19, 4, 46)
        if ENV("G2IT") and u % 8 == 0 and u < 48: stamp(A, 2 + u // 8)
        rd = ureads(u + 2) if u + 2 < len(units) else []
        fr = frs(u)
        ex = [[] for _ in range(8)]
        if u < NK - R:
            iv = (u + 10) >> 2
            if iv < 14:
                d0, d1 = g2_dma_of(u); ex[1].append((d0, ("W", iv))); ex[5].append((d1, ("W", iv)))
            if u + 8 < NK:
                ex[3].append((hload(u, 0), ("H", u + 8))); ex[7].append((hload(u, 1), ("H", u + 8)))
        if u in (4, 7, 10, 13):
            i = (u - 4) // 3
            ex[2].append((["buffer_store_dwordx4 %s, v22, s[56:59], s%d offen offset:%d sc1" % (q("v", SO + 4 * i), 6 + (i >> 1), (i & 1) * 1024)], ("S", 0)))
        if u == int(ENV("FBLD", "12")): ex[2].append((["s_bfm_b64 exec, 14, 0", "buffer_load_dword v18, v13, %s, s47 offen sc1" % FL, "s_mov_b64 exec, -1"], ("fb", 0)))
        if u == 32: ex[2].append((["s_bfm_b64 exec, 4, 0", "buffer_load_dword v19, v13, %s, s46 offen sc1" % FL, "s_mov_b64 exec, -1"], ("fs", 0)))
        if 40 <= u < 44:
            i = u - 40
            ex[2].append((["buffer_load_dwordx4 %s, v20, s[56:59], s%d offen offset:%d sc1" % (q("v", SR + 4 * i), 40 + (i & 1), (i >> 1) * 2048)], ("s", 0)))
        snd = NK - R + R // 2
        if R and u == snd:
            B = Asm(); M.srd(B, 36, M.POUT, 0, 4 << 20); B("s_xor_b32 s46, s40, 0x80"); B("s_xor_b32 s47, s41, 0x80")
            ex[0].append(([t for k, t in B.items], None))
            for i in range(4):
                cv = ["v_cvt_pk_bf16_f32 v%d, v%d, v%d" % (PR + 4 * i + e, ACC + 32 + 8 * i + 2 * e, ACC + 33 + 8 * i + 2 * e) for e in range(4)]
                ex[2 + i].append((cv + ["buffer_store_dwordx4 %s, v20, s[36:39], s%d offen offset:%d sc1" % (q("v", PR + 4 * i), 46 + (i & 1), (i >> 1) * 2048)], ("X", 0)))
        for i, (s_, kk, t, r) in enumerate(fr):
            d = ACC + 16 * t
            A("%s v[%d:%d], %s, %s, v[%d:%d]" % (MF32, d, d + 15, q("a", r), q("a", hreg(s_, kk)), d, d + 15))
            for x in rd[2 * i:2 * i + 2]: A(x); lg.append(u + 2)
            for ins, tag in ex[i]:
                for y in ins:
                    A(y)
                    if y.startswith("buffer"): vm.append(tag)
    stamp(A, 10)
    nl2e = -math.log2(math.e)
    A("s_mov_b32 s56, 0x%x" % f32(nl2e)); A("s_mov_b32 s57, s56"); A("s_mov_b32 s59, 0xffff0000")
    A("v_mov_b32 v26, 1.0"); A("v_mov_b32 v27, 1.0"); A("v_mov_b32 v23, s%d" % M.TOK)
    A("s_waitcnt vmcnt(0)")
    M.set_flag(A, 52, 12, 23)
    A("s_barrier")
    for i in range(16):
        A("v_lshlrev_b32 v%d, 16, v%d" % (UX + 2 * i, XR + i)); A("v_and_b32 v%d, s59, v%d" % (UX + 2 * i + 1, XR + i))
        A("v_lshlrev_b32 v%d, 16, v%d" % (US + 2 * i, SR + i)); A("v_and_b32 v%d, s59, v%d" % (US + 2 * i + 1, SR + i))
    M.poll(A, "fx", 53, 12, 24, 1, sleep=1)
    for i in range(4):
        A("buffer_load_dwordx4 %s, v20, s[36:39], s%d offen offset:%d sc1" % (q("v", PB + 4 * i), 40 + (i & 1), (i >> 1) * 2048))
    H4 = range(0, 8, 2)
    for t in range(4):
        b = 8 * t; T = 224 + 8 * (t & 1)
        A("s_waitcnt vmcnt(%d)" % (3 - t))
        for e in range(4):
            A("v_lshlrev_b32 v%d, 16, v%d" % (T + 2 * e, PB + 4 * t + e)); A("v_and_b32 v%d, s59, v%d" % (T + 2 * e + 1, PB + 4 * t + e))
        for e in H4: A("v_pk_add_f32 %s, %s, %s" % (p2(ACC + b + e), p2(ACC + b + e), p2(T + e)))
        for e in H4: A("v_pk_mul_f32 %s, %s, s[56:57]" % (p2(T + e), p2(ACC + b + e)))
        for e in range(8): A("v_exp_f32 v%d, v%d" % (T + e, T + e))
        A("s_nop 0")
        for e in H4: A("v_pk_add_f32 %s, %s, v[26:27]" % (p2(T + e), p2(T + e)))
        for e in range(8): A("v_rcp_f32 v%d, v%d" % (T + e, T + e))
        A("s_nop 0")
        for e in H4: A("v_pk_mul_f32 %s, %s, %s" % (p2(ACC + b + e), p2(ACC + b + e), p2(T + e)))
        for e in range(4): A("v_cvt_pk_bf16_f32 v%d, v%d, v%d" % (PR + b + e, ACC + b + 2 * e, ACC + b + 2 * e + 1))
        for u in range(2):
            A("ds_write_b64 v16, %s offset:%d" % (p2(PR + b + 2 * u), (t >> 1) * 64 + (2 * (t & 1) + u) * 16))
    A("s_waitcnt lgkmcnt(0)")
    for i in range(4): A("ds_read_b128 %s, v17 offset:%d" % (q("v", ACC + 4 * i), i * 8 * 144))
    for i in range(4):
        A("s_waitcnt lgkmcnt(%d)" % (3 - i))
        T = 224 + 8 * (i & 1)
        for e in range(4):
            A("v_lshlrev_b32 v%d, 16, v%d" % (T + 2 * e, ACC + 4 * i + e)); A("v_and_b32 v%d, s59, v%d" % (T + 2 * e + 1, ACC + 4 * i + e))
        for e in H4: A("v_pk_fma_f32 %s, %s, %s, %s" % (p2(UX + 8 * i + e), p2(US + 8 * i + e), p2(T + e), p2(UX + 8 * i + e)))
        for e in range(4): A("v_cvt_pk_bf16_f32 v%d, v%d, v%d" % (XR + 4 * i + e, UX + 8 * i + 2 * e, UX + 8 * i + 2 * e + 1))
        A("buffer_store_dwordx4 %s, v20, s[36:39], s%d offen offset:%d" % (q("v", XR + 4 * i), 40 + (i & 1), (i >> 1) * 2048))
    if G.STAMP:
        A("s_waitcnt vmcnt(0)")
        stamp(A, 11); A("s_memrealtime s[100:101]"); A("s_waitcnt lgkmcnt(0)")
        G.stamp_out(A, 0, 12, M.PWS, "all")
        A("v_mov_b32 v2, s100"); A("buffer_store_dword v2, v1, s[96:99], 0 offen offset:48")

def colfft(A, M):
    W_ = M.WAVE
    DAT, FA, FE = 128, 160, 176
    W, T1, T2, D, P, TMP = 8, 40, 48, 104, 168, 200
    A("s_waitcnt lgkmcnt(0)")
    M.flat(A, M.late_stores())
    M.srd(A, 36, M.PWS, M.WS_WT, M.SZ_WT)
    A("s_waitcnt vmcnt(0)")
    A("v_mov_b32 v240, 0"); A("v_lshlrev_b32 v242, 7, v1")
    A("s_barrier")
    M.set_flag_w0(A, "f2f", 63, 240, 241)
    NP = int(ENV("P1", "0"))
    if NP:
        A("s_and_b32 s41, s%d, 1" % W_); A("s_cmp_eq_u32 s41, 0")
        A("s_cselect_b32 s52, s%d, s%d" % (M.PWG, M.PWU)); A("s_cselect_b32 s53, s%d, s%d" % (M.PWG + 1, M.PWU + 1))
        A("s_and_b32 s53, s53, 0xffff"); A("s_mov_b32 s54, %d" % (1024 * 7168)); A("s_mov_b32 s55, 0x20000")
        A("s_lshl_b32 s41, s2, 1"); A("s_lshr_b32 s42, s%d, 1" % W_); A("s_add_u32 s41, s41, s42"); A("s_lshl_b32 s41, s41, 13"); A("s_add_u32 s41, s41, %d" % (int(ENV("P1ROW", "128")) * 7168))
        for n in range(NP):
            A("buffer_load_dword v243, v242, s[52:55], s41 offen"); A("s_add_u32 s41, s41, 0x80000")
        if ENV("P1ST"): stamp(A, 3); A("s_waitcnt vmcnt(0)"); stamp(A, 4)
    names = []
    for inv in range(2):
        for part in range(2): names.append(("fa_%d%d" % (inv, part), ar(FA + 8 * inv + 4 * part, 4)))
    for t in range(2): names.append(("t1_%d" % t, vr(T1 + 4 * t, 4)))
    for e in range(1, 8):
        for t in range(2): names.append(("t2_%d%d" % (e, t), vr(T2 + 8 * (e - 1) + 4 * t, 4)))
    for ih in range(2): names.append(("fe32_%d" % ih, ar(FE + 4 * ih, 4)))
    for nm, r in names: G.tab_load(A, r, nm, 3, M.STAB, 42)
    A("v_and_b32 v4, 15, v1"); A("v_lshrrev_b32 v5, 4, v1")
    A("v_lshlrev_b32 v6, 6, v4"); A("v_lshl_add_u32 v6, v5, 4, v6")
    for k in range(4):
        A("v_add_u32 v7, %d, v5" % (4 * k)); A("v_xor_b32 v7, v7, v4"); A("v_lshlrev_b32 v7, 4, v7"); A("v_lshl_add_u32 v%d, v5, 8, v7" % (232 + k))
    A("v_lshrrev_b32 v7, 5, v1"); A("v_lshlrev_b32 v7, 3, v7"); A("v_bfe_u32 v236, v1, 4, 1"); A("v_or_b32 v7, v7, v236"); A("v_xor_b32 v7, v7, v4")
    A("v_lshlrev_b32 v7, 4, v7"); A("v_lshl_add_u32 v236, v4, 8, v7"); A("v_lshl_add_u32 v236, v2, 15, v236")
    A("v_add_u32 v4, 0x1000, v3")
    A("s_lshl_b32 s51, s2, 2"); A("s_add_u32 s51, s51, s%d" % W_)
    A("s_and_b32 s41, s51, 15"); A("s_bfe_u32 s42, s51, 0x20004"); A("s_lshl_b32 s42, s42, 7")
    A("s_add_u32 s40, s41, s42")
    A("s_sub_u32 s43, 32, s41"); A("s_cmp_eq_u32 s41, 0"); A("s_cselect_b32 s43, 16, s43")
    A("s_add_u32 s43, s43, 480"); A("s_sub_u32 s43, s43, s42")
    A("s_cmp_ge_u32 s51, 64"); A("s_cselect_b32 s40, s43, s40"); A("s_cselect_b32 s50, -1, 1"); A("s_lshl_b32 s50, s50, 18")
    A("s_lshl_b32 s40, s40, 13")
    M.srd(A, 52, M.PWS, M.WS_Y, M.SZ_Y); M.srd(A, 56, M.PWS, M.WS_Z, M.SZ_Z)
    A("s_lshl_b32 s44, s%d, 13" % W_); A("s_add_u32 s44, s44, %d" % M.F2)
    M.poll(A, "f2", 44, 242, 244, 64, sleep=8)
    A("s_barrier")
    stamp(A, 5)
    A("s_lshl_b32 s41, s51, 15"); A("s_lshl_b32 s42, s%d, 15" % W_)
    for e in range(8):
        A("s_add_u32 m0, s42, %d" % (e * 4096))
        for k in range(4): A("buffer_load_dwordx4 v%d, s[52:55], s41 offen offset:%d sc1 lds" % (232 + k, k * 1024))
        A("s_add_u32 s41, s41, 4096")
    def wload(dst, f, so):
        for e in range(8):
            A("buffer_load_dwordx4 %s, v%d, s[36:39], s%d offen offset:%d sc1" % (q(f, dst + 4 * e), 3 if e < 4 else 4, so, (e & 3) * 1024))
    A("s_cmp_eq_u32 s51, 0"); A("s_cselect_b32 s43, 0x%x, s40" % (512 * 8192))
    wload(W, "v", 43)
    A("s_mov_b32 s48, 0"); A("s_mov_b32 s49, 0xffff0000")
    def yread():
        for e in range(8): A("ds_read_b128 %s, v237 offset:%d" % (q("a", DAT + 4 * e), e * 4096))
    A("v_mov_b32 v237, v236")
    A("s_waitcnt vmcnt(8)")
    yread()
    stamp(A, 6)
    A.label("cf_loop")
    A("s_waitcnt lgkmcnt(0)")
    def mm(d, a, b, c=None):
        A("%s %s, %s, %s, %s" % (MF, q("v", d), a, b, "0" if c is None else q("v", c)))
    tctr = [0]
    def tw_quads(dsts, re, tc, conj, TMP=TMP):
        t = TMP + 8 * (tctr[0] % 4); tctr[0] += 1
        im = re + 4; ts = tc + 4
        neg = " neg_lo:[1,0,0] neg_hi:[1,0,0]"
        for h in (0, 2): A("v_pk_mul_f32 %s, %s, %s" % (p2(t + h), p2(re + h), p2(tc + h)))
        for h in (0, 2): A("v_pk_mul_f32 %s, %s, %s" % (p2(t + 4 + h), p2(im + h), p2(tc + h)))
        for h in (0, 2): A("v_pk_fma_f32 %s, %s, %s, %s%s" % (p2(t + h), p2(im + h), p2(ts + h), p2(t + h), neg if conj else ""))
        for h in (0, 2): A("v_pk_fma_f32 %s, %s, %s, %s%s" % (p2(t + 4 + h), p2(re + h), p2(ts + h), p2(t + 4 + h), "" if conj else neg))
        for r in range(4): A("v_cvt_pk_bf16_f32 v%d, v%d, v%d" % (dsts[r], t + r, t + 4 + r))
    def cm_pairs(items):
        ts = []
        for _ in items:
            ts.append(TMP + 2 * (tctr[0] % 8)); tctr[0] += 1
        for (dst, z, c, s_), t in zip(items, ts):
            A("v_pk_mul_f32 %s, %s, %s op_sel:[0,%d] op_sel_hi:[1,%d]" % (p2(t), p2(z), p2(c & ~1), c & 1, c & 1))
        for (dst, z, c, s_), t in zip(items, ts):
            A("v_pk_fma_f32 %s, %s, %s, %s op_sel:[1,%d,0] op_sel_hi:[0,%d,1] neg_lo:[1,0,0]" % (p2(t), p2(z), p2(s_ & ~1), p2(t), s_ & 1, s_ & 1))
        for (dst, z, c, s_), t in zip(items, ts):
            A("v_cvt_pk_bf16_f32 v%d, v%d, v%d" % (dst, t, t + 1))
    for e in range(8):
        mm(D + 8 * e, q("a", DAT + 4 * e), q("a", FA)); mm(D + 8 * e + 4, q("a", DAT + 4 * e), q("a", FA + 4))
    A("s_add_u32 s40, s40, s50")
    A("s_add_u32 s43, s48, 1"); A("s_and_b32 s43, s43, 3"); A("s_lshl_b32 s43, s43, 5"); A("v_xor_b32 v237, s43, v236")
    yread()
    for e in range(8): tw_quads([P + 4 * e + r for r in range(4)], D + 8 * e, T1, False)
    for e in range(8):
        mm(D + 8 * e, q("a", FA), q("v", P + 4 * e)); mm(D + 8 * e + 4, q("a", FA + 4), q("v", P + 4 * e))
    for e in range(8):
        if e == 0:
            for r in range(4): A("v_cvt_pk_bf16_f32 v%d, v%d, v%d" % (P + 8 * r, D + r, D + 4 + r))
        else: tw_quads([P + 8 * r + e for r in range(4)], D + 8 * e, T2 + 8 * (e - 1), False)
    def stageE():
        for ih in range(2):
            for r in range(4):
                d = "v[%d:%d]" % (D + 16 * r, D + 16 * r + 15)
                A("%s %s, %s, %s, %s" % (MF32, d, q("a", FE + 4 * ih), q("v", P + 8 * r + 4 * ih), "0" if ih == 0 else d))
    stageE()
    A("s_waitcnt vmcnt(0)")
    U = TMP + 16
    A("s_or_b32 s43, s51, s48"); A("s_cmp_eq_u32 s43, 0"); A("s_cbranch_scc1 cf_pack")
    for r in range(4):
        for eh in range(2):
            items = []
            for k in range(4):
                ep = 4 * eh + k; w = W + 4 * ep + r; u = U + 8 * (eh & 1) + 2 * k
                A("v_lshlrev_b32 v%d, 16, v%d" % (u, w)); A("v_and_b32 v%d, s49, v%d" % (u + 1, w))
                items.append((P + 8 * r + ep, D + 16 * r + 2 * ep, u, u + 1))
            cm_pairs(items)
    A.label("cf_mul_done")
    wload(W, "v", 40)
    stageE()
    for r in range(4):
        A("v_cvt_pk_bf16_f32 v%d, v%d, v%d" % (P + r, D + 16 * r, D + 16 * r + 1))
        for xs in ((1, 2, 3, 4), (5, 6, 7)):
            cm_pairs([(P + 4 * (8 - x) + r, D + 16 * r + 2 * x, T2 + 8 * (7 - x) + r, T2 + 8 * (7 - x) + 4 + r) for x in xs])
    for e in range(8):
        mm(D + 8 * e, q("v", P + 4 * e), q("a", FA + 8)); mm(D + 8 * e + 4, q("v", P + 4 * e), q("a", FA + 12))
    for e in range(8): tw_quads([P + 4 * e + r for r in range(4)], D + 8 * e, T1, True)
    for e in range(8):
        mm(D + 8 * e, q("v", P + 4 * e), q("a", FA + 8)); mm(D + 8 * e + 4, q("v", P + 4 * e), q("a", FA + 12))
    for e in range(8):
        for r in range(4): A("v_cvt_pk_bf16_f32 v%d, v%d, v%d" % (P + 4 * e + r, D + 8 * e + r, D + 8 * e + 4 + r))
    for cc in range(4):
        A("s_cmp_eq_u32 s48, %d" % cc); A("s_cbranch_scc0 cf_o%d" % cc)
        for qq in range(32): A("v_accvgpr_write_b32 a%d, v%d" % (4 * qq + cc, P + qq))
        A.label("cf_o%d" % cc)
    A("s_add_u32 s48, s48, 1"); A("s_cmp_lt_u32 s48, 4"); A("s_cbranch_scc1 cf_loop")
    stamp(A, 7)
    A("v_and_b32 v238, 15, v1"); A("v_lshlrev_b32 v238, 4, v238"); A("v_lshl_add_u32 v238, v5, 20, v238")
    A("s_lshl_b32 s41, s51, 8")
    for r in range(4):
        for e in range(8):
            qq = 4 * e + r
            A("s_add_u32 s42, s41, 0x%x" % ((8 * r + e) * 32768))
            A("buffer_store_dwordx4 %s, v238, s[56:59], s42 offen sc1" % q("a", 4 * qq))
    A("s_waitcnt vmcnt(0) lgkmcnt(0)")
    A("s_lshl_b32 s44, s2, 7"); A("s_add_u32 s44, s44, %d" % M.F3)
    A("s_barrier")
    M.set_flag_w0(A, "f3", 44, 240, 241)
    A("s_mov_b32 s44, %d" % M.F3)
    M.poll(A, "f3", 44, 242, 244, 32, sleep=8)
    z_fetch(A, M); i_tabs(A, M); g2_setup(A, M); g2_early(A)
    A("s_mov_b32 s58, 0"); A("s_mov_b32 s55, 0"); A("s_mov_b32 s52, 0"); A("s_mov_b32 s53, 0")
    A("s_waitcnt vmcnt(0)")
    A("s_branch cf_end")
    A.label("cf_pack")
    A("s_nop 11")
    SC = M.LDS_SCR
    A("v_and_b32 v238, 15, v1"); A("v_lshl_add_u32 v238, v5, 6, v238")
    A("v_sub_u32 v239, %d, v238" % (2048 - 48 - 1792)); A("v_lshlrev_b32 v238, 3, v238"); A("v_lshlrev_b32 v239, 3, v239")
    A("v_add_u32 v238, 0x%x, v238" % SC); A("v_add_u32 v239, 0x%x, v239" % SC)
    for r in range(4):
        for ep in range(8): A("ds_write_b64 v238, %s offset:%d" % (p2(D + 16 * r + 2 * ep), 8 * (16 * r + 256 * ep)))
    A("s_mov_b64 exec, 1"); A("ds_write_b64 v238, %s offset:%d" % (p2(D), 8 * 2048)); A("s_mov_b64 exec, -1")
    A("s_mov_b32 s43, 0x%x" % (513 * 8192))
    wload(208, "a", 43)
    for r in range(4):
        for ep in range(8):
            w = W + 4 * ep + r; z = D + 16 * r + 2 * ep; u = U + 2 * (ep & 3); t = TMP + 2 * (ep & 3)
            A("v_lshlrev_b32 v%d, 16, v%d" % (u, w)); A("v_and_b32 v%d, s49, v%d" % (u + 1, w))
            A("v_pk_mul_f32 %s, %s, %s op_sel:[0,0] op_sel_hi:[1,0]" % (p2(t), p2(z), p2(u)))
            A("v_pk_fma_f32 %s, %s, %s, %s op_sel:[1,1,0] op_sel_hi:[0,1,1] neg_lo:[1,0,0]" % (p2(z), p2(z), p2(u), p2(t)))
    A("s_waitcnt vmcnt(0) lgkmcnt(0)")
    for rh in range(2):
        for r in (2 * rh, 2 * rh + 1):
            for ep in range(8): A("ds_read_b64 %s, v239 offset:%d" % (p2(W + 16 * (r & 1) + 2 * ep), 8 * (16 * (3 - r) + 256 * (7 - ep))))
        A("s_waitcnt lgkmcnt(0)")
        for r in (2 * rh, 2 * rh + 1):
            for ep in range(8):
                m = W + 16 * (r & 1) + 2 * ep; z = D + 16 * r + 2 * ep; u = U + 2 * (ep & 3)
                A("v_accvgpr_read_b32 v%d, a%d" % (u + 1, 208 + 4 * ep + r))
                A("v_lshlrev_b32 v%d, 16, v%d" % (u, u + 1)); A("v_and_b32 v%d, s49, v%d" % (u + 1, u + 1))
                A("v_pk_fma_f32 %s, %s, %s, %s op_sel:[0,0,0] op_sel_hi:[1,0,1] neg_hi:[1,0,0]" % (p2(z), p2(m), p2(u), p2(z)))
                A("v_pk_fma_f32 %s, %s, %s, %s op_sel:[1,1,0] op_sel_hi:[0,1,1]" % (p2(z), p2(m), p2(u), p2(z)))
                A("v_cvt_pk_bf16_f32 v%d, v%d, v%d" % (P + 8 * r + ep, z, z + 1))
    A("s_nop 1")
    A("s_branch cf_mul_done")
    A.label("cf_end")
```

```python
import sys, math, os
from asmlib import *
import gen as G
from gen import f32, bf16, TAB, KA, NAME, allreduce_add, stamp, STAMP

KN = NAME + "_kernel"
WS_XN = 0;            SZ_XN = 4 << 20
WS_Y = 4 << 20;       SZ_Y = 4 << 20
WS_WT = 8 << 20;      SZ_WT = 514 * 8192
WS_Z = 13 << 20;      SZ_Z = 4 << 20
WS_S = 17 << 20;      SZ_S = 4 << 20
WS_H = 21 << 20;      SZ_H = 16 * 112 * 8192
WS_FL = 35 << 20;     SZ_FL = 0x80000
F1, F2, F3, FB, FS, FD, FH, FX = 0, 0x8000, 0x10000, 0x18000, 0x20000, 0x28000, 0x40000, 0x60000
LDS_SCR = 128 * 1024
LDS_T2 = 145 * 1024
LDS_SIZE = LDS_T2 + 4096
MF = "v_mfma_f32_16x16x32_bf16"
MF32 = "v_mfma_f32_32x32x16_bf16"
PX, PWR, PWI, PWG, PWU, PWD, POUT, PDBG, PWS = 4, 6, 8, 12, 14, 16, 18, 20, 22
SFL, STAB, SDBG = 24, 28, 32
TOK, WAVE = 70, 3
ENV = os.environ.get
BULK = ENV('BULK', ' sc1')
HLD = ENV('HLD', ' sc1')

def srd(A, d, base, off, size): G.srd(A, d, base, off, size)
def q(f, r): return "%s[%d:%d]" % (f, r, r + 3)
def p2(r): return "v[%d:%d]" % (r, r + 1)

def set_flag(A, soff, vz, vt, val=None, fl=" sc1"):
    A("v_mov_b32 v%d, s%d" % (vt, TOK if val is None else val))
    A("s_mov_b64 exec, 1")
    A("buffer_store_dword v%d, v%d, s[%d:%d], s%d offen%s" % (vt, vz, SFL, SFL + 3, soff, fl))
    A("s_mov_b64 exec, -1")

def set_flag_w0(A, tag, soff, vz, vt):
    A("s_cmp_lg_u32 s%d, 0" % WAVE); A("s_cbranch_scc1 sf_%s" % tag)
    set_flag(A, soff, vz, vt)
    A.label("sf_%s" % tag)

def poll(A, tag, soff, vaddr, vd, nl, width=1, first_hook=None, sleep=2):
    A("s_mov_b32 s68, 0x20000")
    ld = {1: "buffer_load_dword v%d" % vd, 4: "buffer_load_dwordx4 v[%d:%d]" % (vd, vd + 3)}[width]
    def rnd():
        if nl < 64: A("s_bfm_b64 exec, %d, 0" % nl)
        A("%s, v%d, s[%d:%d], s%d offen sc1" % (ld, vaddr, SFL, SFL + 3, soff))
        if nl < 64: A("s_mov_b64 exec, -1")
        A("s_waitcnt vmcnt(0)")
    def chk():
        if width == 4:
            for i in range(4): A("v_xor_b32 v%d, s%d, v%d" % (vd + i, TOK, vd + i))
            A("v_or3_b32 v%d, v%d, v%d, v%d" % (vd, vd, vd + 1, vd + 2)); A("v_or_b32 v%d, v%d, v%d" % (vd, vd, vd + 3))
            A("v_cmp_ne_u32 vcc, 0, v%d" % vd)
        else: A("v_cmp_ne_u32 vcc, s%d, v%d" % (TOK, vd))
        if nl < 64:
            A("s_nop 1")
            A("s_bfm_b64 s[66:67], %d, 0" % nl); A("s_and_b64 vcc, vcc, s[66:67]")
        A("s_nop 3")
    if first_hook:
        rnd(); first_hook(); chk(); A("s_cbranch_vccz pd_%s" % tag)
    A.label("pl_%s" % tag)
    rnd(); chk()
    A("s_cbranch_vccz pd_%s" % tag)
    A("s_sleep %d" % sleep)
    A("s_sub_u32 s68, s68, 1"); A("s_cmp_lg_u32 s68, 0"); A("s_cbranch_scc1 pl_%s" % tag)
    A.label("pd_%s" % tag)

def tab_dma(A, first, lds0, lds1):
    o = TAB.off(first)
    A("s_lshl_b32 s71, s%d, 12" % WAVE); A("s_add_u32 m0, s71, 0x%x" % lds0); A("s_add_u32 s71, s71, 0x%x" % o)
    for p in range(4): A("buffer_load_dwordx4 v3, s[%d:%d], s71 offen%s lds" % (STAB, STAB + 3, " offset:%d" % (p * 1024) if p else ""))
    A("s_lshl_b32 s71, s%d, 10" % WAVE); A("s_add_u32 m0, s71, 0x%x" % lds1); A("s_add_u32 s71, s71, 0x%x" % (o + 16384))
    A("buffer_load_dwordx4 v3, s[%d:%d], s71 offen lds" % (STAB, STAB + 3))
def tab_read(A, dst, name, first, va, d1):
    i = (TAB.off(name) - TAB.off(first)) // 1024
    A("ds_read_b128 %s, v%d offset:%d" % (dst, va, i * 1024 if i < 16 else d1 + (i - 16) * 1024))

def code_srd(A, d, lab):
    A("s_getpc_b64 s[%d:%d]" % (d, d + 1))
    A.label("cs_%s" % lab)
    A("s_add_u32 s%d, s%d, %s-cs_%s" % (d, d, lab, lab)); A("s_addc_u32 s%d, s%d, 0" % (d + 1, d + 1))
    A("s_and_b32 s%d, s%d, 0xffff" % (d + 1, d + 1))
    A("s_mov_b32 s%d, k_done-%s" % (d + 2, lab)); A("s_mov_b32 s%d, 0x20000" % (d + 3))

VWD = 244
def g1_decode(A):
    A("s_and_b32 s40, s2, 7"); A("s_lshr_b32 s41, s2, 3"); A("s_sub_u32 s41, s41, 4")
    A("s_and_b32 s42, s40, 1"); A("s_lshl_b32 s42, s42, 2"); A("s_and_b32 s43, s41, 3"); A("s_add_u32 s42, s42, s43")
    A("s_lshr_b32 s43, s40, 1"); A("s_mul_i32 s43, s43, 7"); A("s_lshr_b32 s44, s41, 2"); A("s_add_u32 s43, s43, s44")
    A("s_and_b32 s46, s%d, 1" % WAVE); A("s_lshr_b32 s47, s%d, 1" % WAVE)
def dmaX(buf):
    o = [["s_add_u32 m0, s64, 0x%x" % (buf * 32768), "buffer_load_dwordx4 v3, s[48:51], s60 offen%s lds" % BULK]]
    for p in range(1, 4): o.append(["buffer_load_dwordx4 v3, s[48:51], s60 offen offset:%d%s lds" % (p * 1024, BULK)])
    o[-1].append("s_add_u32 s60, s60, 0x4000")
    return o
def dmaW(buf, v):
    return [["s_add_u32 m0, s65, 0x%x" % (buf * 32768), "buffer_load_dwordx4 v%d, s[52:55], s61 offen lds" % v],
            ["buffer_load_dwordx4 v%d, s[52:55], s62 offen offset:1024 lds" % v],
            ["buffer_load_dwordx4 v%d, s[56:59], s61 offen offset:2048 lds" % v, "s_add_u32 s61, s61, %d" % (32 * 7168)],
            ["buffer_load_dwordx4 v%d, s[56:59], s62 offen offset:3072 lds" % v, "s_add_u32 s62, s62, %d" % (32 * 7168)]]
def flat(A, l):
    for x in l:
        for y in x: A(y)

def w_touch():
    return ["buffer_load_dword v16, v17, s[36:39], s69 offen", "s_add_u32 s69, s69, %d" % (128 * 7168)]
def w_touch_setup(A):
    A("s_cmp_lt_u32 s%d, 2" % WAVE); A("s_cselect_b32 s36, s%d, s%d" % (PWG, PWU)); A("s_cselect_b32 s37, s%d, s%d" % (PWG + 1, PWU + 1))
    A("s_and_b32 s37, s37, 0xffff"); A("s_mov_b32 s38, %d" % (1024 * 7168)); A("s_mov_b32 s39, 0x20000")
    A("s_cmp_lt_u32 s2, 32"); A("s_cselect_b32 s38, 0, s38")
    A("s_mul_i32 s69, s42, %d" % (16 * 7168)); A("s_lshl_b32 s41, s43, 8"); A("s_add_u32 s69, s69, s41"); A("s_lshl_b32 s41, s46, 7"); A("s_add_u32 s69, s69, s41")
    A("s_add_u32 s69, s69, %d" % (128 * 7168))
    A("v_mul_u32_u24 v17, 7168, v1"); A("v_lshrrev_b32 v16, 4, v1"); A("v_lshl_add_u32 v17, v16, 24, v17")
def g1_addr(A):
    A("v_mov_b32 v4, v%d" % VWD); A("v_lshlrev_b32 v243, 7, v1")
    A("s_lshl_b32 s40, s47, 13"); A("v_add_u32 v5, s40, v3"); A("v_add_u32 v6, 0x10000, v5")
    A("v_bfe_u32 v7, v1, 4, 1"); A("v_lshlrev_b32 v140, 12, v7")
    A("v_bfe_u32 v7, v1, 5, 1"); A("v_lshl_add_u32 v140, v7, 10, v140")
    A("v_bfe_u32 v7, v1, 2, 2"); A("v_lshl_add_u32 v140, v7, 8, v140")
    A("v_and_b32 v7, 3, v1"); A("v_lshl_add_u32 v140, v7, 3, v140"); A("v_add_u32 v140, 0x4000, v140")
    A("v_bfe_u32 v7, v1, 2, 3"); A("s_lshl_b32 s40, s46, 2"); A("v_xor_b32 v7, s40, v7")
    for t in range(4):
        A("v_xor_b32 v141, %d, v7" % t); A("v_lshl_add_u32 v%d, v141, 5, v140" % (8 + t)); A("v_add_u32 v%d, 0x10000, v%d" % (12 + t, 8 + t))

def phase_a(A):
    RS = 2080; XS = LDS_SCR; YT = 96 * 1024
    A("s_load_dwordx16 s[4:19], s[0:1], 0"); A("s_load_dwordx4 s[20:23], s[0:1], 64")
    A("s_memrealtime s[66:67]")
    if not ENV("NOCPF0"):
        code_srd(A, 36, "a_start"); A("v_lshlrev_b32 v5, 7, v0"); A("buffer_load_dword v243, v5, s[36:39], 0 offen")
        A("s_cmp_lt_u32 s2, 32"); A("s_cbranch_scc0 a_start")
        A("s_mov_b32 s40, 0x8000"); A("buffer_load_dword v242, v5, s[36:39], s40 offen")
        A.label("a_start")
    G.tab_srd(A, STAB, "a")
    A("v_and_b32 v1, 63, v0"); A("v_lshrrev_b32 v2, 6, v0")
    A("v_readfirstlane_b32 s%d, v2" % WAVE)
    A("v_lshlrev_b32 v3, 4, v1")
    A("s_and_b32 s36, s2, 7"); A("s_bfe_u32 s37, s2, 0x10003"); A("s_lshr_b32 s38, s2, 4")
    A("s_lshl_b32 s39, s38, 3"); A("s_add_u32 s39, s39, s36")
    A("s_lshl_b32 s44, s37, 21"); A("s_lshl_b32 s45, s39, 11"); A("s_add_u32 s63, s44, s45"); A("s_add_u32 s69, s63, 0x40000")
    A("v_lshl_add_u32 v4, v2, 19, v3")
    g1_decode(A)
    A("v_lshrrev_b32 v5, 4, v1"); A("s_lshl_b32 s48, s46, 2"); A("v_add_u32 v5, s48, v5")
    A("v_lshlrev_b32 v6, 1, v5"); A("v_and_b32 v7, 15, v1"); A("v_xor_b32 v6, v6, v7")
    A("s_lshl_b32 s48, s47, 4"); A("v_add_u32 v5, s48, v5")
    A("v_mul_u32_u24 v5, 7168, v5"); A("v_lshl_add_u32 v%d, v6, 4, v5" % VWD)
    A("s_lshl_b32 s61, s43, 8"); A("s_add_u32 s62, s61, %d" % (57344 - 1024))
    A("s_lshl_b32 s64, s%d, 12" % WAVE); A("s_add_u32 s65, s64, 0x4000")
    A("s_lshl_b32 s60, s42, 19"); A("s_add_u32 s60, s60, s64")
    A("s_waitcnt lgkmcnt(0)")
    srd(A, 48, PX, 0, 4 << 20)
    X = 8
    A("buffer_load_dwordx4 v[8:11], v4, s[48:51], s63 offen")
    A("buffer_load_dwordx4 v[12:15], v4, s[48:51], s63 offen offset:1024")
    A("buffer_load_dwordx4 v[16:19], v4, s[48:51], s69 offen")
    A("buffer_load_dwordx4 v[20:23], v4, s[48:51], s69 offen offset:1024")
    srd(A, SDBG, PDBG, 0, 256); srd(A, SFL, PWS, WS_FL, SZ_FL)
    VZ = 245
    A("v_mov_b32 v%d, 0" % VZ)
    A("s_or_b32 s44, s2, s%d" % WAVE); A("s_cmp_lg_u32 s44, 0"); A("s_cbranch_scc1 a_notok")
    A("s_or_b32 s66, s66, 1"); A("v_mov_b32 v246, s66")
    A("s_mov_b64 exec, 1")
    A("buffer_store_dword v246, v%d, s[%d:%d], 0 offen sc1" % (VZ, SDBG, SDBG + 3))
    A("s_mov_b64 exec, -1")
    A.label("a_notok")
    F1r = 64; TW = 72; F2r = 88; F2S = 120
    names = [("f1re", F1r), ("f1im", F1r + 4)]
    for bh in range(2):
        for t in range(2): names.append(("tw%d%d" % (bh, t), TW + 8 * bh + 4 * t))
    for dh in range(2):
        for part in range(2):
            for bh in range(2): names.append(("f2_%d%d%d" % (dh, part, bh), F2r + 16 * dh + 8 * part + 4 * bh))
    for part in range(2):
        for bh in range(2): names.append(("f2s_%d%d" % (part, bh), F2S + 8 * part + 4 * bh))
    WSZ = 2048 * 1026
    HL = 200; AB = 248
    def rel_loads(part):
      if part == 0:
        srd(A, 52, PWR, 0, WSZ); srd(A, 56, PWI, 0, WSZ)
        A("s_bfe_u32 s40, s2, 0x10002"); A("s_lshl_b32 s40, s40, 3"); A("s_lshr_b32 s41, s2, 3"); A("s_lshl_b32 s41, s41, 6"); A("s_add_u32 s40, s40, s41")
        A("s_mul_i32 s40, s40, 1026"); A("s_and_b32 s41, s2, 3"); A("s_lshl_b32 s41, s41, 8"); A("s_add_u32 s40, s40, s41")
        A("v_and_b32 v232, 7, v0"); A("v_lshrrev_b32 v233, 3, v0")
        A("v_lshrrev_b32 v234, 3, v1"); A("v_mul_u32_u24 v234, 1026, v234"); A("v_and_b32 v234, -16, v234")
        A("v_lshl_add_u32 v234, v232, 4, v234"); A("v_lshl_add_u32 v234, v2, 6, v234")
        A("v_lshlrev_b32 v235, 15, v233"); A("v_lshl_add_u32 v235, v232, 4, v235")
        A("s_mov_b32 s66, 0x1f1f1f1f"); A("s_mov_b32 s67, s66"); A("s_mov_b64 exec, s[66:67]")
        for mm_ in range(2):
            A("s_add_u32 m0, s64, 0x%x" % (mm_ * 32768))
            for r in range(4):
                A("s_add_u32 s41, s40, %d" % (r * (16 * 1026 - 1024)))
                A("buffer_load_dwordx4 v234, s[%d:%d], s41 offen%s lds" % (52 + 4 * mm_, 55 + 4 * mm_, " offset:%d" % (r * 1024) if r else ""))
        A("s_mov_b64 exec, -1")
      else:
        A("s_lshl_b32 s41, s2, 3"); A("v_add_u32 v236, s41, v232")
        A("v_sub_u32 v237, 2048, v236"); A("v_and_b32 v237, 0x7ff, v237")
        A("v_mul_u32_u24 v238, 1026, v236"); A("v_mul_u32_u24 v237, 1026, v237")
        A("s_cmp_lg_u32 s%d, 0" % WAVE); A("s_cbranch_scc1 a_noabl")
        A("s_mov_b64 exec, 0xff")
        for i, (va, sd, off) in enumerate([(238, 52, 0), (238, 56, 0), (237, 52, 0), (237, 56, 0), (238, 52, 1024), (238, 56, 1024), (237, 52, 1024), (237, 56, 1024)]):
            A("buffer_load_ushort v%d, v%d, s[%d:%d], 0 offen offset:%d" % (AB + i, va, sd, sd + 3, off))
        A("s_mov_b64 exec, -1")
        A.label("a_noabl")
    RELPOS = ENV("RELPOS", "1")
    NY = 0
    if RELPOS == "0": rel_loads(); NY += 16
    TR, XR, XG = 142, 143, 144
    A("v_lshrrev_b32 v7, 2, v1"); A("v_lshlrev_b32 v7, 6, v7"); A("v_and_b32 v%d, 3, v1" % TR)
    A("v_lshl_add_u32 v7, v%d, 3, v7" % TR); A("v_mul_u32_u24 v%d, %d, v2" % (TR, 2 * RS)); A("v_add_u32 v%d, v%d, v7" % (TR, TR)); A("v_add_u32 v%d, 0x%x, v%d" % (TR, XS, TR))
    A("v_and_b32 v7, 7, v1"); A("v_mul_u32_u24 v%d, %d, v7" % (XR, RS)); A("v_lshlrev_b32 v%d, 4, v7" % XG)
    A("v_bfe_u32 v7, v1, 3, 2"); A("v_lshl_add_u32 v%d, v7, 3, v%d" % (XR, XR)); A("v_lshl_add_u32 v%d, v7, 8, v%d" % (XG, XG))
    A("v_lshrrev_b32 v7, 5, v0"); A("v_lshl_add_u32 v%d, v7, 6, v%d" % (XR, XR)); A("v_lshl_add_u32 v%d, v7, 14, v%d" % (XG, XG))
    A("v_add_u32 v%d, 0x%x, v%d" % (XR, XS, XR))
    A("s_lshr_b32 s10, s39, 4"); A("s_lshl_b32 s10, s10, 19"); A("s_and_b32 s11, s39, 15"); A("s_lshl_b32 s11, s11, 10")
    A("s_add_u32 s10, s10, s11"); A("s_lshl_b32 s11, s37, 7"); A("s_add_u32 s10, s10, s11")
    XW = 141
    A("v_mul_u32_u24 v%d, %d, v2" % (XW, 2 * RS)); A("v_add_u32 v%d, v%d, v3" % (XW, XW)); A("v_add_u32 v%d, 0x%x, v%d" % (XW, XS, XW))
    tab_dma(A, "f1re", 112 * 1024, LDS_T2)
    MG, MP, MQ, YB, YR, YG = 136, 137, 138, 139, 146, 145
    A("v_and_b32 v5, 15, v1"); A("v_cmp_eq_u32 vcc, 0, v5"); A("v_mov_b32 v7, 0xffff")
    A("v_cndmask_b32 v%d, -1, 0, vcc" % MG); A("v_cndmask_b32 v%d, 0, v7, vcc" % MP); A("v_lshlrev_b32 v%d, 16, v%d" % (MQ, MP))
    A("v_and_b32 v7, 3, v1"); A("v_lshlrev_b32 v7, 5, v7"); A("v_lshl_add_u32 v%d, v1, 7, v7" % YB); A("v_lshl_add_u32 v%d, v2, 3, v%d" % (YB, YB))
    A("v_add_u32 v%d, 0x%x, v%d" % (YB, YT, YB))
    for r in range(1, 4): A("v_xor_b32 v%d, %d, v%d" % (196 + r, 32 * r, YB))
    A("v_lshlrev_b32 v%d, 4, v0" % YR); A("v_add_u32 v%d, 0x%x, v%d" % (YR, YT, YR))
    A("v_lshrrev_b32 v7, 3, v0"); A("v_lshlrev_b32 v%d, 15, v7" % YG); A("v_and_b32 v7, 3, v7"); A("v_lshlrev_b32 v7, 1, v7")
    A("v_and_b32 v6, 7, v0"); A("v_xor_b32 v7, v7, v6"); A("v_lshl_add_u32 v%d, v7, 4, v%d" % (YG, YG))
    A("s_waitcnt vmcnt(5)")
    stamp(A, 2)
    A("s_mov_b32 s45, 0xffff0000")
    U = 24
    for row in range(2):
        for i in range(8):
            A("v_lshlrev_b32 v%d, 16, v%d" % (U + 16 * row + 2 * i, X + 8 * row + i))
            A("v_and_b32 v%d, s45, v%d" % (U + 16 * row + 2 * i + 1, X + 8 * row + i))
    rel_loads(0)
    S = [56, 57]; T = [58, 59]; Q = [60, 61]
    def tree(dst):
        for row in range(2):
            b = X + 8 * row
            A("v_pk_add_f32 %s, %s, %s" % (p2(b), p2(b), p2(b + 4))); A("v_pk_add_f32 %s, %s, %s" % (p2(b + 2), p2(b + 2), p2(b + 6)))
        for row in range(2): A("v_pk_add_f32 %s, %s, %s" % (p2(X + 8 * row), p2(X + 8 * row), p2(X + 8 * row + 2)))
        for row in range(2): A("v_add_f32 v%d, v%d, v%d" % (dst[row], X + 8 * row, X + 8 * row + 1))
    for row in range(2):
        for i in range(4): A("v_pk_add_f32 %s, %s, %s" % (p2(X + 8 * row + 2 * i), p2(U + 16 * row + 2 * i), p2(U + 16 * row + 8 + 2 * i)))
    tree(S)
    allreduce_add(A, S, T)
    A("s_mov_b32 s44, 0x%x" % f32(1.0 / 1024))
    for row in range(2): A("v_mul_f32 v%d, s44, v%d" % (S[row], S[row]))
    DV = 164
    sel = lambda row: " op_sel:[0,%d] op_sel_hi:[1,%d] neg_lo:[0,1] neg_hi:[0,1]" % (row, row)
    for row in range(2):
        for i in range(8): A("v_pk_add_f32 %s, %s, v[56:57]%s" % (p2(DV + 16 * row + 2 * i), p2(U + 16 * row + 2 * i), sel(row)))
    for row in range(2):
        for i in range(4): A("v_pk_mul_f32 %s, %s, %s" % (p2(X + 8 * row + 2 * i), p2(DV + 16 * row + 2 * i), p2(DV + 16 * row + 2 * i)))
    for row in range(2):
        for i in range(4): A("v_pk_fma_f32 %s, %s, %s, %s" % (p2(X + 8 * row + 2 * i), p2(DV + 16 * row + 8 + 2 * i), p2(DV + 16 * row + 8 + 2 * i), p2(X + 8 * row + 2 * i)))
    tree(Q)
    A("v_cvt_pk_bf16_f32 v62, v56, v57")
    allreduce_add(A, Q, T)
    A("v_lshlrev_b32 v56, 16, v62"); A("v_and_b32 v57, s45, v62")
    for row in range(2): A("v_mul_f32 v%d, s44, v%d" % (Q[row], Q[row]))
    def rnd2():
        A("v_cvt_pk_bf16_f32 v58, v60, v61"); A("v_lshlrev_b32 v60, 16, v58"); A("v_and_b32 v61, s45, v58")
    rnd2()
    for row in range(2): A("v_add_f32 v%d, 0x%x, v%d" % (Q[row], f32(1e-5), Q[row]))
    rnd2()
    for row in range(2): A("v_sqrt_f32 v%d, v%d" % (Q[row], Q[row]))
    rnd2()
    for row in range(2): A("v_rcp_f32 v%d, v%d" % (Q[row], Q[row]))
    A("buffer_load_dword v247, v%d, s[%d:%d], 0 offen sc1" % (VZ, SDBG, SDBG + 3))
    for row in range(2):
        b = U + 16 * row
        for i in range(8): A("v_pk_add_f32 %s, %s, v[56:57]%s" % (p2(b + 2 * i), p2(b + 2 * i), sel(row)))
        for i in range(8): A("v_cvt_pk_bf16_f32 v%d, v%d, v%d" % (X + 8 * row + i, b + 2 * i, b + 2 * i + 1))
        for i in range(8):
            A("v_lshlrev_b32 v%d, 16, v%d" % (b + 2 * i, X + 8 * row + i)); A("v_and_b32 v%d, s45, v%d" % (b + 2 * i + 1, X + 8 * row + i))
        for i in range(8): A("v_pk_mul_f32 %s, %s, v[60:61] op_sel:[0,%d] op_sel_hi:[1,%d]" % (p2(b + 2 * i), p2(b + 2 * i), row, row))
        for i in range(8): A("v_cvt_pk_bf16_f32 v%d, v%d, v%d" % (X + 8 * row + i, b + 2 * i, b + 2 * i + 1))
        A("ds_write_b128 v%d, v[%d:%d] offset:%d" % (XW, X + 8 * row, X + 8 * row + 3, row * RS))
        A("ds_write_b128 v%d, v[%d:%d] offset:%d" % (XW, X + 8 * row + 4, X + 8 * row + 7, row * RS + 1024))
    srd(A, 48, PWS, WS_XN, SZ_XN)
    A("s_waitcnt lgkmcnt(0)")
    for row in range(2):
        for bh in range(2):
            for hh in range(2):
                r = X + 8 * row + 4 * bh + 2 * hh
                A("ds_read_b64_tr_b16 v[%d:%d], v%d offset:%d" % (r, r + 1, TR, row * RS + hh * 1024 + bh * 32))
    A("s_waitcnt vmcnt(9)")
    A("s_barrier")
    XO = 148
    for it in range(4):
        A("ds_read_b64 v[%d:%d], v%d offset:%d" % (XO + 4 * it, XO + 4 * it + 1, XR, it * 512))
        A("ds_read_b64 v[%d:%d], v%d offset:%d" % (XO + 4 * it + 2, XO + 4 * it + 3, XR, it * 512 + 32))
    for it in range(4):
        A("s_add_u32 s41, s10, 0x%x" % (it * 8 * 16384))
        A("s_waitcnt lgkmcnt(%d)" % (6 - 2 * it))
        A("buffer_store_dwordx4 v[%d:%d], v%d, s[48:51], s41 offen sc1" % (XO + 4 * it, XO + 4 * it + 3, XG))
    stamp(A, 3)
    A("v_add_u32 v7, 0x%x, v3" % (112 * 1024))
    for nm, r in names: tab_read(A, vr(r, 4), nm, "f1re", 7, LDS_T2 - 112 * 1024)
    A("s_waitcnt lgkmcnt(12)")
    for row in range(2):
        for bh in range(2):
            for part in range(2):
                d = U + 16 * row + 8 * bh + 4 * part
                A("%s %s, %s, %s, 0" % (MF, q("v", d), q("v", X + 8 * row + 4 * bh), q("v", F1r + 4 * part)))
    PP, PQ = 164, 180
    neg = " neg_lo:[1,0,0] neg_hi:[1,0,0]"
    for row in range(2):
        for bh in range(2):
            re = U + 16 * row + 8 * bh; im = re + 4; tc = TW + 8 * bh; ts = tc + 4; t = 56
            for h in (0, 2): A("v_pk_mul_f32 %s, %s, %s" % (p2(t + h), p2(re + h), p2(tc + h)))
            for h in (0, 2): A("v_pk_mul_f32 %s, %s, %s" % (p2(t + 4 + h), p2(im + h), p2(tc + h)))
            for h in (0, 2): A("v_pk_fma_f32 %s, %s, %s, %s" % (p2(t + h), p2(im + h), p2(ts + h), p2(t + h)))
            for h in (0, 2): A("v_pk_fma_f32 %s, %s, %s, %s%s" % (p2(t + 4 + h), p2(re + h), p2(ts + h), p2(t + 4 + h), neg))
            for r in range(4): A("v_cvt_pk_bf16_f32 v%d, v%d, v%d" % (re + r, t + r, t + 4 + r))
            for r in range(4):
                o = 8 * row + 4 * bh + r
                A("v_and_b32 v%d, v%d, v%d" % (X + o, re + r, MG)); A("v_and_b32 v%d, v%d, v%d" % (PP + o, re + r, MP)); A("v_and_b32 v%d, v%d, v%d" % (PQ + o, re + r, MQ))
    A("v_lshlrev_b32 v240, 1, v232"); A("v_and_b32 v240, 12, v240"); A("v_lshl_add_u32 v240, v232, 7, v240")
    A("v_and_b32 v241, 0x38, v1"); A("v_add_u32 v240, v240, v241"); A("v_lshl_add_u32 v240, v2, 12, v240")
    A("v_and_b32 v239, 1, v0"); A("v_lshlrev_b32 v239, 4, v239")
    A("s_waitcnt vmcnt(5)")
    for r in range(4):
        for mm_ in range(2):
            b = HL + 8 * r + 4 * mm_
            for d in range(3): A("ds_read_b32 v%d, v240 offset:%d" % (b + d, mm_ * 32768 + r * 1024 + 4 * d))
    A("s_waitcnt vmcnt(0)")
    A("v_readfirstlane_b32 s%d, v247" % TOK)
    A("s_barrier")
    A("s_cmp_lg_u32 s%d, 0" % TOK); A("s_cbranch_scc1 a_tok")
    A("s_mov_b32 s68, 0x20000")
    A.label("a_tokl")
    A("buffer_load_dword v247, v%d, s[%d:%d], 0 offen sc1" % (VZ, SDBG, SDBG + 3)); A("s_waitcnt vmcnt(0)")
    A("v_readfirstlane_b32 s%d, v247" % TOK)
    A("s_sub_u32 s68, s68, 1"); A("s_cmp_eq_u32 s68, 0"); A("s_cbranch_scc1 a_tok")
    A("s_cmp_eq_u32 s%d, 0" % TOK); A("s_cbranch_scc1 a_tokl")
    A.label("a_tok")
    A("s_cmp_lg_u32 s%d, 0" % WAVE); A("s_cbranch_scc1 a_nof1")
    A("s_lshl_b32 s41, s2, 7")
    set_flag(A, 41, VZ, 246)
    A.label("a_nof1")
    stamp(A, 4)
    rel_loads(1)
    srd(A, 52, PWG, 0, 1024 * 7168); srd(A, 56, PWU, -2048, 1024 * 7168 + 2048)
    A("s_cmp_lt_u32 s2, 32"); A("s_cselect_b32 s54, 0, s54"); A("s_cselect_b32 s58, 0, s58")
    A("s_waitcnt lgkmcnt(0)")
    A("s_mov_b32 s66, 0x05040100"); A("s_mov_b32 s67, 0x07060302")
    m = []
    for row in range(2):
        for bh in range(2):
            for dh in range(2):
                for part in range(2):
                    d = U + 16 * row + 8 * dh + 4 * part
                    m.append("%s %s, %s, %s, %s" % (MF, q("v", d), q("v", F2r + 16 * dh + 8 * part + 4 * bh), q("v", X + 8 * row + 4 * bh), "0" if bh == 0 else q("v", d)))
        for bh in range(2):
            for dh in range(2):
                for part in range(2):
                    d = U + 16 * row + 8 * dh + 4 * part
                    m.append("%s %s, %s, %s, %s" % (MF, q("v", d), q("v", F2S + 8 * part + 4 * bh), q("v", (PP if dh == 0 else PQ) + 8 * row + 4 * bh), q("v", d)))
    B = Asm()
    WO = 148
    for r in range(4):
        for mm_ in range(2):
            b = HL + 8 * r + 4 * mm_
            B("v_alignbit_b32 v%d, v%d, v%d, v239" % (b, b + 1, b)); B("v_alignbit_b32 v%d, v%d, v%d, v239" % (b + 1, b + 2, b + 1))
    for c in range(4):
        for r in range(4): B("v_perm_b32 v%d, v%d, v%d, s%d" % (WO + 4 * c + r, HL + 8 * r + 4 + (c >> 1), HL + 8 * r + (c >> 1), 66 + (c & 1)))
    for i in range(16): B("v_accvgpr_write_b32 a%d, v%d" % (176 + i, WO + i))
    s2 = interleave(m, dmaW(0, VWD) + dmaW(1, VWD) + dmaW(2, VWD), 0, 32)
    C = Asm(); g1_addr(C)
    s1 = interleave(m, [t for k, t in C.items], 17, 32)
    s3 = interleave(m, [t for k, t in B.items], 0, 20)
    for k, x in enumerate(m):
        A(x)
        for y in s2[k] + s1[k] + s3[k]: A(y)
    A("s_lshl_b32 s10, s36, 12"); A("s_lshl_b32 s41, s38, 8"); A("s_add_u32 s10, s10, s41"); A("s_lshl_b32 s41, s37, 7"); A("s_add_u32 s10, s10, s41")
    A("s_and_b32 s11, s2, 3"); A("s_lshl_b32 s11, s11, 20"); A("s_lshr_b32 s41, s2, 2"); A("s_lshl_b32 s41, s41, 7"); A("s_add_u32 s11, s11, s41")
    A("s_add_u32 s11, s11, 0x%x" % (WS_WT - WS_Y))
    if not ENV("NOWT"):
        w_touch_setup(A)
        for i in range(2):
            for y in w_touch(): A(y)
    A("s_cmp_lt_u32 s2, 32"); A("s_cbranch_scc1 a_nox")
    A("s_lshl_b32 s44, s42, 12")
    if ENV("AIT"): stamp(A, 8, force=True)
    poll(A, "f1", 44, 243, 246, 32)
    stamp(A, 5)
    for b in range(3): flat(A, dmaX(b))
    A("s_branch a_x")
    A.label("a_nox")
    A("s_waitcnt vmcnt(0)")
    A.label("a_x")
    if ENV("AIT") == "2": stamp(A, 7, force=True)
    srd(A, 32, PWS, WS_Y, (WS_WT - WS_Y) + SZ_WT)
    A("s_cmp_lg_u32 s%d, 0" % WAVE); A("s_cbranch_scc1 a_noab")
    for i in range(8): A("v_lshlrev_b32 v%d, 16, v%d" % (AB + i, AB + i))
    A("v_add_f32 v80, v248, v250"); A("v_sub_f32 v81, v249, v251"); A("v_add_f32 v82, v252, v254"); A("v_sub_f32 v83, v253, v255")
    A("v_add_f32 v84, v80, v82"); A("v_add_f32 v85, v81, v83"); A("v_sub_f32 v86, v80, v82"); A("v_sub_f32 v87, v81, v83")
    for i in range(4): A("v_mul_f32 v%d, 0x3e800000, v%d" % (84 + i, 84 + i))
    A("v_cvt_pk_bf16_f32 v84, v84, v85"); A("v_cvt_pk_bf16_f32 v86, v86, v87")
    A("v_and_b32 v80, 15, v236"); A("v_lshlrev_b32 v80, 4, v80"); A("v_bfe_u32 v81, v236, 4, 2"); A("v_lshl_add_u32 v80, v81, 2, v80")
    A("v_lshrrev_b32 v81, 6, v236"); A("v_lshl_add_u32 v80, v81, 8, v80")
    A("s_mov_b32 s40, 0x%x" % (WS_WT - WS_Y + 512 * 8192)); A("s_mov_b32 s41, 0x%x" % (WS_WT - WS_Y + 513 * 8192))
    A("s_mov_b64 exec, 0xff")
    A("buffer_store_dword v84, v80, s[32:35], s40 offen sc1"); A("buffer_store_dword v86, v80, s[32:35], s41 offen sc1")
    A("s_mov_b64 exec, -1")
    A.label("a_noab")
    A("s_nop 4")
    YP = 64
    for row in range(2):
        for dh in range(2):
            for r in range(4):
                re = U + 16 * row + 8 * dh + r
                A("v_cvt_pk_bf16_f32 v%d, v%d, v%d" % (YP + 8 * dh + 2 * r + row, re, re + 4))
    for dh in range(2):
        for r in range(4):
            A("ds_write_b64 v%d, %s offset:%d" % (YB if r == 0 else 196 + r, p2(YP + 8 * dh + 2 * r), dh * 8192))
    A("s_lshl_b32 s63, s2, 7"); A("s_add_u32 s63, s63, %d" % F2)
    A("v_mov_b32 v18, v%d" % YG); A("v_mov_b32 v19, v235")
    if ENV("AIT") == "2": stamp(A, 9, force=True)
    A("v_mov_b32 v28, v243"); A("v_mov_b32 v29, 0")
    A("s_waitcnt vmcnt(8) lgkmcnt(0)")
    if ENV("AIT") == "2": stamp(A, 10, force=True)
    A("s_barrier")
    for it in range(4): A("ds_read_b128 %s, v%d offset:%d" % (q("a", 160 + 4 * it), YR, it * 4096))

def late_stores():
    o = []
    for it in range(4):
        o.append(["buffer_store_dwordx4 %s, v18, s[32:35], s10 offen sc1" % q("a", 160 + 4 * it), "s_add_u32 s10, s10, 0x%x" % (32 * 32768)])
    for c in range(4):
        o.append(["buffer_store_dwordx4 %s, v19, s[32:35], s11 offen sc1" % q("a", 176 + 4 * c), "s_add_u32 s11, s11, 8192"])
    return o

from gen2b import gemm1, colfft, gemm2

def main():
    G.build_tables(); G.build_tables_inv()
    A = Asm(); G.kernel_head(A, KN)
    A("s_cmp_ge_u32 s2, 256"); A("s_cbranch_scc1 k_done")
    stamp(A, 0); stamp(A, 1, True)
    M = sys.modules[__name__]
    phase_a(A)
    A("s_cmp_lt_u32 s2, 32"); A("s_cbranch_scc1 k_fft")
    gemm1(A, M)
    A.label("k_g2")
    gemm2(A, M)
    A("s_endpgm")
    A.label("k_fft")
    colfft(A, M)
    A("s_branch k_g2")
    A.label("k_done"); A("s_endpgm")
    A.fix()
    stub = open("cdna_kernels/%s.s.ref" % NAME).read().split("\n")
    head = [l for l in stub if l.startswith(";") and "@launch" not in l and "Override" not in l and "grid=ceil" not in l]
    o = "\n".join(head[:12]) + "\n"
    if ENV("ASLIST"): o += "; @launch kernel=%s grid=(256,1,1) block=(256,1,1) lds=%d\n" % (KN, LDS_SIZE)
    else: o += "; @launch grid=(256,1,1) block=(256,1,1) lds=%d\n" % LDS_SIZE
    o += '.amdgcn_target "amdgcn-amd-amdhsa--gfx950"\n'
    o += A.text() + G.kernel_desc(KN, 512, 256, 72)
    o += '.section .rodata,"a"\n.p2align 8\n.type gf_tab,@object\ngf_tab:\n'
    for b in TAB.blocks:
        for i in range(0, 256, 8): o += ".long " + ",".join("0x%x" % x for x in b[i:i + 8]) + "\n"
    o += ".size gf_tab, %d\n" % (len(TAB.blocks) * 1024)
    path = sys.argv[1] if len(sys.argv) > 1 else "cdna_kernels/%s.s" % NAME
    open(path, "w").write(o)
    print("wrote", path, len(o), "bytes")

if __name__ == "__main__":
    main()
```

```python
from asmlib import *
import math, os
import gen as G
from gen import stamp, f32
ENV = os.environ.get
MF = "v_mfma_f32_16x16x32_bf16"
MF32 = "v_mfma_f32_32x32x16_bf16"
def q(f, r): return "%s[%d:%d]" % (f, r, r + 3)
def p2(r): return "v[%d:%d]" % (r, r + 1)

ZL = 128 * 1024
I1, I1S, I2 = 160, 192, 208
DV = [5, 6, 14, 15]
def g2_setup(A, M, DV=DV, t0=7, t1=13):
    W = M.WAVE
    A("s_and_b32 s44, s2, 1"); A("s_bfe_u32 s42, s2, 0x20001"); A("s_lshl_b32 s42, s42, 2"); A("s_bfe_u32 s43, s2, 0x20003"); A("s_add_u32 s42, s42, s43")
    A("s_lshr_b32 s43, s2, 5")
    d0, d1, d2, d3 = DV
    A("v_lshrrev_b32 v%d, 4, v1" % t0); A("v_lshl_add_u32 v%d, v2, 6, v%d" % (t1, t0)); A("v_lshlrev_b32 v%d, 11, v%d" % (t1, t1))
    A("v_lshlrev_b32 v%d, 2, v%d" % (t0, t0)); A("v_and_b32 v%d, 15, v1" % d0); A("v_xor_b32 v%d, v%d, v%d" % (t0, t0, d0))
    A("v_lshl_add_u32 v%d, v%d, 4, v%d" % (d0, t0, t1)); A("v_xor_b32 v%d, 32, v%d" % (d1, d0))
    A("v_add_u32 v%d, 0x%x, v%d" % (d2, 2 * 7168, d0)); A("v_add_u32 v%d, 0x%x, v%d" % (d3, 3 * 7168, d1)); A("v_add_u32 v%d, 0x%x, v%d" % (d1, 7168, d1))
    M.srd(A, 48, M.PWD, 0, 3584 * 2048)
    A("s_mul_i32 s45, s44, %d" % (1792 * 2048)); A("s_add_u32 s50, s45, %d" % (1792 * 2048))
    A("s_lshl_b32 s61, s43, 8"); A("s_add_u32 s61, s61, s45"); A("s_add_u32 s62, s61, %d" % (1792 * 2048))
    A("s_lshl_b32 s64, s%d, 13" % W)
def g2_dma(par, p, DV=DV):
    o = []
    if p % 4 == 0: o.append("s_add_u32 m0, s64, 0x%x" % (par * 32768 + (p >> 2) * 4096))
    o.append("buffer_load_dwordx4 v%d, s[48:51], s61 offen%s lds" % (DV[p & 3], " offset:%d" % ((p & 3) * 1024) if p & 3 else ""))
    if p == 3: o.append("s_add_u32 s61, s61, 0x8000")
    if p == 7:
        o.append("s_add_u32 s61, s61, 0x%x" % (256 * 2048 - 0x8000))
        o += ["s_cmp_ge_u32 s61, s62", "s_cselect_b32 s65, %d, 0" % ((1792 - 32) * 2048), "s_cselect_b32 s62, -1, s62", "s_sub_u32 s61, s61, s65"]
        if par == 1: o.append("s_xor_b32 s64, s64, 0x10000")
    return o
def g2_dma_of(s):
    u = (s + 2) & 7; par = u >> 2; p = 2 * (u & 3)
    return g2_dma(par, p), g2_dma(par, p + 1)
def z_fetch(A, M, t0=7, t1=13, zs=56):
    W = M.WAVE
    M.srd(A, zs, M.PWS, M.WS_Z, M.SZ_Z)
    A("v_lshrrev_b32 v%d, 4, v1" % t0); A("v_and_b32 v%d, 7, v1" % t1); A("v_xor_b32 v%d, v%d, v%d" % (t0, t0, t1)); A("v_lshlrev_b32 v%d, 4, v%d" % (t0, t0))
    A("v_lshrrev_b32 v%d, 3, v1" % t1); A("v_lshl_add_u32 v%d, v%d, 8, v%d" % (t0, t1, t0)); A("v_xor_b32 v%d, 64, v%d" % (t1, t0))
    A("s_lshr_b32 s40, s2, 1"); A("s_lshl_b32 s40, s40, 15"); A("s_and_b32 s41, s2, 1"); A("s_lshl_b32 s41, s41, 7"); A("s_add_u32 s40, s40, s41")
    A("s_lshl_b32 s41, s%d, 13" % W); A("s_add_u32 s40, s40, s41")
    A("s_lshl_b32 s41, s%d, 12" % W); A("s_add_u32 m0, s41, 0x%x" % ZL)
    for p in range(4):
        A("buffer_load_dwordx4 v%d, s[%d:%d], s40 offen%s sc1 lds" % (t0 if p % 2 == 0 else t1, zs, zs + 3, " offset:%d" % (p * 1024) if p else ""))
        A("s_add_u32 s40, s40, 1024")
def i_tabs(A, M): M.tab_dma(A, "i1_000", 96 * 1024, 112 * 1024)
def g2_early(A):
    for s in range(-10, 0):
        d0, d1 = g2_dma_of(s)
        for y in d0 + d1: A(y)
HB = [192, 196, 208, 212, 224, 228, 240, 244]

def gemm1(A, M):
    W = M.WAVE; VWD = M.VWD
    def dma(b): return (M.dmaW(b, 4) + M.dmaX(b)) if ENV('WFIRST', '0') == '1' else (M.dmaX(b) + M.dmaW(b, 4))
    def acc(it, jt):
        return ("v", 32 + (jt * 8 + it) * 4) if jt < 7 else ("a", 128 + it * 4)
    def reads(buf, st):
        base = 64 * st; hi = buf >> 1; off = (buf & 1) * 32768
        o = []; la = []; lb = []
        for it in range(8):
            mat, t = it >> 2, it & 3
            for h in range(2):
                r = base + 4 * it + 2 * h
                la.append("ds_read_b64_tr_b16 a[%d:%d], v%d offset:%d" % (r, r + 1, (12 if hi else 8) + t, off + h * 8192 + mat * 2048))
        for jt in range(8):
            r = base + 32 + 4 * jt
            lb.append("ds_read_b128 a[%d:%d], v%d offset:%d" % (r, r + 3, 6 if hi else 5, off + jt * 1024))
        for i in range(8): o += [lb[i], la[2 * i], la[2 * i + 1]]
        return o
    def mfmas(st, first=False):
        base = 64 * st; o = []
        for jt in range(8):
            for it in range(8):
                f, d = acc(it, jt); dd = q(f, d)
                o.append("%s %s, %s, %s, %s" % (MF, dd, q("a", base + 4 * it), q("a", base + 32 + 4 * jt), "0" if first else dd))
        return o
    def step(i, dmas, do_read, vm, first=False, rd0=1, mid=None, extra=None):
        m = mfmas(i & 1, first)
        s1 = interleave(m, reads((i + 1) & 3, (i + 1) & 1), rd0, 56 if rd0 > 1 else 52) if do_read else [[] for _ in m]
        dl = []
        for b_ in dmas: dl += dma(b_)
        if extra: dl += extra
        s2 = interleave(m, dl, rd0 if mid is not None else 0, 64) if dl else [[] for _ in m]
        for k, x in enumerate(m):
            A(x)
            if mid is not None and k == rd0 - 1:
                nv = sum(1 for kk in range(k + 1) for y in s2[kk] if y.startswith("buffer"))
                for y in s2[k]: A(y)
                A("s_waitcnt vmcnt(%d)" % (mid + nv)); A("s_barrier")
                continue
            for y in s2[k] + s1[k]: A(y)
        if vm is not None:
            A("s_waitcnt vmcnt(%d) lgkmcnt(0)" % vm); A("s_barrier")
    for x in reads(0, 0): A(x)
    A("s_waitcnt lgkmcnt(0)")
    stamp(A, 6)
    ls = M.late_stores()
    wt = [] if ENV("NOWT") else [M.w_touch()]
    if ENV("S0", "0") == "0":
        step(0, [3], True, 12, first=True, rd0=8, mid=4, extra=ls[:4])
        if ENV("G1IT"): stamp(A, 2)
        step(1, [0], True, 16, extra=ls[4:])
        if ENV("G1IT"): stamp(A, 3)
        step(2, [1, 2], True, 20)
        M.srd(A, 32, M.PWD, 0, 3584 * 2048)
        A("s_sub_u32 s10, s2, 32"); A("s_lshl_b32 s10, s10, 15")
        A("v_mul_u32_u24 v20, 1280, v2"); A("v_lshl_add_u32 v20, v1, 7, v20"); A("v_cmp_lt_u32 vcc, 9, v1"); A("v_cndmask_b32 v20, v20, 2.0, vcc")
        wt = wt + [["buffer_load_dword v18, v20, s[32:35], s10 offen", "s_add_u32 s10, s10, 5120"]]
        step(3, [3], True, 16 + len(wt), extra=wt)
    else:
        step(0, [3, 0], True, 16, first=True, rd0=8, mid=4)
        if ENV("G1IT"): stamp(A, 2)
        step(1, [1], True, 20, extra=ls[:4])
        if ENV("G1IT"): stamp(A, 3)
        step(2, [2], True, 24, extra=ls[4:])
        step(3, [3], True, 8)
    M.set_flag_w0(A, "f2g", 63, 29, 30)
    if ENV("G1IT"): stamp(A, 4)
    A("s_mov_b32 s45, 6")
    A.raw(".p2align 6")
    A.label("g1_loop")
    for i in range(4): step(i, [i], True, 16 + (len(wt) if i != 2 else 0), extra=wt if i == 3 else None)
    if not ENV("NOCPF"):
        A("s_cmp_lg_u32 s45, 2"); A("s_cbranch_scc1 g1_npf")
        M.code_srd(A, 4, "g1_npf"); A("s_bfe_u32 s40, s2, 0x20003"); A("s_lshl_b32 s40, s40, 13")
        A("v_lshlrev_b32 v21, 7, v1"); A("v_lshl_add_u32 v21, v2, 11, v21"); A("v_lshrrev_b32 v22, 4, v1"); A("v_lshl_add_u32 v21, v22, 24, v21")
        A("buffer_load_dword v19, v21, s[4:7], s40 offen")
        A("s_load_dwordx2 s[4:5], s[0:1], 0")
    A.label("g1_npf")
    A("s_sub_u32 s45, s45, 1"); A("s_cmp_lg_u32 s45, 0"); A("s_cbranch_scc1 g1_loop")
    if ENV("G1IT"): stamp(A, 5)
    M.srd(A, 36, M.PWS, M.WS_H, M.SZ_H)
    A("s_lshl_b32 s52, s42, 1"); A("s_add_u32 s52, s52, s47"); A("s_lshl_b32 s54, s52, 13"); A("s_mul_i32 s52, s52, 112")
    A("s_lshl_b32 s53, s43, 1"); A("s_add_u32 s53, s53, s46"); A("s_add_u32 s52, s52, s53")
    A("s_cmp_ge_u32 s53, 28"); A("s_cselect_b32 s55, 28, 0"); A("s_cselect_b32 s40, 4, 0"); A("s_add_u32 s52, s52, s55"); A("s_lshl_b32 s52, s52, 13")
    A("s_add_u32 s53, s53, s40"); A("s_lshr_b32 s55, s53, 1"); A("s_lshl_b32 s53, s53, 7"); A("s_add_u32 s54, s54, s53"); A("s_add_u32 s54, s54, %d" % M.FH)
    A("s_lshl_b32 s53, s42, 5"); A("s_add_u32 s55, s55, s53"); A("s_lshl_b32 s55, s55, 7"); A("s_add_u32 s55, s55, %d" % M.FB)
    A("s_mov_b32 s46, %d" % M.F3)
    DT = [24, 25, 26, 27]
    def grp(B):
        o = [[]]
        for k, t in B.items:
            o[-1].append(t)
            if t.startswith("buffer"): o.append([])
        return [x for x in o if x]
    nv = lambda l: sum(1 for x in l for y in x if y.startswith("buffer"))
    B = Asm(); g2_setup(B, M, DT, 22, 23); su = [[t] for k, t in B.items]
    B = Asm(); i_tabs(B, M); tb = grp(B)
    fl = [["s_bfm_b64 exec, 32, 0", "buffer_load_dword v4, v28, s[%d:%d], s46 offen sc1" % (M.SFL, M.SFL + 3), "s_mov_b64 exec, -1"]]
    e0 = su + [g2_dma(0, p, DT) for p in range(8)]
    e1 = [g2_dma(1, p, DT) for p in range(8)]
    e2 = [g2_dma(0, p, DT) for p in range(4)]
    step(0, [], True, 8 + nv(e0), extra=e0); step(1, [], True, nv(e0) + nv(e1), extra=e1); step(2, [], True, 63, extra=e2)
    if ENV("G1IT"): stamp(A, 8); stamp(A, 9)
    e3 = [["v_mov_b32 v%d, v%d" % (DV[i], DT[i])] for i in range(4)] + tb + [["v_mov_b32 v7, v28"]] + fl
    step(3, [], False, None, extra=e3)
    stamp(A, 7)
    c0 = math.sqrt(2 / math.pi)
    c1 = -2 * c0 * math.log2(math.e); c2 = c1 * 0.044715
    A("s_mov_b32 s56, 0x%x" % f32(c2)); A("s_mov_b32 s57, s56")
    A("v_mov_b32 v8, 0x%x" % f32(c1)); A("v_mov_b32 v9, v8"); A("v_mov_b32 v10, 1.0"); A("v_mov_b32 v11, 1.0"); A("v_mov_b32 v12, 0")
    n = 0
    for p in range(2):
        for jt in range(8):
            b0 = 32 + (jt % 7) * 32
            g = b0 + 8 * p; u = b0 + 16 + 8 * p
            if jt == 7:
                for i in range(8):
                    A("v_accvgpr_read_b32 v%d, a%d" % (g + i, 128 + 8 * p + i)); A("v_accvgpr_read_b32 v%d, a%d" % (u + i, 144 + 8 * p + i))
            T = 16 + 8 * (n % 2); n += 1
            H4 = range(0, 8, 2)
            for e in H4: A("v_pk_mul_f32 %s, %s, %s" % (p2(T + e), p2(g + e), p2(g + e)))
            for e in H4: A("v_pk_fma_f32 %s, %s, s[56:57], v[8:9]" % (p2(T + e), p2(T + e)))
            for e in H4: A("v_pk_mul_f32 %s, %s, %s" % (p2(T + e), p2(T + e), p2(g + e)))
            for e in range(8): A("v_exp_f32 v%d, v%d" % (T + e, T + e))
            for e in H4: A("v_pk_mul_f32 %s, %s, %s" % (p2(u + e), p2(u + e), p2(g + e)))
            for e in H4: A("v_pk_add_f32 %s, %s, v[10:11]" % (p2(T + e), p2(T + e)))
            for e in range(8): A("v_rcp_f32 v%d, v%d" % (T + e, T + e))
            A("s_add_u32 s53, s52, 0x%x" % (p * 28 * 8192 + (jt >> 2) * 4096))
            for e in H4: A("v_pk_mul_f32 %s, %s, %s" % (p2(u + e), p2(u + e), p2(T + e)))
            dst = g
            for e in range(4): A("v_cvt_pk_bf16_f32 v%d, v%d, v%d" % (dst + e, u + 2 * e, u + 2 * e + 1))
            A("buffer_store_dwordx4 %s, v3, s[36:39], s53 offen offset:%d%s" % (q("v", g), (jt & 3) * 1024, " sc1"))
            if p == 0 and jt == 5:
                A("s_waitcnt vmcnt(6)")
                A("v_cmp_ne_u32 vcc, s%d, v4" % M.TOK); A("s_nop 1"); A("s_mov_b32 vcc_hi, 0"); A("s_nop 3")
                A("s_cbranch_vccz pd_f3g")
                M.poll(A, "f3g", 46, 7, 4, 32, sleep=4)
                z_fetch(A, M, zs=32)
            if p == 1 and jt == int(ENV("FLAGA", "5")):
                A("s_waitcnt vmcnt(%d)" % (jt + 1))
                M.set_flag(A, 54, 12, 13)
    A("s_mov_b32 s58, 1")

def gemm2(A, M):
    W = M.WAVE
    if not ENV("G1IT"): stamp(A, 8)
    A("s_barrier")
    ZD, D1, DS, PK, ITW, TT = 32, 48, 80, 112, 128, 144
    A("v_lshrrev_b32 v20, 1, v1"); A("v_and_b32 v20, 7, v20"); A("v_lshlrev_b32 v21, 1, v2"); A("v_xor_b32 v20, v20, v21"); A("v_lshlrev_b32 v20, 4, v20")
    A("v_lshl_add_u32 v20, v1, 7, v20"); A("v_add_u32 v20, 0x%x, v20" % ZL); A("v_xor_b32 v21, 16, v20")
    for k in range(2):
        for dh in range(2): A("ds_read_b128 %s, v%d offset:%d" % (q("v", ZD + 8 * k + 4 * dh), 20 + k, dh * 8192))
    A("v_add_u32 v23, 0x%x, v3" % (96 * 1024))
    for dh in range(2):
        for bh in range(2):
            for part in range(2): M.tab_read(A, q("a", I1 + 16 * bh + 8 * part + 4 * dh), "i1_%d%d%d" % (bh, part, dh), "i1_000", 23, 16384)
    for bh in range(2):
        for part in range(2): M.tab_read(A, q("a", I1S + 8 * bh + 4 * part), "i1s_%d%d" % (bh, part), "i1_000", 23, 16384)
    for bh in range(2):
        for part in range(2): M.tab_read(A, q("v", ITW + 8 * bh + 4 * part), "itw%d%d" % (bh, part), "i1_000", 23, 16384)
    for ah in range(2): M.tab_read(A, q("a", I2 + 4 * ah), "i2_%d" % ah, "i1_000", 23, 16384)
    A("v_and_b32 v22, 15, v1"); A("v_lshlrev_b32 v22, 6, v22"); A("v_lshrrev_b32 v23, 4, v1"); A("v_lshl_add_u32 v22, v23, 4, v22")
    A("s_and_b32 s40, s2, 1"); A("s_lshl_b32 s40, s40, 21"); A("s_lshl_b32 s41, s%d, 19" % W); A("s_add_u32 s40, s40, s41")
    A("s_lshr_b32 s41, s2, 1"); A("s_lshl_b32 s41, s41, 11"); A("s_add_u32 s40, s40, s41"); A("s_add_u32 s41, s40, 0x40000")
    A("s_mov_b32 s69, s58")
    M.srd(A, 56, M.PWS, M.WS_S, M.SZ_S)
    A("s_mov_b64 s[46:47], 0xffff")
    A("s_waitcnt lgkmcnt(6)")
    def mm(d, a, b, c=None):
        A("%s %s, %s, %s, %s" % (MF, q("v", d), a, b, "0" if c is None else q("v", c)))
    for k in range(2):
        for dh in range(2):
            for bh in range(2):
                for part in range(2):
                    d = D1 + 16 * k + 8 * bh + 4 * part
                    mm(d, q("v", ZD + 8 * k + 4 * dh), q("a", I1 + 16 * bh + 8 * part + 4 * dh), None if dh == 0 else d)
        for bh in range(2):
            for part in range(2):
                mm(DS + 16 * k + 8 * bh + 4 * part, q("v", ZD + 8 * k + 4 * part), q("a", I1S + 8 * bh + 4 * part))
    neg = " neg_lo:[1,0,0] neg_hi:[1,0,0]"
    A("s_waitcnt lgkmcnt(0)")
    for k in range(2):
        for x in range(4):
            A("v_cndmask_b32 v%d, v%d, v%d, s[46:47]" % (D1 + 16 * k + 4 * x, D1 + 16 * k + 4 * x, DS + 16 * k + 4 * x))
        for bh in range(2):
            re = D1 + 16 * k + 8 * bh; im = re + 4; tc = ITW + 8 * bh; ts = tc + 4; t = TT + 8 * bh
            for h in (0, 2): A("v_pk_mul_f32 %s, %s, %s" % (p2(t + h), p2(re + h), p2(tc + h)))
            for h in (0, 2): A("v_pk_mul_f32 %s, %s, %s" % (p2(t + 4 + h), p2(im + h), p2(tc + h)))
            for h in (0, 2): A("v_pk_fma_f32 %s, %s, %s, %s%s" % (p2(t + h), p2(im + h), p2(ts + h), p2(t + h), neg))
            for h in (0, 2): A("v_pk_fma_f32 %s, %s, %s, %s" % (p2(t + 4 + h), p2(re + h), p2(ts + h), p2(t + 4 + h)))
            for r in range(4): A("v_cvt_pk_bf16_f32 v%d, v%d, v%d" % (PK + 8 * k + 4 * bh + r, t + r, t + 4 + r))
    for k in range(2):
        for ah in range(2):
            for bh in range(2): mm(D1 + 16 * k + 8 * ah + 4 * bh, q("v", PK + 8 * k + 4 * bh), q("a", I2 + 4 * ah))
    ACC = 32; AF, HR = 0, 128
    def hreg(s, kk):
        i = 8 * (s & 7) + 4 * kk
        return 128 + i if i < 32 else 224 + i - 32
    A("v_and_b32 v24, 15, v1"); A("v_lshlrev_b32 v4, 4, v24"); A("v_lshl_add_u32 v4, v2, 11, v4")
    A("v_bfe_u32 v25, v1, 4, 1"); A("v_lshl_add_u32 v4, v25, 10, v4"); A("v_lshrrev_b32 v26, 5, v1"); A("v_lshl_add_u32 v4, v26, 8, v4")
    A("v_bfe_u32 v27, v1, 2, 2")
    A("v_lshl_add_u32 v28, v26, 2, v27"); A("v_lshlrev_b32 v28, 8, v28"); A("v_and_b32 v29, 3, v1"); A("v_lshl_add_u32 v28, v29, 3, v28")
    A("v_lshl_or_b32 v29, v27, 1, v26"); A("v_xor_b32 v29, v29, v25"); A("s_lshl_b32 s45, s44, 2"); A("v_xor_b32 v29, s45, v29")
    for t in range(4):
        A("v_xor_b32 v30, %d, v29" % (2 * t)); A("v_lshl_add_u32 v%d, v30, 5, v28" % (8 + t))
    A("v_mov_b32 v12, 0"); A("v_lshlrev_b32 v13, 7, v1")
    SO = 160
    for k in range(2):
        for x in range(8): A("v_cvt_pk_bf16_f32 v%d, v%d, v%d" % (SO + 8 * k + x, D1 + 16 * k + 2 * x, D1 + 16 * k + 2 * x + 1))
    A("s_lshl_b32 s60, s42, 1"); A("s_add_u32 s60, s60, s44"); A("s_lshl_b32 s46, s60, 12"); A("s_mul_i32 s60, s60, %d" % (56 * 8192))
    A("s_add_u32 s46, s46, %d" % M.FH)
    A("s_and_b32 s47, s42, -2"); A("s_add_u32 s47, s47, s44"); A("s_lshl_b32 s47, s47, 11"); A("s_add_u32 s47, s47, %d" % M.FB)
    M.poll(A, "fa", 46, 13, 31, 28, sleep=4)
    if not ENV("G1IT"): stamp(A, 9)
    M.srd(A, 32, M.PWS, M.WS_H, M.SZ_H); A("s_add_u32 s34, s60, %d" % (56 * 8192))
    def hload(s, kk):
        o = ["buffer_load_dwordx4 %s, v4, s[32:35], s60 offen offset:%d%s" % (q("a", hreg(s, kk)), kk * 512, M.HLD)]
        if kk: o.append("s_add_u32 s60, s60, 0x2000")
        return o
    def reads(s):
        o = []
        for kk in range(2):
            for t in range(4):
                for h in range(2):
                    r = AF + 32 * (s & 3) + 16 * kk + 4 * t + 2 * h
                    o.append("ds_read_b64_tr_b16 a[%d:%d], v%d offset:%d" % (r, r + 1, 8 + t, (s & 7) * 8192 + h * 4096 + kk * 2048))
        return o
    for s in range(8):
        for y in hload(s, 0) + hload(s, 1): A(y)
    for x in reads(0) + reads(1): A(x)
    A("s_mov_b32 s6, s40"); A("s_mov_b32 s7, s41")
    A("s_lshl_b32 s52, s2, 9"); A("s_lshl_b32 s53, s%d, 7" % W); A("s_add_u32 s52, s52, s53"); A("s_xor_b32 s53, s52, 0x200")
    A("s_add_u32 s52, s52, %d" % M.FX); A("s_add_u32 s53, s53, %d" % M.FX)
    A("s_lshl_b32 s54, s2, 7"); A("s_add_u32 s54, s54, %d" % M.FS)
    A("s_lshl_b32 s46, s42, 11"); A("s_lshl_b32 s45, s%d, 9" % W); A("s_add_u32 s46, s46, s45"); A("s_add_u32 s46, s46, %d" % M.FS)
    M.srd(A, 12, M.PX, 0, 4 << 20)
    A("v_lshrrev_b32 v20, 3, v1"); A("v_lshlrev_b32 v20, 18, v20"); A("v_lshl_add_u32 v20, v2, 12, v20")
    A("v_and_b32 v21, 7, v1"); A("v_lshl_add_u32 v20, v21, 4, v20")
    A("s_lshl_b32 s40, s42, 14"); A("s_lshl_b32 s41, s43, 8"); A("s_add_u32 s40, s40, s41"); A("s_lshl_b32 s41, s44, 7"); A("s_add_u32 s40, s40, s41"); A("s_add_u32 s41, s40, 0x200000")
    XR, SR = 96, 112
    for i in range(4):
        A("buffer_load_dwordx4 %s, v20, s[12:15], s%d offen offset:%d" % (q("v", XR + 4 * i), 40 + (i & 1), (i >> 1) * 2048))
    for i in range(64): A("v_mov_b32 v%d, 0" % (ACC + i))
    A("v_and_b32 v21, 31, v1"); A("v_mul_u32_u24 v16, 144, v21"); A("v_lshrrev_b32 v21, 5, v1"); A("v_lshl_add_u32 v16, v21, 3, v16"); A("v_lshl_add_u32 v16, v2, 13, v16")
    A("v_lshrrev_b32 v21, 3, v1"); A("v_mul_u32_u24 v17, 144, v21"); A("v_and_b32 v21, 7, v1"); A("v_lshl_add_u32 v17, v21, 4, v17"); A("v_lshl_add_u32 v17, v2, 13, v17")
    FL = "s[%d:%d]" % (M.SFL, M.SFL + 3)
    def quick(tag, vd, nl, soff):
        A("v_cmp_ne_u32 vcc, s%d, v%d" % (M.TOK, vd)); A("s_nop 1"); A("s_bfm_b64 s[66:67], %d, 0" % nl); A("s_and_b64 vcc, vcc, s[66:67]"); A("s_nop 3")
        A("s_cbranch_vccz pd_%s" % tag)
        M.poll(A, tag, soff, 13, vd, nl)
    NK = 56; R = int(ENV("G2R", "8"))
    PR, UX, US, PB = 128, 160, 192, 64
    vm = []
    for s_ in range(8): vm += [("H", s_), ("H", s_)]
    vm += [("x", 0)] * 4
    lg = [0] * 16 + [1] * 16
    def V(text, tag): A(text); vm.append(tag)
    def vwait(tags):
        last = max([i for i, t in enumerate(vm) if t in tags] + [-1])
        return min(63, len(vm) - 1 - last)
    def lwait(u):
        last = max(i for i, t in enumerate(lg) if t == u)
        return min(15, len(lg) - 1 - last)
    units = [[(s_, (0, 1, 2, 3))] for s_ in range(NK - R)]
    for tl in ((2, 3), (0, 1)):
        for s_ in range(NK - R, NK, 2): units.append([(s_, tl), (s_ + 1, tl)])
    def frs(u):
        o = []
        for s_, tl in units[u]:
            for kk in range(2):
                for t in tl: o.append((s_, kk, t, AF + 32 * (u & 3) + 4 * len(o)))
        return o
    def ureads(u):
        o = []
        for s_, kk, t, r in frs(u):
            for h in range(2):
                o.append("ds_read_b64_tr_b16 a[%d:%d], v%d offset:%d" % (r + 2 * h, r + 2 * h + 1, (8 if (s_ >> 3) & 1 == 0 else 28) + t, (s_ & 7) * 8192 + h * 4096 + kk * 2048))
        return o
    for t in range(4): A("v_add_u32 v%d, 0x10000, v%d" % (28 + t, 8 + t))
    cert = 0
    for u in range(len(units)):
        ks = [x[0] for x in units[u]]
        need = [("H", k) for k in ks]
        nxt = max(x[0] for x in units[u + 2]) >> 2 if u + 2 < len(units) else 0
        bar = nxt > cert
        if bar: need.append(("W", nxt))
        if u == 22: need += [("S", 0)]
        if u == 20: need += [("fb", 0)]
        if u == 40: need += [("fs", 0)]
        A("s_waitcnt vmcnt(%d) lgkmcnt(%d)" % (vwait(need), lwait(u)))
        if bar: A("s_barrier"); cert = nxt
        if u in (2, 22):
            assert bar
            A("s_cmp_lg_u32 s%d, 0" % W); A("s_cbranch_scc1 g2_np%d" % u)
            if u == 2:
                A("s_cmp_eq_u32 s69, 0"); A("s_cbranch_scc1 g2_np%d" % u)
                M.set_flag(A, 55, 12, 25)
            else: M.set_flag(A, 54, 12, 25)
            A.label("g2_np%d" % u)
        if u == 20: quick("fb", 18, 14, 47)
        if u == 40: quick("fs", 19, 4, 46)
        if ENV("G2IT") and u % 8 == 0 and u < 48: stamp(A, 2 + u // 8)
        rd = ureads(u + 2) if u + 2 < len(units) else []
        fr = frs(u)
        ex = [[] for _ in range(8)]
        if u < NK - R:
            iv = (u + 10) >> 2
            if iv < 14:
                d0, d1 = g2_dma_of(u); ex[1].append((d0, ("W", iv))); ex[5].append((d1, ("W", iv)))
            if u + 8 < NK:
                ex[3].append((hload(u, 0), ("H", u + 8))); ex[7].append((hload(u, 1), ("H", u + 8)))
        if u in (4, 7, 10, 13):
            i = (u - 4) // 3
            ex[2].append((["buffer_store_dwordx4 %s, v22, s[56:59], s%d offen offset:%d sc1" % (q("v", SO + 4 * i), 6 + (i >> 1), (i & 1) * 1024)], ("S", 0)))
        if u == int(ENV("FBLD", "12")): ex[2].append((["s_bfm_b64 exec, 14, 0", "buffer_load_dword v18, v13, %s, s47 offen sc1" % FL, "s_mov_b64 exec, -1"], ("fb", 0)))
        if u == 32: ex[2].append((["s_bfm_b64 exec, 4, 0", "buffer_load_dword v19, v13, %s, s46 offen sc1" % FL, "s_mov_b64 exec, -1"], ("fs", 0)))
        if 40 <= u < 44:
            i = u - 40
            ex[2].append((["buffer_load_dwordx4 %s, v20, s[56:59], s%d offen offset:%d sc1" % (q("v", SR + 4 * i), 40 + (i & 1), (i >> 1) * 2048)], ("s", 0)))
        snd = NK - R + R // 2
        if R and u == snd:
            B = Asm(); M.srd(B, 36, M.POUT, 0, 4 << 20); B("s_xor_b32 s46, s40, 0x80"); B("s_xor_b32 s47, s41, 0x80")
            ex[0].append(([t for k, t in B.items], None))
            for i in range(4):
                cv = ["v_cvt_pk_bf16_f32 v%d, v%d, v%d" % (PR + 4 * i + e, ACC + 32 + 8 * i + 2 * e, ACC + 33 + 8 * i + 2 * e) for e in range(4)]
                ex[2 + i].append((cv + ["buffer_store_dwordx4 %s, v20, s[36:39], s%d offen offset:%d sc1" % (q("v", PR + 4 * i), 46 + (i & 1), (i >> 1) * 2048)], ("X", 0)))
        for i, (s_, kk, t, r) in enumerate(fr):
            d = ACC + 16 * t
            A("%s v[%d:%d], %s, %s, v[%d:%d]" % (MF32, d, d + 15, q("a", r), q("a", hreg(s_, kk)), d, d + 15))
            for x in rd[2 * i:2 * i + 2]: A(x); lg.append(u + 2)
            for ins, tag in ex[i]:
                for y in ins:
                    A(y)
                    if y.startswith("buffer"): vm.append(tag)
    stamp(A, 10)
    nl2e = -math.log2(math.e)
    A("s_mov_b32 s56, 0x%x" % f32(nl2e)); A("s_mov_b32 s57, s56"); A("s_mov_b32 s59, 0xffff0000")
    A("v_mov_b32 v26, 1.0"); A("v_mov_b32 v27, 1.0"); A("v_mov_b32 v23, s%d" % M.TOK)
    A("s_waitcnt vmcnt(0)")
    M.set_flag(A, 52, 12, 23)
    A("s_barrier")
    for i in range(16):
        A("v_lshlrev_b32 v%d, 16, v%d" % (UX + 2 * i, XR + i)); A("v_and_b32 v%d, s59, v%d" % (UX + 2 * i + 1, XR + i))
        A("v_lshlrev_b32 v%d, 16, v%d" % (US + 2 * i, SR + i)); A("v_and_b32 v%d, s59, v%d" % (US + 2 * i + 1, SR + i))
    M.poll(A, "fx", 53, 12, 24, 1, sleep=1)
    for i in range(4):
        A("buffer_load_dwordx4 %s, v20, s[36:39], s%d offen offset:%d sc1" % (q("v", PB + 4 * i), 40 + (i & 1), (i >> 1) * 2048))
    H4 = range(0, 8, 2)
    for t in range(4):
        b = 8 * t; T = 224 + 8 * (t & 1)
        A("s_waitcnt vmcnt(%d)" % (3 - t))
        for e in range(4):
            A("v_lshlrev_b32 v%d, 16, v%d" % (T + 2 * e, PB + 4 * t + e)); A("v_and_b32 v%d, s59, v%d" % (T + 2 * e + 1, PB + 4 * t + e))
        for e in H4: A("v_pk_add_f32 %s, %s, %s" % (p2(ACC + b + e), p2(ACC + b + e), p2(T + e)))
        for e in H4: A("v_pk_mul_f32 %s, %s, s[56:57]" % (p2(T + e), p2(ACC + b + e)))
        for e in range(8): A("v_exp_f32 v%d, v%d" % (T + e, T + e))
        A("s_nop 0")
        for e in H4: A("v_pk_add_f32 %s, %s, v[26:27]" % (p2(T + e), p2(T + e)))
        for e in range(8): A("v_rcp_f32 v%d, v%d" % (T + e, T + e))
        A("s_nop 0")
        for e in H4: A("v_pk_mul_f32 %s, %s, %s" % (p2(ACC + b + e), p2(ACC + b + e), p2(T + e)))
        for e in range(4): A("v_cvt_pk_bf16_f32 v%d, v%d, v%d" % (PR + b + e, ACC + b + 2 * e, ACC + b + 2 * e + 1))
        for u in range(2):
            A("ds_write_b64 v16, %s offset:%d" % (p2(PR + b + 2 * u), (t >> 1) * 64 + (2 * (t & 1) + u) * 16))
    A("s_waitcnt lgkmcnt(0)")
    for i in range(4): A("ds_read_b128 %s, v17 offset:%d" % (q("v", ACC + 4 * i), i * 8 * 144))
    for i in range(4):
        A("s_waitcnt lgkmcnt(%d)" % (3 - i))
        T = 224 + 8 * (i & 1)
        for e in range(4):
            A("v_lshlrev_b32 v%d, 16, v%d" % (T + 2 * e, ACC + 4 * i + e)); A("v_and_b32 v%d, s59, v%d" % (T + 2 * e + 1, ACC + 4 * i + e))
        for e in H4: A("v_pk_fma_f32 %s, %s, %s, %s" % (p2(UX + 8 * i + e), p2(US + 8 * i + e), p2(T + e), p2(UX + 8 * i + e)))
        for e in range(4): A("v_cvt_pk_bf16_f32 v%d, v%d, v%d" % (XR + 4 * i + e, UX + 8 * i + 2 * e, UX + 8 * i + 2 * e + 1))
        A("buffer_store_dwordx4 %s, v20, s[36:39], s%d offen offset:%d" % (q("v", XR + 4 * i), 40 + (i & 1), (i >> 1) * 2048))
    if G.STAMP:
        A("s_waitcnt vmcnt(0)")
        stamp(A, 11); A("s_memrealtime s[100:101]"); A("s_waitcnt lgkmcnt(0)")
        G.stamp_out(A, 0, 12, M.PWS, "all")
        A("v_mov_b32 v2, s100"); A("buffer_store_dword v2, v1, s[96:99], 0 offen offset:48")

def colfft(A, M):
    W_ = M.WAVE
    DAT, FA, FE = 128, 160, 176
    W, T1, T2, D, P, TMP = 8, 40, 48, 104, 168, 200
    A("s_waitcnt lgkmcnt(0)")
    M.flat(A, M.late_stores())
    M.srd(A, 36, M.PWS, M.WS_WT, M.SZ_WT)
    A("s_waitcnt vmcnt(0)")
    A("v_mov_b32 v240, 0"); A("v_lshlrev_b32 v242, 7, v1")
    A("s_barrier")
    M.set_flag_w0(A, "f2f", 63, 240, 241)
    NP = int(ENV("P1", "0"))
    if NP:
        A("s_and_b32 s41, s%d, 1" % W_); A("s_cmp_eq_u32 s41, 0")
        A("s_cselect_b32 s52, s%d, s%d" % (M.PWG, M.PWU)); A("s_cselect_b32 s53, s%d, s%d" % (M.PWG + 1, M.PWU + 1))
        A("s_and_b32 s53, s53, 0xffff"); A("s_mov_b32 s54, %d" % (1024 * 7168)); A("s_mov_b32 s55, 0x20000")
        A("s_lshl_b32 s41, s2, 1"); A("s_lshr_b32 s42, s%d, 1" % W_); A("s_add_u32 s41, s41, s42"); A("s_lshl_b32 s41, s41, 13"); A("s_add_u32 s41, s41, %d" % (int(ENV("P1ROW", "128")) * 7168))
        for n in range(NP):
            A("buffer_load_dword v243, v242, s[52:55], s41 offen"); A("s_add_u32 s41, s41, 0x80000")
        if ENV("P1ST"): stamp(A, 3); A("s_waitcnt vmcnt(0)"); stamp(A, 4)
    names = []
    for inv in range(2):
        for part in range(2): names.append(("fa_%d%d" % (inv, part), ar(FA + 8 * inv + 4 * part, 4)))
    for t in range(2): names.append(("t1_%d" % t, vr(T1 + 4 * t, 4)))
    for e in range(1, 8):
        for t in range(2): names.append(("t2_%d%d" % (e, t), vr(T2 + 8 * (e - 1) + 4 * t, 4)))
    for ih in range(2): names.append(("fe32_%d" % ih, ar(FE + 4 * ih, 4)))
    for nm, r in names: G.tab_load(A, r, nm, 3, M.STAB, 42)
    A("v_and_b32 v4, 15, v1"); A("v_lshrrev_b32 v5, 4, v1")
    A("v_lshlrev_b32 v6, 6, v4"); A("v_lshl_add_u32 v6, v5, 4, v6")
    for k in range(4):
        A("v_add_u32 v7, %d, v5" % (4 * k)); A("v_xor_b32 v7, v7, v4"); A("v_lshlrev_b32 v7, 4, v7"); A("v_lshl_add_u32 v%d, v5, 8, v7" % (232 + k))
    A("v_lshrrev_b32 v7, 5, v1"); A("v_lshlrev_b32 v7, 3, v7"); A("v_bfe_u32 v236, v1, 4, 1"); A("v_or_b32 v7, v7, v236"); A("v_xor_b32 v7, v7, v4")
    A("v_lshlrev_b32 v7, 4, v7"); A("v_lshl_add_u32 v236, v4, 8, v7"); A("v_lshl_add_u32 v236, v2, 15, v236")
    A("v_add_u32 v4, 0x1000, v3")
    A("s_lshl_b32 s51, s2, 2"); A("s_add_u32 s51, s51, s%d" % W_)
    A("s_and_b32 s41, s51, 15"); A("s_bfe_u32 s42, s51, 0x20004"); A("s_lshl_b32 s42, s42, 7")
    A("s_add_u32 s40, s41, s42")
    A("s_sub_u32 s43, 32, s41"); A("s_cmp_eq_u32 s41, 0"); A("s_cselect_b32 s43, 16, s43")
    A("s_add_u32 s43, s43, 480"); A("s_sub_u32 s43, s43, s42")
    A("s_cmp_ge_u32 s51, 64"); A("s_cselect_b32 s40, s43, s40"); A("s_cselect_b32 s50, -1, 1"); A("s_lshl_b32 s50, s50, 18")
    A("s_lshl_b32 s40, s40, 13")
    M.srd(A, 52, M.PWS, M.WS_Y, M.SZ_Y); M.srd(A, 56, M.PWS, M.WS_Z, M.SZ_Z)
    A("s_lshl_b32 s44, s%d, 13" % W_); A("s_add_u32 s44, s44, %d" % M.F2)
    M.poll(A, "f2", 44, 242, 244, 64, sleep=8)
    A("s_barrier")
    stamp(A, 5)
    A("s_lshl_b32 s41, s51, 15"); A("s_lshl_b32 s42, s%d, 15" % W_)
    for e in range(8):
        A("s_add_u32 m0, s42, %d" % (e * 4096))
        for k in range(4): A("buffer_load_dwordx4 v%d, s[52:55], s41 offen offset:%d sc1 lds" % (232 + k, k * 1024))
        A("s_add_u32 s41, s41, 4096")
    def wload(dst, f, so):
        for e in range(8):
            A("buffer_load_dwordx4 %s, v%d, s[36:39], s%d offen offset:%d sc1" % (q(f, dst + 4 * e), 3 if e < 4 else 4, so, (e & 3) * 1024))
    A("s_cmp_eq_u32 s51, 0"); A("s_cselect_b32 s43, 0x%x, s40" % (512 * 8192))
    wload(W, "v", 43)
    A("s_mov_b32 s48, 0"); A("s_mov_b32 s49, 0xffff0000")
    def yread():
        for e in range(8): A("ds_read_b128 %s, v237 offset:%d" % (q("a", DAT + 4 * e), e * 4096))
    A("v_mov_b32 v237, v236")
    A("s_waitcnt vmcnt(8)")
    yread()
    stamp(A, 6)
    A.label("cf_loop")
    A("s_waitcnt lgkmcnt(0)")
    def mm(d, a, b, c=None):
        A("%s %s, %s, %s, %s" % (MF, q("v", d), a, b, "0" if c is None else q("v", c)))
    tctr = [0]
    def tw_quads(dsts, re, tc, conj, TMP=TMP):
        t = TMP + 8 * (tctr[0] % 4); tctr[0] += 1
        im = re + 4; ts = tc + 4
        neg = " neg_lo:[1,0,0] neg_hi:[1,0,0]"
        for h in (0, 2): A("v_pk_mul_f32 %s, %s, %s" % (p2(t + h), p2(re + h), p2(tc + h)))
        for h in (0, 2): A("v_pk_mul_f32 %s, %s, %s" % (p2(t + 4 + h), p2(im + h), p2(tc + h)))
        for h in (0, 2): A("v_pk_fma_f32 %s, %s, %s, %s%s" % (p2(t + h), p2(im + h), p2(ts + h), p2(t + h), neg if conj else ""))
        for h in (0, 2): A("v_pk_fma_f32 %s, %s, %s, %s%s" % (p2(t + 4 + h), p2(re + h), p2(ts + h), p2(t + 4 + h), "" if conj else neg))
        for r in range(4): A("v_cvt_pk_bf16_f32 v%d, v%d, v%d" % (dsts[r], t + r, t + 4 + r))
    def cm_pairs(items):
        ts = []
        for _ in items:
            ts.append(TMP + 2 * (tctr[0] % 8)); tctr[0] += 1
        for (dst, z, c, s_), t in zip(items, ts):
            A("v_pk_mul_f32 %s, %s, %s op_sel:[0,%d] op_sel_hi:[1,%d]" % (p2(t), p2(z), p2(c & ~1), c & 1, c & 1))
        for (dst, z, c, s_), t in zip(items, ts):
            A("v_pk_fma_f32 %s, %s, %s, %s op_sel:[1,%d,0] op_sel_hi:[0,%d,1] neg_lo:[1,0,0]" % (p2(t), p2(z), p2(s_ & ~1), p2(t), s_ & 1, s_ & 1))
        for (dst, z, c, s_), t in zip(items, ts):
            A("v_cvt_pk_bf16_f32 v%d, v%d, v%d" % (dst, t, t + 1))
    for e in range(8):
        mm(D + 8 * e, q("a", DAT + 4 * e), q("a", FA)); mm(D + 8 * e + 4, q("a", DAT + 4 * e), q("a", FA + 4))
    A("s_add_u32 s40, s40, s50")
    A("s_add_u32 s43, s48, 1"); A("s_and_b32 s43, s43, 3"); A("s_lshl_b32 s43, s43, 5"); A("v_xor_b32 v237, s43, v236")
    yread()
    for e in range(8): tw_quads([P + 4 * e + r for r in range(4)], D + 8 * e, T1, False)
    for e in range(8):
        mm(D + 8 * e, q("a", FA), q("v", P + 4 * e)); mm(D + 8 * e + 4, q("a", FA + 4), q("v", P + 4 * e))
    for e in range(8):
        if e == 0:
            for r in range(4): A("v_cvt_pk_bf16_f32 v%d, v%d, v%d" % (P + 8 * r, D + r, D + 4 + r))
        else: tw_quads([P + 8 * r + e for r in range(4)], D + 8 * e, T2 + 8 * (e - 1), False)
    def stageE():
        for ih in range(2):
            for r in range(4):
                d = "v[%d:%d]" % (D + 16 * r, D + 16 * r + 15)
                A("%s %s, %s, %s, %s" % (MF32, d, q("a", FE + 4 * ih), q("v", P + 8 * r + 4 * ih), "0" if ih == 0 else d))
    stageE()
    A("s_waitcnt vmcnt(0)")
    U = TMP + 16
    A("s_or_b32 s43, s51, s48"); A("s_cmp_eq_u32 s43, 0"); A("s_cbranch_scc1 cf_pack")
    for r in range(4):
        for eh in range(2):
            items = []
            for k in range(4):
                ep = 4 * eh + k; w = W + 4 * ep + r; u = U + 8 * (eh & 1) + 2 * k
                A("v_lshlrev_b32 v%d, 16, v%d" % (u, w)); A("v_and_b32 v%d, s49, v%d" % (u + 1, w))
                items.append((P + 8 * r + ep, D + 16 * r + 2 * ep, u, u + 1))
            cm_pairs(items)
    A.label("cf_mul_done")
    wload(W, "v", 40)
    stageE()
    for r in range(4):
        A("v_cvt_pk_bf16_f32 v%d, v%d, v%d" % (P + r, D + 16 * r, D + 16 * r + 1))
        for xs in ((1, 2, 3, 4), (5, 6, 7)):
            cm_pairs([(P + 4 * (8 - x) + r, D + 16 * r + 2 * x, T2 + 8 * (7 - x) + r, T2 + 8 * (7 - x) + 4 + r) for x in xs])
    for e in range(8):
        mm(D + 8 * e, q("v", P + 4 * e), q("a", FA + 8)); mm(D + 8 * e + 4, q("v", P + 4 * e), q("a", FA + 12))
    for e in range(8): tw_quads([P + 4 * e + r for r in range(4)], D + 8 * e, T1, True)
    for e in range(8):
        mm(D + 8 * e, q("v", P + 4 * e), q("a", FA + 8)); mm(D + 8 * e + 4, q("v", P + 4 * e), q("a", FA + 12))
    for e in range(8):
        for r in range(4): A("v_cvt_pk_bf16_f32 v%d, v%d, v%d" % (P + 4 * e + r, D + 8 * e + r, D + 8 * e + 4 + r))
    for cc in range(4):
        A("s_cmp_eq_u32 s48, %d" % cc); A("s_cbranch_scc0 cf_o%d" % cc)
        for qq in range(32): A("v_accvgpr_write_b32 a%d, v%d" % (4 * qq + cc, P + qq))
        A.label("cf_o%d" % cc)
    A("s_add_u32 s48, s48, 1"); A("s_cmp_lt_u32 s48, 4"); A("s_cbranch_scc1 cf_loop")
    stamp(A, 7)
    A("v_and_b32 v238, 15, v1"); A("v_lshlrev_b32 v238, 4, v238"); A("v_lshl_add_u32 v238, v5, 20, v238")
    A("s_lshl_b32 s41, s51, 8")
    for r in range(4):
        for e in range(8):
            qq = 4 * e + r
            A("s_add_u32 s42, s41, 0x%x" % ((8 * r + e) * 32768))
            A("buffer_store_dwordx4 %s, v238, s[56:59], s42 offen sc1" % q("a", 4 * qq))
    A("s_waitcnt vmcnt(0) lgkmcnt(0)")
    A("s_lshl_b32 s44, s2, 7"); A("s_add_u32 s44, s44, %d" % M.F3)
    A("s_barrier")
    M.set_flag_w0(A, "f3", 44, 240, 241)
    A("s_mov_b32 s44, %d" % M.F3)
    M.poll(A, "f3", 44, 242, 244, 32, sleep=8)
    z_fetch(A, M); i_tabs(A, M); g2_setup(A, M); g2_early(A)
    A("s_mov_b32 s58, 0"); A("s_mov_b32 s55, 0"); A("s_mov_b32 s52, 0"); A("s_mov_b32 s53, 0")
    A("s_waitcnt vmcnt(0)")
    A("s_branch cf_end")
    A.label("cf_pack")
    A("s_nop 11")
    SC = M.LDS_SCR
    A("v_and_b32 v238, 15, v1"); A("v_lshl_add_u32 v238, v5, 6, v238")
    A("v_sub_u32 v239, %d, v238" % (2048 - 48 - 1792)); A("v_lshlrev_b32 v238, 3, v238"); A("v_lshlrev_b32 v239, 3, v239")
    A("v_add_u32 v238, 0x%x, v238" % SC); A("v_add_u32 v239, 0x%x, v239" % SC)
    for r in range(4):
        for ep in range(8): A("ds_write_b64 v238, %s offset:%d" % (p2(D + 16 * r + 2 * ep), 8 * (16 * r + 256 * ep)))
    A("s_mov_b64 exec, 1"); A("ds_write_b64 v238, %s offset:%d" % (p2(D), 8 * 2048)); A("s_mov_b64 exec, -1")
    A("s_mov_b32 s43, 0x%x" % (513 * 8192))
    wload(208, "a", 43)
    for r in range(4):
        for ep in range(8):
            w = W + 4 * ep + r; z = D + 16 * r + 2 * ep; u = U + 2 * (ep & 3); t = TMP + 2 * (ep & 3)
            A("v_lshlrev_b32 v%d, 16, v%d" % (u, w)); A("v_and_b32 v%d, s49, v%d" % (u + 1, w))
            A("v_pk_mul_f32 %s, %s, %s op_sel:[0,0] op_sel_hi:[1,0]" % (p2(t), p2(z), p2(u)))
            A("v_pk_fma_f32 %s, %s, %s, %s op_sel:[1,1,0] op_sel_hi:[0,1,1] neg_lo:[1,0,0]" % (p2(z), p2(z), p2(u), p2(t)))
    A("s_waitcnt vmcnt(0) lgkmcnt(0)")
    for rh in range(2):
        for r in (2 * rh, 2 * rh + 1):
            for ep in range(8): A("ds_read_b64 %s, v239 offset:%d" % (p2(W + 16 * (r & 1) + 2 * ep), 8 * (16 * (3 - r) + 256 * (7 - ep))))
        A("s_waitcnt lgkmcnt(0)")
        for r in (2 * rh, 2 * rh + 1):
            for ep in range(8):
                m = W + 16 * (r & 1) + 2 * ep; z = D + 16 * r + 2 * ep; u = U + 2 * (ep & 3)
                A("v_accvgpr_read_b32 v%d, a%d" % (u + 1, 208 + 4 * ep + r))
                A("v_lshlrev_b32 v%d, 16, v%d" % (u, u + 1)); A("v_and_b32 v%d, s49, v%d" % (u + 1, u + 1))
                A("v_pk_fma_f32 %s, %s, %s, %s op_sel:[0,0,0] op_sel_hi:[1,0,1] neg_hi:[1,0,0]" % (p2(z), p2(m), p2(u), p2(z)))
                A("v_pk_fma_f32 %s, %s, %s, %s op_sel:[1,1,0] op_sel_hi:[0,1,1]" % (p2(z), p2(m), p2(u), p2(z)))
                A("v_cvt_pk_bf16_f32 v%d, v%d, v%d" % (P + 8 * r + ep, z, z + 1))
    A("s_nop 1")
    A("s_branch cf_mul_done")
    A.label("cf_end")
```

```python
from asmlib import *
import math, os
import gen as G
from gen import stamp, f32
ENV = os.environ.get
MF = "v_mfma_f32_16x16x32_bf16"
MF32 = "v_mfma_f32_32x32x16_bf16"
def q(f, r): return "%s[%d:%d]" % (f, r, r + 3)
def p2(r): return "v[%d:%d]" % (r, r + 1)

ZL = 128 * 1024
I1, I1S, I2 = 160, 192, 208
DV = [5, 6, 14, 15]
def g2_setup(A, M, DV=DV, t0=7, t1=13):
    W = M.WAVE
    A("s_bfe_u32 s44, s2, 0x20001"); A("s_and_b32 s42, s2, 1"); A("s_lshl_b32 s42, s42, 2"); A("s_bfe_u32 s43, s2, 0x20003"); A("s_add_u32 s42, s42, s43")
    A("s_lshr_b32 s43, s2, 5")
    d0, d1, d2, d3 = DV
    A("v_lshrrev_b32 v%d, 4, v1" % t0); A("v_lshlrev_b32 v%d, 11, v%d" % (t1, t0))
    A("v_lshlrev_b32 v%d, 1, v%d" % (t0, t0)); A("v_and_b32 v%d, 15, v1" % d0); A("v_xor_b32 v%d, v%d, v%d" % (t0, t0, d0))
    A("v_lshl_add_u32 v%d, v%d, 4, v%d" % (d0, t0, t1)); A("v_xor_b32 v%d, 0x80, v%d" % (d1, d0))
    A("v_add_u32 v%d, 0x%x, v%d" % (d2, 2 * 7168, d0)); A("v_add_u32 v%d, 0x%x, v%d" % (d3, 3 * 7168, d1)); A("v_add_u32 v%d, 0x%x, v%d" % (d1, 7168, d1))
    M.srd(A, 48, M.PWD, 0, 3584 * 2048)
    A("s_mul_i32 s45, s44, %d" % (896 * 2048)); A("s_lshl_b32 s61, s43, 8"); A("s_add_u32 s61, s61, s45")
    A("s_add_u32 s62, s61, %d" % (896 * 2048))
    A("s_lshl_b32 s45, s%d, 17" % W); A("s_add_u32 s61, s61, s45")
    A("s_lshl_b32 s64, s%d, 13" % W)
def g2_dma(par, p, DV=DV):
    o = []
    if p % 4 == 0: o.append("s_add_u32 m0, s64, 0x%x" % (par * 32768 + (p >> 2) * 4096))
    o.append("buffer_load_dwordx4 v%d, s[48:51], s61 offen%s lds" % (DV[p & 3], " offset:%d" % ((p & 3) * 1024) if p & 3 else ""))
    if p == 3: o.append("s_add_u32 s61, s61, 0x8000")
    if p == 7:
        o.append("s_add_u32 s61, s61, 0x%x" % (256 * 2048 - 0x8000))
        o += ["s_cmp_ge_u32 s61, s62", "s_cselect_b32 s65, %d, 0" % ((896 - 32) * 2048), "s_cselect_b32 s62, -1, s62", "s_sub_u32 s61, s61, s65"]
        if par == 1: o.append("s_xor_b32 s64, s64, 0x10000")
    return o
def g2_dma_of(s):
    u = (s + 2) & 7; par = u >> 2; p = 2 * (u & 3)
    return g2_dma(par, p), g2_dma(par, p + 1)
def z_fetch(A, M, t0=7, t1=13, zs=56):
    W = M.WAVE
    M.srd(A, zs, M.PWS, M.WS_Z, M.SZ_Z)
    A("v_lshrrev_b32 v%d, 4, v1" % t0); A("v_and_b32 v%d, 7, v1" % t1); A("v_xor_b32 v%d, v%d, v%d" % (t0, t0, t1)); A("v_lshlrev_b32 v%d, 4, v%d" % (t0, t0))
    A("v_lshrrev_b32 v%d, 3, v1" % t1); A("v_lshl_add_u32 v%d, v%d, 8, v%d" % (t0, t1, t0)); A("v_xor_b32 v%d, 64, v%d" % (t1, t0))
    A("s_lshr_b32 s40, s2, 1"); A("s_lshl_b32 s40, s40, 15"); A("s_and_b32 s41, s2, 1"); A("s_lshl_b32 s41, s41, 7"); A("s_add_u32 s40, s40, s41")
    A("s_lshl_b32 s41, s%d, 13" % W); A("s_add_u32 s40, s40, s41")
    A("s_lshl_b32 s41, s%d, 12" % W); A("s_add_u32 m0, s41, 0x%x" % ZL)
    for p in range(4):
        A("buffer_load_dwordx4 v%d, s[%d:%d], s40 offen%s sc1 lds" % (t0 if p % 2 == 0 else t1, zs, zs + 3, " offset:%d" % (p * 1024) if p else ""))
        A("s_add_u32 s40, s40, 1024")
def i_tabs(A, M): M.tab_dma(A, "i1_000", 96 * 1024, 112 * 1024)
def g2_early(A):
    for s in range(-10, 0):
        d0, d1 = g2_dma_of(s)
        for y in d0 + d1: A(y)
HB = [192, 196, 208, 212, 224, 228, 240, 244]

def gemm1(A, M):
    W = M.WAVE; VWD = M.VWD
    def dma(b): return (M.dmaW(b, 4) + M.dmaX(b)) if ENV('WFIRST', '0') == '1' else (M.dmaX(b) + M.dmaW(b, 4))
    def acc(it, jt):
        return ("v", 32 + (jt * 8 + it) * 4) if jt < 7 else ("a", 128 + it * 4)
    def reads(buf, st):
        base = 64 * st; hi = buf >> 1; off = (buf & 1) * 32768
        o = []; la = []; lb = []
        for it in range(8):
            mat, t = it >> 2, it & 3
            for h in range(2):
                r = base + 4 * it + 2 * h
                la.append("ds_read_b64_tr_b16 a[%d:%d], v%d offset:%d" % (r, r + 1, (12 if hi else 8) + t, off + h * 8192 + mat * 2048))
        for jt in range(8):
            r = base + 32 + 4 * jt
            lb.append("ds_read_b128 a[%d:%d], v%d offset:%d" % (r, r + 3, 6 if hi else 5, off + jt * 1024))
        for i in range(8): o += [lb[i], la[2 * i], la[2 * i + 1]]
        return o
    def mfmas(st, first=False):
        base = 64 * st; o = []
        for jt in range(8):
            for it in range(8):
                f, d = acc(it, jt); dd = q(f, d)
                o.append("%s %s, %s, %s, %s" % (MF, dd, q("a", base + 4 * it), q("a", base + 32 + 4 * jt), "0" if first else dd))
        return o
    def step(i, dmas, do_read, vm, first=False, rd0=1, mid=None, extra=None):
        m = mfmas(i & 1, first)
        s1 = interleave(m, reads((i + 1) & 3, (i + 1) & 1), rd0, 56 if rd0 > 1 else 52) if do_read else [[] for _ in m]
        dl = []
        for b_ in dmas: dl += dma(b_)
        if extra: dl += extra
        s2 = interleave(m, dl, rd0 if mid is not None else 0, 64) if dl else [[] for _ in m]
        for k, x in enumerate(m):
            A(x)
            if mid is not None and k == rd0 - 1:
                nv = sum(1 for kk in range(k + 1) for y in s2[kk] if y.startswith("buffer"))
                for y in s2[k]: A(y)
                A("s_waitcnt vmcnt(%d)" % (mid + nv)); A("s_barrier")
                continue
            for y in s2[k] + s1[k]: A(y)
        if vm is not None:
            A("s_waitcnt vmcnt(%d) lgkmcnt(0)" % vm); A("s_barrier")
    for x in reads(0, 0): A(x)
    A("s_waitcnt lgkmcnt(0)")
    stamp(A, 6)
    ls = M.late_stores()
    wt = [] if ENV("NOWT") else [M.w_touch()]
    if ENV("S0", "0") == "0":
        step(0, [3], True, 12, first=True, rd0=8, mid=4, extra=ls[:4])
        if ENV("G1IT"): stamp(A, 2)
        step(1, [0], True, 12, extra=ls[4:])
        M.set_flag_w0(A, "f2y", 63, 29, 30)
        A("s_add_u32 s63, s63, %d" % (M.F2B - M.F2))
        if ENV("G1IT"): stamp(A, 3)
        step(2, [1, 2], True, 20)
        M.srd(A, 32, M.PWD, 0, 3584 * 2048)
        A("s_sub_u32 s10, s2, 32"); A("s_lshl_b32 s10, s10, 15")
        A("v_mul_u32_u24 v20, 1280, v2"); A("v_lshl_add_u32 v20, v1, 7, v20"); A("v_cmp_lt_u32 vcc, 9, v1"); A("v_cndmask_b32 v20, v20, 2.0, vcc")
        wt = wt + [["buffer_load_dword v18, v20, s[32:35], s10 offen", "s_add_u32 s10, s10, 5120"]]
        step(3, [3], True, 16 + len(wt), extra=wt)
    else:
        step(0, [3, 0], True, 16, first=True, rd0=8, mid=4)
        if ENV("G1IT"): stamp(A, 2)
        step(1, [1], True, 20, extra=ls[:4])
        if ENV("G1IT"): stamp(A, 3)
        step(2, [2], True, 24, extra=ls[4:])
        step(3, [3], True, 8)
    M.set_flag_w0(A, "f2g", 63, 29, 30)
    if ENV("G1IT"): stamp(A, 4)
    A("s_mov_b32 s45, 6")
    A.raw(".p2align 6")
    A.label("g1_loop")
    for i in range(4): step(i, [i], True, 16 + (len(wt) if i != 2 else 0), extra=wt if i == 3 else None)
    if not ENV("NOCPF"):
        A("s_cmp_lg_u32 s45, 2"); A("s_cbranch_scc1 g1_npf")
        M.code_srd(A, 4, "g1_npf"); A("s_bfe_u32 s40, s2, 0x20003"); A("s_lshl_b32 s40, s40, 13")
        A("v_lshlrev_b32 v21, 7, v1"); A("v_lshl_add_u32 v21, v2, 11, v21"); A("v_lshrrev_b32 v22, 4, v1"); A("v_lshl_add_u32 v21, v22, 24, v21")
        A("buffer_load_dword v19, v21, s[4:7], s40 offen")
        A("s_load_dwordx2 s[4:5], s[0:1], 0")
    A.label("g1_npf")
    A("s_sub_u32 s45, s45, 1"); A("s_cmp_lg_u32 s45, 0"); A("s_cbranch_scc1 g1_loop")
    if ENV("G1IT"): stamp(A, 5)
    M.srd(A, 36, M.PWS, M.WS_H, M.SZ_H)
    A("s_bfe_u32 s40, s2, 0x20001"); A("s_lshl_b32 s41, s42, 2"); A("s_add_u32 s41, s41, s40")
    A("s_mul_i32 s40, s40, 7"); A("s_sub_u32 s40, s43, s40")
    A("s_lshl_b32 s55, s41, 3"); A("s_add_u32 s55, s55, s40"); A("s_lshl_b32 s55, s55, 7"); A("s_add_u32 s55, s55, %d" % M.FB)
    A("s_lshl_b32 s40, s40, 1"); A("s_add_u32 s40, s40, s46")
    A("s_mul_i32 s52, s41, 28"); A("s_add_u32 s52, s52, s40"); A("s_lshl_b32 s52, s52, 14"); A("s_lshl_b32 s53, s47, 13"); A("s_add_u32 s52, s52, s53")
    A("s_lshl_b32 s54, s41, 1"); A("s_add_u32 s54, s54, s47"); A("s_lshl_b32 s54, s54, 4"); A("s_add_u32 s54, s54, s40")
    A("s_lshl_b32 s54, s54, 7"); A("s_add_u32 s54, s54, %d" % M.FH)
    A("s_mov_b32 s46, %d" % M.F3)
    DT = [24, 25, 26, 27]
    def grp(B):
        o = [[]]
        for k, t in B.items:
            o[-1].append(t)
            if t.startswith("buffer"): o.append([])
        return [x for x in o if x]
    nv = lambda l: sum(1 for x in l for y in x if y.startswith("buffer"))
    B = Asm(); g2_setup(B, M, DT, 22, 23); su = [[t] for k, t in B.items]
    B = Asm(); i_tabs(B, M); tb = grp(B)
    fl = [["s_bfm_b64 exec, 32, 0", "buffer_load_dword v4, v28, s[%d:%d], s46 offen sc1" % (M.SFL, M.SFL + 3), "s_mov_b64 exec, -1"]]
    e0 = su + [g2_dma(0, p, DT) for p in range(8)]
    e1 = [g2_dma(1, p, DT) for p in range(8)]
    e2 = [g2_dma(0, p, DT) for p in range(4)]
    step(0, [], True, 8 + nv(e0), extra=e0); step(1, [], True, nv(e0) + nv(e1), extra=e1); step(2, [], True, 63, extra=e2)
    if ENV("G1IT"): stamp(A, 8); stamp(A, 9)
    e3 = [["v_mov_b32 v%d, v%d" % (DV[i], DT[i])] for i in range(4)] + tb + [["v_mov_b32 v7, v28"]]
    step(3, [], False, None, extra=e3)
    stamp(A, 7)
    c0 = math.sqrt(2 / math.pi)
    c1 = -2 * c0 * math.log2(math.e); c2 = c1 * 0.044715
    A("s_mov_b32 s56, 0x%x" % f32(c2)); A("s_mov_b32 s57, s56")
    A("v_mov_b32 v8, 0x%x" % f32(c1)); A("v_mov_b32 v9, v8"); A("v_mov_b32 v10, 1.0"); A("v_mov_b32 v11, 1.0"); A("v_mov_b32 v12, 0")
    n = 0
    for p in range(2):
        for jt in range(8):
            b0 = 32 + (jt % 7) * 32
            g = b0 + 8 * p; u = b0 + 16 + 8 * p
            if jt == 7:
                for i in range(8):
                    A("v_accvgpr_read_b32 v%d, a%d" % (g + i, 128 + 8 * p + i)); A("v_accvgpr_read_b32 v%d, a%d" % (u + i, 144 + 8 * p + i))
            T = 16 + 8 * (n % 2); n += 1
            H4 = range(0, 8, 2)
            for e in H4: A("v_pk_mul_f32 %s, %s, %s" % (p2(T + e), p2(g + e), p2(g + e)))
            for e in H4: A("v_pk_fma_f32 %s, %s, s[56:57], v[8:9]" % (p2(T + e), p2(T + e)))
            for e in H4: A("v_pk_mul_f32 %s, %s, %s" % (p2(T + e), p2(T + e), p2(g + e)))
            for e in range(8): A("v_exp_f32 v%d, v%d" % (T + e, T + e))
            for e in H4: A("v_pk_mul_f32 %s, %s, %s" % (p2(u + e), p2(u + e), p2(g + e)))
            for e in H4: A("v_pk_add_f32 %s, %s, v[10:11]" % (p2(T + e), p2(T + e)))
            for e in range(8): A("v_rcp_f32 v%d, v%d" % (T + e, T + e))
            A("s_add_u32 s53, s52, 0x%x" % (p * 14 * 16384 + (jt >> 2) * 4096))
            for e in H4: A("v_pk_mul_f32 %s, %s, %s" % (p2(u + e), p2(u + e), p2(T + e)))
            dst = g
            for e in range(4): A("v_cvt_pk_bf16_f32 v%d, v%d, v%d" % (dst + e, u + 2 * e, u + 2 * e + 1))
            A("buffer_store_dwordx4 %s, v3, s[36:39], s53 offen offset:%d%s" % (q("v", g), (jt & 3) * 1024, " sc1"))
            if p == 0 and jt == 5:
                for y in fl[0]: A(y.replace("v28", "v7"))
            if p == 1 and jt == 1:
                A("s_waitcnt vmcnt(4)")
                A("v_cmp_ne_u32 vcc, s%d, v4" % M.TOK); A("s_nop 1"); A("s_mov_b32 vcc_hi, 0"); A("s_nop 3")
                A("s_cbranch_vccz pd_f3g")
                M.poll(A, "f3g", 46, 7, 4, 32, sleep=4)
                z_fetch(A, M, zs=32)
            if p == 1 and jt == int(ENV("FLAGA", "3")):
                A("s_waitcnt vmcnt(%d)" % (jt + 1 + 4))
                M.set_flag(A, 54, 12, 4)
    A("s_waitcnt vmcnt(7)")
    A("s_mov_b32 s58, 1")

def gemm2(A, M):
    W = M.WAVE
    if not ENV("G1IT"): stamp(A, 8)
    M.srd(A, 12, M.PX, 0, 4 << 20)
    A("v_lshrrev_b32 v28, 2, v1"); A("v_lshlrev_b32 v28, 18, v28"); A("v_lshl_add_u32 v28, v2, 13, v28")
    A("v_and_b32 v29, 3, v1"); A("v_lshl_add_u32 v28, v29, 4, v28")
    A("s_lshl_b32 s8, s42, 15"); A("s_lshl_b32 s9, s43, 8"); A("s_add_u32 s8, s8, s9"); A("s_lshl_b32 s9, s44, 6"); A("s_add_u32 s8, s8, s9"); A("s_add_u32 s9, s8, 0x1000")
    XR, SR = 176, 192
    def io(i): return "s%d offen offset:%d" % (8 + (i >> 1), (i & 1) * 2048)
    for i in range(4): A("buffer_load_dwordx4 %s, v28, s[12:15], %s" % (q("v", XR + 4 * i), io(i)))
    A("s_barrier")
    ZD, D1, DS, PK, ITW, TT = 32, 48, 80, 112, 128, 144
    A("v_lshrrev_b32 v20, 1, v1"); A("v_and_b32 v20, 7, v20"); A("v_lshlrev_b32 v21, 1, v2"); A("v_xor_b32 v20, v20, v21"); A("v_lshlrev_b32 v20, 4, v20")
    A("v_lshl_add_u32 v20, v1, 7, v20"); A("v_add_u32 v20, 0x%x, v20" % ZL); A("v_xor_b32 v21, 16, v20")
    for k in range(2):
        for dh in range(2): A("ds_read_b128 %s, v%d offset:%d" % (q("v", ZD + 8 * k + 4 * dh), 20 + k, dh * 8192))
    A("v_add_u32 v23, 0x%x, v3" % (96 * 1024))
    for dh in range(2):
        for bh in range(2):
            for part in range(2): M.tab_read(A, q("a", I1 + 16 * bh + 8 * part + 4 * dh), "i1_%d%d%d" % (bh, part, dh), "i1_000", 23, 16384)
    for bh in range(2):
        for part in range(2): M.tab_read(A, q("a", I1S + 8 * bh + 4 * part), "i1s_%d%d" % (bh, part), "i1_000", 23, 16384)
    for bh in range(2):
        for part in range(2): M.tab_read(A, q("v", ITW + 8 * bh + 4 * part), "itw%d%d" % (bh, part), "i1_000", 23, 16384)
    for ah in range(2): M.tab_read(A, q("a", I2 + 4 * ah), "i2_%d" % ah, "i1_000", 23, 16384)
    A("v_and_b32 v22, 15, v1"); A("v_lshlrev_b32 v22, 6, v22"); A("v_lshrrev_b32 v23, 4, v1"); A("v_lshl_add_u32 v22, v23, 4, v22")
    A("s_and_b32 s40, s2, 1"); A("s_lshl_b32 s40, s40, 21"); A("s_lshl_b32 s41, s%d, 19" % W); A("s_add_u32 s40, s40, s41")
    A("s_lshr_b32 s41, s2, 1"); A("s_lshl_b32 s41, s41, 11"); A("s_add_u32 s40, s40, s41"); A("s_add_u32 s41, s40, 0x40000")
    A("s_mov_b32 s69, s58")
    M.srd(A, 56, M.PWS, M.WS_S, M.SZ_S)
    A("s_mov_b64 s[46:47], 0xffff")
    A("s_waitcnt lgkmcnt(6)")
    def mm(d, a, b, c=None):
        A("%s %s, %s, %s, %s" % (MF, q("v", d), a, b, "0" if c is None else q("v", c)))
    for k in range(2):
        for dh in range(2):
            for bh in range(2):
                for part in range(2):
                    d = D1 + 16 * k + 8 * bh + 4 * part
                    mm(d, q("v", ZD + 8 * k + 4 * dh), q("a", I1 + 16 * bh + 8 * part + 4 * dh), None if dh == 0 else d)
        for bh in range(2):
            for part in range(2):
                mm(DS + 16 * k + 8 * bh + 4 * part, q("v", ZD + 8 * k + 4 * part), q("a", I1S + 8 * bh + 4 * part))
    neg = " neg_lo:[1,0,0] neg_hi:[1,0,0]"
    A("s_waitcnt lgkmcnt(0)")
    for k in range(2):
        for x in range(4):
            A("v_cndmask_b32 v%d, v%d, v%d, s[46:47]" % (D1 + 16 * k + 4 * x, D1 + 16 * k + 4 * x, DS + 16 * k + 4 * x))
        for bh in range(2):
            re = D1 + 16 * k + 8 * bh; im = re + 4; tc = ITW + 8 * bh; ts = tc + 4; t = TT + 8 * bh
            for h in (0, 2): A("v_pk_mul_f32 %s, %s, %s" % (p2(t + h), p2(re + h), p2(tc + h)))
            for h in (0, 2): A("v_pk_mul_f32 %s, %s, %s" % (p2(t + 4 + h), p2(im + h), p2(tc + h)))
            for h in (0, 2): A("v_pk_fma_f32 %s, %s, %s, %s%s" % (p2(t + h), p2(im + h), p2(ts + h), p2(t + h), neg))
            for h in (0, 2): A("v_pk_fma_f32 %s, %s, %s, %s" % (p2(t + 4 + h), p2(re + h), p2(ts + h), p2(t + 4 + h)))
            for r in range(4): A("v_cvt_pk_bf16_f32 v%d, v%d, v%d" % (PK + 8 * k + 4 * bh + r, t + r, t + 4 + r))
    for k in range(2):
        for ah in range(2):
            for bh in range(2): mm(D1 + 16 * k + 8 * ah + 4 * bh, q("v", PK + 8 * k + 4 * bh), q("a", I2 + 4 * ah))
    ACC = 32; AF, HR = 0, 128
    RA = 232
    A("v_lshl_add_u32 v4, v2, 12, v3")
    A("v_lshrrev_b32 v24, 2, v1"); A("v_lshlrev_b32 v25, 8, v24"); A("v_and_b32 v26, 3, v1"); A("v_lshl_add_u32 v25, v26, 3, v25")
    A("v_and_b32 v24, 7, v24"); A("s_lshl_b32 s45, s44, 1"); A("v_xor_b32 v24, s45, v24")
    for t in range(8):
        A("v_xor_b32 v26, %d, v24" % t); A("v_lshl_add_u32 v%d, v26, 5, v25" % (RA + t)); A("v_add_u32 v%d, 0x10000, v%d" % (RA + 8 + t, RA + t))
    A("v_mov_b32 v12, 0"); A("v_lshlrev_b32 v13, 7, v1")
    SO = 160
    for k in range(2):
        for x in range(8): A("v_cvt_pk_bf16_f32 v%d, v%d, v%d" % (SO + 8 * k + x, D1 + 16 * k + 2 * x, D1 + 16 * k + 2 * x + 1))
    A("s_lshl_b32 s60, s42, 2"); A("s_add_u32 s60, s60, s44")
    A("s_lshl_b32 s47, s60, 10"); A("s_add_u32 s47, s47, %d" % M.FB)
    A("s_lshl_b32 s46, s60, 1"); A("s_lshr_b32 s45, s%d, 1" % W); A("s_add_u32 s46, s46, s45"); A("s_lshl_b32 s46, s46, 11"); A("s_add_u32 s46, s46, %d" % M.FH)
    A("s_mul_i32 s60, s60, %d" % (28 * 16384))
    M.poll(A, "fa", 46, 13, 31, 14, sleep=4)
    if not ENV("G1IT"): stamp(A, 9)
    M.srd(A, 32, M.PWS, M.WS_H, M.SZ_H)
    def hload(s, jt):
        o = ["buffer_load_dwordx4 %s, v4, s[32:35], s60 offen offset:%d%s" % (q("a", HR + 16 * (s & 7) + 4 * jt), jt * 1024, M.HLD)]
        if jt == 3: o.append("s_add_u32 s60, s60, 0x4000")
        return o
    NK = 28; R = 8; LA = int(ENV("G2LA", "6"))
    units = [[(s_, tuple(range(8)))] for s_ in range(NK - R)]
    for d in (3, 2, 1, 0):
        for s_ in range(NK - R, NK, 4): units.append([(s_ + i, (2 * d, 2 * d + 1)) for i in range(4)])
    def frs(u):
        o = []
        for s_, tl in units[u]:
            for t in tl: o.append((s_, t, AF + 32 * (u & 3) + 4 * len(o)))
        return o
    def ureads(u):
        o = []
        for s_, t, r in frs(u):
            for h in range(2):
                o.append("ds_read_b64_tr_b16 a[%d:%d], v%d offset:%d" % (r + 2 * h, r + 2 * h + 1, RA + 8 * ((s_ >> 3) & 1) + t, (s_ & 7) * 8192 + h * 4096))
        return o
    vm = []
    NH0 = 3
    for s_ in range(NH0):
        for jt in range(4):
            for y in hload(s_, jt): A(y)
            vm.append(("H", s_))
    for x in ureads(0) + ureads(1): A(x)
    lg = [0] * 16 + [1] * 16
    A("s_lshl_b32 s53, s2, 2"); A("s_add_u32 s53, s53, s%d" % W); A("s_mul_i32 s52, s53, %d" % (3 * 4096)); A("s_lshl_b32 s53, s53, 9"); A("s_add_u32 s53, s53, %d" % M.FX)
    A("s_lshl_b32 s54, s2, 7"); A("s_add_u32 s54, s54, %d" % M.FS)
    A("s_lshl_b32 s46, s42, 12"); A("s_lshl_b32 s45, s%d, 10" % W); A("s_add_u32 s46, s46, s45"); A("s_add_u32 s46, s46, %d" % M.FS)
    M.srd(A, 36, M.PWS, M.WS_XC, M.SZ_XC)
    A("v_and_b32 v21, 15, v1"); A("v_mul_u32_u24 v16, 80, v21"); A("v_lshrrev_b32 v21, 4, v1"); A("v_lshl_add_u32 v16, v21, 3, v16"); A("v_lshl_add_u32 v16, v2, 13, v16")
    A("v_lshrrev_b32 v21, 2, v1"); A("v_mul_u32_u24 v17, 80, v21"); A("v_and_b32 v21, 3, v1"); A("v_lshl_add_u32 v17, v21, 4, v17"); A("v_lshl_add_u32 v17, v2, 13, v17")
    FL = "s[%d:%d]" % (M.SFL, M.SFL + 3)
    def quick(tag, vd, nl, soff):
        A("v_cmp_ne_u32 vcc, s%d, v%d" % (M.TOK, vd)); A("s_nop 1"); A("s_bfm_b64 s[66:67], %d, 0" % nl); A("s_and_b64 vcc, vcc, s[66:67]"); A("s_nop 3")
        A("s_cbranch_vccz pd_%s" % tag)
        M.poll(A, tag, soff, 13, vd, nl)
    def vwait(tags):
        last = max([i for i, t in enumerate(vm) if t in tags] + [-1])
        return min(63, len(vm) - 1 - last)
    def lwait(u):
        last = max(i for i, t in enumerate(lg) if t == u)
        return min(15, len(lg) - 1 - last)
    cert = 0; hnext = NH0
    UFB = 14 - LA
    for u in range(len(units)):
        ks = [x[0] for x in units[u]]
        need = [("H", k) for k in ks]
        nxt = max(x[0] for x in units[u + 2]) >> 2 if u + 2 < len(units) else 0
        bar = nxt > cert
        if bar: need.append(("W", nxt))
        if u == 6: need += [("S", 0)]
        if u == UFB: need += [("fb", 0)]
        if u == 13: need += [("fs", 0)]
        sd = {22: 3, 24: 2, 26: 1}.get(u); fd = {25: 3, 27: 2}.get(u)
        if fd: need += [("X", fd)]
        A("s_waitcnt vmcnt(%d) lgkmcnt(%d)" % (vwait(need), lwait(u)))
        if bar: A("s_barrier"); cert = nxt
        if u == 2:
            assert bar
            A("s_cmp_lg_u32 s%d, 0" % W); A("s_cbranch_scc1 g2_np")
            A("s_cmp_eq_u32 s69, 0"); A("s_cbranch_scc1 g2_np")
            M.set_flag(A, 55, 12, 25)
            A.label("g2_np")
        if u == 6:
            assert bar
            M.set_flag_w0(A, "fs", 54, 12, 25)
        if u == UFB: quick("fb", 18, 7, 47)
        if u == 13: quick("fs", 19, 8, 46)
        if ENV("FIT") and u in (20, 24): stamp(A, 2 + (u - 20) // 4)
        if ENV("G2IT") and u % 4 == 0 and u < 24: stamp(A, 2 + u // 4)
        rd = ureads(u + 2) if u + 2 < len(units) else []
        fr = frs(u)
        ex = [[] for _ in range(32)]
        def flagst(d):
            return ["s_xor_b32 s45, s53, 0x%x" % (d << 12), "v_mov_b32 v25, s%d" % M.TOK, "s_mov_b64 exec, 1",
                    "buffer_store_dword v25, v12, %s, s45 offen offset:%d sc1" % (FL, (d - 1) * 128), "s_mov_b64 exec, -1"]
        if fd: ex[1].append((flagst(fd), ("F", fd)))
        if u < NK - R:
            iv = (u + 10) >> 2
            if iv < 6:
                d0, d1 = g2_dma_of(u); ex[5].append((d0, ("W", iv))); ex[21].append((d1, ("W", iv)))
            elif u in (14, 15):
                for i in range(2):
                    d0, d1 = g2_dma_of(14 + 2 * (u - 14) + i); ex[5 + 16 * i].append((d0, ("W", 6))); ex[9 + 16 * i].append((d1, ("W", 6)))
            tgt = min(NK, u + 1 + LA + (2 if u >= NK - R - 3 else 0), u + 8)
            n = min(2, tgt - hnext)
            last = u == NK - R - 1
            for i in range(n):
                assert hnext < 14 or u >= UFB
                for jt in range(4): ex[jt if last else (2 + 16 * i + 4 * jt) if n == 2 else (3 + 8 * jt)].append((hload(hnext, jt), ("H", hnext)))
                hnext += 1
            if last:
                assert n <= 1 and hnext == u + 8
                for jt in range(4): ex[8 * jt + 7].append((hload(hnext, jt), ("H", hnext)))
                hnext += 1
        for i in ((2 * u, 2 * u + 1) if u < 2 else ()):
            ex[15 + 16 * (i & 1)].append((["buffer_store_dwordx4 %s, v22, s[56:59], s%d offen offset:%d sc1" % (q("v", SO + 4 * i), 40 + (i >> 1), (i & 1) * 1024)], ("S", 0)))
        if u == UFB - 3: ex[29].append((["s_bfm_b64 exec, 7, 0", "buffer_load_dword v18, v13, %s, s47 offen sc1" % FL, "s_mov_b64 exec, -1"], ("fb", 0)))
        if u == 10: ex[29].append((["s_bfm_b64 exec, 8, 0", "buffer_load_dword v19, v13, %s, s46 offen sc1" % FL, "s_mov_b64 exec, -1"], ("fs", 0)))
        if u == 13:
            for i in range(4): ex[7 + 8 * i].append((["buffer_load_dwordx4 %s, v28, s[56:59], %s sc1" % (q("v", SR + 4 * i), io(i))], ("s", 0)))
        if u == 27: ex[0].append((["s_bfm_b64 exec, 3, 0", "buffer_load_dword v24, v13, %s, s53 offen sc1" % FL, "s_mov_b64 exec, -1"], ("fx", 0)))
        if sd:
            b0 = ACC + 32 * sd
            ex[0].append((["s_xor_b32 s45, s2, %d" % (sd << 1), "s_lshl_b32 s45, s45, 2", "s_add_u32 s45, s45, s%d" % W, "s_mul_i32 s45, s45, %d" % (3 * 4096), "s_add_u32 s45, s45, %d" % ((sd - 1) * 4096)], None))
            for i in range(4):
                for e in range(4): ex[4 + 4 * i + e].append((["v_cvt_pk_bf16_f32 v%d, v%d, v%d" % (b0 + 8 * i + e, b0 + 8 * i + 2 * e, b0 + 8 * i + 2 * e + 1)], None))
                ex[8 + 4 * i].append((["buffer_store_dwordx4 %s, v3, s[36:39], s45 offen offset:%d sc1" % (q("v", b0 + 8 * i), i * 1024)], ("X", sd)))
        k = 0
        if len(units[u]) == 1: seq = [(f, jt) for jt in range(4) for f in fr]
        else: seq = [(f, jt) for f in fr for jt in range(4)]
        for i, ((s_, t, r), jt) in enumerate(seq):
            d = q("v", ACC + 16 * t + 4 * jt)
            A("%s %s, %s, %s, %s" % (MF, d, q("a", r), q("a", HR + 16 * (s_ & 7) + 4 * jt), "0" if s_ == 0 else d))
            if i % 2 == 0 and i // 2 < len(rd): A(rd[i // 2]); lg.append(u + 2)
            for ins, tag in ex[i]:
                for y in ins:
                    A(y)
                    if y.startswith("buffer"): vm.append(tag)
    assert hnext == NK
    stamp(A, 10)
    nl2e = -math.log2(math.e)
    A("s_mov_b32 s56, 0x%x" % f32(nl2e)); A("s_mov_b32 s57, s56"); A("s_mov_b32 s59, 0xffff0000")
    A("v_mov_b32 v26, 1.0"); A("v_mov_b32 v27, 1.0")
    A("s_waitcnt vmcnt(%d)" % vwait([("X", 1), ("fx", 0)]))
    for y in flagst(1): A(y)
    if ENV("FIT"): stamp(A, 4)
    UX, US, PB = 64, 96, 128
    H4 = range(0, 8, 2)
    def pl(d):
        A("s_add_u32 s45, s52, %d" % (d * 4096))
        for i in range(4): A("buffer_load_dwordx4 %s, v3, s[36:39], s45 offen offset:%d sc1" % (q("v", PB + 16 * d + 4 * i), i * 1024))
    def unp():
        for i in range(16):
            A("v_lshlrev_b32 v%d, 16, v%d" % (UX + 2 * i, XR + i)); A("v_and_b32 v%d, s59, v%d" % (UX + 2 * i + 1, XR + i))
            A("v_lshlrev_b32 v%d, 16, v%d" % (US + 2 * i, SR + i)); A("v_and_b32 v%d, s59, v%d" % (US + 2 * i + 1, SR + i))
    A("v_cmp_ne_u32 s[10:11], s%d, v24" % M.TOK); A("s_nop 1")
    A("s_and_b32 s11, s10, 6"); A("s_cbranch_scc0 pd_fx2")
    A("s_add_u32 s45, s53, 128")
    M.poll(A, "fx2", 45, 13, 24, 2, sleep=1)
    if ENV("FIT"): stamp(A, 5)
    pl(2); pl(1)
    A("s_and_b32 s11, s10, 1"); A("s_cbranch_scc0 pd_fx1")
    M.poll(A, "fx1", 53, 13, 24, 1, sleep=1)
    pl(0)
    unp()
    A("s_barrier")
    A("s_waitcnt vmcnt(4)")
    if ENV("FIT"): stamp(A, 6)
    M.srd(A, 12, M.POUT, 0, 4 << 20)
    def addp(t, d, tt):
        for e in range(4):
            A("v_lshlrev_b32 v%d, 16, v%d" % (tt + 2 * e, PB + 16 * d + 4 * t + e)); A("v_and_b32 v%d, s59, v%d" % (tt + 2 * e + 1, PB + 16 * d + 4 * t + e))
        for e in H4: A("v_pk_add_f32 %s, %s, %s" % (p2(ACC + 8 * t + e), p2(ACC + 8 * t + e), p2(tt + e)))
    for t in range(4):
        for d in (2, 1): addp(t, d, 208 + 8 * d)
    for t in range(4):
        b = 8 * t; T = 208 + 8 * (t & 1)
        A("s_waitcnt vmcnt(%d)" % (3 - t))
        if ENV("FIT") and t == 0: stamp(A, 7)
        addp(t, 0, T)
        for e in H4: A("v_pk_mul_f32 %s, %s, s[56:57]" % (p2(T + e), p2(ACC + b + e)))
        for e in range(8): A("v_exp_f32 v%d, v%d" % (T + e, T + e))
        A("s_nop 0")
        for e in H4: A("v_pk_add_f32 %s, %s, v[26:27]" % (p2(T + e), p2(T + e)))
        for e in range(8): A("v_rcp_f32 v%d, v%d" % (T + e, T + e))
        A("s_nop 0")
        for e in H4: A("v_pk_mul_f32 %s, %s, %s" % (p2(ACC + b + e), p2(ACC + b + e), p2(T + e)))
        for e in range(4): A("v_cvt_pk_bf16_f32 v%d, v%d, v%d" % (SR + 4 * t + e, ACC + b + 2 * e, ACC + b + 2 * e + 1))
        for u in range(2):
            A("ds_write_b64 v16, %s offset:%d" % (p2(SR + 4 * t + 2 * u), (2 * (t & 1) + u) * 16 * 80 + (t >> 1) * 32))
    A("s_waitcnt lgkmcnt(0)")
    for i in range(4): A("ds_read_b128 %s, v17 offset:%d" % (q("v", ACC + 4 * i), i * 16 * 80))
    for i in range(4):
        A("s_waitcnt lgkmcnt(%d)" % (3 - i))
        T = 208 + 8 * (i & 1)
        for e in range(4):
            A("v_lshlrev_b32 v%d, 16, v%d" % (T + 2 * e, ACC + 4 * i + e)); A("v_and_b32 v%d, s59, v%d" % (T + 2 * e + 1, ACC + 4 * i + e))
        for e in H4: A("v_pk_fma_f32 %s, %s, %s, %s" % (p2(UX + 8 * i + e), p2(US + 8 * i + e), p2(T + e), p2(UX + 8 * i + e)))
        for e in range(4): A("v_cvt_pk_bf16_f32 v%d, v%d, v%d" % (XR + 4 * i + e, UX + 8 * i + 2 * e, UX + 8 * i + 2 * e + 1))
        A("buffer_store_dwordx4 %s, v28, s[12:15], %s" % (q("v", XR + 4 * i), io(i)))
    if G.STAMP:
        A("s_waitcnt vmcnt(0)")
        stamp(A, 11); A("s_memrealtime s[100:101]"); A("s_waitcnt lgkmcnt(0)")
        G.stamp_out(A, 0, 12, M.PWS, "all")
        A("v_mov_b32 v2, s100"); A("buffer_store_dword v2, v1, s[96:99], 0 offen offset:48")

def colfft(A, M):
    W_ = M.WAVE
    DAT, FA, FE = 128, 160, 176
    W, T1, T2, D, P, TMP = 8, 40, 48, 104, 168, 200
    A("s_waitcnt lgkmcnt(0)")
    M.flat(A, M.late_stores())
    M.srd(A, 36, M.PWS, M.WS_WT, M.SZ_WT)
    A("s_waitcnt vmcnt(0)")
    A("v_mov_b32 v240, 0"); A("v_lshlrev_b32 v242, 7, v1")
    A("s_barrier")
    M.set_flag_w0(A, "f2f", 63, 240, 241)
    A("s_add_u32 s63, s63, %d" % (M.F2B - M.F2))
    M.set_flag_w0(A, "f2fb", 63, 240, 241)
    NP = int(ENV("P1", "0"))
    if NP:
        A("s_and_b32 s41, s%d, 1" % W_); A("s_cmp_eq_u32 s41, 0")
        A("s_cselect_b32 s52, s%d, s%d" % (M.PWG, M.PWU)); A("s_cselect_b32 s53, s%d, s%d" % (M.PWG + 1, M.PWU + 1))
        A("s_and_b32 s53, s53, 0xffff"); A("s_mov_b32 s54, %d" % (1024 * 7168)); A("s_mov_b32 s55, 0x20000")
        A("s_lshl_b32 s41, s2, 1"); A("s_lshr_b32 s42, s%d, 1" % W_); A("s_add_u32 s41, s41, s42"); A("s_lshl_b32 s41, s41, 13"); A("s_add_u32 s41, s41, %d" % (int(ENV("P1ROW", "128")) * 7168))
        for n in range(NP):
            A("buffer_load_dword v243, v242, s[52:55], s41 offen"); A("s_add_u32 s41, s41, 0x80000")
        if ENV("P1ST"): stamp(A, 3); A("s_waitcnt vmcnt(0)"); stamp(A, 4)
    names = []
    for inv in range(2):
        for part in range(2): names.append(("fa_%d%d" % (inv, part), ar(FA + 8 * inv + 4 * part, 4)))
    for t in range(2): names.append(("t1_%d" % t, vr(T1 + 4 * t, 4)))
    for e in range(1, 8):
        for t in range(2): names.append(("t2_%d%d" % (e, t), vr(T2 + 8 * (e - 1) + 4 * t, 4)))
    for ih in range(2): names.append(("fe32_%d" % ih, ar(FE + 4 * ih, 4)))
    for nm, r in names: G.tab_load(A, r, nm, 3, M.STAB, 42)
    A("v_and_b32 v4, 15, v1"); A("v_lshrrev_b32 v5, 4, v1")
    A("v_lshlrev_b32 v6, 6, v4"); A("v_lshl_add_u32 v6, v5, 4, v6")
    for k in range(4):
        A("v_add_u32 v7, %d, v5" % (4 * k)); A("v_xor_b32 v7, v7, v4"); A("v_lshlrev_b32 v7, 4, v7"); A("v_lshl_add_u32 v%d, v5, 8, v7" % (232 + k))
    A("v_lshrrev_b32 v7, 5, v1"); A("v_lshlrev_b32 v7, 3, v7"); A("v_bfe_u32 v236, v1, 4, 1"); A("v_or_b32 v7, v7, v236"); A("v_xor_b32 v7, v7, v4")
    A("v_lshlrev_b32 v7, 4, v7"); A("v_lshl_add_u32 v236, v4, 8, v7"); A("v_lshl_add_u32 v236, v2, 15, v236")
    A("v_add_u32 v4, 0x1000, v3")
    A("s_lshl_b32 s51, s2, 2"); A("s_add_u32 s51, s51, s%d" % W_)
    A("s_and_b32 s41, s51, 15"); A("s_bfe_u32 s42, s51, 0x20004"); A("s_lshl_b32 s42, s42, 7")
    A("s_add_u32 s40, s41, s42")
    A("s_sub_u32 s43, 32, s41"); A("s_cmp_eq_u32 s41, 0"); A("s_cselect_b32 s43, 16, s43")
    A("s_add_u32 s43, s43, 480"); A("s_sub_u32 s43, s43, s42")
    A("s_cmp_ge_u32 s51, 64"); A("s_cselect_b32 s40, s43, s40"); A("s_cselect_b32 s50, -1, 1"); A("s_lshl_b32 s50, s50, 18")
    A("s_lshl_b32 s40, s40, 13")
    M.srd(A, 52, M.PWS, M.WS_Y, M.SZ_Y); M.srd(A, 56, M.PWS, M.WS_Z, M.SZ_Z)
    A("s_lshl_b32 s44, s%d, 13" % W_); A("s_add_u32 s44, s44, %d" % M.F2)
    M.poll(A, "f2", 44, 242, 244, 64, sleep=4)
    A("s_barrier")
    stamp(A, 5)
    A("s_lshl_b32 s41, s51, 15"); A("s_lshl_b32 s42, s%d, 15" % W_)
    for e in range(8):
        A("s_add_u32 m0, s42, %d" % (e * 4096))
        for k in range(4): A("buffer_load_dwordx4 v%d, s[52:55], s41 offen offset:%d sc1 lds" % (232 + k, k * 1024))
        A("s_add_u32 s41, s41, 4096")
    def wload(dst, f, so):
        for e in range(8):
            A("buffer_load_dwordx4 %s, v%d, s[36:39], s%d offen offset:%d sc1" % (q(f, dst + 4 * e), 3 if e < 4 else 4, so, (e & 3) * 1024))
    A("s_add_u32 s44, s44, %d" % (M.F2B - M.F2))
    M.poll(A, "f2b", 44, 242, 244, 64, sleep=4)
    A("s_barrier")
    A("s_cmp_eq_u32 s51, 0"); A("s_cselect_b32 s43, 0x%x, s40" % (512 * 8192))
    wload(W, "v", 43)
    A("s_mov_b32 s48, 0"); A("s_mov_b32 s49, 0xffff0000")
    def yread():
        for e in range(8): A("ds_read_b128 %s, v237 offset:%d" % (q("a", DAT + 4 * e), e * 4096))
    A("v_mov_b32 v237, v236")
    A("s_waitcnt vmcnt(8)")
    yread()
    stamp(A, 6)
    A.label("cf_loop")
    A("s_waitcnt lgkmcnt(0)")
    def mm(d, a, b, c=None):
        A("%s %s, %s, %s, %s" % (MF, q("v", d), a, b, "0" if c is None else q("v", c)))
    tctr = [0]
    def tw_quads(dsts, re, tc, conj, TMP=TMP):
        t = TMP + 8 * (tctr[0] % 4); tctr[0] += 1
        im = re + 4; ts = tc + 4
        neg = " neg_lo:[1,0,0] neg_hi:[1,0,0]"
        for h in (0, 2): A("v_pk_mul_f32 %s, %s, %s" % (p2(t + h), p2(re + h), p2(tc + h)))
        for h in (0, 2): A("v_pk_mul_f32 %s, %s, %s" % (p2(t + 4 + h), p2(im + h), p2(tc + h)))
        for h in (0, 2): A("v_pk_fma_f32 %s, %s, %s, %s%s" % (p2(t + h), p2(im + h), p2(ts + h), p2(t + h), neg if conj else ""))
        for h in (0, 2): A("v_pk_fma_f32 %s, %s, %s, %s%s" % (p2(t + 4 + h), p2(re + h), p2(ts + h), p2(t + 4 + h), "" if conj else neg))
        for r in range(4): A("v_cvt_pk_bf16_f32 v%d, v%d, v%d" % (dsts[r], t + r, t + 4 + r))
    def cm_pairs(items):
        ts = []
        for _ in items:
            ts.append(TMP + 2 * (tctr[0] % 8)); tctr[0] += 1
        for (dst, z, c, s_), t in zip(items, ts):
            A("v_pk_mul_f32 %s, %s, %s op_sel:[0,%d] op_sel_hi:[1,%d]" % (p2(t), p2(z), p2(c & ~1), c & 1, c & 1))
        for (dst, z, c, s_), t in zip(items, ts):
            A("v_pk_fma_f32 %s, %s, %s, %s op_sel:[1,%d,0] op_sel_hi:[0,%d,1] neg_lo:[1,0,0]" % (p2(t), p2(z), p2(s_ & ~1), p2(t), s_ & 1, s_ & 1))
        for (dst, z, c, s_), t in zip(items, ts):
            A("v_cvt_pk_bf16_f32 v%d, v%d, v%d" % (dst, t, t + 1))
    for e in range(8):
        mm(D + 8 * e, q("a", DAT + 4 * e), q("a", FA)); mm(D + 8 * e + 4, q("a", DAT + 4 * e), q("a", FA + 4))
    A("s_add_u32 s40, s40, s50")
    A("s_add_u32 s43, s48, 1"); A("s_and_b32 s43, s43, 3"); A("s_lshl_b32 s43, s43, 5"); A("v_xor_b32 v237, s43, v236")
    yread()
    for e in range(8): tw_quads([P + 4 * e + r for r in range(4)], D + 8 * e, T1, False)
    for e in range(8):
        mm(D + 8 * e, q("a", FA), q("v", P + 4 * e)); mm(D + 8 * e + 4, q("a", FA + 4), q("v", P + 4 * e))
    for e in range(8):
        if e == 0:
            for r in range(4): A("v_cvt_pk_bf16_f32 v%d, v%d, v%d" % (P + 8 * r, D + r, D + 4 + r))
        else: tw_quads([P + 8 * r + e for r in range(4)], D + 8 * e, T2 + 8 * (e - 1), False)
    def stageE():
        for ih in range(2):
            for r in range(4):
                d = "v[%d:%d]" % (D + 16 * r, D + 16 * r + 15)
                A("%s %s, %s, %s, %s" % (MF32, d, q("a", FE + 4 * ih), q("v", P + 8 * r + 4 * ih), "0" if ih == 0 else d))
    stageE()
    A("s_waitcnt vmcnt(0)")
    U = TMP + 16
    A("s_or_b32 s43, s51, s48"); A("s_cmp_eq_u32 s43, 0"); A("s_cbranch_scc1 cf_pack")
    for r in range(4):
        for eh in range(2):
            items = []
            for k in range(4):
                ep = 4 * eh + k; w = W + 4 * ep + r; u = U + 8 * (eh & 1) + 2 * k
                A("v_lshlrev_b32 v%d, 16, v%d" % (u, w)); A("v_and_b32 v%d, s49, v%d" % (u + 1, w))
                items.append((P + 8 * r + ep, D + 16 * r + 2 * ep, u, u + 1))
            cm_pairs(items)
    A.label("cf_mul_done")
    wload(W, "v", 40)
    stageE()
    for r in range(4):
        A("v_cvt_pk_bf16_f32 v%d, v%d, v%d" % (P + r, D + 16 * r, D + 16 * r + 1))
        for xs in ((1, 2, 3, 4), (5, 6, 7)):
            cm_pairs([(P + 4 * (8 - x) + r, D + 16 * r + 2 * x, T2 + 8 * (7 - x) + r, T2 + 8 * (7 - x) + 4 + r) for x in xs])
    for e in range(8):
        mm(D + 8 * e, q("v", P + 4 * e), q("a", FA + 8)); mm(D + 8 * e + 4, q("v", P + 4 * e), q("a", FA + 12))
    for e in range(8): tw_quads([P + 4 * e + r for r in range(4)], D + 8 * e, T1, True)
    for e in range(8):
        mm(D + 8 * e, q("v", P + 4 * e), q("a", FA + 8)); mm(D + 8 * e + 4, q("v", P + 4 * e), q("a", FA + 12))
    for e in range(8):
        for r in range(4): A("v_cvt_pk_bf16_f32 v%d, v%d, v%d" % (P + 4 * e + r, D + 8 * e + r, D + 8 * e + 4 + r))
    for cc in range(4):
        A("s_cmp_eq_u32 s48, %d" % cc); A("s_cbranch_scc0 cf_o%d" % cc)
        for qq in range(32): A("v_accvgpr_write_b32 a%d, v%d" % (4 * qq + cc, P + qq))
        A.label("cf_o%d" % cc)
    A("s_add_u32 s48, s48, 1"); A("s_cmp_lt_u32 s48, 4"); A("s_cbranch_scc1 cf_loop")
    stamp(A, 7)
    A("v_and_b32 v238, 15, v1"); A("v_lshlrev_b32 v238, 4, v238"); A("v_lshl_add_u32 v238, v5, 20, v238")
    A("s_lshl_b32 s41, s51, 8")
    for r in range(4):
        for e in range(8):
            qq = 4 * e + r
            A("s_add_u32 s42, s41, 0x%x" % ((8 * r + e) * 32768))
            A("buffer_store_dwordx4 %s, v238, s[56:59], s42 offen sc1" % q("a", 4 * qq))
    A("s_waitcnt vmcnt(0) lgkmcnt(0)")
    A("s_lshl_b32 s44, s2, 7"); A("s_add_u32 s44, s44, %d" % M.F3)
    A("s_barrier")
    M.set_flag_w0(A, "f3", 44, 240, 241)
    A("s_mov_b32 s44, %d" % M.F3)
    M.poll(A, "f3", 44, 242, 244, 32, sleep=8)
    z_fetch(A, M); i_tabs(A, M); g2_setup(A, M); g2_early(A)
    A("s_mov_b32 s58, 0"); A("s_mov_b32 s55, 0"); A("s_mov_b32 s52, 0"); A("s_mov_b32 s53, 0")
    A("s_waitcnt vmcnt(0)")
    A("s_branch cf_end")
    A.label("cf_pack")
    A("s_nop 11")
    SC = M.LDS_SCR
    A("v_and_b32 v238, 15, v1"); A("v_lshl_add_u32 v238, v5, 6, v238")
    A("v_sub_u32 v239, %d, v238" % (2048 - 48 - 1792)); A("v_lshlrev_b32 v238, 3, v238"); A("v_lshlrev_b32 v239, 3, v239")
    A("v_add_u32 v238, 0x%x, v238" % SC); A("v_add_u32 v239, 0x%x, v239" % SC)
    for r in range(4):
        for ep in range(8): A("ds_write_b64 v238, %s offset:%d" % (p2(D + 16 * r + 2 * ep), 8 * (16 * r + 256 * ep)))
    A("s_mov_b64 exec, 1"); A("ds_write_b64 v238, %s offset:%d" % (p2(D), 8 * 2048)); A("s_mov_b64 exec, -1")
    A("s_mov_b32 s43, 0x%x" % (513 * 8192))
    wload(208, "a", 43)
    for r in range(4):
        for ep in range(8):
            w = W + 4 * ep + r; z = D + 16 * r + 2 * ep; u = U + 2 * (ep & 3); t = TMP + 2 * (ep & 3)
            A("v_lshlrev_b32 v%d, 16, v%d" % (u, w)); A("v_and_b32 v%d, s49, v%d" % (u + 1, w))
            A("v_pk_mul_f32 %s, %s, %s op_sel:[0,0] op_sel_hi:[1,0]" % (p2(t), p2(z), p2(u)))
            A("v_pk_fma_f32 %s, %s, %s, %s op_sel:[1,1,0] op_sel_hi:[0,1,1] neg_lo:[1,0,0]" % (p2(z), p2(z), p2(u), p2(t)))
    A("s_waitcnt vmcnt(0) lgkmcnt(0)")
    for rh in range(2):
        for r in (2 * rh, 2 * rh + 1):
            for ep in range(8): A("ds_read_b64 %s, v239 offset:%d" % (p2(W + 16 * (r & 1) + 2 * ep), 8 * (16 * (3 - r) + 256 * (7 - ep))))
        A("s_waitcnt lgkmcnt(0)")
        for r in (2 * rh, 2 * rh + 1):
            for ep in range(8):
                m = W + 16 * (r & 1) + 2 * ep; z = D + 16 * r + 2 * ep; u = U + 2 * (ep & 3)
                A("v_accvgpr_read_b32 v%d, a%d" % (u + 1, 208 + 4 * ep + r))
                A("v_lshlrev_b32 v%d, 16, v%d" % (u, u + 1)); A("v_and_b32 v%d, s49, v%d" % (u + 1, u + 1))
                A("v_pk_fma_f32 %s, %s, %s, %s op_sel:[0,0,0] op_sel_hi:[1,0,1] neg_hi:[1,0,0]" % (p2(z), p2(m), p2(u), p2(z)))
                A("v_pk_fma_f32 %s, %s, %s, %s op_sel:[1,1,0] op_sel_hi:[0,1,1]" % (p2(z), p2(m), p2(u), p2(z)))
                A("v_cvt_pk_bf16_f32 v%d, v%d, v%d" % (P + 8 * r + ep, z, z + 1))
    A("s_nop 1")
    A("s_branch cf_mul_done")
    A.label("cf_end")
```

```python
import sys, math, os
from asmlib import *
import gen as G
from gen import f32, bf16, TAB, KA, NAME, allreduce_add, stamp, STAMP

KN = NAME + "_kernel"
WS_XN = 0;            SZ_XN = 4 << 20
WS_Y = 4 << 20;       SZ_Y = 4 << 20
WS_WT = 8 << 20;      SZ_WT = 514 * 8192
WS_Z = 13 << 20;      SZ_Z = 4 << 20
WS_S = 17 << 20;      SZ_S = 4 << 20
WS_H = 21 << 20;      SZ_H = 16 * 112 * 8192
WS_FL = 35 << 20;     SZ_FL = 0xe0000
WS_XC = 36 << 20;     SZ_XC = 256 * 4 * 3 * 4096
F1, F2, F3, FB, FS, F2B, FH, FX = 0, 0x8000, 0x10000, 0x18000, 0x20000, 0x28000, 0x40000, 0x60000
LDS_SCR = 128 * 1024
LDS_T2 = 145 * 1024
LDS_SIZE = LDS_T2 + 4096
MF = "v_mfma_f32_16x16x32_bf16"
MF32 = "v_mfma_f32_32x32x16_bf16"
PX, PWR, PWI, PWG, PWU, PWD, POUT, PDBG, PWS = 4, 6, 8, 12, 14, 16, 18, 20, 22
SFL, STAB, SDBG = 24, 28, 32
TOK, WAVE = 70, 3
ENV = os.environ.get
BULK = ENV('BULK', ' sc1')
HLD = ENV('HLD', ' sc1')

def srd(A, d, base, off, size): G.srd(A, d, base, off, size)
def q(f, r): return "%s[%d:%d]" % (f, r, r + 3)
def p2(r): return "v[%d:%d]" % (r, r + 1)

def set_flag(A, soff, vz, vt, val=None, fl=" sc1"):
    A("v_mov_b32 v%d, s%d" % (vt, TOK if val is None else val))
    A("s_mov_b64 exec, 1")
    A("buffer_store_dword v%d, v%d, s[%d:%d], s%d offen%s" % (vt, vz, SFL, SFL + 3, soff, fl))
    A("s_mov_b64 exec, -1")

def set_flag_w0(A, tag, soff, vz, vt):
    A("s_cmp_lg_u32 s%d, 0" % WAVE); A("s_cbranch_scc1 sf_%s" % tag)
    set_flag(A, soff, vz, vt)
    A.label("sf_%s" % tag)

def poll(A, tag, soff, vaddr, vd, nl, width=1, first_hook=None, sleep=2):
    A("s_mov_b32 s68, 0x20000")
    ld = {1: "buffer_load_dword v%d" % vd, 4: "buffer_load_dwordx4 v[%d:%d]" % (vd, vd + 3)}[width]
    def rnd():
        if nl < 64: A("s_bfm_b64 exec, %d, 0" % nl)
        A("%s, v%d, s[%d:%d], s%d offen sc1" % (ld, vaddr, SFL, SFL + 3, soff))
        if nl < 64: A("s_mov_b64 exec, -1")
        A("s_waitcnt vmcnt(0)")
    def chk():
        if width == 4:
            for i in range(4): A("v_xor_b32 v%d, s%d, v%d" % (vd + i, TOK, vd + i))
            A("v_or3_b32 v%d, v%d, v%d, v%d" % (vd, vd, vd + 1, vd + 2)); A("v_or_b32 v%d, v%d, v%d" % (vd, vd, vd + 3))
            A("v_cmp_ne_u32 vcc, 0, v%d" % vd)
        else: A("v_cmp_ne_u32 vcc, s%d, v%d" % (TOK, vd))
        if nl < 64:
            A("s_nop 1")
            A("s_bfm_b64 s[66:67], %d, 0" % nl); A("s_and_b64 vcc, vcc, s[66:67]")
        A("s_nop 3")
    if first_hook:
        rnd(); first_hook(); chk(); A("s_cbranch_vccz pd_%s" % tag)
    A.label("pl_%s" % tag)
    rnd(); chk()
    A("s_cbranch_vccz pd_%s" % tag)
    A("s_sleep %d" % sleep)
    A("s_sub_u32 s68, s68, 1"); A("s_cmp_lg_u32 s68, 0"); A("s_cbranch_scc1 pl_%s" % tag)
    A.label("pd_%s" % tag)

def tab_dma(A, first, lds0, lds1):
    o = TAB.off(first)
    A("s_lshl_b32 s71, s%d, 12" % WAVE); A("s_add_u32 m0, s71, 0x%x" % lds0); A("s_add_u32 s71, s71, 0x%x" % o)
    for p in range(4): A("buffer_load_dwordx4 v3, s[%d:%d], s71 offen%s lds" % (STAB, STAB + 3, " offset:%d" % (p * 1024) if p else ""))
    A("s_lshl_b32 s71, s%d, 10" % WAVE); A("s_add_u32 m0, s71, 0x%x" % lds1); A("s_add_u32 s71, s71, 0x%x" % (o + 16384))
    A("buffer_load_dwordx4 v3, s[%d:%d], s71 offen lds" % (STAB, STAB + 3))
def tab_read(A, dst, name, first, va, d1):
    i = (TAB.off(name) - TAB.off(first)) // 1024
    A("ds_read_b128 %s, v%d offset:%d" % (dst, va, i * 1024 if i < 16 else d1 + (i - 16) * 1024))

def code_srd(A, d, lab):
    A("s_getpc_b64 s[%d:%d]" % (d, d + 1))
    A.label("cs_%s" % lab)
    A("s_add_u32 s%d, s%d, %s-cs_%s" % (d, d, lab, lab)); A("s_addc_u32 s%d, s%d, 0" % (d + 1, d + 1))
    A("s_and_b32 s%d, s%d, 0xffff" % (d + 1, d + 1))
    A("s_mov_b32 s%d, k_done-%s" % (d + 2, lab)); A("s_mov_b32 s%d, 0x20000" % (d + 3))

VWD = 244
def g1_decode(A):
    A("s_and_b32 s40, s2, 7"); A("s_lshr_b32 s41, s2, 3"); A("s_sub_u32 s41, s41, 4")
    A("s_and_b32 s42, s40, 1"); A("s_lshl_b32 s42, s42, 2"); A("s_and_b32 s43, s41, 3"); A("s_add_u32 s42, s42, s43")
    A("s_lshr_b32 s43, s40, 1"); A("s_mul_i32 s43, s43, 7"); A("s_lshr_b32 s44, s41, 2"); A("s_add_u32 s43, s43, s44")
    A("s_and_b32 s46, s%d, 1" % WAVE); A("s_lshr_b32 s47, s%d, 1" % WAVE)
def dmaX(buf):
    o = [["s_add_u32 m0, s64, 0x%x" % (buf * 32768), "buffer_load_dwordx4 v3, s[48:51], s60 offen%s lds" % BULK]]
    for p in range(1, 4): o.append(["buffer_load_dwordx4 v3, s[48:51], s60 offen offset:%d%s lds" % (p * 1024, BULK)])
    o[-1].append("s_add_u32 s60, s60, 0x4000")
    return o
def dmaW(buf, v):
    return [["s_add_u32 m0, s65, 0x%x" % (buf * 32768), "buffer_load_dwordx4 v%d, s[52:55], s61 offen lds" % v],
            ["buffer_load_dwordx4 v%d, s[52:55], s62 offen offset:1024 lds" % v],
            ["buffer_load_dwordx4 v%d, s[56:59], s61 offen offset:2048 lds" % v, "s_add_u32 s61, s61, %d" % (32 * 7168)],
            ["buffer_load_dwordx4 v%d, s[56:59], s62 offen offset:3072 lds" % v, "s_add_u32 s62, s62, %d" % (32 * 7168)]]
def flat(A, l):
    for x in l:
        for y in x: A(y)

def w_touch():
    return ["buffer_load_dword v16, v17, s[36:39], s69 offen", "s_add_u32 s69, s69, %d" % (128 * 7168)]
def w_touch_setup(A):
    A("s_cmp_lt_u32 s%d, 2" % WAVE); A("s_cselect_b32 s36, s%d, s%d" % (PWG, PWU)); A("s_cselect_b32 s37, s%d, s%d" % (PWG + 1, PWU + 1))
    A("s_and_b32 s37, s37, 0xffff"); A("s_mov_b32 s38, %d" % (1024 * 7168)); A("s_mov_b32 s39, 0x20000")
    A("s_cmp_lt_u32 s2, 32"); A("s_cselect_b32 s38, 0, s38")
    A("s_mul_i32 s69, s42, %d" % (16 * 7168)); A("s_lshl_b32 s41, s43, 8"); A("s_add_u32 s69, s69, s41"); A("s_lshl_b32 s41, s46, 7"); A("s_add_u32 s69, s69, s41")
    A("s_add_u32 s69, s69, %d" % (128 * 7168))
    A("v_mul_u32_u24 v17, 7168, v1"); A("v_lshrrev_b32 v16, 4, v1"); A("v_lshl_add_u32 v17, v16, 24, v17")
def g1_addr(A):
    A("v_mov_b32 v4, v%d" % VWD); A("v_lshlrev_b32 v243, 7, v1")
    A("s_lshl_b32 s40, s47, 13"); A("v_add_u32 v5, s40, v3"); A("v_add_u32 v6, 0x10000, v5")
    A("v_bfe_u32 v7, v1, 4, 1"); A("v_lshlrev_b32 v140, 12, v7")
    A("v_bfe_u32 v7, v1, 5, 1"); A("v_lshl_add_u32 v140, v7, 10, v140")
    A("v_bfe_u32 v7, v1, 2, 2"); A("v_lshl_add_u32 v140, v7, 8, v140")
    A("v_and_b32 v7, 3, v1"); A("v_lshl_add_u32 v140, v7, 3, v140"); A("v_add_u32 v140, 0x4000, v140")
    A("v_bfe_u32 v7, v1, 2, 3"); A("s_lshl_b32 s40, s46, 2"); A("v_xor_b32 v7, s40, v7")
    for t in range(4):
        A("v_xor_b32 v141, %d, v7" % t); A("v_lshl_add_u32 v%d, v141, 5, v140" % (8 + t)); A("v_add_u32 v%d, 0x10000, v%d" % (12 + t, 8 + t))

def phase_a(A):
    RS = 2080; XS = LDS_SCR; YT = 96 * 1024
    A("s_load_dwordx16 s[4:19], s[0:1], 0"); A("s_load_dwordx4 s[20:23], s[0:1], 64")
    A("s_memrealtime s[66:67]")
    if not ENV("NOCPF0"):
        code_srd(A, 36, "a_start"); A("s_bfe_u32 s40, s2, 0x30003"); A("s_lshl_b32 s40, s40, 13")
        A("v_and_b32 v5, 15, v0"); A("v_lshlrev_b32 v5, 7, v5"); A("v_lshrrev_b32 v6, 6, v0"); A("v_lshl_add_u32 v5, v6, 11, v5")
        A("s_mov_b64 exec, 0xffff"); A("buffer_load_dword v243, v5, s[36:39], s40 offen"); A("s_mov_b64 exec, -1")
        A.label("a_start")
    G.tab_srd(A, STAB, "a")
    A("v_and_b32 v1, 63, v0"); A("v_lshrrev_b32 v2, 6, v0")
    A("v_readfirstlane_b32 s%d, v2" % WAVE)
    A("v_lshlrev_b32 v3, 4, v1")
    A("s_and_b32 s36, s2, 7"); A("s_bfe_u32 s37, s2, 0x10003"); A("s_lshr_b32 s38, s2, 4")
    A("s_lshl_b32 s39, s38, 3"); A("s_add_u32 s39, s39, s36")
    A("s_lshl_b32 s44, s37, 21"); A("s_lshl_b32 s45, s39, 11"); A("s_add_u32 s63, s44, s45"); A("s_add_u32 s69, s63, 0x40000")
    A("v_lshl_add_u32 v4, v2, 19, v3")
    g1_decode(A)
    A("v_lshrrev_b32 v5, 4, v1"); A("s_lshl_b32 s48, s46, 2"); A("v_add_u32 v5, s48, v5")
    A("v_lshlrev_b32 v6, 1, v5"); A("v_and_b32 v7, 15, v1"); A("v_xor_b32 v6, v6, v7")
    A("s_lshl_b32 s48, s47, 4"); A("v_add_u32 v5, s48, v5")
    A("v_mul_u32_u24 v5, 7168, v5"); A("v_lshl_add_u32 v%d, v6, 4, v5" % VWD)
    A("s_lshl_b32 s61, s43, 8"); A("s_add_u32 s62, s61, %d" % (57344 - 1024))
    A("s_lshl_b32 s64, s%d, 12" % WAVE); A("s_add_u32 s65, s64, 0x4000")
    A("s_lshl_b32 s60, s42, 19"); A("s_add_u32 s60, s60, s64")
    A("s_waitcnt lgkmcnt(0)")
    srd(A, 48, PX, 0, 4 << 20)
    X = 8
    A("buffer_load_dwordx4 v[8:11], v4, s[48:51], s63 offen")
    A("buffer_load_dwordx4 v[12:15], v4, s[48:51], s63 offen offset:1024")
    A("buffer_load_dwordx4 v[16:19], v4, s[48:51], s69 offen")
    A("buffer_load_dwordx4 v[20:23], v4, s[48:51], s69 offen offset:1024")
    srd(A, SDBG, PDBG, 0, 256); srd(A, SFL, PWS, WS_FL, SZ_FL)
    VZ = 245
    A("v_mov_b32 v%d, 0" % VZ)
    A("s_or_b32 s44, s2, s%d" % WAVE); A("s_cmp_lg_u32 s44, 0"); A("s_cbranch_scc1 a_notok")
    A("s_or_b32 s66, s66, 1"); A("v_mov_b32 v246, s66")
    A("s_mov_b64 exec, 1")
    A("buffer_store_dword v246, v%d, s[%d:%d], 0 offen sc1" % (VZ, SDBG, SDBG + 3))
    A("s_mov_b64 exec, -1")
    A.label("a_notok")
    F1r = 64; TW = 72; F2r = 88; F2S = 120
    names = [("f1re", F1r), ("f1im", F1r + 4)]
    for bh in range(2):
        for t in range(2): names.append(("tw%d%d" % (bh, t), TW + 8 * bh + 4 * t))
    for dh in range(2):
        for part in range(2):
            for bh in range(2): names.append(("f2_%d%d%d" % (dh, part, bh), F2r + 16 * dh + 8 * part + 4 * bh))
    for part in range(2):
        for bh in range(2): names.append(("f2s_%d%d" % (part, bh), F2S + 8 * part + 4 * bh))
    WSZ = 2048 * 1026
    HL = 200; AB = 248
    def rel_loads(part):
      if part == 0:
        srd(A, 52, PWR, 0, WSZ); srd(A, 56, PWI, 0, WSZ)
        A("s_bfe_u32 s40, s2, 0x10002"); A("s_lshl_b32 s40, s40, 3"); A("s_lshr_b32 s41, s2, 3"); A("s_lshl_b32 s41, s41, 6"); A("s_add_u32 s40, s40, s41")
        A("s_mul_i32 s40, s40, 1026"); A("s_and_b32 s41, s2, 3"); A("s_lshl_b32 s41, s41, 8"); A("s_add_u32 s40, s40, s41")
        A("v_and_b32 v232, 7, v0"); A("v_lshrrev_b32 v233, 3, v0")
        A("v_lshrrev_b32 v234, 3, v1"); A("v_mul_u32_u24 v234, 1026, v234"); A("v_and_b32 v234, -16, v234")
        A("v_lshl_add_u32 v234, v232, 4, v234"); A("v_lshl_add_u32 v234, v2, 6, v234")
        A("v_lshlrev_b32 v235, 15, v233"); A("v_lshl_add_u32 v235, v232, 4, v235")
        A("s_mov_b32 s66, 0x1f1f1f1f"); A("s_mov_b32 s67, s66"); A("s_mov_b64 exec, s[66:67]")
        for mm_ in range(2):
            A("s_add_u32 m0, s64, 0x%x" % (mm_ * 32768))
            for r in range(4):
                A("s_add_u32 s41, s40, %d" % (r * (16 * 1026 - 1024)))
                A("buffer_load_dwordx4 v234, s[%d:%d], s41 offen%s lds" % (52 + 4 * mm_, 55 + 4 * mm_, " offset:%d" % (r * 1024) if r else ""))
        A("s_mov_b64 exec, -1")
      else:
        A("s_lshl_b32 s41, s2, 3"); A("v_add_u32 v236, s41, v232")
        A("v_sub_u32 v237, 2048, v236"); A("v_and_b32 v237, 0x7ff, v237")
        A("v_mul_u32_u24 v238, 1026, v236"); A("v_mul_u32_u24 v237, 1026, v237")
        A("s_cmp_lg_u32 s%d, 0" % WAVE); A("s_cbranch_scc1 a_noabl")
        A("s_mov_b64 exec, 0xff")
        for i, (va, sd, off) in enumerate([(238, 52, 0), (238, 56, 0), (237, 52, 0), (237, 56, 0), (238, 52, 1024), (238, 56, 1024), (237, 52, 1024), (237, 56, 1024)]):
            A("buffer_load_ushort v%d, v%d, s[%d:%d], 0 offen offset:%d" % (AB + i, va, sd, sd + 3, off))
        A("s_mov_b64 exec, -1")
        A.label("a_noabl")
    RELPOS = ENV("RELPOS", "1")
    NY = 0
    if RELPOS == "0": rel_loads(); NY += 16
    TR, XR, XG = 142, 143, 144
    A("v_lshrrev_b32 v7, 2, v1"); A("v_lshlrev_b32 v7, 6, v7"); A("v_and_b32 v%d, 3, v1" % TR)
    A("v_lshl_add_u32 v7, v%d, 3, v7" % TR); A("v_mul_u32_u24 v%d, %d, v2" % (TR, 2 * RS)); A("v_add_u32 v%d, v%d, v7" % (TR, TR)); A("v_add_u32 v%d, 0x%x, v%d" % (TR, XS, TR))
    A("v_and_b32 v7, 7, v1"); A("v_mul_u32_u24 v%d, %d, v7" % (XR, RS)); A("v_lshlrev_b32 v%d, 4, v7" % XG)
    A("v_bfe_u32 v7, v1, 3, 2"); A("v_lshl_add_u32 v%d, v7, 3, v%d" % (XR, XR)); A("v_lshl_add_u32 v%d, v7, 8, v%d" % (XG, XG))
    A("v_lshrrev_b32 v7, 5, v0"); A("v_lshl_add_u32 v%d, v7, 6, v%d" % (XR, XR)); A("v_lshl_add_u32 v%d, v7, 14, v%d" % (XG, XG))
    A("v_add_u32 v%d, 0x%x, v%d" % (XR, XS, XR))
    A("s_lshr_b32 s10, s39, 4"); A("s_lshl_b32 s10, s10, 19"); A("s_and_b32 s11, s39, 15"); A("s_lshl_b32 s11, s11, 10")
    A("s_add_u32 s10, s10, s11"); A("s_lshl_b32 s11, s37, 7"); A("s_add_u32 s10, s10, s11")
    XW = 141
    A("v_mul_u32_u24 v%d, %d, v2" % (XW, 2 * RS)); A("v_add_u32 v%d, v%d, v3" % (XW, XW)); A("v_add_u32 v%d, 0x%x, v%d" % (XW, XS, XW))
    tab_dma(A, "f1re", 112 * 1024, LDS_T2)
    MG, MP, MQ, YB, YR, YG = 136, 137, 138, 139, 146, 145
    A("v_and_b32 v5, 15, v1"); A("v_cmp_eq_u32 vcc, 0, v5"); A("v_mov_b32 v7, 0xffff")
    A("v_cndmask_b32 v%d, -1, 0, vcc" % MG); A("v_cndmask_b32 v%d, 0, v7, vcc" % MP); A("v_lshlrev_b32 v%d, 16, v%d" % (MQ, MP))
    A("v_and_b32 v7, 3, v1"); A("v_lshlrev_b32 v7, 5, v7"); A("v_lshl_add_u32 v%d, v1, 7, v7" % YB); A("v_lshl_add_u32 v%d, v2, 3, v%d" % (YB, YB))
    A("v_add_u32 v%d, 0x%x, v%d" % (YB, YT, YB))
    for r in range(1, 4): A("v_xor_b32 v%d, %d, v%d" % (196 + r, 32 * r, YB))
    A("v_lshlrev_b32 v%d, 4, v0" % YR); A("v_add_u32 v%d, 0x%x, v%d" % (YR, YT, YR))
    A("v_lshrrev_b32 v7, 3, v0"); A("v_lshlrev_b32 v%d, 15, v7" % YG); A("v_and_b32 v7, 3, v7"); A("v_lshlrev_b32 v7, 1, v7")
    A("v_and_b32 v6, 7, v0"); A("v_xor_b32 v7, v7, v6"); A("v_lshl_add_u32 v%d, v7, 4, v%d" % (YG, YG))
    A("s_waitcnt vmcnt(5)")
    stamp(A, 2)
    A("s_mov_b32 s45, 0xffff0000")
    U = 24
    for row in range(2):
        for i in range(8):
            A("v_lshlrev_b32 v%d, 16, v%d" % (U + 16 * row + 2 * i, X + 8 * row + i))
            A("v_and_b32 v%d, s45, v%d" % (U + 16 * row + 2 * i + 1, X + 8 * row + i))
    rel_loads(0)
    S = [56, 57]; T = [58, 59]; Q = [60, 61]
    def tree(dst):
        for row in range(2):
            b = X + 8 * row
            A("v_pk_add_f32 %s, %s, %s" % (p2(b), p2(b), p2(b + 4))); A("v_pk_add_f32 %s, %s, %s" % (p2(b + 2), p2(b + 2), p2(b + 6)))
        for row in range(2): A("v_pk_add_f32 %s, %s, %s" % (p2(X + 8 * row), p2(X + 8 * row), p2(X + 8 * row + 2)))
        for row in range(2): A("v_add_f32 v%d, v%d, v%d" % (dst[row], X + 8 * row, X + 8 * row + 1))
    for row in range(2):
        for i in range(4): A("v_pk_add_f32 %s, %s, %s" % (p2(X + 8 * row + 2 * i), p2(U + 16 * row + 2 * i), p2(U + 16 * row + 8 + 2 * i)))
    tree(S)
    allreduce_add(A, S, T)
    A("s_mov_b32 s44, 0x%x" % f32(1.0 / 1024))
    for row in range(2): A("v_mul_f32 v%d, s44, v%d" % (S[row], S[row]))
    DV = 164
    sel = lambda row: " op_sel:[0,%d] op_sel_hi:[1,%d] neg_lo:[0,1] neg_hi:[0,1]" % (row, row)
    for row in range(2):
        for i in range(8): A("v_pk_add_f32 %s, %s, v[56:57]%s" % (p2(DV + 16 * row + 2 * i), p2(U + 16 * row + 2 * i), sel(row)))
    for row in range(2):
        for i in range(4): A("v_pk_mul_f32 %s, %s, %s" % (p2(X + 8 * row + 2 * i), p2(DV + 16 * row + 2 * i), p2(DV + 16 * row + 2 * i)))
    for row in range(2):
        for i in range(4): A("v_pk_fma_f32 %s, %s, %s, %s" % (p2(X + 8 * row + 2 * i), p2(DV + 16 * row + 8 + 2 * i), p2(DV + 16 * row + 8 + 2 * i), p2(X + 8 * row + 2 * i)))
    tree(Q)
    A("v_cvt_pk_bf16_f32 v62, v56, v57")
    allreduce_add(A, Q, T)
    A("v_lshlrev_b32 v56, 16, v62"); A("v_and_b32 v57, s45, v62")
    for row in range(2): A("v_mul_f32 v%d, s44, v%d" % (Q[row], Q[row]))
    def rnd2():
        A("v_cvt_pk_bf16_f32 v58, v60, v61"); A("v_lshlrev_b32 v60, 16, v58"); A("v_and_b32 v61, s45, v58")
    rnd2()
    for row in range(2): A("v_add_f32 v%d, 0x%x, v%d" % (Q[row], f32(1e-5), Q[row]))
    rnd2()
    for row in range(2): A("v_sqrt_f32 v%d, v%d" % (Q[row], Q[row]))
    rnd2()
    for row in range(2): A("v_rcp_f32 v%d, v%d" % (Q[row], Q[row]))
    A("buffer_load_dword v247, v%d, s[%d:%d], 0 offen sc1" % (VZ, SDBG, SDBG + 3))
    for row in range(2):
        b = U + 16 * row
        for i in range(8): A("v_pk_add_f32 %s, %s, v[56:57]%s" % (p2(b + 2 * i), p2(b + 2 * i), sel(row)))
        for i in range(8): A("v_cvt_pk_bf16_f32 v%d, v%d, v%d" % (X + 8 * row + i, b + 2 * i, b + 2 * i + 1))
        for i in range(8):
            A("v_lshlrev_b32 v%d, 16, v%d" % (b + 2 * i, X + 8 * row + i)); A("v_and_b32 v%d, s45, v%d" % (b + 2 * i + 1, X + 8 * row + i))
        for i in range(8): A("v_pk_mul_f32 %s, %s, v[60:61] op_sel:[0,%d] op_sel_hi:[1,%d]" % (p2(b + 2 * i), p2(b + 2 * i), row, row))
        for i in range(8): A("v_cvt_pk_bf16_f32 v%d, v%d, v%d" % (X + 8 * row + i, b + 2 * i, b + 2 * i + 1))
        A("ds_write_b128 v%d, v[%d:%d] offset:%d" % (XW, X + 8 * row, X + 8 * row + 3, row * RS))
        A("ds_write_b128 v%d, v[%d:%d] offset:%d" % (XW, X + 8 * row + 4, X + 8 * row + 7, row * RS + 1024))
    srd(A, 48, PWS, WS_XN, SZ_XN)
    A("s_waitcnt lgkmcnt(0)")
    for row in range(2):
        for bh in range(2):
            for hh in range(2):
                r = X + 8 * row + 4 * bh + 2 * hh
                A("ds_read_b64_tr_b16 v[%d:%d], v%d offset:%d" % (r, r + 1, TR, row * RS + hh * 1024 + bh * 32))
    A("s_waitcnt vmcnt(9)")
    A("s_barrier")
    XO = 148
    for it in range(4):
        A("ds_read_b64 v[%d:%d], v%d offset:%d" % (XO + 4 * it, XO + 4 * it + 1, XR, it * 512))
        A("ds_read_b64 v[%d:%d], v%d offset:%d" % (XO + 4 * it + 2, XO + 4 * it + 3, XR, it * 512 + 32))
    for it in range(4):
        A("s_add_u32 s41, s10, 0x%x" % (it * 8 * 16384))
        A("s_waitcnt lgkmcnt(%d)" % (6 - 2 * it))
        A("buffer_store_dwordx4 v[%d:%d], v%d, s[48:51], s41 offen sc1" % (XO + 4 * it, XO + 4 * it + 3, XG))
    stamp(A, 3)
    A("v_add_u32 v7, 0x%x, v3" % (112 * 1024))
    for nm, r in names: tab_read(A, vr(r, 4), nm, "f1re", 7, LDS_T2 - 112 * 1024)
    A("s_waitcnt lgkmcnt(12)")
    for row in range(2):
        for bh in range(2):
            for part in range(2):
                d = U + 16 * row + 8 * bh + 4 * part
                A("%s %s, %s, %s, 0" % (MF, q("v", d), q("v", X + 8 * row + 4 * bh), q("v", F1r + 4 * part)))
    PP, PQ = 164, 180
    neg = " neg_lo:[1,0,0] neg_hi:[1,0,0]"
    for row in range(2):
        for bh in range(2):
            re = U + 16 * row + 8 * bh; im = re + 4; tc = TW + 8 * bh; ts = tc + 4; t = 56
            for h in (0, 2): A("v_pk_mul_f32 %s, %s, %s" % (p2(t + h), p2(re + h), p2(tc + h)))
            for h in (0, 2): A("v_pk_mul_f32 %s, %s, %s" % (p2(t + 4 + h), p2(im + h), p2(tc + h)))
            for h in (0, 2): A("v_pk_fma_f32 %s, %s, %s, %s" % (p2(t + h), p2(im + h), p2(ts + h), p2(t + h)))
            for h in (0, 2): A("v_pk_fma_f32 %s, %s, %s, %s%s" % (p2(t + 4 + h), p2(re + h), p2(ts + h), p2(t + 4 + h), neg))
            for r in range(4): A("v_cvt_pk_bf16_f32 v%d, v%d, v%d" % (re + r, t + r, t + 4 + r))
            for r in range(4):
                o = 8 * row + 4 * bh + r
                A("v_and_b32 v%d, v%d, v%d" % (X + o, re + r, MG)); A("v_and_b32 v%d, v%d, v%d" % (PP + o, re + r, MP)); A("v_and_b32 v%d, v%d, v%d" % (PQ + o, re + r, MQ))
    A("v_lshlrev_b32 v240, 1, v232"); A("v_and_b32 v240, 12, v240"); A("v_lshl_add_u32 v240, v232, 7, v240")
    A("v_and_b32 v241, 0x38, v1"); A("v_add_u32 v240, v240, v241"); A("v_lshl_add_u32 v240, v2, 12, v240")
    A("v_and_b32 v239, 1, v0"); A("v_lshlrev_b32 v239, 4, v239")
    A("s_waitcnt vmcnt(5)")
    for r in range(4):
        for mm_ in range(2):
            b = HL + 8 * r + 4 * mm_
            for d in range(3): A("ds_read_b32 v%d, v240 offset:%d" % (b + d, mm_ * 32768 + r * 1024 + 4 * d))
    A("s_waitcnt vmcnt(0)")
    A("v_readfirstlane_b32 s%d, v247" % TOK)
    A("s_barrier")
    A("s_cmp_lg_u32 s%d, 0" % TOK); A("s_cbranch_scc1 a_tok")
    A("s_mov_b32 s68, 0x20000")
    A.label("a_tokl")
    A("buffer_load_dword v247, v%d, s[%d:%d], 0 offen sc1" % (VZ, SDBG, SDBG + 3)); A("s_waitcnt vmcnt(0)")
    A("v_readfirstlane_b32 s%d, v247" % TOK)
    A("s_sub_u32 s68, s68, 1"); A("s_cmp_eq_u32 s68, 0"); A("s_cbranch_scc1 a_tok")
    A("s_cmp_eq_u32 s%d, 0" % TOK); A("s_cbranch_scc1 a_tokl")
    A.label("a_tok")
    A("s_cmp_lg_u32 s%d, 0" % WAVE); A("s_cbranch_scc1 a_nof1")
    A("s_lshl_b32 s41, s2, 7")
    set_flag(A, 41, VZ, 246)
    A.label("a_nof1")
    stamp(A, 4)
    rel_loads(1)
    srd(A, 52, PWG, 0, 1024 * 7168); srd(A, 56, PWU, -2048, 1024 * 7168 + 2048)
    A("s_cmp_lt_u32 s2, 32"); A("s_cselect_b32 s54, 0, s54"); A("s_cselect_b32 s58, 0, s58")
    A("s_waitcnt lgkmcnt(0)")
    A("s_mov_b32 s66, 0x05040100"); A("s_mov_b32 s67, 0x07060302")
    m = []
    for row in range(2):
        for bh in range(2):
            for dh in range(2):
                for part in range(2):
                    d = U + 16 * row + 8 * dh + 4 * part
                    m.append("%s %s, %s, %s, %s" % (MF, q("v", d), q("v", F2r + 16 * dh + 8 * part + 4 * bh), q("v", X + 8 * row + 4 * bh), "0" if bh == 0 else q("v", d)))
        for bh in range(2):
            for dh in range(2):
                for part in range(2):
                    d = U + 16 * row + 8 * dh + 4 * part
                    m.append("%s %s, %s, %s, %s" % (MF, q("v", d), q("v", F2S + 8 * part + 4 * bh), q("v", (PP if dh == 0 else PQ) + 8 * row + 4 * bh), q("v", d)))
    B = Asm()
    WO = 148
    for r in range(4):
        for mm_ in range(2):
            b = HL + 8 * r + 4 * mm_
            B("v_alignbit_b32 v%d, v%d, v%d, v239" % (b, b + 1, b)); B("v_alignbit_b32 v%d, v%d, v%d, v239" % (b + 1, b + 2, b + 1))
    for c in range(4):
        for r in range(4): B("v_perm_b32 v%d, v%d, v%d, s%d" % (WO + 4 * c + r, HL + 8 * r + 4 + (c >> 1), HL + 8 * r + (c >> 1), 66 + (c & 1)))
    for i in range(16): B("v_accvgpr_write_b32 a%d, v%d" % (176 + i, WO + i))
    s2 = interleave(m, dmaW(0, VWD) + dmaW(1, VWD) + dmaW(2, VWD), 0, 32)
    C = Asm(); g1_addr(C)
    s1 = interleave(m, [t for k, t in C.items], 17, 32)
    s3 = interleave(m, [t for k, t in B.items], 0, 20)
    for k, x in enumerate(m):
        A(x)
        for y in s2[k] + s1[k] + s3[k]: A(y)
    A("s_lshl_b32 s10, s36, 12"); A("s_lshl_b32 s41, s38, 8"); A("s_add_u32 s10, s10, s41"); A("s_lshl_b32 s41, s37, 7"); A("s_add_u32 s10, s10, s41")
    A("s_and_b32 s11, s2, 3"); A("s_lshl_b32 s11, s11, 20"); A("s_lshr_b32 s41, s2, 2"); A("s_lshl_b32 s41, s41, 7"); A("s_add_u32 s11, s11, s41")
    A("s_add_u32 s11, s11, 0x%x" % (WS_WT - WS_Y))
    if not ENV("NOWT"):
        w_touch_setup(A)
        for i in range(2):
            for y in w_touch(): A(y)
    A("s_cmp_lt_u32 s2, 32"); A("s_cbranch_scc1 a_nox")
    A("s_lshl_b32 s44, s42, 12")
    if ENV("AIT"): stamp(A, 8, force=True)
    poll(A, "f1", 44, 243, 246, 32)
    stamp(A, 5)
    for b in range(3): flat(A, dmaX(b))
    A("s_branch a_x")
    A.label("a_nox")
    A("s_waitcnt vmcnt(0)")
    A.label("a_x")
    if ENV("AIT") == "2": stamp(A, 7, force=True)
    srd(A, 32, PWS, WS_Y, (WS_WT - WS_Y) + SZ_WT)
    A("s_cmp_lg_u32 s%d, 0" % WAVE); A("s_cbranch_scc1 a_noab")
    for i in range(8): A("v_lshlrev_b32 v%d, 16, v%d" % (AB + i, AB + i))
    A("v_add_f32 v80, v248, v250"); A("v_sub_f32 v81, v249, v251"); A("v_add_f32 v82, v252, v254"); A("v_sub_f32 v83, v253, v255")
    A("v_add_f32 v84, v80, v82"); A("v_add_f32 v85, v81, v83"); A("v_sub_f32 v86, v80, v82"); A("v_sub_f32 v87, v81, v83")
    for i in range(4): A("v_mul_f32 v%d, 0x3e800000, v%d" % (84 + i, 84 + i))
    A("v_cvt_pk_bf16_f32 v84, v84, v85"); A("v_cvt_pk_bf16_f32 v86, v86, v87")
    A("v_and_b32 v80, 15, v236"); A("v_lshlrev_b32 v80, 4, v80"); A("v_bfe_u32 v81, v236, 4, 2"); A("v_lshl_add_u32 v80, v81, 2, v80")
    A("v_lshrrev_b32 v81, 6, v236"); A("v_lshl_add_u32 v80, v81, 8, v80")
    A("s_mov_b32 s40, 0x%x" % (WS_WT - WS_Y + 512 * 8192)); A("s_mov_b32 s41, 0x%x" % (WS_WT - WS_Y + 513 * 8192))
    A("s_mov_b64 exec, 0xff")
    A("buffer_store_dword v84, v80, s[32:35], s40 offen sc1"); A("buffer_store_dword v86, v80, s[32:35], s41 offen sc1")
    A("s_mov_b64 exec, -1")
    A.label("a_noab")
    A("s_nop 4")
    YP = 64
    for row in range(2):
        for dh in range(2):
            for r in range(4):
                re = U + 16 * row + 8 * dh + r
                A("v_cvt_pk_bf16_f32 v%d, v%d, v%d" % (YP + 8 * dh + 2 * r + row, re, re + 4))
    for dh in range(2):
        for r in range(4):
            A("ds_write_b64 v%d, %s offset:%d" % (YB if r == 0 else 196 + r, p2(YP + 8 * dh + 2 * r), dh * 8192))
    A("s_lshl_b32 s63, s2, 7"); A("s_add_u32 s63, s63, %d" % F2)
    A("v_mov_b32 v18, v%d" % YG); A("v_mov_b32 v19, v235")
    if ENV("AIT") == "2": stamp(A, 9, force=True)
    A("v_mov_b32 v28, v243"); A("v_mov_b32 v29, 0")
    A("s_waitcnt vmcnt(8) lgkmcnt(0)")
    if ENV("AIT") == "2": stamp(A, 10, force=True)
    A("s_barrier")
    for it in range(4): A("ds_read_b128 %s, v%d offset:%d" % (q("a", 160 + 4 * it), YR, it * 4096))

def late_stores():
    o = []
    for it in range(4):
        o.append(["buffer_store_dwordx4 %s, v18, s[32:35], s10 offen sc1" % q("a", 160 + 4 * it), "s_add_u32 s10, s10, 0x%x" % (32 * 32768)])
    for c in range(4):
        o.append(["buffer_store_dwordx4 %s, v19, s[32:35], s11 offen sc1" % q("a", 176 + 4 * c), "s_add_u32 s11, s11, 8192"])
    return o

from gen2b import gemm1, colfft, gemm2

def main():
    G.build_tables(); G.build_tables_inv()
    A = Asm(); G.kernel_head(A, KN)
    A("s_cmp_ge_u32 s2, 256"); A("s_cbranch_scc1 k_done")
    stamp(A, 0); stamp(A, 1, True)
    M = sys.modules[__name__]
    phase_a(A)
    A("s_cmp_lt_u32 s2, 32"); A("s_cbranch_scc1 k_fft")
    gemm1(A, M)
    A.label("k_g2")
    gemm2(A, M)
    A("s_endpgm")
    A.label("k_fft")
    colfft(A, M)
    A("s_branch k_g2")
    A.label("k_done"); A("s_endpgm")
    A.fix()
    stub = open("cdna_kernels/%s.s.ref" % NAME).read().split("\n")
    head = [l for l in stub if l.startswith(";") and "@launch" not in l and "Override" not in l and "grid=ceil" not in l]
    o = "\n".join(head[:12]) + "\n"
    if ENV("ASLIST"): o += "; @launch kernel=%s grid=(256,1,1) block=(256,1,1) lds=%d\n" % (KN, LDS_SIZE)
    else: o += "; @launch grid=(256,1,1) block=(256,1,1) lds=%d\n" % LDS_SIZE
    o += '.amdgcn_target "amdgcn-amd-amdhsa--gfx950"\n'
    o += A.text() + G.kernel_desc(KN, 512, 256, 72)
    o += '.section .rodata,"a"\n.p2align 8\n.type gf_tab,@object\ngf_tab:\n'
    for b in TAB.blocks:
        for i in range(0, 256, 8): o += ".long " + ",".join("0x%x" % x for x in b[i:i + 8]) + "\n"
    o += ".size gf_tab, %d\n" % (len(TAB.blocks) * 1024)
    path = sys.argv[1] if len(sys.argv) > 1 else "cdna_kernels/%s.s" % NAME
    open(path, "w").write(o)
    print("wrote", path, len(o), "bytes")

if __name__ == "__main__":
    main()
```

```python
from asmlib import *
import math, os
import gen as G
from gen import stamp, f32
ENV = os.environ.get
MF = "v_mfma_f32_16x16x32_bf16"
MF32 = "v_mfma_f32_32x32x16_bf16"
def q(f, r): return "%s[%d:%d]" % (f, r, r + 3)
def p2(r): return "v[%d:%d]" % (r, r + 1)

ZL = 128 * 1024
I1, I1S, I2 = 160, 192, 208
DV = [5, 6, 14, 15]
def g2_setup(A, M, DV=DV, t0=7, t1=13):
    W = M.WAVE
    A("s_bfe_u32 s44, s2, 0x20001"); A("s_and_b32 s42, s2, 1"); A("s_lshl_b32 s42, s42, 2"); A("s_bfe_u32 s43, s2, 0x20003"); A("s_add_u32 s42, s42, s43")
    A("s_lshr_b32 s43, s2, 5")
    d0, d1, d2, d3 = DV
    A("v_lshrrev_b32 v%d, 4, v1" % t0); A("v_lshlrev_b32 v%d, 11, v%d" % (t1, t0))
    A("v_lshlrev_b32 v%d, 1, v%d" % (t0, t0)); A("v_and_b32 v%d, 15, v1" % d0); A("v_xor_b32 v%d, v%d, v%d" % (t0, t0, d0))
    A("v_lshl_add_u32 v%d, v%d, 4, v%d" % (d0, t0, t1)); A("v_xor_b32 v%d, 0x80, v%d" % (d1, d0))
    A("v_add_u32 v%d, 0x%x, v%d" % (d2, 2 * 7168, d0)); A("v_add_u32 v%d, 0x%x, v%d" % (d3, 3 * 7168, d1)); A("v_add_u32 v%d, 0x%x, v%d" % (d1, 7168, d1))
    M.srd(A, 48, M.PWD, 0, 3584 * 2048)
    A("s_mul_i32 s45, s44, %d" % (896 * 2048)); A("s_lshl_b32 s61, s43, 8"); A("s_add_u32 s61, s61, s45")
    A("s_add_u32 s62, s61, %d" % (896 * 2048))
    A("s_lshl_b32 s45, s%d, 17" % W); A("s_add_u32 s61, s61, s45")
    A("s_lshl_b32 s64, s%d, 13" % W)
def g2_dma(par, p, DV=DV):
    o = []
    if p % 4 == 0: o.append("s_add_u32 m0, s64, 0x%x" % (par * 32768 + (p >> 2) * 4096))
    o.append("buffer_load_dwordx4 v%d, s[48:51], s61 offen%s lds" % (DV[p & 3], " offset:%d" % ((p & 3) * 1024) if p & 3 else ""))
    if p == 3: o.append("s_add_u32 s61, s61, 0x8000")
    if p == 7:
        o.append("s_add_u32 s61, s61, 0x%x" % (256 * 2048 - 0x8000))
        o += ["s_cmp_ge_u32 s61, s62", "s_cselect_b32 s65, %d, 0" % ((896 - 32) * 2048), "s_cselect_b32 s62, -1, s62", "s_sub_u32 s61, s61, s65"]
        if par == 1: o.append("s_xor_b32 s64, s64, 0x10000")
    return o
def g2_dma_of(s):
    u = (s + 2) & 7; par = u >> 2; p = 2 * (u & 3)
    return g2_dma(par, p), g2_dma(par, p + 1)
def z_fetch(A, M, t0=7, t1=13, zs=56):
    W = M.WAVE
    M.srd(A, zs, M.PWS, M.WS_Z, M.SZ_Z)
    A("v_lshrrev_b32 v%d, 4, v1" % t0); A("v_and_b32 v%d, 7, v1" % t1); A("v_xor_b32 v%d, v%d, v%d" % (t0, t0, t1)); A("v_lshlrev_b32 v%d, 4, v%d" % (t0, t0))
    A("v_lshrrev_b32 v%d, 3, v1" % t1); A("v_lshl_add_u32 v%d, v%d, 8, v%d" % (t0, t1, t0)); A("v_xor_b32 v%d, 64, v%d" % (t1, t0))
    A("s_lshr_b32 s40, s2, 1"); A("s_lshl_b32 s40, s40, 15"); A("s_and_b32 s41, s2, 1"); A("s_lshl_b32 s41, s41, 7"); A("s_add_u32 s40, s40, s41")
    A("s_lshl_b32 s41, s%d, 13" % W); A("s_add_u32 s40, s40, s41")
    A("s_lshl_b32 s41, s%d, 12" % W); A("s_add_u32 m0, s41, 0x%x" % ZL)
    for p in range(4):
        A("buffer_load_dwordx4 v%d, s[%d:%d], s40 offen%s sc1 lds" % (t0 if p % 2 == 0 else t1, zs, zs + 3, " offset:%d" % (p * 1024) if p else ""))
        A("s_add_u32 s40, s40, 1024")
def i_tabs(A, M): M.tab_dma(A, "i1_000", 96 * 1024, 112 * 1024)
def io_addr(A, M, va, vt):
    A("v_lshrrev_b32 v%d, 2, v1" % va); A("v_lshlrev_b32 v%d, 18, v%d" % (va, va)); A("v_lshl_add_u32 v%d, v2, 13, v%d" % (va, va))
    A("v_and_b32 v%d, 3, v1" % vt); A("v_lshl_add_u32 v%d, v%d, 4, v%d" % (va, vt, va))
    A("s_and_b32 s8, s2, 1"); A("s_lshl_b32 s8, s8, 17"); A("s_bfe_u32 s9, s2, 0x20003"); A("s_lshl_b32 s9, s9, 15"); A("s_add_u32 s8, s8, s9")
    A("s_lshr_b32 s9, s2, 5"); A("s_lshl_b32 s9, s9, 8"); A("s_add_u32 s8, s8, s9"); A("s_bfe_u32 s9, s2, 0x20001"); A("s_lshl_b32 s9, s9, 6"); A("s_add_u32 s8, s8, s9")
    A("s_add_u32 s9, s8, 0x1000")
def x_fetch(A, M, va, vt, sd):
    io_addr(A, M, va, vt); M.srd(A, sd, M.PX, 0, 4 << 20)
    for i in range(4): A("buffer_load_dwordx4 %s, v%d, s[%d:%d], s%d offen offset:%d" % (q("a", 240 + 4 * i), va, sd, sd + 3, 8 + (i >> 1), (i & 1) * 2048))
def g2_early(A):
    for s in range(-10, 0):
        d0, d1 = g2_dma_of(s)
        for y in d0 + d1: A(y)
HB = [192, 196, 208, 212, 224, 228, 240, 244]

def gemm1(A, M):
    W = M.WAVE; VWD = M.VWD
    def dma(b): return (M.dmaW(b, 4) + M.dmaX(b)) if ENV('WFIRST', '0') == '1' else (M.dmaX(b) + M.dmaW(b, 4))
    def acc(it, jt):
        return ("v", 32 + (jt * 8 + it) * 4) if jt < 7 else ("a", 128 + it * 4)
    def reads(buf, st):
        base = 64 * st; hi = buf >> 1; off = (buf & 1) * 32768
        o = []; la = []; lb = []
        for it in range(8):
            mat, t = it >> 2, it & 3
            for h in range(2):
                r = base + 4 * it + 2 * h
                la.append("ds_read_b64_tr_b16 a[%d:%d], v%d offset:%d" % (r, r + 1, (12 if hi else 8) + t, off + h * 8192 + mat * 2048))
        for jt in range(8):
            r = base + 32 + 4 * jt
            lb.append("ds_read_b128 a[%d:%d], v%d offset:%d" % (r, r + 3, 6 if hi else 5, off + jt * 1024))
        for i in range(8): o += [lb[i], la[2 * i], la[2 * i + 1]]
        return o
    def mfmas(st, first=False):
        base = 64 * st; o = []
        for jt in range(8):
            for it in range(8):
                f, d = acc(it, jt); dd = q(f, d)
                o.append("%s %s, %s, %s, %s" % (MF, dd, q("a", base + 4 * it), q("a", base + 32 + 4 * jt), "0" if first else dd))
        return o
    def step(i, dmas, do_read, vm, first=False, rd0=1, mid=None, extra=None):
        m = mfmas(i & 1, first)
        s1 = interleave(m, reads((i + 1) & 3, (i + 1) & 1), rd0, 56 if rd0 > 1 else 52) if do_read else [[] for _ in m]
        dl = []
        for b_ in dmas: dl += dma(b_)
        if extra: dl += extra
        s2 = interleave(m, dl, rd0 if mid is not None else 0, 64) if dl else [[] for _ in m]
        for k, x in enumerate(m):
            A(x)
            if mid is not None and k == rd0 - 1:
                nv = sum(1 for kk in range(k + 1) for y in s2[kk] if y.startswith("buffer"))
                for y in s2[k]: A(y)
                A("s_waitcnt vmcnt(%d)" % (mid + nv)); A("s_barrier")
                continue
            for y in s2[k] + s1[k]: A(y)
        if vm is not None:
            A("s_waitcnt vmcnt(%d) lgkmcnt(0)" % vm); A("s_barrier")
    for x in reads(0, 0): A(x)
    A("s_waitcnt lgkmcnt(0)")
    stamp(A, 6)
    ls = M.late_stores()
    wt = [] if ENV("NOWT") else [M.w_touch()]
    if ENV("S0", "0") == "0":
        step(0, [3], True, 12, first=True, rd0=8, mid=4, extra=ls[:4])
        if ENV("G1IT"): stamp(A, 2)
        step(1, [0], True, 12, extra=ls[4:])
        M.set_flag_w0(A, "f2y", 63, 29, 30)
        A("s_add_u32 s63, s63, %d" % (M.F2B - M.F2))
        if ENV("G1IT"): stamp(A, 3)
        step(2, [1, 2], True, 20)
        M.srd(A, 32, M.PWD, 0, 3584 * 2048)
        A("s_sub_u32 s10, s2, 32"); A("s_lshl_b32 s10, s10, 15")
        A("v_mul_u32_u24 v20, 1280, v2"); A("v_lshl_add_u32 v20, v1, 7, v20"); A("v_cmp_lt_u32 vcc, 9, v1"); A("v_cndmask_b32 v20, v20, 2.0, vcc")
        wt = wt + [["buffer_load_dword v18, v20, s[32:35], s10 offen", "s_add_u32 s10, s10, 5120"]]
        step(3, [3], True, 16 + len(wt), extra=wt)
    else:
        step(0, [3, 0], True, 16, first=True, rd0=8, mid=4)
        if ENV("G1IT"): stamp(A, 2)
        step(1, [1], True, 20, extra=ls[:4])
        if ENV("G1IT"): stamp(A, 3)
        step(2, [2], True, 24, extra=ls[4:])
        step(3, [3], True, 8)
    M.set_flag_w0(A, "f2g", 63, 29, 30)
    if ENV("G1IT"): stamp(A, 4)
    A("s_mov_b32 s45, 6")
    A.raw(".p2align 6")
    A.label("g1_loop")
    for i in range(4): step(i, [i], True, 16 + (len(wt) if i != 2 else 0), extra=wt if i == 3 else None)
    A("s_cmp_lg_u32 s45, 4"); A("s_cbranch_scc1 g1_nx")
    x_fetch(A, M, 21, 22, 12)
    A.label("g1_nx")
    if not ENV("NOCPF"):
        A("s_cmp_lg_u32 s45, 2"); A("s_cbranch_scc1 g1_npf")
        if not ENV("NOWDL2"):
            A("s_lshr_b32 s40, s2, 3"); A("s_sub_u32 s40, s40, 4"); A("s_and_b32 s41, s40, 1"); A("s_lshr_b32 s40, s40, 1")
            A("s_bfe_u32 s44, s2, 0x20001"); A("s_mul_i32 s44, s44, 14"); A("s_add_u32 s40, s40, s44"); A("s_lshl_b32 s40, s40, 2"); A("s_add_u32 s40, s40, s41")
            A("s_add_u32 s40, s40, 2"); A("s_lshl_b32 s40, s40, 15")
            A("v_lshlrev_b32 v21, 7, v0"); A("buffer_load_dword v23, v21, s[32:35], s40 offen")
        M.code_srd(A, 4, "g1_npf"); A("s_bfe_u32 s40, s2, 0x20003"); A("s_lshl_b32 s40, s40, 13")
        A("v_lshlrev_b32 v21, 7, v1"); A("v_lshl_add_u32 v21, v2, 11, v21"); A("v_lshrrev_b32 v22, 4, v1"); A("v_lshl_add_u32 v21, v22, 24, v21")
        A("buffer_load_dword v19, v21, s[4:7], s40 offen")
        A("s_load_dwordx2 s[4:5], s[0:1], 0")
    A.label("g1_npf")
    A("s_sub_u32 s45, s45, 1"); A("s_cmp_lg_u32 s45, 0"); A("s_cbranch_scc1 g1_loop")
    if ENV("G1IT"): stamp(A, 5)
    M.srd(A, 36, M.PWS, M.WS_H, M.SZ_H)
    A("s_bfe_u32 s40, s2, 0x20001"); A("s_lshl_b32 s41, s42, 2"); A("s_add_u32 s41, s41, s40")
    A("s_mul_i32 s40, s40, 7"); A("s_sub_u32 s40, s43, s40")
    A("s_lshl_b32 s55, s41, 3"); A("s_add_u32 s55, s55, s40"); A("s_lshl_b32 s55, s55, 7"); A("s_add_u32 s55, s55, %d" % M.FB)
    A("s_lshl_b32 s40, s40, 1"); A("s_add_u32 s40, s40, s46")
    A("s_mul_i32 s52, s41, 28"); A("s_add_u32 s52, s52, s40"); A("s_lshl_b32 s52, s52, 14"); A("s_lshl_b32 s53, s47, 13"); A("s_add_u32 s52, s52, s53")
    A("s_lshl_b32 s54, s41, 1"); A("s_add_u32 s54, s54, s47"); A("s_lshl_b32 s54, s54, 4"); A("s_add_u32 s54, s54, s40")
    A("s_lshl_b32 s54, s54, 7"); A("s_add_u32 s54, s54, %d" % M.FH)
    A("s_mov_b32 s46, %d" % M.F3)
    DT = [24, 25, 26, 27]
    def grp(B):
        o = [[]]
        for k, t in B.items:
            o[-1].append(t)
            if t.startswith("buffer"): o.append([])
        return [x for x in o if x]
    nv = lambda l: sum(1 for x in l for y in x if y.startswith("buffer"))
    B = Asm(); g2_setup(B, M, DT, 22, 23); su = [[t] for k, t in B.items]
    B = Asm(); i_tabs(B, M); tb = grp(B)
    fl = [["s_bfm_b64 exec, 32, 0", "buffer_load_dword v4, v28, s[%d:%d], s46 offen sc1" % (M.SFL, M.SFL + 3), "s_mov_b64 exec, -1"]]
    e0 = su + [g2_dma(0, p, DT) for p in range(8)]
    e1 = [g2_dma(1, p, DT) for p in range(8)]
    e2 = [g2_dma(0, p, DT) for p in range(4)]
    step(0, [], True, 8 + nv(e0), extra=e0); step(1, [], True, nv(e0) + nv(e1), extra=e1); step(2, [], True, 63, extra=e2)
    if ENV("G1IT"): stamp(A, 8); stamp(A, 9)
    e3 = [["v_mov_b32 v%d, v%d" % (DV[i], DT[i])] for i in range(4)] + tb + [["v_mov_b32 v7, v28"]]
    step(3, [], False, None, extra=e3)
    stamp(A, 7)
    c0 = math.sqrt(2 / math.pi)
    c1 = -2 * c0 * math.log2(math.e); c2 = c1 * 0.044715
    A("s_mov_b32 s56, 0x%x" % f32(c2)); A("s_mov_b32 s57, s56")
    A("v_mov_b32 v8, 0x%x" % f32(c1)); A("v_mov_b32 v9, v8"); A("v_mov_b32 v10, 1.0"); A("v_mov_b32 v11, 1.0"); A("v_mov_b32 v12, 0")
    n = 0
    for p in range(2):
        for jt in range(8):
            b0 = 32 + (jt % 7) * 32
            g = b0 + 8 * p; u = b0 + 16 + 8 * p
            if jt == 7:
                for i in range(8):
                    A("v_accvgpr_read_b32 v%d, a%d" % (g + i, 128 + 8 * p + i)); A("v_accvgpr_read_b32 v%d, a%d" % (u + i, 144 + 8 * p + i))
            T = 16 + 8 * (n % 2); n += 1
            H4 = range(0, 8, 2)
            for e in H4: A("v_pk_mul_f32 %s, %s, %s" % (p2(T + e), p2(g + e), p2(g + e)))
            for e in H4: A("v_pk_fma_f32 %s, %s, s[56:57], v[8:9]" % (p2(T + e), p2(T + e)))
            for e in H4: A("v_pk_mul_f32 %s, %s, %s" % (p2(T + e), p2(T + e), p2(g + e)))
            for e in range(8): A("v_exp_f32 v%d, v%d" % (T + e, T + e))
            for e in H4: A("v_pk_mul_f32 %s, %s, %s" % (p2(u + e), p2(u + e), p2(g + e)))
            for e in H4: A("v_pk_add_f32 %s, %s, v[10:11]" % (p2(T + e), p2(T + e)))
            for e in range(8): A("v_rcp_f32 v%d, v%d" % (T + e, T + e))
            A("s_add_u32 s53, s52, 0x%x" % (p * 14 * 16384 + (jt >> 2) * 4096))
            for e in H4: A("v_pk_mul_f32 %s, %s, %s" % (p2(u + e), p2(u + e), p2(T + e)))
            dst = g
            for e in range(4): A("v_cvt_pk_bf16_f32 v%d, v%d, v%d" % (dst + e, u + 2 * e, u + 2 * e + 1))
            A("buffer_store_dwordx4 %s, v3, s[36:39], s53 offen offset:%d%s" % (q("v", g), (jt & 3) * 1024, " sc1"))
            if p == 0 and jt == 5:
                for y in fl[0]: A(y.replace("v28", "v7"))
            if p == 1 and jt == 1:
                A("s_waitcnt vmcnt(4)")
                A("v_cmp_ne_u32 vcc, s%d, v4" % M.TOK); A("s_nop 1"); A("s_mov_b32 vcc_hi, 0"); A("s_nop 3")
                A("s_cbranch_vccz pd_f3g")
                M.poll(A, "f3g", 46, 7, 4, 32, sleep=4)
                z_fetch(A, M, zs=32)
            if p == 1 and jt == int(ENV("FLAGA", "3")):
                A("s_waitcnt vmcnt(%d)" % (jt + 1 + 4))
                M.set_flag(A, 54, 12, 4)
    A("s_waitcnt vmcnt(7)")
    A("s_mov_b32 s58, 1")

def gemm2(A, M):
    W = M.WAVE
    if not ENV("G1IT"): stamp(A, 8)
    io_addr(A, M, 28, 29)
    XR, SR = 176, 192
    def io(i): return "s%d offen offset:%d" % (8 + (i >> 1), (i & 1) * 2048)
    for i in range(16): A("v_accvgpr_read_b32 v%d, a%d" % (XR + i, 240 + i))
    A("s_barrier")
    ZD, D1, DS, PK, ITW, TT = 32, 48, 80, 112, 128, 144
    A("v_lshrrev_b32 v20, 1, v1"); A("v_and_b32 v20, 7, v20"); A("v_lshlrev_b32 v21, 1, v2"); A("v_xor_b32 v20, v20, v21"); A("v_lshlrev_b32 v20, 4, v20")
    A("v_lshl_add_u32 v20, v1, 7, v20"); A("v_add_u32 v20, 0x%x, v20" % ZL); A("v_xor_b32 v21, 16, v20")
    for k in range(2):
        for dh in range(2): A("ds_read_b128 %s, v%d offset:%d" % (q("v", ZD + 8 * k + 4 * dh), 20 + k, dh * 8192))
    A("v_add_u32 v23, 0x%x, v3" % (96 * 1024))
    for dh in range(2):
        for bh in range(2):
            for part in range(2): M.tab_read(A, q("a", I1 + 16 * bh + 8 * part + 4 * dh), "i1_%d%d%d" % (bh, part, dh), "i1_000", 23, 16384)
    for bh in range(2):
        for part in range(2): M.tab_read(A, q("a", I1S + 8 * bh + 4 * part), "i1s_%d%d" % (bh, part), "i1_000", 23, 16384)
    for bh in range(2):
        for part in range(2): M.tab_read(A, q("v", ITW + 8 * bh + 4 * part), "itw%d%d" % (bh, part), "i1_000", 23, 16384)
    for ah in range(2): M.tab_read(A, q("a", I2 + 4 * ah), "i2_%d" % ah, "i1_000", 23, 16384)
    A("v_and_b32 v22, 15, v1"); A("v_lshlrev_b32 v22, 10, v22"); A("v_lshrrev_b32 v23, 4, v1"); A("v_lshl_add_u32 v22, v23, 4, v22")
    A("s_and_b32 s40, s2, 1"); A("s_lshl_b32 s40, s40, 9"); A("s_lshl_b32 s41, s%d, 7" % W); A("s_add_u32 s40, s40, s41")
    A("s_lshr_b32 s41, s2, 1"); A("s_lshl_b32 s41, s41, 15"); A("s_add_u32 s40, s40, s41"); A("s_add_u32 s41, s40, 0x4000")
    A("s_mov_b32 s69, s58")
    M.srd(A, 56, M.PWS, M.WS_S, M.SZ_S)
    A("s_mov_b64 s[46:47], 0xffff")
    A("s_waitcnt lgkmcnt(6)")
    def mm(d, a, b, c=None):
        A("%s %s, %s, %s, %s" % (MF, q("v", d), a, b, "0" if c is None else q("v", c)))
    for k in range(2):
        for dh in range(2):
            for bh in range(2):
                for part in range(2):
                    d = D1 + 16 * k + 8 * bh + 4 * part
                    mm(d, q("v", ZD + 8 * k + 4 * dh), q("a", I1 + 16 * bh + 8 * part + 4 * dh), None if dh == 0 else d)
        for bh in range(2):
            for part in range(2):
                mm(DS + 16 * k + 8 * bh + 4 * part, q("v", ZD + 8 * k + 4 * part), q("a", I1S + 8 * bh + 4 * part))
    neg = " neg_lo:[1,0,0] neg_hi:[1,0,0]"
    A("s_waitcnt lgkmcnt(0)")
    for k in range(2):
        for x in range(4):
            A("v_cndmask_b32 v%d, v%d, v%d, s[46:47]" % (D1 + 16 * k + 4 * x, D1 + 16 * k + 4 * x, DS + 16 * k + 4 * x))
        for bh in range(2):
            re = D1 + 16 * k + 8 * bh; im = re + 4; tc = ITW + 8 * bh; ts = tc + 4; t = TT + 8 * bh
            for h in (0, 2): A("v_pk_mul_f32 %s, %s, %s" % (p2(t + h), p2(re + h), p2(tc + h)))
            for h in (0, 2): A("v_pk_mul_f32 %s, %s, %s" % (p2(t + 4 + h), p2(im + h), p2(tc + h)))
            for h in (0, 2): A("v_pk_fma_f32 %s, %s, %s, %s%s" % (p2(t + h), p2(im + h), p2(ts + h), p2(t + h), neg))
            for h in (0, 2): A("v_pk_fma_f32 %s, %s, %s, %s" % (p2(t + 4 + h), p2(re + h), p2(ts + h), p2(t + 4 + h)))
            for r in range(4): A("v_cvt_pk_bf16_f32 v%d, v%d, v%d" % (PK + 8 * k + 4 * bh + r, t + r, t + 4 + r))
    for k in range(2):
        for ah in range(2):
            for bh in range(2): mm(D1 + 16 * k + 8 * ah + 4 * bh, q("v", PK + 8 * k + 4 * bh), q("a", I2 + 4 * ah))
    ACC = 32; AF, HR = 0, 128
    RA = 232
    A("v_lshl_add_u32 v4, v2, 12, v3")
    A("v_lshrrev_b32 v24, 2, v1"); A("v_lshlrev_b32 v25, 8, v24"); A("v_and_b32 v26, 3, v1"); A("v_lshl_add_u32 v25, v26, 3, v25")
    A("v_and_b32 v24, 7, v24"); A("s_lshl_b32 s45, s44, 1"); A("v_xor_b32 v24, s45, v24")
    for t in range(8):
        A("v_xor_b32 v26, %d, v24" % t); A("v_lshl_add_u32 v%d, v26, 5, v25" % (RA + t)); A("v_add_u32 v%d, 0x10000, v%d" % (RA + 8 + t, RA + t))
    A("v_mov_b32 v12, 0"); A("v_lshlrev_b32 v13, 7, v1")
    SO = 160
    for k in range(2):
        for x in range(8): A("v_cvt_pk_bf16_f32 v%d, v%d, v%d" % (SO + 8 * k + x, D1 + 16 * k + 2 * x, D1 + 16 * k + 2 * x + 1))
    A("s_lshl_b32 s60, s42, 2"); A("s_add_u32 s60, s60, s44")
    A("s_lshl_b32 s47, s60, 10"); A("s_add_u32 s47, s47, %d" % M.FB)
    A("s_lshl_b32 s46, s60, 1"); A("s_lshr_b32 s45, s%d, 1" % W); A("s_add_u32 s46, s46, s45"); A("s_lshl_b32 s46, s46, 11"); A("s_add_u32 s46, s46, %d" % M.FH)
    A("s_mul_i32 s60, s60, %d" % (28 * 16384))
    M.poll(A, "fa", 46, 13, 31, 14, sleep=4)
    if not ENV("G1IT"): stamp(A, 9)
    M.srd(A, 32, M.PWS, M.WS_H, M.SZ_H)
    def hload(s, jt):
        o = ["buffer_load_dwordx4 %s, v4, s[32:35], s60 offen offset:%d%s" % (q("a", HR + 16 * (s & 7) + 4 * jt), jt * 1024, M.HLD)]
        if jt == 3: o.append("s_add_u32 s60, s60, 0x4000")
        return o
    NK = 28; R = 8; LA = int(ENV("G2LA", "6"))
    units = [[(s_, tuple(range(8)))] for s_ in range(NK - R)]
    for d in (3, 2, 1, 0):
        for s_ in range(NK - R, NK, 4): units.append([(s_ + i, (2 * d, 2 * d + 1)) for i in range(4)])
    def frs(u):
        o = []
        for s_, tl in units[u]:
            for t in tl: o.append((s_, t, AF + 32 * (u & 3) + 4 * len(o)))
        return o
    def ureads(u):
        o = []
        for s_, t, r in frs(u):
            for h in range(2):
                o.append("ds_read_b64_tr_b16 a[%d:%d], v%d offset:%d" % (r + 2 * h, r + 2 * h + 1, RA + 8 * ((s_ >> 3) & 1) + t, (s_ & 7) * 8192 + h * 4096))
        return o
    vm = []
    NH0 = 3
    for s_ in range(NH0):
        for jt in range(4):
            for y in hload(s_, jt): A(y)
            vm.append(("H", s_))
    for x in ureads(0) + ureads(1): A(x)
    lg = [0] * 16 + [1] * 16
    A("s_lshl_b32 s53, s2, 2"); A("s_add_u32 s53, s53, s%d" % W); A("s_mul_i32 s52, s53, %d" % (3 * 4096)); A("s_lshl_b32 s53, s53, 9"); A("s_add_u32 s53, s53, %d" % M.FX)
    A("s_lshl_b32 s54, s2, 7"); A("s_add_u32 s54, s54, %d" % M.FS)
    A("s_lshl_b32 s46, s42, 12"); A("s_lshl_b32 s45, s%d, 10" % W); A("s_add_u32 s46, s46, s45"); A("s_add_u32 s46, s46, %d" % M.FS)
    M.srd(A, 36, M.PWS, M.WS_XC, M.SZ_XC)
    A("v_and_b32 v21, 15, v1"); A("v_mul_u32_u24 v16, 80, v21"); A("v_lshrrev_b32 v21, 4, v1"); A("v_lshl_add_u32 v16, v21, 3, v16"); A("v_lshl_add_u32 v16, v2, 13, v16")
    A("v_lshrrev_b32 v21, 2, v1"); A("v_mul_u32_u24 v17, 80, v21"); A("v_and_b32 v21, 3, v1"); A("v_lshl_add_u32 v17, v21, 4, v17"); A("v_lshl_add_u32 v17, v2, 13, v17")
    FL = "s[%d:%d]" % (M.SFL, M.SFL + 3)
    def quick(tag, vd, nl, soff):
        A("v_cmp_ne_u32 vcc, s%d, v%d" % (M.TOK, vd)); A("s_nop 1"); A("s_bfm_b64 s[66:67], %d, 0" % nl); A("s_and_b64 vcc, vcc, s[66:67]"); A("s_nop 3")
        A("s_cbranch_vccz pd_%s" % tag)
        M.poll(A, tag, soff, 13, vd, nl)
    def vwait(tags):
        last = max([i for i, t in enumerate(vm) if t in tags] + [-1])
        return min(63, len(vm) - 1 - last)
    def lwait(u):
        last = max(i for i, t in enumerate(lg) if t == u)
        return min(15, len(lg) - 1 - last)
    cert = 0; hnext = NH0
    UFB = 14 - LA
    for u in range(len(units)):
        ks = [x[0] for x in units[u]]
        need = [("H", k) for k in ks]
        nxt = max(x[0] for x in units[u + 2]) >> 2 if u + 2 < len(units) else 0
        bar = nxt > cert
        if bar: need.append(("W", nxt))
        if u == 14: need += [("S", 0)]
        if u == UFB: need += [("fb", 0)]
        if u == 21: need += [("fs", 0)]
        sd = {22: 3, 24: 2, 26: 1}.get(u); fd = {25: 3, 27: 2}.get(u)
        if fd: need += [("X", fd)]
        A("s_waitcnt vmcnt(%d) lgkmcnt(%d)" % (vwait(need), lwait(u)))
        if bar: A("s_barrier"); cert = nxt
        if u == 2:
            assert bar
            A("s_cmp_lg_u32 s%d, 0" % W); A("s_cbranch_scc1 g2_np")
            A("s_cmp_eq_u32 s69, 0"); A("s_cbranch_scc1 g2_np")
            M.set_flag(A, 55, 12, 25)
            A.label("g2_np")
        if u == 14:
            assert bar
            M.set_flag_w0(A, "fs", 54, 12, 25)
        if u == UFB: quick("fb", 18, 7, 47)
        if u == 21: quick("fs", 19, 8, 46)
        if ENV("FIT") and u in (20, 24): stamp(A, 2 + (u - 20) // 4)
        if ENV("G2IT") and u % 4 == 0 and u < 24: stamp(A, 2 + u // 4)
        rd = ureads(u + 2) if u + 2 < len(units) else []
        fr = frs(u)
        ex = [[] for _ in range(32)]
        def flagst(d):
            return ["s_xor_b32 s45, s53, 0x%x" % (d << 12), "v_mov_b32 v25, s%d" % M.TOK, "s_mov_b64 exec, 1",
                    "buffer_store_dword v25, v12, %s, s45 offen offset:%d sc1" % (FL, (d - 1) * 128), "s_mov_b64 exec, -1"]
        if fd: ex[1].append((flagst(fd), ("F", fd)))
        if u < NK - R:
            iv = (u + 10) >> 2
            if iv < 6:
                d0, d1 = g2_dma_of(u); ex[5].append((d0, ("W", iv))); ex[21].append((d1, ("W", iv)))
            elif u in (14, 15):
                for i in range(2):
                    d0, d1 = g2_dma_of(14 + 2 * (u - 14) + i); ex[5 + 16 * i].append((d0, ("W", 6))); ex[9 + 16 * i].append((d1, ("W", 6)))
            tgt = min(NK, u + 1 + LA + (2 if u >= NK - R - 3 else 0), u + 8)
            n = min(2, tgt - hnext)
            last = u == NK - R - 1
            for i in range(n):
                assert hnext < 14 or u >= UFB
                for jt in range(4): ex[jt if last else (2 + 16 * i + 4 * jt) if n == 2 else (3 + 8 * jt)].append((hload(hnext, jt), ("H", hnext)))
                hnext += 1
            if last:
                assert n <= 1 and hnext == u + 8
                for jt in range(4): ex[8 * jt + 7].append((hload(hnext, jt), ("H", hnext)))
                hnext += 1
        for i in ((2 * u - 16, 2 * u - 15) if u in (8, 9) else ()):
            ex[15 + 16 * (i & 1)].append((["buffer_store_dwordx4 %s, v22, s[56:59], s%d offen offset:%d sc1" % (q("v", SO + 4 * i), 40 + (i & 1), (i >> 1) * 64)], ("S", 0)))
        if u == UFB - 3: ex[29].append((["s_bfm_b64 exec, 7, 0", "buffer_load_dword v18, v13, %s, s47 offen sc1" % FL, "s_mov_b64 exec, -1"], ("fb", 0)))
        if u == 18: ex[29].append((["s_bfm_b64 exec, 8, 0", "buffer_load_dword v19, v13, %s, s46 offen sc1" % FL, "s_mov_b64 exec, -1"], ("fs", 0)))
        if u == 21:
            ex[0].append((["s_lshl_b32 s6, s42, 19", "s_lshl_b32 s7, s%d, 17" % W, "s_add_u32 s6, s6, s7", "s_lshl_b32 s7, s43, 12", "s_add_u32 s6, s6, s7", "s_lshl_b32 s7, s44, 10", "s_add_u32 s6, s6, s7"], None))
            for i in range(4): ex[3 + 8 * i].append((["buffer_load_dwordx4 %s, v3, s[56:59], s6 offen sc1" % q("v", SR + 4 * i), "s_add_u32 s6, s6, 0x8000"], ("s", 0)))
        if u == 27: ex[0].append((["s_bfm_b64 exec, 3, 0", "buffer_load_dword v24, v13, %s, s53 offen sc1" % FL, "s_mov_b64 exec, -1"], ("fx", 0)))
        if sd:
            b0 = ACC + 32 * sd
            ex[0].append((["s_xor_b32 s45, s2, %d" % (sd << 1), "s_lshl_b32 s45, s45, 2", "s_add_u32 s45, s45, s%d" % W, "s_mul_i32 s45, s45, %d" % (3 * 4096), "s_add_u32 s45, s45, %d" % ((sd - 1) * 4096)], None))
            for i in range(4):
                for e in range(4): ex[4 + 4 * i + e].append((["v_cvt_pk_bf16_f32 v%d, v%d, v%d" % (b0 + 8 * i + e, b0 + 8 * i + 2 * e, b0 + 8 * i + 2 * e + 1)], None))
                ex[8 + 4 * i].append((["buffer_store_dwordx4 %s, v3, s[36:39], s45 offen offset:%d sc1" % (q("v", b0 + 8 * i), i * 1024)], ("X", sd)))
        k = 0
        if len(units[u]) == 1: seq = [(f, jt) for jt in range(4) for f in fr]
        else: seq = [(f, jt) for f in fr for jt in range(4)]
        for i, ((s_, t, r), jt) in enumerate(seq):
            d = q("v", ACC + 16 * t + 4 * jt)
            A("%s %s, %s, %s, %s" % (MF, d, q("a", r), q("a", HR + 16 * (s_ & 7) + 4 * jt), "0" if s_ == 0 else d))
            if i % 2 == 0 and i // 2 < len(rd): A(rd[i // 2]); lg.append(u + 2)
            for ins, tag in ex[i]:
                for y in ins:
                    A(y)
                    if y.startswith("buffer"): vm.append(tag)
    assert hnext == NK
    stamp(A, 10)
    nl2e = -math.log2(math.e)
    A("s_mov_b32 s56, 0x%x" % f32(nl2e)); A("s_mov_b32 s57, s56"); A("s_mov_b32 s59, 0xffff0000")
    A("v_mov_b32 v26, 1.0"); A("v_mov_b32 v27, 1.0")
    A("s_waitcnt vmcnt(%d)" % vwait([("X", 1), ("fx", 0)]))
    for y in flagst(1): A(y)
    if ENV("FIT"): stamp(A, 4)
    UX, US, PB = 64, 96, 128
    H4 = range(0, 8, 2)
    def pl(d):
        A("s_add_u32 s45, s52, %d" % (d * 4096))
        for i in range(4): A("buffer_load_dwordx4 %s, v3, s[36:39], s45 offen offset:%d sc1" % (q("v", PB + 16 * d + 4 * i), i * 1024))
    def unp():
        for i in range(16):
            A("v_lshlrev_b32 v%d, 16, v%d" % (UX + 2 * i, XR + i)); A("v_and_b32 v%d, s59, v%d" % (UX + 2 * i + 1, XR + i))
            A("v_lshlrev_b32 v%d, 16, v%d" % (US + 2 * i, SR + i)); A("v_and_b32 v%d, s59, v%d" % (US + 2 * i + 1, SR + i))
    A("v_cmp_ne_u32 s[10:11], s%d, v24" % M.TOK); A("s_nop 1")
    A("s_and_b32 s11, s10, 6"); A("s_cbranch_scc0 pd_fx2")
    A("s_add_u32 s45, s53, 128")
    M.poll(A, "fx2", 45, 13, 24, 2, sleep=1)
    if ENV("FIT"): stamp(A, 5)
    pl(2); pl(1)
    A("s_and_b32 s11, s10, 1"); A("s_cbranch_scc0 pd_fx1")
    M.poll(A, "fx1", 53, 13, 24, 1, sleep=1)
    pl(0)
    unp()
    A("s_barrier")
    A("s_waitcnt vmcnt(4)")
    if ENV("FIT"): stamp(A, 6)
    M.srd(A, 12, M.POUT, 0, 4 << 20)
    def addp(t, d, tt):
        for e in range(4):
            A("v_lshlrev_b32 v%d, 16, v%d" % (tt + 2 * e, PB + 16 * d + 4 * t + e)); A("v_and_b32 v%d, s59, v%d" % (tt + 2 * e + 1, PB + 16 * d + 4 * t + e))
        for e in H4: A("v_pk_add_f32 %s, %s, %s" % (p2(ACC + 8 * t + e), p2(ACC + 8 * t + e), p2(tt + e)))
    for t in range(4):
        for d in (2, 1): addp(t, d, 208 + 8 * d)
    for t in range(4):
        b = 8 * t; T = 208 + 8 * (t & 1)
        A("s_waitcnt vmcnt(%d)" % (3 - t))
        if ENV("FIT") and t == 0: stamp(A, 7)
        addp(t, 0, T)
        for e in H4: A("v_pk_mul_f32 %s, %s, s[56:57]" % (p2(T + e), p2(ACC + b + e)))
        for e in range(8): A("v_exp_f32 v%d, v%d" % (T + e, T + e))
        A("s_nop 0")
        for e in H4: A("v_pk_add_f32 %s, %s, v[26:27]" % (p2(T + e), p2(T + e)))
        for e in range(8): A("v_rcp_f32 v%d, v%d" % (T + e, T + e))
        A("s_nop 0")
        for e in H4: A("v_pk_mul_f32 %s, %s, %s" % (p2(ACC + b + e), p2(ACC + b + e), p2(T + e)))
        for e in range(4): A("v_cvt_pk_bf16_f32 v%d, v%d, v%d" % (SR + 4 * t + e, ACC + b + 2 * e, ACC + b + 2 * e + 1))
        for u in range(2):
            A("ds_write_b64 v16, %s offset:%d" % (p2(SR + 4 * t + 2 * u), (2 * (t & 1) + u) * 16 * 80 + (t >> 1) * 32))
    A("s_waitcnt lgkmcnt(0)")
    for i in range(4): A("ds_read_b128 %s, v17 offset:%d" % (q("v", ACC + 4 * i), i * 16 * 80))
    for i in range(4):
        A("s_waitcnt lgkmcnt(%d)" % (3 - i))
        T = 208 + 8 * (i & 1)
        for e in range(4):
            A("v_lshlrev_b32 v%d, 16, v%d" % (T + 2 * e, ACC + 4 * i + e)); A("v_and_b32 v%d, s59, v%d" % (T + 2 * e + 1, ACC + 4 * i + e))
        for e in H4: A("v_pk_fma_f32 %s, %s, %s, %s" % (p2(UX + 8 * i + e), p2(US + 8 * i + e), p2(T + e), p2(UX + 8 * i + e)))
        for e in range(4): A("v_cvt_pk_bf16_f32 v%d, v%d, v%d" % (XR + 4 * i + e, UX + 8 * i + 2 * e, UX + 8 * i + 2 * e + 1))
        A("buffer_store_dwordx4 %s, v28, s[12:15], %s" % (q("v", XR + 4 * i), io(i)))
    if G.STAMP:
        A("s_waitcnt vmcnt(0)")
        stamp(A, 11); A("s_memrealtime s[100:101]"); A("s_waitcnt lgkmcnt(0)")
        G.stamp_out(A, 0, 12, M.PWS, "all")
        A("v_mov_b32 v2, s100"); A("buffer_store_dword v2, v1, s[96:99], 0 offen offset:48")

def colfft(A, M):
    W_ = M.WAVE
    DAT, FA, FE = 128, 160, 176
    W, T1, T2, D, P, TMP = 8, 40, 48, 104, 168, 200
    A("s_waitcnt lgkmcnt(0)")
    M.flat(A, M.late_stores())
    M.srd(A, 36, M.PWS, M.WS_WT, M.SZ_WT)
    A("s_waitcnt vmcnt(0)")
    A("v_mov_b32 v240, 0"); A("v_lshlrev_b32 v242, 7, v1")
    A("s_barrier")
    M.set_flag_w0(A, "f2f", 63, 240, 241)
    A("s_add_u32 s63, s63, %d" % (M.F2B - M.F2))
    M.set_flag_w0(A, "f2fb", 63, 240, 241)
    NP = int(ENV("P1", "0"))
    if NP:
        A("s_and_b32 s41, s%d, 1" % W_); A("s_cmp_eq_u32 s41, 0")
        A("s_cselect_b32 s52, s%d, s%d" % (M.PWG, M.PWU)); A("s_cselect_b32 s53, s%d, s%d" % (M.PWG + 1, M.PWU + 1))
        A("s_and_b32 s53, s53, 0xffff"); A("s_mov_b32 s54, %d" % (1024 * 7168)); A("s_mov_b32 s55, 0x20000")
        A("s_lshl_b32 s41, s2, 1"); A("s_lshr_b32 s42, s%d, 1" % W_); A("s_add_u32 s41, s41, s42"); A("s_lshl_b32 s41, s41, 13"); A("s_add_u32 s41, s41, %d" % (int(ENV("P1ROW", "128")) * 7168))
        for n in range(NP):
            A("buffer_load_dword v243, v242, s[52:55], s41 offen"); A("s_add_u32 s41, s41, 0x80000")
        if ENV("P1ST"): stamp(A, 3); A("s_waitcnt vmcnt(0)"); stamp(A, 4)
    names = []
    for inv in range(2):
        for part in range(2): names.append(("fa_%d%d" % (inv, part), ar(FA + 8 * inv + 4 * part, 4)))
    for t in range(2): names.append(("t1_%d" % t, vr(T1 + 4 * t, 4)))
    for e in range(1, 8):
        for t in range(2): names.append(("t2_%d%d" % (e, t), vr(T2 + 8 * (e - 1) + 4 * t, 4)))
    for ih in range(2): names.append(("fe32_%d" % ih, ar(FE + 4 * ih, 4)))
    for nm, r in names: G.tab_load(A, r, nm, 3, M.STAB, 42)
    A("v_and_b32 v4, 15, v1"); A("v_lshrrev_b32 v5, 4, v1")
    A("v_lshlrev_b32 v6, 6, v4"); A("v_lshl_add_u32 v6, v5, 4, v6")
    for k in range(4):
        A("v_add_u32 v7, %d, v5" % (4 * k)); A("v_xor_b32 v7, v7, v4"); A("v_lshlrev_b32 v7, 4, v7"); A("v_lshl_add_u32 v%d, v5, 8, v7" % (232 + k))
    A("v_lshrrev_b32 v7, 5, v1"); A("v_lshlrev_b32 v7, 3, v7"); A("v_bfe_u32 v236, v1, 4, 1"); A("v_or_b32 v7, v7, v236"); A("v_xor_b32 v7, v7, v4")
    A("v_lshlrev_b32 v7, 4, v7"); A("v_lshl_add_u32 v236, v4, 8, v7"); A("v_lshl_add_u32 v236, v2, 15, v236")
    A("v_add_u32 v4, 0x1000, v3")
    A("s_lshl_b32 s51, s2, 2"); A("s_add_u32 s51, s51, s%d" % W_)
    A("s_and_b32 s41, s51, 15"); A("s_bfe_u32 s42, s51, 0x20004"); A("s_lshl_b32 s42, s42, 7")
    A("s_add_u32 s40, s41, s42")
    A("s_sub_u32 s43, 32, s41"); A("s_cmp_eq_u32 s41, 0"); A("s_cselect_b32 s43, 16, s43")
    A("s_add_u32 s43, s43, 480"); A("s_sub_u32 s43, s43, s42")
    A("s_cmp_ge_u32 s51, 64"); A("s_cselect_b32 s40, s43, s40"); A("s_cselect_b32 s50, -1, 1"); A("s_lshl_b32 s50, s50, 18")
    A("s_lshl_b32 s40, s40, 13")
    M.srd(A, 52, M.PWS, M.WS_Y, M.SZ_Y); M.srd(A, 56, M.PWS, M.WS_Z, M.SZ_Z)
    A("s_lshl_b32 s44, s%d, 13" % W_); A("s_add_u32 s44, s44, %d" % M.F2)
    M.poll(A, "f2", 44, 242, 244, 64, sleep=4)
    A("s_barrier")
    stamp(A, 5)
    A("s_lshl_b32 s41, s51, 15"); A("s_lshl_b32 s42, s%d, 15" % W_)
    for e in range(8):
        A("s_add_u32 m0, s42, %d" % (e * 4096))
        for k in range(4): A("buffer_load_dwordx4 v%d, s[52:55], s41 offen offset:%d sc1 lds" % (232 + k, k * 1024))
        A("s_add_u32 s41, s41, 4096")
    def wload(dst, f, so):
        for e in range(8):
            A("buffer_load_dwordx4 %s, v%d, s[36:39], s%d offen offset:%d sc1" % (q(f, dst + 4 * e), 3 if e < 4 else 4, so, (e & 3) * 1024))
    A("s_add_u32 s44, s44, %d" % (M.F2B - M.F2))
    M.poll(A, "f2b", 44, 242, 244, 64, sleep=4)
    A("s_barrier")
    A("s_cmp_eq_u32 s51, 0"); A("s_cselect_b32 s43, 0x%x, s40" % (512 * 8192))
    wload(W, "v", 43)
    A("s_mov_b32 s48, 0"); A("s_mov_b32 s49, 0xffff0000")
    def yread():
        for e in range(8): A("ds_read_b128 %s, v237 offset:%d" % (q("a", DAT + 4 * e), e * 4096))
    A("v_mov_b32 v237, v236")
    A("s_waitcnt vmcnt(8)")
    yread()
    stamp(A, 6)
    A.label("cf_loop")
    A("s_waitcnt lgkmcnt(0)")
    def mm(d, a, b, c=None):
        A("%s %s, %s, %s, %s" % (MF, q("v", d), a, b, "0" if c is None else q("v", c)))
    tctr = [0]
    def tw_quads(dsts, re, tc, conj, TMP=TMP):
        t = TMP + 8 * (tctr[0] % 4); tctr[0] += 1
        im = re + 4; ts = tc + 4
        neg = " neg_lo:[1,0,0] neg_hi:[1,0,0]"
        for h in (0, 2): A("v_pk_mul_f32 %s, %s, %s" % (p2(t + h), p2(re + h), p2(tc + h)))
        for h in (0, 2): A("v_pk_mul_f32 %s, %s, %s" % (p2(t + 4 + h), p2(im + h), p2(tc + h)))
        for h in (0, 2): A("v_pk_fma_f32 %s, %s, %s, %s%s" % (p2(t + h), p2(im + h), p2(ts + h), p2(t + h), neg if conj else ""))
        for h in (0, 2): A("v_pk_fma_f32 %s, %s, %s, %s%s" % (p2(t + 4 + h), p2(re + h), p2(ts + h), p2(t + 4 + h), "" if conj else neg))
        for r in range(4): A("v_cvt_pk_bf16_f32 v%d, v%d, v%d" % (dsts[r], t + r, t + 4 + r))
    def cm_pairs(items):
        ts = []
        for _ in items:
            ts.append(TMP + 2 * (tctr[0] % 8)); tctr[0] += 1
        for (dst, z, c, s_), t in zip(items, ts):
            A("v_pk_mul_f32 %s, %s, %s op_sel:[0,%d] op_sel_hi:[1,%d]" % (p2(t), p2(z), p2(c & ~1), c & 1, c & 1))
        for (dst, z, c, s_), t in zip(items, ts):
            A("v_pk_fma_f32 %s, %s, %s, %s op_sel:[1,%d,0] op_sel_hi:[0,%d,1] neg_lo:[1,0,0]" % (p2(t), p2(z), p2(s_ & ~1), p2(t), s_ & 1, s_ & 1))
        for (dst, z, c, s_), t in zip(items, ts):
            A("v_cvt_pk_bf16_f32 v%d, v%d, v%d" % (dst, t, t + 1))
    for e in range(8):
        mm(D + 8 * e, q("a", DAT + 4 * e), q("a", FA)); mm(D + 8 * e + 4, q("a", DAT + 4 * e), q("a", FA + 4))
    A("s_add_u32 s40, s40, s50")
    A("s_add_u32 s43, s48, 1"); A("s_and_b32 s43, s43, 3"); A("s_lshl_b32 s43, s43, 5"); A("v_xor_b32 v237, s43, v236")
    yread()
    for e in range(8): tw_quads([P + 4 * e + r for r in range(4)], D + 8 * e, T1, False)
    for e in range(8):
        mm(D + 8 * e, q("a", FA), q("v", P + 4 * e)); mm(D + 8 * e + 4, q("a", FA + 4), q("v", P + 4 * e))
    for e in range(8):
        if e == 0:
            for r in range(4): A("v_cvt_pk_bf16_f32 v%d, v%d, v%d" % (P + 8 * r, D + r, D + 4 + r))
        else: tw_quads([P + 8 * r + e for r in range(4)], D + 8 * e, T2 + 8 * (e - 1), False)
    def stageE():
        for ih in range(2):
            for r in range(4):
                d = "v[%d:%d]" % (D + 16 * r, D + 16 * r + 15)
                A("%s %s, %s, %s, %s" % (MF32, d, q("a", FE + 4 * ih), q("v", P + 8 * r + 4 * ih), "0" if ih == 0 else d))
    stageE()
    A("s_waitcnt vmcnt(0)")
    U = TMP + 16
    A("s_or_b32 s43, s51, s48"); A("s_cmp_eq_u32 s43, 0"); A("s_cbranch_scc1 cf_pack")
    for r in range(4):
        for eh in range(2):
            items = []
            for k in range(4):
                ep = 4 * eh + k; w = W + 4 * ep + r; u = U + 8 * (eh & 1) + 2 * k
                A("v_lshlrev_b32 v%d, 16, v%d" % (u, w)); A("v_and_b32 v%d, s49, v%d" % (u + 1, w))
                items.append((P + 8 * r + ep, D + 16 * r + 2 * ep, u, u + 1))
            cm_pairs(items)
    A.label("cf_mul_done")
    wload(W, "v", 40)
    stageE()
    for r in range(4):
        A("v_cvt_pk_bf16_f32 v%d, v%d, v%d" % (P + r, D + 16 * r, D + 16 * r + 1))
        for xs in ((1, 2, 3, 4), (5, 6, 7)):
            cm_pairs([(P + 4 * (8 - x) + r, D + 16 * r + 2 * x, T2 + 8 * (7 - x) + r, T2 + 8 * (7 - x) + 4 + r) for x in xs])
    for e in range(8):
        mm(D + 8 * e, q("v", P + 4 * e), q("a", FA + 8)); mm(D + 8 * e + 4, q("v", P + 4 * e), q("a", FA + 12))
    for e in range(8): tw_quads([P + 4 * e + r for r in range(4)], D + 8 * e, T1, True)
    for e in range(8):
        mm(D + 8 * e, q("v", P + 4 * e), q("a", FA + 8)); mm(D + 8 * e + 4, q("v", P + 4 * e), q("a", FA + 12))
    for e in range(8):
        for r in range(4): A("v_cvt_pk_bf16_f32 v%d, v%d, v%d" % (P + 4 * e + r, D + 8 * e + r, D + 8 * e + 4 + r))
    for cc in range(4):
        A("s_cmp_eq_u32 s48, %d" % cc); A("s_cbranch_scc0 cf_o%d" % cc)
        for qq in range(32): A("v_accvgpr_write_b32 a%d, v%d" % (4 * qq + cc, P + qq))
        A.label("cf_o%d" % cc)
    A("s_add_u32 s48, s48, 1"); A("s_cmp_lt_u32 s48, 4"); A("s_cbranch_scc1 cf_loop")
    stamp(A, 7)
    A("v_and_b32 v238, 15, v1"); A("v_lshlrev_b32 v238, 4, v238"); A("v_lshl_add_u32 v238, v5, 20, v238")
    A("s_lshl_b32 s41, s51, 8")
    for r in range(4):
        for e in range(8):
            qq = 4 * e + r
            A("s_add_u32 s42, s41, 0x%x" % ((8 * r + e) * 32768))
            A("buffer_store_dwordx4 %s, v238, s[56:59], s42 offen sc1" % q("a", 4 * qq))
    A("s_waitcnt vmcnt(0) lgkmcnt(0)")
    A("s_lshl_b32 s44, s2, 7"); A("s_add_u32 s44, s44, %d" % M.F3)
    A("s_barrier")
    M.set_flag_w0(A, "f3", 44, 240, 241)
    A("s_mov_b32 s44, %d" % M.F3)
    M.poll(A, "f3", 44, 242, 244, 32, sleep=8)
    z_fetch(A, M); i_tabs(A, M); g2_setup(A, M); g2_early(A); x_fetch(A, M, 21, 22, 12)
    A("s_mov_b32 s58, 0"); A("s_mov_b32 s55, 0"); A("s_mov_b32 s52, 0"); A("s_mov_b32 s53, 0")
    A("s_waitcnt vmcnt(0)")
    A("s_branch cf_end")
    A.label("cf_pack")
    A("s_nop 11")
    SC = M.LDS_SCR
    A("v_and_b32 v238, 15, v1"); A("v_lshl_add_u32 v238, v5, 6, v238")
    A("v_sub_u32 v239, %d, v238" % (2048 - 48 - 1792)); A("v_lshlrev_b32 v238, 3, v238"); A("v_lshlrev_b32 v239, 3, v239")
    A("v_add_u32 v238, 0x%x, v238" % SC); A("v_add_u32 v239, 0x%x, v239" % SC)
    for r in range(4):
        for ep in range(8): A("ds_write_b64 v238, %s offset:%d" % (p2(D + 16 * r + 2 * ep), 8 * (16 * r + 256 * ep)))
    A("s_mov_b64 exec, 1"); A("ds_write_b64 v238, %s offset:%d" % (p2(D), 8 * 2048)); A("s_mov_b64 exec, -1")
    A("s_mov_b32 s43, 0x%x" % (513 * 8192))
    wload(208, "a", 43)
    for r in range(4):
        for ep in range(8):
            w = W + 4 * ep + r; z = D + 16 * r + 2 * ep; u = U + 2 * (ep & 3); t = TMP + 2 * (ep & 3)
            A("v_lshlrev_b32 v%d, 16, v%d" % (u, w)); A("v_and_b32 v%d, s49, v%d" % (u + 1, w))
            A("v_pk_mul_f32 %s, %s, %s op_sel:[0,0] op_sel_hi:[1,0]" % (p2(t), p2(z), p2(u)))
            A("v_pk_fma_f32 %s, %s, %s, %s op_sel:[1,1,0] op_sel_hi:[0,1,1] neg_lo:[1,0,0]" % (p2(z), p2(z), p2(u), p2(t)))
    A("s_waitcnt vmcnt(0) lgkmcnt(0)")
    for rh in range(2):
        for r in (2 * rh, 2 * rh + 1):
            for ep in range(8): A("ds_read_b64 %s, v239 offset:%d" % (p2(W + 16 * (r & 1) + 2 * ep), 8 * (16 * (3 - r) + 256 * (7 - ep))))
        A("s_waitcnt lgkmcnt(0)")
        for r in (2 * rh, 2 * rh + 1):
            for ep in range(8):
                m = W + 16 * (r & 1) + 2 * ep; z = D + 16 * r + 2 * ep; u = U + 2 * (ep & 3)
                A("v_accvgpr_read_b32 v%d, a%d" % (u + 1, 208 + 4 * ep + r))
                A("v_lshlrev_b32 v%d, 16, v%d" % (u, u + 1)); A("v_and_b32 v%d, s49, v%d" % (u + 1, u + 1))
                A("v_pk_fma_f32 %s, %s, %s, %s op_sel:[0,0,0] op_sel_hi:[1,0,1] neg_hi:[1,0,0]" % (p2(z), p2(m), p2(u), p2(z)))
                A("v_pk_fma_f32 %s, %s, %s, %s op_sel:[1,1,0] op_sel_hi:[0,1,1]" % (p2(z), p2(m), p2(u), p2(z)))
                A("v_cvt_pk_bf16_f32 v%d, v%d, v%d" % (P + 8 * r + ep, z, z + 1))
    A("s_nop 1")
    A("s_branch cf_mul_done")
    A.label("cf_end")
```

```python
from asmlib import *
import math, os
import gen as G
from gen import stamp, f32
ENV = os.environ.get
MF = "v_mfma_f32_16x16x32_bf16"
MF32 = "v_mfma_f32_32x32x16_bf16"
def q(f, r): return "%s[%d:%d]" % (f, r, r + 3)
def p2(r): return "v[%d:%d]" % (r, r + 1)

ZL = 128 * 1024
I1, I1S, I2 = 160, 192, 208
DV = [5, 6, 14, 15]
def g2_setup(A, M, DV=DV, t0=7, t1=13):
    W = M.WAVE
    A("s_bfe_u32 s44, s2, 0x20001"); A("s_and_b32 s42, s2, 1"); A("s_lshl_b32 s42, s42, 2"); A("s_bfe_u32 s43, s2, 0x20003"); A("s_add_u32 s42, s42, s43")
    A("s_lshr_b32 s43, s2, 5")
    d0, d1, d2, d3 = DV
    A("v_lshrrev_b32 v%d, 4, v1" % t0); A("v_lshlrev_b32 v%d, 11, v%d" % (t1, t0))
    A("v_lshlrev_b32 v%d, 1, v%d" % (t0, t0)); A("v_and_b32 v%d, 15, v1" % d0); A("v_xor_b32 v%d, v%d, v%d" % (t0, t0, d0))
    A("v_lshl_add_u32 v%d, v%d, 4, v%d" % (d0, t0, t1)); A("v_xor_b32 v%d, 0x80, v%d" % (d1, d0))
    A("v_add_u32 v%d, 0x%x, v%d" % (d2, 2 * 7168, d0)); A("v_add_u32 v%d, 0x%x, v%d" % (d3, 3 * 7168, d1)); A("v_add_u32 v%d, 0x%x, v%d" % (d1, 7168, d1))
    M.srd(A, 48, M.PWD, 0, 3584 * 2048)
    A("s_mul_i32 s45, s44, %d" % (896 * 2048)); A("s_lshl_b32 s61, s43, 8"); A("s_add_u32 s61, s61, s45")
    A("s_add_u32 s62, s61, %d" % (896 * 2048))
    A("s_lshl_b32 s45, s%d, 17" % W); A("s_add_u32 s61, s61, s45")
    A("s_lshl_b32 s64, s%d, 13" % W)
def g2_dma(par, p, DV=DV):
    o = []
    if p % 4 == 0: o.append("s_add_u32 m0, s64, 0x%x" % (par * 32768 + (p >> 2) * 4096))
    o.append("buffer_load_dwordx4 v%d, s[48:51], s61 offen%s lds" % (DV[p & 3], " offset:%d" % ((p & 3) * 1024) if p & 3 else ""))
    if p == 3: o.append("s_add_u32 s61, s61, 0x8000")
    if p == 7:
        o.append("s_add_u32 s61, s61, 0x%x" % (256 * 2048 - 0x8000))
        o += ["s_cmp_ge_u32 s61, s62", "s_cselect_b32 s65, %d, 0" % ((896 - 32) * 2048), "s_cselect_b32 s62, -1, s62", "s_sub_u32 s61, s61, s65"]
        if par == 1: o.append("s_xor_b32 s64, s64, 0x10000")
    return o
def g2_dma_of(s):
    u = (s + 2) & 7; par = u >> 2; p = 2 * (u & 3)
    return g2_dma(par, p), g2_dma(par, p + 1)
def z_fetch(A, M, t0=7, t1=13, zs=56):
    W = M.WAVE
    M.srd(A, zs, M.PWS, M.WS_Z, M.SZ_Z)
    A("v_lshrrev_b32 v%d, 4, v1" % t0); A("v_and_b32 v%d, 7, v1" % t1); A("v_xor_b32 v%d, v%d, v%d" % (t0, t0, t1)); A("v_lshlrev_b32 v%d, 4, v%d" % (t0, t0))
    A("v_lshrrev_b32 v%d, 3, v1" % t1); A("v_lshl_add_u32 v%d, v%d, 8, v%d" % (t0, t1, t0)); A("v_xor_b32 v%d, 64, v%d" % (t1, t0))
    A("s_lshr_b32 s40, s2, 1"); A("s_lshl_b32 s40, s40, 15"); A("s_and_b32 s41, s2, 1"); A("s_lshl_b32 s41, s41, 7"); A("s_add_u32 s40, s40, s41")
    A("s_lshl_b32 s41, s%d, 13" % W); A("s_add_u32 s40, s40, s41")
    A("s_lshl_b32 s41, s%d, 12" % W); A("s_add_u32 m0, s41, 0x%x" % ZL)
    for p in range(4):
        A("buffer_load_dwordx4 v%d, s[%d:%d], s40 offen%s sc1 lds" % (t0 if p % 2 == 0 else t1, zs, zs + 3, " offset:%d" % (p * 1024) if p else ""))
        A("s_add_u32 s40, s40, 1024")
def i_tabs(A, M): M.tab_dma(A, "i1_000", 96 * 1024, 112 * 1024)
def io_addr(A, M, va, vt):
    A("v_lshrrev_b32 v%d, 2, v1" % va); A("v_lshlrev_b32 v%d, 18, v%d" % (va, va)); A("v_lshl_add_u32 v%d, v2, 13, v%d" % (va, va))
    A("v_and_b32 v%d, 3, v1" % vt); A("v_lshl_add_u32 v%d, v%d, 4, v%d" % (va, vt, va))
    A("s_and_b32 s8, s2, 1"); A("s_lshl_b32 s8, s8, 17"); A("s_bfe_u32 s9, s2, 0x20003"); A("s_lshl_b32 s9, s9, 15"); A("s_add_u32 s8, s8, s9")
    A("s_lshr_b32 s9, s2, 5"); A("s_lshl_b32 s9, s9, 8"); A("s_add_u32 s8, s8, s9"); A("s_bfe_u32 s9, s2, 0x20001"); A("s_lshl_b32 s9, s9, 6"); A("s_add_u32 s8, s8, s9")
    A("s_add_u32 s9, s8, 0x1000")
def x_fetch(A, M, va, vt, sd):
    io_addr(A, M, va, vt); M.srd(A, sd, M.PX, 0, 4 << 20)
    for i in range(4): A("buffer_load_dwordx4 %s, v%d, s[%d:%d], s%d offen offset:%d" % (q("a", 240 + 4 * i), va, sd, sd + 3, 8 + (i >> 1), (i & 1) * 2048))
def g2_early(A):
    for s in range(-10, 0):
        d0, d1 = g2_dma_of(s)
        for y in d0 + d1: A(y)
HB = [192, 196, 208, 212, 224, 228, 240, 244]

def gemm1(A, M):
    W = M.WAVE; VWD = M.VWD
    def dma(b): return (M.dmaW(b, 4) + M.dmaX(b)) if ENV('WFIRST', '0') == '1' else (M.dmaX(b) + M.dmaW(b, 4))
    def acc(it, jt):
        return ("v", 32 + (jt * 8 + it) * 4) if jt < 7 else ("a", 128 + it * 4)
    def reads(buf, st):
        base = 64 * st; hi = buf >> 1; off = (buf & 1) * 32768
        o = []; la = []; lb = []
        for it in range(8):
            mat, t = it >> 2, it & 3
            for h in range(2):
                r = base + 4 * it + 2 * h
                la.append("ds_read_b64_tr_b16 a[%d:%d], v%d offset:%d" % (r, r + 1, (12 if hi else 8) + t, off + h * 8192 + mat * 2048))
        for jt in range(8):
            r = base + 32 + 4 * jt
            lb.append("ds_read_b128 a[%d:%d], v%d offset:%d" % (r, r + 3, 6 if hi else 5, off + jt * 1024))
        for i in range(8): o += [lb[i], la[2 * i], la[2 * i + 1]]
        return o
    def mfmas(st, first=False):
        base = 64 * st; o = []
        for jt in range(8):
            for it in range(8):
                f, d = acc(it, jt); dd = q(f, d)
                o.append("%s %s, %s, %s, %s" % (MF, dd, q("a", base + 4 * it), q("a", base + 32 + 4 * jt), "0" if first else dd))
        return o
    def step(i, dmas, do_read, vm, first=False, rd0=1, mid=None, extra=None, fill=None, post=None):
        m = mfmas(i & 1, first)
        s1 = interleave(m, reads((i + 1) & 3, (i + 1) & 1), rd0, 56 if rd0 > 1 else 52) if do_read else [[] for _ in m]
        dl = []
        for b_ in dmas: dl += dma(b_)
        if extra: dl += extra
        s2 = interleave(m, dl, rd0 if mid is not None else 0, 64) if dl else [[] for _ in m]
        if fill:
            s3 = interleave(m, fill, 0, 52)
            for k in range(64): s1[k] = s1[k] + s3[k]
        if post:
            s3 = interleave(m, post, 54, 64)
            for k in range(64): s1[k] = s1[k] + s3[k]
        for k, x in enumerate(m):
            A(x)
            if mid is not None and k == rd0 - 1:
                nv = sum(1 for kk in range(k + 1) for y in s2[kk] if y.startswith("buffer"))
                for y in s2[k]: A(y)
                A("s_waitcnt vmcnt(%d)" % (mid + nv)); A("s_barrier")
                continue
            for y in s2[k] + s1[k]: A(y)
        if vm is not None:
            A("s_waitcnt vmcnt(%d) lgkmcnt(0)" % vm); A("s_barrier")
    for x in reads(0, 0): A(x)
    M.rel_dma(A)
    A("s_waitcnt lgkmcnt(0)")
    stamp(A, 6)
    ls = M.late_stores()
    wt = [M.w_touch()]
    if True:
        step(0, [3], True, 22, first=True, rd0=8, mid=14, extra=ls)
        if ENV("G1IT"): stamp(A, 2)
        step(1, [0, 1], True, 16)
        M.set_flag_w0(A, "f2y", 63, 29, 30)
        A("s_add_u32 s98, s63, %d" % (M.F2B - M.F2))
        if ENV("G1IT"): stamp(A, 3)
        step(2, [2], True, 16, fill=M.rel_reads())
        A("s_mov_b32 s99, s11")
        M.srd(A, 12, M.PX, 0, 4 << 20)
        M.srd(A, 4, M.PWD, 0, 3584 * 2048)
        A("s_sub_u32 s10, s2, 32"); A("s_lshl_b32 s10, s10, 15")
        if ENV("NOWDT"): A("s_mov_b32 s34, 0")
        A("v_mul_u32_u24 v20, 1280, v2"); A("v_lshl_add_u32 v20, v1, 7, v20"); A("v_cmp_lt_u32 vcc, 9, v1"); A("v_cndmask_b32 v20, v20, 2.0, vcc")
        wt = wt + [["buffer_load_dword v18, v20, s[4:7], s10 offen", "s_add_u32 s10, s10, 5120"]]
        io_addr(A, M, 21, 22)
        A("s_lshl_b32 s11, s%d, 12" % W); A("s_add_u32 s11, s11, 0x%x" % ZL); A("s_mov_b32 s63, s8"); A("s_add_u32 s44, s8, 0x2000")
        wt = wt + [["s_cmp_ge_u32 s63, s44", "s_cselect_b32 s14, 0, s14", "s_cselect_b32 s11, 0x%x, s11" % M.LDS_T2, "s_mov_b32 m0, s11", "s_add_u32 s11, s11, 1024",
                    "buffer_load_dwordx4 v21, s[12:15], s63 offen lds", "s_add_u32 s63, s63, 2048"]]
        rs = [[y.replace("s11", "s99") for y in x] for x in M.rel_stores()]
        step(3, [3], True, 16 + len(wt), extra=wt, fill=M.rel_valu(), post=rs)
    if ENV("G1IT"): stamp(A, 4)
    A("s_mov_b32 s45, 6"); A("s_mov_b32 s71, 0")
    A.raw(".p2align 6")
    A.label("g1_loop")
    for i in range(4):
        step(i, [i], True, 16 + (len(wt) if i != 2 else 0), extra=wt if i == 3 else None)
        if i == 2:
            A("s_or_b32 s40, s%d, s71" % W); A("s_cmp_lg_u32 s40, 0"); A("s_cbranch_scc1 g1_nwf")
            M.set_flag(A, 98, 29, 30); A("s_mov_b32 s71, 1")
            A.label("g1_nwf")
    if not ENV("NOCPF"):
        A("s_cmp_lg_u32 s45, 2"); A("s_cbranch_scc1 g1_npf")
        if ENV("WDL2"):
            A("s_lshr_b32 s40, s2, 3"); A("s_sub_u32 s40, s40, 4"); A("s_and_b32 s41, s40, 1"); A("s_lshr_b32 s40, s40, 1")
            A("s_bfe_u32 s44, s2, 0x20001"); A("s_mul_i32 s44, s44, 14"); A("s_add_u32 s40, s40, s44"); A("s_lshl_b32 s40, s40, 2"); A("s_add_u32 s40, s40, s41")
            A("s_add_u32 s40, s40, 2"); A("s_lshl_b32 s40, s40, 15")
            A("v_lshlrev_b32 v21, 7, v0"); A("buffer_load_dword v23, v21, s[32:35], s40 offen")
        M.code_srd(A, 32, "g1_npf"); A("s_bfe_u32 s40, s2, 0x20003"); A("s_lshl_b32 s40, s40, 13")
        A("v_lshlrev_b32 v23, 7, v1"); A("v_lshl_add_u32 v23, v2, 11, v23"); A("v_lshrrev_b32 v22, 4, v1"); A("v_lshl_add_u32 v23, v22, 24, v23")
        A("buffer_load_dword v19, v23, s[32:35], s40 offen")
    A.label("g1_npf")
    A("s_sub_u32 s45, s45, 1"); A("s_cmp_lg_u32 s45, 0"); A("s_cbranch_scc1 g1_loop")
    if ENV("G1IT"): stamp(A, 5)
    M.srd(A, 36, M.PWS, M.WS_H, M.SZ_H)
    A("s_bfe_u32 s40, s2, 0x20001"); A("s_lshl_b32 s41, s42, 2"); A("s_add_u32 s41, s41, s40")
    A("s_mul_i32 s40, s40, 7"); A("s_sub_u32 s40, s43, s40")
    A("s_lshl_b32 s55, s41, 3"); A("s_add_u32 s55, s55, s40"); A("s_lshl_b32 s55, s55, 7"); A("s_add_u32 s55, s55, %d" % M.FB)
    A("s_lshl_b32 s40, s40, 1"); A("s_add_u32 s40, s40, s46")
    A("s_mul_i32 s52, s41, 28"); A("s_add_u32 s52, s52, s40"); A("s_lshl_b32 s52, s52, 14"); A("s_lshl_b32 s53, s47, 13"); A("s_add_u32 s52, s52, s53")
    A("s_lshl_b32 s54, s41, 1"); A("s_add_u32 s54, s54, s47"); A("s_lshl_b32 s54, s54, 4"); A("s_add_u32 s54, s54, s40")
    A("s_lshl_b32 s54, s54, 7"); A("s_add_u32 s54, s54, %d" % M.FH)
    A("s_mov_b32 s46, %d" % M.F3)
    DT = [24, 25, 26, 27]
    def grp(B):
        o = [[]]
        for k, t in B.items:
            o[-1].append(t)
            if t.startswith("buffer"): o.append([])
        return [x for x in o if x]
    nv = lambda l: sum(1 for x in l for y in x if y.startswith("buffer"))
    B = Asm(); g2_setup(B, M, DT, 22, 23); su = [[t] for k, t in B.items]
    B = Asm(); i_tabs(B, M); tb = grp(B)
    fl = [["s_bfm_b64 exec, 32, 0", "buffer_load_dword v4, v28, s[%d:%d], s46 offen sc1" % (M.SFL, M.SFL + 3), "s_mov_b64 exec, -1"]]
    e0 = su + [g2_dma(0, p, DT) for p in range(8)]
    xr = [["v_lshl_add_u32 v21, v2, 12, v3", "v_add_u32 v21, 0x%x, v21" % ZL] + ["ds_read_b128 %s, v21 offset:%d" % (q("a", 240 + 4 * i), i * 1024) for i in range(4)]]
    e1 = xr + [g2_dma(1, p, DT) for p in range(8)]
    e2 = [g2_dma(0, p, DT) for p in range(4)]
    step(0, [], True, 8 + nv(e0), extra=e0); step(1, [], True, nv(e0) + nv(e1), extra=e1); step(2, [], True, 63, extra=e2)
    if ENV("G1IT"): stamp(A, 8); stamp(A, 9)
    e3 = [["v_mov_b32 v%d, v%d" % (DV[i], DT[i])] for i in range(4)] + tb + [["v_mov_b32 v7, v28"]]
    step(3, [], False, None, extra=e3)
    stamp(A, 7)
    c0 = math.sqrt(2 / math.pi)
    c1 = -2 * c0 * math.log2(math.e); c2 = c1 * 0.044715
    A("s_mov_b32 s56, 0x%x" % f32(c2)); A("s_mov_b32 s57, s56")
    A("v_mov_b32 v8, 0x%x" % f32(c1)); A("v_mov_b32 v9, v8"); A("v_mov_b32 v10, 1.0"); A("v_mov_b32 v11, 1.0"); A("v_mov_b32 v12, 0")
    n = 0
    for p in range(2):
        for jt in range(8):
            b0 = 32 + (jt % 7) * 32
            g = b0 + 8 * p; u = b0 + 16 + 8 * p
            if jt == 7:
                for i in range(8):
                    A("v_accvgpr_read_b32 v%d, a%d" % (g + i, 128 + 8 * p + i)); A("v_accvgpr_read_b32 v%d, a%d" % (u + i, 144 + 8 * p + i))
            T = 16 + 8 * (n % 2); n += 1
            H4 = range(0, 8, 2)
            for e in H4: A("v_pk_mul_f32 %s, %s, %s" % (p2(T + e), p2(g + e), p2(g + e)))
            for e in H4: A("v_pk_fma_f32 %s, %s, s[56:57], v[8:9]" % (p2(T + e), p2(T + e)))
            for e in H4: A("v_pk_mul_f32 %s, %s, %s" % (p2(T + e), p2(T + e), p2(g + e)))
            for e in range(8): A("v_exp_f32 v%d, v%d" % (T + e, T + e))
            for e in H4: A("v_pk_mul_f32 %s, %s, %s" % (p2(u + e), p2(u + e), p2(g + e)))
            for e in H4: A("v_pk_add_f32 %s, %s, v[10:11]" % (p2(T + e), p2(T + e)))
            for e in range(8): A("v_rcp_f32 v%d, v%d" % (T + e, T + e))
            A("s_add_u32 s53, s52, 0x%x" % (p * 14 * 16384 + (jt >> 2) * 4096))
            for e in H4: A("v_pk_mul_f32 %s, %s, %s" % (p2(u + e), p2(u + e), p2(T + e)))
            dst = g
            for e in range(4): A("v_cvt_pk_bf16_f32 v%d, v%d, v%d" % (dst + e, u + 2 * e, u + 2 * e + 1))
            A("buffer_store_dwordx4 %s, v3, s[36:39], s53 offen offset:%d%s" % (q("v", g), (jt & 3) * 1024, " sc1"))
            if p == 0 and jt == 5:
                for y in fl[0]: A(y.replace("v28", "v7"))
            if p == 1 and jt == 1:
                if ENV("EIT"): stamp(A, 2)
                A("s_waitcnt vmcnt(4)")
                A("v_cmp_ne_u32 vcc, s%d, v4" % M.TOK); A("s_nop 1"); A("s_mov_b32 vcc_hi, 0"); A("s_nop 3")
                A("s_cbranch_vccz pd_f3g")
                M.poll(A, "f3g", 46, 7, 4, 32, sleep=4)
                if ENV("EIT"): stamp(A, 3)
                z_fetch(A, M, zs=32)
            if p == 1 and jt == int(ENV("FLAGA", "3")):
                A("s_waitcnt vmcnt(%d)" % (jt + 1 + 4))
                M.set_flag(A, 54, 12, 4)
                if ENV("EIT"): stamp(A, 4)
    if ENV("EIT"): stamp(A, 5)
    A("s_waitcnt vmcnt(7)")
    A("s_mov_b32 s58, 1")

def gemm2(A, M):
    W = M.WAVE
    if not ENV("G1IT"): stamp(A, 8)
    io_addr(A, M, 28, 29)
    XR, SR = 176, 192
    def io(i): return "s%d offen offset:%d" % (8 + (i >> 1), (i & 1) * 2048)
    for i in range(16): A("v_accvgpr_read_b32 v%d, a%d" % (XR + i, 240 + i))
    A("s_barrier")
    ZD, D1, DS, PK, ITW, TT = 32, 48, 80, 112, 128, 144
    A("v_lshrrev_b32 v20, 1, v1"); A("v_and_b32 v20, 7, v20"); A("v_lshlrev_b32 v21, 1, v2"); A("v_xor_b32 v20, v20, v21"); A("v_lshlrev_b32 v20, 4, v20")
    A("v_lshl_add_u32 v20, v1, 7, v20"); A("v_add_u32 v20, 0x%x, v20" % ZL); A("v_xor_b32 v21, 16, v20")
    for k in range(2):
        for dh in range(2): A("ds_read_b128 %s, v%d offset:%d" % (q("v", ZD + 8 * k + 4 * dh), 20 + k, dh * 8192))
    A("v_add_u32 v23, 0x%x, v3" % (96 * 1024))
    for dh in range(2):
        for bh in range(2):
            for part in range(2): M.tab_read(A, q("a", I1 + 16 * bh + 8 * part + 4 * dh), "i1_%d%d%d" % (bh, part, dh), "i1_000", 23, 16384)
    for bh in range(2):
        for part in range(2): M.tab_read(A, q("a", I1S + 8 * bh + 4 * part), "i1s_%d%d" % (bh, part), "i1_000", 23, 16384)
    for bh in range(2):
        for part in range(2): M.tab_read(A, q("v", ITW + 8 * bh + 4 * part), "itw%d%d" % (bh, part), "i1_000", 23, 16384)
    for ah in range(2): M.tab_read(A, q("a", I2 + 4 * ah), "i2_%d" % ah, "i1_000", 23, 16384)
    A("v_and_b32 v22, 15, v1"); A("v_lshlrev_b32 v22, 10, v22"); A("v_lshrrev_b32 v23, 4, v1"); A("v_lshl_add_u32 v22, v23, 4, v22")
    A("s_and_b32 s40, s2, 1"); A("s_lshl_b32 s40, s40, 9"); A("s_lshl_b32 s41, s%d, 7" % W); A("s_add_u32 s40, s40, s41")
    A("s_lshr_b32 s41, s2, 1"); A("s_lshl_b32 s41, s41, 15"); A("s_add_u32 s40, s40, s41"); A("s_add_u32 s41, s40, 0x4000")
    A("s_mov_b32 s69, s58")
    M.srd(A, 56, M.PWS, M.WS_S, M.SZ_S)
    A("s_mov_b64 s[46:47], 0xffff")
    A("s_waitcnt lgkmcnt(6)")
    def mm(d, a, b, c=None):
        A("%s %s, %s, %s, %s" % (MF, q("v", d), a, b, "0" if c is None else q("v", c)))
    for k in range(2):
        for dh in range(2):
            for bh in range(2):
                for part in range(2):
                    d = D1 + 16 * k + 8 * bh + 4 * part
                    mm(d, q("v", ZD + 8 * k + 4 * dh), q("a", I1 + 16 * bh + 8 * part + 4 * dh), None if dh == 0 else d)
        for bh in range(2):
            for part in range(2):
                mm(DS + 16 * k + 8 * bh + 4 * part, q("v", ZD + 8 * k + 4 * part), q("a", I1S + 8 * bh + 4 * part))
    neg = " neg_lo:[1,0,0] neg_hi:[1,0,0]"
    A("s_waitcnt lgkmcnt(0)")
    for k in range(2):
        for x in range(4):
            A("v_cndmask_b32 v%d, v%d, v%d, s[46:47]" % (D1 + 16 * k + 4 * x, D1 + 16 * k + 4 * x, DS + 16 * k + 4 * x))
        for bh in range(2):
            re = D1 + 16 * k + 8 * bh; im = re + 4; tc = ITW + 8 * bh; ts = tc + 4; t = TT + 8 * bh
            for h in (0, 2): A("v_pk_mul_f32 %s, %s, %s" % (p2(t + h), p2(re + h), p2(tc + h)))
            for h in (0, 2): A("v_pk_mul_f32 %s, %s, %s" % (p2(t + 4 + h), p2(im + h), p2(tc + h)))
            for h in (0, 2): A("v_pk_fma_f32 %s, %s, %s, %s%s" % (p2(t + h), p2(im + h), p2(ts + h), p2(t + h), neg))
            for h in (0, 2): A("v_pk_fma_f32 %s, %s, %s, %s" % (p2(t + 4 + h), p2(re + h), p2(ts + h), p2(t + 4 + h)))
            for r in range(4): A("v_cvt_pk_bf16_f32 v%d, v%d, v%d" % (PK + 8 * k + 4 * bh + r, t + r, t + 4 + r))
    for k in range(2):
        for ah in range(2):
            for bh in range(2): mm(D1 + 16 * k + 8 * ah + 4 * bh, q("v", PK + 8 * k + 4 * bh), q("a", I2 + 4 * ah))
    ACC = 32; AF, HR = 0, 128
    RA = 232
    A("v_lshl_add_u32 v4, v2, 12, v3")
    A("v_lshrrev_b32 v24, 2, v1"); A("v_lshlrev_b32 v25, 8, v24"); A("v_and_b32 v26, 3, v1"); A("v_lshl_add_u32 v25, v26, 3, v25")
    A("v_and_b32 v24, 7, v24"); A("s_lshl_b32 s45, s44, 1"); A("v_xor_b32 v24, s45, v24")
    for t in range(8):
        A("v_xor_b32 v26, %d, v24" % t); A("v_lshl_add_u32 v%d, v26, 5, v25" % (RA + t)); A("v_add_u32 v%d, 0x10000, v%d" % (RA + 8 + t, RA + t))
    A("v_mov_b32 v12, 0"); A("v_lshlrev_b32 v13, 7, v1")
    SO = 160
    for k in range(2):
        for x in range(8): A("v_cvt_pk_bf16_f32 v%d, v%d, v%d" % (SO + 8 * k + x, D1 + 16 * k + 2 * x, D1 + 16 * k + 2 * x + 1))
    A("s_lshl_b32 s60, s42, 2"); A("s_add_u32 s60, s60, s44")
    A("s_lshl_b32 s47, s60, 10"); A("s_add_u32 s47, s47, %d" % M.FB)
    A("s_lshl_b32 s46, s60, 1"); A("s_lshr_b32 s45, s%d, 1" % W); A("s_add_u32 s46, s46, s45"); A("s_lshl_b32 s46, s46, 11"); A("s_add_u32 s46, s46, %d" % M.FH)
    A("s_mul_i32 s60, s60, %d" % (28 * 16384))
    M.poll(A, "fa", 46, 13, 31, 14, sleep=4)
    if not ENV("G1IT"): stamp(A, 9)
    M.srd(A, 32, M.PWS, M.WS_H, M.SZ_H)
    def hload(s, jt):
        o = ["buffer_load_dwordx4 %s, v4, s[32:35], s60 offen offset:%d%s" % (q("a", HR + 16 * (s & 7) + 4 * jt), jt * 1024, M.HLD)]
        if jt == 3: o.append("s_add_u32 s60, s60, 0x4000")
        return o
    NK = 28; R = 8; LA = int(ENV("G2LA", "6"))
    units = [[(s_, tuple(range(8)))] for s_ in range(NK - R)]
    for d in (3, 2, 1, 0):
        for s_ in range(NK - R, NK, 4): units.append([(s_ + i, (2 * d, 2 * d + 1)) for i in range(4)])
    def frs(u):
        o = []
        for s_, tl in units[u]:
            for t in tl: o.append((s_, t, AF + 32 * (u & 3) + 4 * len(o)))
        return o
    def ureads(u):
        o = []
        for s_, t, r in frs(u):
            for h in range(2):
                o.append("ds_read_b64_tr_b16 a[%d:%d], v%d offset:%d" % (r + 2 * h, r + 2 * h + 1, RA + 8 * ((s_ >> 3) & 1) + t, (s_ & 7) * 8192 + h * 4096))
        return o
    vm = []
    NH0 = 3
    for s_ in range(NH0):
        for jt in range(4):
            for y in hload(s_, jt): A(y)
            vm.append(("H", s_))
    for x in ureads(0) + ureads(1): A(x)
    lg = [0] * 16 + [1] * 16
    A("s_lshl_b32 s53, s2, 2"); A("s_add_u32 s53, s53, s%d" % W); A("s_mul_i32 s52, s53, %d" % (3 * 4096)); A("s_lshl_b32 s53, s53, 9"); A("s_add_u32 s53, s53, %d" % M.FX)
    A("s_lshl_b32 s54, s2, 7"); A("s_add_u32 s54, s54, %d" % M.FS)
    A("s_lshl_b32 s46, s42, 12"); A("s_lshl_b32 s45, s%d, 10" % W); A("s_add_u32 s46, s46, s45"); A("s_add_u32 s46, s46, %d" % M.FS)
    M.srd(A, 36, M.PWS, M.WS_XC, M.SZ_XC)
    A("v_and_b32 v21, 15, v1"); A("v_mul_u32_u24 v16, 80, v21"); A("v_lshrrev_b32 v21, 4, v1"); A("v_lshl_add_u32 v16, v21, 3, v16"); A("v_lshl_add_u32 v16, v2, 13, v16")
    A("v_lshrrev_b32 v21, 2, v1"); A("v_mul_u32_u24 v17, 80, v21"); A("v_and_b32 v21, 3, v1"); A("v_lshl_add_u32 v17, v21, 4, v17"); A("v_lshl_add_u32 v17, v2, 13, v17")
    FL = "s[%d:%d]" % (M.SFL, M.SFL + 3)
    def quick(tag, vd, nl, soff):
        A("v_cmp_ne_u32 vcc, s%d, v%d" % (M.TOK, vd)); A("s_nop 1"); A("s_bfm_b64 s[66:67], %d, 0" % nl); A("s_and_b64 vcc, vcc, s[66:67]"); A("s_nop 3")
        A("s_cbranch_vccz pd_%s" % tag)
        M.poll(A, tag, soff, 13, vd, nl)
    def vwait(tags):
        last = max([i for i, t in enumerate(vm) if t in tags] + [-1])
        return min(63, len(vm) - 1 - last)
    def lwait(u):
        last = max(i for i, t in enumerate(lg) if t == u)
        return min(15, len(lg) - 1 - last)
    cert = 0; hnext = NH0
    UFB = 14 - LA
    for u in range(len(units)):
        ks = [x[0] for x in units[u]]
        need = [("H", k) for k in ks]
        nxt = max(x[0] for x in units[u + 2]) >> 2 if u + 2 < len(units) else 0
        bar = nxt > cert
        if bar: need.append(("W", nxt))
        if u == 14: need += [("S", 0)]
        if u == UFB: need += [("fb", 0)]
        if u == 21: need += [("fs", 0)]
        sd = {22: 3, 24: 2, 26: 1}.get(u); fd = {25: 3, 27: 2}.get(u)
        if fd: need += [("X", fd)]
        A("s_waitcnt vmcnt(%d) lgkmcnt(%d)" % (vwait(need), lwait(u)))
        if bar: A("s_barrier"); cert = nxt
        if u == 2:
            assert bar
            A("s_cmp_lg_u32 s%d, 0" % W); A("s_cbranch_scc1 g2_np")
            A("s_cmp_eq_u32 s69, 0"); A("s_cbranch_scc1 g2_np")
            M.set_flag(A, 55, 12, 25)
            A.label("g2_np")
        if u == 14:
            assert bar
            M.set_flag_w0(A, "fs", 54, 12, 25)
        if u == UFB: quick("fb", 18, 7, 47)
        if u == 21: quick("fs", 19, 8, 46)
        if ENV("FIT") and u in (20, 24): stamp(A, 2 + (u - 20) // 4)
        if ENV("G2IT") and u % 4 == 0 and u < 24: stamp(A, 2 + u // 4)
        rd = ureads(u + 2) if u + 2 < len(units) else []
        fr = frs(u)
        ex = [[] for _ in range(32)]
        def flagst(d):
            return ["s_xor_b32 s45, s53, 0x%x" % (d << 12), "v_mov_b32 v25, s%d" % M.TOK, "s_mov_b64 exec, 1",
                    "buffer_store_dword v25, v12, %s, s45 offen offset:%d sc1" % (FL, (d - 1) * 128), "s_mov_b64 exec, -1"]
        if fd: ex[1].append((flagst(fd), ("F", fd)))
        if u < NK - R:
            iv = (u + 10) >> 2
            if iv < 6:
                d0, d1 = g2_dma_of(u); ex[5].append((d0, ("W", iv))); ex[21].append((d1, ("W", iv)))
            elif u in (14, 15):
                for i in range(2):
                    d0, d1 = g2_dma_of(14 + 2 * (u - 14) + i); ex[5 + 16 * i].append((d0, ("W", 6))); ex[9 + 16 * i].append((d1, ("W", 6)))
            tgt = min(NK, u + 1 + LA + (2 if u >= NK - R - 3 else 0), u + 8)
            n = min(2, tgt - hnext)
            last = u == NK - R - 1
            for i in range(n):
                assert hnext < 14 or u >= UFB
                for jt in range(4): ex[jt if last else (2 + 16 * i + 4 * jt) if n == 2 else (3 + 8 * jt)].append((hload(hnext, jt), ("H", hnext)))
                hnext += 1
            if last:
                assert n <= 1 and hnext == u + 8
                for jt in range(4): ex[8 * jt + 7].append((hload(hnext, jt), ("H", hnext)))
                hnext += 1
        for i in ((2 * u - 16, 2 * u - 15) if u in (8, 9) else ()):
            ex[15 + 16 * (i & 1)].append((["buffer_store_dwordx4 %s, v22, s[56:59], s%d offen offset:%d sc1" % (q("v", SO + 4 * i), 40 + (i & 1), (i >> 1) * 64)], ("S", 0)))
        if u == UFB - 3: ex[29].append((["s_bfm_b64 exec, 7, 0", "buffer_load_dword v18, v13, %s, s47 offen sc1" % FL, "s_mov_b64 exec, -1"], ("fb", 0)))
        if u == 18: ex[29].append((["s_bfm_b64 exec, 8, 0", "buffer_load_dword v19, v13, %s, s46 offen sc1" % FL, "s_mov_b64 exec, -1"], ("fs", 0)))
        if u == 21:
            ex[0].append((["s_lshl_b32 s6, s42, 19", "s_lshl_b32 s7, s%d, 17" % W, "s_add_u32 s6, s6, s7", "s_lshl_b32 s7, s43, 12", "s_add_u32 s6, s6, s7", "s_lshl_b32 s7, s44, 10", "s_add_u32 s6, s6, s7"], None))
            for i in range(4): ex[3 + 8 * i].append((["buffer_load_dwordx4 %s, v3, s[56:59], s6 offen sc1" % q("v", SR + 4 * i), "s_add_u32 s6, s6, 0x8000"], ("s", 0)))
        if u == 27: ex[0].append((["s_bfm_b64 exec, 3, 0", "buffer_load_dword v24, v13, %s, s53 offen sc1" % FL, "s_mov_b64 exec, -1"], ("fx", 0)))
        if sd:
            b0 = ACC + 32 * sd
            ex[0].append((["s_xor_b32 s45, s2, %d" % (sd << 1), "s_lshl_b32 s45, s45, 2", "s_add_u32 s45, s45, s%d" % W, "s_mul_i32 s45, s45, %d" % (3 * 4096), "s_add_u32 s45, s45, %d" % ((sd - 1) * 4096)], None))
            for i in range(4):
                for e in range(4): ex[4 + 4 * i + e].append((["v_cvt_pk_bf16_f32 v%d, v%d, v%d" % (b0 + 8 * i + e, b0 + 8 * i + 2 * e, b0 + 8 * i + 2 * e + 1)], None))
                ex[8 + 4 * i].append((["buffer_store_dwordx4 %s, v3, s[36:39], s45 offen offset:%d sc1" % (q("v", b0 + 8 * i), i * 1024)], ("X", sd)))
        k = 0
        if len(units[u]) == 1: seq = [(f, jt) for jt in range(4) for f in fr]
        else: seq = [(f, jt) for f in fr for jt in range(4)]
        for i, ((s_, t, r), jt) in enumerate(seq):
            d = q("v", ACC + 16 * t + 4 * jt)
            A("%s %s, %s, %s, %s" % (MF, d, q("a", r), q("a", HR + 16 * (s_ & 7) + 4 * jt), "0" if s_ == 0 else d))
            if i % 2 == 0 and i // 2 < len(rd): A(rd[i // 2]); lg.append(u + 2)
            for ins, tag in ex[i]:
                for y in ins:
                    A(y)
                    if y.startswith("buffer"): vm.append(tag)
    assert hnext == NK
    stamp(A, 10)
    nl2e = -math.log2(math.e)
    A("s_mov_b32 s56, 0x%x" % f32(nl2e)); A("s_mov_b32 s57, s56"); A("s_mov_b32 s59, 0xffff0000")
    A("v_mov_b32 v26, 1.0"); A("v_mov_b32 v27, 1.0")
    A("s_waitcnt vmcnt(%d)" % vwait([("X", 1), ("fx", 0)]))
    for y in flagst(1): A(y)
    if ENV("FIT"): stamp(A, 4)
    UX, US, PB = 64, 96, 128
    H4 = range(0, 8, 2)
    def pl(d):
        A("s_add_u32 s45, s52, %d" % (d * 4096))
        for i in range(4): A("buffer_load_dwordx4 %s, v3, s[36:39], s45 offen offset:%d sc1" % (q("v", PB + 16 * d + 4 * i), i * 1024))
    def unp():
        for i in range(16):
            A("v_lshlrev_b32 v%d, 16, v%d" % (UX + 2 * i, XR + i)); A("v_and_b32 v%d, s59, v%d" % (UX + 2 * i + 1, XR + i))
            A("v_lshlrev_b32 v%d, 16, v%d" % (US + 2 * i, SR + i)); A("v_and_b32 v%d, s59, v%d" % (US + 2 * i + 1, SR + i))
    A("v_cmp_ne_u32 s[10:11], s%d, v24" % M.TOK); A("s_nop 1")
    A("s_and_b32 s11, s10, 6"); A("s_cbranch_scc0 pd_fx2")
    A("s_add_u32 s45, s53, 128")
    M.poll(A, "fx2", 45, 13, 24, 2, sleep=1)
    if ENV("FIT"): stamp(A, 5)
    pl(2); pl(1)
    A("s_and_b32 s11, s10, 1"); A("s_cbranch_scc0 pd_fx1")
    M.poll(A, "fx1", 53, 13, 24, 1, sleep=1)
    pl(0)
    unp()
    A("s_barrier")
    A("s_waitcnt vmcnt(4)")
    if ENV("FIT"): stamp(A, 6)
    M.srd(A, 12, M.POUT, 0, 4 << 20)
    def addp(t, d, tt):
        for e in range(4):
            A("v_lshlrev_b32 v%d, 16, v%d" % (tt + 2 * e, PB + 16 * d + 4 * t + e)); A("v_and_b32 v%d, s59, v%d" % (tt + 2 * e + 1, PB + 16 * d + 4 * t + e))
        for e in H4: A("v_pk_add_f32 %s, %s, %s" % (p2(ACC + 8 * t + e), p2(ACC + 8 * t + e), p2(tt + e)))
    for t in range(4):
        for d in (2, 1): addp(t, d, 208 + 8 * d)
    for t in range(4):
        b = 8 * t; T = 208 + 8 * (t & 1)
        A("s_waitcnt vmcnt(%d)" % (3 - t))
        if ENV("FIT") and t == 0: stamp(A, 7)
        addp(t, 0, T)
        for e in H4: A("v_pk_mul_f32 %s, %s, s[56:57]" % (p2(T + e), p2(ACC + b + e)))
        for e in range(8): A("v_exp_f32 v%d, v%d" % (T + e, T + e))
        A("s_nop 0")
        for e in H4: A("v_pk_add_f32 %s, %s, v[26:27]" % (p2(T + e), p2(T + e)))
        for e in range(8): A("v_rcp_f32 v%d, v%d" % (T + e, T + e))
        A("s_nop 0")
        for e in H4: A("v_pk_mul_f32 %s, %s, %s" % (p2(ACC + b + e), p2(ACC + b + e), p2(T + e)))
        for e in range(4): A("v_cvt_pk_bf16_f32 v%d, v%d, v%d" % (SR + 4 * t + e, ACC + b + 2 * e, ACC + b + 2 * e + 1))
        for u in range(2):
            A("ds_write_b64 v16, %s offset:%d" % (p2(SR + 4 * t + 2 * u), (2 * (t & 1) + u) * 16 * 80 + (t >> 1) * 32))
    A("s_waitcnt lgkmcnt(0)")
    for i in range(4): A("ds_read_b128 %s, v17 offset:%d" % (q("v", ACC + 4 * i), i * 16 * 80))
    for i in range(4):
        A("s_waitcnt lgkmcnt(%d)" % (3 - i))
        T = 208 + 8 * (i & 1)
        for e in range(4):
            A("v_lshlrev_b32 v%d, 16, v%d" % (T + 2 * e, ACC + 4 * i + e)); A("v_and_b32 v%d, s59, v%d" % (T + 2 * e + 1, ACC + 4 * i + e))
        for e in H4: A("v_pk_fma_f32 %s, %s, %s, %s" % (p2(UX + 8 * i + e), p2(US + 8 * i + e), p2(T + e), p2(UX + 8 * i + e)))
        for e in range(4): A("v_cvt_pk_bf16_f32 v%d, v%d, v%d" % (XR + 4 * i + e, UX + 8 * i + 2 * e, UX + 8 * i + 2 * e + 1))
        A("buffer_store_dwordx4 %s, v28, s[12:15], %s" % (q("v", XR + 4 * i), io(i)))
    if G.STAMP:
        A("s_waitcnt vmcnt(0)")
        stamp(A, 11); A("s_memrealtime s[100:101]"); A("s_waitcnt lgkmcnt(0)")
        G.stamp_out(A, 0, 12, M.PWS, "all")
        A("v_mov_b32 v2, s100"); A("buffer_store_dword v2, v1, s[96:99], 0 offen offset:48")

def colfft(A, M):
    W_ = M.WAVE
    DAT, FA, FE = 128, 160, 176
    W, T1, T2, D, P, TMP = 8, 40, 48, 104, 168, 200
    A("s_waitcnt lgkmcnt(0)")
    M.flat(A, M.late_stores())
    M.srd(A, 36, M.PWS, M.WS_WT, M.SZ_WT)
    A("v_mov_b32 v240, 0"); A("v_lshlrev_b32 v242, 7, v1")
    WSZ = 2048 * 1026
    M.rel_dma(A)
    M.srd(A, 52, M.PWR, 0, WSZ); M.srd(A, 56, M.PWI, 0, WSZ)
    A("s_waitcnt vmcnt(8)"); A("s_barrier")
    M.set_flag_w0(A, "f2f", 63, 240, 241)
    names = []
    for inv in range(2):
        for part in range(2): names.append(("fa_%d%d" % (inv, part), ar(FA + 8 * inv + 4 * part, 4)))
    for t in range(2): names.append(("t1_%d" % t, vr(T1 + 4 * t, 4)))
    for e in range(1, 8):
        for t in range(2): names.append(("t2_%d%d" % (e, t), vr(T2 + 8 * (e - 1) + 4 * t, 4)))
    for ih in range(2): names.append(("fe32_%d" % ih, ar(FE + 4 * ih, 4)))
    for nm, r in names: G.tab_load(A, r, nm, 3, M.STAB, 42)
    A("s_lshl_b32 s41, s2, 6"); A("v_add_u32 v200, s41, v1"); A("v_sub_u32 v201, 2048, v200"); A("v_and_b32 v201, 0x7ff, v201")
    A("v_mul_u32_u24 v202, 1026, v200"); A("v_mul_u32_u24 v201, 1026, v201")
    A("s_cmp_lg_u32 s%d, 0" % W_); A("s_cbranch_scc1 r_noabl")
    for i, (va, sd, off) in enumerate([(202, 52, 0), (202, 56, 0), (201, 52, 0), (201, 56, 0), (202, 52, 1024), (202, 56, 1024), (201, 52, 1024), (201, 56, 1024)]):
        A("buffer_load_ushort v%d, v%d, s[%d:%d], 0 offen offset:%d" % (208 + i, va, sd, sd + 3, off))
    A.label("r_noabl")
    A("s_waitcnt vmcnt(0)")
    for y in M.rel_reads(): A(y)
    A("s_waitcnt lgkmcnt(0)")
    for y in M.rel_valu(): A(y.replace("a17", "a21").replace("a18", "a22").replace("a190", "a230").replace("a191", "a231"))
    for x in M.rel_stores():
        for y in x: A(y.replace("a[176:179]", "a[216:219]").replace("a[180:183]", "a[220:223]").replace("a[184:187]", "a[224:227]").replace("a[188:191]", "a[228:231]"))
    A("s_cmp_lg_u32 s%d, 0" % W_); A("s_cbranch_scc1 r_noab")
    for i in range(8): A("v_lshlrev_b32 v%d, 16, v%d" % (208 + i, 208 + i))
    A("v_add_f32 v216, v208, v210"); A("v_sub_f32 v217, v209, v211"); A("v_add_f32 v218, v212, v214"); A("v_sub_f32 v219, v213, v215")
    A("v_add_f32 v220, v216, v218"); A("v_add_f32 v221, v217, v219"); A("v_sub_f32 v222, v216, v218"); A("v_sub_f32 v223, v217, v219")
    for i in range(4): A("v_mul_f32 v%d, 0x3e800000, v%d" % (220 + i, 220 + i))
    A("v_cvt_pk_bf16_f32 v220, v220, v221"); A("v_cvt_pk_bf16_f32 v222, v222, v223")
    A("v_and_b32 v216, 15, v200"); A("v_lshlrev_b32 v216, 4, v216"); A("v_bfe_u32 v217, v200, 4, 2"); A("v_lshl_add_u32 v216, v217, 2, v216")
    A("v_lshrrev_b32 v217, 6, v200"); A("v_lshl_add_u32 v216, v217, 8, v216")
    A("s_mov_b32 s40, 0x%x" % (512 * 8192)); A("s_mov_b32 s41, 0x%x" % (513 * 8192))
    A("buffer_store_dword v220, v216, s[36:39], s40 offen sc1"); A("buffer_store_dword v222, v216, s[36:39], s41 offen sc1")
    A.label("r_noab")
    if ENV("RIT"): stamp(A, 2)
    A("v_and_b32 v4, 15, v1"); A("v_lshrrev_b32 v5, 4, v1")
    A("v_lshlrev_b32 v6, 6, v4"); A("v_lshl_add_u32 v6, v5, 4, v6")
    for k in range(4):
        A("v_add_u32 v7, %d, v5" % (4 * k)); A("v_xor_b32 v7, v7, v4"); A("v_lshlrev_b32 v7, 4, v7"); A("v_lshl_add_u32 v%d, v5, 8, v7" % (232 + k))
    A("v_lshrrev_b32 v7, 5, v1"); A("v_lshlrev_b32 v7, 3, v7"); A("v_bfe_u32 v236, v1, 4, 1"); A("v_or_b32 v7, v7, v236"); A("v_xor_b32 v7, v7, v4")
    A("v_lshlrev_b32 v7, 4, v7"); A("v_lshl_add_u32 v236, v4, 8, v7"); A("v_lshl_add_u32 v236, v2, 15, v236")
    A("v_add_u32 v4, 0x1000, v3")
    A("s_lshl_b32 s51, s2, 2"); A("s_add_u32 s51, s51, s%d" % W_)
    A("s_and_b32 s41, s51, 15"); A("s_bfe_u32 s42, s51, 0x20004"); A("s_lshl_b32 s42, s42, 7")
    A("s_add_u32 s40, s41, s42")
    A("s_sub_u32 s43, 32, s41"); A("s_cmp_eq_u32 s41, 0"); A("s_cselect_b32 s43, 16, s43")
    A("s_add_u32 s43, s43, 480"); A("s_sub_u32 s43, s43, s42")
    A("s_cmp_ge_u32 s51, 64"); A("s_cselect_b32 s40, s43, s40"); A("s_cselect_b32 s50, -1, 1"); A("s_lshl_b32 s50, s50, 18")
    A("s_lshl_b32 s40, s40, 13")
    M.srd(A, 52, M.PWS, M.WS_Y, M.SZ_Y); M.srd(A, 56, M.PWS, M.WS_Z, M.SZ_Z)
    A("s_lshl_b32 s44, s%d, 13" % W_); A("s_add_u32 s44, s44, %d" % M.F2)
    M.poll(A, "f2", 44, 242, 244, 64, sleep=4)
    A("s_barrier")
    A("s_add_u32 s63, s63, %d" % (M.F2B - M.F2))
    M.set_flag_w0(A, "f2fb", 63, 240, 241)
    stamp(A, 5)
    A("s_lshl_b32 s41, s51, 15"); A("s_lshl_b32 s42, s%d, 15" % W_)
    for e in range(8):
        A("s_add_u32 m0, s42, %d" % (e * 4096))
        for k in range(4): A("buffer_load_dwordx4 v%d, s[52:55], s41 offen offset:%d sc1 lds" % (232 + k, k * 1024))
        A("s_add_u32 s41, s41, 4096")
    def wload(dst, f, so):
        for e in range(8):
            A("buffer_load_dwordx4 %s, v%d, s[36:39], s%d offen offset:%d sc1" % (q(f, dst + 4 * e), 3 if e < 4 else 4, so, (e & 3) * 1024))
    A("s_mov_b32 s48, 0"); A("s_mov_b32 s49, 0xffff0000")
    def yread():
        for e in range(8): A("ds_read_b128 %s, v237 offset:%d" % (q("a", DAT + 4 * e), e * 4096))
    A("v_mov_b32 v237, v236")
    A("s_cmp_eq_u32 s51, 0"); A("s_cselect_b32 s62, 0x%x, s40" % (512 * 8192))
    A("s_waitcnt vmcnt(0)")
    yread()
    stamp(A, 6)
    A.label("cf_loop")
    A("s_waitcnt lgkmcnt(0)")
    def mm(d, a, b, c=None):
        A("%s %s, %s, %s, %s" % (MF, q("v", d), a, b, "0" if c is None else q("v", c)))
    tctr = [0]
    def tw_quads(dsts, re, tc, conj, TMP=TMP):
        t = TMP + 8 * (tctr[0] % 4); tctr[0] += 1
        im = re + 4; ts = tc + 4
        neg = " neg_lo:[1,0,0] neg_hi:[1,0,0]"
        for h in (0, 2): A("v_pk_mul_f32 %s, %s, %s" % (p2(t + h), p2(re + h), p2(tc + h)))
        for h in (0, 2): A("v_pk_mul_f32 %s, %s, %s" % (p2(t + 4 + h), p2(im + h), p2(tc + h)))
        for h in (0, 2): A("v_pk_fma_f32 %s, %s, %s, %s%s" % (p2(t + h), p2(im + h), p2(ts + h), p2(t + h), neg if conj else ""))
        for h in (0, 2): A("v_pk_fma_f32 %s, %s, %s, %s%s" % (p2(t + 4 + h), p2(re + h), p2(ts + h), p2(t + 4 + h), "" if conj else neg))
        for r in range(4): A("v_cvt_pk_bf16_f32 v%d, v%d, v%d" % (dsts[r], t + r, t + 4 + r))
    def cm_pairs(items):
        ts = []
        for _ in items:
            ts.append(TMP + 2 * (tctr[0] % 8)); tctr[0] += 1
        for (dst, z, c, s_), t in zip(items, ts):
            A("v_pk_mul_f32 %s, %s, %s op_sel:[0,%d] op_sel_hi:[1,%d]" % (p2(t), p2(z), p2(c & ~1), c & 1, c & 1))
        for (dst, z, c, s_), t in zip(items, ts):
            A("v_pk_fma_f32 %s, %s, %s, %s op_sel:[1,%d,0] op_sel_hi:[0,%d,1] neg_lo:[1,0,0]" % (p2(t), p2(z), p2(s_ & ~1), p2(t), s_ & 1, s_ & 1))
        for (dst, z, c, s_), t in zip(items, ts):
            A("v_cvt_pk_bf16_f32 v%d, v%d, v%d" % (dst, t, t + 1))
    for e in range(8):
        mm(D + 8 * e, q("a", DAT + 4 * e), q("a", FA)); mm(D + 8 * e + 4, q("a", DAT + 4 * e), q("a", FA + 4))
    A("s_add_u32 s40, s40, s50")
    A("s_add_u32 s43, s48, 1"); A("s_and_b32 s43, s43, 3"); A("s_lshl_b32 s43, s43, 5"); A("v_xor_b32 v237, s43, v236")
    yread()
    for e in range(8): tw_quads([P + 4 * e + r for r in range(4)], D + 8 * e, T1, False)
    for e in range(8):
        mm(D + 8 * e, q("a", FA), q("v", P + 4 * e)); mm(D + 8 * e + 4, q("a", FA + 4), q("v", P + 4 * e))
    A("s_cmp_lg_u32 s48, 0"); A("s_cbranch_scc1 cf_nw")
    A("s_add_u32 s44, s44, %d" % (M.F2B - M.F2))
    M.poll(A, "f2b", 44, 242, 244, 64, sleep=4)
    A("s_barrier")
    wload(W, "v", 62)
    A.label("cf_nw")
    for e in range(8):
        if e == 0:
            for r in range(4): A("v_cvt_pk_bf16_f32 v%d, v%d, v%d" % (P + 8 * r, D + r, D + 4 + r))
        else: tw_quads([P + 8 * r + e for r in range(4)], D + 8 * e, T2 + 8 * (e - 1), False)
    def stageE():
        for ih in range(2):
            for r in range(4):
                d = "v[%d:%d]" % (D + 16 * r, D + 16 * r + 15)
                A("%s %s, %s, %s, %s" % (MF32, d, q("a", FE + 4 * ih), q("v", P + 8 * r + 4 * ih), "0" if ih == 0 else d))
    stageE()
    A("s_waitcnt vmcnt(0)")
    U = TMP + 16
    A("s_or_b32 s43, s51, s48"); A("s_cmp_eq_u32 s43, 0"); A("s_cbranch_scc1 cf_pack")
    for r in range(4):
        for eh in range(2):
            items = []
            for k in range(4):
                ep = 4 * eh + k; w = W + 4 * ep + r; u = U + 8 * (eh & 1) + 2 * k
                A("v_lshlrev_b32 v%d, 16, v%d" % (u, w)); A("v_and_b32 v%d, s49, v%d" % (u + 1, w))
                items.append((P + 8 * r + ep, D + 16 * r + 2 * ep, u, u + 1))
            cm_pairs(items)
    A.label("cf_mul_done")
    wload(W, "v", 40)
    stageE()
    for r in range(4):
        A("v_cvt_pk_bf16_f32 v%d, v%d, v%d" % (P + r, D + 16 * r, D + 16 * r + 1))
        for xs in ((1, 2, 3, 4), (5, 6, 7)):
            cm_pairs([(P + 4 * (8 - x) + r, D + 16 * r + 2 * x, T2 + 8 * (7 - x) + r, T2 + 8 * (7 - x) + 4 + r) for x in xs])
    for e in range(8):
        mm(D + 8 * e, q("v", P + 4 * e), q("a", FA + 8)); mm(D + 8 * e + 4, q("v", P + 4 * e), q("a", FA + 12))
    for e in range(8): tw_quads([P + 4 * e + r for r in range(4)], D + 8 * e, T1, True)
    for e in range(8):
        mm(D + 8 * e, q("v", P + 4 * e), q("a", FA + 8)); mm(D + 8 * e + 4, q("v", P + 4 * e), q("a", FA + 12))
    for e in range(8):
        for r in range(4): A("v_cvt_pk_bf16_f32 v%d, v%d, v%d" % (P + 4 * e + r, D + 8 * e + r, D + 8 * e + 4 + r))
    for cc in range(4):
        A("s_cmp_eq_u32 s48, %d" % cc); A("s_cbranch_scc0 cf_o%d" % cc)
        for qq in range(32): A("v_accvgpr_write_b32 a%d, v%d" % (4 * qq + cc, P + qq))
        A.label("cf_o%d" % cc)
    A("s_add_u32 s48, s48, 1"); A("s_cmp_lt_u32 s48, 4"); A("s_cbranch_scc1 cf_loop")
    stamp(A, 7)
    A("v_and_b32 v238, 15, v1"); A("v_lshlrev_b32 v238, 4, v238"); A("v_lshl_add_u32 v238, v5, 20, v238")
    A("s_lshl_b32 s41, s51, 8")
    for r in range(4):
        for e in range(8):
            qq = 4 * e + r
            A("s_add_u32 s42, s41, 0x%x" % ((8 * r + e) * 32768))
            A("buffer_store_dwordx4 %s, v238, s[56:59], s42 offen sc1" % q("a", 4 * qq))
    A("s_waitcnt vmcnt(0) lgkmcnt(0)")
    A("s_lshl_b32 s44, s2, 7"); A("s_add_u32 s44, s44, %d" % M.F3)
    A("s_barrier")
    M.set_flag_w0(A, "f3", 44, 240, 241)
    if ENV("EIT"): stamp(A, 4)
    i_tabs(A, M); g2_setup(A, M); g2_early(A); x_fetch(A, M, 21, 22, 12)
    A("s_mov_b32 s46, %d" % M.F3)
    M.poll(A, "f3", 46, 242, 244, 32, sleep=4)
    z_fetch(A, M)
    A("s_mov_b32 s58, 0"); A("s_mov_b32 s55, 0"); A("s_mov_b32 s52, 0"); A("s_mov_b32 s53, 0")
    A("s_waitcnt vmcnt(0)")
    A("s_branch cf_end")
    A.label("cf_pack")
    A("s_nop 11")
    SC = M.LDS_SCR
    A("v_and_b32 v238, 15, v1"); A("v_lshl_add_u32 v238, v5, 6, v238")
    A("v_sub_u32 v239, %d, v238" % (2048 - 48 - 1792)); A("v_lshlrev_b32 v238, 3, v238"); A("v_lshlrev_b32 v239, 3, v239")
    A("v_add_u32 v238, 0x%x, v238" % SC); A("v_add_u32 v239, 0x%x, v239" % SC)
    for r in range(4):
        for ep in range(8): A("ds_write_b64 v238, %s offset:%d" % (p2(D + 16 * r + 2 * ep), 8 * (16 * r + 256 * ep)))
    A("s_mov_b64 exec, 1"); A("ds_write_b64 v238, %s offset:%d" % (p2(D), 8 * 2048)); A("s_mov_b64 exec, -1")
    A("s_mov_b32 s43, 0x%x" % (513 * 8192))
    wload(208, "a", 43)
    for r in range(4):
        for ep in range(8):
            w = W + 4 * ep + r; z = D + 16 * r + 2 * ep; u = U + 2 * (ep & 3); t = TMP + 2 * (ep & 3)
            A("v_lshlrev_b32 v%d, 16, v%d" % (u, w)); A("v_and_b32 v%d, s49, v%d" % (u + 1, w))
            A("v_pk_mul_f32 %s, %s, %s op_sel:[0,0] op_sel_hi:[1,0]" % (p2(t), p2(z), p2(u)))
            A("v_pk_fma_f32 %s, %s, %s, %s op_sel:[1,1,0] op_sel_hi:[0,1,1] neg_lo:[1,0,0]" % (p2(z), p2(z), p2(u), p2(t)))
    A("s_waitcnt vmcnt(0) lgkmcnt(0)")
    for rh in range(2):
        for r in (2 * rh, 2 * rh + 1):
            for ep in range(8): A("ds_read_b64 %s, v239 offset:%d" % (p2(W + 16 * (r & 1) + 2 * ep), 8 * (16 * (3 - r) + 256 * (7 - ep))))
        A("s_waitcnt lgkmcnt(0)")
        for r in (2 * rh, 2 * rh + 1):
            for ep in range(8):
                m = W + 16 * (r & 1) + 2 * ep; z = D + 16 * r + 2 * ep; u = U + 2 * (ep & 3)
                A("v_accvgpr_read_b32 v%d, a%d" % (u + 1, 208 + 4 * ep + r))
                A("v_lshlrev_b32 v%d, 16, v%d" % (u, u + 1)); A("v_and_b32 v%d, s49, v%d" % (u + 1, u + 1))
                A("v_pk_fma_f32 %s, %s, %s, %s op_sel:[0,0,0] op_sel_hi:[1,0,1] neg_hi:[1,0,0]" % (p2(z), p2(m), p2(u), p2(z)))
                A("v_pk_fma_f32 %s, %s, %s, %s op_sel:[1,1,0] op_sel_hi:[0,1,1]" % (p2(z), p2(m), p2(u), p2(z)))
                A("v_cvt_pk_bf16_f32 v%d, v%d, v%d" % (P + 8 * r + ep, z, z + 1))
    A("s_nop 1")
    A("s_branch cf_mul_done")
    A.label("cf_end")
```

```python
import sys, math, os
from asmlib import *
import gen as G
from gen import f32, bf16, TAB, KA, NAME, allreduce_add, stamp, STAMP

KN = NAME + "_kernel"
WS_XN = 0;            SZ_XN = 4 << 20
WS_Y = 4 << 20;       SZ_Y = 4 << 20
WS_WT = 8 << 20;      SZ_WT = 514 * 8192
WS_Z = 13 << 20;      SZ_Z = 4 << 20
WS_S = 17 << 20;      SZ_S = 4 << 20
WS_H = 21 << 20;      SZ_H = 16 * 112 * 8192
WS_FL = 35 << 20;     SZ_FL = 0xe0000
WS_XC = 36 << 20;     SZ_XC = 256 * 4 * 3 * 4096
F1, F2, F3, FB, FS, F2B, FH, FX = 0, 0x8000, 0x10000, 0x18000, 0x20000, 0x28000, 0x40000, 0x60000
LDS_SCR = 128 * 1024
LDS_T2 = 145 * 1024
LDS_SIZE = 160 * 1024
MF = "v_mfma_f32_16x16x32_bf16"
MF32 = "v_mfma_f32_32x32x16_bf16"
PX, PWR, PWI, PWG, PWU, PWD, POUT, PDBG, PWS = 4, 6, 8, 12, 14, 16, 18, 20, 22
SFL, STAB, SDBG = 24, 28, 32
TOK, WAVE = 70, 3
ENV = os.environ.get
BULK = ENV('BULK', ' sc1')
HLD = ENV('HLD', ' sc1')

def srd(A, d, base, off, size): G.srd(A, d, base, off, size)
def q(f, r): return "%s[%d:%d]" % (f, r, r + 3)
def p2(r): return "v[%d:%d]" % (r, r + 1)

def set_flag(A, soff, vz, vt, val=None, fl=" sc1"):
    A("v_mov_b32 v%d, s%d" % (vt, TOK if val is None else val))
    A("s_mov_b64 exec, 1")
    A("buffer_store_dword v%d, v%d, s[%d:%d], s%d offen%s" % (vt, vz, SFL, SFL + 3, soff, fl))
    A("s_mov_b64 exec, -1")

def set_flag_w0(A, tag, soff, vz, vt):
    A("s_cmp_lg_u32 s%d, 0" % WAVE); A("s_cbranch_scc1 sf_%s" % tag)
    set_flag(A, soff, vz, vt)
    A.label("sf_%s" % tag)

def poll(A, tag, soff, vaddr, vd, nl, width=1, first_hook=None, sleep=2):
    A("s_mov_b32 s68, 0x20000")
    ld = {1: "buffer_load_dword v%d" % vd, 4: "buffer_load_dwordx4 v[%d:%d]" % (vd, vd + 3)}[width]
    def rnd():
        if nl < 64: A("s_bfm_b64 exec, %d, 0" % nl)
        A("%s, v%d, s[%d:%d], s%d offen sc1" % (ld, vaddr, SFL, SFL + 3, soff))
        if nl < 64: A("s_mov_b64 exec, -1")
        A("s_waitcnt vmcnt(0)")
    def chk():
        if width == 4:
            for i in range(4): A("v_xor_b32 v%d, s%d, v%d" % (vd + i, TOK, vd + i))
            A("v_or3_b32 v%d, v%d, v%d, v%d" % (vd, vd, vd + 1, vd + 2)); A("v_or_b32 v%d, v%d, v%d" % (vd, vd, vd + 3))
            A("v_cmp_ne_u32 vcc, 0, v%d" % vd)
        else: A("v_cmp_ne_u32 vcc, s%d, v%d" % (TOK, vd))
        if nl < 64:
            A("s_nop 1")
            A("s_bfm_b64 s[66:67], %d, 0" % nl); A("s_and_b64 vcc, vcc, s[66:67]")
        A("s_nop 3")
    if first_hook:
        rnd(); first_hook(); chk(); A("s_cbranch_vccz pd_%s" % tag)
    A.label("pl_%s" % tag)
    rnd(); chk()
    A("s_cbranch_vccz pd_%s" % tag)
    A("s_sleep %d" % sleep)
    A("s_sub_u32 s68, s68, 1"); A("s_cmp_lg_u32 s68, 0"); A("s_cbranch_scc1 pl_%s" % tag)
    A.label("pd_%s" % tag)

def tab_dma(A, first, lds0, lds1):
    o = TAB.off(first)
    A("s_lshl_b32 s71, s%d, 12" % WAVE); A("s_add_u32 m0, s71, 0x%x" % lds0); A("s_add_u32 s71, s71, 0x%x" % o)
    for p in range(4): A("buffer_load_dwordx4 v3, s[%d:%d], s71 offen%s lds" % (STAB, STAB + 3, " offset:%d" % (p * 1024) if p else ""))
    A("s_lshl_b32 s71, s%d, 10" % WAVE); A("s_add_u32 m0, s71, 0x%x" % lds1); A("s_add_u32 s71, s71, 0x%x" % (o + 16384))
    A("buffer_load_dwordx4 v3, s[%d:%d], s71 offen lds" % (STAB, STAB + 3))
def tab_read(A, dst, name, first, va, d1):
    i = (TAB.off(name) - TAB.off(first)) // 1024
    A("ds_read_b128 %s, v%d offset:%d" % (dst, va, i * 1024 if i < 16 else d1 + (i - 16) * 1024))

def code_srd(A, d, lab):
    A("s_getpc_b64 s[%d:%d]" % (d, d + 1))
    A.label("cs_%s" % lab)
    A("s_add_u32 s%d, s%d, %s-cs_%s" % (d, d, lab, lab)); A("s_addc_u32 s%d, s%d, 0" % (d + 1, d + 1))
    A("s_and_b32 s%d, s%d, 0xffff" % (d + 1, d + 1))
    A("s_mov_b32 s%d, k_done-%s" % (d + 2, lab)); A("s_mov_b32 s%d, 0x20000" % (d + 3))

VWD = 244
def g1_decode(A):
    A("s_and_b32 s40, s2, 7"); A("s_lshr_b32 s41, s2, 3"); A("s_sub_u32 s41, s41, 4")
    A("s_and_b32 s42, s40, 1"); A("s_lshl_b32 s42, s42, 2"); A("s_and_b32 s43, s41, 3"); A("s_add_u32 s42, s42, s43")
    A("s_lshr_b32 s43, s40, 1"); A("s_mul_i32 s43, s43, 7"); A("s_lshr_b32 s44, s41, 2"); A("s_add_u32 s43, s43, s44")
    A("s_and_b32 s46, s%d, 1" % WAVE); A("s_lshr_b32 s47, s%d, 1" % WAVE)
def dmaX(buf):
    o = [["s_add_u32 m0, s64, 0x%x" % (buf * 32768), "buffer_load_dwordx4 v3, s[48:51], s60 offen%s lds" % BULK]]
    for p in range(1, 4): o.append(["buffer_load_dwordx4 v3, s[48:51], s60 offen offset:%d%s lds" % (p * 1024, BULK)])
    o[-1].append("s_add_u32 s60, s60, 0x4000")
    return o
def dmaW(buf, v):
    return [["s_add_u32 m0, s65, 0x%x" % (buf * 32768), "buffer_load_dwordx4 v%d, s[52:55], s61 offen lds" % v],
            ["buffer_load_dwordx4 v%d, s[52:55], s62 offen offset:1024 lds" % v],
            ["buffer_load_dwordx4 v%d, s[56:59], s61 offen offset:2048 lds" % v, "s_add_u32 s61, s61, %d" % (32 * 7168)],
            ["buffer_load_dwordx4 v%d, s[56:59], s62 offen offset:3072 lds" % v, "s_add_u32 s62, s62, %d" % (32 * 7168)]]
def flat(A, l):
    for x in l:
        for y in x: A(y)

def w_touch():
    return ["buffer_load_dword v16, v17, s[36:39], s69 offen", "s_add_u32 s69, s69, %d" % (128 * 7168)]
def w_touch_setup(A):
    A("s_cmp_lt_u32 s%d, 2" % WAVE); A("s_cselect_b32 s36, s%d, s%d" % (PWG, PWU)); A("s_cselect_b32 s37, s%d, s%d" % (PWG + 1, PWU + 1))
    A("s_and_b32 s37, s37, 0xffff"); A("s_mov_b32 s38, %d" % (1024 * 7168)); A("s_mov_b32 s39, 0x20000")
    A("s_cmp_lt_u32 s2, 32"); A("s_cselect_b32 s38, 0, s38")
    A("s_mul_i32 s69, s42, %d" % (16 * 7168)); A("s_lshl_b32 s41, s43, 8"); A("s_add_u32 s69, s69, s41"); A("s_lshl_b32 s41, s46, 7"); A("s_add_u32 s69, s69, s41")
    A("s_add_u32 s69, s69, %d" % (128 * 7168))
    A("v_mul_u32_u24 v17, 7168, v1"); A("v_lshrrev_b32 v16, 4, v1"); A("v_lshl_add_u32 v17, v16, 24, v17")
def g1_addr(A):
    A("v_mov_b32 v4, v%d" % VWD); A("v_lshlrev_b32 v243, 7, v1")
    A("s_lshl_b32 s40, s47, 13"); A("v_add_u32 v5, s40, v3"); A("v_add_u32 v6, 0x10000, v5")
    A("v_bfe_u32 v7, v1, 4, 1"); A("v_lshlrev_b32 v140, 12, v7")
    A("v_bfe_u32 v7, v1, 5, 1"); A("v_lshl_add_u32 v140, v7, 10, v140")
    A("v_bfe_u32 v7, v1, 2, 2"); A("v_lshl_add_u32 v140, v7, 8, v140")
    A("v_and_b32 v7, 3, v1"); A("v_lshl_add_u32 v140, v7, 3, v140"); A("v_add_u32 v140, 0x4000, v140")
    A("v_bfe_u32 v7, v1, 2, 3"); A("s_lshl_b32 s40, s46, 2"); A("v_xor_b32 v7, s40, v7")
    for t in range(4):
        A("v_xor_b32 v141, %d, v7" % t); A("v_lshl_add_u32 v%d, v141, 5, v140" % (8 + t)); A("v_add_u32 v%d, 0x10000, v%d" % (12 + t, 8 + t))

def phase_a(A):
    RS = 2080; XS = LDS_SCR; YT = 96 * 1024
    A("s_load_dwordx16 s[4:19], s[0:1], 0"); A("s_load_dwordx4 s[20:23], s[0:1], 64")
    A("s_memrealtime s[66:67]")
    if not ENV("NOCPF0"):
        code_srd(A, 36, "a_start"); A("s_bfe_u32 s40, s2, 0x30003"); A("s_lshl_b32 s40, s40, 13")
        A("v_and_b32 v5, 15, v0"); A("v_lshlrev_b32 v5, 7, v5"); A("v_lshrrev_b32 v6, 6, v0"); A("v_lshl_add_u32 v5, v6, 11, v5")
        A("s_mov_b64 exec, 0xffff"); A("buffer_load_dword v243, v5, s[36:39], s40 offen"); A("s_mov_b64 exec, -1")
        A.label("a_start")
    G.tab_srd(A, STAB, "a")
    A("v_and_b32 v1, 63, v0"); A("v_lshrrev_b32 v2, 6, v0")
    A("v_readfirstlane_b32 s%d, v2" % WAVE)
    A("v_lshlrev_b32 v3, 4, v1")
    A("s_and_b32 s36, s2, 7"); A("s_bfe_u32 s37, s2, 0x10003"); A("s_lshr_b32 s38, s2, 4")
    A("s_lshl_b32 s39, s38, 3"); A("s_add_u32 s39, s39, s36")
    A("s_lshl_b32 s44, s37, 21"); A("s_lshl_b32 s45, s39, 11"); A("s_add_u32 s63, s44, s45"); A("s_add_u32 s69, s63, 0x40000")
    A("v_lshl_add_u32 v4, v2, 19, v3")
    g1_decode(A)
    A("v_lshrrev_b32 v5, 4, v1"); A("s_lshl_b32 s48, s46, 2"); A("v_add_u32 v5, s48, v5")
    A("v_lshlrev_b32 v6, 1, v5"); A("v_and_b32 v7, 15, v1"); A("v_xor_b32 v6, v6, v7")
    A("s_lshl_b32 s48, s47, 4"); A("v_add_u32 v5, s48, v5")
    A("v_mul_u32_u24 v5, 7168, v5"); A("v_lshl_add_u32 v%d, v6, 4, v5" % VWD)
    A("s_lshl_b32 s61, s43, 8"); A("s_add_u32 s62, s61, %d" % (57344 - 1024))
    A("s_lshl_b32 s64, s%d, 12" % WAVE); A("s_add_u32 s65, s64, 0x4000")
    A("s_lshl_b32 s60, s42, 19"); A("s_add_u32 s60, s60, s64")
    A("s_waitcnt lgkmcnt(0)")
    srd(A, 48, PX, 0, 4 << 20)
    X = 8
    A("buffer_load_dwordx4 v[8:11], v4, s[48:51], s63 offen")
    A("buffer_load_dwordx4 v[12:15], v4, s[48:51], s63 offen offset:1024")
    A("buffer_load_dwordx4 v[16:19], v4, s[48:51], s69 offen")
    A("buffer_load_dwordx4 v[20:23], v4, s[48:51], s69 offen offset:1024")
    srd(A, SDBG, PDBG, 0, 256); srd(A, SFL, PWS, WS_FL, SZ_FL)
    VZ = 245
    A("v_mov_b32 v%d, 0" % VZ)
    A("s_or_b32 s44, s2, s%d" % WAVE); A("s_cmp_lg_u32 s44, 0"); A("s_cbranch_scc1 a_notok")
    A("s_or_b32 s66, s66, 1"); A("v_mov_b32 v246, s66")
    A("s_mov_b64 exec, 1")
    A("buffer_store_dword v246, v%d, s[%d:%d], 0 offen sc1" % (VZ, SDBG, SDBG + 3))
    A("s_mov_b64 exec, -1")
    A.label("a_notok")
    F1r = 64; TW = 72; F2r = 88; F2S = 120
    names = [("f1re", F1r), ("f1im", F1r + 4)]
    for bh in range(2):
        for t in range(2): names.append(("tw%d%d" % (bh, t), TW + 8 * bh + 4 * t))
    for dh in range(2):
        for part in range(2):
            for bh in range(2): names.append(("f2_%d%d%d" % (dh, part, bh), F2r + 16 * dh + 8 * part + 4 * bh))
    for part in range(2):
        for bh in range(2): names.append(("f2s_%d%d" % (part, bh), F2S + 8 * part + 4 * bh))
    TR, XR, XG = 142, 143, 144
    A("v_lshrrev_b32 v7, 2, v1"); A("v_lshlrev_b32 v7, 6, v7"); A("v_and_b32 v%d, 3, v1" % TR)
    A("v_lshl_add_u32 v7, v%d, 3, v7" % TR); A("v_mul_u32_u24 v%d, %d, v2" % (TR, 2 * RS)); A("v_add_u32 v%d, v%d, v7" % (TR, TR)); A("v_add_u32 v%d, 0x%x, v%d" % (TR, XS, TR))
    A("v_and_b32 v7, 7, v1"); A("v_mul_u32_u24 v%d, %d, v7" % (XR, RS)); A("v_lshlrev_b32 v%d, 4, v7" % XG)
    A("v_bfe_u32 v7, v1, 3, 2"); A("v_lshl_add_u32 v%d, v7, 3, v%d" % (XR, XR)); A("v_lshl_add_u32 v%d, v7, 8, v%d" % (XG, XG))
    A("v_lshrrev_b32 v7, 5, v0"); A("v_lshl_add_u32 v%d, v7, 6, v%d" % (XR, XR)); A("v_lshl_add_u32 v%d, v7, 14, v%d" % (XG, XG))
    A("v_add_u32 v%d, 0x%x, v%d" % (XR, XS, XR))
    A("s_lshr_b32 s10, s39, 4"); A("s_lshl_b32 s10, s10, 19"); A("s_and_b32 s11, s39, 15"); A("s_lshl_b32 s11, s11, 10")
    A("s_add_u32 s10, s10, s11"); A("s_lshl_b32 s11, s37, 7"); A("s_add_u32 s10, s10, s11")
    XW = 141
    A("v_mul_u32_u24 v%d, %d, v2" % (XW, 2 * RS)); A("v_add_u32 v%d, v%d, v3" % (XW, XW)); A("v_add_u32 v%d, 0x%x, v%d" % (XW, XS, XW))
    tab_dma(A, "f1re", 112 * 1024, LDS_T2)
    MG, MP, MQ, YB, YR, YG = 136, 137, 138, 139, 146, 145
    A("v_and_b32 v5, 15, v1"); A("v_cmp_eq_u32 vcc, 0, v5"); A("v_mov_b32 v7, 0xffff")
    A("v_cndmask_b32 v%d, -1, 0, vcc" % MG); A("v_cndmask_b32 v%d, 0, v7, vcc" % MP); A("v_lshlrev_b32 v%d, 16, v%d" % (MQ, MP))
    A("v_and_b32 v7, 3, v1"); A("v_lshlrev_b32 v7, 5, v7"); A("v_lshl_add_u32 v%d, v1, 7, v7" % YB); A("v_lshl_add_u32 v%d, v2, 3, v%d" % (YB, YB))
    A("v_add_u32 v%d, 0x%x, v%d" % (YB, YT, YB))
    for r in range(1, 4): A("v_xor_b32 v%d, %d, v%d" % (196 + r, 32 * r, YB))
    A("v_lshlrev_b32 v%d, 4, v0" % YR); A("v_add_u32 v%d, 0x%x, v%d" % (YR, YT, YR))
    A("v_lshrrev_b32 v7, 3, v0"); A("v_lshlrev_b32 v%d, 15, v7" % YG); A("v_and_b32 v7, 3, v7"); A("v_lshlrev_b32 v7, 1, v7")
    A("v_and_b32 v6, 7, v0"); A("v_xor_b32 v7, v7, v6"); A("v_lshl_add_u32 v%d, v7, 4, v%d" % (YG, YG))
    A("s_waitcnt vmcnt(5)")
    stamp(A, 2)
    A("s_mov_b32 s45, 0xffff0000")
    U = 24
    for row in range(2):
        for i in range(8):
            A("v_lshlrev_b32 v%d, 16, v%d" % (U + 16 * row + 2 * i, X + 8 * row + i))
            A("v_and_b32 v%d, s45, v%d" % (U + 16 * row + 2 * i + 1, X + 8 * row + i))
    srd(A, 52, PWG, 0, 1024 * 7168); srd(A, 56, PWU, -2048, 1024 * 7168 + 2048)
    A("s_cmp_lt_u32 s2, 32"); A("s_cselect_b32 s54, 0, s54"); A("s_cselect_b32 s58, 0, s58")
    A0 = A; A = Asm()
    S = [56, 57]; T = [58, 59]; Q = [60, 61]
    def tree(dst):
        for row in range(2):
            b = X + 8 * row
            A("v_pk_add_f32 %s, %s, %s" % (p2(b), p2(b), p2(b + 4))); A("v_pk_add_f32 %s, %s, %s" % (p2(b + 2), p2(b + 2), p2(b + 6)))
        for row in range(2): A("v_pk_add_f32 %s, %s, %s" % (p2(X + 8 * row), p2(X + 8 * row), p2(X + 8 * row + 2)))
        for row in range(2): A("v_add_f32 v%d, v%d, v%d" % (dst[row], X + 8 * row, X + 8 * row + 1))
    for row in range(2):
        for i in range(4): A("v_pk_add_f32 %s, %s, %s" % (p2(X + 8 * row + 2 * i), p2(U + 16 * row + 2 * i), p2(U + 16 * row + 8 + 2 * i)))
    tree(S)
    allreduce_add(A, S, T)
    A("s_mov_b32 s44, 0x%x" % f32(1.0 / 1024))
    for row in range(2): A("v_mul_f32 v%d, s44, v%d" % (S[row], S[row]))
    DV = 164
    sel = lambda row: " op_sel:[0,%d] op_sel_hi:[1,%d] neg_lo:[0,1] neg_hi:[0,1]" % (row, row)
    for row in range(2):
        for i in range(8): A("v_pk_add_f32 %s, %s, v[56:57]%s" % (p2(DV + 16 * row + 2 * i), p2(U + 16 * row + 2 * i), sel(row)))
    for row in range(2):
        for i in range(4): A("v_pk_mul_f32 %s, %s, %s" % (p2(X + 8 * row + 2 * i), p2(DV + 16 * row + 2 * i), p2(DV + 16 * row + 2 * i)))
    for row in range(2):
        for i in range(4): A("v_pk_fma_f32 %s, %s, %s, %s" % (p2(X + 8 * row + 2 * i), p2(DV + 16 * row + 8 + 2 * i), p2(DV + 16 * row + 8 + 2 * i), p2(X + 8 * row + 2 * i)))
    tree(Q)
    A("v_cvt_pk_bf16_f32 v62, v56, v57")
    allreduce_add(A, Q, T)
    A("v_lshlrev_b32 v56, 16, v62"); A("v_and_b32 v57, s45, v62")
    for row in range(2): A("v_mul_f32 v%d, s44, v%d" % (Q[row], Q[row]))
    def rnd2():
        A("v_cvt_pk_bf16_f32 v58, v60, v61"); A("v_lshlrev_b32 v60, 16, v58"); A("v_and_b32 v61, s45, v58")
    rnd2()
    for row in range(2): A("v_add_f32 v%d, 0x%x, v%d" % (Q[row], f32(1e-5), Q[row]))
    rnd2()
    for row in range(2): A("v_sqrt_f32 v%d, v%d" % (Q[row], Q[row]))
    rnd2()
    for row in range(2): A("v_rcp_f32 v%d, v%d" % (Q[row], Q[row]))
    ln = A.items; A = A0
    wd = dmaW(0, VWD) + dmaW(1, VWD) + dmaW(2, VWD)
    stride = len(ln) // len(wd)
    for i, it in enumerate(ln):
        A.items.append(it)
        if i % stride == 0 and i // stride < len(wd):
            for y in wd[i // stride]: A(y)
    A("buffer_load_dword v247, v%d, s[%d:%d], 0 offen sc1" % (VZ, SDBG, SDBG + 3))
    for row in range(2):
        b = U + 16 * row
        for i in range(8): A("v_pk_add_f32 %s, %s, v[56:57]%s" % (p2(b + 2 * i), p2(b + 2 * i), sel(row)))
        for i in range(8): A("v_cvt_pk_bf16_f32 v%d, v%d, v%d" % (X + 8 * row + i, b + 2 * i, b + 2 * i + 1))
        for i in range(8):
            A("v_lshlrev_b32 v%d, 16, v%d" % (b + 2 * i, X + 8 * row + i)); A("v_and_b32 v%d, s45, v%d" % (b + 2 * i + 1, X + 8 * row + i))
        for i in range(8): A("v_pk_mul_f32 %s, %s, v[60:61] op_sel:[0,%d] op_sel_hi:[1,%d]" % (p2(b + 2 * i), p2(b + 2 * i), row, row))
        for i in range(8): A("v_cvt_pk_bf16_f32 v%d, v%d, v%d" % (X + 8 * row + i, b + 2 * i, b + 2 * i + 1))
        A("ds_write_b128 v%d, v[%d:%d] offset:%d" % (XW, X + 8 * row, X + 8 * row + 3, row * RS))
        A("ds_write_b128 v%d, v[%d:%d] offset:%d" % (XW, X + 8 * row + 4, X + 8 * row + 7, row * RS + 1024))
    srd(A, 48, PWS, WS_XN, SZ_XN)
    A("s_waitcnt lgkmcnt(0)")
    for row in range(2):
        for bh in range(2):
            for hh in range(2):
                r = X + 8 * row + 4 * bh + 2 * hh
                A("ds_read_b64_tr_b16 v[%d:%d], v%d offset:%d" % (r, r + 1, TR, row * RS + hh * 1024 + bh * 32))
    A("s_waitcnt vmcnt(13)")
    A("s_barrier")
    XO = 148
    for it in range(4):
        A("ds_read_b64 v[%d:%d], v%d offset:%d" % (XO + 4 * it, XO + 4 * it + 1, XR, it * 512))
        A("ds_read_b64 v[%d:%d], v%d offset:%d" % (XO + 4 * it + 2, XO + 4 * it + 3, XR, it * 512 + 32))
    for it in range(4):
        A("s_add_u32 s41, s10, 0x%x" % (it * 8 * 16384))
        A("s_waitcnt lgkmcnt(%d)" % (6 - 2 * it))
        A("buffer_store_dwordx4 v[%d:%d], v%d, s[48:51], s41 offen sc1" % (XO + 4 * it, XO + 4 * it + 3, XG))
    stamp(A, 3)
    A("v_add_u32 v7, 0x%x, v3" % (112 * 1024))
    for nm, r in names: tab_read(A, vr(r, 4), nm, "f1re", 7, LDS_T2 - 112 * 1024)
    A("s_waitcnt lgkmcnt(12)")
    for row in range(2):
        for bh in range(2):
            for part in range(2):
                d = U + 16 * row + 8 * bh + 4 * part
                A("%s %s, %s, %s, 0" % (MF, q("v", d), q("v", X + 8 * row + 4 * bh), q("v", F1r + 4 * part)))
    PP, PQ = 164, 180
    neg = " neg_lo:[1,0,0] neg_hi:[1,0,0]"
    for row in range(2):
        for bh in range(2):
            re = U + 16 * row + 8 * bh; im = re + 4; tc = TW + 8 * bh; ts = tc + 4; t = 56
            for h in (0, 2): A("v_pk_mul_f32 %s, %s, %s" % (p2(t + h), p2(re + h), p2(tc + h)))
            for h in (0, 2): A("v_pk_mul_f32 %s, %s, %s" % (p2(t + 4 + h), p2(im + h), p2(tc + h)))
            for h in (0, 2): A("v_pk_fma_f32 %s, %s, %s, %s" % (p2(t + h), p2(im + h), p2(ts + h), p2(t + h)))
            for h in (0, 2): A("v_pk_fma_f32 %s, %s, %s, %s%s" % (p2(t + 4 + h), p2(re + h), p2(ts + h), p2(t + 4 + h), neg))
            for r in range(4): A("v_cvt_pk_bf16_f32 v%d, v%d, v%d" % (re + r, t + r, t + 4 + r))
            for r in range(4):
                o = 8 * row + 4 * bh + r
                A("v_and_b32 v%d, v%d, v%d" % (X + o, re + r, MG)); A("v_and_b32 v%d, v%d, v%d" % (PP + o, re + r, MP)); A("v_and_b32 v%d, v%d, v%d" % (PQ + o, re + r, MQ))
    A("s_waitcnt vmcnt(0)")
    A("v_readfirstlane_b32 s%d, v247" % TOK)
    A("s_barrier")
    A("s_cmp_lg_u32 s%d, 0" % TOK); A("s_cbranch_scc1 a_tok")
    A("s_mov_b32 s68, 0x20000")
    A.label("a_tokl")
    A("buffer_load_dword v247, v%d, s[%d:%d], 0 offen sc1" % (VZ, SDBG, SDBG + 3)); A("s_waitcnt vmcnt(0)")
    A("v_readfirstlane_b32 s%d, v247" % TOK)
    A("s_sub_u32 s68, s68, 1"); A("s_cmp_eq_u32 s68, 0"); A("s_cbranch_scc1 a_tok")
    A("s_cmp_eq_u32 s%d, 0" % TOK); A("s_cbranch_scc1 a_tokl")
    A.label("a_tok")
    A("s_cmp_lg_u32 s%d, 0" % WAVE); A("s_cbranch_scc1 a_nof1")
    A("s_lshl_b32 s41, s2, 7")
    set_flag(A, 41, VZ, 246)
    A.label("a_nof1")
    stamp(A, 4)
    A("s_waitcnt lgkmcnt(0)")
    m = []
    for row in range(2):
        for bh in range(2):
            for dh in range(2):
                for part in range(2):
                    d = U + 16 * row + 8 * dh + 4 * part
                    m.append("%s %s, %s, %s, %s" % (MF, q("v", d), q("v", F2r + 16 * dh + 8 * part + 4 * bh), q("v", X + 8 * row + 4 * bh), "0" if bh == 0 else q("v", d)))
        for bh in range(2):
            for dh in range(2):
                for part in range(2):
                    d = U + 16 * row + 8 * dh + 4 * part
                    m.append("%s %s, %s, %s, %s" % (MF, q("v", d), q("v", F2S + 8 * part + 4 * bh), q("v", (PP if dh == 0 else PQ) + 8 * row + 4 * bh), q("v", d)))
    C = Asm(); g1_addr(C)
    s1 = interleave(m, [t for k, t in C.items], 9, 32)
    for k, x in enumerate(m):
        A(x)
        for y in s1[k]: A(y)
    A("s_lshl_b32 s10, s36, 12"); A("s_lshl_b32 s41, s38, 8"); A("s_add_u32 s10, s10, s41"); A("s_lshl_b32 s41, s37, 7"); A("s_add_u32 s10, s10, s41")
    w_touch_setup(A)
    A("s_cmp_lt_u32 s2, 32"); A("s_cbranch_scc1 a_nox")
    A("s_lshl_b32 s44, s42, 12")
    if ENV("AIT"): stamp(A, 8, force=True)
    poll(A, "f1", 44, 243, 246, 32)
    stamp(A, 5)
    for b in range(3): flat(A, dmaX(b))
    for i in range(2):
        for y in w_touch(): A(y)
    A("s_branch a_x")
    A.label("a_nox")
    A("s_waitcnt vmcnt(0)")
    A.label("a_x")
    if ENV("AIT") == "2": stamp(A, 7, force=True)
    srd(A, 32, PWS, WS_Y, WS_WT - WS_Y + SZ_WT)
    A("s_nop 4")
    YP = 64
    for row in range(2):
        for dh in range(2):
            for r in range(4):
                re = U + 16 * row + 8 * dh + r
                A("v_cvt_pk_bf16_f32 v%d, v%d, v%d" % (YP + 8 * dh + 2 * r + row, re, re + 4))
    for dh in range(2):
        for r in range(4):
            A("ds_write_b64 v%d, %s offset:%d" % (YB if r == 0 else 196 + r, p2(YP + 8 * dh + 2 * r), dh * 8192))
    A("s_lshl_b32 s63, s2, 7"); A("s_add_u32 s63, s63, %d" % F2)
    A("v_mov_b32 v18, v%d" % YG)
    if ENV("AIT") == "2": stamp(A, 9, force=True)
    A("v_mov_b32 v28, v243"); A("v_mov_b32 v29, 0")
    A("s_waitcnt vmcnt(10) lgkmcnt(0)")
    if ENV("AIT") == "2": stamp(A, 10, force=True)
    A("s_barrier")
    for it in range(4): A("ds_read_b128 %s, v%d offset:%d" % (q("a", 160 + 4 * it), YR, it * 4096))

def rel_dma(A):
    WSZ = 2048 * 1026
    A("s_bfe_u32 s40, s2, 0x10002"); A("s_lshl_b32 s40, s40, 3"); A("s_lshr_b32 s41, s2, 3"); A("s_lshl_b32 s41, s41, 6"); A("s_add_u32 s40, s40, s41")
    A("s_mul_i32 s40, s40, 1026"); A("s_and_b32 s41, s2, 3"); A("s_lshl_b32 s41, s41, 8"); A("s_add_u32 s40, s40, s41")
    A("v_and_b32 v24, 7, v0"); A("v_lshrrev_b32 v19, 3, v0"); A("v_lshlrev_b32 v19, 15, v19"); A("v_lshl_add_u32 v19, v24, 4, v19")
    A("v_lshrrev_b32 v25, 3, v1"); A("v_mul_u32_u24 v25, 1026, v25"); A("v_and_b32 v25, -16, v25"); A("v_lshl_add_u32 v25, v24, 4, v25"); A("v_lshl_add_u32 v25, v2, 6, v25")
    A("s_lshl_b32 s44, s%d, 13" % WAVE); A("s_add_u32 s44, s44, 0x%x" % LDS_SCR)
    A("s_mov_b32 s66, 0x1f1f1f1f"); A("s_mov_b32 s67, s66")
    for mm_ in range(2):
        srd(A, 96, PWR if mm_ == 0 else PWI, 0, WSZ)
        A("s_add_u32 m0, s44, 0x%x" % (mm_ * 4096)); A("s_mov_b64 exec, s[66:67]")
        for r in range(4):
            A("s_add_u32 s41, s40, %d" % (r * (16 * 1026 - 1024)))
            A("buffer_load_dwordx4 v25, s[96:99], s41 offen%s lds" % (" offset:%d" % (r * 1024) if r else ""))
        A("s_mov_b64 exec, -1")
    A("v_lshlrev_b32 v22, 1, v24"); A("v_and_b32 v22, 12, v22"); A("v_lshl_add_u32 v22, v24, 7, v22")
    A("v_and_b32 v23, 0x38, v1"); A("v_add_u32 v22, v22, v23"); A("v_add_u32 v22, s44, v22")
    A("v_and_b32 v23, 1, v0"); A("v_lshlrev_b32 v23, 4, v23")
    A("s_and_b32 s11, s2, 3"); A("s_lshl_b32 s11, s11, 20"); A("s_lshr_b32 s41, s2, 2"); A("s_lshl_b32 s41, s41, 7"); A("s_add_u32 s11, s11, s41")
    A("s_add_u32 s11, s11, 0x%x" % (WS_WT - WS_Y))
    A("s_mov_b32 s96, 0x05040100"); A("s_mov_b32 s97, 0x07060302")
def rel_reads():
    return ["ds_read_b32 a%d, v22 offset:%d" % (192 + 6 * r + 3 * mm_ + d, mm_ * 4096 + r * 1024 + 4 * d) for r in range(4) for mm_ in range(2) for d in range(3)]
def rel_valu():
    o = []; T = [24, 25, 26, 27, 31, 7]
    for r in range(4):
        for i in range(6): o.append("v_accvgpr_read_b32 v%d, a%d" % (T[i], 192 + 6 * r + i))
        for mm_ in range(2):
            a0, a1, a2 = T[3 * mm_:3 * mm_ + 3]
            o.append("v_alignbit_b32 v%d, v%d, v%d, v23" % (a0, a1, a0)); o.append("v_alignbit_b32 v%d, v%d, v%d, v23" % (a1, a2, a1))
        for c in range(4):
            t = T[2] if c % 2 == 0 else T[5]
            o.append("v_perm_b32 v%d, v%d, v%d, s%d" % (t, T[3 + (c >> 1)], T[c >> 1], 96 + (c & 1)))
            o.append("v_accvgpr_write_b32 a%d, v%d" % (176 + 4 * c + r, t))
    return o
def rel_stores():
    return [["buffer_store_dwordx4 %s, v19, s[32:35], s11 offen sc1" % q("a", 176 + 4 * c), "s_add_u32 s11, s11, 8192"] for c in range(4)]

def late_stores():
    o = []
    for it in range(4):
        o.append(["buffer_store_dwordx4 %s, v18, s[32:35], s10 offen sc1" % q("a", 160 + 4 * it), "s_add_u32 s10, s10, 0x%x" % (32 * 32768)])
    return o

from gen2b import gemm1, colfft, gemm2

def main():
    G.build_tables(); G.build_tables_inv()
    A = Asm(); G.kernel_head(A, KN)
    A("s_cmp_ge_u32 s2, 256"); A("s_cbranch_scc1 k_done")
    stamp(A, 0); stamp(A, 1, True)
    M = sys.modules[__name__]
    phase_a(A)
    A("s_cmp_lt_u32 s2, 32"); A("s_cbranch_scc1 k_fft")
    gemm1(A, M)
    A.label("k_g2")
    gemm2(A, M)
    A("s_endpgm")
    A.label("k_fft")
    colfft(A, M)
    A("s_branch k_g2")
    A.label("k_done"); A("s_endpgm")
    A.fix()
    stub = open("cdna_kernels/%s.s.ref" % NAME).read().split("\n")
    head = [l for l in stub if l.startswith(";") and "@launch" not in l and "Override" not in l and "grid=ceil" not in l]
    o = "\n".join(head[:12]) + "\n"
    if ENV("ASLIST"): o += "; @launch kernel=%s grid=(256,1,1) block=(256,1,1) lds=%d\n" % (KN, LDS_SIZE)
    else: o += "; @launch grid=(256,1,1) block=(256,1,1) lds=%d\n" % LDS_SIZE
    o += '.amdgcn_target "amdgcn-amd-amdhsa--gfx950"\n'
    o += A.text() + G.kernel_desc(KN, 512, 256, 100)
    o += '.section .rodata,"a"\n.p2align 8\n.type gf_tab,@object\ngf_tab:\n'
    for b in TAB.blocks:
        for i in range(0, 256, 8): o += ".long " + ",".join("0x%x" % x for x in b[i:i + 8]) + "\n"
    o += ".size gf_tab, %d\n" % (len(TAB.blocks) * 1024)
    path = sys.argv[1] if len(sys.argv) > 1 else "cdna_kernels/%s.s" % NAME
    open(path, "w").write(o)
    print("wrote", path, len(o), "bytes")

if __name__ == "__main__":
    main()
```

```python
from asmlib import *
import math, os
import gen as G
from gen import stamp, f32
ENV = os.environ.get
MF = "v_mfma_f32_16x16x32_bf16"
MF32 = "v_mfma_f32_32x32x16_bf16"
def q(f, r): return "%s[%d:%d]" % (f, r, r + 3)
def p2(r): return "v[%d:%d]" % (r, r + 1)

ZL = 128 * 1024
I1, I1S, I2 = 160, 192, 208
DV = [5, 6, 14, 15]
def g2_setup(A, M, DV=DV, t0=7, t1=13):
    W = M.WAVE
    A("s_bfe_u32 s44, s2, 0x20001"); A("s_and_b32 s42, s2, 1"); A("s_lshl_b32 s42, s42, 2"); A("s_bfe_u32 s43, s2, 0x20003"); A("s_add_u32 s42, s42, s43")
    A("s_lshr_b32 s43, s2, 5")
    d0, d1, d2, d3 = DV
    A("v_lshrrev_b32 v%d, 4, v1" % t0); A("v_lshlrev_b32 v%d, 11, v%d" % (t1, t0))
    A("v_lshlrev_b32 v%d, 1, v%d" % (t0, t0)); A("v_and_b32 v%d, 15, v1" % d0); A("v_xor_b32 v%d, v%d, v%d" % (t0, t0, d0))
    A("v_lshl_add_u32 v%d, v%d, 4, v%d" % (d0, t0, t1)); A("v_xor_b32 v%d, 0x80, v%d" % (d1, d0))
    A("v_add_u32 v%d, 0x%x, v%d" % (d2, 2 * 7168, d0)); A("v_add_u32 v%d, 0x%x, v%d" % (d3, 3 * 7168, d1)); A("v_add_u32 v%d, 0x%x, v%d" % (d1, 7168, d1))
    M.srd(A, 48, M.PWD, 0, 3584 * 2048)
    A("s_mul_i32 s45, s44, %d" % (896 * 2048)); A("s_lshl_b32 s61, s43, 8"); A("s_add_u32 s61, s61, s45")
    A("s_add_u32 s62, s61, %d" % (896 * 2048))
    A("s_lshl_b32 s45, s%d, 17" % W); A("s_add_u32 s61, s61, s45")
    A("s_lshl_b32 s64, s%d, 13" % W)
def g2_dma(par, p, DV=DV):
    o = []
    if p % 4 == 0: o.append("s_add_u32 m0, s64, 0x%x" % (par * 32768 + (p >> 2) * 4096))
    o.append("buffer_load_dwordx4 v%d, s[48:51], s61 offen%s lds" % (DV[p & 3], " offset:%d" % ((p & 3) * 1024) if p & 3 else ""))
    if p == 3: o.append("s_add_u32 s61, s61, 0x8000")
    if p == 7:
        o.append("s_add_u32 s61, s61, 0x%x" % (256 * 2048 - 0x8000))
        o += ["s_cmp_ge_u32 s61, s62", "s_cselect_b32 s65, %d, 0" % ((896 - 32) * 2048), "s_cselect_b32 s62, -1, s62", "s_sub_u32 s61, s61, s65"]
        if par == 1: o.append("s_xor_b32 s64, s64, 0x10000")
    return o
def g2_dma_of(s):
    u = (s + 2) & 7; par = u >> 2; p = 2 * (u & 3)
    return g2_dma(par, p), g2_dma(par, p + 1)
def z_fetch(A, M, t0=7, t1=13, zs=56):
    W = M.WAVE
    M.srd(A, zs, M.PWS, M.WS_Z, M.SZ_Z)
    A("v_lshrrev_b32 v%d, 4, v1" % t0); A("v_and_b32 v%d, 7, v1" % t1); A("v_xor_b32 v%d, v%d, v%d" % (t0, t0, t1)); A("v_lshlrev_b32 v%d, 4, v%d" % (t0, t0))
    A("v_lshrrev_b32 v%d, 3, v1" % t1); A("v_lshl_add_u32 v%d, v%d, 8, v%d" % (t0, t1, t0)); A("v_xor_b32 v%d, 64, v%d" % (t1, t0))
    A("s_lshr_b32 s40, s2, 1"); A("s_lshl_b32 s40, s40, 15"); A("s_and_b32 s41, s2, 1"); A("s_lshl_b32 s41, s41, 7"); A("s_add_u32 s40, s40, s41")
    A("s_lshl_b32 s41, s%d, 13" % W); A("s_add_u32 s40, s40, s41")
    A("s_lshl_b32 s41, s%d, 12" % W); A("s_add_u32 m0, s41, 0x%x" % ZL)
    for p in range(4):
        A("buffer_load_dwordx4 v%d, s[%d:%d], s40 offen%s sc1 lds" % (t0 if p % 2 == 0 else t1, zs, zs + 3, " offset:%d" % (p * 1024) if p else ""))
        A("s_add_u32 s40, s40, 1024")
def i_tabs(A, M): M.tab_dma(A, "i1_000", 96 * 1024, 112 * 1024)
def io_addr(A, M, va, vt):
    A("v_lshrrev_b32 v%d, 2, v1" % va); A("v_lshlrev_b32 v%d, 18, v%d" % (va, va)); A("v_lshl_add_u32 v%d, v2, 13, v%d" % (va, va))
    A("v_and_b32 v%d, 3, v1" % vt); A("v_lshl_add_u32 v%d, v%d, 4, v%d" % (va, vt, va))
    A("s_and_b32 s8, s2, 1"); A("s_lshl_b32 s8, s8, 17"); A("s_bfe_u32 s9, s2, 0x20003"); A("s_lshl_b32 s9, s9, 15"); A("s_add_u32 s8, s8, s9")
    A("s_lshr_b32 s9, s2, 5"); A("s_lshl_b32 s9, s9, 8"); A("s_add_u32 s8, s8, s9"); A("s_bfe_u32 s9, s2, 0x20001"); A("s_lshl_b32 s9, s9, 6"); A("s_add_u32 s8, s8, s9")
    A("s_add_u32 s9, s8, 0x1000")
def x_fetch(A, M, va, vt, sd):
    io_addr(A, M, va, vt); M.srd(A, sd, M.PX, 0, 4 << 20)
    for i in range(4): A("buffer_load_dwordx4 %s, v%d, s[%d:%d], s%d offen offset:%d" % (q("a", 240 + 4 * i), va, sd, sd + 3, 8 + (i >> 1), (i & 1) * 2048))
def g2_early(A):
    for s in range(-10, 0):
        d0, d1 = g2_dma_of(s)
        for y in d0 + d1: A(y)
HB = [192, 196, 208, 212, 224, 228, 240, 244]

def gemm1(A, M):
    W = M.WAVE; VWD = M.VWD
    def dma(b): return (M.dmaW(b, 4) + M.dmaX(b)) if ENV('WFIRST', '0') == '1' else (M.dmaX(b) + M.dmaW(b, 4))
    def acc(it, jt):
        return ("v", 32 + (jt * 8 + it) * 4) if jt < 7 else ("a", 128 + it * 4)
    def reads(buf, st):
        base = 64 * st; hi = buf >> 1; off = (buf & 1) * 32768
        o = []; la = []; lb = []
        for it in range(8):
            mat, t = it >> 2, it & 3
            for h in range(2):
                r = base + 4 * it + 2 * h
                la.append("ds_read_b64_tr_b16 a[%d:%d], v%d offset:%d" % (r, r + 1, (12 if hi else 8) + t, off + h * 8192 + mat * 2048))
        for jt in range(8):
            r = base + 32 + 4 * jt
            lb.append("ds_read_b128 a[%d:%d], v%d offset:%d" % (r, r + 3, 6 if hi else 5, off + jt * 1024))
        for i in range(8): o += [lb[i], la[2 * i], la[2 * i + 1]]
        return o
    def mfmas(st, first=False):
        base = 64 * st; o = []
        for jt in range(8):
            for it in range(8):
                f, d = acc(it, jt); dd = q(f, d)
                o.append("%s %s, %s, %s, %s" % (MF, dd, q("a", base + 4 * it), q("a", base + 32 + 4 * jt), "0" if first else dd))
        return o
    def step(i, dmas, do_read, vm, first=False, rd0=1, mid=None, extra=None):
        m = mfmas(i & 1, first)
        s1 = interleave(m, reads((i + 1) & 3, (i + 1) & 1), rd0, 56 if rd0 > 1 else 52) if do_read else [[] for _ in m]
        dl = []
        for b_ in dmas: dl += dma(b_)
        if extra: dl += extra
        s2 = interleave(m, dl, rd0 if mid is not None else 0, 64) if dl else [[] for _ in m]
        for k, x in enumerate(m):
            A(x)
            if mid is not None and k == rd0 - 1:
                nv = sum(1 for kk in range(k + 1) for y in s2[kk] if y.startswith("buffer"))
                for y in s2[k]: A(y)
                A("s_waitcnt vmcnt(%d)" % (mid + nv)); A("s_barrier")
                continue
            for y in s2[k] + s1[k]: A(y)
        if vm is not None:
            A("s_waitcnt vmcnt(%d) lgkmcnt(0)" % vm); A("s_barrier")
    for x in reads(0, 0): A(x)
    A("s_waitcnt lgkmcnt(0)")
    stamp(A, 6)
    ls = M.late_stores()
    if ENV("NOLS"): A("s_mov_b32 s34, 0")
    wt = [] if ENV("NOWT") else [M.w_touch()]
    if True:
        step(0, [3], True, 14, first=True, rd0=8, mid=6, extra=ls)
        if ENV("G1IT"): stamp(A, 2)
        step(1, [0, 1], True, 16)
        M.set_flag_w0(A, "f2y", 63, 29, 30)
        if ENV("G1IT"): stamp(A, 3)
        step(2, [2], True, 16)
        M.srd(A, 32, M.PWD, 0, 3584 * 2048)
        A("s_sub_u32 s10, s2, 32"); A("s_lshl_b32 s10, s10, 15")
        if ENV("NOWDT"): A("s_mov_b32 s34, 0")
        A("v_mul_u32_u24 v20, 1280, v2"); A("v_lshl_add_u32 v20, v1, 7, v20"); A("v_cmp_lt_u32 vcc, 9, v1"); A("v_cndmask_b32 v20, v20, 2.0, vcc")
        wt = wt + [["buffer_load_dword v18, v20, s[32:35], s10 offen", "s_add_u32 s10, s10, 5120"]]
        io_addr(A, M, 21, 22); M.srd(A, 12, M.PX, 0, 4 << 20)
        A("s_lshl_b32 s11, s%d, 12" % W); A("s_add_u32 s11, s11, 0x%x" % ZL); A("s_mov_b32 s63, s8"); A("s_add_u32 s44, s8, 0x2000")
        wt = wt + [["s_cmp_ge_u32 s63, s44", "s_cselect_b32 s14, 0, s14", "s_cselect_b32 s11, 0x%x, s11" % M.LDS_T2, "s_mov_b32 m0, s11", "s_add_u32 s11, s11, 1024",
                    "buffer_load_dwordx4 v21, s[12:15], s63 offen lds", "s_add_u32 s63, s63, 2048"]]
        step(3, [3], True, 16 + len(wt), extra=wt)
    if ENV("G1IT"): stamp(A, 4)
    A("s_mov_b32 s45, 6")
    A.raw(".p2align 6")
    A.label("g1_loop")
    for i in range(4): step(i, [i], True, 16 + (len(wt) if i != 2 else 0), extra=wt if i == 3 else None)
    if not ENV("NOCPF"):
        A("s_cmp_lg_u32 s45, 2"); A("s_cbranch_scc1 g1_npf")
        if ENV("WDL2"):
            A("s_lshr_b32 s40, s2, 3"); A("s_sub_u32 s40, s40, 4"); A("s_and_b32 s41, s40, 1"); A("s_lshr_b32 s40, s40, 1")
            A("s_bfe_u32 s44, s2, 0x20001"); A("s_mul_i32 s44, s44, 14"); A("s_add_u32 s40, s40, s44"); A("s_lshl_b32 s40, s40, 2"); A("s_add_u32 s40, s40, s41")
            A("s_add_u32 s40, s40, 2"); A("s_lshl_b32 s40, s40, 15")
            A("v_lshlrev_b32 v21, 7, v0"); A("buffer_load_dword v23, v21, s[32:35], s40 offen")
        M.code_srd(A, 4, "g1_npf"); A("s_bfe_u32 s40, s2, 0x20003"); A("s_lshl_b32 s40, s40, 13")
        A("v_lshlrev_b32 v23, 7, v1"); A("v_lshl_add_u32 v23, v2, 11, v23"); A("v_lshrrev_b32 v22, 4, v1"); A("v_lshl_add_u32 v23, v22, 24, v23")
        A("buffer_load_dword v19, v23, s[4:7], s40 offen")
    A.label("g1_npf")
    A("s_sub_u32 s45, s45, 1"); A("s_cmp_lg_u32 s45, 0"); A("s_cbranch_scc1 g1_loop")
    if ENV("G1IT"): stamp(A, 5)
    M.srd(A, 36, M.PWS, M.WS_H, M.SZ_H)
    A("s_bfe_u32 s40, s2, 0x20001"); A("s_lshl_b32 s41, s42, 2"); A("s_add_u32 s41, s41, s40")
    A("s_mul_i32 s40, s40, 7"); A("s_sub_u32 s40, s43, s40")
    A("s_lshl_b32 s55, s41, 3"); A("s_add_u32 s55, s55, s40"); A("s_lshl_b32 s55, s55, 7"); A("s_add_u32 s55, s55, %d" % M.FB)
    A("s_lshl_b32 s40, s40, 1"); A("s_add_u32 s40, s40, s46")
    A("s_mul_i32 s52, s41, 28"); A("s_add_u32 s52, s52, s40"); A("s_lshl_b32 s52, s52, 14"); A("s_lshl_b32 s53, s47, 13"); A("s_add_u32 s52, s52, s53")
    A("s_lshl_b32 s54, s41, 1"); A("s_add_u32 s54, s54, s47"); A("s_lshl_b32 s54, s54, 4"); A("s_add_u32 s54, s54, s40")
    A("s_lshl_b32 s54, s54, 7"); A("s_add_u32 s54, s54, %d" % M.FH)
    A("s_mov_b32 s46, %d" % M.F3)
    DT = [24, 25, 26, 27]
    def grp(B):
        o = [[]]
        for k, t in B.items:
            o[-1].append(t)
            if t.startswith("buffer"): o.append([])
        return [x for x in o if x]
    nv = lambda l: sum(1 for x in l for y in x if y.startswith("buffer"))
    B = Asm(); g2_setup(B, M, DT, 22, 23); su = [[t] for k, t in B.items]
    B = Asm(); i_tabs(B, M); tb = grp(B)
    fl = [["s_bfm_b64 exec, 32, 0", "buffer_load_dword v4, v28, s[%d:%d], s46 offen sc1" % (M.SFL, M.SFL + 3), "s_mov_b64 exec, -1"]]
    e0 = su + [g2_dma(0, p, DT) for p in range(8)]
    xr = [["v_lshl_add_u32 v21, v2, 12, v3", "v_add_u32 v21, 0x%x, v21" % ZL] + ["ds_read_b128 %s, v21 offset:%d" % (q("a", 240 + 4 * i), i * 1024) for i in range(4)]]
    e1 = xr + [g2_dma(1, p, DT) for p in range(8)]
    e2 = [g2_dma(0, p, DT) for p in range(4)]
    step(0, [], True, 8 + nv(e0), extra=e0); step(1, [], True, nv(e0) + nv(e1), extra=e1); step(2, [], True, 63, extra=e2)
    if ENV("G1IT"): stamp(A, 8); stamp(A, 9)
    e3 = [["v_mov_b32 v%d, v%d" % (DV[i], DT[i])] for i in range(4)] + tb + [["v_mov_b32 v7, v28"]]
    step(3, [], False, None, extra=e3)
    stamp(A, 7)
    c0 = math.sqrt(2 / math.pi)
    c1 = -2 * c0 * math.log2(math.e); c2 = c1 * 0.044715
    A("s_mov_b32 s56, 0x%x" % f32(c2)); A("s_mov_b32 s57, s56")
    A("v_mov_b32 v8, 0x%x" % f32(c1)); A("v_mov_b32 v9, v8"); A("v_mov_b32 v10, 1.0"); A("v_mov_b32 v11, 1.0"); A("v_mov_b32 v12, 0")
    n = 0
    for p in range(2):
        for jt in range(8):
            b0 = 32 + (jt % 7) * 32
            g = b0 + 8 * p; u = b0 + 16 + 8 * p
            if jt == 7:
                for i in range(8):
                    A("v_accvgpr_read_b32 v%d, a%d" % (g + i, 128 + 8 * p + i)); A("v_accvgpr_read_b32 v%d, a%d" % (u + i, 144 + 8 * p + i))
            T = 16 + 8 * (n % 2); n += 1
            H4 = range(0, 8, 2)
            for e in H4: A("v_pk_mul_f32 %s, %s, %s" % (p2(T + e), p2(g + e), p2(g + e)))
            for e in H4: A("v_pk_fma_f32 %s, %s, s[56:57], v[8:9]" % (p2(T + e), p2(T + e)))
            for e in H4: A("v_pk_mul_f32 %s, %s, %s" % (p2(T + e), p2(T + e), p2(g + e)))
            for e in range(8): A("v_exp_f32 v%d, v%d" % (T + e, T + e))
            for e in H4: A("v_pk_mul_f32 %s, %s, %s" % (p2(u + e), p2(u + e), p2(g + e)))
            for e in H4: A("v_pk_add_f32 %s, %s, v[10:11]" % (p2(T + e), p2(T + e)))
            for e in range(8): A("v_rcp_f32 v%d, v%d" % (T + e, T + e))
            A("s_add_u32 s53, s52, 0x%x" % (p * 14 * 16384 + (jt >> 2) * 4096))
            for e in H4: A("v_pk_mul_f32 %s, %s, %s" % (p2(u + e), p2(u + e), p2(T + e)))
            dst = g
            for e in range(4): A("v_cvt_pk_bf16_f32 v%d, v%d, v%d" % (dst + e, u + 2 * e, u + 2 * e + 1))
            A("buffer_store_dwordx4 %s, v3, s[36:39], s53 offen offset:%d%s" % (q("v", g), (jt & 3) * 1024, " sc1"))
            if p == 0 and jt == 5:
                for y in fl[0]: A(y.replace("v28", "v7"))
            if p == 1 and jt == 1:
                if ENV("EIT"): stamp(A, 2)
                A("s_waitcnt vmcnt(4)")
                A("v_cmp_ne_u32 vcc, s%d, v4" % M.TOK); A("s_nop 1"); A("s_mov_b32 vcc_hi, 0"); A("s_nop 3")
                A("s_cbranch_vccz pd_f3g")
                M.poll(A, "f3g", 46, 7, 4, 32, sleep=4)
                if ENV("EIT"): stamp(A, 3)
                z_fetch(A, M, zs=32)
            if p == 1 and jt == int(ENV("FLAGA", "3")):
                A("s_waitcnt vmcnt(%d)" % (jt + 1 + 4))
                M.set_flag(A, 54, 12, 4)
                if ENV("EIT"): stamp(A, 4)
    if ENV("EIT"): stamp(A, 5)
    A("s_waitcnt vmcnt(7)")
    A("s_mov_b32 s58, 1")

def gemm2(A, M):
    W = M.WAVE
    if not ENV("G1IT"): stamp(A, 8)
    io_addr(A, M, 28, 29)
    XR, SR = 176, 192
    def io(i): return "s%d offen offset:%d" % (8 + (i >> 1), (i & 1) * 2048)
    for i in range(16): A("v_accvgpr_read_b32 v%d, a%d" % (XR + i, 240 + i))
    A("s_barrier")
    ZD, D1, DS, PK, ITW, TT = 32, 48, 80, 112, 128, 144
    A("v_lshrrev_b32 v20, 1, v1"); A("v_and_b32 v20, 7, v20"); A("v_lshlrev_b32 v21, 1, v2"); A("v_xor_b32 v20, v20, v21"); A("v_lshlrev_b32 v20, 4, v20")
    A("v_lshl_add_u32 v20, v1, 7, v20"); A("v_add_u32 v20, 0x%x, v20" % ZL); A("v_xor_b32 v21, 16, v20")
    for k in range(2):
        for dh in range(2): A("ds_read_b128 %s, v%d offset:%d" % (q("v", ZD + 8 * k + 4 * dh), 20 + k, dh * 8192))
    A("v_add_u32 v23, 0x%x, v3" % (96 * 1024))
    for dh in range(2):
        for bh in range(2):
            for part in range(2): M.tab_read(A, q("a", I1 + 16 * bh + 8 * part + 4 * dh), "i1_%d%d%d" % (bh, part, dh), "i1_000", 23, 16384)
    for bh in range(2):
        for part in range(2): M.tab_read(A, q("a", I1S + 8 * bh + 4 * part), "i1s_%d%d" % (bh, part), "i1_000", 23, 16384)
    for bh in range(2):
        for part in range(2): M.tab_read(A, q("v", ITW + 8 * bh + 4 * part), "itw%d%d" % (bh, part), "i1_000", 23, 16384)
    for ah in range(2): M.tab_read(A, q("a", I2 + 4 * ah), "i2_%d" % ah, "i1_000", 23, 16384)
    A("v_and_b32 v22, 15, v1"); A("v_lshlrev_b32 v22, 10, v22"); A("v_lshrrev_b32 v23, 4, v1"); A("v_lshl_add_u32 v22, v23, 4, v22")
    A("s_and_b32 s40, s2, 1"); A("s_lshl_b32 s40, s40, 9"); A("s_lshl_b32 s41, s%d, 7" % W); A("s_add_u32 s40, s40, s41")
    A("s_lshr_b32 s41, s2, 1"); A("s_lshl_b32 s41, s41, 15"); A("s_add_u32 s40, s40, s41"); A("s_add_u32 s41, s40, 0x4000")
    A("s_mov_b32 s69, s58")
    M.srd(A, 56, M.PWS, M.WS_S, M.SZ_S)
    A("s_mov_b64 s[46:47], 0xffff")
    A("s_waitcnt lgkmcnt(6)")
    def mm(d, a, b, c=None):
        A("%s %s, %s, %s, %s" % (MF, q("v", d), a, b, "0" if c is None else q("v", c)))
    for k in range(2):
        for dh in range(2):
            for bh in range(2):
                for part in range(2):
                    d = D1 + 16 * k + 8 * bh + 4 * part
                    mm(d, q("v", ZD + 8 * k + 4 * dh), q("a", I1 + 16 * bh + 8 * part + 4 * dh), None if dh == 0 else d)
        for bh in range(2):
            for part in range(2):
                mm(DS + 16 * k + 8 * bh + 4 * part, q("v", ZD + 8 * k + 4 * part), q("a", I1S + 8 * bh + 4 * part))
    neg = " neg_lo:[1,0,0] neg_hi:[1,0,0]"
    A("s_waitcnt lgkmcnt(0)")
    for k in range(2):
        for x in range(4):
            A("v_cndmask_b32 v%d, v%d, v%d, s[46:47]" % (D1 + 16 * k + 4 * x, D1 + 16 * k + 4 * x, DS + 16 * k + 4 * x))
        for bh in range(2):
            re = D1 + 16 * k + 8 * bh; im = re + 4; tc = ITW + 8 * bh; ts = tc + 4; t = TT + 8 * bh
            for h in (0, 2): A("v_pk_mul_f32 %s, %s, %s" % (p2(t + h), p2(re + h), p2(tc + h)))
            for h in (0, 2): A("v_pk_mul_f32 %s, %s, %s" % (p2(t + 4 + h), p2(im + h), p2(tc + h)))
            for h in (0, 2): A("v_pk_fma_f32 %s, %s, %s, %s%s" % (p2(t + h), p2(im + h), p2(ts + h), p2(t + h), neg))
            for h in (0, 2): A("v_pk_fma_f32 %s, %s, %s, %s" % (p2(t + 4 + h), p2(re + h), p2(ts + h), p2(t + 4 + h)))
            for r in range(4): A("v_cvt_pk_bf16_f32 v%d, v%d, v%d" % (PK + 8 * k + 4 * bh + r, t + r, t + 4 + r))
    for k in range(2):
        for ah in range(2):
            for bh in range(2): mm(D1 + 16 * k + 8 * ah + 4 * bh, q("v", PK + 8 * k + 4 * bh), q("a", I2 + 4 * ah))
    ACC = 32; AF, HR = 0, 128
    RA = 232
    A("v_lshl_add_u32 v4, v2, 12, v3")
    A("v_lshrrev_b32 v24, 2, v1"); A("v_lshlrev_b32 v25, 8, v24"); A("v_and_b32 v26, 3, v1"); A("v_lshl_add_u32 v25, v26, 3, v25")
    A("v_and_b32 v24, 7, v24"); A("s_lshl_b32 s45, s44, 1"); A("v_xor_b32 v24, s45, v24")
    for t in range(8):
        A("v_xor_b32 v26, %d, v24" % t); A("v_lshl_add_u32 v%d, v26, 5, v25" % (RA + t)); A("v_add_u32 v%d, 0x10000, v%d" % (RA + 8 + t, RA + t))
    A("v_mov_b32 v12, 0"); A("v_lshlrev_b32 v13, 7, v1")
    SO = 160
    for k in range(2):
        for x in range(8): A("v_cvt_pk_bf16_f32 v%d, v%d, v%d" % (SO + 8 * k + x, D1 + 16 * k + 2 * x, D1 + 16 * k + 2 * x + 1))
    A("s_lshl_b32 s60, s42, 2"); A("s_add_u32 s60, s60, s44")
    A("s_lshl_b32 s47, s60, 10"); A("s_add_u32 s47, s47, %d" % M.FB)
    A("s_lshl_b32 s46, s60, 1"); A("s_lshr_b32 s45, s%d, 1" % W); A("s_add_u32 s46, s46, s45"); A("s_lshl_b32 s46, s46, 11"); A("s_add_u32 s46, s46, %d" % M.FH)
    A("s_mul_i32 s60, s60, %d" % (28 * 16384))
    M.poll(A, "fa", 46, 13, 31, 14, sleep=4)
    if not ENV("G1IT"): stamp(A, 9)
    M.srd(A, 32, M.PWS, M.WS_H, M.SZ_H)
    def hload(s, jt):
        o = ["buffer_load_dwordx4 %s, v4, s[32:35], s60 offen offset:%d%s" % (q("a", HR + 16 * (s & 7) + 4 * jt), jt * 1024, M.HLD)]
        if jt == 3: o.append("s_add_u32 s60, s60, 0x4000")
        return o
    NK = 28; R = 8; LA = int(ENV("G2LA", "6"))
    units = [[(s_, tuple(range(8)))] for s_ in range(NK - R)]
    for d in (3, 2, 1, 0):
        for s_ in range(NK - R, NK, 4): units.append([(s_ + i, (2 * d, 2 * d + 1)) for i in range(4)])
    def frs(u):
        o = []
        for s_, tl in units[u]:
            for t in tl: o.append((s_, t, AF + 32 * (u & 3) + 4 * len(o)))
        return o
    def ureads(u):
        o = []
        for s_, t, r in frs(u):
            for h in range(2):
                o.append("ds_read_b64_tr_b16 a[%d:%d], v%d offset:%d" % (r + 2 * h, r + 2 * h + 1, RA + 8 * ((s_ >> 3) & 1) + t, (s_ & 7) * 8192 + h * 4096))
        return o
    vm = []
    NH0 = 3
    for s_ in range(NH0):
        for jt in range(4):
            for y in hload(s_, jt): A(y)
            vm.append(("H", s_))
    for x in ureads(0) + ureads(1): A(x)
    lg = [0] * 16 + [1] * 16
    A("s_lshl_b32 s53, s2, 2"); A("s_add_u32 s53, s53, s%d" % W); A("s_mul_i32 s52, s53, %d" % (3 * 4096)); A("s_lshl_b32 s53, s53, 9"); A("s_add_u32 s53, s53, %d" % M.FX)
    A("s_lshl_b32 s54, s2, 7"); A("s_add_u32 s54, s54, %d" % M.FS)
    A("s_lshl_b32 s46, s42, 12"); A("s_lshl_b32 s45, s%d, 10" % W); A("s_add_u32 s46, s46, s45"); A("s_add_u32 s46, s46, %d" % M.FS)
    M.srd(A, 36, M.PWS, M.WS_XC, M.SZ_XC)
    A("v_and_b32 v21, 15, v1"); A("v_mul_u32_u24 v16, 80, v21"); A("v_lshrrev_b32 v21, 4, v1"); A("v_lshl_add_u32 v16, v21, 3, v16"); A("v_lshl_add_u32 v16, v2, 13, v16")
    A("v_lshrrev_b32 v21, 2, v1"); A("v_mul_u32_u24 v17, 80, v21"); A("v_and_b32 v21, 3, v1"); A("v_lshl_add_u32 v17, v21, 4, v17"); A("v_lshl_add_u32 v17, v2, 13, v17")
    FL = "s[%d:%d]" % (M.SFL, M.SFL + 3)
    def quick(tag, vd, nl, soff):
        A("v_cmp_ne_u32 vcc, s%d, v%d" % (M.TOK, vd)); A("s_nop 1"); A("s_bfm_b64 s[66:67], %d, 0" % nl); A("s_and_b64 vcc, vcc, s[66:67]"); A("s_nop 3")
        A("s_cbranch_vccz pd_%s" % tag)
        M.poll(A, tag, soff, 13, vd, nl)
    def vwait(tags):
        last = max([i for i, t in enumerate(vm) if t in tags] + [-1])
        return min(63, len(vm) - 1 - last)
    def lwait(u):
        last = max(i for i, t in enumerate(lg) if t == u)
        return min(15, len(lg) - 1 - last)
    cert = 0; hnext = NH0
    UFB = 14 - LA
    for u in range(len(units)):
        ks = [x[0] for x in units[u]]
        need = [("H", k) for k in ks]
        nxt = max(x[0] for x in units[u + 2]) >> 2 if u + 2 < len(units) else 0
        bar = nxt > cert
        if bar: need.append(("W", nxt))
        if u == 14: need += [("S", 0)]
        if u == UFB: need += [("fb", 0)]
        if u == 21: need += [("fs", 0)]
        sd = {22: 3, 24: 2, 26: 1}.get(u); fd = {25: 3, 27: 2}.get(u)
        if fd: need += [("X", fd)]
        A("s_waitcnt vmcnt(%d) lgkmcnt(%d)" % (vwait(need), lwait(u)))
        if bar: A("s_barrier"); cert = nxt
        if u == 2:
            assert bar
            A("s_cmp_lg_u32 s%d, 0" % W); A("s_cbranch_scc1 g2_np")
            A("s_cmp_eq_u32 s69, 0"); A("s_cbranch_scc1 g2_np")
            M.set_flag(A, 55, 12, 25)
            A.label("g2_np")
        if u == 14:
            assert bar
            M.set_flag_w0(A, "fs", 54, 12, 25)
        if u == UFB: quick("fb", 18, 7, 47)
        if u == 21: quick("fs", 19, 8, 46)
        if ENV("FIT") and u in (20, 24): stamp(A, 2 + (u - 20) // 4)
        if ENV("G2IT") and u % 4 == 0 and u < 24: stamp(A, 2 + u // 4)
        rd = ureads(u + 2) if u + 2 < len(units) else []
        fr = frs(u)
        ex = [[] for _ in range(32)]
        def flagst(d):
            return ["s_xor_b32 s45, s53, 0x%x" % (d << 12), "v_mov_b32 v25, s%d" % M.TOK, "s_mov_b64 exec, 1",
                    "buffer_store_dword v25, v12, %s, s45 offen offset:%d sc1" % (FL, (d - 1) * 128), "s_mov_b64 exec, -1"]
        if fd: ex[1].append((flagst(fd), ("F", fd)))
        if u < NK - R:
            iv = (u + 10) >> 2
            if iv < 6:
                d0, d1 = g2_dma_of(u); ex[5].append((d0, ("W", iv))); ex[21].append((d1, ("W", iv)))
            elif u in (14, 15):
                for i in range(2):
                    d0, d1 = g2_dma_of(14 + 2 * (u - 14) + i); ex[5 + 16 * i].append((d0, ("W", 6))); ex[9 + 16 * i].append((d1, ("W", 6)))
            tgt = min(NK, u + 1 + LA + (2 if u >= NK - R - 3 else 0), u + 8)
            n = min(2, tgt - hnext)
            last = u == NK - R - 1
            for i in range(n):
                assert hnext < 14 or u >= UFB
                for jt in range(4): ex[jt if last else (2 + 16 * i + 4 * jt) if n == 2 else (3 + 8 * jt)].append((hload(hnext, jt), ("H", hnext)))
                hnext += 1
            if last:
                assert n <= 1 and hnext == u + 8
                for jt in range(4): ex[8 * jt + 7].append((hload(hnext, jt), ("H", hnext)))
                hnext += 1
        for i in ((2 * u - 16, 2 * u - 15) if u in (8, 9) else ()):
            ex[15 + 16 * (i & 1)].append((["buffer_store_dwordx4 %s, v22, s[56:59], s%d offen offset:%d sc1" % (q("v", SO + 4 * i), 40 + (i & 1), (i >> 1) * 64)], ("S", 0)))
        if u == UFB - 3: ex[29].append((["s_bfm_b64 exec, 7, 0", "buffer_load_dword v18, v13, %s, s47 offen sc1" % FL, "s_mov_b64 exec, -1"], ("fb", 0)))
        if u == 18: ex[29].append((["s_bfm_b64 exec, 8, 0", "buffer_load_dword v19, v13, %s, s46 offen sc1" % FL, "s_mov_b64 exec, -1"], ("fs", 0)))
        if u == 21:
            ex[0].append((["s_lshl_b32 s6, s42, 19", "s_lshl_b32 s7, s%d, 17" % W, "s_add_u32 s6, s6, s7", "s_lshl_b32 s7, s43, 12", "s_add_u32 s6, s6, s7", "s_lshl_b32 s7, s44, 10", "s_add_u32 s6, s6, s7"], None))
            for i in range(4): ex[3 + 8 * i].append((["buffer_load_dwordx4 %s, v3, s[56:59], s6 offen sc1" % q("v", SR + 4 * i), "s_add_u32 s6, s6, 0x8000"], ("s", 0)))
        if u == 27: ex[0].append((["s_bfm_b64 exec, 3, 0", "buffer_load_dword v24, v13, %s, s53 offen sc1" % FL, "s_mov_b64 exec, -1"], ("fx", 0)))
        if sd:
            b0 = ACC + 32 * sd
            ex[0].append((["s_xor_b32 s45, s2, %d" % (sd << 1), "s_lshl_b32 s45, s45, 2", "s_add_u32 s45, s45, s%d" % W, "s_mul_i32 s45, s45, %d" % (3 * 4096), "s_add_u32 s45, s45, %d" % ((sd - 1) * 4096)], None))
            for i in range(4):
                for e in range(4): ex[4 + 4 * i + e].append((["v_cvt_pk_bf16_f32 v%d, v%d, v%d" % (b0 + 8 * i + e, b0 + 8 * i + 2 * e, b0 + 8 * i + 2 * e + 1)], None))
                ex[8 + 4 * i].append((["buffer_store_dwordx4 %s, v3, s[36:39], s45 offen offset:%d sc1" % (q("v", b0 + 8 * i), i * 1024)], ("X", sd)))
        k = 0
        if len(units[u]) == 1: seq = [(f, jt) for jt in range(4) for f in fr]
        else: seq = [(f, jt) for f in fr for jt in range(4)]
        for i, ((s_, t, r), jt) in enumerate(seq):
            d = q("v", ACC + 16 * t + 4 * jt)
            A("%s %s, %s, %s, %s" % (MF, d, q("a", r), q("a", HR + 16 * (s_ & 7) + 4 * jt), "0" if s_ == 0 else d))
            if i % 2 == 0 and i // 2 < len(rd): A(rd[i // 2]); lg.append(u + 2)
            for ins, tag in ex[i]:
                for y in ins:
                    A(y)
                    if y.startswith("buffer"): vm.append(tag)
    assert hnext == NK
    stamp(A, 10)
    nl2e = -math.log2(math.e)
    A("s_mov_b32 s56, 0x%x" % f32(nl2e)); A("s_mov_b32 s57, s56"); A("s_mov_b32 s59, 0xffff0000")
    A("v_mov_b32 v26, 1.0"); A("v_mov_b32 v27, 1.0")
    A("s_waitcnt vmcnt(%d)" % vwait([("X", 1), ("fx", 0)]))
    for y in flagst(1): A(y)
    if ENV("FIT"): stamp(A, 4)
    UX, US, PB = 64, 96, 128
    H4 = range(0, 8, 2)
    def pl(d):
        A("s_add_u32 s45, s52, %d" % (d * 4096))
        for i in range(4): A("buffer_load_dwordx4 %s, v3, s[36:39], s45 offen offset:%d sc1" % (q("v", PB + 16 * d + 4 * i), i * 1024))
    def unp():
        for i in range(16):
            A("v_lshlrev_b32 v%d, 16, v%d" % (UX + 2 * i, XR + i)); A("v_and_b32 v%d, s59, v%d" % (UX + 2 * i + 1, XR + i))
            A("v_lshlrev_b32 v%d, 16, v%d" % (US + 2 * i, SR + i)); A("v_and_b32 v%d, s59, v%d" % (US + 2 * i + 1, SR + i))
    A("v_cmp_ne_u32 s[10:11], s%d, v24" % M.TOK); A("s_nop 1")
    A("s_and_b32 s11, s10, 6"); A("s_cbranch_scc0 pd_fx2")
    A("s_add_u32 s45, s53, 128")
    M.poll(A, "fx2", 45, 13, 24, 2, sleep=1)
    if ENV("FIT"): stamp(A, 5)
    pl(2); pl(1)
    A("s_and_b32 s11, s10, 1"); A("s_cbranch_scc0 pd_fx1")
    M.poll(A, "fx1", 53, 13, 24, 1, sleep=1)
    pl(0)
    unp()
    A("s_barrier")
    A("s_waitcnt vmcnt(4)")
    if ENV("FIT"): stamp(A, 6)
    M.srd(A, 12, M.POUT, 0, 4 << 20)
    def addp(t, d, tt):
        for e in range(4):
            A("v_lshlrev_b32 v%d, 16, v%d" % (tt + 2 * e, PB + 16 * d + 4 * t + e)); A("v_and_b32 v%d, s59, v%d" % (tt + 2 * e + 1, PB + 16 * d + 4 * t + e))
        for e in H4: A("v_pk_add_f32 %s, %s, %s" % (p2(ACC + 8 * t + e), p2(ACC + 8 * t + e), p2(tt + e)))
    for t in range(4):
        for d in (2, 1): addp(t, d, 208 + 8 * d)
    for t in range(4):
        b = 8 * t; T = 208 + 8 * (t & 1)
        A("s_waitcnt vmcnt(%d)" % (3 - t))
        if ENV("FIT") and t == 0: stamp(A, 7)
        addp(t, 0, T)
        for e in H4: A("v_pk_mul_f32 %s, %s, s[56:57]" % (p2(T + e), p2(ACC + b + e)))
        for e in range(8): A("v_exp_f32 v%d, v%d" % (T + e, T + e))
        A("s_nop 0")
        for e in H4: A("v_pk_add_f32 %s, %s, v[26:27]" % (p2(T + e), p2(T + e)))
        for e in range(8): A("v_rcp_f32 v%d, v%d" % (T + e, T + e))
        A("s_nop 0")
        for e in H4: A("v_pk_mul_f32 %s, %s, %s" % (p2(ACC + b + e), p2(ACC + b + e), p2(T + e)))
        for e in range(4): A("v_cvt_pk_bf16_f32 v%d, v%d, v%d" % (SR + 4 * t + e, ACC + b + 2 * e, ACC + b + 2 * e + 1))
        for u in range(2):
            A("ds_write_b64 v16, %s offset:%d" % (p2(SR + 4 * t + 2 * u), (2 * (t & 1) + u) * 16 * 80 + (t >> 1) * 32))
    A("s_waitcnt lgkmcnt(0)")
    for i in range(4): A("ds_read_b128 %s, v17 offset:%d" % (q("v", ACC + 4 * i), i * 16 * 80))
    for i in range(4):
        A("s_waitcnt lgkmcnt(%d)" % (3 - i))
        T = 208 + 8 * (i & 1)
        for e in range(4):
            A("v_lshlrev_b32 v%d, 16, v%d" % (T + 2 * e, ACC + 4 * i + e)); A("v_and_b32 v%d, s59, v%d" % (T + 2 * e + 1, ACC + 4 * i + e))
        for e in H4: A("v_pk_fma_f32 %s, %s, %s, %s" % (p2(UX + 8 * i + e), p2(US + 8 * i + e), p2(T + e), p2(UX + 8 * i + e)))
        for e in range(4): A("v_cvt_pk_bf16_f32 v%d, v%d, v%d" % (XR + 4 * i + e, UX + 8 * i + 2 * e, UX + 8 * i + 2 * e + 1))
        A("buffer_store_dwordx4 %s, v28, s[12:15], %s" % (q("v", XR + 4 * i), io(i)))
    if G.STAMP:
        A("s_waitcnt vmcnt(0)")
        stamp(A, 11); A("s_memrealtime s[100:101]"); A("s_waitcnt lgkmcnt(0)")
        G.stamp_out(A, 0, 12, M.PWS, "all")
        A("v_mov_b32 v2, s100"); A("buffer_store_dword v2, v1, s[96:99], 0 offen offset:48")

def colfft(A, M):
    W_ = M.WAVE
    DAT, FA, FE = 128, 160, 176
    W, T1, T2, D, P, TMP = 8, 40, 48, 104, 168, 200
    A("s_waitcnt lgkmcnt(0)")
    M.flat(A, M.late_stores())
    M.srd(A, 36, M.PWS, M.WS_WT, M.SZ_WT)
    A("v_mov_b32 v240, 0"); A("v_lshlrev_b32 v242, 7, v1")
    RB = M.RB
    A("s_barrier")
    M.filt_dma(A, 1)
    A("s_waitcnt vmcnt(17)"); A("s_barrier")
    M.set_flag_w0(A, "f2f", 63, 240, 241)
    A("v_and_b32 v232, 7, v0"); A("v_lshrrev_b32 v233, 3, v0")
    A("v_lshlrev_b32 v235, 16, v233"); A("v_lshl_add_u32 v235, v232, 4, v235")
    A("v_mul_u32_u24 v236, 1026, v232"); A("v_and_b32 v236, -4, v236"); A("v_lshl_add_u32 v236, v233, 4, v236"); A("v_add_u32 v237, 0x%x, v236" % RB)
    A("v_and_b32 v239, 1, v0"); A("v_lshlrev_b32 v239, 4, v239")
    A("s_lshl_b32 s43, s2, 8"); A("s_mov_b32 s48, 0x05040100"); A("s_mov_b32 s49, 0x07060302")
    A("s_lshl_b32 s41, s2, 6"); A("v_add_u32 v200, s41, v1"); A("v_sub_u32 v201, 2048, v200"); A("v_and_b32 v201, 0x7ff, v201")
    A("v_mul_u32_u24 v202, 1026, v200"); A("v_mul_u32_u24 v201, 1026, v201")
    A("s_cmp_lg_u32 s%d, 0" % W_); A("s_cbranch_scc1 r_noabl")
    for i, (va, sd, off) in enumerate([(202, 52, 0), (202, 56, 0), (201, 52, 0), (201, 56, 0), (202, 52, 1024), (202, 56, 1024), (201, 52, 1024), (201, 56, 1024)]):
        A("buffer_load_ushort v%d, v%d, s[%d:%d], 0 offen offset:%d" % (208 + i, va, sd, sd + 3, off))
    A.label("r_noabl")
    A("s_waitcnt vmcnt(0)"); A("s_barrier")
    if ENV("RIT"): stamp(A, 3)
    A("s_lshl_b32 s44, s%d, 13" % W_); A("s_add_u32 s44, s44, %d" % M.F2)
    A("buffer_load_dword v244, v242, s[%d:%d], s44 offen sc1" % (M.SFL, M.SFL + 3))
    def rrd(n):
        HL = 8 + 48 * (n & 1)
        for r in range(4):
            for mm_ in range(2):
                for d in range(5): A("ds_read_b32 v%d, v%d offset:%d" % (HL + 12 * r + 6 * mm_ + d, 236 + mm_, (8 * (n >> 1) + 16 * r) * 1026 + (n & 1) * 512 + 4 * d))
    rrd(0)
    for n in range(4):
        HL = 8 + 48 * (n & 1); WO = 104 + 32 * (n & 1)
        A("s_waitcnt lgkmcnt(0)")
        if n + 1 < 4: rrd(n + 1)
        for r in range(4):
            for mm_ in range(2):
                b = HL + 12 * r + 6 * mm_
                for d in range(4): A("v_alignbit_b32 v%d, v%d, v%d, v239" % (b + d, b + d + 1, b + d))
        for c in range(8):
            for r in range(4): A("v_perm_b32 v%d, v%d, v%d, s%d" % (WO + 4 * c + r, HL + 12 * r + 6 + (c >> 1), HL + 12 * r + (c >> 1), 48 + (c & 1)))
            A("s_add_u32 s41, s43, 0x%x" % (((n & 1) << 21) + (n >> 1) * 128 + c * 8192))
            A("buffer_store_dwordx4 %s, v235, s[36:39], s41 offen sc1" % q("v", WO + 4 * c))
    A("s_cmp_lg_u32 s%d, 0" % W_); A("s_cbranch_scc1 r_noab")
    for i in range(8): A("v_lshlrev_b32 v%d, 16, v%d" % (208 + i, 208 + i))
    A("v_add_f32 v216, v208, v210"); A("v_sub_f32 v217, v209, v211"); A("v_add_f32 v218, v212, v214"); A("v_sub_f32 v219, v213, v215")
    A("v_add_f32 v220, v216, v218"); A("v_add_f32 v221, v217, v219"); A("v_sub_f32 v222, v216, v218"); A("v_sub_f32 v223, v217, v219")
    for i in range(4): A("v_mul_f32 v%d, 0x3e800000, v%d" % (220 + i, 220 + i))
    A("v_cvt_pk_bf16_f32 v220, v220, v221"); A("v_cvt_pk_bf16_f32 v222, v222, v223")
    A("v_and_b32 v216, 15, v200"); A("v_lshlrev_b32 v216, 4, v216"); A("v_bfe_u32 v217, v200, 4, 2"); A("v_lshl_add_u32 v216, v217, 2, v216")
    A("v_lshrrev_b32 v217, 6, v200"); A("v_lshl_add_u32 v216, v217, 8, v216")
    A("s_mov_b32 s40, 0x%x" % (512 * 8192)); A("s_mov_b32 s41, 0x%x" % (513 * 8192))
    A("buffer_store_dword v220, v216, s[36:39], s40 offen sc1"); A("buffer_store_dword v222, v216, s[36:39], s41 offen sc1")
    A.label("r_noab")
    if ENV("RIT"): stamp(A, 2)
    A("v_and_b32 v4, 15, v1"); A("v_lshrrev_b32 v5, 4, v1")
    A("v_lshlrev_b32 v6, 6, v4"); A("v_lshl_add_u32 v6, v5, 4, v6")
    for k in range(4):
        A("v_add_u32 v7, %d, v5" % (4 * k)); A("v_xor_b32 v7, v7, v4"); A("v_lshlrev_b32 v7, 4, v7"); A("v_lshl_add_u32 v%d, v5, 8, v7" % (232 + k))
    A("v_lshrrev_b32 v7, 5, v1"); A("v_lshlrev_b32 v7, 3, v7"); A("v_bfe_u32 v236, v1, 4, 1"); A("v_or_b32 v7, v7, v236"); A("v_xor_b32 v7, v7, v4")
    A("v_lshlrev_b32 v7, 4, v7"); A("v_lshl_add_u32 v236, v4, 8, v7"); A("v_lshl_add_u32 v236, v2, 15, v236")
    A("v_add_u32 v4, 0x1000, v3")
    A("s_lshl_b32 s51, s2, 2"); A("s_add_u32 s51, s51, s%d" % W_)
    A("s_and_b32 s41, s51, 15"); A("s_bfe_u32 s42, s51, 0x20004"); A("s_lshl_b32 s42, s42, 7")
    A("s_add_u32 s40, s41, s42")
    A("s_sub_u32 s43, 32, s41"); A("s_cmp_eq_u32 s41, 0"); A("s_cselect_b32 s43, 16, s43")
    A("s_add_u32 s43, s43, 480"); A("s_sub_u32 s43, s43, s42")
    A("s_cmp_ge_u32 s51, 64"); A("s_cselect_b32 s40, s43, s40"); A("s_cselect_b32 s50, -1, 1"); A("s_lshl_b32 s50, s50, 18")
    A("s_lshl_b32 s40, s40, 13")
    M.srd(A, 52, M.PWS, M.WS_Y, M.SZ_Y); M.srd(A, 56, M.PWS, M.WS_Z, M.SZ_Z)
    A("s_waitcnt vmcnt(24)")
    A("v_cmp_ne_u32 vcc, s%d, v244" % M.TOK); A("s_nop 4"); A("s_cbranch_vccz pd_f2")
    M.poll(A, "f2", 44, 242, 244, 64, sleep=4)
    A("s_barrier")
    stamp(A, 5)
    A("s_lshl_b32 s41, s51, 15"); A("s_lshl_b32 s42, s%d, 15" % W_)
    for e in range(8):
        A("s_add_u32 m0, s42, %d" % (e * 4096))
        for k in range(4): A("buffer_load_dwordx4 v%d, s[52:55], s41 offen offset:%d sc1 lds" % (232 + k, k * 1024))
        A("s_add_u32 s41, s41, 4096")
    def wload(dst, f, so):
        for e in range(8):
            A("buffer_load_dwordx4 %s, v%d, s[36:39], s%d offen offset:%d sc1" % (q(f, dst + 4 * e), 3 if e < 4 else 4, so, (e & 3) * 1024))
    names = []
    for inv in range(2):
        for part in range(2): names.append(("fa_%d%d" % (inv, part), ar(FA + 8 * inv + 4 * part, 4)))
    for t in range(2): names.append(("t1_%d" % t, vr(T1 + 4 * t, 4)))
    for e in range(1, 8):
        for t in range(2): names.append(("t2_%d%d" % (e, t), vr(T2 + 8 * (e - 1) + 4 * t, 4)))
    for ih in range(2): names.append(("fe32_%d" % ih, ar(FE + 4 * ih, 4)))
    A("s_waitcnt vmcnt(32)"); A("s_barrier")
    A("s_add_u32 s63, s63, %d" % (M.F2B - M.F2))
    M.set_flag_w0(A, "f2fb", 63, 240, 241)
    for nm, r in names: G.tab_load(A, r, nm, 3, M.STAB, 42)
    A("s_mov_b32 s48, 0"); A("s_mov_b32 s49, 0xffff0000")
    def yread():
        for e in range(8): A("ds_read_b128 %s, v237 offset:%d" % (q("a", DAT + 4 * e), e * 4096))
    A("v_mov_b32 v237, v236")
    A("s_cmp_eq_u32 s51, 0"); A("s_cselect_b32 s62, 0x%x, s40" % (512 * 8192))
    A("s_waitcnt vmcnt(0)")
    yread()
    stamp(A, 6)
    A.label("cf_loop")
    A("s_waitcnt lgkmcnt(0)")
    def mm(d, a, b, c=None):
        A("%s %s, %s, %s, %s" % (MF, q("v", d), a, b, "0" if c is None else q("v", c)))
    tctr = [0]
    def tw_quads(dsts, re, tc, conj, TMP=TMP):
        t = TMP + 8 * (tctr[0] % 4); tctr[0] += 1
        im = re + 4; ts = tc + 4
        neg = " neg_lo:[1,0,0] neg_hi:[1,0,0]"
        for h in (0, 2): A("v_pk_mul_f32 %s, %s, %s" % (p2(t + h), p2(re + h), p2(tc + h)))
        for h in (0, 2): A("v_pk_mul_f32 %s, %s, %s" % (p2(t + 4 + h), p2(im + h), p2(tc + h)))
        for h in (0, 2): A("v_pk_fma_f32 %s, %s, %s, %s%s" % (p2(t + h), p2(im + h), p2(ts + h), p2(t + h), neg if conj else ""))
        for h in (0, 2): A("v_pk_fma_f32 %s, %s, %s, %s%s" % (p2(t + 4 + h), p2(re + h), p2(ts + h), p2(t + 4 + h), "" if conj else neg))
        for r in range(4): A("v_cvt_pk_bf16_f32 v%d, v%d, v%d" % (dsts[r], t + r, t + 4 + r))
    def cm_pairs(items):
        ts = []
        for _ in items:
            ts.append(TMP + 2 * (tctr[0] % 8)); tctr[0] += 1
        for (dst, z, c, s_), t in zip(items, ts):
            A("v_pk_mul_f32 %s, %s, %s op_sel:[0,%d] op_sel_hi:[1,%d]" % (p2(t), p2(z), p2(c & ~1), c & 1, c & 1))
        for (dst, z, c, s_), t in zip(items, ts):
            A("v_pk_fma_f32 %s, %s, %s, %s op_sel:[1,%d,0] op_sel_hi:[0,%d,1] neg_lo:[1,0,0]" % (p2(t), p2(z), p2(s_ & ~1), p2(t), s_ & 1, s_ & 1))
        for (dst, z, c, s_), t in zip(items, ts):
            A("v_cvt_pk_bf16_f32 v%d, v%d, v%d" % (dst, t, t + 1))
    for e in range(8):
        mm(D + 8 * e, q("a", DAT + 4 * e), q("a", FA)); mm(D + 8 * e + 4, q("a", DAT + 4 * e), q("a", FA + 4))
    A("s_add_u32 s40, s40, s50")
    A("s_add_u32 s43, s48, 1"); A("s_and_b32 s43, s43, 3"); A("s_lshl_b32 s43, s43, 5"); A("v_xor_b32 v237, s43, v236")
    yread()
    for e in range(8): tw_quads([P + 4 * e + r for r in range(4)], D + 8 * e, T1, False)
    for e in range(8):
        mm(D + 8 * e, q("a", FA), q("v", P + 4 * e)); mm(D + 8 * e + 4, q("a", FA + 4), q("v", P + 4 * e))
    A("s_cmp_lg_u32 s48, 0"); A("s_cbranch_scc1 cf_nw")
    A("s_mov_b32 s44, %d" % M.F2B)
    M.poll(A, "f2b", 44, 242, 244, 32, sleep=2)
    wload(W, "v", 62)
    A.label("cf_nw")
    for e in range(8):
        if e == 0:
            for r in range(4): A("v_cvt_pk_bf16_f32 v%d, v%d, v%d" % (P + 8 * r, D + r, D + 4 + r))
        else: tw_quads([P + 8 * r + e for r in range(4)], D + 8 * e, T2 + 8 * (e - 1), False)
    def stageE():
        for ih in range(2):
            for r in range(4):
                d = "v[%d:%d]" % (D + 16 * r, D + 16 * r + 15)
                A("%s %s, %s, %s, %s" % (MF32, d, q("a", FE + 4 * ih), q("v", P + 8 * r + 4 * ih), "0" if ih == 0 else d))
    stageE()
    A("s_waitcnt vmcnt(0)")
    U = TMP + 16
    A("s_or_b32 s43, s51, s48"); A("s_cmp_eq_u32 s43, 0"); A("s_cbranch_scc1 cf_pack")
    for r in range(4):
        for eh in range(2):
            items = []
            for k in range(4):
                ep = 4 * eh + k; w = W + 4 * ep + r; u = U + 8 * (eh & 1) + 2 * k
                A("v_lshlrev_b32 v%d, 16, v%d" % (u, w)); A("v_and_b32 v%d, s49, v%d" % (u + 1, w))
                items.append((P + 8 * r + ep, D + 16 * r + 2 * ep, u, u + 1))
            cm_pairs(items)
    A.label("cf_mul_done")
    wload(W, "v", 40)
    stageE()
    for r in range(4):
        A("v_cvt_pk_bf16_f32 v%d, v%d, v%d" % (P + r, D + 16 * r, D + 16 * r + 1))
        for xs in ((1, 2, 3, 4), (5, 6, 7)):
            cm_pairs([(P + 4 * (8 - x) + r, D + 16 * r + 2 * x, T2 + 8 * (7 - x) + r, T2 + 8 * (7 - x) + 4 + r) for x in xs])
    for e in range(8):
        mm(D + 8 * e, q("v", P + 4 * e), q("a", FA + 8)); mm(D + 8 * e + 4, q("v", P + 4 * e), q("a", FA + 12))
    for e in range(8): tw_quads([P + 4 * e + r for r in range(4)], D + 8 * e, T1, True)
    for e in range(8):
        mm(D + 8 * e, q("v", P + 4 * e), q("a", FA + 8)); mm(D + 8 * e + 4, q("v", P + 4 * e), q("a", FA + 12))
    for e in range(8):
        for r in range(4): A("v_cvt_pk_bf16_f32 v%d, v%d, v%d" % (P + 4 * e + r, D + 8 * e + r, D + 8 * e + 4 + r))
    for cc in range(4):
        A("s_cmp_eq_u32 s48, %d" % cc); A("s_cbranch_scc0 cf_o%d" % cc)
        for qq in range(32): A("v_accvgpr_write_b32 a%d, v%d" % (4 * qq + cc, P + qq))
        A.label("cf_o%d" % cc)
    A("s_add_u32 s48, s48, 1"); A("s_cmp_lt_u32 s48, 4"); A("s_cbranch_scc1 cf_loop")
    stamp(A, 7)
    A("v_and_b32 v238, 15, v1"); A("v_lshlrev_b32 v238, 4, v238"); A("v_lshl_add_u32 v238, v5, 20, v238")
    A("s_lshl_b32 s41, s51, 8")
    for r in range(4):
        for e in range(8):
            qq = 4 * e + r
            A("s_add_u32 s42, s41, 0x%x" % ((8 * r + e) * 32768))
            A("buffer_store_dwordx4 %s, v238, s[56:59], s42 offen sc1" % q("a", 4 * qq))
    A("s_waitcnt vmcnt(0) lgkmcnt(0)")
    A("s_lshl_b32 s44, s2, 7"); A("s_add_u32 s44, s44, %d" % M.F3)
    A("s_barrier")
    M.set_flag_w0(A, "f3", 44, 240, 241)
    if ENV("EIT"): stamp(A, 4)
    i_tabs(A, M); g2_setup(A, M); g2_early(A); x_fetch(A, M, 21, 22, 12)
    A("s_mov_b32 s46, %d" % M.F3)
    M.poll(A, "f3", 46, 242, 244, 32, sleep=4)
    z_fetch(A, M)
    A("s_mov_b32 s58, 0"); A("s_mov_b32 s55, 0"); A("s_mov_b32 s52, 0"); A("s_mov_b32 s53, 0")
    A("s_waitcnt vmcnt(0)")
    A("s_branch cf_end")
    A.label("cf_pack")
    A("s_nop 11")
    SC = M.LDS_SCR
    A("v_and_b32 v238, 15, v1"); A("v_lshl_add_u32 v238, v5, 6, v238")
    A("v_sub_u32 v239, %d, v238" % (2048 - 48 - 1792)); A("v_lshlrev_b32 v238, 3, v238"); A("v_lshlrev_b32 v239, 3, v239")
    A("v_add_u32 v238, 0x%x, v238" % SC); A("v_add_u32 v239, 0x%x, v239" % SC)
    for r in range(4):
        for ep in range(8): A("ds_write_b64 v238, %s offset:%d" % (p2(D + 16 * r + 2 * ep), 8 * (16 * r + 256 * ep)))
    A("s_mov_b64 exec, 1"); A("ds_write_b64 v238, %s offset:%d" % (p2(D), 8 * 2048)); A("s_mov_b64 exec, -1")
    A("s_mov_b32 s43, 0x%x" % (513 * 8192))
    wload(208, "a", 43)
    for r in range(4):
        for ep in range(8):
            w = W + 4 * ep + r; z = D + 16 * r + 2 * ep; u = U + 2 * (ep & 3); t = TMP + 2 * (ep & 3)
            A("v_lshlrev_b32 v%d, 16, v%d" % (u, w)); A("v_and_b32 v%d, s49, v%d" % (u + 1, w))
            A("v_pk_mul_f32 %s, %s, %s op_sel:[0,0] op_sel_hi:[1,0]" % (p2(t), p2(z), p2(u)))
            A("v_pk_fma_f32 %s, %s, %s, %s op_sel:[1,1,0] op_sel_hi:[0,1,1] neg_lo:[1,0,0]" % (p2(z), p2(z), p2(u), p2(t)))
    A("s_waitcnt vmcnt(0) lgkmcnt(0)")
    for rh in range(2):
        for r in (2 * rh, 2 * rh + 1):
            for ep in range(8): A("ds_read_b64 %s, v239 offset:%d" % (p2(W + 16 * (r & 1) + 2 * ep), 8 * (16 * (3 - r) + 256 * (7 - ep))))
        A("s_waitcnt lgkmcnt(0)")
        for r in (2 * rh, 2 * rh + 1):
            for ep in range(8):
                m = W + 16 * (r & 1) + 2 * ep; z = D + 16 * r + 2 * ep; u = U + 2 * (ep & 3)
                A("v_accvgpr_read_b32 v%d, a%d" % (u + 1, 208 + 4 * ep + r))
                A("v_lshlrev_b32 v%d, 16, v%d" % (u, u + 1)); A("v_and_b32 v%d, s49, v%d" % (u + 1, u + 1))
                A("v_pk_fma_f32 %s, %s, %s, %s op_sel:[0,0,0] op_sel_hi:[1,0,1] neg_hi:[1,0,0]" % (p2(z), p2(m), p2(u), p2(z)))
                A("v_pk_fma_f32 %s, %s, %s, %s op_sel:[1,1,0] op_sel_hi:[0,1,1]" % (p2(z), p2(m), p2(u), p2(z)))
                A("v_cvt_pk_bf16_f32 v%d, v%d, v%d" % (P + 8 * r + ep, z, z + 1))
    A("s_nop 1")
    A("s_branch cf_mul_done")
    A.label("cf_end")
```

```python
import sys, math, os
from asmlib import *
import gen as G
from gen import f32, bf16, TAB, KA, NAME, allreduce_add, stamp, STAMP

KN = NAME + "_kernel"
WS_XN = 0;            SZ_XN = 4 << 20
WS_Y = 4 << 20;       SZ_Y = 4 << 20
WS_WT = 8 << 20;      SZ_WT = 514 * 8192
WS_Z = 13 << 20;      SZ_Z = 4 << 20
WS_S = 17 << 20;      SZ_S = 4 << 20
WS_H = 21 << 20;      SZ_H = 16 * 112 * 8192
WS_FL = 35 << 20;     SZ_FL = 0xe0000
WS_XC = 36 << 20;     SZ_XC = 256 * 4 * 3 * 4096
F1, F2, F3, FB, FS, F2B, FH, FX = 0, 0x8000, 0x10000, 0x18000, 0x20000, 0x28000, 0x40000, 0x60000
LDS_SCR = 128 * 1024
LDS_T2 = 145 * 1024
LDS_SIZE = LDS_T2 + 4096
MF = "v_mfma_f32_16x16x32_bf16"
MF32 = "v_mfma_f32_32x32x16_bf16"
PX, PWR, PWI, PWG, PWU, PWD, POUT, PDBG, PWS = 4, 6, 8, 12, 14, 16, 18, 20, 22
SFL, STAB, SDBG = 24, 28, 32
TOK, WAVE = 70, 3
ENV = os.environ.get
BULK = ENV('BULK', ' sc1')
HLD = ENV('HLD', ' sc1')

def srd(A, d, base, off, size): G.srd(A, d, base, off, size)
def q(f, r): return "%s[%d:%d]" % (f, r, r + 3)
def p2(r): return "v[%d:%d]" % (r, r + 1)

def set_flag(A, soff, vz, vt, val=None, fl=" sc1"):
    A("v_mov_b32 v%d, s%d" % (vt, TOK if val is None else val))
    A("s_mov_b64 exec, 1")
    A("buffer_store_dword v%d, v%d, s[%d:%d], s%d offen%s" % (vt, vz, SFL, SFL + 3, soff, fl))
    A("s_mov_b64 exec, -1")

def set_flag_w0(A, tag, soff, vz, vt):
    A("s_cmp_lg_u32 s%d, 0" % WAVE); A("s_cbranch_scc1 sf_%s" % tag)
    set_flag(A, soff, vz, vt)
    A.label("sf_%s" % tag)

def poll(A, tag, soff, vaddr, vd, nl, width=1, first_hook=None, sleep=2):
    A("s_mov_b32 s68, 0x20000")
    ld = {1: "buffer_load_dword v%d" % vd, 4: "buffer_load_dwordx4 v[%d:%d]" % (vd, vd + 3)}[width]
    def rnd():
        if nl < 64: A("s_bfm_b64 exec, %d, 0" % nl)
        A("%s, v%d, s[%d:%d], s%d offen sc1" % (ld, vaddr, SFL, SFL + 3, soff))
        if nl < 64: A("s_mov_b64 exec, -1")
        A("s_waitcnt vmcnt(0)")
    def chk():
        if width == 4:
            for i in range(4): A("v_xor_b32 v%d, s%d, v%d" % (vd + i, TOK, vd + i))
            A("v_or3_b32 v%d, v%d, v%d, v%d" % (vd, vd, vd + 1, vd + 2)); A("v_or_b32 v%d, v%d, v%d" % (vd, vd, vd + 3))
            A("v_cmp_ne_u32 vcc, 0, v%d" % vd)
        else: A("v_cmp_ne_u32 vcc, s%d, v%d" % (TOK, vd))
        if nl < 64:
            A("s_nop 1")
            A("s_bfm_b64 s[66:67], %d, 0" % nl); A("s_and_b64 vcc, vcc, s[66:67]")
        A("s_nop 3")
    if first_hook:
        rnd(); first_hook(); chk(); A("s_cbranch_vccz pd_%s" % tag)
    A.label("pl_%s" % tag)
    rnd(); chk()
    A("s_cbranch_vccz pd_%s" % tag)
    A("s_sleep %d" % sleep)
    A("s_sub_u32 s68, s68, 1"); A("s_cmp_lg_u32 s68, 0"); A("s_cbranch_scc1 pl_%s" % tag)
    A.label("pd_%s" % tag)

def tab_dma(A, first, lds0, lds1):
    o = TAB.off(first)
    A("s_lshl_b32 s71, s%d, 12" % WAVE); A("s_add_u32 m0, s71, 0x%x" % lds0); A("s_add_u32 s71, s71, 0x%x" % o)
    for p in range(4): A("buffer_load_dwordx4 v3, s[%d:%d], s71 offen%s lds" % (STAB, STAB + 3, " offset:%d" % (p * 1024) if p else ""))
    A("s_lshl_b32 s71, s%d, 10" % WAVE); A("s_add_u32 m0, s71, 0x%x" % lds1); A("s_add_u32 s71, s71, 0x%x" % (o + 16384))
    A("buffer_load_dwordx4 v3, s[%d:%d], s71 offen lds" % (STAB, STAB + 3))
def tab_read(A, dst, name, first, va, d1):
    i = (TAB.off(name) - TAB.off(first)) // 1024
    A("ds_read_b128 %s, v%d offset:%d" % (dst, va, i * 1024 if i < 16 else d1 + (i - 16) * 1024))

def code_srd(A, d, lab):
    A("s_getpc_b64 s[%d:%d]" % (d, d + 1))
    A.label("cs_%s" % lab)
    A("s_add_u32 s%d, s%d, %s-cs_%s" % (d, d, lab, lab)); A("s_addc_u32 s%d, s%d, 0" % (d + 1, d + 1))
    A("s_and_b32 s%d, s%d, 0xffff" % (d + 1, d + 1))
    A("s_mov_b32 s%d, k_done-%s" % (d + 2, lab)); A("s_mov_b32 s%d, 0x20000" % (d + 3))

VWD = 244
def g1_decode(A):
    A("s_and_b32 s40, s2, 7"); A("s_lshr_b32 s41, s2, 3"); A("s_sub_u32 s41, s41, 4")
    A("s_and_b32 s42, s40, 1"); A("s_lshl_b32 s42, s42, 2"); A("s_and_b32 s43, s41, 3"); A("s_add_u32 s42, s42, s43")
    A("s_lshr_b32 s43, s40, 1"); A("s_mul_i32 s43, s43, 7"); A("s_lshr_b32 s44, s41, 2"); A("s_add_u32 s43, s43, s44")
    A("s_and_b32 s46, s%d, 1" % WAVE); A("s_lshr_b32 s47, s%d, 1" % WAVE)
def dmaX(buf):
    o = [["s_add_u32 m0, s64, 0x%x" % (buf * 32768), "buffer_load_dwordx4 v3, s[48:51], s60 offen%s lds" % BULK]]
    for p in range(1, 4): o.append(["buffer_load_dwordx4 v3, s[48:51], s60 offen offset:%d%s lds" % (p * 1024, BULK)])
    o[-1].append("s_add_u32 s60, s60, 0x4000")
    return o
def dmaW(buf, v):
    return [["s_add_u32 m0, s65, 0x%x" % (buf * 32768), "buffer_load_dwordx4 v%d, s[52:55], s61 offen lds" % v],
            ["buffer_load_dwordx4 v%d, s[52:55], s62 offen offset:1024 lds" % v],
            ["buffer_load_dwordx4 v%d, s[56:59], s61 offen offset:2048 lds" % v, "s_add_u32 s61, s61, %d" % (32 * 7168)],
            ["buffer_load_dwordx4 v%d, s[56:59], s62 offen offset:3072 lds" % v, "s_add_u32 s62, s62, %d" % (32 * 7168)]]
def flat(A, l):
    for x in l:
        for y in x: A(y)

def w_touch():
    return ["buffer_load_dword v16, v17, s[36:39], s69 offen", "s_add_u32 s69, s69, %d" % (128 * 7168)]
def w_touch_setup(A):
    A("s_cmp_lt_u32 s%d, 2" % WAVE); A("s_cselect_b32 s36, s%d, s%d" % (PWG, PWU)); A("s_cselect_b32 s37, s%d, s%d" % (PWG + 1, PWU + 1))
    A("s_and_b32 s37, s37, 0xffff"); A("s_mov_b32 s38, %d" % (1024 * 7168)); A("s_mov_b32 s39, 0x20000")
    A("s_cmp_lt_u32 s2, 32"); A("s_cselect_b32 s38, 0, s38")
    A("s_mul_i32 s69, s42, %d" % (16 * 7168)); A("s_lshl_b32 s41, s43, 8"); A("s_add_u32 s69, s69, s41"); A("s_lshl_b32 s41, s46, 7"); A("s_add_u32 s69, s69, s41")
    A("s_add_u32 s69, s69, %d" % (128 * 7168))
    A("v_mul_u32_u24 v17, 7168, v1"); A("v_lshrrev_b32 v16, 4, v1"); A("v_lshl_add_u32 v17, v16, 24, v17")
RB = 68 * 1024
def filt_dma(A, mm_):
    d = 52 + 4 * mm_
    srd(A, d, PWR if mm_ == 0 else PWI, 0, 2048 * 1026)
    A("s_mul_i32 s96, s2, %d" % (64 * 1026)); A("s_mul_i32 s97, s%d, %d" % (WAVE, 17 * 1024)); A("s_add_u32 s96, s96, s97")
    for g_ in range(5):
        A("s_add_u32 m0, s97, 0x%x" % (mm_ * RB + g_ * 4096)); A("s_add_u32 s98, s96, %d" % (g_ * 4096))
        for p in range(4 if g_ < 4 else 1):
            A("buffer_load_dwordx4 v3, s[%d:%d], s98 offen%s lds" % (d, d + 3, " offset:%d" % (p * 1024) if p else ""))
def g1_addr(A):
    A("v_mov_b32 v4, v%d" % VWD); A("v_lshlrev_b32 v243, 7, v1")
    A("s_lshl_b32 s40, s47, 13"); A("v_add_u32 v5, s40, v3"); A("v_add_u32 v6, 0x10000, v5")
    A("v_bfe_u32 v7, v1, 4, 1"); A("v_lshlrev_b32 v140, 12, v7")
    A("v_bfe_u32 v7, v1, 5, 1"); A("v_lshl_add_u32 v140, v7, 10, v140")
    A("v_bfe_u32 v7, v1, 2, 2"); A("v_lshl_add_u32 v140, v7, 8, v140")
    A("v_and_b32 v7, 3, v1"); A("v_lshl_add_u32 v140, v7, 3, v140"); A("v_add_u32 v140, 0x4000, v140")
    A("v_bfe_u32 v7, v1, 2, 3"); A("s_lshl_b32 s40, s46, 2"); A("v_xor_b32 v7, s40, v7")
    for t in range(4):
        A("v_xor_b32 v141, %d, v7" % t); A("v_lshl_add_u32 v%d, v141, 5, v140" % (8 + t)); A("v_add_u32 v%d, 0x10000, v%d" % (12 + t, 8 + t))

def phase_a(A):
    RS = 2080; XS = LDS_SCR; YT = 96 * 1024
    A("s_load_dwordx16 s[4:19], s[0:1], 0"); A("s_load_dwordx4 s[20:23], s[0:1], 64")
    A("s_memrealtime s[66:67]")
    if not ENV("NOCPF0"):
        code_srd(A, 36, "a_start"); A("s_bfe_u32 s40, s2, 0x30003"); A("s_lshl_b32 s40, s40, 13")
        A("v_and_b32 v5, 15, v0"); A("v_lshlrev_b32 v5, 7, v5"); A("v_lshrrev_b32 v6, 6, v0"); A("v_lshl_add_u32 v5, v6, 11, v5")
        A("s_mov_b64 exec, 0xffff"); A("buffer_load_dword v243, v5, s[36:39], s40 offen"); A("s_mov_b64 exec, -1")
        A.label("a_start")
    G.tab_srd(A, STAB, "a")
    A("v_and_b32 v1, 63, v0"); A("v_lshrrev_b32 v2, 6, v0")
    A("v_readfirstlane_b32 s%d, v2" % WAVE)
    A("v_lshlrev_b32 v3, 4, v1")
    A("s_and_b32 s36, s2, 7"); A("s_bfe_u32 s37, s2, 0x10003"); A("s_lshr_b32 s38, s2, 4")
    A("s_lshl_b32 s39, s38, 3"); A("s_add_u32 s39, s39, s36")
    A("s_lshl_b32 s44, s37, 21"); A("s_lshl_b32 s45, s39, 11"); A("s_add_u32 s63, s44, s45"); A("s_add_u32 s69, s63, 0x40000")
    A("v_lshl_add_u32 v4, v2, 19, v3")
    g1_decode(A)
    A("v_lshrrev_b32 v5, 4, v1"); A("s_lshl_b32 s48, s46, 2"); A("v_add_u32 v5, s48, v5")
    A("v_lshlrev_b32 v6, 1, v5"); A("v_and_b32 v7, 15, v1"); A("v_xor_b32 v6, v6, v7")
    A("s_lshl_b32 s48, s47, 4"); A("v_add_u32 v5, s48, v5")
    A("v_mul_u32_u24 v5, 7168, v5"); A("v_lshl_add_u32 v%d, v6, 4, v5" % VWD)
    A("s_lshl_b32 s61, s43, 8"); A("s_add_u32 s62, s61, %d" % (57344 - 1024))
    A("s_lshl_b32 s64, s%d, 12" % WAVE); A("s_add_u32 s65, s64, 0x4000")
    A("s_lshl_b32 s60, s42, 19"); A("s_add_u32 s60, s60, s64")
    A("s_waitcnt lgkmcnt(0)")
    srd(A, 48, PX, 0, 4 << 20)
    X = 8
    A("buffer_load_dwordx4 v[8:11], v4, s[48:51], s63 offen")
    A("buffer_load_dwordx4 v[12:15], v4, s[48:51], s63 offen offset:1024")
    A("buffer_load_dwordx4 v[16:19], v4, s[48:51], s69 offen")
    A("buffer_load_dwordx4 v[20:23], v4, s[48:51], s69 offen offset:1024")
    srd(A, SDBG, PDBG, 0, 256); srd(A, SFL, PWS, WS_FL, SZ_FL)
    VZ = 245
    A("v_mov_b32 v%d, 0" % VZ)
    A("s_or_b32 s44, s2, s%d" % WAVE); A("s_cmp_lg_u32 s44, 0"); A("s_cbranch_scc1 a_notok")
    A("s_or_b32 s66, s66, 1"); A("v_mov_b32 v246, s66")
    A("s_mov_b64 exec, 1")
    A("buffer_store_dword v246, v%d, s[%d:%d], 0 offen sc1" % (VZ, SDBG, SDBG + 3))
    A("s_mov_b64 exec, -1")
    A.label("a_notok")
    F1r = 64; TW = 72; F2r = 88; F2S = 120
    names = [("f1re", F1r), ("f1im", F1r + 4)]
    for bh in range(2):
        for t in range(2): names.append(("tw%d%d" % (bh, t), TW + 8 * bh + 4 * t))
    for dh in range(2):
        for part in range(2):
            for bh in range(2): names.append(("f2_%d%d%d" % (dh, part, bh), F2r + 16 * dh + 8 * part + 4 * bh))
    for part in range(2):
        for bh in range(2): names.append(("f2s_%d%d" % (part, bh), F2S + 8 * part + 4 * bh))
    TR, XR, XG = 142, 143, 144
    A("v_lshrrev_b32 v7, 2, v1"); A("v_lshlrev_b32 v7, 6, v7"); A("v_and_b32 v%d, 3, v1" % TR)
    A("v_lshl_add_u32 v7, v%d, 3, v7" % TR); A("v_mul_u32_u24 v%d, %d, v2" % (TR, 2 * RS)); A("v_add_u32 v%d, v%d, v7" % (TR, TR)); A("v_add_u32 v%d, 0x%x, v%d" % (TR, XS, TR))
    A("v_and_b32 v7, 7, v1"); A("v_mul_u32_u24 v%d, %d, v7" % (XR, RS)); A("v_lshlrev_b32 v%d, 4, v7" % XG)
    A("v_bfe_u32 v7, v1, 3, 2"); A("v_lshl_add_u32 v%d, v7, 3, v%d" % (XR, XR)); A("v_lshl_add_u32 v%d, v7, 8, v%d" % (XG, XG))
    A("v_lshrrev_b32 v7, 5, v0"); A("v_lshl_add_u32 v%d, v7, 6, v%d" % (XR, XR)); A("v_lshl_add_u32 v%d, v7, 14, v%d" % (XG, XG))
    A("v_add_u32 v%d, 0x%x, v%d" % (XR, XS, XR))
    A("s_lshr_b32 s10, s39, 4"); A("s_lshl_b32 s10, s10, 19"); A("s_and_b32 s11, s39, 15"); A("s_lshl_b32 s11, s11, 10")
    A("s_add_u32 s10, s10, s11"); A("s_lshl_b32 s11, s37, 7"); A("s_add_u32 s10, s10, s11")
    XW = 141
    A("v_mul_u32_u24 v%d, %d, v2" % (XW, 2 * RS)); A("v_add_u32 v%d, v%d, v3" % (XW, XW)); A("v_add_u32 v%d, 0x%x, v%d" % (XW, XS, XW))
    tab_dma(A, "f1re", 112 * 1024, LDS_T2)
    MG, MP, MQ, YB, YR, YG = 136, 137, 138, 139, 146, 145
    A("v_and_b32 v5, 15, v1"); A("v_cmp_eq_u32 vcc, 0, v5"); A("v_mov_b32 v7, 0xffff")
    A("v_cndmask_b32 v%d, -1, 0, vcc" % MG); A("v_cndmask_b32 v%d, 0, v7, vcc" % MP); A("v_lshlrev_b32 v%d, 16, v%d" % (MQ, MP))
    A("v_and_b32 v7, 3, v1"); A("v_lshlrev_b32 v7, 5, v7"); A("v_lshl_add_u32 v%d, v1, 7, v7" % YB); A("v_lshl_add_u32 v%d, v2, 3, v%d" % (YB, YB))
    A("v_add_u32 v%d, 0x%x, v%d" % (YB, YT, YB))
    for r in range(1, 4): A("v_xor_b32 v%d, %d, v%d" % (196 + r, 32 * r, YB))
    A("v_lshlrev_b32 v%d, 4, v0" % YR); A("v_add_u32 v%d, 0x%x, v%d" % (YR, YT, YR))
    A("v_lshrrev_b32 v7, 3, v0"); A("v_lshlrev_b32 v%d, 15, v7" % YG); A("v_and_b32 v7, 3, v7"); A("v_lshlrev_b32 v7, 1, v7")
    A("v_and_b32 v6, 7, v0"); A("v_xor_b32 v7, v7, v6"); A("v_lshl_add_u32 v%d, v7, 4, v%d" % (YG, YG))
    A("s_waitcnt vmcnt(5)")
    stamp(A, 2)
    A("s_mov_b32 s45, 0xffff0000")
    U = 24
    for row in range(2):
        for i in range(8):
            A("v_lshlrev_b32 v%d, 16, v%d" % (U + 16 * row + 2 * i, X + 8 * row + i))
            A("v_and_b32 v%d, s45, v%d" % (U + 16 * row + 2 * i + 1, X + 8 * row + i))
    srd(A, 52, PWG, 0, 1024 * 7168); srd(A, 56, PWU, -2048, 1024 * 7168 + 2048)
    A("s_cmp_lt_u32 s2, 32"); A("s_cselect_b32 s54, 0, s54"); A("s_cselect_b32 s58, 0, s58")
    A0 = A; A = Asm()
    S = [56, 57]; T = [58, 59]; Q = [60, 61]
    def tree(dst):
        for row in range(2):
            b = X + 8 * row
            A("v_pk_add_f32 %s, %s, %s" % (p2(b), p2(b), p2(b + 4))); A("v_pk_add_f32 %s, %s, %s" % (p2(b + 2), p2(b + 2), p2(b + 6)))
        for row in range(2): A("v_pk_add_f32 %s, %s, %s" % (p2(X + 8 * row), p2(X + 8 * row), p2(X + 8 * row + 2)))
        for row in range(2): A("v_add_f32 v%d, v%d, v%d" % (dst[row], X + 8 * row, X + 8 * row + 1))
    for row in range(2):
        for i in range(4): A("v_pk_add_f32 %s, %s, %s" % (p2(X + 8 * row + 2 * i), p2(U + 16 * row + 2 * i), p2(U + 16 * row + 8 + 2 * i)))
    tree(S)
    allreduce_add(A, S, T)
    A("s_mov_b32 s44, 0x%x" % f32(1.0 / 1024))
    for row in range(2): A("v_mul_f32 v%d, s44, v%d" % (S[row], S[row]))
    DV = 164
    sel = lambda row: " op_sel:[0,%d] op_sel_hi:[1,%d] neg_lo:[0,1] neg_hi:[0,1]" % (row, row)
    for row in range(2):
        for i in range(8): A("v_pk_add_f32 %s, %s, v[56:57]%s" % (p2(DV + 16 * row + 2 * i), p2(U + 16 * row + 2 * i), sel(row)))
    for row in range(2):
        for i in range(4): A("v_pk_mul_f32 %s, %s, %s" % (p2(X + 8 * row + 2 * i), p2(DV + 16 * row + 2 * i), p2(DV + 16 * row + 2 * i)))
    for row in range(2):
        for i in range(4): A("v_pk_fma_f32 %s, %s, %s, %s" % (p2(X + 8 * row + 2 * i), p2(DV + 16 * row + 8 + 2 * i), p2(DV + 16 * row + 8 + 2 * i), p2(X + 8 * row + 2 * i)))
    tree(Q)
    A("v_cvt_pk_bf16_f32 v62, v56, v57")
    allreduce_add(A, Q, T)
    A("v_lshlrev_b32 v56, 16, v62"); A("v_and_b32 v57, s45, v62")
    for row in range(2): A("v_mul_f32 v%d, s44, v%d" % (Q[row], Q[row]))
    def rnd2():
        A("v_cvt_pk_bf16_f32 v58, v60, v61"); A("v_lshlrev_b32 v60, 16, v58"); A("v_and_b32 v61, s45, v58")
    rnd2()
    for row in range(2): A("v_add_f32 v%d, 0x%x, v%d" % (Q[row], f32(1e-5), Q[row]))
    rnd2()
    for row in range(2): A("v_sqrt_f32 v%d, v%d" % (Q[row], Q[row]))
    rnd2()
    for row in range(2): A("v_rcp_f32 v%d, v%d" % (Q[row], Q[row]))
    ln = A.items; A = A0
    wd = dmaW(0, VWD) + dmaW(1, VWD) + dmaW(2, VWD)
    stride = len(ln) // len(wd)
    for i, it in enumerate(ln):
        A.items.append(it)
        if i % stride == 0 and i // stride < len(wd):
            for y in wd[i // stride]: A(y)
    A("buffer_load_dword v247, v%d, s[%d:%d], 0 offen sc1" % (VZ, SDBG, SDBG + 3))
    for row in range(2):
        b = U + 16 * row
        for i in range(8): A("v_pk_add_f32 %s, %s, v[56:57]%s" % (p2(b + 2 * i), p2(b + 2 * i), sel(row)))
        for i in range(8): A("v_cvt_pk_bf16_f32 v%d, v%d, v%d" % (X + 8 * row + i, b + 2 * i, b + 2 * i + 1))
        for i in range(8):
            A("v_lshlrev_b32 v%d, 16, v%d" % (b + 2 * i, X + 8 * row + i)); A("v_and_b32 v%d, s45, v%d" % (b + 2 * i + 1, X + 8 * row + i))
        for i in range(8): A("v_pk_mul_f32 %s, %s, v[60:61] op_sel:[0,%d] op_sel_hi:[1,%d]" % (p2(b + 2 * i), p2(b + 2 * i), row, row))
        for i in range(8): A("v_cvt_pk_bf16_f32 v%d, v%d, v%d" % (X + 8 * row + i, b + 2 * i, b + 2 * i + 1))
        A("ds_write_b128 v%d, v[%d:%d] offset:%d" % (XW, X + 8 * row, X + 8 * row + 3, row * RS))
        A("ds_write_b128 v%d, v[%d:%d] offset:%d" % (XW, X + 8 * row + 4, X + 8 * row + 7, row * RS + 1024))
    srd(A, 48, PWS, WS_XN, SZ_XN)
    A("s_waitcnt lgkmcnt(0)")
    for row in range(2):
        for bh in range(2):
            for hh in range(2):
                r = X + 8 * row + 4 * bh + 2 * hh
                A("ds_read_b64_tr_b16 v[%d:%d], v%d offset:%d" % (r, r + 1, TR, row * RS + hh * 1024 + bh * 32))
    A("s_waitcnt vmcnt(13)")
    A("s_barrier")
    XO = 148
    for it in range(4):
        A("ds_read_b64 v[%d:%d], v%d offset:%d" % (XO + 4 * it, XO + 4 * it + 1, XR, it * 512))
        A("ds_read_b64 v[%d:%d], v%d offset:%d" % (XO + 4 * it + 2, XO + 4 * it + 3, XR, it * 512 + 32))
    for it in range(4):
        A("s_add_u32 s41, s10, 0x%x" % (it * 8 * 16384))
        A("s_waitcnt lgkmcnt(%d)" % (6 - 2 * it))
        A("buffer_store_dwordx4 v[%d:%d], v%d, s[48:51], s41 offen sc1" % (XO + 4 * it, XO + 4 * it + 3, XG))
    stamp(A, 3)
    A("v_add_u32 v7, 0x%x, v3" % (112 * 1024))
    for nm, r in names: tab_read(A, vr(r, 4), nm, "f1re", 7, LDS_T2 - 112 * 1024)
    A("s_waitcnt lgkmcnt(12)")
    for row in range(2):
        for bh in range(2):
            for part in range(2):
                d = U + 16 * row + 8 * bh + 4 * part
                A("%s %s, %s, %s, 0" % (MF, q("v", d), q("v", X + 8 * row + 4 * bh), q("v", F1r + 4 * part)))
    PP, PQ = 164, 180
    neg = " neg_lo:[1,0,0] neg_hi:[1,0,0]"
    for row in range(2):
        for bh in range(2):
            re = U + 16 * row + 8 * bh; im = re + 4; tc = TW + 8 * bh; ts = tc + 4; t = 56
            for h in (0, 2): A("v_pk_mul_f32 %s, %s, %s" % (p2(t + h), p2(re + h), p2(tc + h)))
            for h in (0, 2): A("v_pk_mul_f32 %s, %s, %s" % (p2(t + 4 + h), p2(im + h), p2(tc + h)))
            for h in (0, 2): A("v_pk_fma_f32 %s, %s, %s, %s" % (p2(t + h), p2(im + h), p2(ts + h), p2(t + h)))
            for h in (0, 2): A("v_pk_fma_f32 %s, %s, %s, %s%s" % (p2(t + 4 + h), p2(re + h), p2(ts + h), p2(t + 4 + h), neg))
            for r in range(4): A("v_cvt_pk_bf16_f32 v%d, v%d, v%d" % (re + r, t + r, t + 4 + r))
            for r in range(4):
                o = 8 * row + 4 * bh + r
                A("v_and_b32 v%d, v%d, v%d" % (X + o, re + r, MG)); A("v_and_b32 v%d, v%d, v%d" % (PP + o, re + r, MP)); A("v_and_b32 v%d, v%d, v%d" % (PQ + o, re + r, MQ))
    A("s_waitcnt vmcnt(0)")
    A("v_readfirstlane_b32 s%d, v247" % TOK)
    A("s_barrier")
    A("s_cmp_lg_u32 s%d, 0" % TOK); A("s_cbranch_scc1 a_tok")
    A("s_mov_b32 s68, 0x20000")
    A.label("a_tokl")
    A("buffer_load_dword v247, v%d, s[%d:%d], 0 offen sc1" % (VZ, SDBG, SDBG + 3)); A("s_waitcnt vmcnt(0)")
    A("v_readfirstlane_b32 s%d, v247" % TOK)
    A("s_sub_u32 s68, s68, 1"); A("s_cmp_eq_u32 s68, 0"); A("s_cbranch_scc1 a_tok")
    A("s_cmp_eq_u32 s%d, 0" % TOK); A("s_cbranch_scc1 a_tokl")
    A.label("a_tok")
    A("s_cmp_lg_u32 s%d, 0" % WAVE); A("s_cbranch_scc1 a_nof1")
    A("s_lshl_b32 s41, s2, 7")
    set_flag(A, 41, VZ, 246)
    A.label("a_nof1")
    stamp(A, 4)
    A("s_cmp_lt_u32 s2, 32"); A("s_cbranch_scc0 a_nfil")
    filt_dma(A, 0)
    A.label("a_nfil")
    A("s_waitcnt lgkmcnt(0)")
    m = []
    for row in range(2):
        for bh in range(2):
            for dh in range(2):
                for part in range(2):
                    d = U + 16 * row + 8 * dh + 4 * part
                    m.append("%s %s, %s, %s, %s" % (MF, q("v", d), q("v", F2r + 16 * dh + 8 * part + 4 * bh), q("v", X + 8 * row + 4 * bh), "0" if bh == 0 else q("v", d)))
        for bh in range(2):
            for dh in range(2):
                for part in range(2):
                    d = U + 16 * row + 8 * dh + 4 * part
                    m.append("%s %s, %s, %s, %s" % (MF, q("v", d), q("v", F2S + 8 * part + 4 * bh), q("v", (PP if dh == 0 else PQ) + 8 * row + 4 * bh), q("v", d)))
    C = Asm(); g1_addr(C)
    s1 = interleave(m, [t for k, t in C.items], 9, 32)
    for k, x in enumerate(m):
        A(x)
        for y in s1[k]: A(y)
    A("s_lshl_b32 s10, s36, 12"); A("s_lshl_b32 s41, s38, 8"); A("s_add_u32 s10, s10, s41"); A("s_lshl_b32 s41, s37, 7"); A("s_add_u32 s10, s10, s41")
    w_touch_setup(A)
    A("s_cmp_lt_u32 s2, 32"); A("s_cbranch_scc1 a_nox")
    A("s_lshl_b32 s44, s42, 12")
    if ENV("AIT"): stamp(A, 8, force=True)
    poll(A, "f1", 44, 243, 246, 32)
    stamp(A, 5)
    for b in range(3): flat(A, dmaX(b))
    for i in range(2):
        for y in w_touch(): A(y)
    A("s_branch a_x")
    A.label("a_nox")
    A.label("a_x")
    if ENV("AIT") == "2": stamp(A, 7, force=True)
    srd(A, 32, PWS, WS_Y, SZ_Y)
    A("s_nop 4")
    YP = 64
    for row in range(2):
        for dh in range(2):
            for r in range(4):
                re = U + 16 * row + 8 * dh + r
                A("v_cvt_pk_bf16_f32 v%d, v%d, v%d" % (YP + 8 * dh + 2 * r + row, re, re + 4))
    for dh in range(2):
        for r in range(4):
            A("ds_write_b64 v%d, %s offset:%d" % (YB if r == 0 else 196 + r, p2(YP + 8 * dh + 2 * r), dh * 8192))
    A("s_lshl_b32 s63, s2, 7"); A("s_add_u32 s63, s63, %d" % F2)
    A("v_mov_b32 v18, v%d" % YG)
    if ENV("AIT") == "2": stamp(A, 9, force=True)
    A("v_mov_b32 v28, v243"); A("v_mov_b32 v29, 0")
    A("s_cmp_lt_u32 s2, 32"); A("s_cbranch_scc1 a_nw")
    A("s_waitcnt vmcnt(10)")
    A.label("a_nw")
    A("s_waitcnt lgkmcnt(0)")
    if ENV("AIT") == "2": stamp(A, 10, force=True)
    A("s_barrier")
    for it in range(4): A("ds_read_b128 %s, v%d offset:%d" % (q("a", 160 + 4 * it), YR, it * 4096))

def late_stores():
    o = []
    for it in range(4):
        o.append(["buffer_store_dwordx4 %s, v18, s[32:35], s10 offen sc1" % q("a", 160 + 4 * it), "s_add_u32 s10, s10, 0x%x" % (32 * 32768)])
    return o

from gen2b import gemm1, colfft, gemm2

def main():
    G.build_tables(); G.build_tables_inv()
    A = Asm(); G.kernel_head(A, KN)
    A("s_cmp_ge_u32 s2, 256"); A("s_cbranch_scc1 k_done")
    stamp(A, 0); stamp(A, 1, True)
    M = sys.modules[__name__]
    phase_a(A)
    A("s_cmp_lt_u32 s2, 32"); A("s_cbranch_scc1 k_fft")
    gemm1(A, M)
    A.label("k_g2")
    gemm2(A, M)
    A("s_endpgm")
    A.label("k_fft")
    colfft(A, M)
    A("s_branch k_g2")
    A.label("k_done"); A("s_endpgm")
    A.fix()
    stub = open("cdna_kernels/%s.s.ref" % NAME).read().split("\n")
    head = [l for l in stub if l.startswith(";") and "@launch" not in l and "Override" not in l and "grid=ceil" not in l]
    o = "\n".join(head[:12]) + "\n"
    if ENV("ASLIST"): o += "; @launch kernel=%s grid=(256,1,1) block=(256,1,1) lds=%d\n" % (KN, LDS_SIZE)
    else: o += "; @launch grid=(256,1,1) block=(256,1,1) lds=%d\n" % LDS_SIZE
    o += '.amdgcn_target "amdgcn-amd-amdhsa--gfx950"\n'
    o += A.text() + G.kernel_desc(KN, 512, 256, 100)
    o += '.section .rodata,"a"\n.p2align 8\n.type gf_tab,@object\ngf_tab:\n'
    for b in TAB.blocks:
        for i in range(0, 256, 8): o += ".long " + ",".join("0x%x" % x for x in b[i:i + 8]) + "\n"
    o += ".size gf_tab, %d\n" % (len(TAB.blocks) * 1024)
    path = sys.argv[1] if len(sys.argv) > 1 else "cdna_kernels/%s.s" % NAME
    open(path, "w").write(o)
    print("wrote", path, len(o), "bytes")

if __name__ == "__main__":
    main()
```

```python
import sys, math, struct
import numpy as np
from asmlib import *

NAME = "recurrent_scan__spectral_gfnet__geglu_ffn__prompt"
WS_XN = 0;            SZ_XN = 4 << 20
WS_Y = 4 << 20;       SZ_Y = 513 * 8192
WS_WT = 9 << 20;      SZ_WT = 513 * 8192
WS_Z = 14 << 20;      SZ_Z = 4 << 20
WS_S = 18 << 20;      SZ_S = 4 << 20
WS_H = 22 << 20;      SZ_H = 16 * 112 * 8192
WS_FL = 36 << 20;     SZ_FL = 131072
WS_XC = 37 << 20;     SZ_XC = 8 << 20
KA = dict(x=0, wr=8, wi=16, bx=24, wg=32, wu=40, wd=48, out=56, dbg=64, ws=72)

import os
STAMP = os.environ.get("STAMP", "") != ""
def f32(x): return struct.unpack("<I", struct.pack("<f", x))[0]
def bf16(x):
    u = f32(x); return ((u + 0x7FFF + ((u >> 16) & 1)) >> 16) & 0xFFFF
def pk(lo, hi): return bf16(lo) | (bf16(hi) << 16)

class Table:
    def __init__(self): self.blocks = []; self.names = {}
    def add(self, name, fn):
        self.names[name] = len(self.blocks)
        self.blocks.append([d for l in range(64) for d in fn(l)])
    def off(self, name): return self.names[name] * 1024
TAB = Table()
def cs(num, den):
    a = 2 * math.pi * (num % den) / den
    c, s = math.cos(a), math.sin(a)
    if abs(c) < 1e-12: c = 0.0
    if abs(s) < 1e-12: s = 0.0
    return c, s

def build_tables():
    def slot_a(g, j): return 4 * g + j if j < 4 else 16 + 4 * g + (j - 4)
    def f1(part):
        def fn(l):
            g, c = l >> 4, l & 15
            v = []
            for j in range(8):
                a = slot_a(g, j)
                if part == 0: v.append(cs(a * c, 32)[0])
                else: v.append(-cs(a * c, 32)[1] if c else cs(a * 16, 32)[0])
            return [pk(v[2 * i], v[2 * i + 1]) for i in range(4)]
        return fn
    TAB.add("f1re", f1(0)); TAB.add("f1im", f1(1))
    for bh in range(2):
        for t in range(2):
            TAB.add("tw%d%d" % (bh, t), lambda l, bh=bh, t=t: [f32(cs((16 * bh + 4 * (l >> 4) + r) * (l & 15), 1024)[t]) for r in range(4)])
    for dh in range(2):
        for part in range(2):
            for bh in range(2):
                def fn(l, dh=dh, part=part, bh=bh):
                    g, i = l >> 4, l & 15
                    d = 16 * dh + i; o = []
                    for r in range(4):
                        b = 16 * bh + 4 * g + r
                        c, s = cs(b * d, 32)
                        if part == 0: o.append(pk(c, s))
                        else: o.append(pk(-s, c) if dh == 0 else pk(s, -c))
                    return o
                TAB.add("f2_%d%d%d" % (dh, part, bh), fn)
    for part in range(2):
        for bh in range(2):
            def fn(l, part=part, bh=bh):
                g, i = l >> 4, l & 15
                o = []
                for r in range(4):
                    b = 16 * bh + 4 * g + r
                    c, s = cs(b * i, 32)
                    lo = c if part == 0 else (-s if i else cs(b * 16, 32)[0])
                    u = 15 - i
                    c2, s2 = cs(b * (2 * u + 1), 64)
                    hi = c2 if part == 0 else -s2
                    o.append(pk(lo, hi))
                return o
            TAB.add("f2s_%d%d" % (part, bh), fn)
    for inv in range(2):
        for part in range(2):
            def fn(l, inv=inv, part=part):
                g, n = l >> 4, l & 15
                o = []
                for jj in range(4):
                    c, s = cs((4 * g + jj) * n, 16)
                    if inv: s = -s
                    o.append(pk(c, s) if part == 0 else pk(-s, c))
                return o
            TAB.add("fa_%d%d" % (inv, part), fn)
    for ih in range(2):
        def fn(l, ih=ih):
            hk, m = l >> 5, l & 31
            if ((m >> 2) & 1) != hk: return [0, 0, 0, 0]
            rho = (m & 3) + 4 * (m >> 3); ep = rho >> 1; part = rho & 1
            o = []
            for jj in range(4):
                c, s = cs((4 * ih + jj) * ep, 8)
                o.append(pk(c, s) if part == 0 else pk(-s, c))
            return o
        TAB.add("fe32_%d" % ih, fn)

def build_tables_inv():
    def bmap(n, bh): return 8 * (n >> 2) + 4 * bh + (n & 3)
    for bh in range(2):
        for part in range(2):
            for dh in range(2):
                def fn(l, bh=bh, part=part, dh=dh):
                    g, n = l >> 4, l & 15; b = bmap(n, bh); o = []
                    for r in range(4):
                        c, s = cs(b * (16 * dh + 4 * g + r), 32)
                        sg = 1.0 if dh == 0 else -1.0
                        o.append(pk(c, -s * sg) if part == 0 else pk(s, c * sg))
                    return o
                TAB.add("i1_%d%d%d" % (bh, part, dh), fn)
    for bh in range(2):
        for part in range(2):
            def fn(l, bh=bh, part=part):
                g, n = l >> 4, l & 15; b = bmap(n, bh); o = []
                for r in range(4):
                    d = 4 * g + r
                    if part == 0:
                        if d == 0: o.append(pk(1.0, (-1.0) ** b))
                        else:
                            c, s = cs(b * d, 32); o.append(pk(2 * c, -2 * s))
                    else:
                        u = 15 - d
                        c, s = cs(b * (2 * u + 1), 64); o.append(pk(2 * c, -2 * s))
                return o
            TAB.add("i1s_%d%d" % (bh, part), fn)
    for ah in range(2):
        def fn(l, ah=ah):
            g, n = l >> 4, l & 15; a = 16 * ah + n; o = []; sc = 2.0 ** -21
            for r in range(4):
                c_ = 4 * g + r
                if c_ == 0: o.append(pk(sc, sc * (-1.0) ** a))
                else:
                    c, s = cs(a * c_, 32); o.append(pk(2 * c * sc, -2 * s * sc))
            return o
        TAB.add("i2_%d" % ah, fn)
    for bh in range(2):
        for t in range(2):
            TAB.add("itw%d%d" % (bh, t), lambda l, bh=bh, t=t: [f32(cs(bmap(l & 15, bh) * (4 * (l >> 4) + r), 1024)[t]) for r in range(4)])

def srd(A, d, base, off, size):
    if off >= 0:
        A("s_add_u32 s%d, s%d, 0x%x" % (d, base, off)); A("s_addc_u32 s%d, s%d, 0" % (d + 1, base + 1))
    else:
        A("s_sub_u32 s%d, s%d, 0x%x" % (d, base, -off)); A("s_subb_u32 s%d, s%d, 0" % (d + 1, base + 1))
    A("s_and_b32 s%d, s%d, 0xffff" % (d + 1, d + 1))
    A("s_mov_b32 s%d, 0x%x" % (d + 2, size)); A("s_mov_b32 s%d, 0x20000" % (d + 3))

def tab_srd(A, d, tag):
    A("s_getpc_b64 s[%d:%d]" % (d, d + 1))
    A("s_add_u32 s%d, s%d, gf_tab@rel32@lo+4" % (d, d))
    A("s_addc_u32 s%d, s%d, gf_tab@rel32@hi+12" % (d + 1, d + 1))
    A("s_and_b32 s%d, s%d, 0xffff" % (d + 1, d + 1))
    A("s_mov_b32 s%d, 0x%x" % (d + 2, len(TAB.blocks) * 1024)); A("s_mov_b32 s%d, 0x20000" % (d + 3))

def tab_load(A, dst, name, vlane16, srdt, stmp):
    o = TAB.off(name)
    A("s_mov_b32 s%d, 0x%x" % (stmp, o))
    A("buffer_load_dwordx4 %s, v%d, s[%d:%d], s%d offen" % (dst, vlane16, srdt, srdt + 3, stmp))

def kernel_head(A, name):
    A.raw(".text"); A.raw(".globl %s" % name); A.raw(".p2align 8"); A.raw(".type %s,@function" % name)
    A.label(name)

def kernel_desc(name, nv, acc_off, ns=102):
    if STAMP: ns = 102
    return """.section .rodata,"a"
.p2align 6
.amdhsa_kernel %s
  .amdhsa_next_free_vgpr %d
  .amdhsa_next_free_sgpr %d
  .amdhsa_accum_offset %d
  .amdhsa_group_segment_fixed_size 0
  .amdhsa_kernarg_size 80
  .amdhsa_user_sgpr_count 2
  .amdhsa_user_sgpr_kernarg_segment_ptr 1
  .amdhsa_system_sgpr_workgroup_id_x 1
  .amdhsa_float_denorm_mode_32 3
.end_amdhsa_kernel
""" % (name, nv, ns, acc_off)

def allreduce_add(A, regs, tmps):
    for mod in ("quad_perm:[1,0,3,2]", "quad_perm:[2,3,0,1]", "row_half_mirror", "row_mirror"):
        for r in regs:
            A("v_add_f32_dpp v%d, v%d, v%d %s row_mask:0xf bank_mask:0xf" % (r, r, r, mod))
    for sw in ("v_permlane16_swap_b32", "v_permlane32_swap_b32"):
        for r, t in zip(regs, tmps): A("v_mov_b32 v%d, v%d" % (t, r))
        for r, t in zip(regs, tmps): A("%s v%d, v%d" % (sw, r, t))
        for r, t in zip(regs, tmps): A("v_add_f32 v%d, v%d, v%d" % (r, r, t))

MF = "v_mfma_f32_16x16x32_bf16"

import os
STAMP = os.environ.get("STAMP", "") != ""
WS_STAMP = 64 << 20
def stamp(A, i, real=False, force=False):
    if os.environ.get("CLK") and 2 <= i <= 7 and not force: return
    if os.environ.get("AIT") and 7 <= i <= 10 and not force: return
    if os.environ.get("RT"): real = True
    if STAMP: A("%s s[%d:%d]" % ("s_memrealtime" if real else "s_memtime", 72 + 2 * i, 73 + 2 * i))
def stamp_out(A, kidx, n, wsreg, tag):
    if not STAMP: return
    A("s_waitcnt vmcnt(0) lgkmcnt(0)")
    if os.environ.get("STAMP") == "dbg":
        if tag == "cf": return
        A("s_cmp_lg_u32 s2, 40"); A("s_cbranch_scc1 so_skip_%s" % tag)
        A("s_load_dwordx2 s[68:69], s[0:1], %d" % KA["dbg"]); A("s_waitcnt lgkmcnt(0)")
        srd(A, 96, 68, 512 * (2 - kidx), 256)
        A("v_mov_b32 v1, 0")
        sel = [1, n - 1] + ([3, 5, 7] if kidx == 0 else [4, 6, 8])
        for i, k in enumerate(sel):
            if i >= 2: A("s_sub_u32 s70, s%d, s72" % (72 + 2 * k))
            else: A("s_mov_b32 s70, s%d" % (72 + 2 * k))
            A("v_mov_b32 v2, s70")
            A("buffer_store_dword v2, v1, s[96:99], 0 offen offset:%d" % (4 * (5 * kidx + i)))
            A("s_nop 1")
        A.label("so_skip_%s" % tag)
        return
    srd(A, 96, wsreg, WS_STAMP + kidx * 65536, 65536)
    A("v_lshrrev_b32 v1, 6, v0"); A("v_lshlrev_b32 v1, 6, v1"); A("s_lshl_b32 s68, s2, 8"); A("v_add_u32 v1, s68, v1")
    for i in range(n):
        A("v_mov_b32 v2, s%d" % (72 + 2 * i))
        A("buffer_store_dword v2, v1, s[96:99], 0 offen offset:%d" % (4 * i))
        A("s_nop 1")

K1_LDS = 8 * 2080 + 16384
def gen_k1_help(A):
    A("s_load_dwordx4 s[4:7], s[0:1], %d" % KA["wr"])
    A("s_load_dwordx4 s[8:11], s[0:1], %d" % KA["wg"])
    A("s_load_dwordx2 s[12:13], s[0:1], %d" % KA["ws"])
    A("s_sub_u32 s3, s2, 256")
    A("s_and_b32 s36, s3, 3"); A("s_bfe_u32 s37, s3, 0x10002"); A("s_bfe_u32 s38, s3, 0x20003"); A("s_lshr_b32 s39, s3, 5")
    A("s_lshl_b32 s40, s37, 3"); A("s_lshl_b32 s41, s38, 6"); A("s_add_u32 s40, s40, s41"); A("s_lshl_b32 s41, s39, 8"); A("s_add_u32 s40, s40, s41")
    A("s_mul_i32 s40, s40, 1026"); A("s_lshl_b32 s41, s36, 8"); A("s_add_u32 s40, s40, s41")
    A("v_and_b32 v1, 7, v0"); A("v_lshrrev_b32 v2, 3, v0")
    A("v_mul_u32_u24 v3, 1026, v1"); A("v_lshl_add_u32 v3, v2, 3, v3")
    A("v_lshlrev_b32 v4, 15, v2"); A("v_lshl_add_u32 v4, v1, 4, v4")
    A("s_lshl_b32 s42, s36, 20"); A("s_lshl_b32 s41, s39, 10"); A("s_add_u32 s42, s42, s41"); A("s_lshl_b32 s41, s38, 8"); A("s_add_u32 s42, s42, s41")
    A("s_lshl_b32 s41, s37, 7"); A("s_add_u32 s42, s42, s41")
    A("s_mov_b32 s46, 0x05040100"); A("s_mov_b32 s47, 0x07060302")
    A("v_lshlrev_b32 v5, 6, v0")
    A("s_mul_i32 s43, s3, %d" % (1024 * 7168 // 256))
    A("s_waitcnt lgkmcnt(0)")
    WSZ = 2048 * 1026
    srd(A, 16, 4, 0, WSZ); srd(A, 20, 6, 0, WSZ); srd(A, 24, 12, WS_WT, SZ_WT)
    srd(A, 28, 8, 0, 1024 * 7168); srd(A, 32, 10, 0, 1024 * 7168)
    for r in range(4):
        A("s_add_u32 s41, s40, %d" % (16 * r * 1026))
        A("buffer_load_dwordx2 v[%d:%d], v3, s[16:19], s41 offen" % (8 + 4 * r, 9 + 4 * r))
        A("buffer_load_dwordx2 v[%d:%d], v3, s[20:23], s41 offen" % (10 + 4 * r, 11 + 4 * r))
    A("v_mul_u32_u24 v6, 1026, v1")
    for r in range(4):
        A("s_add_u32 s41, s40, %d" % (16 * r * 1026 + 256))
        A("buffer_load_ushort v%d, v6, s[16:19], s41 offen" % (48 + r))
        A("buffer_load_ushort v%d, v6, s[20:23], s41 offen" % (52 + r))
    PFM = os.environ.get("PFM", "x4")
    if PREFETCH and PFM == "x4":
        A("v_lshlrev_b32 v5, 4, v0")
        NPF = int(os.environ.get("NPF", "7"))
        for i in range(NPF):
            A("buffer_load_dwordx4 v[%d:%d], v5, s[28:31], s43 offen" % (64 + 8 * i, 67 + 8 * i))
            A("buffer_load_dwordx4 v[%d:%d], v5, s[32:35], s43 offen" % (68 + 8 * i, 71 + 8 * i))
            A("s_add_u32 s43, s43, 4096")
        A("s_waitcnt vmcnt(%d)" % (2 * NPF))
    elif PREFETCH and PFM == "d128":
        A("v_lshlrev_b32 v5, 7, v0")
        A("v_cmp_gt_u32 vcc, 224, v0"); A("s_and_saveexec_b64 s[44:45], vcc")
        A("buffer_load_dword v62, v5, s[28:31], s43 offen"); A("buffer_load_dword v63, v5, s[32:35], s43 offen")
        A("s_mov_b64 exec, s[44:45]")
        A("s_waitcnt vmcnt(2)")
    else:
        A("s_waitcnt vmcnt(0)")
    for c in range(4):
        for r in range(4):
            A("v_perm_b32 v%d, v%d, v%d, s%d" % (24 + 4 * c + r, 10 + 4 * r + (c >> 1), 8 + 4 * r + (c >> 1), 46 + (c & 1)))
        A("s_add_u32 s41, s42, %d" % (c * 8192))
        A("buffer_store_dwordx4 v[%d:%d], v4, s[24:27], s41 offen%s" % (24 + 4 * c, 27 + 4 * c, WT_FLAGS))
    A("s_cmp_lg_u32 s36, 3"); A("s_cbranch_scc1 k1_done")
    for r in range(4): A("v_lshl_or_b32 v%d, v%d, 16, v%d" % (48 + r, 52 + r, 48 + r))
    A("s_add_u32 s41, s42, %d" % (128 * 8192))
    A("v_cmp_gt_u32 vcc, 8, v0"); A("s_and_saveexec_b64 s[44:45], vcc"); A("s_cbranch_execz k1_done")
    A("buffer_store_dwordx4 v[48:51], v4, s[24:27], s41 offen%s" % WT_FLAGS)

PREFETCH = os.environ.get("NOPF", "") == ""
WT_FLAGS = os.environ.get("WTFL", " sc1")
H_FLAGS = os.environ.get("HFL", "")
def gen_k1():
    A = Asm(); kernel_head(A, "k1_kernel")
    RS = 2080; YT = 8 * RS
    A("s_cmp_ge_u32 s2, 512"); A("s_cbranch_scc1 k1_done")
    A("s_cmp_ge_u32 s2, 256"); A("s_cbranch_scc1 k1_help")
    stamp(A, 0); stamp(A, 1, True)
    A("s_load_dwordx2 s[4:5], s[0:1], %d" % KA["x"])
    A("s_load_dwordx2 s[6:7], s[0:1], %d" % KA["ws"])
    tab_srd(A, 20, "k1")
    A("s_and_b32 s24, s2, 7"); A("s_bfe_u32 s25, s2, 0x10003"); A("s_lshr_b32 s26, s2, 4")
    A("s_lshl_b32 s27, s26, 3"); A("s_add_u32 s27, s27, s24")
    A("v_and_b32 v1, 63, v0"); A("v_lshrrev_b32 v2, 6, v0")
    A("v_lshlrev_b32 v3, 4, v1")
    A("s_lshl_b32 s28, s25, 21"); A("s_lshl_b32 s29, s27, 11"); A("s_add_u32 s28, s28, s29")
    A("v_lshl_add_u32 v4, v2, 19, v3")
    A("s_add_u32 s29, s28, 0x40000")
    A("s_waitcnt lgkmcnt(0)")
    srd(A, 8, 4, 0, 4 << 20); srd(A, 12, 6, WS_XN, SZ_XN); srd(A, 16, 6, WS_Y, SZ_Y)
    X = 8
    A("buffer_load_dwordx4 v[8:11], v4, s[8:11], s28 offen")
    A("buffer_load_dwordx4 v[12:15], v4, s[8:11], s28 offen offset:1024")
    A("buffer_load_dwordx4 v[16:19], v4, s[8:11], s29 offen")
    A("buffer_load_dwordx4 v[20:23], v4, s[8:11], s29 offen offset:1024")
    F1 = 64; TW = 72; F2 = 88; F2S = 120
    names = [("f1re", F1), ("f1im", F1 + 4)]
    for bh in range(2):
        for t in range(2): names.append(("tw%d%d" % (bh, t), TW + 8 * bh + 4 * t))
    for dh in range(2):
        for part in range(2):
            for bh in range(2): names.append(("f2_%d%d%d" % (dh, part, bh), F2 + 16 * dh + 8 * part + 4 * bh))
    for part in range(2):
        for bh in range(2): names.append(("f2s_%d%d" % (part, bh), F2S + 8 * part + 4 * bh))
    for nm, r in names: tab_load(A, vr(r, 4), nm, 3, 20, 30)
    NT = len(names)
    A("s_mov_b32 s31, 0xffff0000")
    A("v_and_b32 v5, 15, v1"); A("v_lshrrev_b32 v6, 4, v1")
    A("v_cmp_eq_u32 vcc, 0, v5")
    A("v_mov_b32 v7, 0xffff")
    MG, MP, MQ = 136, 137, 138
    A("v_cndmask_b32 v%d, -1, 0, vcc" % MG)
    A("v_cndmask_b32 v%d, 0, v7, vcc" % MP)
    A("v_lshlrev_b32 v%d, 16, v%d" % (MQ, MP))
    YB0, YB1 = 139, 140
    A("v_lshl_add_u32 v%d, v6, 7, v5" % YB0); A("v_lshlrev_b32 v%d, 5, v%d" % (YB0, YB0))
    A("v_lshl_add_u32 v%d, v2, 3, v%d" % (YB0, YB0))
    A("v_sub_u32 v7, 32, v5"); A("v_cndmask_b32 v7, v7, 16, vcc")
    A("v_lshlrev_b32 v%d, 7, v6" % YB1); A("v_sub_u32 v%d, 384, v%d" % (YB1, YB1)); A("v_add_u32 v%d, v%d, v7" % (YB1, YB1))
    A("v_lshlrev_b32 v%d, 5, v%d" % (YB1, YB1)); A("v_lshl_add_u32 v%d, v2, 3, v%d" % (YB1, YB1))
    XW = 141
    A("v_mul_u32_u24 v%d, %d, v2" % (XW, 2 * RS)); A("v_add_u32 v%d, v%d, v3" % (XW, XW))
    TR = 142
    A("v_lshrrev_b32 v7, 2, v1"); A("v_lshlrev_b32 v7, 6, v7"); A("v_and_b32 v%d, 3, v1" % TR)
    A("v_lshl_add_u32 v7, v%d, 3, v7" % TR); A("v_mul_u32_u24 v%d, %d, v2" % (TR, 2 * RS)); A("v_add_u32 v%d, v%d, v7" % (TR, TR))
    XR = 143
    A("v_and_b32 v7, 7, v1"); A("v_mul_u32_u24 v%d, %d, v7" % (XR, RS))
    A("v_bfe_u32 v7, v1, 3, 2"); A("v_lshl_add_u32 v%d, v7, 3, v%d" % (XR, XR))
    A("v_lshrrev_b32 v7, 5, v0"); A("v_lshl_add_u32 v%d, v7, 6, v%d" % (XR, XR))
    XG = 144
    A("v_lshrrev_b32 v7, 5, v0"); A("v_lshlrev_b32 v%d, 14, v7" % XG)
    A("v_bfe_u32 v7, v1, 3, 2"); A("v_lshl_add_u32 v%d, v7, 8, v%d" % (XG, XG))
    A("v_and_b32 v7, 7, v1"); A("v_lshl_add_u32 v%d, v7, 4, v%d" % (XG, XG))
    A("s_lshr_b32 s32, s27, 4"); A("s_lshl_b32 s32, s32, 19"); A("s_and_b32 s33, s27, 15"); A("s_lshl_b32 s33, s33, 10")
    A("s_add_u32 s32, s32, s33"); A("s_lshl_b32 s33, s25, 7"); A("s_add_u32 s32, s32, s33")
    YG = 145; YR = 146
    A("v_lshrrev_b32 v7, 1, v0"); A("v_lshlrev_b32 v%d, 13, v7" % YG); A("v_and_b32 v7, 1, v0"); A("v_lshl_add_u32 v%d, v7, 4, v%d" % (YG, YG))
    A("s_lshl_b32 s34, s24, 10"); A("s_lshl_b32 s35, s26, 6"); A("s_add_u32 s34, s34, s35"); A("s_lshl_b32 s35, s25, 5"); A("s_add_u32 s34, s34, s35")
    A("v_lshlrev_b32 v%d, 4, v0" % YR)
    stamp(A, 2)
    A("s_waitcnt vmcnt(%d)" % NT)
    stamp(A, 3)
    U = 24
    for row in range(2):
        for i in range(8):
            A("v_lshlrev_b32 v%d, 16, v%d" % (U + 16 * row + 2 * i, X + 8 * row + i))
            A("v_and_b32 v%d, s31, v%d" % (U + 16 * row + 2 * i + 1, X + 8 * row + i))
    S = [56, 57]; T = [58, 59]
    for row in range(2):
        b = U + 16 * row
        for i in range(8): A("v_add_f32 v%d, v%d, v%d" % (X + 8 * row + i, b + 2 * i, b + 2 * i + 1))
    for wdt in (4, 2, 1):
        for row in range(2):
            for i in range(wdt):
                d = S[row] if wdt == 1 else X + 8 * row + i
                A("v_add_f32 v%d, v%d, v%d" % (d, X + 8 * row + i, X + 8 * row + i + wdt))
    allreduce_add(A, S, T)
    A("s_mov_b32 s36, 0x%x" % f32(1.0 / 1024))
    for row in range(2): A("v_mul_f32 v%d, s36, v%d" % (S[row], S[row]))
    Q = [60, 61]
    for row in range(2):
        b = U + 16 * row
        for i in range(8):
            A("v_sub_f32 v%d, v%d, v%d" % (X + 8 * row + i, b + 2 * i, S[row]))
            A("v_mul_f32 v%d, v%d, v%d" % (X + 8 * row + i, X + 8 * row + i, X + 8 * row + i))
            A("v_sub_f32 v7, v%d, v%d" % (b + 2 * i + 1, S[row]))
            A("v_fmac_f32 v%d, v7, v7" % (X + 8 * row + i))
    for wdt in (4, 2, 1):
        for row in range(2):
            for i in range(wdt):
                d = Q[row] if wdt == 1 else X + 8 * row + i
                A("v_add_f32 v%d, v%d, v%d" % (d, X + 8 * row + i, X + 8 * row + i + wdt))
    allreduce_add(A, Q, T)
    for row in range(2): A("v_mul_f32 v%d, s36, v%d" % (Q[row], Q[row]))
    for row in range(2): A("v_cvt_pk_bf16_f32 v%d, v%d, v%d" % (T[row], S[row], Q[row]))
    for row in range(2):
        A("v_lshlrev_b32 v%d, 16, v%d" % (S[row], T[row])); A("v_and_b32 v%d, s31, v%d" % (Q[row], T[row]))
    for row in range(2): A("v_add_f32 v%d, 0x%x, v%d" % (Q[row], f32(1e-5), Q[row]))
    A("v_cvt_pk_bf16_f32 v%d, v%d, v%d" % (T[0], Q[0], Q[1]))
    A("v_lshlrev_b32 v%d, 16, v%d" % (Q[0], T[0])); A("v_and_b32 v%d, s31, v%d" % (Q[1], T[0]))
    for row in range(2): A("v_sqrt_f32 v%d, v%d" % (Q[row], Q[row]))
    A("v_cvt_pk_bf16_f32 v%d, v%d, v%d" % (T[0], Q[0], Q[1]))
    A("v_lshlrev_b32 v%d, 16, v%d" % (Q[0], T[0])); A("v_and_b32 v%d, s31, v%d" % (Q[1], T[0]))
    for row in range(2): A("v_rcp_f32 v%d, v%d" % (Q[row], Q[row]))
    for row in range(2):
        b = U + 16 * row
        for i in range(16): A("v_sub_f32 v%d, v%d, v%d" % (b + i, b + i, S[row]))
        for i in range(8): A("v_cvt_pk_bf16_f32 v%d, v%d, v%d" % (X + 8 * row + i, b + 2 * i, b + 2 * i + 1))
        for i in range(8):
            A("v_lshlrev_b32 v%d, 16, v%d" % (b + 2 * i, X + 8 * row + i)); A("v_and_b32 v%d, s31, v%d" % (b + 2 * i + 1, X + 8 * row + i))
        for i in range(16): A("v_mul_f32 v%d, v%d, v%d" % (b + i, b + i, Q[row]))
        for i in range(8): A("v_cvt_pk_bf16_f32 v%d, v%d, v%d" % (X + 8 * row + i, b + 2 * i, b + 2 * i + 1))
        A("ds_write_b128 v%d, v[%d:%d] offset:%d" % (XW, X + 8 * row, X + 8 * row + 3, row * RS))
        A("ds_write_b128 v%d, v[%d:%d] offset:%d" % (XW, X + 8 * row + 4, X + 8 * row + 7, row * RS + 1024))
    A("s_waitcnt lgkmcnt(0)")
    for row in range(2):
        for bh in range(2):
            for hh in range(2):
                r = X + 8 * row + 4 * bh + 2 * hh
                A("ds_read_b64_tr_b16 v[%d:%d], v%d offset:%d" % (r, r + 1, TR, row * RS + hh * 1024 + bh * 32))
    A("s_barrier")
    XO = 148
    for it in range(4):
        A("ds_read_b64 v[%d:%d], v%d offset:%d" % (XO + 4 * it, XO + 4 * it + 1, XR, it * 512))
        A("ds_read_b64 v[%d:%d], v%d offset:%d" % (XO + 4 * it + 2, XO + 4 * it + 3, XR, it * 512 + 32))
    stamp(A, 4)
    A("s_waitcnt vmcnt(0) lgkmcnt(8)")
    stamp(A, 5)
    for row in range(2):
        for bh in range(2):
            for part in range(2):
                d = U + 16 * row + 8 * bh + 4 * part
                A("%s v[%d:%d], v[%d:%d], v[%d:%d], 0" % (MF, d, d + 3, X + 8 * row + 4 * bh, X + 8 * row + 4 * bh + 3, F1 + 4 * part, F1 + 4 * part + 3))
    A("s_waitcnt lgkmcnt(0)")
    for it in range(4):
        A("s_add_u32 s33, s32, 0x%x" % (it * 8 * 16384))
        A("buffer_store_dwordx4 v[%d:%d], v%d, s[12:15], s33 offen" % (XO + 4 * it, XO + 4 * it + 3, XG))
    PP, PQ = 164, 180
    for row in range(2):
        for bh in range(2):
            for r in range(4):
                re = U + 16 * row + 8 * bh + r; im = re + 4
                tc = TW + 8 * bh + r; ts = tc + 4
                A("v_mul_f32 v56, v%d, v%d" % (re, tc)); A("v_mul_f32 v57, v%d, v%d" % (im, tc))
                A("v_fmac_f32 v56, v%d, v%d" % (im, ts)); A("v_fma_f32 v57, -v%d, v%d, v57" % (re, ts))
                o = 8 * row + 4 * bh + r
                A("v_cvt_pk_bf16_f32 v58, v56, v57")
                A("v_and_b32 v%d, v58, v%d" % (X + o, MG)); A("v_and_b32 v%d, v58, v%d" % (PP + o, MP)); A("v_and_b32 v%d, v58, v%d" % (PQ + o, MQ))
    for row in range(2):
        for bh in range(2):
            for dh in range(2):
                for part in range(2):
                    d = U + 16 * row + 8 * dh + 4 * part
                    a = F2 + 16 * dh + 8 * part + 4 * bh; b = X + 8 * row + 4 * bh
                    A("%s v[%d:%d], v[%d:%d], v[%d:%d], %s" % (MF, d, d + 3, a, a + 3, b, b + 3, "0" if bh == 0 else "v[%d:%d]" % (d, d + 3)))
        for bh in range(2):
            for dh in range(2):
                for part in range(2):
                    d = U + 16 * row + 8 * dh + 4 * part
                    a = F2S + 8 * part + 4 * bh; b = (PP if dh == 0 else PQ) + 8 * row + 4 * bh
                    A("%s v[%d:%d], v[%d:%d], v[%d:%d], v[%d:%d]" % (MF, d, d + 3, a, a + 3, b, b + 3, d, d + 3))
    YP = 64
    for row in range(2):
        for dh in range(2):
            for r in range(4):
                re = U + 16 * row + 8 * dh + r
                A("v_cvt_pk_bf16_f32 v%d, v%d, v%d" % (YP + 8 * dh + 2 * r + row, re, re + 4))
    for dh in range(2):
        for r in range(4):
            p = YP + 8 * dh + 2 * r
            A("ds_write_b64 v%d, v[%d:%d] offset:%d" % (YB0 if dh == 0 else YB1, p, p + 1, YT + (r if dh == 0 else 3 - r) * 1024))
    A("s_waitcnt lgkmcnt(0)"); A("s_barrier")
    for it in range(4): A("ds_read_b128 v[%d:%d], v%d offset:%d" % (8 + 4 * it, 11 + 4 * it, YR, YT + it * 4096))
    for it in range(4):
        A("s_add_u32 s35, s34, 0x%x" % (it * 128 * 8192))
        A("s_waitcnt lgkmcnt(%d)" % (3 - it))
        if it == 0:
            A("v_cmp_gt_u32 vcc, 2, v0"); A("v_mov_b32 v7, 0xffff"); A("v_cndmask_b32 v7, -1, v7, vcc")
            for i in range(4): A("v_lshrrev_b32 v%d, 16, v%d" % (24 + i, 8 + i))
            for i in range(4): A("v_and_b32 v%d, v7, v%d" % (8 + i, 8 + i))
        A("buffer_store_dwordx4 v[%d:%d], v%d, s[16:19], s35 offen" % (8 + 4 * it, 11 + 4 * it, YG))
    A("s_add_u32 s35, s34, 0x%x" % (512 * 8192))
    A("s_and_saveexec_b64 s[38:39], vcc"); A("s_cbranch_execz k1_n512")
    A("buffer_store_dwordx4 v[24:27], v%d, s[16:19], s35 offen" % YG)
    A.label("k1_n512")
    A("s_mov_b64 exec, s[38:39]")
    stamp(A, 6)
    if STAMP: A("s_waitcnt vmcnt(0)")
    stamp(A, 7); stamp(A, 8, True)
    stamp_out(A, 0, 9, 6, "k1")
    A("s_endpgm")
    A.label("k1_help")
    gen_k1_help(A)
    A.label("k1_done"); A("s_endpgm")
    A.fix()
    return A.text() + kernel_desc("k1_kernel", 200, 200, 48)

from gen_k2 import gen_k2, K2_LDS
from gen_k3 import gen_k3, K3_LDS

def main():
    build_tables(); build_tables_inv()
    stub = open("cdna_kernels/%s.s.ref" % NAME).read().split("\n")
    head = [l for l in stub if l.startswith(";") and "@launch" not in l and "Override" not in l and "grid=ceil" not in l]
    o = "\n".join(head[:12]) + "\n"
    o += "; @launch kernel=k1_kernel grid=(512,1,1) block=(256,1,1) lds=%d\n" % K1_LDS
    o += "; @launch kernel=k2_kernel grid=(256,1,1) block=(256,1,1) lds=%d\n" % K2_LDS
    o += "; @launch kernel=k3_kernel grid=(256,1,1) block=(256,1,1) lds=%d\n" % K3_LDS
    o += '.amdgcn_target "amdgcn-amd-amdhsa--gfx950"\n'
    import gen as G
    o += gen_k1() + gen_k2(sys.modules[__name__]) + gen_k3(sys.modules[__name__])
    o += '.section .rodata,"a"\n.p2align 8\n.type gf_tab,@object\ngf_tab:\n'
    for b in TAB.blocks:
        for i in range(0, 256, 8): o += ".long " + ",".join("0x%x" % x for x in b[i:i + 8]) + "\n"
    o += ".size gf_tab, %d\n" % (len(TAB.blocks) * 1024)
    path = sys.argv[1] if len(sys.argv) > 1 else "cdna_kernels/%s.s" % NAME
    open(path, "w").write(o)
    print("wrote", path, len(o), "bytes")

if __name__ == "__main__":
    main()
```

```python
from asmlib import *
import math, os
import gen as G
from gen import stamp, f32
ENV = os.environ.get
MF = "v_mfma_f32_16x16x32_bf16"
MF32 = "v_mfma_f32_32x32x16_bf16"
def q(f, r): return "%s[%d:%d]" % (f, r, r + 3)
def p2(r): return "v[%d:%d]" % (r, r + 1)

ZL = 128 * 1024
I1, I1S, I2 = 160, 192, 208
DV = [5, 6, 14, 15]
def g2_setup(A, M, DV=DV, t0=7, t1=13):
    W = M.WAVE
    A("s_bfe_u32 s44, s2, 0x20001"); A("s_and_b32 s42, s2, 1"); A("s_lshl_b32 s42, s42, 2"); A("s_bfe_u32 s43, s2, 0x20003"); A("s_add_u32 s42, s42, s43")
    A("s_lshr_b32 s43, s2, 5")
    d0, d1, d2, d3 = DV
    A("v_lshrrev_b32 v%d, 4, v1" % t0); A("v_lshlrev_b32 v%d, 11, v%d" % (t1, t0))
    A("v_lshlrev_b32 v%d, 1, v%d" % (t0, t0)); A("v_and_b32 v%d, 15, v1" % d0); A("v_xor_b32 v%d, v%d, v%d" % (t0, t0, d0))
    A("v_lshl_add_u32 v%d, v%d, 4, v%d" % (d0, t0, t1)); A("v_xor_b32 v%d, 0x80, v%d" % (d1, d0))
    A("v_add_u32 v%d, 0x%x, v%d" % (d2, 2 * 7168, d0)); A("v_add_u32 v%d, 0x%x, v%d" % (d3, 3 * 7168, d1)); A("v_add_u32 v%d, 0x%x, v%d" % (d1, 7168, d1))
    M.srd(A, 48, M.PWD, 0, 3584 * 2048)
    A("s_mul_i32 s45, s44, %d" % (896 * 2048)); A("s_lshl_b32 s61, s43, 8"); A("s_add_u32 s61, s61, s45")
    A("s_add_u32 s62, s61, %d" % (896 * 2048))
    A("s_lshl_b32 s45, s%d, 17" % W); A("s_add_u32 s61, s61, s45")
    A("s_lshl_b32 s64, s%d, 13" % W)
def g2_dma(par, p, DV=DV):
    o = []
    if p % 4 == 0: o.append("s_add_u32 m0, s64, 0x%x" % (par * 32768 + (p >> 2) * 4096))
    o.append("buffer_load_dwordx4 v%d, s[48:51], s61 offen%s lds" % (DV[p & 3], " offset:%d" % ((p & 3) * 1024) if p & 3 else ""))
    if p == 3: o.append("s_add_u32 s61, s61, 0x8000")
    if p == 7:
        o.append("s_add_u32 s61, s61, 0x%x" % (256 * 2048 - 0x8000))
        o += ["s_cmp_ge_u32 s61, s62", "s_cselect_b32 s65, %d, 0" % ((896 - 32) * 2048), "s_cselect_b32 s62, -1, s62", "s_sub_u32 s61, s61, s65"]
        if par == 1: o.append("s_xor_b32 s64, s64, 0x10000")
    return o
def g2_dma_of(s):
    u = (s + 2) & 7; par = u >> 2; p = 2 * (u & 3)
    return g2_dma(par, p), g2_dma(par, p + 1)
def z_fetch(A, M, t0=7, t1=13, zs=56):
    W = M.WAVE
    M.srd(A, zs, M.PWS, M.WS_Z, M.SZ_Z)
    A("v_lshrrev_b32 v%d, 4, v1" % t0); A("v_and_b32 v%d, 7, v1" % t1); A("v_xor_b32 v%d, v%d, v%d" % (t0, t0, t1)); A("v_lshlrev_b32 v%d, 4, v%d" % (t0, t0))
    A("v_lshrrev_b32 v%d, 3, v1" % t1); A("v_lshl_add_u32 v%d, v%d, 8, v%d" % (t0, t1, t0)); A("v_xor_b32 v%d, 64, v%d" % (t1, t0))
    A("s_lshr_b32 s40, s2, 1"); A("s_lshl_b32 s40, s40, 15"); A("s_and_b32 s41, s2, 1"); A("s_lshl_b32 s41, s41, 7"); A("s_add_u32 s40, s40, s41")
    A("s_lshl_b32 s41, s%d, 13" % W); A("s_add_u32 s40, s40, s41")
    A("s_lshl_b32 s41, s%d, 12" % W); A("s_add_u32 m0, s41, 0x%x" % ZL)
    for p in range(4):
        A("buffer_load_dwordx4 v%d, s[%d:%d], s40 offen%s sc1 lds" % (t0 if p % 2 == 0 else t1, zs, zs + 3, " offset:%d" % (p * 1024) if p else ""))
        A("s_add_u32 s40, s40, 1024")
def i_tabs(A, M): M.tab_dma(A, "i1_000", 96 * 1024, 112 * 1024)
def io_addr(A, M, va, vt):
    A("v_lshrrev_b32 v%d, 2, v1" % va); A("v_lshlrev_b32 v%d, 18, v%d" % (va, va)); A("v_lshl_add_u32 v%d, v2, 13, v%d" % (va, va))
    A("v_and_b32 v%d, 3, v1" % vt); A("v_lshl_add_u32 v%d, v%d, 4, v%d" % (va, vt, va))
    A("s_and_b32 s8, s2, 1"); A("s_lshl_b32 s8, s8, 17"); A("s_bfe_u32 s9, s2, 0x20003"); A("s_lshl_b32 s9, s9, 15"); A("s_add_u32 s8, s8, s9")
    A("s_lshr_b32 s9, s2, 5"); A("s_lshl_b32 s9, s9, 8"); A("s_add_u32 s8, s8, s9"); A("s_bfe_u32 s9, s2, 0x20001"); A("s_lshl_b32 s9, s9, 6"); A("s_add_u32 s8, s8, s9")
    A("s_add_u32 s9, s8, 0x1000")
def x_fetch(A, M, va, vt, sd):
    io_addr(A, M, va, vt); M.srd(A, sd, M.PX, 0, 4 << 20)
    for i in range(4): A("buffer_load_dwordx4 %s, v%d, s[%d:%d], s%d offen offset:%d" % (q("a", 240 + 4 * i), va, sd, sd + 3, 8 + (i >> 1), (i & 1) * 2048))
def g2_early(A):
    for s in range(-10, 0):
        d0, d1 = g2_dma_of(s)
        for y in d0 + d1: A(y)
HB = [192, 196, 208, 212, 224, 228, 240, 244]

def gemm1(A, M):
    W = M.WAVE; VWD = M.VWD
    def dma(b): return (M.dmaW(b, 4) + M.dmaX(b)) if ENV('WFIRST', '0') == '1' else (M.dmaX(b) + M.dmaW(b, 4))
    def acc(it, jt):
        return ("v", 32 + (jt * 8 + it) * 4) if jt < 7 else ("a", 128 + it * 4)
    def reads(buf, st):
        base = 64 * st; hi = buf >> 1; off = (buf & 1) * 32768
        o = []; la = []; lb = []
        for it in range(8):
            mat, t = it >> 2, it & 3
            for h in range(2):
                r = base + 4 * it + 2 * h
                la.append("ds_read_b64_tr_b16 a[%d:%d], v%d offset:%d" % (r, r + 1, (12 if hi else 8) + t, off + h * 8192 + mat * 2048))
        for jt in range(8):
            r = base + 32 + 4 * jt
            lb.append("ds_read_b128 a[%d:%d], v%d offset:%d" % (r, r + 3, 6 if hi else 5, off + jt * 1024))
        for i in range(8): o += [lb[i], la[2 * i], la[2 * i + 1]]
        return o
    def mfmas(st, first=False):
        base = 64 * st; o = []
        for jt in range(8):
            for it in range(8):
                f, d = acc(it, jt); dd = q(f, d)
                o.append("%s %s, %s, %s, %s" % (MF, dd, q("a", base + 4 * it), q("a", base + 32 + 4 * jt), "0" if first else dd))
        return o
    def step(i, dmas, do_read, vm, first=False, rd0=1, mid=None, extra=None):
        m = mfmas(i & 1, first)
        s1 = interleave(m, reads((i + 1) & 3, (i + 1) & 1), rd0, 56 if rd0 > 1 else 52) if do_read else [[] for _ in m]
        dl = []
        for b_ in dmas: dl += dma(b_)
        if extra: dl += extra
        s2 = interleave(m, dl, rd0 if mid is not None else 0, 64) if dl else [[] for _ in m]
        for k, x in enumerate(m):
            A(x)
            if mid is not None and k == rd0 - 1:
                nv = sum(1 for kk in range(k + 1) for y in s2[kk] if y.startswith("buffer"))
                for y in s2[k]: A(y)
                A("s_waitcnt vmcnt(%d)" % (mid + nv)); A("s_barrier")
                continue
            for y in s2[k] + s1[k]: A(y)
        if vm is not None:
            A("s_waitcnt vmcnt(%d) lgkmcnt(0)" % vm); A("s_barrier")
    for x in reads(0, 0): A(x)
    A("s_waitcnt lgkmcnt(0)")
    stamp(A, 6)
    ls = M.late_stores()
    if ENV("NOLS"): A("s_mov_b32 s34, 0")
    wt = [] if ENV("NOWT") else [M.w_touch()]
    if True:
        step(0, [3], True, 14, first=True, rd0=8, mid=6, extra=ls)
        if ENV("G1IT"): stamp(A, 2)
        step(1, [0, 1], True, 16)
        M.set_flag_w0(A, "f2y", 63, 29, 30)
        if ENV("G1IT"): stamp(A, 3)
        step(2, [2], True, 16)
        M.srd(A, 32, M.PWD, 0, 3584 * 2048)
        A("s_sub_u32 s10, s2, 32"); A("s_lshl_b32 s10, s10, 15")
        if ENV("NOWDT"): A("s_mov_b32 s34, 0")
        A("v_mul_u32_u24 v20, 1280, v2"); A("v_lshl_add_u32 v20, v1, 7, v20"); A("v_cmp_lt_u32 vcc, 9, v1"); A("v_cndmask_b32 v20, v20, 2.0, vcc")
        wt = wt + [["buffer_load_dword v18, v20, s[32:35], s10 offen", "s_add_u32 s10, s10, 5120"]]
        io_addr(A, M, 21, 22); M.srd(A, 12, M.PX, 0, 4 << 20)
        A("s_lshl_b32 s11, s%d, 12" % W); A("s_add_u32 s11, s11, 0x%x" % ZL); A("s_mov_b32 s63, s8"); A("s_add_u32 s44, s8, 0x2000")
        wt = wt + [["s_cmp_ge_u32 s63, s44", "s_cselect_b32 s14, 0, s14", "s_cselect_b32 s11, 0x%x, s11" % M.LDS_T2, "s_mov_b32 m0, s11", "s_add_u32 s11, s11, 1024",
                    "buffer_load_dwordx4 v21, s[12:15], s63 offen lds", "s_add_u32 s63, s63, 2048"]]
        step(3, [3], True, 16 + len(wt), extra=wt)
    if ENV("G1IT"): stamp(A, 4)
    A("s_mov_b32 s45, 6")
    A.raw(".p2align 6")
    A.label("g1_loop")
    for i in range(4): step(i, [i], True, 16 + (len(wt) if i != 2 else 0), extra=wt if i == 3 else None)
    if not ENV("NOCPF"):
        A("s_cmp_lg_u32 s45, 2"); A("s_cbranch_scc1 g1_npf")
        if ENV("WDL2"):
            A("s_lshr_b32 s40, s2, 3"); A("s_sub_u32 s40, s40, 4"); A("s_and_b32 s41, s40, 1"); A("s_lshr_b32 s40, s40, 1")
            A("s_bfe_u32 s44, s2, 0x20001"); A("s_mul_i32 s44, s44, 14"); A("s_add_u32 s40, s40, s44"); A("s_lshl_b32 s40, s40, 2"); A("s_add_u32 s40, s40, s41")
            A("s_add_u32 s40, s40, 2"); A("s_lshl_b32 s40, s40, 15")
            A("v_lshlrev_b32 v21, 7, v0"); A("buffer_load_dword v23, v21, s[32:35], s40 offen")
        M.code_srd(A, 4, "g1_npf"); A("s_bfe_u32 s40, s2, 0x20003"); A("s_lshl_b32 s40, s40, 13")
        A("v_lshlrev_b32 v23, 7, v1"); A("v_lshl_add_u32 v23, v2, 11, v23"); A("v_lshrrev_b32 v22, 4, v1"); A("v_lshl_add_u32 v23, v22, 24, v23")
        A("buffer_load_dword v19, v23, s[4:7], s40 offen")
    A.label("g1_npf")
    A("s_sub_u32 s45, s45, 1"); A("s_cmp_lg_u32 s45, 0"); A("s_cbranch_scc1 g1_loop")
    if ENV("G1IT"): stamp(A, 5)
    M.srd(A, 36, M.PWS, M.WS_H, M.SZ_H)
    A("s_bfe_u32 s40, s2, 0x20001"); A("s_lshl_b32 s41, s42, 2"); A("s_add_u32 s41, s41, s40")
    A("s_mul_i32 s40, s40, 7"); A("s_sub_u32 s40, s43, s40")
    A("s_lshl_b32 s55, s41, 3"); A("s_add_u32 s55, s55, s40"); A("s_lshl_b32 s55, s55, 7"); A("s_add_u32 s55, s55, %d" % M.FB)
    A("s_lshl_b32 s40, s40, 1"); A("s_add_u32 s40, s40, s46")
    A("s_mul_i32 s52, s41, 28"); A("s_add_u32 s52, s52, s40"); A("s_lshl_b32 s52, s52, 14"); A("s_lshl_b32 s53, s47, 13"); A("s_add_u32 s52, s52, s53")
    A("s_lshl_b32 s54, s41, 1"); A("s_add_u32 s54, s54, s47"); A("s_lshl_b32 s54, s54, 4"); A("s_add_u32 s54, s54, s40")
    A("s_lshl_b32 s54, s54, 7"); A("s_add_u32 s54, s54, %d" % M.FH)
    A("s_mov_b32 s46, %d" % M.F3)
    DT = [24, 25, 26, 27]
    def grp(B):
        o = [[]]
        for k, t in B.items:
            o[-1].append(t)
            if t.startswith("buffer"): o.append([])
        return [x for x in o if x]
    nv = lambda l: sum(1 for x in l for y in x if y.startswith("buffer"))
    B = Asm(); g2_setup(B, M, DT, 22, 23); su = [[t] for k, t in B.items]
    B = Asm(); i_tabs(B, M); tb = grp(B)
    fl = [["s_bfm_b64 exec, 32, 0", "buffer_load_dword v4, v28, s[%d:%d], s46 offen sc1" % (M.SFL, M.SFL + 3), "s_mov_b64 exec, -1"]]
    e0 = su + [g2_dma(0, p, DT) for p in range(8)]
    xr = [["v_lshl_add_u32 v21, v2, 12, v3", "v_add_u32 v21, 0x%x, v21" % ZL] + ["ds_read_b128 %s, v21 offset:%d" % (q("a", 240 + 4 * i), i * 1024) for i in range(4)]]
    e1 = xr + [g2_dma(1, p, DT) for p in range(8)]
    e2 = [g2_dma(0, p, DT) for p in range(4)]
    step(0, [], True, 8 + nv(e0), extra=e0); step(1, [], True, nv(e0) + nv(e1), extra=e1); step(2, [], True, 63, extra=e2)
    if ENV("G1IT"): stamp(A, 8); stamp(A, 9)
    e3 = [["v_mov_b32 v%d, v%d" % (DV[i], DT[i])] for i in range(4)] + tb + [["v_mov_b32 v7, v28"]]
    step(3, [], False, None, extra=e3)
    stamp(A, 7)
    c0 = math.sqrt(2 / math.pi)
    c1 = -2 * c0 * math.log2(math.e); c2 = c1 * 0.044715
    A("s_mov_b32 s56, 0x%x" % f32(c2)); A("s_mov_b32 s57, s56")
    A("v_mov_b32 v8, 0x%x" % f32(c1)); A("v_mov_b32 v9, v8"); A("v_mov_b32 v10, 1.0"); A("v_mov_b32 v11, 1.0"); A("v_mov_b32 v12, 0")
    n = 0
    for p in range(2):
        for jt in range(8):
            b0 = 32 + (jt % 7) * 32
            g = b0 + 8 * p; u = b0 + 16 + 8 * p
            if jt == 7:
                for i in range(8):
                    A("v_accvgpr_read_b32 v%d, a%d" % (g + i, 128 + 8 * p + i)); A("v_accvgpr_read_b32 v%d, a%d" % (u + i, 144 + 8 * p + i))
            T = 16 + 8 * (n % 2); n += 1
            H4 = range(0, 8, 2)
            for e in H4: A("v_pk_mul_f32 %s, %s, %s" % (p2(T + e), p2(g + e), p2(g + e)))
            for e in H4: A("v_pk_fma_f32 %s, %s, s[56:57], v[8:9]" % (p2(T + e), p2(T + e)))
            for e in H4: A("v_pk_mul_f32 %s, %s, %s" % (p2(T + e), p2(T + e), p2(g + e)))
            for e in range(8): A("v_exp_f32 v%d, v%d" % (T + e, T + e))
            for e in H4: A("v_pk_mul_f32 %s, %s, %s" % (p2(u + e), p2(u + e), p2(g + e)))
            for e in H4: A("v_pk_add_f32 %s, %s, v[10:11]" % (p2(T + e), p2(T + e)))
            for e in range(8): A("v_rcp_f32 v%d, v%d" % (T + e, T + e))
            A("s_add_u32 s53, s52, 0x%x" % (p * 14 * 16384 + (jt >> 2) * 4096))
            for e in H4: A("v_pk_mul_f32 %s, %s, %s" % (p2(u + e), p2(u + e), p2(T + e)))
            dst = g
            for e in range(4): A("v_cvt_pk_bf16_f32 v%d, v%d, v%d" % (dst + e, u + 2 * e, u + 2 * e + 1))
            A("buffer_store_dwordx4 %s, v3, s[36:39], s53 offen offset:%d%s" % (q("v", g), (jt & 3) * 1024, " sc1"))
            if p == 0 and jt == 5:
                for y in fl[0]: A(y.replace("v28", "v7"))
            if p == 1 and jt == 1:
                if ENV("EIT"): stamp(A, 2)
                A("s_waitcnt vmcnt(4)")
                A("v_cmp_ne_u32 vcc, s%d, v4" % M.TOK); A("s_nop 1"); A("s_mov_b32 vcc_hi, 0"); A("s_nop 3")
                A("s_cbranch_vccz pd_f3g")
                M.poll(A, "f3g", 46, 7, 4, 32, sleep=4)
                if ENV("EIT"): stamp(A, 3)
                z_fetch(A, M, zs=32)
            if p == 1 and jt == int(ENV("FLAGA", "3")):
                A("s_waitcnt vmcnt(%d)" % (jt + 1 + 4))
                M.set_flag(A, 54, 12, 4)
                if ENV("EIT"): stamp(A, 4)
    if ENV("EIT"): stamp(A, 5)
    A("s_waitcnt vmcnt(7)")
    A("s_mov_b32 s58, 1")

def gemm2(A, M):
    W = M.WAVE
    if not ENV("G1IT"): stamp(A, 8)
    io_addr(A, M, 28, 29)
    XR, SR = 176, 192
    def io(i): return "s%d offen offset:%d" % (8 + (i >> 1), (i & 1) * 2048)
    for i in range(16): A("v_accvgpr_read_b32 v%d, a%d" % (XR + i, 240 + i))
    A("s_barrier")
    ZD, D1, DS, PK, ITW, TT = 32, 48, 80, 112, 128, 144
    A("v_lshrrev_b32 v20, 1, v1"); A("v_and_b32 v20, 7, v20"); A("v_lshlrev_b32 v21, 1, v2"); A("v_xor_b32 v20, v20, v21"); A("v_lshlrev_b32 v20, 4, v20")
    A("v_lshl_add_u32 v20, v1, 7, v20"); A("v_add_u32 v20, 0x%x, v20" % ZL); A("v_xor_b32 v21, 16, v20")
    for k in range(2):
        for dh in range(2): A("ds_read_b128 %s, v%d offset:%d" % (q("v", ZD + 8 * k + 4 * dh), 20 + k, dh * 8192))
    A("v_add_u32 v23, 0x%x, v3" % (96 * 1024))
    for dh in range(2):
        for bh in range(2):
            for part in range(2): M.tab_read(A, q("a", I1 + 16 * bh + 8 * part + 4 * dh), "i1_%d%d%d" % (bh, part, dh), "i1_000", 23, 16384)
    for bh in range(2):
        for part in range(2): M.tab_read(A, q("a", I1S + 8 * bh + 4 * part), "i1s_%d%d" % (bh, part), "i1_000", 23, 16384)
    for bh in range(2):
        for part in range(2): M.tab_read(A, q("v", ITW + 8 * bh + 4 * part), "itw%d%d" % (bh, part), "i1_000", 23, 16384)
    for ah in range(2): M.tab_read(A, q("a", I2 + 4 * ah), "i2_%d" % ah, "i1_000", 23, 16384)
    A("v_and_b32 v22, 15, v1"); A("v_lshlrev_b32 v22, 10, v22"); A("v_lshrrev_b32 v23, 4, v1"); A("v_lshl_add_u32 v22, v23, 4, v22")
    A("s_and_b32 s40, s2, 1"); A("s_lshl_b32 s40, s40, 9"); A("s_lshl_b32 s41, s%d, 7" % W); A("s_add_u32 s40, s40, s41")
    A("s_lshr_b32 s41, s2, 1"); A("s_lshl_b32 s41, s41, 15"); A("s_add_u32 s40, s40, s41"); A("s_add_u32 s41, s40, 0x4000")
    A("s_mov_b32 s69, s58")
    M.srd(A, 56, M.PWS, M.WS_S, M.SZ_S)
    A("s_mov_b64 s[46:47], 0xffff")
    A("s_waitcnt lgkmcnt(6)")
    def mm(d, a, b, c=None):
        A("%s %s, %s, %s, %s" % (MF, q("v", d), a, b, "0" if c is None else q("v", c)))
    for k in range(2):
        for dh in range(2):
            for bh in range(2):
                for part in range(2):
                    d = D1 + 16 * k + 8 * bh + 4 * part
                    mm(d, q("v", ZD + 8 * k + 4 * dh), q("a", I1 + 16 * bh + 8 * part + 4 * dh), None if dh == 0 else d)
        for bh in range(2):
            for part in range(2):
                mm(DS + 16 * k + 8 * bh + 4 * part, q("v", ZD + 8 * k + 4 * part), q("a", I1S + 8 * bh + 4 * part))
    neg = " neg_lo:[1,0,0] neg_hi:[1,0,0]"
    A("s_waitcnt lgkmcnt(0)")
    for k in range(2):
        for x in range(4):
            A("v_cndmask_b32 v%d, v%d, v%d, s[46:47]" % (D1 + 16 * k + 4 * x, D1 + 16 * k + 4 * x, DS + 16 * k + 4 * x))
        for bh in range(2):
            re = D1 + 16 * k + 8 * bh; im = re + 4; tc = ITW + 8 * bh; ts = tc + 4; t = TT + 8 * bh
            for h in (0, 2): A("v_pk_mul_f32 %s, %s, %s" % (p2(t + h), p2(re + h), p2(tc + h)))
            for h in (0, 2): A("v_pk_mul_f32 %s, %s, %s" % (p2(t + 4 + h), p2(im + h), p2(tc + h)))
            for h in (0, 2): A("v_pk_fma_f32 %s, %s, %s, %s%s" % (p2(t + h), p2(im + h), p2(ts + h), p2(t + h), neg))
            for h in (0, 2): A("v_pk_fma_f32 %s, %s, %s, %s" % (p2(t + 4 + h), p2(re + h), p2(ts + h), p2(t + 4 + h)))
            for r in range(4): A("v_cvt_pk_bf16_f32 v%d, v%d, v%d" % (PK + 8 * k + 4 * bh + r, t + r, t + 4 + r))
    for k in range(2):
        for ah in range(2):
            for bh in range(2): mm(D1 + 16 * k + 8 * ah + 4 * bh, q("v", PK + 8 * k + 4 * bh), q("a", I2 + 4 * ah))
    ACC = 32; AF, HR = 0, 128
    RA = 232
    A("v_lshl_add_u32 v4, v2, 12, v3")
    A("v_lshrrev_b32 v24, 2, v1"); A("v_lshlrev_b32 v25, 8, v24"); A("v_and_b32 v26, 3, v1"); A("v_lshl_add_u32 v25, v26, 3, v25")
    A("v_and_b32 v24, 7, v24"); A("s_lshl_b32 s45, s44, 1"); A("v_xor_b32 v24, s45, v24")
    for t in range(8):
        A("v_xor_b32 v26, %d, v24" % t); A("v_lshl_add_u32 v%d, v26, 5, v25" % (RA + t)); A("v_add_u32 v%d, 0x10000, v%d" % (RA + 8 + t, RA + t))
    A("v_mov_b32 v12, 0"); A("v_lshlrev_b32 v13, 7, v1")
    SO = 160
    for k in range(2):
        for x in range(8): A("v_cvt_pk_bf16_f32 v%d, v%d, v%d" % (SO + 8 * k + x, D1 + 16 * k + 2 * x, D1 + 16 * k + 2 * x + 1))
    A("s_lshl_b32 s60, s42, 2"); A("s_add_u32 s60, s60, s44")
    A("s_lshl_b32 s47, s60, 10"); A("s_add_u32 s47, s47, %d" % M.FB)
    A("s_lshl_b32 s46, s60, 1"); A("s_lshr_b32 s45, s%d, 1" % W); A("s_add_u32 s46, s46, s45"); A("s_lshl_b32 s46, s46, 11"); A("s_add_u32 s46, s46, %d" % M.FH)
    A("s_mul_i32 s60, s60, %d" % (28 * 16384))
    M.poll(A, "fa", 46, 13, 31, 14, sleep=4)
    if not ENV("G1IT"): stamp(A, 9)
    M.srd(A, 32, M.PWS, M.WS_H, M.SZ_H)
    def hload(s, jt):
        o = ["buffer_load_dwordx4 %s, v4, s[32:35], s60 offen offset:%d%s" % (q("a", HR + 16 * (s & 7) + 4 * jt), jt * 1024, M.HLD)]
        if jt == 3: o.append("s_add_u32 s60, s60, 0x4000")
        return o
    NK = 28; R = 8; LA = int(ENV("G2LA", "6"))
    units = [[(s_, tuple(range(8)))] for s_ in range(NK - R)]
    for d in (3, 2, 1, 0):
        for s_ in range(NK - R, NK, 4): units.append([(s_ + i, (2 * d, 2 * d + 1)) for i in range(4)])
    def frs(u):
        o = []
        for s_, tl in units[u]:
            for t in tl: o.append((s_, t, AF + 32 * (u & 3) + 4 * len(o)))
        return o
    def ureads(u):
        o = []
        for s_, t, r in frs(u):
            for h in range(2):
                o.append("ds_read_b64_tr_b16 a[%d:%d], v%d offset:%d" % (r + 2 * h, r + 2 * h + 1, RA + 8 * ((s_ >> 3) & 1) + t, (s_ & 7) * 8192 + h * 4096))
        return o
    vm = []
    NH0 = 3
    for s_ in range(NH0):
        for jt in range(4):
            for y in hload(s_, jt): A(y)
            vm.append(("H", s_))
    for x in ureads(0) + ureads(1): A(x)
    lg = [0] * 16 + [1] * 16
    A("s_lshl_b32 s53, s2, 2"); A("s_add_u32 s53, s53, s%d" % W); A("s_mul_i32 s52, s53, %d" % (3 * 4096)); A("s_lshl_b32 s53, s53, 9"); A("s_add_u32 s53, s53, %d" % M.FX)
    A("s_lshl_b32 s54, s2, 7"); A("s_add_u32 s54, s54, %d" % M.FS)
    A("s_lshl_b32 s46, s42, 12"); A("s_lshl_b32 s45, s%d, 10" % W); A("s_add_u32 s46, s46, s45"); A("s_add_u32 s46, s46, %d" % M.FS)
    M.srd(A, 36, M.PWS, M.WS_XC, M.SZ_XC)
    A("v_and_b32 v21, 15, v1"); A("v_mul_u32_u24 v16, 80, v21"); A("v_lshrrev_b32 v21, 4, v1"); A("v_lshl_add_u32 v16, v21, 3, v16"); A("v_lshl_add_u32 v16, v2, 13, v16")
    A("v_lshrrev_b32 v21, 2, v1"); A("v_mul_u32_u24 v17, 80, v21"); A("v_and_b32 v21, 3, v1"); A("v_lshl_add_u32 v17, v21, 4, v17"); A("v_lshl_add_u32 v17, v2, 13, v17")
    FL = "s[%d:%d]" % (M.SFL, M.SFL + 3)
    def quick(tag, vd, nl, soff):
        A("v_cmp_ne_u32 vcc, s%d, v%d" % (M.TOK, vd)); A("s_nop 1"); A("s_bfm_b64 s[66:67], %d, 0" % nl); A("s_and_b64 vcc, vcc, s[66:67]"); A("s_nop 3")
        A("s_cbranch_vccz pd_%s" % tag)
        M.poll(A, tag, soff, 13, vd, nl)
    def vwait(tags):
        last = max([i for i, t in enumerate(vm) if t in tags] + [-1])
        return min(63, len(vm) - 1 - last)
    def lwait(u):
        last = max(i for i, t in enumerate(lg) if t == u)
        return min(15, len(lg) - 1 - last)
    cert = 0; hnext = NH0
    UFB = 14 - LA
    for u in range(len(units)):
        ks = [x[0] for x in units[u]]
        need = [("H", k) for k in ks]
        nxt = max(x[0] for x in units[u + 2]) >> 2 if u + 2 < len(units) else 0
        bar = nxt > cert
        if bar: need.append(("W", nxt))
        if u == 14: need += [("S", 0)]
        if u == UFB: need += [("fb", 0)]
        if u == 21: need += [("fs", 0)]
        sd = {22: 3, 24: 2, 26: 1}.get(u); fd = {25: 3, 27: 2}.get(u)
        if fd: need += [("X", fd)]
        A("s_waitcnt vmcnt(%d) lgkmcnt(%d)" % (vwait(need), lwait(u)))
        if bar: A("s_barrier"); cert = nxt
        if u == 2:
            assert bar
            A("s_cmp_lg_u32 s%d, 0" % W); A("s_cbranch_scc1 g2_np")
            A("s_cmp_eq_u32 s69, 0"); A("s_cbranch_scc1 g2_np")
            M.set_flag(A, 55, 12, 25)
            A.label("g2_np")
        if u == 14:
            assert bar
            M.set_flag_w0(A, "fs", 54, 12, 25)
        if u == UFB: quick("fb", 18, 7, 47)
        if u == 21: quick("fs", 19, 8, 46)
        if ENV("FIT") and u in (20, 24): stamp(A, 2 + (u - 20) // 4)
        if ENV("G2IT") and u % 4 == 0 and u < 24: stamp(A, 2 + u // 4)
        rd = ureads(u + 2) if u + 2 < len(units) else []
        fr = frs(u)
        ex = [[] for _ in range(32)]
        def flagst(d):
            return ["s_xor_b32 s45, s53, 0x%x" % (d << 12), "v_mov_b32 v25, s%d" % M.TOK, "s_mov_b64 exec, 1",
                    "buffer_store_dword v25, v12, %s, s45 offen offset:%d sc1" % (FL, (d - 1) * 128), "s_mov_b64 exec, -1"]
        if fd: ex[1].append((flagst(fd), ("F", fd)))
        if u < NK - R:
            iv = (u + 10) >> 2
            if iv < 6:
                d0, d1 = g2_dma_of(u); ex[5].append((d0, ("W", iv))); ex[21].append((d1, ("W", iv)))
            elif u in (14, 15):
                for i in range(2):
                    d0, d1 = g2_dma_of(14 + 2 * (u - 14) + i); ex[5 + 16 * i].append((d0, ("W", 6))); ex[9 + 16 * i].append((d1, ("W", 6)))
            tgt = min(NK, u + 1 + LA + (2 if u >= NK - R - 3 else 0), u + 8)
            n = min(2, tgt - hnext)
            last = u == NK - R - 1
            for i in range(n):
                assert hnext < 14 or u >= UFB
                for jt in range(4): ex[jt if last else (2 + 16 * i + 4 * jt) if n == 2 else (3 + 8 * jt)].append((hload(hnext, jt), ("H", hnext)))
                hnext += 1
            if last:
                assert n <= 1 and hnext == u + 8
                for jt in range(4): ex[8 * jt + 7].append((hload(hnext, jt), ("H", hnext)))
                hnext += 1
        for i in ((2 * u - 16, 2 * u - 15) if u in (8, 9) else ()):
            ex[15 + 16 * (i & 1)].append((["buffer_store_dwordx4 %s, v22, s[56:59], s%d offen offset:%d sc1" % (q("v", SO + 4 * i), 40 + (i & 1), (i >> 1) * 64)], ("S", 0)))
        if u == UFB - 3: ex[29].append((["s_bfm_b64 exec, 7, 0", "buffer_load_dword v18, v13, %s, s47 offen sc1" % FL, "s_mov_b64 exec, -1"], ("fb", 0)))
        if u == 18: ex[29].append((["s_bfm_b64 exec, 8, 0", "buffer_load_dword v19, v13, %s, s46 offen sc1" % FL, "s_mov_b64 exec, -1"], ("fs", 0)))
        if u == 21:
            ex[0].append((["s_lshl_b32 s6, s42, 19", "s_lshl_b32 s7, s%d, 17" % W, "s_add_u32 s6, s6, s7", "s_lshl_b32 s7, s43, 12", "s_add_u32 s6, s6, s7", "s_lshl_b32 s7, s44, 10", "s_add_u32 s6, s6, s7"], None))
            for i in range(4): ex[3 + 8 * i].append((["buffer_load_dwordx4 %s, v3, s[56:59], s6 offen sc1" % q("v", SR + 4 * i), "s_add_u32 s6, s6, 0x8000"], ("s", 0)))
        if u == 27: ex[0].append((["s_bfm_b64 exec, 3, 0", "buffer_load_dword v24, v13, %s, s53 offen sc1" % FL, "s_mov_b64 exec, -1"], ("fx", 0)))
        if sd:
            b0 = ACC + 32 * sd
            ex[0].append((["s_xor_b32 s45, s2, %d" % (sd << 1), "s_lshl_b32 s45, s45, 2", "s_add_u32 s45, s45, s%d" % W, "s_mul_i32 s45, s45, %d" % (3 * 4096), "s_add_u32 s45, s45, %d" % ((sd - 1) * 4096)], None))
            for i in range(4):
                for e in range(4): ex[4 + 4 * i + e].append((["v_cvt_pk_bf16_f32 v%d, v%d, v%d" % (b0 + 8 * i + e, b0 + 8 * i + 2 * e, b0 + 8 * i + 2 * e + 1)], None))
                ex[8 + 4 * i].append((["buffer_store_dwordx4 %s, v3, s[36:39], s45 offen offset:%d sc1" % (q("v", b0 + 8 * i), i * 1024)], ("X", sd)))
        k = 0
        if len(units[u]) == 1: seq = [(f, jt) for jt in range(4) for f in fr]
        else: seq = [(f, jt) for f in fr for jt in range(4)]
        for i, ((s_, t, r), jt) in enumerate(seq):
            d = q("v", ACC + 16 * t + 4 * jt)
            A("%s %s, %s, %s, %s" % (MF, d, q("a", r), q("a", HR + 16 * (s_ & 7) + 4 * jt), "0" if s_ == 0 else d))
            if i % 2 == 0 and i // 2 < len(rd): A(rd[i // 2]); lg.append(u + 2)
            for ins, tag in ex[i]:
                for y in ins:
                    A(y)
                    if y.startswith("buffer"): vm.append(tag)
    assert hnext == NK
    stamp(A, 10)
    nl2e = -math.log2(math.e)
    A("s_mov_b32 s56, 0x%x" % f32(nl2e)); A("s_mov_b32 s57, s56"); A("s_mov_b32 s59, 0xffff0000")
    A("v_mov_b32 v26, 1.0"); A("v_mov_b32 v27, 1.0")
    A("s_waitcnt vmcnt(%d)" % vwait([("X", 1), ("fx", 0)]))
    for y in flagst(1): A(y)
    if ENV("FIT"): stamp(A, 4)
    UX, US, PB = 64, 96, 128
    H4 = range(0, 8, 2)
    def pl(d):
        A("s_add_u32 s45, s52, %d" % (d * 4096))
        for i in range(4): A("buffer_load_dwordx4 %s, v3, s[36:39], s45 offen offset:%d sc1" % (q("v", PB + 16 * d + 4 * i), i * 1024))
    def unp():
        for i in range(16):
            A("v_lshlrev_b32 v%d, 16, v%d" % (UX + 2 * i, XR + i)); A("v_and_b32 v%d, s59, v%d" % (UX + 2 * i + 1, XR + i))
            A("v_lshlrev_b32 v%d, 16, v%d" % (US + 2 * i, SR + i)); A("v_and_b32 v%d, s59, v%d" % (US + 2 * i + 1, SR + i))
    A("v_cmp_ne_u32 s[10:11], s%d, v24" % M.TOK); A("s_nop 1")
    A("s_and_b32 s11, s10, 6"); A("s_cbranch_scc0 pd_fx2")
    A("s_add_u32 s45, s53, 128")
    M.poll(A, "fx2", 45, 13, 24, 2, sleep=1)
    if ENV("FIT"): stamp(A, 5)
    pl(2); pl(1)
    A("s_and_b32 s11, s10, 1"); A("s_cbranch_scc0 pd_fx1")
    M.poll(A, "fx1", 53, 13, 24, 1, sleep=1)
    pl(0)
    unp()
    A("s_barrier")
    A("s_waitcnt vmcnt(4)")
    if ENV("FIT"): stamp(A, 6)
    M.srd(A, 12, M.POUT, 0, 4 << 20)
    def addp(t, d, tt):
        for e in range(4):
            A("v_lshlrev_b32 v%d, 16, v%d" % (tt + 2 * e, PB + 16 * d + 4 * t + e)); A("v_and_b32 v%d, s59, v%d" % (tt + 2 * e + 1, PB + 16 * d + 4 * t + e))
        for e in H4: A("v_pk_add_f32 %s, %s, %s" % (p2(ACC + 8 * t + e), p2(ACC + 8 * t + e), p2(tt + e)))
    for t in range(4):
        for d in (2, 1): addp(t, d, 208 + 8 * d)
    for t in range(4):
        b = 8 * t; T = 208 + 8 * (t & 1)
        A("s_waitcnt vmcnt(%d)" % (3 - t))
        if ENV("FIT") and t == 0: stamp(A, 7)
        addp(t, 0, T)
        for e in H4: A("v_pk_mul_f32 %s, %s, s[56:57]" % (p2(T + e), p2(ACC + b + e)))
        for e in range(8): A("v_exp_f32 v%d, v%d" % (T + e, T + e))
        A("s_nop 0")
        for e in H4: A("v_pk_add_f32 %s, %s, v[26:27]" % (p2(T + e), p2(T + e)))
        for e in range(8): A("v_rcp_f32 v%d, v%d" % (T + e, T + e))
        A("s_nop 0")
        for e in H4: A("v_pk_mul_f32 %s, %s, %s" % (p2(ACC + b + e), p2(ACC + b + e), p2(T + e)))
        for e in range(4): A("v_cvt_pk_bf16_f32 v%d, v%d, v%d" % (SR + 4 * t + e, ACC + b + 2 * e, ACC + b + 2 * e + 1))
        for u in range(2):
            A("ds_write_b64 v16, %s offset:%d" % (p2(SR + 4 * t + 2 * u), (2 * (t & 1) + u) * 16 * 80 + (t >> 1) * 32))
    A("s_waitcnt lgkmcnt(0)")
    for i in range(4): A("ds_read_b128 %s, v17 offset:%d" % (q("v", ACC + 4 * i), i * 16 * 80))
    for i in range(4):
        A("s_waitcnt lgkmcnt(%d)" % (3 - i))
        T = 208 + 8 * (i & 1)
        for e in range(4):
            A("v_lshlrev_b32 v%d, 16, v%d" % (T + 2 * e, ACC + 4 * i + e)); A("v_and_b32 v%d, s59, v%d" % (T + 2 * e + 1, ACC + 4 * i + e))
        for e in H4: A("v_pk_fma_f32 %s, %s, %s, %s" % (p2(UX + 8 * i + e), p2(US + 8 * i + e), p2(T + e), p2(UX + 8 * i + e)))
        for e in range(4): A("v_cvt_pk_bf16_f32 v%d, v%d, v%d" % (XR + 4 * i + e, UX + 8 * i + 2 * e, UX + 8 * i + 2 * e + 1))
        A("buffer_store_dwordx4 %s, v28, s[12:15], %s" % (q("v", XR + 4 * i), io(i)))
    if G.STAMP:
        A("s_waitcnt vmcnt(0)")
        stamp(A, 11); A("s_memrealtime s[100:101]"); A("s_waitcnt lgkmcnt(0)")
        G.stamp_out(A, 0, 12, M.PWS, "all")
        A("v_mov_b32 v2, s100"); A("buffer_store_dword v2, v1, s[96:99], 0 offen offset:48")

def colfft(A, M):
    W_ = M.WAVE
    DAT, FA, FE = 128, 160, 176
    W, T1, T2, D, P, TMP = 8, 40, 48, 104, 168, 200
    A("s_waitcnt lgkmcnt(0)")
    M.flat(A, M.late_stores())
    M.srd(A, 36, M.PWS, M.WS_WT, M.SZ_WT)
    A("v_mov_b32 v240, 0"); A("v_lshlrev_b32 v242, 7, v1")
    RB = M.RB
    A("s_barrier")
    M.filt_dma(A, 1)
    A("s_waitcnt vmcnt(17)"); A("s_barrier")
    M.set_flag_w0(A, "f2f", 63, 240, 241)
    A("v_and_b32 v232, 7, v0"); A("v_lshrrev_b32 v233, 3, v0")
    A("v_lshlrev_b32 v235, 16, v233"); A("v_lshl_add_u32 v235, v232, 4, v235")
    A("v_mul_u32_u24 v236, 1026, v232"); A("v_and_b32 v236, -4, v236"); A("v_lshl_add_u32 v236, v233, 4, v236"); A("v_add_u32 v237, 0x%x, v236" % RB)
    A("v_and_b32 v239, 1, v0"); A("v_lshlrev_b32 v239, 4, v239")
    A("s_lshl_b32 s43, s2, 8"); A("s_mov_b32 s48, 0x05040100"); A("s_mov_b32 s49, 0x07060302")
    A("s_lshl_b32 s41, s2, 6"); A("v_add_u32 v200, s41, v1"); A("v_sub_u32 v201, 2048, v200"); A("v_and_b32 v201, 0x7ff, v201")
    A("v_mul_u32_u24 v202, 1026, v200"); A("v_mul_u32_u24 v201, 1026, v201")
    A("s_cmp_lg_u32 s%d, 0" % W_); A("s_cbranch_scc1 r_noabl")
    for i, (va, sd, off) in enumerate([(202, 52, 0), (202, 56, 0), (201, 52, 0), (201, 56, 0), (202, 52, 1024), (202, 56, 1024), (201, 52, 1024), (201, 56, 1024)]):
        A("buffer_load_ushort v%d, v%d, s[%d:%d], 0 offen offset:%d" % (208 + i, va, sd, sd + 3, off))
    A.label("r_noabl")
    names = []
    for inv in range(2):
        for part in range(2): names.append(("fa_%d%d" % (inv, part), ar(FA + 8 * inv + 4 * part, 4)))
    for ih in range(2): names.append(("fe32_%d" % ih, ar(FE + 4 * ih, 4)))
    for nm, r in names: G.tab_load(A, r, nm, 3, M.STAB, 42)
    A("v_and_b32 v8, 15, v1"); A("v_lshrrev_b32 v9, 4, v1"); A("v_lshlrev_b32 v9, 2, v9")
    for r in range(4):
        A("v_add_u32 v10, %d, v9" % r); A("v_mul_u32_u24 v11, v10, v8"); A("v_lshl_add_u32 v10, v10, 4, v8")
        A("v_cvt_f32_u32 v11, v11"); A("v_cvt_f32_u32 v%d, v10" % (12 + r)); A("v_mul_f32 v11, 0x%x, v11" % f32(1.0 / 256))
        A("v_cos_f32 v%d, v11" % (T1 + r)); A("v_sin_f32 v%d, v11" % (T1 + 4 + r))
    for e in range(1, 8):
        for r in range(4):
            A("v_mul_f32 v%d, 0x%x, v%d" % (16 + r, f32(e / 2048.0), 12 + r))
        for r in range(4):
            A("v_cos_f32 v%d, v%d" % (T2 + 8 * (e - 1) + r, 16 + r)); A("v_sin_f32 v%d, v%d" % (T2 + 8 * (e - 1) + 4 + r, 16 + r))
    A("s_waitcnt vmcnt(%d)" % len(names)); A("s_barrier")
    if ENV("RIT"): stamp(A, 3)
    A("s_lshl_b32 s44, s%d, 13" % W_); A("s_add_u32 s44, s44, %d" % M.F2)
    def rrd(n):
        HL = 104 + 48 * (n & 1)
        for r in range(4):
            for mm_ in range(2):
                for d in range(5): A("ds_read_b32 v%d, v%d offset:%d" % (HL + 12 * r + 6 * mm_ + d, 236 + mm_, (8 * (n >> 1) + 16 * r) * 1026 + (n & 1) * 512 + 4 * d))
    rrd(0)
    for n in range(4):
        HL = 104 + 48 * (n & 1); WO = 8
        A("s_waitcnt lgkmcnt(0)")
        if n + 1 < 4: rrd(n + 1)
        for r in range(4):
            for mm_ in range(2):
                b = HL + 12 * r + 6 * mm_
                for d in range(4): A("v_alignbit_b32 v%d, v%d, v%d, v239" % (b + d, b + d + 1, b + d))
        for c in range(8):
            for r in range(4): A("v_perm_b32 v%d, v%d, v%d, s%d" % (WO + 4 * c + r, HL + 12 * r + 6 + (c >> 1), HL + 12 * r + (c >> 1), 48 + (c & 1)))
            A("s_add_u32 s41, s43, 0x%x" % (((n & 1) << 21) + (n >> 1) * 128 + c * 8192))
            A("buffer_store_dwordx4 %s, v235, s[36:39], s41 offen sc1" % q("v", WO + 4 * c))
    A("s_cmp_lg_u32 s%d, 0" % W_); A("s_cbranch_scc1 r_noab")
    for i in range(8): A("v_lshlrev_b32 v%d, 16, v%d" % (208 + i, 208 + i))
    A("v_add_f32 v216, v208, v210"); A("v_sub_f32 v217, v209, v211"); A("v_add_f32 v218, v212, v214"); A("v_sub_f32 v219, v213, v215")
    A("v_add_f32 v220, v216, v218"); A("v_add_f32 v221, v217, v219"); A("v_sub_f32 v222, v216, v218"); A("v_sub_f32 v223, v217, v219")
    for i in range(4): A("v_mul_f32 v%d, 0x3e800000, v%d" % (220 + i, 220 + i))
    A("v_cvt_pk_bf16_f32 v220, v220, v221"); A("v_cvt_pk_bf16_f32 v222, v222, v223")
    A("v_and_b32 v216, 15, v200"); A("v_lshlrev_b32 v216, 4, v216"); A("v_bfe_u32 v217, v200, 4, 2"); A("v_lshl_add_u32 v216, v217, 2, v216")
    A("v_lshrrev_b32 v217, 6, v200"); A("v_lshl_add_u32 v216, v217, 8, v216")
    A("s_mov_b32 s40, 0x%x" % (512 * 8192)); A("s_mov_b32 s41, 0x%x" % (513 * 8192))
    A("buffer_store_dword v220, v216, s[36:39], s40 offen sc1"); A("buffer_store_dword v222, v216, s[36:39], s41 offen sc1")
    A.label("r_noab")
    A("buffer_load_dword v244, v242, s[%d:%d], s44 offen sc1" % (M.SFL, M.SFL + 3))
    if ENV("RIT"): stamp(A, 2)
    A("v_and_b32 v4, 15, v1"); A("v_lshrrev_b32 v5, 4, v1")
    A("v_lshlrev_b32 v6, 6, v4"); A("v_lshl_add_u32 v6, v5, 4, v6")
    for k in range(4):
        A("v_add_u32 v7, %d, v5" % (4 * k)); A("v_xor_b32 v7, v7, v4"); A("v_lshlrev_b32 v7, 4, v7"); A("v_lshl_add_u32 v%d, v5, 8, v7" % (232 + k))
    A("v_lshrrev_b32 v7, 5, v1"); A("v_lshlrev_b32 v7, 3, v7"); A("v_bfe_u32 v236, v1, 4, 1"); A("v_or_b32 v7, v7, v236"); A("v_xor_b32 v7, v7, v4")
    A("v_lshlrev_b32 v7, 4, v7"); A("v_lshl_add_u32 v236, v4, 8, v7"); A("v_lshl_add_u32 v236, v2, 15, v236")
    A("v_add_u32 v4, 0x1000, v3")
    A("s_lshl_b32 s51, s2, 2"); A("s_add_u32 s51, s51, s%d" % W_)
    A("s_and_b32 s41, s51, 15"); A("s_bfe_u32 s42, s51, 0x20004"); A("s_lshl_b32 s42, s42, 7")
    A("s_add_u32 s40, s41, s42")
    A("s_sub_u32 s43, 32, s41"); A("s_cmp_eq_u32 s41, 0"); A("s_cselect_b32 s43, 16, s43")
    A("s_add_u32 s43, s43, 480"); A("s_sub_u32 s43, s43, s42")
    A("s_cmp_ge_u32 s51, 64"); A("s_cselect_b32 s40, s43, s40"); A("s_cselect_b32 s50, -1, 1"); A("s_lshl_b32 s50, s50, 18")
    A("s_lshl_b32 s40, s40, 13")
    M.srd(A, 52, M.PWS, M.WS_Y, M.SZ_Y); M.srd(A, 56, M.PWS, M.WS_Z, M.SZ_Z)
    A("s_waitcnt vmcnt(0)")
    A("v_cmp_ne_u32 vcc, s%d, v244" % M.TOK); A("s_nop 4"); A("s_cbranch_vccz pd_f2")
    M.poll(A, "f2", 44, 242, 244, 64, sleep=4)
    A("s_barrier")
    A("s_add_u32 s63, s63, %d" % (M.F2B - M.F2))
    M.set_flag_w0(A, "f2fb", 63, 240, 241)
    stamp(A, 5)
    A("s_lshl_b32 s41, s51, 15"); A("s_lshl_b32 s42, s%d, 15" % W_)
    for e in range(8):
        A("s_add_u32 m0, s42, %d" % (e * 4096))
        for k in range(4): A("buffer_load_dwordx4 v%d, s[52:55], s41 offen offset:%d sc1 lds" % (232 + k, k * 1024))
        A("s_add_u32 s41, s41, 4096")
    def wload(dst, f, so):
        for e in range(8):
            A("buffer_load_dwordx4 %s, v%d, s[36:39], s%d offen offset:%d sc1" % (q(f, dst + 4 * e), 3 if e < 4 else 4, so, (e & 3) * 1024))
    A("s_mov_b32 s48, 0"); A("s_mov_b32 s49, 0xffff0000")
    def yread():
        for e in range(8): A("ds_read_b128 %s, v237 offset:%d" % (q("a", DAT + 4 * e), e * 4096))
    A("v_mov_b32 v237, v236")
    A("s_cmp_eq_u32 s51, 0"); A("s_cselect_b32 s62, 0x%x, s40" % (512 * 8192))
    A("s_mov_b32 s44, %d" % M.F2B)
    M.poll(A, "f2b", 44, 242, 244, 32, sleep=2, first_hook=yread)
    wload(W, "v", 62)
    A("s_cmp_lg_u32 s51, 0"); A("s_cbranch_scc1 cf_nb")
    A("s_mov_b32 s43, 0x%x" % (513 * 8192))
    wload(208, "a", 43)
    A.label("cf_nb")
    stamp(A, 6)
    A.label("cf_loop")
    A("s_waitcnt lgkmcnt(0)")
    def mm(d, a, b, c=None):
        A("%s %s, %s, %s, %s" % (MF, q("v", d), a, b, "0" if c is None else q("v", c)))
    tctr = [0]
    def tw_quads(dsts, re, tc, conj, TMP=TMP):
        t = TMP + 8 * (tctr[0] % 4); tctr[0] += 1
        im = re + 4; ts = tc + 4
        neg = " neg_lo:[1,0,0] neg_hi:[1,0,0]"
        for h in (0, 2): A("v_pk_mul_f32 %s, %s, %s" % (p2(t + h), p2(re + h), p2(tc + h)))
        for h in (0, 2): A("v_pk_mul_f32 %s, %s, %s" % (p2(t + 4 + h), p2(im + h), p2(tc + h)))
        for h in (0, 2): A("v_pk_fma_f32 %s, %s, %s, %s%s" % (p2(t + h), p2(im + h), p2(ts + h), p2(t + h), neg if conj else ""))
        for h in (0, 2): A("v_pk_fma_f32 %s, %s, %s, %s%s" % (p2(t + 4 + h), p2(re + h), p2(ts + h), p2(t + 4 + h), "" if conj else neg))
        for r in range(4): A("v_cvt_pk_bf16_f32 v%d, v%d, v%d" % (dsts[r], t + r, t + 4 + r))
    def cm_pairs(items):
        ts = []
        for _ in items:
            ts.append(TMP + 2 * (tctr[0] % 8)); tctr[0] += 1
        for (dst, z, c, s_), t in zip(items, ts):
            A("v_pk_mul_f32 %s, %s, %s op_sel:[0,%d] op_sel_hi:[1,%d]" % (p2(t), p2(z), p2(c & ~1), c & 1, c & 1))
        for (dst, z, c, s_), t in zip(items, ts):
            A("v_pk_fma_f32 %s, %s, %s, %s op_sel:[1,%d,0] op_sel_hi:[0,%d,1] neg_lo:[1,0,0]" % (p2(t), p2(z), p2(s_ & ~1), p2(t), s_ & 1, s_ & 1))
        for (dst, z, c, s_), t in zip(items, ts):
            A("v_cvt_pk_bf16_f32 v%d, v%d, v%d" % (dst, t, t + 1))
    for e in range(8):
        mm(D + 8 * e, q("a", DAT + 4 * e), q("a", FA)); mm(D + 8 * e + 4, q("a", DAT + 4 * e), q("a", FA + 4))
    A("s_add_u32 s40, s40, s50")
    A("s_add_u32 s43, s48, 1"); A("s_and_b32 s43, s43, 3"); A("s_lshl_b32 s43, s43, 5"); A("v_xor_b32 v237, s43, v236")
    yread()
    TP = 246
    def tw_in(re, tc, conj, k):
        im = re + 4; ts = tc + 4; t = TP + 4 * (k & 1)
        n0 = " neg_lo:[1,0,0] neg_hi:[1,0,0]"; n2 = " neg_lo:[0,0,1] neg_hi:[0,0,1]"
        for h in (0, 2): A("v_pk_mul_f32 %s, %s, %s" % (p2(t + h), p2(re + h), p2(tc + h)))
        for h in (0, 2): A("v_pk_mul_f32 %s, %s, %s" % (p2(re + h), p2(re + h), p2(ts + h)))
        for h in (0, 2): A("v_pk_fma_f32 %s, %s, %s, %s%s" % (p2(re + h), p2(im + h), p2(tc + h), p2(re + h), "" if conj else n2))
        for h in (0, 2): A("v_pk_fma_f32 %s, %s, %s, %s%s" % (p2(im + h), p2(im + h), p2(ts + h), p2(t + h), n0 if conj else ""))
    def cv_mm(mmf):
        for e in range(9):
            cv = ["v_cvt_pk_bf16_f32 v%d, v%d, v%d" % (P + 4 * e + r, D + 8 * e + 4 + r, D + 8 * e + r) for r in range(4)] if e < 8 else [None] * 4
            for h in range(2):
                for x in cv[2 * h:2 * h + 2]:
                    if x: A(x)
                if e: mmf(e - 1, h)
    for e in range(8): tw_in(D + 8 * e, T1, False, e)
    cv_mm(lambda e, h: mm(D + 8 * e + 4 * h, q("a", FA + 4 * h), q("v", P + 4 * e)))
    for e in range(8):
        if e == 0:
            for r in range(4): A("v_cvt_pk_bf16_f32 v%d, v%d, v%d" % (P + 8 * r, D + r, D + 4 + r))
        else: tw_quads([P + 8 * r + e for r in range(4)], D + 8 * e, T2 + 8 * (e - 1), False)
    def mE(r, ih):
        d = "v[%d:%d]" % (D + 16 * r, D + 16 * r + 15)
        A("%s %s, %s, %s, %s" % (MF32, d, q("a", FE + 4 * ih), q("v", P + 8 * r + 4 * ih), "0" if ih == 0 else d))
    A("s_waitcnt vmcnt(0)")
    unp = []
    for r in range(4):
        for ep in range(8):
            unp += ["v_lshlrev_b32 v%d, 16, v%d" % (TMP + 4 * ep + r, W + 4 * ep + r), "v_and_b32 v%d, s49, v%d" % (W + 4 * ep + r, W + 4 * ep + r)]
    for i in range(8):
        mE(i >> 1, i & 1)
        for x in unp[8 * i:8 * i + 8]: A(x)
    def cm_in(items):
        for k, (z, c, s_) in enumerate(items):
            A("v_pk_mul_f32 %s, %s, %s op_sel:[0,%d] op_sel_hi:[1,%d]" % (p2(TP + 2 * k), p2(z), p2(c & ~1), c & 1, c & 1))
        for k, (z, c, s_) in enumerate(items):
            A("v_pk_fma_f32 %s, %s, %s, %s op_sel:[1,%d,0] op_sel_hi:[0,%d,1] neg_lo:[1,0,0]" % (p2(z), p2(z), p2(s_ & ~1), p2(TP + 2 * k), s_ & 1, s_ & 1))
    A("s_or_b32 s43, s51, s48"); A("s_cmp_eq_u32 s43, 0"); A("s_cbranch_scc1 cf_pack")
    A.label("cf_mul")
    for r in range(4):
        for eh in range(2): cm_in([(D + 16 * r + 2 * ep, TMP + 4 * ep + r, W + 4 * ep + r) for ep in range(4 * eh, 4 * eh + 4)])
    A("s_cbranch_scc1 cf_pack2")
    A.label("cf_mul_done")
    wl = Asm(); A1 = A; A = wl; wload(W, "v", 40); A = A1
    for r in range(5):
        for ih in range(2):
            if r < 4:
                for ep in range(4 * ih, 4 * ih + 4): A("v_cvt_pk_bf16_f32 v%d, v%d, v%d" % (P + 8 * r + ep, D + 16 * r + 2 * ep, D + 16 * r + 2 * ep + 1))
            if r:
                mE(r - 1, ih); A(wl.items[2 * (r - 1) + ih][1])
    for r in range(4):
        A("v_cvt_pk_bf16_f32 v%d, v%d, v%d" % (P + r, D + 16 * r, D + 16 * r + 1))
        for xs in ((1, 2, 3, 4), (5, 6, 7)):
            cm_pairs([(P + 4 * (8 - x) + r, D + 16 * r + 2 * x, T2 + 8 * (7 - x) + r, T2 + 8 * (7 - x) + 4 + r) for x in xs])
    for e in range(8):
        mm(D + 8 * e, q("v", P + 4 * e), q("a", FA + 8)); mm(D + 8 * e + 4, q("v", P + 4 * e), q("a", FA + 12))
    for e in range(8): tw_in(D + 8 * e, T1, True, e)
    def last(e, h):
        mm(D + 8 * e + 4 * h, q("v", P + 4 * e), q("a", FA + 8 + 4 * h))
    cv_mm(last)
    for e in range(8):
        for r in range(4): A("v_cvt_pk_bf16_f32 v%d, v%d, v%d" % (P + 4 * e + r, D + 8 * e + r, D + 8 * e + 4 + r))
    for cc in range(4):
        A("s_cmp_eq_u32 s48, %d" % cc); A("s_cbranch_scc0 cf_o%d" % cc)
        for qq in range(32): A("v_accvgpr_write_b32 a%d, v%d" % (4 * qq + cc, P + qq))
        A.label("cf_o%d" % cc)
    A("s_add_u32 s48, s48, 1"); A("s_cmp_lt_u32 s48, 4"); A("s_cbranch_scc1 cf_loop")
    stamp(A, 7)
    A("v_and_b32 v238, 15, v1"); A("v_lshlrev_b32 v238, 4, v238"); A("v_lshl_add_u32 v238, v5, 20, v238")
    A("s_lshl_b32 s41, s51, 8")
    for r in range(4):
        for e in range(8):
            qq = 4 * e + r
            A("s_add_u32 s42, s41, 0x%x" % ((8 * r + e) * 32768))
            A("buffer_store_dwordx4 %s, v238, s[56:59], s42 offen sc1" % q("a", 4 * qq))
    A("s_waitcnt vmcnt(0) lgkmcnt(0)")
    A("s_lshl_b32 s44, s2, 7"); A("s_add_u32 s44, s44, %d" % M.F3)
    A("s_barrier")
    M.set_flag_w0(A, "f3", 44, 240, 241)
    if ENV("EIT"): stamp(A, 4)
    i_tabs(A, M); g2_setup(A, M); g2_early(A); x_fetch(A, M, 21, 22, 12)
    A("s_mov_b32 s46, %d" % M.F3)
    M.poll(A, "f3", 46, 242, 244, 32, sleep=4)
    z_fetch(A, M)
    A("s_mov_b32 s58, 0"); A("s_mov_b32 s55, 0"); A("s_mov_b32 s52, 0"); A("s_mov_b32 s53, 0")
    A("s_waitcnt vmcnt(0)")
    A("s_branch cf_end")
    A.label("cf_pack")
    A("s_nop 11")
    SC = M.LDS_SCR
    A("v_and_b32 v238, 15, v1"); A("v_lshl_add_u32 v238, v5, 6, v238")
    A("v_sub_u32 v239, %d, v238" % (2048 - 48 - 1792)); A("v_lshlrev_b32 v238, 3, v238"); A("v_lshlrev_b32 v239, 3, v239")
    A("v_add_u32 v238, 0x%x, v238" % SC); A("v_add_u32 v239, 0x%x, v239" % SC)
    for r in range(4):
        for ep in range(8): A("ds_write_b64 v238, %s offset:%d" % (p2(D + 16 * r + 2 * ep), 8 * (16 * r + 256 * ep)))
    A("s_mov_b64 exec, 1"); A("ds_write_b64 v238, %s offset:%d" % (p2(D), 8 * 2048)); A("s_mov_b64 exec, -1")
    MR = 0
    for r in range(4):
        for ep in range(8): A("ds_read_b64 a[%d:%d], v239 offset:%d" % (MR + 16 * r + 2 * ep, MR + 16 * r + 2 * ep + 1, 8 * (16 * (3 - r) + 256 * (7 - ep))))
    A("s_branch cf_mul")
    A.label("cf_pack2")
    U = TMP + 16
    A("s_waitcnt lgkmcnt(0)")
    for r in range(4):
        for eh in range(2):
            E4 = range(4 * eh, 4 * eh + 4)
            for ep in E4:
                A("v_accvgpr_read_b32 v%d, a%d" % (U + 2 * (ep & 3) + 1, 208 + 4 * ep + r))
                for i in range(2): A("v_accvgpr_read_b32 v%d, a%d" % (TMP + 2 * (ep & 3) + i, MR + 16 * r + 2 * ep + i))
            for ep in E4: A("v_lshlrev_b32 v%d, 16, v%d" % (U + 2 * (ep & 3), U + 2 * (ep & 3) + 1)); A("v_and_b32 v%d, s49, v%d" % (U + 2 * (ep & 3) + 1, U + 2 * (ep & 3) + 1))
            for ep in E4: A("v_pk_fma_f32 %s, %s, %s, %s op_sel:[0,0,0] op_sel_hi:[1,0,1] neg_hi:[1,0,0]" % (p2(D + 16 * r + 2 * ep), p2(TMP + 2 * (ep & 3)), p2(U + 2 * (ep & 3)), p2(D + 16 * r + 2 * ep)))
            for ep in E4: A("v_pk_fma_f32 %s, %s, %s, %s op_sel:[1,1,0] op_sel_hi:[0,1,1]" % (p2(D + 16 * r + 2 * ep), p2(TMP + 2 * (ep & 3)), p2(U + 2 * (ep & 3)), p2(D + 16 * r + 2 * ep)))
    A("s_nop 1")
    A("s_branch cf_mul_done")
    A.label("cf_end")
```

```python
from asmlib import *
import math, os
import gen as G
from gen import stamp, f32
ENV = os.environ.get
MF = "v_mfma_f32_16x16x32_bf16"
MF32 = "v_mfma_f32_32x32x16_bf16"
def q(f, r): return "%s[%d:%d]" % (f, r, r + 3)
def p2(r): return "v[%d:%d]" % (r, r + 1)

ZL = 128 * 1024
I1, I1S, I2 = 160, 192, 208
DV = [5, 6, 14, 15]
def g2_setup(A, M, DV=DV, t0=7, t1=13):
    W = M.WAVE
    A("s_bfe_u32 s44, s2, 0x20001"); A("s_and_b32 s42, s2, 1"); A("s_lshl_b32 s42, s42, 2"); A("s_bfe_u32 s43, s2, 0x20003"); A("s_add_u32 s42, s42, s43")
    A("s_lshr_b32 s43, s2, 5")
    d0, d1, d2, d3 = DV
    A("v_lshrrev_b32 v%d, 4, v1" % t0); A("v_lshlrev_b32 v%d, 11, v%d" % (t1, t0))
    A("v_lshlrev_b32 v%d, 1, v%d" % (t0, t0)); A("v_and_b32 v%d, 15, v1" % d0); A("v_xor_b32 v%d, v%d, v%d" % (t0, t0, d0))
    A("v_lshl_add_u32 v%d, v%d, 4, v%d" % (d0, t0, t1)); A("v_xor_b32 v%d, 0x80, v%d" % (d1, d0))
    A("v_add_u32 v%d, 0x%x, v%d" % (d2, 2 * 7168, d0)); A("v_add_u32 v%d, 0x%x, v%d" % (d3, 3 * 7168, d1)); A("v_add_u32 v%d, 0x%x, v%d" % (d1, 7168, d1))
    M.srd(A, 48, M.PWD, 0, 3584 * 2048)
    A("s_mul_i32 s45, s44, %d" % (896 * 2048)); A("s_lshl_b32 s61, s43, 8"); A("s_add_u32 s61, s61, s45")
    A("s_add_u32 s62, s61, %d" % (896 * 2048))
    A("s_lshl_b32 s45, s%d, 17" % W); A("s_add_u32 s61, s61, s45")
    A("s_lshl_b32 s64, s%d, 13" % W)
def g2_dma(par, p, DV=DV):
    o = []
    if p % 4 == 0: o.append("s_add_u32 m0, s64, 0x%x" % (par * 32768 + (p >> 2) * 4096))
    o.append("buffer_load_dwordx4 v%d, s[48:51], s61 offen%s lds" % (DV[p & 3], " offset:%d" % ((p & 3) * 1024) if p & 3 else ""))
    if p == 3: o.append("s_add_u32 s61, s61, 0x8000")
    if p == 7:
        o.append("s_add_u32 s61, s61, 0x%x" % (256 * 2048 - 0x8000))
        o += ["s_cmp_ge_u32 s61, s62", "s_cselect_b32 s65, %d, 0" % ((896 - 32) * 2048), "s_cselect_b32 s62, -1, s62", "s_sub_u32 s61, s61, s65"]
        if par == 1: o.append("s_xor_b32 s64, s64, 0x10000")
    return o
def g2_dma_of(s):
    u = (s + 2) & 7; par = u >> 2; p = 2 * (u & 3)
    return g2_dma(par, p), g2_dma(par, p + 1)
def z_fetch(A, M, t0=7, t1=13, zs=56):
    W = M.WAVE
    M.srd(A, zs, M.PWS, M.WS_Z, M.SZ_Z)
    A("v_lshrrev_b32 v%d, 4, v1" % t0); A("v_and_b32 v%d, 7, v1" % t1); A("v_xor_b32 v%d, v%d, v%d" % (t0, t0, t1)); A("v_lshlrev_b32 v%d, 4, v%d" % (t0, t0))
    A("v_lshrrev_b32 v%d, 3, v1" % t1); A("v_lshl_add_u32 v%d, v%d, 8, v%d" % (t0, t1, t0)); A("v_xor_b32 v%d, 64, v%d" % (t1, t0))
    A("s_lshr_b32 s40, s2, 1"); A("s_lshl_b32 s40, s40, 15"); A("s_and_b32 s41, s2, 1"); A("s_lshl_b32 s41, s41, 7"); A("s_add_u32 s40, s40, s41")
    A("s_lshl_b32 s41, s%d, 13" % W); A("s_add_u32 s40, s40, s41")
    A("s_lshl_b32 s41, s%d, 12" % W); A("s_add_u32 m0, s41, 0x%x" % ZL)
    for p in range(4):
        A("buffer_load_dwordx4 v%d, s[%d:%d], s40 offen%s sc1 lds" % (t0 if p % 2 == 0 else t1, zs, zs + 3, " offset:%d" % (p * 1024) if p else ""))
        A("s_add_u32 s40, s40, 1024")
def i_tabs(A, M): M.tab_dma(A, "i1_000", 96 * 1024, 112 * 1024)
def io_addr(A, M, va, vt):
    A("v_lshrrev_b32 v%d, 2, v1" % va); A("v_lshlrev_b32 v%d, 18, v%d" % (va, va)); A("v_lshl_add_u32 v%d, v2, 13, v%d" % (va, va))
    A("v_and_b32 v%d, 3, v1" % vt); A("v_lshl_add_u32 v%d, v%d, 4, v%d" % (va, vt, va))
    A("s_and_b32 s8, s2, 1"); A("s_lshl_b32 s8, s8, 17"); A("s_bfe_u32 s9, s2, 0x20003"); A("s_lshl_b32 s9, s9, 15"); A("s_add_u32 s8, s8, s9")
    A("s_lshr_b32 s9, s2, 5"); A("s_lshl_b32 s9, s9, 8"); A("s_add_u32 s8, s8, s9"); A("s_bfe_u32 s9, s2, 0x20001"); A("s_lshl_b32 s9, s9, 6"); A("s_add_u32 s8, s8, s9")
    A("s_add_u32 s9, s8, 0x1000")
def x_fetch(A, M, va, vt, sd):
    io_addr(A, M, va, vt); M.srd(A, sd, M.PX, 0, 4 << 20)
    for i in range(4): A("buffer_load_dwordx4 %s, v%d, s[%d:%d], s%d offen offset:%d" % (q("a", 240 + 4 * i), va, sd, sd + 3, 8 + (i >> 1), (i & 1) * 2048))
def g2_early(A):
    for s in range(-10, 0):
        d0, d1 = g2_dma_of(s)
        for y in d0 + d1: A(y)
HB = [192, 196, 208, 212, 224, 228, 240, 244]

def gemm1(A, M):
    W = M.WAVE; VWD = M.VWD
    def dma(b): return (M.dmaW(b, 4) + M.dmaX(b)) if ENV('WFIRST', '0') == '1' else (M.dmaX(b) + M.dmaW(b, 4))
    def acc(it, jt):
        return ("v", 32 + (jt * 8 + it) * 4) if jt < 7 else ("a", 128 + it * 4)
    def reads(buf, st):
        base = 64 * st; hi = buf >> 1; off = (buf & 1) * 32768
        o = []; la = []; lb = []
        for it in range(8):
            mat, t = it >> 2, it & 3
            for h in range(2):
                r = base + 4 * it + 2 * h
                la.append("ds_read_b64_tr_b16 a[%d:%d], v%d offset:%d" % (r, r + 1, (12 if hi else 8) + t, off + h * 8192 + mat * 2048))
        for jt in range(8):
            r = base + 32 + 4 * jt
            lb.append("ds_read_b128 a[%d:%d], v%d offset:%d" % (r, r + 3, 6 if hi else 5, off + jt * 1024))
        for i in range(8): o += [lb[i], la[2 * i], la[2 * i + 1]]
        return o
    def mfmas(st, first=False):
        base = 64 * st; o = []
        for jt in range(8):
            for it in range(8):
                f, d = acc(it, jt); dd = q(f, d)
                o.append("%s %s, %s, %s, %s" % (MF, dd, q("a", base + 4 * it), q("a", base + 32 + 4 * jt), "0" if first else dd))
        return o
    def step(i, dmas, do_read, vm, first=False, rd0=1, mid=None, extra=None):
        m = mfmas(i & 1, first)
        s1 = interleave(m, reads((i + 1) & 3, (i + 1) & 1), rd0, 56 if rd0 > 1 else 52) if do_read else [[] for _ in m]
        dl = []
        for b_ in dmas: dl += dma(b_)
        if extra: dl += extra
        s2 = interleave(m, dl, rd0 if mid is not None else 0, 64) if dl else [[] for _ in m]
        for k, x in enumerate(m):
            A(x)
            if mid is not None and k == rd0 - 1:
                nv = sum(1 for kk in range(k + 1) for y in s2[kk] if y.startswith("buffer"))
                for y in s2[k]: A(y)
                A("s_waitcnt vmcnt(%d)" % (mid + nv)); A("s_barrier")
                continue
            for y in s2[k] + s1[k]: A(y)
        if vm is not None:
            A("s_waitcnt vmcnt(%d) lgkmcnt(0)" % vm); A("s_barrier")
    for x in reads(0, 0): A(x)
    A("s_waitcnt lgkmcnt(0)")
    stamp(A, 6)
    ls = M.late_stores()
    if ENV("NOLS"): A("s_mov_b32 s34, 0")
    wt = [] if ENV("NOWT") else [M.w_touch()]
    if True:
        step(0, [3], True, 14, first=True, rd0=8, mid=6, extra=ls)
        if ENV("G1IT"): stamp(A, 2)
        step(1, [0, 1], True, 16)
        M.set_flag_w0(A, "f2y", 63, 29, 30)
        if ENV("G1IT"): stamp(A, 3)
        step(2, [2], True, 16)
        M.srd(A, 32, M.PWD, 0, 3584 * 2048)
        A("s_sub_u32 s10, s2, 32"); A("s_lshl_b32 s10, s10, 15")
        if ENV("NOWDT"): A("s_mov_b32 s34, 0")
        A("v_mul_u32_u24 v20, 1280, v2"); A("v_lshl_add_u32 v20, v1, 7, v20"); A("v_cmp_lt_u32 vcc, 9, v1"); A("v_cndmask_b32 v20, v20, 2.0, vcc")
        wt = wt + [["buffer_load_dword v18, v20, s[32:35], s10 offen", "s_add_u32 s10, s10, 5120"]]
        io_addr(A, M, 21, 22); M.srd(A, 12, M.PX, 0, 4 << 20)
        A("s_lshl_b32 s11, s%d, 12" % W); A("s_add_u32 s11, s11, 0x%x" % ZL); A("s_mov_b32 s63, s8"); A("s_add_u32 s44, s8, 0x2000")
        wt = wt + [["s_cmp_ge_u32 s63, s44", "s_cselect_b32 s14, 0, s14", "s_cselect_b32 s11, 0x%x, s11" % M.LDS_T2, "s_mov_b32 m0, s11", "s_add_u32 s11, s11, 1024",
                    "buffer_load_dwordx4 v21, s[12:15], s63 offen lds", "s_add_u32 s63, s63, 2048"]]
        step(3, [3], True, 16 + len(wt), extra=wt)
    if ENV("G1IT"): stamp(A, 4)
    A("s_mov_b32 s45, 6")
    A.raw(".p2align 6")
    A.label("g1_loop")
    for i in range(4): step(i, [i], True, 16 + (len(wt) if i != 2 else 0), extra=wt if i == 3 else None)
    if not ENV("NOCPF"):
        A("s_cmp_lg_u32 s45, 2"); A("s_cbranch_scc1 g1_npf")
        if ENV("WDL2"):
            A("s_lshr_b32 s40, s2, 3"); A("s_sub_u32 s40, s40, 4"); A("s_and_b32 s41, s40, 1"); A("s_lshr_b32 s40, s40, 1")
            A("s_bfe_u32 s44, s2, 0x20001"); A("s_mul_i32 s44, s44, 14"); A("s_add_u32 s40, s40, s44"); A("s_lshl_b32 s40, s40, 2"); A("s_add_u32 s40, s40, s41")
            A("s_add_u32 s40, s40, 2"); A("s_lshl_b32 s40, s40, 15")
            A("v_lshlrev_b32 v21, 7, v0"); A("buffer_load_dword v23, v21, s[32:35], s40 offen")
        M.code_srd(A, 4, "g1_npf"); A("s_bfe_u32 s40, s2, 0x20003"); A("s_lshl_b32 s40, s40, 13")
        A("v_lshlrev_b32 v23, 7, v1"); A("v_lshl_add_u32 v23, v2, 11, v23"); A("v_lshrrev_b32 v22, 4, v1"); A("v_lshl_add_u32 v23, v22, 24, v23")
        A("buffer_load_dword v19, v23, s[4:7], s40 offen")
    A.label("g1_npf")
    A("s_sub_u32 s45, s45, 1"); A("s_cmp_lg_u32 s45, 0"); A("s_cbranch_scc1 g1_loop")
    if ENV("G1IT"): stamp(A, 5)
    M.srd(A, 36, M.PWS, M.WS_H, M.SZ_H)
    A("s_bfe_u32 s40, s2, 0x20001"); A("s_lshl_b32 s41, s42, 2"); A("s_add_u32 s41, s41, s40")
    A("s_mul_i32 s40, s40, 7"); A("s_sub_u32 s40, s43, s40")
    A("s_lshl_b32 s55, s41, 3"); A("s_add_u32 s55, s55, s40"); A("s_lshl_b32 s55, s55, 7"); A("s_add_u32 s55, s55, %d" % M.FB)
    A("s_lshl_b32 s40, s40, 1"); A("s_add_u32 s40, s40, s46")
    A("s_mul_i32 s52, s41, 28"); A("s_add_u32 s52, s52, s40"); A("s_lshl_b32 s52, s52, 14"); A("s_lshl_b32 s53, s47, 13"); A("s_add_u32 s52, s52, s53")
    A("s_lshl_b32 s54, s41, 1"); A("s_add_u32 s54, s54, s47"); A("s_lshl_b32 s54, s54, 4"); A("s_add_u32 s54, s54, s40")
    A("s_lshl_b32 s54, s54, 7"); A("s_add_u32 s54, s54, %d" % M.FH)
    A("s_mov_b32 s46, %d" % M.F3)
    DT = [24, 25, 26, 27]
    def grp(B):
        o = [[]]
        for k, t in B.items:
            o[-1].append(t)
            if t.startswith("buffer"): o.append([])
        return [x for x in o if x]
    nv = lambda l: sum(1 for x in l for y in x if y.startswith("buffer"))
    B = Asm(); g2_setup(B, M, DT, 22, 23); su = [[t] for k, t in B.items]
    B = Asm(); i_tabs(B, M); tb = grp(B)
    fl = [["s_bfm_b64 exec, 32, 0", "buffer_load_dword v4, v28, s[%d:%d], s46 offen sc1" % (M.SFL, M.SFL + 3), "s_mov_b64 exec, -1"]]
    e0 = su + [g2_dma(0, p, DT) for p in range(8)]
    xr = [["v_lshl_add_u32 v21, v2, 12, v3", "v_add_u32 v21, 0x%x, v21" % ZL] + ["ds_read_b128 %s, v21 offset:%d" % (q("a", 240 + 4 * i), i * 1024) for i in range(4)]]
    e1 = xr + [g2_dma(1, p, DT) for p in range(8)]
    e2 = [g2_dma(0, p, DT) for p in range(4)]
    step(0, [], True, 8 + nv(e0), extra=e0); step(1, [], True, nv(e0) + nv(e1), extra=e1); step(2, [], True, 63, extra=e2)
    if ENV("G1IT"): stamp(A, 8); stamp(A, 9)
    e3 = [["v_mov_b32 v%d, v%d" % (DV[i], DT[i])] for i in range(4)] + tb + [["v_mov_b32 v7, v28"]]
    step(3, [], False, None, extra=e3)
    stamp(A, 7)
    c0 = math.sqrt(2 / math.pi)
    c1 = -2 * c0 * math.log2(math.e); c2 = c1 * 0.044715
    A("s_mov_b32 s56, 0x%x" % f32(c2)); A("s_mov_b32 s57, s56")
    A("v_mov_b32 v8, 0x%x" % f32(c1)); A("v_mov_b32 v9, v8"); A("v_mov_b32 v10, 1.0"); A("v_mov_b32 v11, 1.0"); A("v_mov_b32 v12, 0")
    n = 0
    for p in range(2):
        for jt in range(8):
            b0 = 32 + (jt % 7) * 32
            g = b0 + 8 * p; u = b0 + 16 + 8 * p
            if jt == 7:
                for i in range(8):
                    A("v_accvgpr_read_b32 v%d, a%d" % (g + i, 128 + 8 * p + i)); A("v_accvgpr_read_b32 v%d, a%d" % (u + i, 144 + 8 * p + i))
            T = 16 + 8 * (n % 2); n += 1
            H4 = range(0, 8, 2)
            for e in H4: A("v_pk_mul_f32 %s, %s, %s" % (p2(T + e), p2(g + e), p2(g + e)))
            for e in H4: A("v_pk_fma_f32 %s, %s, s[56:57], v[8:9]" % (p2(T + e), p2(T + e)))
            for e in H4: A("v_pk_mul_f32 %s, %s, %s" % (p2(T + e), p2(T + e), p2(g + e)))
            for e in range(8): A("v_exp_f32 v%d, v%d" % (T + e, T + e))
            for e in H4: A("v_pk_mul_f32 %s, %s, %s" % (p2(u + e), p2(u + e), p2(g + e)))
            for e in H4: A("v_pk_add_f32 %s, %s, v[10:11]" % (p2(T + e), p2(T + e)))
            for e in range(8): A("v_rcp_f32 v%d, v%d" % (T + e, T + e))
            A("s_add_u32 s53, s52, 0x%x" % (p * 14 * 16384 + (jt >> 2) * 4096))
            for e in H4: A("v_pk_mul_f32 %s, %s, %s" % (p2(u + e), p2(u + e), p2(T + e)))
            dst = g
            for e in range(4): A("v_cvt_pk_bf16_f32 v%d, v%d, v%d" % (dst + e, u + 2 * e, u + 2 * e + 1))
            A("buffer_store_dwordx4 %s, v3, s[36:39], s53 offen offset:%d%s" % (q("v", g), (jt & 3) * 1024, " sc1"))
            if p == 0 and jt == 5:
                for y in fl[0]: A(y.replace("v28", "v7"))
            if p == 1 and jt == 1:
                if ENV("EIT"): stamp(A, 2)
                A("s_waitcnt vmcnt(4)")
                A("v_cmp_ne_u32 vcc, s%d, v4" % M.TOK); A("s_nop 1"); A("s_mov_b32 vcc_hi, 0"); A("s_nop 3")
                A("s_cbranch_vccz pd_f3g")
                M.poll(A, "f3g", 46, 7, 4, 32, sleep=4)
                if ENV("EIT"): stamp(A, 3)
                z_fetch(A, M, zs=32)
            if p == 1 and jt == int(ENV("FLAGA", "3")):
                A("s_waitcnt vmcnt(%d)" % (jt + 1 + 4))
                M.set_flag(A, 54, 12, 4)
                if ENV("EIT"): stamp(A, 4)
    if ENV("EIT"): stamp(A, 5)
    A("s_waitcnt vmcnt(7)")
    A("s_mov_b32 s58, 1")

def gemm2(A, M):
    W = M.WAVE
    if not ENV("G1IT"): stamp(A, 8)
    io_addr(A, M, 28, 29)
    XR, SR = 176, 192
    def io(i): return "s%d offen offset:%d" % (8 + (i >> 1), (i & 1) * 2048)
    for i in range(16): A("v_accvgpr_read_b32 v%d, a%d" % (XR + i, 240 + i))
    A("s_barrier")
    ZD, D1, DS, PK, ITW, TT = 32, 48, 80, 112, 128, 144
    A("v_lshrrev_b32 v20, 1, v1"); A("v_and_b32 v20, 7, v20"); A("v_lshlrev_b32 v21, 1, v2"); A("v_xor_b32 v20, v20, v21"); A("v_lshlrev_b32 v20, 4, v20")
    A("v_lshl_add_u32 v20, v1, 7, v20"); A("v_add_u32 v20, 0x%x, v20" % ZL); A("v_xor_b32 v21, 16, v20")
    for k in range(2):
        for dh in range(2): A("ds_read_b128 %s, v%d offset:%d" % (q("v", ZD + 8 * k + 4 * dh), 20 + k, dh * 8192))
    A("v_add_u32 v23, 0x%x, v3" % (96 * 1024))
    for dh in range(2):
        for bh in range(2):
            for part in range(2): M.tab_read(A, q("a", I1 + 16 * bh + 8 * part + 4 * dh), "i1_%d%d%d" % (bh, part, dh), "i1_000", 23, 16384)
    for bh in range(2):
        for part in range(2): M.tab_read(A, q("a", I1S + 8 * bh + 4 * part), "i1s_%d%d" % (bh, part), "i1_000", 23, 16384)
    for bh in range(2):
        for part in range(2): M.tab_read(A, q("v", ITW + 8 * bh + 4 * part), "itw%d%d" % (bh, part), "i1_000", 23, 16384)
    for ah in range(2): M.tab_read(A, q("a", I2 + 4 * ah), "i2_%d" % ah, "i1_000", 23, 16384)
    A("v_and_b32 v22, 15, v1"); A("v_lshlrev_b32 v22, 10, v22"); A("v_lshrrev_b32 v23, 4, v1"); A("v_lshl_add_u32 v22, v23, 4, v22")
    A("s_and_b32 s40, s2, 1"); A("s_lshl_b32 s40, s40, 9"); A("s_lshl_b32 s41, s%d, 7" % W); A("s_add_u32 s40, s40, s41")
    A("s_lshr_b32 s41, s2, 1"); A("s_lshl_b32 s41, s41, 15"); A("s_add_u32 s40, s40, s41"); A("s_add_u32 s41, s40, 0x4000")
    A("s_mov_b32 s69, s58")
    M.srd(A, 56, M.PWS, M.WS_S, M.SZ_S)
    A("s_mov_b64 s[46:47], 0xffff")
    A("s_waitcnt lgkmcnt(6)")
    def mm(d, a, b, c=None):
        A("%s %s, %s, %s, %s" % (MF, q("v", d), a, b, "0" if c is None else q("v", c)))
    for k in range(2):
        for dh in range(2):
            for bh in range(2):
                for part in range(2):
                    d = D1 + 16 * k + 8 * bh + 4 * part
                    mm(d, q("v", ZD + 8 * k + 4 * dh), q("a", I1 + 16 * bh + 8 * part + 4 * dh), None if dh == 0 else d)
        for bh in range(2):
            for part in range(2):
                mm(DS + 16 * k + 8 * bh + 4 * part, q("v", ZD + 8 * k + 4 * part), q("a", I1S + 8 * bh + 4 * part))
    neg = " neg_lo:[1,0,0] neg_hi:[1,0,0]"
    A("s_waitcnt lgkmcnt(0)")
    for k in range(2):
        for x in range(4):
            A("v_cndmask_b32 v%d, v%d, v%d, s[46:47]" % (D1 + 16 * k + 4 * x, D1 + 16 * k + 4 * x, DS + 16 * k + 4 * x))
        for bh in range(2):
            re = D1 + 16 * k + 8 * bh; im = re + 4; tc = ITW + 8 * bh; ts = tc + 4; t = TT + 8 * bh
            for h in (0, 2): A("v_pk_mul_f32 %s, %s, %s" % (p2(t + h), p2(re + h), p2(tc + h)))
            for h in (0, 2): A("v_pk_mul_f32 %s, %s, %s" % (p2(t + 4 + h), p2(im + h), p2(tc + h)))
            for h in (0, 2): A("v_pk_fma_f32 %s, %s, %s, %s%s" % (p2(t + h), p2(im + h), p2(ts + h), p2(t + h), neg))
            for h in (0, 2): A("v_pk_fma_f32 %s, %s, %s, %s" % (p2(t + 4 + h), p2(re + h), p2(ts + h), p2(t + 4 + h)))
            for r in range(4): A("v_cvt_pk_bf16_f32 v%d, v%d, v%d" % (PK + 8 * k + 4 * bh + r, t + r, t + 4 + r))
    for k in range(2):
        for ah in range(2):
            for bh in range(2): mm(D1 + 16 * k + 8 * ah + 4 * bh, q("v", PK + 8 * k + 4 * bh), q("a", I2 + 4 * ah))
    ACC = 32; AF, HR = 0, 128
    RA = 232
    A("v_lshl_add_u32 v4, v2, 12, v3")
    A("v_lshrrev_b32 v24, 2, v1"); A("v_lshlrev_b32 v25, 8, v24"); A("v_and_b32 v26, 3, v1"); A("v_lshl_add_u32 v25, v26, 3, v25")
    A("v_and_b32 v24, 7, v24"); A("s_lshl_b32 s45, s44, 1"); A("v_xor_b32 v24, s45, v24")
    for t in range(8):
        A("v_xor_b32 v26, %d, v24" % t); A("v_lshl_add_u32 v%d, v26, 5, v25" % (RA + t)); A("v_add_u32 v%d, 0x10000, v%d" % (RA + 8 + t, RA + t))
    A("v_mov_b32 v12, 0"); A("v_lshlrev_b32 v13, 7, v1")
    SO = 160
    for k in range(2):
        for x in range(8): A("v_cvt_pk_bf16_f32 v%d, v%d, v%d" % (SO + 8 * k + x, D1 + 16 * k + 2 * x, D1 + 16 * k + 2 * x + 1))
    A("s_lshl_b32 s60, s42, 2"); A("s_add_u32 s60, s60, s44")
    A("s_lshl_b32 s47, s60, 10"); A("s_add_u32 s47, s47, %d" % M.FB)
    A("s_lshl_b32 s46, s60, 1"); A("s_lshr_b32 s45, s%d, 1" % W); A("s_add_u32 s46, s46, s45"); A("s_lshl_b32 s46, s46, 11"); A("s_add_u32 s46, s46, %d" % M.FH)
    A("s_mul_i32 s60, s60, %d" % (28 * 16384))
    M.poll(A, "fa", 46, 13, 31, 14, sleep=4)
    if not ENV("G1IT") and ENV("RIT") != "2": stamp(A, 9)
    M.srd(A, 32, M.PWS, M.WS_H, M.SZ_H)
    def hload(s, jt):
        o = ["buffer_load_dwordx4 %s, v4, s[32:35], s60 offen offset:%d%s" % (q("a", HR + 16 * (s & 7) + 4 * jt), jt * 1024, M.HLD)]
        if jt == 3: o.append("s_add_u32 s60, s60, 0x4000")
        return o
    NK = 28; R = 8; LA = int(ENV("G2LA", "6"))
    units = [[(s_, tuple(range(8)))] for s_ in range(NK - R)]
    for d in (3, 2, 1, 0):
        for s_ in range(NK - R, NK, 4): units.append([(s_ + i, (2 * d, 2 * d + 1)) for i in range(4)])
    def frs(u):
        o = []
        for s_, tl in units[u]:
            for t in tl: o.append((s_, t, AF + 32 * (u & 3) + 4 * len(o)))
        return o
    def ureads(u):
        o = []
        for s_, t, r in frs(u):
            for h in range(2):
                o.append("ds_read_b64_tr_b16 a[%d:%d], v%d offset:%d" % (r + 2 * h, r + 2 * h + 1, RA + 8 * ((s_ >> 3) & 1) + t, (s_ & 7) * 8192 + h * 4096))
        return o
    vm = []
    NH0 = 3
    for s_ in range(NH0):
        for jt in range(4):
            for y in hload(s_, jt): A(y)
            vm.append(("H", s_))
    for x in ureads(0) + ureads(1): A(x)
    lg = [0] * 16 + [1] * 16
    A("s_lshl_b32 s53, s2, 2"); A("s_add_u32 s53, s53, s%d" % W); A("s_mul_i32 s52, s53, %d" % (3 * 4096)); A("s_lshl_b32 s53, s53, 9"); A("s_add_u32 s53, s53, %d" % M.FX)
    A("s_lshl_b32 s54, s2, 7"); A("s_add_u32 s54, s54, %d" % M.FS)
    A("s_lshl_b32 s46, s42, 12"); A("s_lshl_b32 s45, s%d, 10" % W); A("s_add_u32 s46, s46, s45"); A("s_add_u32 s46, s46, %d" % M.FS)
    M.srd(A, 36, M.PWS, M.WS_XC, M.SZ_XC)
    A("v_and_b32 v21, 15, v1"); A("v_mul_u32_u24 v16, 80, v21"); A("v_lshrrev_b32 v21, 4, v1"); A("v_lshl_add_u32 v16, v21, 3, v16"); A("v_lshl_add_u32 v16, v2, 13, v16")
    A("v_lshrrev_b32 v21, 2, v1"); A("v_mul_u32_u24 v17, 80, v21"); A("v_and_b32 v21, 3, v1"); A("v_lshl_add_u32 v17, v21, 4, v17"); A("v_lshl_add_u32 v17, v2, 13, v17")
    FL = "s[%d:%d]" % (M.SFL, M.SFL + 3)
    def quick(tag, vd, nl, soff):
        A("v_cmp_ne_u32 vcc, s%d, v%d" % (M.TOK, vd)); A("s_nop 1"); A("s_bfm_b64 s[66:67], %d, 0" % nl); A("s_and_b64 vcc, vcc, s[66:67]"); A("s_nop 3")
        A("s_cbranch_vccz pd_%s" % tag)
        M.poll(A, tag, soff, 13, vd, nl)
    def vwait(tags):
        last = max([i for i, t in enumerate(vm) if t in tags] + [-1])
        return min(63, len(vm) - 1 - last)
    def lwait(u):
        last = max(i for i, t in enumerate(lg) if t == u)
        return min(15, len(lg) - 1 - last)
    cert = 0; hnext = NH0
    UFB = 14 - LA
    for u in range(len(units)):
        ks = [x[0] for x in units[u]]
        need = [("H", k) for k in ks]
        nxt = max(x[0] for x in units[u + 2]) >> 2 if u + 2 < len(units) else 0
        bar = nxt > cert
        if bar: need.append(("W", nxt))
        if u == 14: need += [("S", 0)]
        if u == UFB: need += [("fb", 0)]
        if u == 21: need += [("fs", 0)]
        sd = {22: 3, 24: 2, 26: 1}.get(u); fd = {25: 3, 27: 2}.get(u)
        if fd: need += [("X", fd)]
        A("s_waitcnt vmcnt(%d) lgkmcnt(%d)" % (vwait(need), lwait(u)))
        if bar: A("s_barrier"); cert = nxt
        if u == 2:
            assert bar
            A("s_cmp_lg_u32 s%d, 0" % W); A("s_cbranch_scc1 g2_np")
            A("s_cmp_eq_u32 s69, 0"); A("s_cbranch_scc1 g2_np")
            M.set_flag(A, 55, 12, 25)
            A.label("g2_np")
        if u == 14:
            assert bar
            M.set_flag_w0(A, "fs", 54, 12, 25)
        if u == UFB: quick("fb", 18, 7, 47)
        if u == 21: quick("fs", 19, 8, 46)
        if ENV("FIT") and u in (20, 24): stamp(A, 2 + (u - 20) // 4)
        if ENV("G2IT") and u % 4 == 0 and u < 24: stamp(A, 2 + u // 4)
        rd = ureads(u + 2) if u + 2 < len(units) else []
        fr = frs(u)
        ex = [[] for _ in range(32)]
        def flagst(d):
            return ["s_xor_b32 s45, s53, 0x%x" % (d << 12), "v_mov_b32 v25, s%d" % M.TOK, "s_mov_b64 exec, 1",
                    "buffer_store_dword v25, v12, %s, s45 offen offset:%d sc1" % (FL, (d - 1) * 128), "s_mov_b64 exec, -1"]
        if fd: ex[1].append((flagst(fd), ("F", fd)))
        if u < NK - R:
            iv = (u + 10) >> 2
            if iv < 6:
                d0, d1 = g2_dma_of(u); ex[5].append((d0, ("W", iv))); ex[21].append((d1, ("W", iv)))
            elif u in (14, 15):
                for i in range(2):
                    d0, d1 = g2_dma_of(14 + 2 * (u - 14) + i); ex[5 + 16 * i].append((d0, ("W", 6))); ex[9 + 16 * i].append((d1, ("W", 6)))
            tgt = min(NK, u + 1 + LA + (2 if u >= NK - R - 3 else 0), u + 8)
            n = min(2, tgt - hnext)
            last = u == NK - R - 1
            for i in range(n):
                assert hnext < 14 or u >= UFB
                for jt in range(4): ex[jt if last else (2 + 16 * i + 4 * jt) if n == 2 else (3 + 8 * jt)].append((hload(hnext, jt), ("H", hnext)))
                hnext += 1
            if last:
                assert n <= 1 and hnext == u + 8
                for jt in range(4): ex[8 * jt + 7].append((hload(hnext, jt), ("H", hnext)))
                hnext += 1
        for i in ((2 * u - 16, 2 * u - 15) if u in (8, 9) else ()):
            ex[15 + 16 * (i & 1)].append((["buffer_store_dwordx4 %s, v22, s[56:59], s%d offen offset:%d sc1" % (q("v", SO + 4 * i), 40 + (i & 1), (i >> 1) * 64)], ("S", 0)))
        if u == UFB - 3: ex[29].append((["s_bfm_b64 exec, 7, 0", "buffer_load_dword v18, v13, %s, s47 offen sc1" % FL, "s_mov_b64 exec, -1"], ("fb", 0)))
        if u == 18: ex[29].append((["s_bfm_b64 exec, 8, 0", "buffer_load_dword v19, v13, %s, s46 offen sc1" % FL, "s_mov_b64 exec, -1"], ("fs", 0)))
        if u == 21:
            ex[0].append((["s_lshl_b32 s6, s42, 19", "s_lshl_b32 s7, s%d, 17" % W, "s_add_u32 s6, s6, s7", "s_lshl_b32 s7, s43, 12", "s_add_u32 s6, s6, s7", "s_lshl_b32 s7, s44, 10", "s_add_u32 s6, s6, s7"], None))
            for i in range(4): ex[3 + 8 * i].append((["buffer_load_dwordx4 %s, v3, s[56:59], s6 offen sc1" % q("v", SR + 4 * i), "s_add_u32 s6, s6, 0x8000"], ("s", 0)))
        if u == 27: ex[0].append((["s_bfm_b64 exec, 3, 0", "buffer_load_dword v24, v13, %s, s53 offen sc1" % FL, "s_mov_b64 exec, -1"], ("fx", 0)))
        if sd:
            b0 = ACC + 32 * sd
            ex[0].append((["s_xor_b32 s45, s2, %d" % (sd << 1), "s_lshl_b32 s45, s45, 2", "s_add_u32 s45, s45, s%d" % W, "s_mul_i32 s45, s45, %d" % (3 * 4096), "s_add_u32 s45, s45, %d" % ((sd - 1) * 4096)], None))
            for i in range(4):
                for e in range(4): ex[4 + 4 * i + e].append((["v_cvt_pk_bf16_f32 v%d, v%d, v%d" % (b0 + 8 * i + e, b0 + 8 * i + 2 * e, b0 + 8 * i + 2 * e + 1)], None))
                ex[8 + 4 * i].append((["buffer_store_dwordx4 %s, v3, s[36:39], s45 offen offset:%d sc1" % (q("v", b0 + 8 * i), i * 1024)], ("X", sd)))
        k = 0
        if len(units[u]) == 1: seq = [(f, jt) for jt in range(4) for f in fr]
        else: seq = [(f, jt) for f in fr for jt in range(4)]
        for i, ((s_, t, r), jt) in enumerate(seq):
            d = q("v", ACC + 16 * t + 4 * jt)
            A("%s %s, %s, %s, %s" % (MF, d, q("a", r), q("a", HR + 16 * (s_ & 7) + 4 * jt), "0" if s_ == 0 else d))
            if i % 2 == 0 and i // 2 < len(rd): A(rd[i // 2]); lg.append(u + 2)
            for ins, tag in ex[i]:
                for y in ins:
                    A(y)
                    if y.startswith("buffer"): vm.append(tag)
    assert hnext == NK
    if ENV("RIT") != "2": stamp(A, 10)
    nl2e = -math.log2(math.e)
    A("s_mov_b32 s56, 0x%x" % f32(nl2e)); A("s_mov_b32 s57, s56"); A("s_mov_b32 s59, 0xffff0000")
    A("v_mov_b32 v26, 1.0"); A("v_mov_b32 v27, 1.0")
    A("s_waitcnt vmcnt(%d)" % vwait([("X", 1), ("fx", 0)]))
    for y in flagst(1): A(y)
    if ENV("FIT"): stamp(A, 4)
    UX, US, PB = 64, 96, 128
    H4 = range(0, 8, 2)
    def pl(d):
        A("s_add_u32 s45, s52, %d" % (d * 4096))
        for i in range(4): A("buffer_load_dwordx4 %s, v3, s[36:39], s45 offen offset:%d sc1" % (q("v", PB + 16 * d + 4 * i), i * 1024))
    def unp():
        for i in range(16):
            A("v_lshlrev_b32 v%d, 16, v%d" % (UX + 2 * i, XR + i)); A("v_and_b32 v%d, s59, v%d" % (UX + 2 * i + 1, XR + i))
            A("v_lshlrev_b32 v%d, 16, v%d" % (US + 2 * i, SR + i)); A("v_and_b32 v%d, s59, v%d" % (US + 2 * i + 1, SR + i))
    A("v_cmp_ne_u32 s[10:11], s%d, v24" % M.TOK); A("s_nop 1")
    A("s_and_b32 s11, s10, 6"); A("s_cbranch_scc0 pd_fx2")
    A("s_add_u32 s45, s53, 128")
    M.poll(A, "fx2", 45, 13, 24, 2, sleep=1)
    if ENV("FIT"): stamp(A, 5)
    pl(2); pl(1)
    A("s_and_b32 s11, s10, 1"); A("s_cbranch_scc0 pd_fx1")
    M.poll(A, "fx1", 53, 13, 24, 1, sleep=1)
    pl(0)
    unp()
    A("s_barrier")
    A("s_waitcnt vmcnt(4)")
    if ENV("FIT"): stamp(A, 6)
    M.srd(A, 12, M.POUT, 0, 4 << 20)
    def addp(t, d, tt):
        for e in range(4):
            A("v_lshlrev_b32 v%d, 16, v%d" % (tt + 2 * e, PB + 16 * d + 4 * t + e)); A("v_and_b32 v%d, s59, v%d" % (tt + 2 * e + 1, PB + 16 * d + 4 * t + e))
        for e in H4: A("v_pk_add_f32 %s, %s, %s" % (p2(ACC + 8 * t + e), p2(ACC + 8 * t + e), p2(tt + e)))
    for t in range(4):
        for d in (2, 1): addp(t, d, 208 + 8 * d)
    for t in range(4):
        b = 8 * t; T = 208 + 8 * (t & 1)
        A("s_waitcnt vmcnt(%d)" % (3 - t))
        if ENV("FIT") and t == 0: stamp(A, 7)
        addp(t, 0, T)
        for e in H4: A("v_pk_mul_f32 %s, %s, s[56:57]" % (p2(T + e), p2(ACC + b + e)))
        for e in range(8): A("v_exp_f32 v%d, v%d" % (T + e, T + e))
        A("s_nop 0")
        for e in H4: A("v_pk_add_f32 %s, %s, v[26:27]" % (p2(T + e), p2(T + e)))
        for e in range(8): A("v_rcp_f32 v%d, v%d" % (T + e, T + e))
        A("s_nop 0")
        for e in H4: A("v_pk_mul_f32 %s, %s, %s" % (p2(ACC + b + e), p2(ACC + b + e), p2(T + e)))
        for e in range(4): A("v_cvt_pk_bf16_f32 v%d, v%d, v%d" % (SR + 4 * t + e, ACC + b + 2 * e, ACC + b + 2 * e + 1))
        for u in range(2):
            A("ds_write_b64 v16, %s offset:%d" % (p2(SR + 4 * t + 2 * u), (2 * (t & 1) + u) * 16 * 80 + (t >> 1) * 32))
    A("s_waitcnt lgkmcnt(0)")
    for i in range(4): A("ds_read_b128 %s, v17 offset:%d" % (q("v", ACC + 4 * i), i * 16 * 80))
    for i in range(4):
        A("s_waitcnt lgkmcnt(%d)" % (3 - i))
        T = 208 + 8 * (i & 1)
        for e in range(4):
            A("v_lshlrev_b32 v%d, 16, v%d" % (T + 2 * e, ACC + 4 * i + e)); A("v_and_b32 v%d, s59, v%d" % (T + 2 * e + 1, ACC + 4 * i + e))
        for e in H4: A("v_pk_fma_f32 %s, %s, %s, %s" % (p2(UX + 8 * i + e), p2(US + 8 * i + e), p2(T + e), p2(UX + 8 * i + e)))
        for e in range(4): A("v_cvt_pk_bf16_f32 v%d, v%d, v%d" % (XR + 4 * i + e, UX + 8 * i + 2 * e, UX + 8 * i + 2 * e + 1))
        A("buffer_store_dwordx4 %s, v28, s[12:15], %s" % (q("v", XR + 4 * i), io(i)))
    if G.STAMP:
        A("s_waitcnt vmcnt(0)")
        stamp(A, 11); A("s_memrealtime s[100:101]"); A("s_waitcnt lgkmcnt(0)")
        G.stamp_out(A, 0, 12, M.PWS, "all")
        A("v_mov_b32 v2, s100"); A("buffer_store_dword v2, v1, s[96:99], 0 offen offset:48")

def colfft(A, M):
    W_ = M.WAVE
    DAT, FA, FE = 128, 160, 176
    W, T1, T2, D, P, TMP = 8, 40, 48, 104, 168, 200
    A("s_waitcnt lgkmcnt(0)")
    M.flat(A, M.late_stores())
    M.srd(A, 36, M.PWS, M.WS_WT, M.SZ_WT)
    A("v_mov_b32 v240, 0"); A("v_lshlrev_b32 v242, 7, v1")
    RB = M.RB
    A("s_barrier")
    if ENV("RIT") == "2": stamp(A, 2)
    M.filt_dma(A, 1)
    if ENV("RIT") == "2": stamp(A, 9)
    A("s_waitcnt vmcnt(11)"); A("s_barrier")
    M.set_flag_w0(A, "f2f", 63, 240, 241)
    if ENV("RIT") == "2": stamp(A, 10)
    A("v_and_b32 v232, 7, v0"); A("v_lshrrev_b32 v233, 3, v0")
    A("v_lshlrev_b32 v235, 16, v233"); A("v_lshl_add_u32 v235, v232, 4, v235")
    A("v_mul_u32_u24 v236, 1026, v232"); A("v_and_b32 v236, -4, v236"); A("v_lshl_add_u32 v236, v233, 4, v236"); A("v_add_u32 v237, 0x%x, v236" % RB)
    A("v_and_b32 v239, 1, v0"); A("v_lshlrev_b32 v239, 4, v239")
    A("s_lshl_b32 s43, s2, 8"); A("s_mov_b32 s48, 0x05040100"); A("s_mov_b32 s49, 0x07060302")
    A("s_lshl_b32 s41, s2, 6"); A("v_add_u32 v200, s41, v1"); A("v_sub_u32 v201, 2048, v200"); A("v_and_b32 v201, 0x7ff, v201")
    A("v_mul_u32_u24 v202, 1026, v200"); A("v_mul_u32_u24 v201, 1026, v201")
    names = []
    for inv in range(2):
        for part in range(2): names.append(("fa_%d%d" % (inv, part), ar(FA + 8 * inv + 4 * part, 4)))
    for ih in range(2): names.append(("fe32_%d" % ih, ar(FE + 4 * ih, 4)))
    for nm, r in names: G.tab_load(A, r, nm, 3, M.STAB, 42)
    A("v_and_b32 v8, 15, v1"); A("v_lshrrev_b32 v9, 4, v1"); A("v_lshlrev_b32 v9, 2, v9")
    for r in range(4):
        A("v_add_u32 v10, %d, v9" % r); A("v_mul_u32_u24 v11, v10, v8"); A("v_lshl_add_u32 v10, v10, 4, v8")
        A("v_cvt_f32_u32 v11, v11"); A("v_cvt_f32_u32 v%d, v10" % (12 + r)); A("v_mul_f32 v11, 0x%x, v11" % f32(1.0 / 256))
        A("v_cos_f32 v%d, v11" % (T1 + r)); A("v_sin_f32 v%d, v11" % (T1 + 4 + r))
    for e in range(1, 8):
        for r in range(4):
            A("v_mul_f32 v%d, 0x%x, v%d" % (16 + r, f32(e / 2048.0), 12 + r))
        for r in range(4):
            A("v_cos_f32 v%d, v%d" % (T2 + 8 * (e - 1) + r, 16 + r)); A("v_sin_f32 v%d, v%d" % (T2 + 8 * (e - 1) + 4 + r, 16 + r))
    A("s_waitcnt vmcnt(%d)" % len(names)); A("s_barrier")
    if ENV("RIT"): stamp(A, 3)
    A("s_cmp_lg_u32 s%d, %d" % (W_, 9 if ENV("NOAB") else 0)); A("s_cbranch_scc1 r_noabl")
    for i, (va, sd, off) in enumerate([(202, 52, 0), (202, 56, 0), (201, 52, 0), (201, 56, 0), (202, 52, 1024), (202, 56, 1024), (201, 52, 1024), (201, 56, 1024)]):
        A("buffer_load_ushort v%d, v%d, s[%d:%d], 0 offen offset:%d" % (208 + i, va, sd, sd + 3, off))
    A.label("r_noabl")
    A("s_lshl_b32 s44, s%d, 13" % W_); A("s_add_u32 s44, s44, %d" % M.F2)
    def rrd(n):
        HL = 104 + 48 * (n & 1)
        for r in range(4):
            for mm_ in range(2):
                for d in range(5): A("ds_read_b32 v%d, v%d offset:%d" % (HL + 12 * r + 6 * mm_ + d, 236 + mm_, (8 * (n >> 1) + 16 * r) * 1026 + (n & 1) * 512 + 4 * d))
    rrd(0)
    for n in range(4):
        HL = 104 + 48 * (n & 1); WO = 8
        A("s_waitcnt lgkmcnt(0)")
        if n + 1 < 4: rrd(n + 1)
        for r in range(4):
            for mm_ in range(2):
                b = HL + 12 * r + 6 * mm_
                for d in range(4): A("v_alignbit_b32 v%d, v%d, v%d, v239" % (b + d, b + d + 1, b + d))
        for c in range(8):
            for r in range(4): A("v_perm_b32 v%d, v%d, v%d, s%d" % (WO + 4 * c + r, HL + 12 * r + 6 + (c >> 1), HL + 12 * r + (c >> 1), 48 + (c & 1)))
            A("s_add_u32 s41, s43, 0x%x" % (((n & 1) << 21) + (n >> 1) * 128 + c * 8192))
            A("buffer_store_dwordx4 %s, v235, s[36:39], s41 offen sc1" % q("v", WO + 4 * c))
    A("s_cmp_lg_u32 s%d, 0" % W_); A("s_cbranch_scc1 r_noab")
    A("s_waitcnt vmcnt(32)")
    for i in range(8): A("v_lshlrev_b32 v%d, 16, v%d" % (208 + i, 208 + i))
    A("v_add_f32 v216, v208, v210"); A("v_sub_f32 v217, v209, v211"); A("v_add_f32 v218, v212, v214"); A("v_sub_f32 v219, v213, v215")
    A("v_add_f32 v220, v216, v218"); A("v_add_f32 v221, v217, v219"); A("v_sub_f32 v222, v216, v218"); A("v_sub_f32 v223, v217, v219")
    for i in range(4): A("v_mul_f32 v%d, 0x3e800000, v%d" % (220 + i, 220 + i))
    A("v_cvt_pk_bf16_f32 v220, v220, v221"); A("v_cvt_pk_bf16_f32 v222, v222, v223")
    A("v_and_b32 v216, 15, v200"); A("v_lshlrev_b32 v216, 4, v216"); A("v_bfe_u32 v217, v200, 4, 2"); A("v_lshl_add_u32 v216, v217, 2, v216")
    A("v_lshrrev_b32 v217, 6, v200"); A("v_lshl_add_u32 v216, v217, 8, v216")
    A("s_mov_b32 s40, 0x%x" % (512 * 8192)); A("s_mov_b32 s41, 0x%x" % (513 * 8192))
    A("buffer_store_dword v220, v216, s[36:39], s40 offen sc1"); A("buffer_store_dword v222, v216, s[36:39], s41 offen sc1")
    A.label("r_noab")
    A("buffer_load_dword v244, v242, s[%d:%d], s44 offen sc1" % (M.SFL, M.SFL + 3))
    if ENV("RIT") == "1": stamp(A, 2)
    A("v_and_b32 v4, 15, v1"); A("v_lshrrev_b32 v5, 4, v1")
    A("v_lshlrev_b32 v6, 6, v4"); A("v_lshl_add_u32 v6, v5, 4, v6")
    for k in range(4):
        A("v_add_u32 v7, %d, v5" % (4 * k)); A("v_xor_b32 v7, v7, v4"); A("v_lshlrev_b32 v7, 4, v7"); A("v_lshl_add_u32 v%d, v5, 8, v7" % (232 + k))
    A("v_lshrrev_b32 v7, 5, v1"); A("v_lshlrev_b32 v7, 3, v7"); A("v_bfe_u32 v236, v1, 4, 1"); A("v_or_b32 v7, v7, v236"); A("v_xor_b32 v7, v7, v4")
    A("v_lshlrev_b32 v7, 4, v7"); A("v_lshl_add_u32 v236, v4, 8, v7"); A("v_lshl_add_u32 v236, v2, 15, v236")
    A("v_add_u32 v4, 0x1000, v3")
    A("s_lshl_b32 s51, s2, 2"); A("s_add_u32 s51, s51, s%d" % W_)
    A("s_and_b32 s41, s51, 15"); A("s_bfe_u32 s42, s51, 0x20004"); A("s_lshl_b32 s42, s42, 7")
    A("s_add_u32 s40, s41, s42")
    A("s_sub_u32 s43, 32, s41"); A("s_cmp_eq_u32 s41, 0"); A("s_cselect_b32 s43, 16, s43")
    A("s_add_u32 s43, s43, 480"); A("s_sub_u32 s43, s43, s42")
    A("s_cmp_ge_u32 s51, 64"); A("s_cselect_b32 s40, s43, s40"); A("s_cselect_b32 s50, -1, 1"); A("s_lshl_b32 s50, s50, 18")
    A("s_lshl_b32 s40, s40, 13")
    M.srd(A, 52, M.PWS, M.WS_Y, M.SZ_Y); M.srd(A, 56, M.PWS, M.WS_Z, M.SZ_Z)
    A("s_waitcnt vmcnt(0)")
    A("v_cmp_ne_u32 vcc, s%d, v244" % M.TOK); A("s_nop 4"); A("s_cbranch_vccz pd_f2")
    M.poll(A, "f2", 44, 242, 244, 64, sleep=4)
    A("s_barrier")
    A("s_add_u32 s63, s63, %d" % (M.F2B - M.F2))
    M.set_flag_w0(A, "f2fb", 63, 240, 241)
    stamp(A, 5)
    A("s_lshl_b32 s41, s51, 15"); A("s_lshl_b32 s42, s%d, 15" % W_)
    for e in range(8):
        A("s_add_u32 m0, s42, %d" % (e * 4096))
        for k in range(4): A("buffer_load_dwordx4 v%d, s[52:55], s41 offen offset:%d sc1 lds" % (232 + k, k * 1024))
        A("s_add_u32 s41, s41, 4096")
    def wload(dst, f, so):
        for e in range(8):
            A("buffer_load_dwordx4 %s, v%d, s[36:39], s%d offen offset:%d sc1" % (q(f, dst + 4 * e), 3 if e < 4 else 4, so, (e & 3) * 1024))
    A("s_mov_b32 s48, 0"); A("s_mov_b32 s49, 0xffff0000")
    def yread():
        for e in range(8): A("ds_read_b128 %s, v237 offset:%d" % (q("a", DAT + 4 * e), e * 4096))
    A("v_mov_b32 v237, v236")
    A("s_cmp_eq_u32 s51, 0"); A("s_cselect_b32 s62, 0x%x, s40" % (512 * 8192))
    A("s_mov_b32 s44, %d" % M.F2B)
    M.poll(A, "f2b", 44, 242, 244, 32, sleep=2, first_hook=yread)
    wload(W, "v", 62)
    A("s_cmp_lg_u32 s51, 0"); A("s_cbranch_scc1 cf_nb")
    A("s_mov_b32 s43, 0x%x" % (513 * 8192))
    wload(208, "a", 43)
    A.label("cf_nb")
    stamp(A, 6)
    A.label("cf_loop")
    A("s_waitcnt lgkmcnt(0)")
    def mm(d, a, b, c=None):
        A("%s %s, %s, %s, %s" % (MF, q("v", d), a, b, "0" if c is None else q("v", c)))
    tctr = [0]
    def tw_quads(dsts, re, tc, conj, TMP=TMP):
        t = TMP + 8 * (tctr[0] % 4); tctr[0] += 1
        im = re + 4; ts = tc + 4
        neg = " neg_lo:[1,0,0] neg_hi:[1,0,0]"
        for h in (0, 2): A("v_pk_mul_f32 %s, %s, %s" % (p2(t + h), p2(re + h), p2(tc + h)))
        for h in (0, 2): A("v_pk_mul_f32 %s, %s, %s" % (p2(t + 4 + h), p2(im + h), p2(tc + h)))
        for h in (0, 2): A("v_pk_fma_f32 %s, %s, %s, %s%s" % (p2(t + h), p2(im + h), p2(ts + h), p2(t + h), neg if conj else ""))
        for h in (0, 2): A("v_pk_fma_f32 %s, %s, %s, %s%s" % (p2(t + 4 + h), p2(re + h), p2(ts + h), p2(t + 4 + h), "" if conj else neg))
        for r in range(4): A("v_cvt_pk_bf16_f32 v%d, v%d, v%d" % (dsts[r], t + r, t + 4 + r))
    def cm_pairs(items):
        ts = []
        for _ in items:
            ts.append(TMP + 2 * (tctr[0] % 8)); tctr[0] += 1
        for (dst, z, c, s_), t in zip(items, ts):
            A("v_pk_mul_f32 %s, %s, %s op_sel:[0,%d] op_sel_hi:[1,%d]" % (p2(t), p2(z), p2(c & ~1), c & 1, c & 1))
        for (dst, z, c, s_), t in zip(items, ts):
            A("v_pk_fma_f32 %s, %s, %s, %s op_sel:[1,%d,0] op_sel_hi:[0,%d,1] neg_lo:[1,0,0]" % (p2(t), p2(z), p2(s_ & ~1), p2(t), s_ & 1, s_ & 1))
        for (dst, z, c, s_), t in zip(items, ts):
            A("v_cvt_pk_bf16_f32 v%d, v%d, v%d" % (dst, t, t + 1))
    for e in range(8):
        mm(D + 8 * e, q("a", DAT + 4 * e), q("a", FA)); mm(D + 8 * e + 4, q("a", DAT + 4 * e), q("a", FA + 4))
    A("s_add_u32 s40, s40, s50")
    A("s_add_u32 s43, s48, 1"); A("s_and_b32 s43, s43, 3"); A("s_lshl_b32 s43, s43, 5"); A("v_xor_b32 v237, s43, v236")
    yread()
    TP = 246
    def tw_in(re, tc, conj, k):
        im = re + 4; ts = tc + 4; t = TP + 4 * (k & 1)
        n0 = " neg_lo:[1,0,0] neg_hi:[1,0,0]"; n2 = " neg_lo:[0,0,1] neg_hi:[0,0,1]"
        for h in (0, 2): A("v_pk_mul_f32 %s, %s, %s" % (p2(t + h), p2(re + h), p2(tc + h)))
        for h in (0, 2): A("v_pk_mul_f32 %s, %s, %s" % (p2(re + h), p2(re + h), p2(ts + h)))
        for h in (0, 2): A("v_pk_fma_f32 %s, %s, %s, %s%s" % (p2(re + h), p2(im + h), p2(tc + h), p2(re + h), "" if conj else n2))
        for h in (0, 2): A("v_pk_fma_f32 %s, %s, %s, %s%s" % (p2(im + h), p2(im + h), p2(ts + h), p2(t + h), n0 if conj else ""))
    def cv_mm(mmf):
        for e in range(9):
            cv = ["v_cvt_pk_bf16_f32 v%d, v%d, v%d" % (P + 4 * e + r, D + 8 * e + 4 + r, D + 8 * e + r) for r in range(4)] if e < 8 else [None] * 4
            for h in range(2):
                for x in cv[2 * h:2 * h + 2]:
                    if x: A(x)
                if e: mmf(e - 1, h)
    for e in range(8): tw_in(D + 8 * e, T1, False, e)
    cv_mm(lambda e, h: mm(D + 8 * e + 4 * h, q("a", FA + 4 * h), q("v", P + 4 * e)))
    for e in range(8):
        if e == 0:
            for r in range(4): A("v_cvt_pk_bf16_f32 v%d, v%d, v%d" % (P + 8 * r, D + r, D + 4 + r))
        else: tw_quads([P + 8 * r + e for r in range(4)], D + 8 * e, T2 + 8 * (e - 1), False)
    def mE(r, ih):
        d = "v[%d:%d]" % (D + 16 * r, D + 16 * r + 15)
        A("%s %s, %s, %s, %s" % (MF32, d, q("a", FE + 4 * ih), q("v", P + 8 * r + 4 * ih), "0" if ih == 0 else d))
    A("s_waitcnt vmcnt(0)")
    unp = []
    for r in range(4):
        for ep in range(8):
            unp += ["v_lshlrev_b32 v%d, 16, v%d" % (TMP + 4 * ep + r, W + 4 * ep + r), "v_and_b32 v%d, s49, v%d" % (W + 4 * ep + r, W + 4 * ep + r)]
    for i in range(8):
        mE(i >> 1, i & 1)
        for x in unp[8 * i:8 * i + 8]: A(x)
    def cm_in(items):
        for k, (z, c, s_) in enumerate(items):
            A("v_pk_mul_f32 %s, %s, %s op_sel:[0,%d] op_sel_hi:[1,%d]" % (p2(TP + 2 * k), p2(z), p2(c & ~1), c & 1, c & 1))
        for k, (z, c, s_) in enumerate(items):
            A("v_pk_fma_f32 %s, %s, %s, %s op_sel:[1,%d,0] op_sel_hi:[0,%d,1] neg_lo:[1,0,0]" % (p2(z), p2(z), p2(s_ & ~1), p2(TP + 2 * k), s_ & 1, s_ & 1))
    A("s_or_b32 s43, s51, s48"); A("s_cmp_eq_u32 s43, 0"); A("s_cbranch_scc1 cf_pack")
    A.label("cf_mul")
    for r in range(4):
        for eh in range(2): cm_in([(D + 16 * r + 2 * ep, TMP + 4 * ep + r, W + 4 * ep + r) for ep in range(4 * eh, 4 * eh + 4)])
    A("s_cbranch_scc1 cf_pack2")
    A.label("cf_mul_done")
    wl = Asm(); A1 = A; A = wl; wload(W, "v", 40); A = A1
    for r in range(5):
        for ih in range(2):
            if r < 4:
                for ep in range(4 * ih, 4 * ih + 4): A("v_cvt_pk_bf16_f32 v%d, v%d, v%d" % (P + 8 * r + ep, D + 16 * r + 2 * ep, D + 16 * r + 2 * ep + 1))
            if r:
                mE(r - 1, ih); A(wl.items[2 * (r - 1) + ih][1])
    for r in range(4):
        A("v_cvt_pk_bf16_f32 v%d, v%d, v%d" % (P + r, D + 16 * r, D + 16 * r + 1))
        for xs in ((1, 2, 3, 4), (5, 6, 7)):
            cm_pairs([(P + 4 * (8 - x) + r, D + 16 * r + 2 * x, T2 + 8 * (7 - x) + r, T2 + 8 * (7 - x) + 4 + r) for x in xs])
    for e in range(8):
        mm(D + 8 * e, q("v", P + 4 * e), q("a", FA + 8)); mm(D + 8 * e + 4, q("v", P + 4 * e), q("a", FA + 12))
    for e in range(8): tw_in(D + 8 * e, T1, True, e)
    def last(e, h):
        mm(D + 8 * e + 4 * h, q("v", P + 4 * e), q("a", FA + 8 + 4 * h))
    cv_mm(last)
    for e in range(8):
        for r in range(4): A("v_cvt_pk_bf16_f32 v%d, v%d, v%d" % (P + 4 * e + r, D + 8 * e + r, D + 8 * e + 4 + r))
    for cc in range(4):
        A("s_cmp_eq_u32 s48, %d" % cc); A("s_cbranch_scc0 cf_o%d" % cc)
        for qq in range(32): A("v_accvgpr_write_b32 a%d, v%d" % (4 * qq + cc, P + qq))
        A.label("cf_o%d" % cc)
    A("s_add_u32 s48, s48, 1"); A("s_cmp_lt_u32 s48, 4"); A("s_cbranch_scc1 cf_loop")
    stamp(A, 7)
    A("v_and_b32 v238, 15, v1"); A("v_lshlrev_b32 v238, 4, v238"); A("v_lshl_add_u32 v238, v5, 20, v238")
    A("s_lshl_b32 s41, s51, 8")
    for r in range(4):
        for e in range(8):
            qq = 4 * e + r
            A("s_add_u32 s42, s41, 0x%x" % ((8 * r + e) * 32768))
            A("buffer_store_dwordx4 %s, v238, s[56:59], s42 offen sc1" % q("a", 4 * qq))
    A("s_waitcnt vmcnt(0) lgkmcnt(0)")
    A("s_lshl_b32 s44, s2, 7"); A("s_add_u32 s44, s44, %d" % M.F3)
    A("s_barrier")
    M.set_flag_w0(A, "f3", 44, 240, 241)
    if ENV("EIT"): stamp(A, 4)
    i_tabs(A, M); g2_setup(A, M); g2_early(A); x_fetch(A, M, 21, 22, 12)
    A("s_mov_b32 s46, %d" % M.F3)
    M.poll(A, "f3", 46, 242, 244, 32, sleep=4)
    z_fetch(A, M)
    A("s_mov_b32 s58, 0"); A("s_mov_b32 s55, 0"); A("s_mov_b32 s52, 0"); A("s_mov_b32 s53, 0")
    A("s_waitcnt vmcnt(0)")
    A("s_branch cf_end")
    A.label("cf_pack")
    A("s_nop 11")
    SC = M.LDS_SCR
    A("v_and_b32 v238, 15, v1"); A("v_lshl_add_u32 v238, v5, 6, v238")
    A("v_sub_u32 v239, %d, v238" % (2048 - 48 - 1792)); A("v_lshlrev_b32 v238, 3, v238"); A("v_lshlrev_b32 v239, 3, v239")
    A("v_add_u32 v238, 0x%x, v238" % SC); A("v_add_u32 v239, 0x%x, v239" % SC)
    for r in range(4):
        for ep in range(8): A("ds_write_b64 v238, %s offset:%d" % (p2(D + 16 * r + 2 * ep), 8 * (16 * r + 256 * ep)))
    A("s_mov_b64 exec, 1"); A("ds_write_b64 v238, %s offset:%d" % (p2(D), 8 * 2048)); A("s_mov_b64 exec, -1")
    MR = 0
    for r in range(4):
        for ep in range(8): A("ds_read_b64 a[%d:%d], v239 offset:%d" % (MR + 16 * r + 2 * ep, MR + 16 * r + 2 * ep + 1, 8 * (16 * (3 - r) + 256 * (7 - ep))))
    A("s_branch cf_mul")
    A.label("cf_pack2")
    U = TMP + 16
    A("s_waitcnt lgkmcnt(0)")
    for r in range(4):
        for eh in range(2):
            E4 = range(4 * eh, 4 * eh + 4)
            for ep in E4:
                A("v_accvgpr_read_b32 v%d, a%d" % (U + 2 * (ep & 3) + 1, 208 + 4 * ep + r))
                for i in range(2): A("v_accvgpr_read_b32 v%d, a%d" % (TMP + 2 * (ep & 3) + i, MR + 16 * r + 2 * ep + i))
            for ep in E4: A("v_lshlrev_b32 v%d, 16, v%d" % (U + 2 * (ep & 3), U + 2 * (ep & 3) + 1)); A("v_and_b32 v%d, s49, v%d" % (U + 2 * (ep & 3) + 1, U + 2 * (ep & 3) + 1))
            for ep in E4: A("v_pk_fma_f32 %s, %s, %s, %s op_sel:[0,0,0] op_sel_hi:[1,0,1] neg_hi:[1,0,0]" % (p2(D + 16 * r + 2 * ep), p2(TMP + 2 * (ep & 3)), p2(U + 2 * (ep & 3)), p2(D + 16 * r + 2 * ep)))
            for ep in E4: A("v_pk_fma_f32 %s, %s, %s, %s op_sel:[1,1,0] op_sel_hi:[0,1,1]" % (p2(D + 16 * r + 2 * ep), p2(TMP + 2 * (ep & 3)), p2(U + 2 * (ep & 3)), p2(D + 16 * r + 2 * ep)))
    A("s_nop 1")
    A("s_branch cf_mul_done")
    A.label("cf_end")
```

```python
import sys, math, os
from asmlib import *
import gen as G
from gen import f32, bf16, TAB, KA, NAME, allreduce_add, stamp, STAMP

KN = NAME + "_kernel"
WS_XN = 0;            SZ_XN = 4 << 20
WS_Y = 4 << 20;       SZ_Y = 4 << 20
WS_WT = 8 << 20;      SZ_WT = 514 * 8192
WS_Z = 13 << 20;      SZ_Z = 4 << 20
WS_S = 17 << 20;      SZ_S = 4 << 20
WS_H = 21 << 20;      SZ_H = 16 * 112 * 8192
WS_FL = 35 << 20;     SZ_FL = 0xe0000
WS_XC = 36 << 20;     SZ_XC = 256 * 4 * 3 * 4096
F1, F2, F3, FB, FS, F2B, FH, FX = 0, 0x8000, 0x10000, 0x18000, 0x20000, 0x28000, 0x40000, 0x60000
LDS_SCR = 128 * 1024
LDS_T2 = 145 * 1024
LDS_SIZE = LDS_T2 + 4096
MF = "v_mfma_f32_16x16x32_bf16"
MF32 = "v_mfma_f32_32x32x16_bf16"
PX, PWR, PWI, PWG, PWU, PWD, POUT, PDBG, PWS = 4, 6, 8, 12, 14, 16, 18, 20, 22
SFL, STAB, SDBG = 24, 28, 32
TOK, WAVE = 70, 3
ENV = os.environ.get
BULK = ENV('BULK', ' sc1')
HLD = ENV('HLD', ' sc1')

def srd(A, d, base, off, size): G.srd(A, d, base, off, size)
def q(f, r): return "%s[%d:%d]" % (f, r, r + 3)
def p2(r): return "v[%d:%d]" % (r, r + 1)

def set_flag(A, soff, vz, vt, val=None, fl=" sc1"):
    A("v_mov_b32 v%d, s%d" % (vt, TOK if val is None else val))
    A("s_mov_b64 exec, 1")
    A("buffer_store_dword v%d, v%d, s[%d:%d], s%d offen%s" % (vt, vz, SFL, SFL + 3, soff, fl))
    A("s_mov_b64 exec, -1")

def set_flag_w0(A, tag, soff, vz, vt):
    A("s_cmp_lg_u32 s%d, 0" % WAVE); A("s_cbranch_scc1 sf_%s" % tag)
    set_flag(A, soff, vz, vt)
    A.label("sf_%s" % tag)

def poll(A, tag, soff, vaddr, vd, nl, width=1, first_hook=None, sleep=2):
    A("s_mov_b32 s68, 0x20000")
    ld = {1: "buffer_load_dword v%d" % vd, 4: "buffer_load_dwordx4 v[%d:%d]" % (vd, vd + 3)}[width]
    def rnd():
        if nl < 64: A("s_bfm_b64 exec, %d, 0" % nl)
        A("%s, v%d, s[%d:%d], s%d offen sc1" % (ld, vaddr, SFL, SFL + 3, soff))
        if nl < 64: A("s_mov_b64 exec, -1")
        A("s_waitcnt vmcnt(0)")
    def chk():
        if width == 4:
            for i in range(4): A("v_xor_b32 v%d, s%d, v%d" % (vd + i, TOK, vd + i))
            A("v_or3_b32 v%d, v%d, v%d, v%d" % (vd, vd, vd + 1, vd + 2)); A("v_or_b32 v%d, v%d, v%d" % (vd, vd, vd + 3))
            A("v_cmp_ne_u32 vcc, 0, v%d" % vd)
        else: A("v_cmp_ne_u32 vcc, s%d, v%d" % (TOK, vd))
        if nl < 64:
            A("s_nop 1")
            A("s_bfm_b64 s[66:67], %d, 0" % nl); A("s_and_b64 vcc, vcc, s[66:67]")
        A("s_nop 3")
    if first_hook:
        rnd(); first_hook(); chk(); A("s_cbranch_vccz pd_%s" % tag)
    A.label("pl_%s" % tag)
    rnd(); chk()
    A("s_cbranch_vccz pd_%s" % tag)
    A("s_sleep %d" % sleep)
    A("s_sub_u32 s68, s68, 1"); A("s_cmp_lg_u32 s68, 0"); A("s_cbranch_scc1 pl_%s" % tag)
    A.label("pd_%s" % tag)

def tab_dma(A, first, lds0, lds1):
    o = TAB.off(first)
    A("s_lshl_b32 s71, s%d, 12" % WAVE); A("s_add_u32 m0, s71, 0x%x" % lds0); A("s_add_u32 s71, s71, 0x%x" % o)
    for p in range(4): A("buffer_load_dwordx4 v3, s[%d:%d], s71 offen%s lds" % (STAB, STAB + 3, " offset:%d" % (p * 1024) if p else ""))
    A("s_lshl_b32 s71, s%d, 10" % WAVE); A("s_add_u32 m0, s71, 0x%x" % lds1); A("s_add_u32 s71, s71, 0x%x" % (o + 16384))
    A("buffer_load_dwordx4 v3, s[%d:%d], s71 offen lds" % (STAB, STAB + 3))
def tab_read(A, dst, name, first, va, d1):
    i = (TAB.off(name) - TAB.off(first)) // 1024
    A("ds_read_b128 %s, v%d offset:%d" % (dst, va, i * 1024 if i < 16 else d1 + (i - 16) * 1024))

def code_srd(A, d, lab):
    A("s_getpc_b64 s[%d:%d]" % (d, d + 1))
    A.label("cs_%s" % lab)
    A("s_add_u32 s%d, s%d, %s-cs_%s" % (d, d, lab, lab)); A("s_addc_u32 s%d, s%d, 0" % (d + 1, d + 1))
    A("s_and_b32 s%d, s%d, 0xffff" % (d + 1, d + 1))
    A("s_mov_b32 s%d, k_done-%s" % (d + 2, lab)); A("s_mov_b32 s%d, 0x20000" % (d + 3))

VWD = 244
def g1_decode(A):
    A("s_and_b32 s40, s2, 7"); A("s_lshr_b32 s41, s2, 3"); A("s_sub_u32 s41, s41, 4")
    A("s_and_b32 s42, s40, 1"); A("s_lshl_b32 s42, s42, 2"); A("s_and_b32 s43, s41, 3"); A("s_add_u32 s42, s42, s43")
    A("s_lshr_b32 s43, s40, 1"); A("s_mul_i32 s43, s43, 7"); A("s_lshr_b32 s44, s41, 2"); A("s_add_u32 s43, s43, s44")
    A("s_and_b32 s46, s%d, 1" % WAVE); A("s_lshr_b32 s47, s%d, 1" % WAVE)
def dmaX(buf):
    o = [["s_add_u32 m0, s64, 0x%x" % (buf * 32768), "buffer_load_dwordx4 v3, s[48:51], s60 offen%s lds" % BULK]]
    for p in range(1, 4): o.append(["buffer_load_dwordx4 v3, s[48:51], s60 offen offset:%d%s lds" % (p * 1024, BULK)])
    o[-1].append("s_add_u32 s60, s60, 0x4000")
    return o
def dmaW(buf, v):
    return [["s_add_u32 m0, s65, 0x%x" % (buf * 32768), "buffer_load_dwordx4 v%d, s[52:55], s61 offen lds" % v],
            ["buffer_load_dwordx4 v%d, s[52:55], s62 offen offset:1024 lds" % v],
            ["buffer_load_dwordx4 v%d, s[56:59], s61 offen offset:2048 lds" % v, "s_add_u32 s61, s61, %d" % (32 * 7168)],
            ["buffer_load_dwordx4 v%d, s[56:59], s62 offen offset:3072 lds" % v, "s_add_u32 s62, s62, %d" % (32 * 7168)]]
def flat(A, l):
    for x in l:
        for y in x: A(y)

def w_touch():
    return ["buffer_load_dword v16, v17, s[36:39], s69 offen", "s_add_u32 s69, s69, %d" % (128 * 7168)]
def w_touch_setup(A):
    A("s_cmp_lt_u32 s%d, 2" % WAVE); A("s_cselect_b32 s36, s%d, s%d" % (PWG, PWU)); A("s_cselect_b32 s37, s%d, s%d" % (PWG + 1, PWU + 1))
    A("s_and_b32 s37, s37, 0xffff"); A("s_mov_b32 s38, %d" % (1024 * 7168)); A("s_mov_b32 s39, 0x20000")
    A("s_cmp_lt_u32 s2, 32"); A("s_cselect_b32 s38, 0, s38")
    A("s_mul_i32 s69, s42, %d" % (16 * 7168)); A("s_lshl_b32 s41, s43, 8"); A("s_add_u32 s69, s69, s41"); A("s_lshl_b32 s41, s46, 7"); A("s_add_u32 s69, s69, s41")
    A("s_add_u32 s69, s69, %d" % (128 * 7168))
    A("v_mul_u32_u24 v17, 7168, v1"); A("v_lshrrev_b32 v16, 4, v1"); A("v_lshl_add_u32 v17, v16, 24, v17")
RB = 65 * 1024
def filt_dma(A, part):
    if part == 0:
        srd(A, 52, PWR, 0, 2048 * 1026); srd(A, 56, PWI, 0, 2048 * 1026)
    A("s_mul_i32 s96, s2, %d" % (64 * 1026))
    def run(d, lds0, first, n):
        A("s_mul_i32 s97, s%d, %d" % (WAVE, n * 1024)); A("s_add_u32 s99, s96, s97")
        for g_ in range(0, n, 4):
            A("s_add_u32 m0, s97, 0x%x" % (lds0 + (first + g_) * 1024)); A("s_add_u32 s98, s99, %d" % ((first + g_) * 1024))
            for p in range(min(4, n - g_)):
                A("buffer_load_dwordx4 v3, s[%d:%d], s98 offen%s lds" % (d, d + 3, " offset:%d" % (p * 1024) if p else ""))
    if part == 0:
        run(52, 0, 0, 16); run(56, RB, 0, 7)
    else:
        run(56, RB, 28, 10)
        A("s_mov_b32 m0, 0x10000"); A("s_add_u32 s98, s96, 0x10000"); A("buffer_load_dwordx4 v3, s[52:55], s98 offen lds")
def g1_addr(A):
    A("v_mov_b32 v4, v%d" % VWD); A("v_lshlrev_b32 v243, 7, v1")
    A("s_lshl_b32 s40, s47, 13"); A("v_add_u32 v5, s40, v3"); A("v_add_u32 v6, 0x10000, v5")
    A("v_bfe_u32 v7, v1, 4, 1"); A("v_lshlrev_b32 v140, 12, v7")
    A("v_bfe_u32 v7, v1, 5, 1"); A("v_lshl_add_u32 v140, v7, 10, v140")
    A("v_bfe_u32 v7, v1, 2, 2"); A("v_lshl_add_u32 v140, v7, 8, v140")
    A("v_and_b32 v7, 3, v1"); A("v_lshl_add_u32 v140, v7, 3, v140"); A("v_add_u32 v140, 0x4000, v140")
    A("v_bfe_u32 v7, v1, 2, 3"); A("s_lshl_b32 s40, s46, 2"); A("v_xor_b32 v7, s40, v7")
    for t in range(4):
        A("v_xor_b32 v141, %d, v7" % t); A("v_lshl_add_u32 v%d, v141, 5, v140" % (8 + t)); A("v_add_u32 v%d, 0x10000, v%d" % (12 + t, 8 + t))

def phase_a(A):
    RS = 2080; XS = LDS_SCR; YT = 96 * 1024
    A("s_load_dwordx16 s[4:19], s[0:1], 0"); A("s_load_dwordx4 s[20:23], s[0:1], 64")
    A("s_memrealtime s[66:67]")
    if not ENV("NOCPF0"):
        code_srd(A, 36, "a_start"); A("s_bfe_u32 s40, s2, 0x30003"); A("s_lshl_b32 s40, s40, 13")
        A("v_and_b32 v5, 15, v0"); A("v_lshlrev_b32 v5, 7, v5"); A("v_lshrrev_b32 v6, 6, v0"); A("v_lshl_add_u32 v5, v6, 11, v5")
        A("s_mov_b64 exec, 0xffff"); A("buffer_load_dword v243, v5, s[36:39], s40 offen"); A("s_mov_b64 exec, -1")
        A.label("a_start")
    G.tab_srd(A, STAB, "a")
    A("v_and_b32 v1, 63, v0"); A("v_lshrrev_b32 v2, 6, v0")
    A("v_readfirstlane_b32 s%d, v2" % WAVE)
    A("v_lshlrev_b32 v3, 4, v1")
    A("s_and_b32 s36, s2, 7"); A("s_bfe_u32 s37, s2, 0x10003"); A("s_lshr_b32 s38, s2, 4")
    A("s_lshl_b32 s39, s38, 3"); A("s_add_u32 s39, s39, s36")
    A("s_lshl_b32 s44, s37, 21"); A("s_lshl_b32 s45, s39, 11"); A("s_add_u32 s63, s44, s45"); A("s_add_u32 s69, s63, 0x40000")
    A("v_lshl_add_u32 v4, v2, 19, v3")
    g1_decode(A)
    A("v_lshrrev_b32 v5, 4, v1"); A("s_lshl_b32 s48, s46, 2"); A("v_add_u32 v5, s48, v5")
    A("v_lshlrev_b32 v6, 1, v5"); A("v_and_b32 v7, 15, v1"); A("v_xor_b32 v6, v6, v7")
    A("s_lshl_b32 s48, s47, 4"); A("v_add_u32 v5, s48, v5")
    A("v_mul_u32_u24 v5, 7168, v5"); A("v_lshl_add_u32 v%d, v6, 4, v5" % VWD)
    A("s_lshl_b32 s61, s43, 8"); A("s_add_u32 s62, s61, %d" % (57344 - 1024))
    A("s_lshl_b32 s64, s%d, 12" % WAVE); A("s_add_u32 s65, s64, 0x4000")
    A("s_lshl_b32 s60, s42, 19"); A("s_add_u32 s60, s60, s64")
    A("s_waitcnt lgkmcnt(0)")
    srd(A, 48, PX, 0, 4 << 20)
    X = 8
    A("buffer_load_dwordx4 v[8:11], v4, s[48:51], s63 offen")
    A("buffer_load_dwordx4 v[12:15], v4, s[48:51], s63 offen offset:1024")
    A("buffer_load_dwordx4 v[16:19], v4, s[48:51], s69 offen")
    A("buffer_load_dwordx4 v[20:23], v4, s[48:51], s69 offen offset:1024")
    srd(A, SDBG, PDBG, 0, 256); srd(A, SFL, PWS, WS_FL, SZ_FL)
    VZ = 245
    A("v_mov_b32 v%d, 0" % VZ)
    A("s_or_b32 s44, s2, s%d" % WAVE); A("s_cmp_lg_u32 s44, 0"); A("s_cbranch_scc1 a_notok")
    A("s_or_b32 s66, s66, 1"); A("v_mov_b32 v246, s66")
    A("s_mov_b64 exec, 1")
    A("buffer_store_dword v246, v%d, s[%d:%d], 0 offen sc1" % (VZ, SDBG, SDBG + 3))
    A("s_mov_b64 exec, -1")
    A.label("a_notok")
    F1r = 64; TW = 72; F2r = 88; F2S = 120
    names = [("f1re", F1r), ("f1im", F1r + 4)]
    for bh in range(2):
        for t in range(2): names.append(("tw%d%d" % (bh, t), TW + 8 * bh + 4 * t))
    for dh in range(2):
        for part in range(2):
            for bh in range(2): names.append(("f2_%d%d%d" % (dh, part, bh), F2r + 16 * dh + 8 * part + 4 * bh))
    for part in range(2):
        for bh in range(2): names.append(("f2s_%d%d" % (part, bh), F2S + 8 * part + 4 * bh))
    TR, XR, XG = 142, 143, 144
    A("v_lshrrev_b32 v7, 2, v1"); A("v_lshlrev_b32 v7, 6, v7"); A("v_and_b32 v%d, 3, v1" % TR)
    A("v_lshl_add_u32 v7, v%d, 3, v7" % TR); A("v_mul_u32_u24 v%d, %d, v2" % (TR, 2 * RS)); A("v_add_u32 v%d, v%d, v7" % (TR, TR)); A("v_add_u32 v%d, 0x%x, v%d" % (TR, XS, TR))
    A("v_and_b32 v7, 7, v1"); A("v_mul_u32_u24 v%d, %d, v7" % (XR, RS)); A("v_lshlrev_b32 v%d, 4, v7" % XG)
    A("v_bfe_u32 v7, v1, 3, 2"); A("v_lshl_add_u32 v%d, v7, 3, v%d" % (XR, XR)); A("v_lshl_add_u32 v%d, v7, 8, v%d" % (XG, XG))
    A("v_lshrrev_b32 v7, 5, v0"); A("v_lshl_add_u32 v%d, v7, 6, v%d" % (XR, XR)); A("v_lshl_add_u32 v%d, v7, 14, v%d" % (XG, XG))
    A("v_add_u32 v%d, 0x%x, v%d" % (XR, XS, XR))
    A("s_lshr_b32 s10, s39, 4"); A("s_lshl_b32 s10, s10, 19"); A("s_and_b32 s11, s39, 15"); A("s_lshl_b32 s11, s11, 10")
    A("s_add_u32 s10, s10, s11"); A("s_lshl_b32 s11, s37, 7"); A("s_add_u32 s10, s10, s11")
    XW = 141
    A("v_mul_u32_u24 v%d, %d, v2" % (XW, 2 * RS)); A("v_add_u32 v%d, v%d, v3" % (XW, XW)); A("v_add_u32 v%d, 0x%x, v%d" % (XW, XS, XW))
    tab_dma(A, "f1re", 112 * 1024, LDS_T2)
    MG, MP, MQ, YB, YR, YG = 136, 137, 138, 139, 146, 145
    A("v_and_b32 v5, 15, v1"); A("v_cmp_eq_u32 vcc, 0, v5"); A("v_mov_b32 v7, 0xffff")
    A("v_cndmask_b32 v%d, -1, 0, vcc" % MG); A("v_cndmask_b32 v%d, 0, v7, vcc" % MP); A("v_lshlrev_b32 v%d, 16, v%d" % (MQ, MP))
    A("v_and_b32 v7, 3, v1"); A("v_lshlrev_b32 v7, 5, v7"); A("v_lshl_add_u32 v%d, v1, 7, v7" % YB); A("v_lshl_add_u32 v%d, v2, 3, v%d" % (YB, YB))
    A("v_add_u32 v%d, 0x%x, v%d" % (YB, YT, YB))
    for r in range(1, 4): A("v_xor_b32 v%d, %d, v%d" % (196 + r, 32 * r, YB))
    A("v_lshlrev_b32 v%d, 4, v0" % YR); A("v_add_u32 v%d, 0x%x, v%d" % (YR, YT, YR))
    A("v_lshrrev_b32 v7, 3, v0"); A("v_lshlrev_b32 v%d, 15, v7" % YG); A("v_and_b32 v7, 3, v7"); A("v_lshlrev_b32 v7, 1, v7")
    A("v_and_b32 v6, 7, v0"); A("v_xor_b32 v7, v7, v6"); A("v_lshl_add_u32 v%d, v7, 4, v%d" % (YG, YG))
    A("s_waitcnt vmcnt(5)")
    stamp(A, 2)
    A("s_mov_b32 s45, 0xffff0000")
    U = 24
    for row in range(2):
        for i in range(8):
            A("v_lshlrev_b32 v%d, 16, v%d" % (U + 16 * row + 2 * i, X + 8 * row + i))
            A("v_and_b32 v%d, s45, v%d" % (U + 16 * row + 2 * i + 1, X + 8 * row + i))
    srd(A, 52, PWG, 0, 1024 * 7168); srd(A, 56, PWU, -2048, 1024 * 7168 + 2048)
    A("s_cmp_lt_u32 s2, 32"); A("s_cselect_b32 s54, 0, s54"); A("s_cselect_b32 s58, 0, s58")
    A0 = A; A = Asm()
    S = [56, 57]; T = [58, 59]; Q = [60, 61]
    def tree(dst):
        for row in range(2):
            b = X + 8 * row
            A("v_pk_add_f32 %s, %s, %s" % (p2(b), p2(b), p2(b + 4))); A("v_pk_add_f32 %s, %s, %s" % (p2(b + 2), p2(b + 2), p2(b + 6)))
        for row in range(2): A("v_pk_add_f32 %s, %s, %s" % (p2(X + 8 * row), p2(X + 8 * row), p2(X + 8 * row + 2)))
        for row in range(2): A("v_add_f32 v%d, v%d, v%d" % (dst[row], X + 8 * row, X + 8 * row + 1))
    for row in range(2):
        for i in range(4): A("v_pk_add_f32 %s, %s, %s" % (p2(X + 8 * row + 2 * i), p2(U + 16 * row + 2 * i), p2(U + 16 * row + 8 + 2 * i)))
    tree(S)
    allreduce_add(A, S, T)
    A("s_mov_b32 s44, 0x%x" % f32(1.0 / 1024))
    for row in range(2): A("v_mul_f32 v%d, s44, v%d" % (S[row], S[row]))
    DV = 164
    sel = lambda row: " op_sel:[0,%d] op_sel_hi:[1,%d] neg_lo:[0,1] neg_hi:[0,1]" % (row, row)
    for row in range(2):
        for i in range(8): A("v_pk_add_f32 %s, %s, v[56:57]%s" % (p2(DV + 16 * row + 2 * i), p2(U + 16 * row + 2 * i), sel(row)))
    for row in range(2):
        for i in range(4): A("v_pk_mul_f32 %s, %s, %s" % (p2(X + 8 * row + 2 * i), p2(DV + 16 * row + 2 * i), p2(DV + 16 * row + 2 * i)))
    for row in range(2):
        for i in range(4): A("v_pk_fma_f32 %s, %s, %s, %s" % (p2(X + 8 * row + 2 * i), p2(DV + 16 * row + 8 + 2 * i), p2(DV + 16 * row + 8 + 2 * i), p2(X + 8 * row + 2 * i)))
    tree(Q)
    A("v_cvt_pk_bf16_f32 v62, v56, v57")
    allreduce_add(A, Q, T)
    A("v_lshlrev_b32 v56, 16, v62"); A("v_and_b32 v57, s45, v62")
    for row in range(2): A("v_mul_f32 v%d, s44, v%d" % (Q[row], Q[row]))
    def rnd2():
        A("v_cvt_pk_bf16_f32 v58, v60, v61"); A("v_lshlrev_b32 v60, 16, v58"); A("v_and_b32 v61, s45, v58")
    rnd2()
    for row in range(2): A("v_add_f32 v%d, 0x%x, v%d" % (Q[row], f32(1e-5), Q[row]))
    rnd2()
    for row in range(2): A("v_sqrt_f32 v%d, v%d" % (Q[row], Q[row]))
    rnd2()
    for row in range(2): A("v_rcp_f32 v%d, v%d" % (Q[row], Q[row]))
    ln = A.items; A = A0
    wd = dmaW(0, VWD) + dmaW(1, VWD) + dmaW(2, VWD)
    stride = len(ln) // len(wd)
    for i, it in enumerate(ln):
        A.items.append(it)
        if i % stride == 0 and i // stride < len(wd):
            for y in wd[i // stride]: A(y)
    A("buffer_load_dword v247, v%d, s[%d:%d], 0 offen sc1" % (VZ, SDBG, SDBG + 3))
    for row in range(2):
        b = U + 16 * row
        for i in range(8): A("v_pk_add_f32 %s, %s, v[56:57]%s" % (p2(b + 2 * i), p2(b + 2 * i), sel(row)))
        for i in range(8): A("v_cvt_pk_bf16_f32 v%d, v%d, v%d" % (X + 8 * row + i, b + 2 * i, b + 2 * i + 1))
        for i in range(8):
            A("v_lshlrev_b32 v%d, 16, v%d" % (b + 2 * i, X + 8 * row + i)); A("v_and_b32 v%d, s45, v%d" % (b + 2 * i + 1, X + 8 * row + i))
        for i in range(8): A("v_pk_mul_f32 %s, %s, v[60:61] op_sel:[0,%d] op_sel_hi:[1,%d]" % (p2(b + 2 * i), p2(b + 2 * i), row, row))
        for i in range(8): A("v_cvt_pk_bf16_f32 v%d, v%d, v%d" % (X + 8 * row + i, b + 2 * i, b + 2 * i + 1))
        A("ds_write_b128 v%d, v[%d:%d] offset:%d" % (XW, X + 8 * row, X + 8 * row + 3, row * RS))
        A("ds_write_b128 v%d, v[%d:%d] offset:%d" % (XW, X + 8 * row + 4, X + 8 * row + 7, row * RS + 1024))
    srd(A, 48, PWS, WS_XN, SZ_XN)
    A("s_waitcnt lgkmcnt(0)")
    for row in range(2):
        for bh in range(2):
            for hh in range(2):
                r = X + 8 * row + 4 * bh + 2 * hh
                A("ds_read_b64_tr_b16 v[%d:%d], v%d offset:%d" % (r, r + 1, TR, row * RS + hh * 1024 + bh * 32))
    A("s_waitcnt vmcnt(13)")
    A("s_barrier")
    XO = 148
    for it in range(4):
        A("ds_read_b64 v[%d:%d], v%d offset:%d" % (XO + 4 * it, XO + 4 * it + 1, XR, it * 512))
        A("ds_read_b64 v[%d:%d], v%d offset:%d" % (XO + 4 * it + 2, XO + 4 * it + 3, XR, it * 512 + 32))
    for it in range(4):
        A("s_add_u32 s41, s10, 0x%x" % (it * 8 * 16384))
        A("s_waitcnt lgkmcnt(%d)" % (6 - 2 * it))
        A("buffer_store_dwordx4 v[%d:%d], v%d, s[48:51], s41 offen sc1" % (XO + 4 * it, XO + 4 * it + 3, XG))
    stamp(A, 3)
    A("v_add_u32 v7, 0x%x, v3" % (112 * 1024))
    for nm, r in names: tab_read(A, vr(r, 4), nm, "f1re", 7, LDS_T2 - 112 * 1024)
    A("s_waitcnt lgkmcnt(12)")
    for row in range(2):
        for bh in range(2):
            for part in range(2):
                d = U + 16 * row + 8 * bh + 4 * part
                A("%s %s, %s, %s, 0" % (MF, q("v", d), q("v", X + 8 * row + 4 * bh), q("v", F1r + 4 * part)))
    PP, PQ = 164, 180
    neg = " neg_lo:[1,0,0] neg_hi:[1,0,0]"
    for row in range(2):
        for bh in range(2):
            re = U + 16 * row + 8 * bh; im = re + 4; tc = TW + 8 * bh; ts = tc + 4; t = 56
            for h in (0, 2): A("v_pk_mul_f32 %s, %s, %s" % (p2(t + h), p2(re + h), p2(tc + h)))
            for h in (0, 2): A("v_pk_mul_f32 %s, %s, %s" % (p2(t + 4 + h), p2(im + h), p2(tc + h)))
            for h in (0, 2): A("v_pk_fma_f32 %s, %s, %s, %s" % (p2(t + h), p2(im + h), p2(ts + h), p2(t + h)))
            for h in (0, 2): A("v_pk_fma_f32 %s, %s, %s, %s%s" % (p2(t + 4 + h), p2(re + h), p2(ts + h), p2(t + 4 + h), neg))
            for r in range(4): A("v_cvt_pk_bf16_f32 v%d, v%d, v%d" % (re + r, t + r, t + 4 + r))
            for r in range(4):
                o = 8 * row + 4 * bh + r
                A("v_and_b32 v%d, v%d, v%d" % (X + o, re + r, MG)); A("v_and_b32 v%d, v%d, v%d" % (PP + o, re + r, MP)); A("v_and_b32 v%d, v%d, v%d" % (PQ + o, re + r, MQ))
    A("s_waitcnt vmcnt(0)")
    A("v_readfirstlane_b32 s%d, v247" % TOK)
    A("s_barrier")
    A("s_cmp_lg_u32 s%d, 0" % TOK); A("s_cbranch_scc1 a_tok")
    A("s_mov_b32 s68, 0x20000")
    A.label("a_tokl")
    A("buffer_load_dword v247, v%d, s[%d:%d], 0 offen sc1" % (VZ, SDBG, SDBG + 3)); A("s_waitcnt vmcnt(0)")
    A("v_readfirstlane_b32 s%d, v247" % TOK)
    A("s_sub_u32 s68, s68, 1"); A("s_cmp_eq_u32 s68, 0"); A("s_cbranch_scc1 a_tok")
    A("s_cmp_eq_u32 s%d, 0" % TOK); A("s_cbranch_scc1 a_tokl")
    A.label("a_tok")
    A("s_cmp_lg_u32 s%d, 0" % WAVE); A("s_cbranch_scc1 a_nof1")
    A("s_lshl_b32 s41, s2, 7")
    set_flag(A, 41, VZ, 246)
    A.label("a_nof1")
    stamp(A, 4)
    A("s_cmp_lt_u32 s2, 32"); A("s_cbranch_scc0 a_nfil")
    filt_dma(A, 0)
    A.label("a_nfil")
    A("s_waitcnt lgkmcnt(0)")
    m = []
    for row in range(2):
        for bh in range(2):
            for dh in range(2):
                for part in range(2):
                    d = U + 16 * row + 8 * dh + 4 * part
                    m.append("%s %s, %s, %s, %s" % (MF, q("v", d), q("v", F2r + 16 * dh + 8 * part + 4 * bh), q("v", X + 8 * row + 4 * bh), "0" if bh == 0 else q("v", d)))
        for bh in range(2):
            for dh in range(2):
                for part in range(2):
                    d = U + 16 * row + 8 * dh + 4 * part
                    m.append("%s %s, %s, %s, %s" % (MF, q("v", d), q("v", F2S + 8 * part + 4 * bh), q("v", (PP if dh == 0 else PQ) + 8 * row + 4 * bh), q("v", d)))
    C = Asm(); g1_addr(C)
    s1 = interleave(m, [t for k, t in C.items], 9, 32)
    for k, x in enumerate(m):
        A(x)
        for y in s1[k]: A(y)
    A("s_lshl_b32 s10, s36, 12"); A("s_lshl_b32 s41, s38, 8"); A("s_add_u32 s10, s10, s41"); A("s_lshl_b32 s41, s37, 7"); A("s_add_u32 s10, s10, s41")
    w_touch_setup(A)
    A("s_cmp_lt_u32 s2, 32"); A("s_cbranch_scc1 a_nox")
    A("s_lshl_b32 s44, s42, 12")
    if ENV("AIT"): stamp(A, 8, force=True)
    poll(A, "f1", 44, 243, 246, 32)
    stamp(A, 5)
    for b in range(3): flat(A, dmaX(b))
    for i in range(2):
        for y in w_touch(): A(y)
    A("s_branch a_x")
    A.label("a_nox")
    A.label("a_x")
    if ENV("AIT") == "2": stamp(A, 7, force=True)
    srd(A, 32, PWS, WS_Y, SZ_Y)
    A("s_nop 4")
    YP = 64
    for row in range(2):
        for dh in range(2):
            for r in range(4):
                re = U + 16 * row + 8 * dh + r
                A("v_cvt_pk_bf16_f32 v%d, v%d, v%d" % (YP + 8 * dh + 2 * r + row, re, re + 4))
    for dh in range(2):
        for r in range(4):
            A("ds_write_b64 v%d, %s offset:%d" % (YB if r == 0 else 196 + r, p2(YP + 8 * dh + 2 * r), dh * 8192))
    A("s_lshl_b32 s63, s2, 7"); A("s_add_u32 s63, s63, %d" % F2)
    A("v_mov_b32 v18, v%d" % YG)
    if ENV("AIT") == "2": stamp(A, 9, force=True)
    A("v_mov_b32 v28, v243"); A("v_mov_b32 v29, 0")
    A("s_cmp_lt_u32 s2, 32"); A("s_cbranch_scc1 a_nw")
    A("s_waitcnt vmcnt(10)")
    A.label("a_nw")
    A("s_waitcnt lgkmcnt(0)")
    if ENV("AIT") == "2": stamp(A, 10, force=True)
    A("s_barrier")
    for it in range(4): A("ds_read_b128 %s, v%d offset:%d" % (q("a", 160 + 4 * it), YR, it * 4096))

def late_stores():
    o = []
    for it in range(4):
        o.append(["buffer_store_dwordx4 %s, v18, s[32:35], s10 offen sc1" % q("a", 160 + 4 * it), "s_add_u32 s10, s10, 0x%x" % (32 * 32768)])
    return o

from gen2b import gemm1, colfft, gemm2

def main():
    G.build_tables(); G.build_tables_inv()
    A = Asm(); G.kernel_head(A, KN)
    A("s_cmp_ge_u32 s2, 256"); A("s_cbranch_scc1 k_done")
    stamp(A, 0); stamp(A, 1, True)
    M = sys.modules[__name__]
    phase_a(A)
    A("s_cmp_lt_u32 s2, 32"); A("s_cbranch_scc1 k_fft")
    gemm1(A, M)
    A.label("k_g2")
    gemm2(A, M)
    A("s_endpgm")
    A.label("k_fft")
    colfft(A, M)
    A("s_branch k_g2")
    A.label("k_done"); A("s_endpgm")
    A.fix()
    stub = open("cdna_kernels/%s.s.ref" % NAME).read().split("\n")
    head = [l for l in stub if l.startswith(";") and "@launch" not in l and "Override" not in l and "grid=ceil" not in l]
    o = "\n".join(head[:12]) + "\n"
    if ENV("ASLIST"): o += "; @launch kernel=%s grid=(256,1,1) block=(256,1,1) lds=%d\n" % (KN, LDS_SIZE)
    else: o += "; @launch grid=(256,1,1) block=(256,1,1) lds=%d\n" % LDS_SIZE
    o += '.amdgcn_target "amdgcn-amd-amdhsa--gfx950"\n'
    o += A.text() + G.kernel_desc(KN, 512, 256, 100)
    o += '.section .rodata,"a"\n.p2align 8\n.type gf_tab,@object\ngf_tab:\n'
    for b in TAB.blocks:
        for i in range(0, 256, 8): o += ".long " + ",".join("0x%x" % x for x in b[i:i + 8]) + "\n"
    o += ".size gf_tab, %d\n" % (len(TAB.blocks) * 1024)
    path = sys.argv[1] if len(sys.argv) > 1 else "cdna_kernels/%s.s" % NAME
    open(path, "w").write(o)
    print("wrote", path, len(o), "bytes")

if __name__ == "__main__":
    main()
```

```python
from asmlib import *
import math, os
import gen as G
from gen import stamp, f32
ENV = os.environ.get
MF = "v_mfma_f32_16x16x32_bf16"
MF32 = "v_mfma_f32_32x32x16_bf16"
def q(f, r): return "%s[%d:%d]" % (f, r, r + 3)
def p2(r): return "v[%d:%d]" % (r, r + 1)

ZL = 128 * 1024
I1, I1S, I2 = 160, 192, 208
DV = [5, 6, 14, 15]
def g2_setup(A, M, DV=DV, t0=7, t1=13):
    W = M.WAVE
    A("s_bfe_u32 s44, s2, 0x20001"); A("s_and_b32 s42, s2, 1"); A("s_lshl_b32 s42, s42, 2"); A("s_bfe_u32 s43, s2, 0x20003"); A("s_add_u32 s42, s42, s43")
    A("s_lshr_b32 s43, s2, 5")
    d0, d1, d2, d3 = DV
    A("v_lshrrev_b32 v%d, 4, v1" % t0); A("v_lshlrev_b32 v%d, 11, v%d" % (t1, t0))
    A("v_lshlrev_b32 v%d, 1, v%d" % (t0, t0)); A("v_and_b32 v%d, 15, v1" % d0); A("v_xor_b32 v%d, v%d, v%d" % (t0, t0, d0))
    A("v_lshl_add_u32 v%d, v%d, 4, v%d" % (d0, t0, t1)); A("v_xor_b32 v%d, 0x80, v%d" % (d1, d0))
    A("v_add_u32 v%d, 0x%x, v%d" % (d2, 2 * 7168, d0)); A("v_add_u32 v%d, 0x%x, v%d" % (d3, 3 * 7168, d1)); A("v_add_u32 v%d, 0x%x, v%d" % (d1, 7168, d1))
    M.srd(A, 48, M.PWD, 0, 3584 * 2048)
    A("s_mul_i32 s45, s44, %d" % (896 * 2048)); A("s_lshl_b32 s61, s43, 8"); A("s_add_u32 s61, s61, s45")
    A("s_add_u32 s62, s61, %d" % (896 * 2048))
    A("s_lshl_b32 s45, s%d, 17" % W); A("s_add_u32 s61, s61, s45")
    A("s_lshl_b32 s64, s%d, 13" % W)
def g2_dma(par, p, DV=DV):
    o = []
    if p % 4 == 0: o.append("s_add_u32 m0, s64, 0x%x" % (par * 32768 + (p >> 2) * 4096))
    o.append("buffer_load_dwordx4 v%d, s[48:51], s61 offen%s lds" % (DV[p & 3], " offset:%d" % ((p & 3) * 1024) if p & 3 else ""))
    if p == 3: o.append("s_add_u32 s61, s61, 0x8000")
    if p == 7:
        o.append("s_add_u32 s61, s61, 0x%x" % (256 * 2048 - 0x8000))
        o += ["s_cmp_ge_u32 s61, s62", "s_cselect_b32 s65, %d, 0" % ((896 - 32) * 2048), "s_cselect_b32 s62, -1, s62", "s_sub_u32 s61, s61, s65"]
        if par == 1: o.append("s_xor_b32 s64, s64, 0x10000")
    return o
def g2_dma_of(s):
    u = (s + 2) & 7; par = u >> 2; p = 2 * (u & 3)
    return g2_dma(par, p), g2_dma(par, p + 1)
def z_fetch(A, M, t0=7, t1=13, zs=56):
    W = M.WAVE
    M.srd(A, zs, M.PWS, M.WS_Z, M.SZ_Z)
    A("v_lshrrev_b32 v%d, 4, v1" % t0); A("v_and_b32 v%d, 7, v1" % t1); A("v_xor_b32 v%d, v%d, v%d" % (t0, t0, t1)); A("v_lshlrev_b32 v%d, 4, v%d" % (t0, t0))
    A("v_lshrrev_b32 v%d, 3, v1" % t1); A("v_lshl_add_u32 v%d, v%d, 8, v%d" % (t0, t1, t0)); A("v_xor_b32 v%d, 64, v%d" % (t1, t0))
    A("s_lshr_b32 s40, s2, 1"); A("s_lshl_b32 s40, s40, 15"); A("s_and_b32 s41, s2, 1"); A("s_lshl_b32 s41, s41, 7"); A("s_add_u32 s40, s40, s41")
    A("s_lshl_b32 s41, s%d, 13" % W); A("s_add_u32 s40, s40, s41")
    A("s_lshl_b32 s41, s%d, 12" % W); A("s_add_u32 m0, s41, 0x%x" % ZL)
    for p in range(4):
        A("buffer_load_dwordx4 v%d, s[%d:%d], s40 offen%s sc1 lds" % (t0 if p % 2 == 0 else t1, zs, zs + 3, " offset:%d" % (p * 1024) if p else ""))
        A("s_add_u32 s40, s40, 1024")
def i_tabs(A, M): M.tab_dma(A, "i1_000", 96 * 1024, 112 * 1024)
def io_addr(A, M, va, vt):
    A("v_lshrrev_b32 v%d, 2, v1" % va); A("v_lshlrev_b32 v%d, 18, v%d" % (va, va)); A("v_lshl_add_u32 v%d, v2, 13, v%d" % (va, va))
    A("v_and_b32 v%d, 3, v1" % vt); A("v_lshl_add_u32 v%d, v%d, 4, v%d" % (va, vt, va))
    A("s_and_b32 s8, s2, 1"); A("s_lshl_b32 s8, s8, 17"); A("s_bfe_u32 s9, s2, 0x20003"); A("s_lshl_b32 s9, s9, 15"); A("s_add_u32 s8, s8, s9")
    A("s_lshr_b32 s9, s2, 5"); A("s_lshl_b32 s9, s9, 8"); A("s_add_u32 s8, s8, s9"); A("s_bfe_u32 s9, s2, 0x20001"); A("s_lshl_b32 s9, s9, 6"); A("s_add_u32 s8, s8, s9")
    A("s_add_u32 s9, s8, 0x1000")
def x_fetch(A, M, va, vt, sd):
    io_addr(A, M, va, vt); M.srd(A, sd, M.PX, 0, 4 << 20)
    for i in range(4): A("buffer_load_dwordx4 %s, v%d, s[%d:%d], s%d offen offset:%d" % (q("a", 240 + 4 * i), va, sd, sd + 3, 8 + (i >> 1), (i & 1) * 2048))
def g2_early(A):
    for s in range(-10, 0):
        d0, d1 = g2_dma_of(s)
        for y in d0 + d1: A(y)
HB = [192, 196, 208, 212, 224, 228, 240, 244]

def gemm1(A, M):
    W = M.WAVE; VWD = M.VWD
    def dma(b): return (M.dmaW(b, 4) + M.dmaX(b)) if ENV('WFIRST', '0') == '1' else (M.dmaX(b) + M.dmaW(b, 4))
    def acc(it, jt):
        return ("v", 32 + (jt * 8 + it) * 4) if jt < 7 else ("a", 128 + it * 4)
    def reads(buf, st):
        base = 64 * st; hi = buf >> 1; off = (buf & 1) * 32768
        o = []; la = []; lb = []
        for it in range(8):
            mat, t = it >> 2, it & 3
            for h in range(2):
                r = base + 4 * it + 2 * h
                la.append("ds_read_b64_tr_b16 a[%d:%d], v%d offset:%d" % (r, r + 1, (12 if hi else 8) + t, off + h * 8192 + mat * 2048))
        for jt in range(8):
            r = base + 32 + 4 * jt
            lb.append("ds_read_b128 a[%d:%d], v%d offset:%d" % (r, r + 3, 6 if hi else 5, off + jt * 1024))
        for i in range(8): o += [lb[i], la[2 * i], la[2 * i + 1]]
        return o
    def mfmas(st, first=False):
        base = 64 * st; o = []
        for jt in range(8):
            for it in range(8):
                f, d = acc(it, jt); dd = q(f, d)
                o.append("%s %s, %s, %s, %s" % (MF, dd, q("a", base + 4 * it), q("a", base + 32 + 4 * jt), "0" if first else dd))
        return o
    def step(i, dmas, do_read, vm, first=False, rd0=1, mid=None, extra=None):
        m = mfmas(i & 1, first)
        s1 = [[] for _ in m]; s2 = [[] for _ in m]
        r0 = rd0 if mid is not None else 0
        if do_read:
            for k, x in enumerate(reads((i + 1) & 3, (i + 1) & 1)): s1[r0 + 2 * k].append(x)
        dl = []
        for b_ in dmas: dl += dma(b_)
        if extra: dl += extra
        fl_ = []
        for g_ in dl:
            if any("exec" in y for y in g_): fl_.append(g_)
            else: fl_ += [[y] for y in g_]
        free = [k for k in range(r0, 64) if not s1[k]]
        nmem = sum(1 for g_ in fl_ if any(y.startswith("buffer") for y in g_))
        if fl_ and len(fl_) <= 30 and nmem <= 12:
            span = int(ENV("G1SPAN", "60")); pos = 0; j = 0
            for idx, g_ in enumerate(fl_):
                if any(y.startswith("buffer") for y in g_):
                    want = r0 + 3 + (j * (span - r0)) // nmem; j += 1
                elif g_[0].startswith("s_add_u32 m0"): want = r0 + 1 + (j * (span - r0)) // nmem
                else: want = 0
                while pos < len(free) - 1 and free[pos] < want: pos += 1
                s2[free[pos]] += g_; pos = min(pos + 1, len(free) - 1)
        else:
            for j, g_ in enumerate(fl_): s2[free[(j * len(free)) // len(fl_)]] += g_
        for k, x in enumerate(m):
            A(x)
            if mid is not None and k == rd0 - 1:
                nv = sum(1 for kk in range(k + 1) for y in s2[kk] if y.startswith("buffer"))
                for y in s2[k]: A(y)
                A("s_waitcnt vmcnt(%d)" % (mid + nv)); A("s_barrier")
                continue
            for y in s2[k] + s1[k]: A(y)
        if vm is not None:
            A("s_waitcnt vmcnt(%d) lgkmcnt(0)" % vm); A("s_barrier")
    for x in reads(0, 0): A(x)
    A("s_waitcnt lgkmcnt(0)")
    stamp(A, 6)
    ls = M.late_stores()
    if ENV("NOLS"): A("s_mov_b32 s34, 0")
    wt = [] if ENV("NOWT") else [M.w_touch()]
    if True:
        step(0, [3], True, 14, first=True, rd0=8, mid=6, extra=ls)
        if ENV("G1IT"): stamp(A, 2)
        step(1, [0, 1], True, 16)
        M.set_flag_w0(A, "f2y", 63, 29, 30)
        if ENV("G1IT"): stamp(A, 3)
        step(2, [2], True, 16)
        M.srd(A, 32, M.PWD, 0, 3584 * 2048)
        A("s_sub_u32 s10, s2, 32"); A("s_lshl_b32 s10, s10, 15")
        if ENV("NOWDT"): A("s_mov_b32 s34, 0")
        A("v_mul_u32_u24 v20, 1280, v2"); A("v_lshl_add_u32 v20, v1, 7, v20"); A("v_cmp_lt_u32 vcc, 9, v1"); A("v_cndmask_b32 v20, v20, 2.0, vcc")
        wt = wt + [["buffer_load_dword v18, v20, s[32:35], s10 offen", "s_add_u32 s10, s10, 5120"]]
        io_addr(A, M, 21, 22); M.srd(A, 12, M.PX, 0, 4 << 20)
        A("s_lshl_b32 s11, s%d, 12" % W); A("s_add_u32 s11, s11, 0x%x" % ZL); A("s_mov_b32 s63, s8"); A("s_add_u32 s44, s8, 0x2000")
        wt = wt + [["s_cmp_ge_u32 s63, s44", "s_cselect_b32 s14, 0, s14", "s_cselect_b32 s11, 0x%x, s11" % M.LDS_T2, "s_mov_b32 m0, s11", "s_add_u32 s11, s11, 1024",
                    "buffer_load_dwordx4 v21, s[12:15], s63 offen lds", "s_add_u32 s63, s63, 2048"]]
        M.code_srd(A, 4, "g1_npf"); A("s_bfe_u32 s71, s2, 0x20003"); A("s_lshl_b32 s71, s71, 13")
        A("v_lshlrev_b32 v23, 7, v1"); A("v_lshl_add_u32 v23, v2, 11, v23"); A("v_lshrrev_b32 v22, 4, v1"); A("v_lshl_add_u32 v23, v22, 24, v23")
        wt = wt + [["buffer_load_dword v19, v23, s[4:7], s71 offen"]]
        step(3, [3], True, 16 + len(wt), extra=wt)
    if ENV("G1IT"): stamp(A, 4)
    A("s_mov_b32 s45, 6")
    A.raw(".p2align 6")
    A.label("g1_loop")
    for i in range(4): step(i, [i], True, 16 + (len(wt) if i != 2 else 0), extra=(wt + [["s_sub_u32 s45, s45, 1", "s_cmp_lg_u32 s45, 0"]]) if i == 3 else None)
    A("s_cbranch_scc1 g1_loop")
    A.label("g1_npf")
    if ENV("G1IT"): stamp(A, 5)
    A0 = A; A = Asm()
    M.srd(A, 36, M.PWS, M.WS_H, M.SZ_H)
    A("s_bfe_u32 s40, s2, 0x20001"); A("s_lshl_b32 s41, s42, 2"); A("s_add_u32 s41, s41, s40")
    A("s_mul_i32 s40, s40, 7"); A("s_sub_u32 s40, s43, s40")
    A("s_lshl_b32 s55, s41, 3"); A("s_add_u32 s55, s55, s40"); A("s_lshl_b32 s55, s55, 7"); A("s_add_u32 s55, s55, %d" % M.FB)
    A("s_lshl_b32 s40, s40, 1"); A("s_add_u32 s40, s40, s46")
    A("s_mul_i32 s52, s41, 28"); A("s_add_u32 s52, s52, s40"); A("s_lshl_b32 s52, s52, 14"); A("s_lshl_b32 s53, s47, 13"); A("s_add_u32 s52, s52, s53")
    A("s_lshl_b32 s54, s41, 1"); A("s_add_u32 s54, s54, s47"); A("s_lshl_b32 s54, s54, 4"); A("s_add_u32 s54, s54, s40")
    A("s_lshl_b32 s54, s54, 7"); A("s_add_u32 s54, s54, %d" % M.FH)
    A("s_mov_b32 s46, %d" % M.F3)
    hb = [[t] for k, t in A.items]; A = A0
    DT = [24, 25, 26, 27]
    def grp(B):
        o = [[]]
        for k, t in B.items:
            o[-1].append(t)
            if t.startswith("buffer"): o.append([])
        return [x for x in o if x]
    nv = lambda l: sum(1 for x in l for y in x if y.startswith("buffer"))
    B = Asm(); g2_setup(B, M, DT, 22, 31); su = hb + [[t] for k, t in B.items]
    B = Asm(); i_tabs(B, M); tb = grp(B)
    fl = [["s_bfm_b64 exec, 32, 0", "buffer_load_dword v4, v28, s[%d:%d], s46 offen sc1" % (M.SFL, M.SFL + 3), "s_mov_b64 exec, -1"]]
    e0 = su + [g2_dma(0, p, DT) for p in range(8)]
    xr = [["v_lshl_add_u32 v21, v2, 12, v3", "v_add_u32 v21, 0x%x, v21" % ZL] + ["ds_read_b128 %s, v21 offset:%d" % (q("a", 240 + 4 * i), i * 1024) for i in range(4)]]
    e1 = xr + [g2_dma(1, p, DT) for p in range(8)]
    e2 = [g2_dma(0, p, DT) for p in range(4)]
    step(0, [], True, 8 + nv(e0), extra=e0); step(1, [], True, nv(e0) + nv(e1), extra=e1); step(2, [], True, 63, extra=e2)
    if ENV("G1IT"): stamp(A, 8); stamp(A, 9)
    e3 = [["v_mov_b32 v%d, v%d" % (DV[i], DT[i])] for i in range(4)] + tb + [["v_mov_b32 v7, v28"]]
    step(3, [], False, None, extra=e3)
    stamp(A, 7)
    c0 = math.sqrt(2 / math.pi)
    c1 = -2 * c0 * math.log2(math.e); c2 = c1 * 0.044715
    A("s_mov_b32 s56, 0x%x" % f32(c2)); A("s_mov_b32 s57, s56")
    A("v_mov_b32 v8, 0x%x" % f32(c1)); A("v_mov_b32 v9, v8"); A("v_mov_b32 v10, 1.0"); A("v_mov_b32 v11, 1.0"); A("v_mov_b32 v12, 0")
    n = 0
    for p in range(2):
        for jt in range(8):
            b0 = 32 + (jt % 7) * 32
            g = b0 + 8 * p; u = b0 + 16 + 8 * p
            if jt == 7:
                for i in range(8):
                    A("v_accvgpr_read_b32 v%d, a%d" % (g + i, 128 + 8 * p + i)); A("v_accvgpr_read_b32 v%d, a%d" % (u + i, 144 + 8 * p + i))
            T = 16 + 8 * (n % 2); n += 1
            H4 = range(0, 8, 2)
            for e in H4: A("v_pk_mul_f32 %s, %s, %s" % (p2(T + e), p2(g + e), p2(g + e)))
            for e in H4: A("v_pk_fma_f32 %s, %s, s[56:57], v[8:9]" % (p2(T + e), p2(T + e)))
            for e in H4: A("v_pk_mul_f32 %s, %s, %s" % (p2(T + e), p2(T + e), p2(g + e)))
            for e in range(8): A("v_exp_f32 v%d, v%d" % (T + e, T + e))
            for e in H4: A("v_pk_mul_f32 %s, %s, %s" % (p2(u + e), p2(u + e), p2(g + e)))
            for e in H4: A("v_pk_add_f32 %s, %s, v[10:11]" % (p2(T + e), p2(T + e)))
            for e in range(8): A("v_rcp_f32 v%d, v%d" % (T + e, T + e))
            A("s_add_u32 s53, s52, 0x%x" % (p * 14 * 16384 + (jt >> 2) * 4096))
            for e in H4: A("v_pk_mul_f32 %s, %s, %s" % (p2(u + e), p2(u + e), p2(T + e)))
            dst = g
            for e in range(4): A("v_cvt_pk_bf16_f32 v%d, v%d, v%d" % (dst + e, u + 2 * e, u + 2 * e + 1))
            A("buffer_store_dwordx4 %s, v3, s[36:39], s53 offen offset:%d%s" % (q("v", g), (jt & 3) * 1024, " sc1"))
            if p == 0 and jt == 5:
                for y in fl[0]: A(y.replace("v28", "v7"))
            if p == 1 and jt == 1:
                if ENV("EIT"): stamp(A, 2)
                A("s_waitcnt vmcnt(4)")
                A("v_cmp_ne_u32 vcc, s%d, v4" % M.TOK); A("s_nop 1"); A("s_mov_b32 vcc_hi, 0"); A("s_nop 3")
                A("s_cbranch_vccz pd_f3g")
                M.poll(A, "f3g", 46, 7, 4, 32, sleep=4)
                if ENV("EIT"): stamp(A, 3)
                z_fetch(A, M, zs=32)
            if p == 1 and jt == int(ENV("FLAGA", "3")):
                A("s_waitcnt vmcnt(%d)" % (jt + 1 + 4))
                M.set_flag(A, 54, 12, 4)
                if ENV("EIT"): stamp(A, 4)
    if ENV("EIT"): stamp(A, 5)
    A("s_waitcnt vmcnt(7)")
    A("s_mov_b32 s58, 1")

def gemm2(A, M):
    W = M.WAVE
    if not ENV("G1IT"): stamp(A, 8)
    io_addr(A, M, 28, 29)
    XR, SR = 176, 192
    def io(i): return "s%d offen offset:%d" % (8 + (i >> 1), (i & 1) * 2048)
    for i in range(16): A("v_accvgpr_read_b32 v%d, a%d" % (XR + i, 240 + i))
    A("s_barrier")
    ZD, D1, DS, PK, ITW, TT = 32, 48, 80, 112, 128, 144
    A("v_lshrrev_b32 v20, 1, v1"); A("v_and_b32 v20, 7, v20"); A("v_lshlrev_b32 v21, 1, v2"); A("v_xor_b32 v20, v20, v21"); A("v_lshlrev_b32 v20, 4, v20")
    A("v_lshl_add_u32 v20, v1, 7, v20"); A("v_add_u32 v20, 0x%x, v20" % ZL); A("v_xor_b32 v21, 16, v20")
    for k in range(2):
        for dh in range(2): A("ds_read_b128 %s, v%d offset:%d" % (q("v", ZD + 8 * k + 4 * dh), 20 + k, dh * 8192))
    A("v_add_u32 v23, 0x%x, v3" % (96 * 1024))
    for dh in range(2):
        for bh in range(2):
            for part in range(2): M.tab_read(A, q("a", I1 + 16 * bh + 8 * part + 4 * dh), "i1_%d%d%d" % (bh, part, dh), "i1_000", 23, 16384)
    for bh in range(2):
        for part in range(2): M.tab_read(A, q("a", I1S + 8 * bh + 4 * part), "i1s_%d%d" % (bh, part), "i1_000", 23, 16384)
    for bh in range(2):
        for part in range(2): M.tab_read(A, q("v", ITW + 8 * bh + 4 * part), "itw%d%d" % (bh, part), "i1_000", 23, 16384)
    for ah in range(2): M.tab_read(A, q("a", I2 + 4 * ah), "i2_%d" % ah, "i1_000", 23, 16384)
    A("v_and_b32 v22, 15, v1"); A("v_lshlrev_b32 v22, 10, v22"); A("v_lshrrev_b32 v23, 4, v1"); A("v_lshl_add_u32 v22, v23, 4, v22")
    A("s_and_b32 s40, s2, 1"); A("s_lshl_b32 s40, s40, 9"); A("s_lshl_b32 s41, s%d, 7" % W); A("s_add_u32 s40, s40, s41")
    A("s_lshr_b32 s41, s2, 1"); A("s_lshl_b32 s41, s41, 15"); A("s_add_u32 s40, s40, s41"); A("s_add_u32 s41, s40, 0x4000")
    A("s_mov_b32 s69, s58")
    M.srd(A, 56, M.PWS, M.WS_S, M.SZ_S)
    A("s_mov_b64 s[46:47], 0xffff")
    A("s_waitcnt lgkmcnt(6)")
    def mm(d, a, b, c=None):
        A("%s %s, %s, %s, %s" % (MF, q("v", d), a, b, "0" if c is None else q("v", c)))
    for k in range(2):
        for dh in range(2):
            for bh in range(2):
                for part in range(2):
                    d = D1 + 16 * k + 8 * bh + 4 * part
                    mm(d, q("v", ZD + 8 * k + 4 * dh), q("a", I1 + 16 * bh + 8 * part + 4 * dh), None if dh == 0 else d)
        for bh in range(2):
            for part in range(2):
                mm(DS + 16 * k + 8 * bh + 4 * part, q("v", ZD + 8 * k + 4 * part), q("a", I1S + 8 * bh + 4 * part))
    neg = " neg_lo:[1,0,0] neg_hi:[1,0,0]"
    A("s_waitcnt lgkmcnt(0)")
    for k in range(2):
        for x in range(4):
            A("v_cndmask_b32 v%d, v%d, v%d, s[46:47]" % (D1 + 16 * k + 4 * x, D1 + 16 * k + 4 * x, DS + 16 * k + 4 * x))
        for bh in range(2):
            re = D1 + 16 * k + 8 * bh; im = re + 4; tc = ITW + 8 * bh; ts = tc + 4; t = TT + 8 * bh
            for h in (0, 2): A("v_pk_mul_f32 %s, %s, %s" % (p2(t + h), p2(re + h), p2(tc + h)))
            for h in (0, 2): A("v_pk_mul_f32 %s, %s, %s" % (p2(t + 4 + h), p2(im + h), p2(tc + h)))
            for h in (0, 2): A("v_pk_fma_f32 %s, %s, %s, %s%s" % (p2(t + h), p2(im + h), p2(ts + h), p2(t + h), neg))
            for h in (0, 2): A("v_pk_fma_f32 %s, %s, %s, %s" % (p2(t + 4 + h), p2(re + h), p2(ts + h), p2(t + 4 + h)))
            for r in range(4): A("v_cvt_pk_bf16_f32 v%d, v%d, v%d" % (PK + 8 * k + 4 * bh + r, t + r, t + 4 + r))
    for k in range(2):
        for ah in range(2):
            for bh in range(2): mm(D1 + 16 * k + 8 * ah + 4 * bh, q("v", PK + 8 * k + 4 * bh), q("a", I2 + 4 * ah))
    ACC = 32; AF, HR = 0, 128
    RA = 232
    A("v_lshl_add_u32 v4, v2, 12, v3")
    A("v_lshrrev_b32 v24, 2, v1"); A("v_lshlrev_b32 v25, 8, v24"); A("v_and_b32 v26, 3, v1"); A("v_lshl_add_u32 v25, v26, 3, v25")
    A("v_and_b32 v24, 7, v24"); A("s_lshl_b32 s45, s44, 1"); A("v_xor_b32 v24, s45, v24")
    for t in range(8):
        A("v_xor_b32 v26, %d, v24" % t); A("v_lshl_add_u32 v%d, v26, 5, v25" % (RA + t)); A("v_add_u32 v%d, 0x10000, v%d" % (RA + 8 + t, RA + t))
    A("v_mov_b32 v12, 0"); A("v_lshlrev_b32 v13, 7, v1")
    SO = 160
    for k in range(2):
        for x in range(8): A("v_cvt_pk_bf16_f32 v%d, v%d, v%d" % (SO + 8 * k + x, D1 + 16 * k + 2 * x, D1 + 16 * k + 2 * x + 1))
    A("s_lshl_b32 s60, s42, 2"); A("s_add_u32 s60, s60, s44")
    A("s_lshl_b32 s47, s60, 10"); A("s_add_u32 s47, s47, %d" % M.FB)
    A("s_lshl_b32 s46, s60, 1"); A("s_lshr_b32 s45, s%d, 1" % W); A("s_add_u32 s46, s46, s45"); A("s_lshl_b32 s46, s46, 11"); A("s_add_u32 s46, s46, %d" % M.FH)
    A("s_mul_i32 s60, s60, %d" % (28 * 16384))
    M.poll(A, "fa", 46, 13, 31, 14, sleep=4)
    if not ENV("G1IT") and ENV("RIT") != "2": stamp(A, 9)
    M.srd(A, 32, M.PWS, M.WS_H, M.SZ_H)
    def hload(s, jt):
        o = ["buffer_load_dwordx4 %s, v4, s[32:35], s60 offen offset:%d%s" % (q("a", HR + 16 * (s & 7) + 4 * jt), jt * 1024, M.HLD)]
        if jt == 3: o.append("s_add_u32 s60, s60, 0x4000")
        return o
    NK = 28; R = 8; LA = int(ENV("G2LA", "6"))
    units = [[(s_, tuple(range(8)))] for s_ in range(NK - R)]
    for d in (3, 2, 1, 0):
        for s_ in range(NK - R, NK, 4): units.append([(s_ + i, (2 * d, 2 * d + 1)) for i in range(4)])
    def frs(u):
        o = []
        for s_, tl in units[u]:
            for t in tl: o.append((s_, t, AF + 32 * (u & 3) + 4 * len(o)))
        return o
    def ureads(u):
        o = []
        for s_, t, r in frs(u):
            for h in range(2):
                o.append("ds_read_b64_tr_b16 a[%d:%d], v%d offset:%d" % (r + 2 * h, r + 2 * h + 1, RA + 8 * ((s_ >> 3) & 1) + t, (s_ & 7) * 8192 + h * 4096))
        return o
    vm = []
    NH0 = 3
    for s_ in range(NH0):
        for jt in range(4):
            for y in hload(s_, jt): A(y)
            vm.append(("H", s_))
    for x in ureads(0) + ureads(1): A(x)
    lg = [0] * 16 + [1] * 16
    A("s_lshl_b32 s53, s2, 2"); A("s_add_u32 s53, s53, s%d" % W); A("s_mul_i32 s52, s53, %d" % (3 * 4096)); A("s_lshl_b32 s53, s53, 9"); A("s_add_u32 s53, s53, %d" % M.FX)
    A("s_lshl_b32 s54, s2, 7"); A("s_add_u32 s54, s54, %d" % M.FS)
    A("s_lshl_b32 s46, s42, 12"); A("s_lshl_b32 s45, s%d, 10" % W); A("s_add_u32 s46, s46, s45"); A("s_add_u32 s46, s46, %d" % M.FS)
    M.srd(A, 36, M.PWS, M.WS_XC, M.SZ_XC)
    A("v_and_b32 v21, 15, v1"); A("v_mul_u32_u24 v16, 80, v21"); A("v_lshrrev_b32 v21, 4, v1"); A("v_lshl_add_u32 v16, v21, 3, v16"); A("v_lshl_add_u32 v16, v2, 13, v16")
    A("v_lshrrev_b32 v21, 2, v1"); A("v_mul_u32_u24 v17, 80, v21"); A("v_and_b32 v21, 3, v1"); A("v_lshl_add_u32 v17, v21, 4, v17"); A("v_lshl_add_u32 v17, v2, 13, v17")
    FL = "s[%d:%d]" % (M.SFL, M.SFL + 3)
    def quick(tag, vd, nl, soff):
        A("v_cmp_ne_u32 vcc, s%d, v%d" % (M.TOK, vd)); A("s_nop 1"); A("s_bfm_b64 s[66:67], %d, 0" % nl); A("s_and_b64 vcc, vcc, s[66:67]"); A("s_nop 3")
        A("s_cbranch_vccz pd_%s" % tag)
        M.poll(A, tag, soff, 13, vd, nl)
    def vwait(tags):
        last = max([i for i, t in enumerate(vm) if t in tags] + [-1])
        return min(63, len(vm) - 1 - last)
    def lwait(u):
        last = max(i for i, t in enumerate(lg) if t == u)
        return min(15, len(lg) - 1 - last)
    cert = 0; hnext = NH0
    UFB = 14 - LA
    for u in range(len(units)):
        ks = [x[0] for x in units[u]]
        need = [("H", k) for k in ks]
        nxt = max(x[0] for x in units[u + 2]) >> 2 if u + 2 < len(units) else 0
        bar = nxt > cert
        if bar: need.append(("W", nxt))
        if u == 14: need += [("S", 0)]
        if u == UFB: need += [("fb", 0)]
        if u == 21: need += [("fs", 0)]
        sd = {22: 3, 24: 2, 26: 1}.get(u); fd = {25: 3, 27: 2}.get(u)
        if fd: need += [("X", fd)]
        if u == 27: need += [("fx3", 0)]
        A("s_waitcnt vmcnt(%d) lgkmcnt(%d)" % (vwait(need), lwait(u)))
        if bar: A("s_barrier"); cert = nxt
        if u == 2:
            assert bar
            A("s_cmp_lg_u32 s%d, 0" % W); A("s_cbranch_scc1 g2_np")
            A("s_cmp_eq_u32 s69, 0"); A("s_cbranch_scc1 g2_np")
            M.set_flag(A, 55, 12, 25)
            A.label("g2_np")
        if u == 14:
            assert bar
            M.set_flag_w0(A, "fs", 54, 12, 25)
        if u == 27:
            A("v_cmp_ne_u32 s[6:7], s%d, v23" % M.TOK); A("s_nop 1")
            for d in (2, 1):
                A("s_bitcmp1_b32 s6, %d" % d); A("s_cselect_b32 s%d, 0x%x, s52" % (60 + d, 0x7fff0000)); A("s_add_u32 s%d, s%d, %d" % (60 + d, 60 + d, d * 4096))
        if u == UFB: quick("fb", 18, 7, 47)
        if u == 21: quick("fs", 19, 8, 46)
        if ENV("FIT") and u in (20, 24): stamp(A, 2 + (u - 20) // 4)
        if ENV("G2IT") and u % 4 == 0 and u < 24: stamp(A, 2 + u // 4)
        rd = ureads(u + 2) if u + 2 < len(units) else []
        fr = frs(u)
        ex = [[] for _ in range(32)]
        def flagst(d):
            return ["s_xor_b32 s45, s53, 0x%x" % (d << 12), "v_mov_b32 v25, s%d" % M.TOK, "s_mov_b64 exec, 1",
                    "buffer_store_dword v25, v12, %s, s45 offen offset:%d sc1" % (FL, (d - 1) * 128), "s_mov_b64 exec, -1"]
        if fd: ex[1].append((flagst(fd), ("F", fd)))
        if u < NK - R:
            iv = (u + 10) >> 2
            if iv < 6:
                d0, d1 = g2_dma_of(u); ex[5].append((d0, ("W", iv))); ex[21].append((d1, ("W", iv)))
            elif u in (14, 15):
                for i in range(2):
                    d0, d1 = g2_dma_of(14 + 2 * (u - 14) + i); ex[5 + 16 * i].append((d0, ("W", 6))); ex[9 + 16 * i].append((d1, ("W", 6)))
            tgt = min(NK, u + 1 + LA + (2 if u >= NK - R - 3 else 0), u + 8)
            n = min(2, tgt - hnext)
            last = u == NK - R - 1
            for i in range(n):
                assert hnext < 14 or u >= UFB
                for jt in range(4): ex[jt if last else (2 + 16 * i + 4 * jt) if n == 2 else (3 + 8 * jt)].append((hload(hnext, jt), ("H", hnext)))
                hnext += 1
            if last:
                assert n <= 1 and hnext == u + 8
                for jt in range(4): ex[8 * jt + 7].append((hload(hnext, jt), ("H", hnext)))
                hnext += 1
        for i in ((2 * u - 16, 2 * u - 15) if u in (8, 9) else ()):
            ex[15 + 16 * (i & 1)].append((["buffer_store_dwordx4 %s, v22, s[56:59], s%d offen offset:%d sc1" % (q("v", SO + 4 * i), 40 + (i & 1), (i >> 1) * 64)], ("S", 0)))
        if u == UFB - 3: ex[29].append((["s_bfm_b64 exec, 7, 0", "buffer_load_dword v18, v13, %s, s47 offen sc1" % FL, "s_mov_b64 exec, -1"], ("fb", 0)))
        if u == 18: ex[29].append((["s_bfm_b64 exec, 8, 0", "buffer_load_dword v19, v13, %s, s46 offen sc1" % FL, "s_mov_b64 exec, -1"], ("fs", 0)))
        if u == 21:
            ex[0].append((["s_lshl_b32 s6, s42, 19", "s_lshl_b32 s7, s%d, 17" % W, "s_add_u32 s6, s6, s7", "s_lshl_b32 s7, s43, 12", "s_add_u32 s6, s6, s7", "s_lshl_b32 s7, s44, 10", "s_add_u32 s6, s6, s7"], None))
            for i in range(4): ex[3 + 8 * i].append((["buffer_load_dwordx4 %s, v3, s[56:59], s6 offen sc1" % q("v", SR + 4 * i), "s_add_u32 s6, s6, 0x8000"], ("s", 0)))
        if u == 26: ex[1].append((["s_bfm_b64 exec, 3, 0", "buffer_load_dword v23, v13, %s, s53 offen sc1" % FL, "s_mov_b64 exec, -1"], ("fx3", 0)))
        if u == 27: ex[20].append((["s_bfm_b64 exec, 3, 0", "buffer_load_dword v24, v13, %s, s53 offen sc1" % FL, "s_mov_b64 exec, -1"], ("fx", 0)))
        if u == 27:
            for d in (2, 1):
                for i in range(4): ex[2 + 2 * i + 8 * (2 - d)].append((["buffer_load_dwordx4 %s, v3, s[36:39], s%d offen offset:%d sc1" % (q("v", 128 + 16 * d + 4 * i), 60 + d, i * 1024)], ("P", d)))
        if sd:
            b0 = ACC + 32 * sd
            ex[0].append((["s_xor_b32 s45, s2, %d" % (sd << 1), "s_lshl_b32 s45, s45, 2", "s_add_u32 s45, s45, s%d" % W, "s_mul_i32 s45, s45, %d" % (3 * 4096), "s_add_u32 s45, s45, %d" % ((sd - 1) * 4096)], None))
            for i in range(4):
                for e in range(4): ex[4 + 4 * i + e].append((["v_cvt_pk_bf16_f32 v%d, v%d, v%d" % (b0 + 8 * i + e, b0 + 8 * i + 2 * e, b0 + 8 * i + 2 * e + 1)], None))
                ex[8 + 4 * i].append((["buffer_store_dwordx4 %s, v3, s[36:39], s45 offen offset:%d sc1" % (q("v", b0 + 8 * i), i * 1024)], ("X", sd)))
        if not sd:
            flat_ = []
            for i in range(32):
                for ins, tag in ex[i]:
                    if any("exec" in y for y in ins): flat_.append((i, ins, tag))
                    else: flat_ += [(i, [y], tag) for y in ins]
            ex = [[] for _ in range(32)]; nxt_ = 1
            for i, ins, tag in flat_:
                p_ = max(nxt_, i | 1)
                if ins[0].startswith("s_add_u32 m0") and (i | 1) - 2 >= nxt_: p_ = (i | 1) - 2
                p_ = min(p_, 31); ex[p_].append((ins, tag)); nxt_ = p_ + 2
        k = 0
        if len(units[u]) == 1: seq = [(f, jt) for jt in range(4) for f in fr]
        else: seq = [(f, jt) for f in fr for jt in range(4)]
        for i, ((s_, t, r), jt) in enumerate(seq):
            d = q("v", ACC + 16 * t + 4 * jt)
            A("%s %s, %s, %s, %s" % (MF, d, q("a", r), q("a", HR + 16 * (s_ & 7) + 4 * jt), "0" if s_ == 0 else d))
            if i % 2 == 0 and i // 2 < len(rd): A(rd[i // 2]); lg.append(u + 2)
            for ins, tag in ex[i]:
                for y in ins:
                    A(y)
                    if y.startswith("buffer"): vm.append(tag)
    assert hnext == NK
    if ENV("RIT") != "2": stamp(A, 10)
    nl2e = -math.log2(math.e)
    A("s_mov_b32 s56, 0x%x" % f32(nl2e)); A("s_mov_b32 s57, s56"); A("s_mov_b32 s59, 0xffff0000")
    A("v_mov_b32 v26, 1.0"); A("v_mov_b32 v27, 1.0")
    A("s_waitcnt vmcnt(%d)" % vwait([("X", 1)]))
    for y in flagst(1): A(y)
    vm.append(("F", 1))
    if ENV("FIT"): stamp(A, 4)
    UX, US, PB = 64, 96, 128
    H4 = range(0, 8, 2)
    def pl(d):
        A("s_add_u32 s45, s52, %d" % (d * 4096))
        for i in range(4): A("buffer_load_dwordx4 %s, v3, s[36:39], s45 offen offset:%d sc1" % (q("v", PB + 16 * d + 4 * i), i * 1024))
    def unp():
        for i in range(16):
            A("v_lshlrev_b32 v%d, 16, v%d" % (UX + 2 * i, XR + i)); A("v_and_b32 v%d, s59, v%d" % (UX + 2 * i + 1, XR + i))
            A("v_lshlrev_b32 v%d, 16, v%d" % (US + 2 * i, SR + i)); A("v_and_b32 v%d, s59, v%d" % (US + 2 * i + 1, SR + i))
    A("s_waitcnt vmcnt(%d)" % vwait([("fx", 0)]))
    A("v_cmp_ne_u32 s[10:11], s%d, v24" % M.TOK); A("s_nop 1")
    for d in (2, 1, 0):
        if d: A("s_bitcmp1_b32 s6, %d" % d); A("s_cbranch_scc0 fx_have%d" % d)
        A("s_bitcmp1_b32 s10, %d" % d); A("s_cbranch_scc0 pd_fx%d" % d)
        A("s_add_u32 s45, s53, %d" % (128 * d))
        M.poll(A, "fx%d" % d, 45, 13, 24, 1, sleep=1)
        pl(d)
        if d: A.label("fx_have%d" % d)
        if ENV("FIT") and d == 1: stamp(A, 5)
    unp()
    A("s_barrier")
    A("s_waitcnt vmcnt(4)")
    if ENV("FIT"): stamp(A, 6)
    M.srd(A, 12, M.POUT, 0, 4 << 20)
    def addp(t, d, tt):
        for e in range(4):
            A("v_lshlrev_b32 v%d, 16, v%d" % (tt + 2 * e, PB + 16 * d + 4 * t + e)); A("v_and_b32 v%d, s59, v%d" % (tt + 2 * e + 1, PB + 16 * d + 4 * t + e))
        for e in H4: A("v_pk_add_f32 %s, %s, %s" % (p2(ACC + 8 * t + e), p2(ACC + 8 * t + e), p2(tt + e)))
    for t in range(4):
        for d in (2, 1): addp(t, d, 208 + 8 * d)
    for t in range(4):
        b = 8 * t; T = 208 + 8 * (t & 1)
        A("s_waitcnt vmcnt(%d)" % (3 - t))
        if ENV("FIT") and t == 0: stamp(A, 7)
        addp(t, 0, T)
        for e in H4: A("v_pk_mul_f32 %s, %s, s[56:57]" % (p2(T + e), p2(ACC + b + e)))
        for e in range(8): A("v_exp_f32 v%d, v%d" % (T + e, T + e))
        A("s_nop 0")
        for e in H4: A("v_pk_add_f32 %s, %s, v[26:27]" % (p2(T + e), p2(T + e)))
        for e in range(8): A("v_rcp_f32 v%d, v%d" % (T + e, T + e))
        A("s_nop 0")
        for e in H4: A("v_pk_mul_f32 %s, %s, %s" % (p2(ACC + b + e), p2(ACC + b + e), p2(T + e)))
        for e in range(4): A("v_cvt_pk_bf16_f32 v%d, v%d, v%d" % (SR + 4 * t + e, ACC + b + 2 * e, ACC + b + 2 * e + 1))
        for u in range(2):
            A("ds_write_b64 v16, %s offset:%d" % (p2(SR + 4 * t + 2 * u), (2 * (t & 1) + u) * 16 * 80 + (t >> 1) * 32))
    A("s_waitcnt lgkmcnt(0)")
    for i in range(4): A("ds_read_b128 %s, v17 offset:%d" % (q("v", ACC + 4 * i), i * 16 * 80))
    for i in range(4):
        A("s_waitcnt lgkmcnt(%d)" % (3 - i))
        T = 208 + 8 * (i & 1)
        for e in range(4):
            A("v_lshlrev_b32 v%d, 16, v%d" % (T + 2 * e, ACC + 4 * i + e)); A("v_and_b32 v%d, s59, v%d" % (T + 2 * e + 1, ACC + 4 * i + e))
        for e in H4: A("v_pk_fma_f32 %s, %s, %s, %s" % (p2(UX + 8 * i + e), p2(US + 8 * i + e), p2(T + e), p2(UX + 8 * i + e)))
        for e in range(4): A("v_cvt_pk_bf16_f32 v%d, v%d, v%d" % (XR + 4 * i + e, UX + 8 * i + 2 * e, UX + 8 * i + 2 * e + 1))
        A("buffer_store_dwordx4 %s, v28, s[12:15], %s" % (q("v", XR + 4 * i), io(i)))
    if G.STAMP:
        A("s_waitcnt vmcnt(0)")
        stamp(A, 11); A("s_memrealtime s[100:101]"); A("s_waitcnt lgkmcnt(0)")
        G.stamp_out(A, 0, 12, M.PWS, "all")
        A("v_mov_b32 v2, s100"); A("buffer_store_dword v2, v1, s[96:99], 0 offen offset:48")

def colfft(A, M):
    W_ = M.WAVE
    DAT, FA, FE = 128, 160, 176
    W, T1, T2, D, P, TMP = 8, 40, 48, 104, 168, 200
    A("s_waitcnt lgkmcnt(0)")
    M.flat(A, M.late_stores())
    M.srd(A, 36, M.PWS, M.WS_WT, M.SZ_WT)
    A("v_mov_b32 v240, 0"); A("v_lshlrev_b32 v242, 7, v1")
    RB = M.RB
    A("s_barrier")
    if ENV("RIT") == "2": stamp(A, 2)
    M.filt_dma(A, 1)
    if ENV("RIT") == "2": stamp(A, 9)
    A("s_waitcnt vmcnt(11)"); A("s_barrier")
    M.set_flag_w0(A, "f2f", 63, 240, 241)
    if ENV("RIT") == "2": stamp(A, 10)
    A("v_and_b32 v232, 7, v0"); A("v_lshrrev_b32 v233, 3, v0")
    A("v_lshlrev_b32 v235, 16, v233"); A("v_lshl_add_u32 v235, v232, 4, v235")
    A("v_mul_u32_u24 v236, 1026, v232"); A("v_and_b32 v236, -4, v236"); A("v_lshl_add_u32 v236, v233, 4, v236"); A("v_add_u32 v237, 0x%x, v236" % RB)
    A("v_and_b32 v239, 1, v0"); A("v_lshlrev_b32 v239, 4, v239")
    A("s_lshl_b32 s43, s2, 8"); A("s_mov_b32 s48, 0x05040100"); A("s_mov_b32 s49, 0x07060302")
    A("s_lshl_b32 s41, s2, 6"); A("v_add_u32 v200, s41, v1"); A("v_sub_u32 v201, 2048, v200"); A("v_and_b32 v201, 0x7ff, v201")
    A("v_mul_u32_u24 v202, 1026, v200"); A("v_mul_u32_u24 v201, 1026, v201")
    names = []
    for inv in range(2):
        for part in range(2): names.append(("fa_%d%d" % (inv, part), ar(FA + 8 * inv + 4 * part, 4)))
    for ih in range(2): names.append(("fe32_%d" % ih, ar(FE + 4 * ih, 4)))
    for nm, r in names: G.tab_load(A, r, nm, 3, M.STAB, 42)
    A("v_and_b32 v8, 15, v1"); A("v_lshrrev_b32 v9, 4, v1"); A("v_lshlrev_b32 v9, 2, v9")
    for r in range(4):
        A("v_add_u32 v10, %d, v9" % r); A("v_mul_u32_u24 v11, v10, v8"); A("v_lshl_add_u32 v10, v10, 4, v8")
        A("v_cvt_f32_u32 v11, v11"); A("v_cvt_f32_u32 v%d, v10" % (12 + r)); A("v_mul_f32 v11, 0x%x, v11" % f32(1.0 / 256))
        A("v_cos_f32 v%d, v11" % (T1 + r)); A("v_sin_f32 v%d, v11" % (T1 + 4 + r))
    for e in range(1, 8):
        for r in range(4):
            A("v_mul_f32 v%d, 0x%x, v%d" % (16 + r, f32(e / 2048.0), 12 + r))
        for r in range(4):
            A("v_cos_f32 v%d, v%d" % (T2 + 8 * (e - 1) + r, 16 + r)); A("v_sin_f32 v%d, v%d" % (T2 + 8 * (e - 1) + 4 + r, 16 + r))
    A("s_waitcnt vmcnt(%d)" % len(names)); A("s_barrier")
    if ENV("RIT"): stamp(A, 3)
    A("s_cmp_lg_u32 s%d, %d" % (W_, 9 if ENV("NOAB") else 0)); A("s_cbranch_scc1 r_noabl")
    for i, (va, sd, off) in enumerate([(202, 52, 0), (202, 56, 0), (201, 52, 0), (201, 56, 0), (202, 52, 1024), (202, 56, 1024), (201, 52, 1024), (201, 56, 1024)]):
        A("buffer_load_ushort v%d, v%d, s[%d:%d], 0 offen offset:%d" % (208 + i, va, sd, sd + 3, off))
    A.label("r_noabl")
    A("s_lshl_b32 s44, s%d, 13" % W_); A("s_add_u32 s44, s44, %d" % M.F2)
    def rrd(n):
        HL = 104 + 48 * (n & 1)
        for r in range(4):
            for mm_ in range(2):
                for d in range(5): A("ds_read_b32 v%d, v%d offset:%d" % (HL + 12 * r + 6 * mm_ + d, 236 + mm_, (8 * (n >> 1) + 16 * r) * 1026 + (n & 1) * 512 + 4 * d))
    rrd(0)
    for n in range(4):
        HL = 104 + 48 * (n & 1); WO = 8
        A("s_waitcnt lgkmcnt(0)")
        if n + 1 < 4: rrd(n + 1)
        for r in range(4):
            for mm_ in range(2):
                b = HL + 12 * r + 6 * mm_
                for d in range(4): A("v_alignbit_b32 v%d, v%d, v%d, v239" % (b + d, b + d + 1, b + d))
        for c in range(8):
            for r in range(4): A("v_perm_b32 v%d, v%d, v%d, s%d" % (WO + 4 * c + r, HL + 12 * r + 6 + (c >> 1), HL + 12 * r + (c >> 1), 48 + (c & 1)))
            A("s_add_u32 s41, s43, 0x%x" % (((n & 1) << 21) + (n >> 1) * 128 + c * 8192))
            A("buffer_store_dwordx4 %s, v235, s[36:39], s41 offen sc1" % q("v", WO + 4 * c))
    A("s_cmp_lg_u32 s%d, 0" % W_); A("s_cbranch_scc1 r_noab")
    A("s_waitcnt vmcnt(32)")
    for i in range(8): A("v_lshlrev_b32 v%d, 16, v%d" % (208 + i, 208 + i))
    A("v_add_f32 v216, v208, v210"); A("v_sub_f32 v217, v209, v211"); A("v_add_f32 v218, v212, v214"); A("v_sub_f32 v219, v213, v215")
    A("v_add_f32 v220, v216, v218"); A("v_add_f32 v221, v217, v219"); A("v_sub_f32 v222, v216, v218"); A("v_sub_f32 v223, v217, v219")
    for i in range(4): A("v_mul_f32 v%d, 0x3e800000, v%d" % (220 + i, 220 + i))
    A("v_cvt_pk_bf16_f32 v220, v220, v221"); A("v_cvt_pk_bf16_f32 v222, v222, v223")
    A("v_and_b32 v216, 15, v200"); A("v_lshlrev_b32 v216, 4, v216"); A("v_bfe_u32 v217, v200, 4, 2"); A("v_lshl_add_u32 v216, v217, 2, v216")
    A("v_lshrrev_b32 v217, 6, v200"); A("v_lshl_add_u32 v216, v217, 8, v216")
    A("s_mov_b32 s40, 0x%x" % (512 * 8192)); A("s_mov_b32 s41, 0x%x" % (513 * 8192))
    A("buffer_store_dword v220, v216, s[36:39], s40 offen sc1"); A("buffer_store_dword v222, v216, s[36:39], s41 offen sc1")
    A.label("r_noab")
    A("buffer_load_dword v244, v242, s[%d:%d], s44 offen sc1" % (M.SFL, M.SFL + 3))
    if ENV("RIT") == "1": stamp(A, 2)
    A("v_and_b32 v4, 15, v1"); A("v_lshrrev_b32 v5, 4, v1")
    A("v_lshlrev_b32 v6, 6, v4"); A("v_lshl_add_u32 v6, v5, 4, v6")
    for k in range(4):
        A("v_add_u32 v7, %d, v5" % (4 * k)); A("v_xor_b32 v7, v7, v4"); A("v_lshlrev_b32 v7, 4, v7"); A("v_lshl_add_u32 v%d, v5, 8, v7" % (232 + k))
    A("v_lshrrev_b32 v7, 5, v1"); A("v_lshlrev_b32 v7, 3, v7"); A("v_bfe_u32 v236, v1, 4, 1"); A("v_or_b32 v7, v7, v236"); A("v_xor_b32 v7, v7, v4")
    A("v_lshlrev_b32 v7, 4, v7"); A("v_lshl_add_u32 v236, v4, 8, v7"); A("v_lshl_add_u32 v236, v2, 15, v236")
    A("v_add_u32 v4, 0x1000, v3")
    A("s_lshl_b32 s51, s2, 2"); A("s_add_u32 s51, s51, s%d" % W_)
    A("s_and_b32 s41, s51, 15"); A("s_bfe_u32 s42, s51, 0x20004"); A("s_lshl_b32 s42, s42, 7")
    A("s_add_u32 s40, s41, s42")
    A("s_sub_u32 s43, 32, s41"); A("s_cmp_eq_u32 s41, 0"); A("s_cselect_b32 s43, 16, s43")
    A("s_add_u32 s43, s43, 480"); A("s_sub_u32 s43, s43, s42")
    A("s_cmp_ge_u32 s51, 64"); A("s_cselect_b32 s40, s43, s40"); A("s_cselect_b32 s50, -1, 1"); A("s_lshl_b32 s50, s50, 18")
    A("s_lshl_b32 s40, s40, 13")
    M.srd(A, 52, M.PWS, M.WS_Y, M.SZ_Y); M.srd(A, 56, M.PWS, M.WS_Z, M.SZ_Z)
    A("s_waitcnt vmcnt(0)")
    A("v_cmp_ne_u32 vcc, s%d, v244" % M.TOK); A("s_nop 4"); A("s_cbranch_vccz pd_f2")
    M.poll(A, "f2", 44, 242, 244, 64, sleep=4)
    A("s_barrier")
    A("s_add_u32 s63, s63, %d" % (M.F2B - M.F2))
    M.set_flag_w0(A, "f2fb", 63, 240, 241)
    stamp(A, 5)
    A("s_lshl_b32 s41, s51, 15"); A("s_lshl_b32 s42, s%d, 15" % W_)
    for e in range(8):
        A("s_add_u32 m0, s42, %d" % (e * 4096))
        for k in range(4): A("buffer_load_dwordx4 v%d, s[52:55], s41 offen offset:%d sc1 lds" % (232 + k, k * 1024))
        A("s_add_u32 s41, s41, 4096")
    def wload(dst, f, so):
        for e in range(8):
            A("buffer_load_dwordx4 %s, v%d, s[36:39], s%d offen offset:%d sc1" % (q(f, dst + 4 * e), 3 if e < 4 else 4, so, (e & 3) * 1024))
    A("s_mov_b32 s48, 0"); A("s_mov_b32 s49, 0xffff0000")
    def yread():
        for e in range(8): A("ds_read_b128 %s, v237 offset:%d" % (q("a", DAT + 4 * e), e * 4096))
    A("v_mov_b32 v237, v236")
    A("s_cmp_eq_u32 s51, 0"); A("s_cselect_b32 s62, 0x%x, s40" % (512 * 8192))
    A("s_mov_b32 s44, %d" % M.F2B)
    M.poll(A, "f2b", 44, 242, 244, 32, sleep=2, first_hook=yread)
    wload(W, "v", 62)
    A("s_cmp_lg_u32 s51, 0"); A("s_cbranch_scc1 cf_nb")
    A("s_mov_b32 s43, 0x%x" % (513 * 8192))
    wload(208, "a", 43)
    A.label("cf_nb")
    stamp(A, 6)
    A.label("cf_loop")
    A("s_waitcnt lgkmcnt(0)")
    def mm(d, a, b, c=None):
        A("%s %s, %s, %s, %s" % (MF, q("v", d), a, b, "0" if c is None else q("v", c)))
    tctr = [0]
    def tw_quads(dsts, re, tc, conj, TMP=TMP):
        t = TMP + 8 * (tctr[0] % 4); tctr[0] += 1
        im = re + 4; ts = tc + 4
        neg = " neg_lo:[1,0,0] neg_hi:[1,0,0]"
        for h in (0, 2): A("v_pk_mul_f32 %s, %s, %s" % (p2(t + h), p2(re + h), p2(tc + h)))
        for h in (0, 2): A("v_pk_mul_f32 %s, %s, %s" % (p2(t + 4 + h), p2(im + h), p2(tc + h)))
        for h in (0, 2): A("v_pk_fma_f32 %s, %s, %s, %s%s" % (p2(t + h), p2(im + h), p2(ts + h), p2(t + h), neg if conj else ""))
        for h in (0, 2): A("v_pk_fma_f32 %s, %s, %s, %s%s" % (p2(t + 4 + h), p2(re + h), p2(ts + h), p2(t + 4 + h), "" if conj else neg))
        for r in range(4): A("v_cvt_pk_bf16_f32 v%d, v%d, v%d" % (dsts[r], t + r, t + 4 + r))
    def cm_pairs(items):
        ts = []
        for _ in items:
            ts.append(TMP + 2 * (tctr[0] % 8)); tctr[0] += 1
        for (dst, z, c, s_), t in zip(items, ts):
            A("v_pk_mul_f32 %s, %s, %s op_sel:[0,%d] op_sel_hi:[1,%d]" % (p2(t), p2(z), p2(c & ~1), c & 1, c & 1))
        for (dst, z, c, s_), t in zip(items, ts):
            A("v_pk_fma_f32 %s, %s, %s, %s op_sel:[1,%d,0] op_sel_hi:[0,%d,1] neg_lo:[1,0,0]" % (p2(t), p2(z), p2(s_ & ~1), p2(t), s_ & 1, s_ & 1))
        for (dst, z, c, s_), t in zip(items, ts):
            A("v_cvt_pk_bf16_f32 v%d, v%d, v%d" % (dst, t, t + 1))
    for e in range(8):
        mm(D + 8 * e, q("a", DAT + 4 * e), q("a", FA)); mm(D + 8 * e + 4, q("a", DAT + 4 * e), q("a", FA + 4))
    A("s_add_u32 s40, s40, s50")
    A("s_add_u32 s43, s48, 1"); A("s_and_b32 s43, s43, 3"); A("s_lshl_b32 s43, s43, 5"); A("v_xor_b32 v237, s43, v236")
    yread()
    TP = 246
    def tw_in(re, tc, conj, k):
        im = re + 4; ts = tc + 4; t = TP + 4 * (k & 1)
        n0 = " neg_lo:[1,0,0] neg_hi:[1,0,0]"; n2 = " neg_lo:[0,0,1] neg_hi:[0,0,1]"
        for h in (0, 2): A("v_pk_mul_f32 %s, %s, %s" % (p2(t + h), p2(re + h), p2(tc + h)))
        for h in (0, 2): A("v_pk_mul_f32 %s, %s, %s" % (p2(re + h), p2(re + h), p2(ts + h)))
        for h in (0, 2): A("v_pk_fma_f32 %s, %s, %s, %s%s" % (p2(re + h), p2(im + h), p2(tc + h), p2(re + h), "" if conj else n2))
        for h in (0, 2): A("v_pk_fma_f32 %s, %s, %s, %s%s" % (p2(im + h), p2(im + h), p2(ts + h), p2(t + h), n0 if conj else ""))
    def cv_mm(mmf):
        for e in range(9):
            cv = ["v_cvt_pk_bf16_f32 v%d, v%d, v%d" % (P + 4 * e + r, D + 8 * e + 4 + r, D + 8 * e + r) for r in range(4)] if e < 8 else [None] * 4
            for h in range(2):
                for x in cv[2 * h:2 * h + 2]:
                    if x: A(x)
                if e: mmf(e - 1, h)
    for e in range(8): tw_in(D + 8 * e, T1, False, e)
    cv_mm(lambda e, h: mm(D + 8 * e + 4 * h, q("a", FA + 4 * h), q("v", P + 4 * e)))
    for e in range(8):
        if e == 0:
            for r in range(4): A("v_cvt_pk_bf16_f32 v%d, v%d, v%d" % (P + 8 * r, D + r, D + 4 + r))
        else: tw_quads([P + 8 * r + e for r in range(4)], D + 8 * e, T2 + 8 * (e - 1), False)
    def mE(r, ih):
        d = "v[%d:%d]" % (D + 16 * r, D + 16 * r + 15)
        A("%s %s, %s, %s, %s" % (MF32, d, q("a", FE + 4 * ih), q("v", P + 8 * r + 4 * ih), "0" if ih == 0 else d))
    A("s_waitcnt vmcnt(0)")
    unp = []
    for r in range(4):
        for ep in range(8):
            unp += ["v_lshlrev_b32 v%d, 16, v%d" % (TMP + 4 * ep + r, W + 4 * ep + r), "v_and_b32 v%d, s49, v%d" % (W + 4 * ep + r, W + 4 * ep + r)]
    for i in range(8):
        mE(i >> 1, i & 1)
        for x in unp[8 * i:8 * i + 8]: A(x)
    def cm_in(items):
        for k, (z, c, s_) in enumerate(items):
            A("v_pk_mul_f32 %s, %s, %s op_sel:[0,%d] op_sel_hi:[1,%d]" % (p2(TP + 2 * k), p2(z), p2(c & ~1), c & 1, c & 1))
        for k, (z, c, s_) in enumerate(items):
            A("v_pk_fma_f32 %s, %s, %s, %s op_sel:[1,%d,0] op_sel_hi:[0,%d,1] neg_lo:[1,0,0]" % (p2(z), p2(z), p2(s_ & ~1), p2(TP + 2 * k), s_ & 1, s_ & 1))
    A("s_or_b32 s43, s51, s48"); A("s_cmp_eq_u32 s43, 0"); A("s_cbranch_scc1 cf_pack")
    A.label("cf_mul")
    for r in range(4):
        for eh in range(2): cm_in([(D + 16 * r + 2 * ep, TMP + 4 * ep + r, W + 4 * ep + r) for ep in range(4 * eh, 4 * eh + 4)])
    A("s_cbranch_scc1 cf_pack2")
    A.label("cf_mul_done")
    wl = Asm(); A1 = A; A = wl; wload(W, "v", 40); A = A1
    for r in range(5):
        for ih in range(2):
            if r < 4:
                for ep in range(4 * ih, 4 * ih + 4): A("v_cvt_pk_bf16_f32 v%d, v%d, v%d" % (P + 8 * r + ep, D + 16 * r + 2 * ep, D + 16 * r + 2 * ep + 1))
            if r:
                mE(r - 1, ih); A(wl.items[2 * (r - 1) + ih][1])
    for r in range(4):
        A("v_cvt_pk_bf16_f32 v%d, v%d, v%d" % (P + r, D + 16 * r, D + 16 * r + 1))
        for xs in ((1, 2, 3, 4), (5, 6, 7)):
            cm_pairs([(P + 4 * (8 - x) + r, D + 16 * r + 2 * x, T2 + 8 * (7 - x) + r, T2 + 8 * (7 - x) + 4 + r) for x in xs])
    for e in range(8):
        mm(D + 8 * e, q("v", P + 4 * e), q("a", FA + 8)); mm(D + 8 * e + 4, q("v", P + 4 * e), q("a", FA + 12))
    for e in range(8): tw_in(D + 8 * e, T1, True, e)
    def last(e, h):
        mm(D + 8 * e + 4 * h, q("v", P + 4 * e), q("a", FA + 8 + 4 * h))
    cv_mm(last)
    for e in range(8):
        for r in range(4): A("v_cvt_pk_bf16_f32 v%d, v%d, v%d" % (P + 4 * e + r, D + 8 * e + r, D + 8 * e + 4 + r))
    for cc in range(4):
        A("s_cmp_eq_u32 s48, %d" % cc); A("s_cbranch_scc0 cf_o%d" % cc)
        for qq in range(32): A("v_accvgpr_write_b32 a%d, v%d" % (4 * qq + cc, P + qq))
        A.label("cf_o%d" % cc)
    A("s_add_u32 s48, s48, 1"); A("s_cmp_lt_u32 s48, 4"); A("s_cbranch_scc1 cf_loop")
    stamp(A, 7)
    A("v_and_b32 v238, 15, v1"); A("v_lshlrev_b32 v238, 4, v238"); A("v_lshl_add_u32 v238, v5, 20, v238")
    A("s_lshl_b32 s41, s51, 8")
    for r in range(4):
        for e in range(8):
            qq = 4 * e + r
            A("s_add_u32 s42, s41, 0x%x" % ((8 * r + e) * 32768))
            A("buffer_store_dwordx4 %s, v238, s[56:59], s42 offen sc1" % q("a", 4 * qq))
    A("s_waitcnt vmcnt(0) lgkmcnt(0)")
    A("s_lshl_b32 s44, s2, 7"); A("s_add_u32 s44, s44, %d" % M.F3)
    A("s_barrier")
    M.set_flag_w0(A, "f3", 44, 240, 241)
    if ENV("EIT"): stamp(A, 4)
    i_tabs(A, M); g2_setup(A, M); g2_early(A); x_fetch(A, M, 21, 22, 12)
    A("s_mov_b32 s46, %d" % M.F3)
    M.poll(A, "f3", 46, 242, 244, 32, sleep=4)
    z_fetch(A, M)
    A("s_mov_b32 s58, 0"); A("s_mov_b32 s55, 0"); A("s_mov_b32 s52, 0"); A("s_mov_b32 s53, 0")
    A("s_waitcnt vmcnt(0)")
    A("s_branch cf_end")
    A.label("cf_pack")
    A("s_nop 11")
    SC = M.LDS_SCR
    A("v_and_b32 v238, 15, v1"); A("v_lshl_add_u32 v238, v5, 6, v238")
    A("v_sub_u32 v239, %d, v238" % (2048 - 48 - 1792)); A("v_lshlrev_b32 v238, 3, v238"); A("v_lshlrev_b32 v239, 3, v239")
    A("v_add_u32 v238, 0x%x, v238" % SC); A("v_add_u32 v239, 0x%x, v239" % SC)
    for r in range(4):
        for ep in range(8): A("ds_write_b64 v238, %s offset:%d" % (p2(D + 16 * r + 2 * ep), 8 * (16 * r + 256 * ep)))
    A("s_mov_b64 exec, 1"); A("ds_write_b64 v238, %s offset:%d" % (p2(D), 8 * 2048)); A("s_mov_b64 exec, -1")
    MR = 0
    for r in range(4):
        for ep in range(8): A("ds_read_b64 a[%d:%d], v239 offset:%d" % (MR + 16 * r + 2 * ep, MR + 16 * r + 2 * ep + 1, 8 * (16 * (3 - r) + 256 * (7 - ep))))
    A("s_branch cf_mul")
    A.label("cf_pack2")
    U = TMP + 16
    A("s_waitcnt lgkmcnt(0)")
    for r in range(4):
        for eh in range(2):
            E4 = range(4 * eh, 4 * eh + 4)
            for ep in E4:
                A("v_accvgpr_read_b32 v%d, a%d" % (U + 2 * (ep & 3) + 1, 208 + 4 * ep + r))
                for i in range(2): A("v_accvgpr_read_b32 v%d, a%d" % (TMP + 2 * (ep & 3) + i, MR + 16 * r + 2 * ep + i))
            for ep in E4: A("v_lshlrev_b32 v%d, 16, v%d" % (U + 2 * (ep & 3), U + 2 * (ep & 3) + 1)); A("v_and_b32 v%d, s49, v%d" % (U + 2 * (ep & 3) + 1, U + 2 * (ep & 3) + 1))
            for ep in E4: A("v_pk_fma_f32 %s, %s, %s, %s op_sel:[0,0,0] op_sel_hi:[1,0,1] neg_hi:[1,0,0]" % (p2(D + 16 * r + 2 * ep), p2(TMP + 2 * (ep & 3)), p2(U + 2 * (ep & 3)), p2(D + 16 * r + 2 * ep)))
            for ep in E4: A("v_pk_fma_f32 %s, %s, %s, %s op_sel:[1,1,0] op_sel_hi:[0,1,1]" % (p2(D + 16 * r + 2 * ep), p2(TMP + 2 * (ep & 3)), p2(U + 2 * (ep & 3)), p2(D + 16 * r + 2 * ep)))
    A("s_nop 1")
    A("s_branch cf_mul_done")
    A.label("cf_end")
```

```python
import sys, math, os
from asmlib import *
import gen as G
from gen import f32, bf16, TAB, KA, NAME, allreduce_add, stamp, STAMP

KN = NAME + "_kernel"
WS_XN = 0;            SZ_XN = 4 << 20
WS_Y = 4 << 20;       SZ_Y = 4 << 20
WS_WT = 8 << 20;      SZ_WT = 514 * 8192
WS_Z = 13 << 20;      SZ_Z = 4 << 20
WS_S = 17 << 20;      SZ_S = 4 << 20
WS_H = 21 << 20;      SZ_H = 16 * 112 * 8192
WS_FL = 35 << 20;     SZ_FL = 0xe0000
WS_XC = 36 << 20;     SZ_XC = 256 * 4 * 3 * 4096
F1, F2, F3, FB, FS, F2B, FH, FX = 0, 0x8000, 0x10000, 0x18000, 0x20000, 0x28000, 0x40000, 0x60000
LDS_SCR = 128 * 1024
LDS_T2 = 145 * 1024
LDS_SIZE = LDS_T2 + 4096
MF = "v_mfma_f32_16x16x32_bf16"
MF32 = "v_mfma_f32_32x32x16_bf16"
PX, PWR, PWI, PWG, PWU, PWD, POUT, PDBG, PWS = 4, 6, 8, 12, 14, 16, 18, 20, 22
SFL, STAB, SDBG = 24, 28, 32
TOK, WAVE = 70, 3
ENV = os.environ.get
BULK = ENV('BULK', ' sc1')
HLD = ENV('HLD', ' sc1')

def srd(A, d, base, off, size): G.srd(A, d, base, off, size)
def q(f, r): return "%s[%d:%d]" % (f, r, r + 3)
def p2(r): return "v[%d:%d]" % (r, r + 1)

def set_flag(A, soff, vz, vt, val=None, fl=" sc1"):
    A("v_mov_b32 v%d, s%d" % (vt, TOK if val is None else val))
    A("s_mov_b64 exec, 1")
    A("buffer_store_dword v%d, v%d, s[%d:%d], s%d offen%s" % (vt, vz, SFL, SFL + 3, soff, fl))
    A("s_mov_b64 exec, -1")

def set_flag_w0(A, tag, soff, vz, vt):
    A("s_cmp_lg_u32 s%d, 0" % WAVE); A("s_cbranch_scc1 sf_%s" % tag)
    set_flag(A, soff, vz, vt)
    A.label("sf_%s" % tag)

def poll(A, tag, soff, vaddr, vd, nl, width=1, first_hook=None, sleep=2):
    A("s_mov_b32 s68, 0x20000")
    ld = {1: "buffer_load_dword v%d" % vd, 4: "buffer_load_dwordx4 v[%d:%d]" % (vd, vd + 3)}[width]
    def rnd():
        if nl < 64: A("s_bfm_b64 exec, %d, 0" % nl)
        A("%s, v%d, s[%d:%d], s%d offen sc1" % (ld, vaddr, SFL, SFL + 3, soff))
        if nl < 64: A("s_mov_b64 exec, -1")
        A("s_waitcnt vmcnt(0)")
    def chk():
        if width == 4:
            for i in range(4): A("v_xor_b32 v%d, s%d, v%d" % (vd + i, TOK, vd + i))
            A("v_or3_b32 v%d, v%d, v%d, v%d" % (vd, vd, vd + 1, vd + 2)); A("v_or_b32 v%d, v%d, v%d" % (vd, vd, vd + 3))
            A("v_cmp_ne_u32 vcc, 0, v%d" % vd)
        else: A("v_cmp_ne_u32 vcc, s%d, v%d" % (TOK, vd))
        if nl < 64:
            A("s_nop 1")
            A("s_bfm_b64 s[66:67], %d, 0" % nl); A("s_and_b64 vcc, vcc, s[66:67]")
        A("s_nop 3")
    if first_hook:
        rnd(); first_hook(); chk(); A("s_cbranch_vccz pd_%s" % tag)
    A.label("pl_%s" % tag)
    rnd(); chk()
    A("s_cbranch_vccz pd_%s" % tag)
    A("s_sleep %d" % sleep)
    A("s_sub_u32 s68, s68, 1"); A("s_cmp_lg_u32 s68, 0"); A("s_cbranch_scc1 pl_%s" % tag)
    A.label("pd_%s" % tag)

def tab_dma(A, first, lds0, lds1):
    o = TAB.off(first)
    A("s_lshl_b32 s71, s%d, 12" % WAVE); A("s_add_u32 m0, s71, 0x%x" % lds0); A("s_add_u32 s71, s71, 0x%x" % o)
    for p in range(4): A("buffer_load_dwordx4 v3, s[%d:%d], s71 offen%s lds" % (STAB, STAB + 3, " offset:%d" % (p * 1024) if p else ""))
    A("s_lshl_b32 s71, s%d, 10" % WAVE); A("s_add_u32 m0, s71, 0x%x" % lds1); A("s_add_u32 s71, s71, 0x%x" % (o + 16384))
    A("buffer_load_dwordx4 v3, s[%d:%d], s71 offen lds" % (STAB, STAB + 3))
def tab_read(A, dst, name, first, va, d1):
    i = (TAB.off(name) - TAB.off(first)) // 1024
    A("ds_read_b128 %s, v%d offset:%d" % (dst, va, i * 1024 if i < 16 else d1 + (i - 16) * 1024))

def code_srd(A, d, lab):
    A("s_getpc_b64 s[%d:%d]" % (d, d + 1))
    A.label("cs_%s" % lab)
    A("s_add_u32 s%d, s%d, %s-cs_%s" % (d, d, lab, lab)); A("s_addc_u32 s%d, s%d, 0" % (d + 1, d + 1))
    A("s_and_b32 s%d, s%d, 0xffff" % (d + 1, d + 1))
    A("s_mov_b32 s%d, k_done-%s" % (d + 2, lab)); A("s_mov_b32 s%d, 0x20000" % (d + 3))

VWD = 244
def g1_decode(A):
    A("s_and_b32 s40, s2, 7"); A("s_lshr_b32 s41, s2, 3"); A("s_sub_u32 s41, s41, 4")
    A("s_and_b32 s42, s40, 1"); A("s_lshl_b32 s42, s42, 2"); A("s_and_b32 s43, s41, 3"); A("s_add_u32 s42, s42, s43")
    A("s_lshr_b32 s43, s40, 1"); A("s_mul_i32 s43, s43, 7"); A("s_lshr_b32 s44, s41, 2"); A("s_add_u32 s43, s43, s44")
    A("s_and_b32 s46, s%d, 1" % WAVE); A("s_lshr_b32 s47, s%d, 1" % WAVE)
def dmaX(buf):
    o = [["s_add_u32 m0, s64, 0x%x" % (buf * 32768), "buffer_load_dwordx4 v3, s[48:51], s60 offen%s lds" % BULK]]
    for p in range(1, 4): o.append(["buffer_load_dwordx4 v3, s[48:51], s60 offen offset:%d%s lds" % (p * 1024, BULK)])
    o[-1].append("s_add_u32 s60, s60, 0x4000")
    return o
def dmaW(buf, v):
    return [["s_add_u32 m0, s65, 0x%x" % (buf * 32768), "buffer_load_dwordx4 v%d, s[52:55], s61 offen lds" % v],
            ["buffer_load_dwordx4 v%d, s[52:55], s62 offen offset:1024 lds" % v],
            ["buffer_load_dwordx4 v%d, s[56:59], s61 offen offset:2048 lds" % v, "s_add_u32 s61, s61, %d" % (32 * 7168)],
            ["buffer_load_dwordx4 v%d, s[56:59], s62 offen offset:3072 lds" % v, "s_add_u32 s62, s62, %d" % (32 * 7168)]]
def flat(A, l):
    for x in l:
        for y in x: A(y)

def w_touch():
    return ["buffer_load_dword v16, v17, s[36:39], s69 offen", "s_add_u32 s69, s69, %d" % (128 * 7168)]
def w_touch_setup(A):
    A("s_cmp_lt_u32 s%d, 2" % WAVE); A("s_cselect_b32 s36, s%d, s%d" % (PWG, PWU)); A("s_cselect_b32 s37, s%d, s%d" % (PWG + 1, PWU + 1))
    A("s_and_b32 s37, s37, 0xffff"); A("s_mov_b32 s38, %d" % (1024 * 7168)); A("s_mov_b32 s39, 0x20000")
    A("s_cmp_lt_u32 s2, 32"); A("s_cselect_b32 s38, 0, s38")
    A("s_mul_i32 s69, s42, %d" % (16 * 7168)); A("s_lshl_b32 s41, s43, 8"); A("s_add_u32 s69, s69, s41"); A("s_lshl_b32 s41, s46, 7"); A("s_add_u32 s69, s69, s41")
    A("s_add_u32 s69, s69, %d" % (128 * 7168))
    A("v_mul_u32_u24 v17, 7168, v1"); A("v_lshrrev_b32 v16, 4, v1"); A("v_lshl_add_u32 v17, v16, 24, v17")
RB = 65 * 1024
def filt_dma(A, part):
    if part == 0:
        srd(A, 52, PWR, 0, 2048 * 1026); srd(A, 56, PWI, 0, 2048 * 1026)
    A("s_mul_i32 s96, s2, %d" % (64 * 1026))
    def run(d, lds0, first, n):
        A("s_mul_i32 s97, s%d, %d" % (WAVE, n * 1024)); A("s_add_u32 s99, s96, s97")
        for g_ in range(0, n, 4):
            A("s_add_u32 m0, s97, 0x%x" % (lds0 + (first + g_) * 1024)); A("s_add_u32 s98, s99, %d" % ((first + g_) * 1024))
            for p in range(min(4, n - g_)):
                A("buffer_load_dwordx4 v3, s[%d:%d], s98 offen%s lds" % (d, d + 3, " offset:%d" % (p * 1024) if p else ""))
    if part == 0:
        run(52, 0, 0, 16); run(56, RB, 0, 7)
    else:
        run(56, RB, 28, 10)
        A("s_mov_b32 m0, 0x10000"); A("s_add_u32 s98, s96, 0x10000"); A("buffer_load_dwordx4 v3, s[52:55], s98 offen lds")
def g1_addr(A):
    A("v_mov_b32 v4, v%d" % VWD); A("v_lshlrev_b32 v243, 7, v1")
    A("s_lshl_b32 s40, s47, 13"); A("v_add_u32 v5, s40, v3"); A("v_add_u32 v6, 0x10000, v5")
    A("v_bfe_u32 v7, v1, 4, 1"); A("v_lshlrev_b32 v140, 12, v7")
    A("v_bfe_u32 v7, v1, 5, 1"); A("v_lshl_add_u32 v140, v7, 10, v140")
    A("v_bfe_u32 v7, v1, 2, 2"); A("v_lshl_add_u32 v140, v7, 8, v140")
    A("v_and_b32 v7, 3, v1"); A("v_lshl_add_u32 v140, v7, 3, v140"); A("v_add_u32 v140, 0x4000, v140")
    A("v_bfe_u32 v7, v1, 2, 3"); A("s_lshl_b32 s40, s46, 2"); A("v_xor_b32 v7, s40, v7")
    for t in range(4):
        A("v_xor_b32 v141, %d, v7" % t); A("v_lshl_add_u32 v%d, v141, 5, v140" % (8 + t)); A("v_add_u32 v%d, 0x10000, v%d" % (12 + t, 8 + t))

def phase_a(A):
    RS = 2080; XS = LDS_SCR; YT = 96 * 1024
    A("s_load_dwordx16 s[4:19], s[0:1], 0"); A("s_load_dwordx4 s[20:23], s[0:1], 64")
    A("s_memrealtime s[66:67]")
    if not ENV("NOCPF0"):
        code_srd(A, 36, "a_start"); A("s_bfe_u32 s40, s2, 0x30003"); A("s_lshl_b32 s40, s40, 13")
        A("v_and_b32 v5, 15, v0"); A("v_lshlrev_b32 v5, 7, v5"); A("v_lshrrev_b32 v6, 6, v0"); A("v_lshl_add_u32 v5, v6, 11, v5")
        A("s_mov_b64 exec, 0xffff"); A("buffer_load_dword v243, v5, s[36:39], s40 offen"); A("s_mov_b64 exec, -1")
        A.label("a_start")
    G.tab_srd(A, STAB, "a")
    A("v_and_b32 v1, 63, v0"); A("v_lshrrev_b32 v2, 6, v0")
    A("v_readfirstlane_b32 s%d, v2" % WAVE)
    A("v_lshlrev_b32 v3, 4, v1")
    A("s_and_b32 s36, s2, 7"); A("s_bfe_u32 s37, s2, 0x10003"); A("s_lshr_b32 s38, s2, 4")
    A("s_lshl_b32 s39, s38, 3"); A("s_add_u32 s39, s39, s36")
    A("s_lshl_b32 s44, s37, 21"); A("s_lshl_b32 s45, s39, 11"); A("s_add_u32 s63, s44, s45"); A("s_add_u32 s69, s63, 0x40000")
    A("v_lshl_add_u32 v4, v2, 19, v3")
    g1_decode(A)
    A("v_lshrrev_b32 v5, 4, v1"); A("s_lshl_b32 s48, s46, 2"); A("v_add_u32 v5, s48, v5")
    A("v_lshlrev_b32 v6, 1, v5"); A("v_and_b32 v7, 15, v1"); A("v_xor_b32 v6, v6, v7")
    A("s_lshl_b32 s48, s47, 4"); A("v_add_u32 v5, s48, v5")
    A("v_mul_u32_u24 v5, 7168, v5"); A("v_lshl_add_u32 v%d, v6, 4, v5" % VWD)
    A("s_lshl_b32 s61, s43, 8"); A("s_add_u32 s62, s61, %d" % (57344 - 1024))
    A("s_lshl_b32 s64, s%d, 12" % WAVE); A("s_add_u32 s65, s64, 0x4000")
    A("s_lshl_b32 s60, s42, 19"); A("s_add_u32 s60, s60, s64")
    A("s_waitcnt lgkmcnt(0)")
    srd(A, 48, PX, 0, 4 << 20)
    X = 8
    A("buffer_load_dwordx4 v[8:11], v4, s[48:51], s63 offen")
    A("buffer_load_dwordx4 v[12:15], v4, s[48:51], s63 offen offset:1024")
    A("buffer_load_dwordx4 v[16:19], v4, s[48:51], s69 offen")
    A("buffer_load_dwordx4 v[20:23], v4, s[48:51], s69 offen offset:1024")
    srd(A, SDBG, PDBG, 0, 256); srd(A, SFL, PWS, WS_FL, SZ_FL)
    VZ = 245
    A("v_mov_b32 v%d, 0" % VZ)
    A("s_or_b32 s44, s2, s%d" % WAVE); A("s_cmp_lg_u32 s44, 0"); A("s_cbranch_scc1 a_notok")
    A("s_or_b32 s66, s66, 1"); A("v_mov_b32 v246, s66")
    A("s_mov_b64 exec, 1")
    A("buffer_store_dword v246, v%d, s[%d:%d], 0 offen sc1" % (VZ, SDBG, SDBG + 3))
    A("s_mov_b64 exec, -1")
    A.label("a_notok")
    F1r = 64; TW = 72; F2r = 88; F2S = 120
    names = [("f1re", F1r), ("f1im", F1r + 4)]
    for bh in range(2):
        for t in range(2): names.append(("tw%d%d" % (bh, t), TW + 8 * bh + 4 * t))
    for dh in range(2):
        for part in range(2):
            for bh in range(2): names.append(("f2_%d%d%d" % (dh, part, bh), F2r + 16 * dh + 8 * part + 4 * bh))
    for part in range(2):
        for bh in range(2): names.append(("f2s_%d%d" % (part, bh), F2S + 8 * part + 4 * bh))
    TR, XR, XG = 142, 143, 144
    A("v_lshrrev_b32 v7, 2, v1"); A("v_lshlrev_b32 v7, 6, v7"); A("v_and_b32 v%d, 3, v1" % TR)
    A("v_lshl_add_u32 v7, v%d, 3, v7" % TR); A("v_mul_u32_u24 v%d, %d, v2" % (TR, 2 * RS)); A("v_add_u32 v%d, v%d, v7" % (TR, TR)); A("v_add_u32 v%d, 0x%x, v%d" % (TR, XS, TR))
    A("v_and_b32 v7, 7, v1"); A("v_mul_u32_u24 v%d, %d, v7" % (XR, RS)); A("v_lshlrev_b32 v%d, 4, v7" % XG)
    A("v_bfe_u32 v7, v1, 3, 2"); A("v_lshl_add_u32 v%d, v7, 3, v%d" % (XR, XR)); A("v_lshl_add_u32 v%d, v7, 8, v%d" % (XG, XG))
    A("v_lshrrev_b32 v7, 5, v0"); A("v_lshl_add_u32 v%d, v7, 6, v%d" % (XR, XR)); A("v_lshl_add_u32 v%d, v7, 14, v%d" % (XG, XG))
    A("v_add_u32 v%d, 0x%x, v%d" % (XR, XS, XR))
    A("s_lshr_b32 s10, s39, 4"); A("s_lshl_b32 s10, s10, 19"); A("s_and_b32 s11, s39, 15"); A("s_lshl_b32 s11, s11, 10")
    A("s_add_u32 s10, s10, s11"); A("s_lshl_b32 s11, s37, 7"); A("s_add_u32 s10, s10, s11")
    XW = 141
    A("v_mul_u32_u24 v%d, %d, v2" % (XW, 2 * RS)); A("v_add_u32 v%d, v%d, v3" % (XW, XW)); A("v_add_u32 v%d, 0x%x, v%d" % (XW, XS, XW))
    tab_dma(A, "f1re", 112 * 1024, LDS_T2)
    MG, MP, MQ, YB, YR, YG = 136, 137, 138, 139, 146, 145
    A("v_and_b32 v5, 15, v1"); A("v_cmp_eq_u32 vcc, 0, v5"); A("v_mov_b32 v7, 0xffff")
    A("v_cndmask_b32 v%d, -1, 0, vcc" % MG); A("v_cndmask_b32 v%d, 0, v7, vcc" % MP); A("v_lshlrev_b32 v%d, 16, v%d" % (MQ, MP))
    A("v_and_b32 v7, 3, v1"); A("v_lshlrev_b32 v7, 5, v7"); A("v_lshl_add_u32 v%d, v1, 7, v7" % YB); A("v_lshl_add_u32 v%d, v2, 3, v%d" % (YB, YB))
    A("v_add_u32 v%d, 0x%x, v%d" % (YB, YT, YB))
    for r in range(1, 4): A("v_xor_b32 v%d, %d, v%d" % (196 + r, 32 * r, YB))
    A("v_lshlrev_b32 v%d, 4, v0" % YR); A("v_add_u32 v%d, 0x%x, v%d" % (YR, YT, YR))
    A("v_lshrrev_b32 v7, 3, v0"); A("v_lshlrev_b32 v%d, 15, v7" % YG); A("v_and_b32 v7, 3, v7"); A("v_lshlrev_b32 v7, 1, v7")
    A("v_and_b32 v6, 7, v0"); A("v_xor_b32 v7, v7, v6"); A("v_lshl_add_u32 v%d, v7, 4, v%d" % (YG, YG))
    if ENV("WPOS") == "0":
        srd(A, 52, PWG, 0, 1024 * 7168); srd(A, 56, PWU, -2048, 1024 * 7168 + 2048)
        A("s_cmp_lt_u32 s2, 32"); A("s_cselect_b32 s54, 0, s54"); A("s_cselect_b32 s58, 0, s58")
        for b in range(3): flat(A, dmaW(b, VWD))
        A("s_waitcnt vmcnt(17)")
    else: A("s_waitcnt vmcnt(5)")
    stamp(A, 2)
    A("s_mov_b32 s45, 0xffff0000")
    U = 24
    for row in range(2):
        for i in range(8):
            A("v_lshlrev_b32 v%d, 16, v%d" % (U + 16 * row + 2 * i, X + 8 * row + i))
            A("v_and_b32 v%d, s45, v%d" % (U + 16 * row + 2 * i + 1, X + 8 * row + i))
    srd(A, 52, PWG, 0, 1024 * 7168); srd(A, 56, PWU, -2048, 1024 * 7168 + 2048)
    A("s_cmp_lt_u32 s2, 32"); A("s_cselect_b32 s54, 0, s54"); A("s_cselect_b32 s58, 0, s58")
    A0 = A; A = Asm()
    S = [56, 57]; T = [58, 59]; Q = [60, 61]
    def tree(dst):
        for row in range(2):
            b = X + 8 * row
            A("v_pk_add_f32 %s, %s, %s" % (p2(b), p2(b), p2(b + 4))); A("v_pk_add_f32 %s, %s, %s" % (p2(b + 2), p2(b + 2), p2(b + 6)))
        for row in range(2): A("v_pk_add_f32 %s, %s, %s" % (p2(X + 8 * row), p2(X + 8 * row), p2(X + 8 * row + 2)))
        for row in range(2): A("v_add_f32 v%d, v%d, v%d" % (dst[row], X + 8 * row, X + 8 * row + 1))
    for row in range(2):
        for i in range(4): A("v_pk_add_f32 %s, %s, %s" % (p2(X + 8 * row + 2 * i), p2(U + 16 * row + 2 * i), p2(U + 16 * row + 8 + 2 * i)))
    tree(S)
    allreduce_add(A, S, T)
    A("s_mov_b32 s44, 0x%x" % f32(1.0 / 1024))
    for row in range(2): A("v_mul_f32 v%d, s44, v%d" % (S[row], S[row]))
    DV = 164
    sel = lambda row: " op_sel:[0,%d] op_sel_hi:[1,%d] neg_lo:[0,1] neg_hi:[0,1]" % (row, row)
    for row in range(2):
        for i in range(8): A("v_pk_add_f32 %s, %s, v[56:57]%s" % (p2(DV + 16 * row + 2 * i), p2(U + 16 * row + 2 * i), sel(row)))
    for row in range(2):
        for i in range(4): A("v_pk_mul_f32 %s, %s, %s" % (p2(X + 8 * row + 2 * i), p2(DV + 16 * row + 2 * i), p2(DV + 16 * row + 2 * i)))
    for row in range(2):
        for i in range(4): A("v_pk_fma_f32 %s, %s, %s, %s" % (p2(X + 8 * row + 2 * i), p2(DV + 16 * row + 8 + 2 * i), p2(DV + 16 * row + 8 + 2 * i), p2(X + 8 * row + 2 * i)))
    tree(Q)
    A("v_cvt_pk_bf16_f32 v62, v56, v57")
    allreduce_add(A, Q, T)
    A("v_lshlrev_b32 v56, 16, v62"); A("v_and_b32 v57, s45, v62")
    for row in range(2): A("v_mul_f32 v%d, s44, v%d" % (Q[row], Q[row]))
    def rnd2():
        A("v_cvt_pk_bf16_f32 v58, v60, v61"); A("v_lshlrev_b32 v60, 16, v58"); A("v_and_b32 v61, s45, v58")
    rnd2()
    for row in range(2): A("v_add_f32 v%d, 0x%x, v%d" % (Q[row], f32(1e-5), Q[row]))
    rnd2()
    for row in range(2): A("v_sqrt_f32 v%d, v%d" % (Q[row], Q[row]))
    rnd2()
    for row in range(2): A("v_rcp_f32 v%d, v%d" % (Q[row], Q[row]))
    ln = A.items; A = A0
    wd = dmaW(0, VWD) + dmaW(1, VWD) + dmaW(2, VWD)
    if ENV("WPOS") == "0": wd = [[]]
    stride = len(ln) // len(wd)
    for i, it in enumerate(ln):
        A.items.append(it)
        if i % stride == 0 and i // stride < len(wd):
            for y in wd[i // stride]: A(y)
    A("buffer_load_dword v247, v%d, s[%d:%d], 0 offen sc1" % (VZ, SDBG, SDBG + 3))
    for row in range(2):
        b = U + 16 * row
        for i in range(8): A("v_pk_add_f32 %s, %s, v[56:57]%s" % (p2(b + 2 * i), p2(b + 2 * i), sel(row)))
        for i in range(8): A("v_cvt_pk_bf16_f32 v%d, v%d, v%d" % (X + 8 * row + i, b + 2 * i, b + 2 * i + 1))
        for i in range(8):
            A("v_lshlrev_b32 v%d, 16, v%d" % (b + 2 * i, X + 8 * row + i)); A("v_and_b32 v%d, s45, v%d" % (b + 2 * i + 1, X + 8 * row + i))
        for i in range(8): A("v_pk_mul_f32 %s, %s, v[60:61] op_sel:[0,%d] op_sel_hi:[1,%d]" % (p2(b + 2 * i), p2(b + 2 * i), row, row))
        for i in range(8): A("v_cvt_pk_bf16_f32 v%d, v%d, v%d" % (X + 8 * row + i, b + 2 * i, b + 2 * i + 1))
        A("ds_write_b128 v%d, v[%d:%d] offset:%d" % (XW, X + 8 * row, X + 8 * row + 3, row * RS))
        A("ds_write_b128 v%d, v[%d:%d] offset:%d" % (XW, X + 8 * row + 4, X + 8 * row + 7, row * RS + 1024))
    srd(A, 48, PWS, WS_XN, SZ_XN)
    A("s_waitcnt lgkmcnt(0)")
    for row in range(2):
        for bh in range(2):
            for hh in range(2):
                r = X + 8 * row + 4 * bh + 2 * hh
                A("ds_read_b64_tr_b16 v[%d:%d], v%d offset:%d" % (r, r + 1, TR, row * RS + hh * 1024 + bh * 32))
    A("s_waitcnt vmcnt(13)")
    A("s_barrier")
    XO = 148
    for it in range(4):
        A("ds_read_b64 v[%d:%d], v%d offset:%d" % (XO + 4 * it, XO + 4 * it + 1, XR, it * 512))
        A("ds_read_b64 v[%d:%d], v%d offset:%d" % (XO + 4 * it + 2, XO + 4 * it + 3, XR, it * 512 + 32))
    for it in range(4):
        A("s_add_u32 s41, s10, 0x%x" % (it * 8 * 16384))
        A("s_waitcnt lgkmcnt(%d)" % (6 - 2 * it))
        A("buffer_store_dwordx4 v[%d:%d], v%d, s[48:51], s41 offen sc1" % (XO + 4 * it, XO + 4 * it + 3, XG))
    stamp(A, 3)
    A("v_add_u32 v7, 0x%x, v3" % (112 * 1024))
    for nm, r in names: tab_read(A, vr(r, 4), nm, "f1re", 7, LDS_T2 - 112 * 1024)
    A("s_waitcnt lgkmcnt(12)")
    for row in range(2):
        for bh in range(2):
            for part in range(2):
                d = U + 16 * row + 8 * bh + 4 * part
                A("%s %s, %s, %s, 0" % (MF, q("v", d), q("v", X + 8 * row + 4 * bh), q("v", F1r + 4 * part)))
    PP, PQ = 164, 180
    neg = " neg_lo:[1,0,0] neg_hi:[1,0,0]"
    for row in range(2):
        for bh in range(2):
            re = U + 16 * row + 8 * bh; im = re + 4; tc = TW + 8 * bh; ts = tc + 4; t = 56
            for h in (0, 2): A("v_pk_mul_f32 %s, %s, %s" % (p2(t + h), p2(re + h), p2(tc + h)))
            for h in (0, 2): A("v_pk_mul_f32 %s, %s, %s" % (p2(t + 4 + h), p2(im + h), p2(tc + h)))
            for h in (0, 2): A("v_pk_fma_f32 %s, %s, %s, %s" % (p2(t + h), p2(im + h), p2(ts + h), p2(t + h)))
            for h in (0, 2): A("v_pk_fma_f32 %s, %s, %s, %s%s" % (p2(t + 4 + h), p2(re + h), p2(ts + h), p2(t + 4 + h), neg))
            for r in range(4): A("v_cvt_pk_bf16_f32 v%d, v%d, v%d" % (re + r, t + r, t + 4 + r))
            for r in range(4):
                o = 8 * row + 4 * bh + r
                A("v_and_b32 v%d, v%d, v%d" % (X + o, re + r, MG)); A("v_and_b32 v%d, v%d, v%d" % (PP + o, re + r, MP)); A("v_and_b32 v%d, v%d, v%d" % (PQ + o, re + r, MQ))
    A("s_waitcnt vmcnt(0)")
    A("v_readfirstlane_b32 s%d, v247" % TOK)
    A("s_barrier")
    A("s_cmp_lg_u32 s%d, 0" % TOK); A("s_cbranch_scc1 a_tok")
    A("s_mov_b32 s68, 0x20000")
    A.label("a_tokl")
    A("buffer_load_dword v247, v%d, s[%d:%d], 0 offen sc1" % (VZ, SDBG, SDBG + 3)); A("s_waitcnt vmcnt(0)")
    A("v_readfirstlane_b32 s%d, v247" % TOK)
    A("s_sub_u32 s68, s68, 1"); A("s_cmp_eq_u32 s68, 0"); A("s_cbranch_scc1 a_tok")
    A("s_cmp_eq_u32 s%d, 0" % TOK); A("s_cbranch_scc1 a_tokl")
    A.label("a_tok")
    A("s_cmp_lg_u32 s%d, 0" % WAVE); A("s_cbranch_scc1 a_nof1")
    A("s_lshl_b32 s41, s2, 7")
    set_flag(A, 41, VZ, 246)
    A.label("a_nof1")
    stamp(A, 4)
    A("s_cmp_lt_u32 s2, 32"); A("s_cbranch_scc0 a_nfil")
    filt_dma(A, 0)
    A.label("a_nfil")
    A("s_waitcnt lgkmcnt(0)")
    m = []
    for row in range(2):
        for bh in range(2):
            for dh in range(2):
                for part in range(2):
                    d = U + 16 * row + 8 * dh + 4 * part
                    m.append("%s %s, %s, %s, %s" % (MF, q("v", d), q("v", F2r + 16 * dh + 8 * part + 4 * bh), q("v", X + 8 * row + 4 * bh), "0" if bh == 0 else q("v", d)))
        for bh in range(2):
            for dh in range(2):
                for part in range(2):
                    d = U + 16 * row + 8 * dh + 4 * part
                    m.append("%s %s, %s, %s, %s" % (MF, q("v", d), q("v", F2S + 8 * part + 4 * bh), q("v", (PP if dh == 0 else PQ) + 8 * row + 4 * bh), q("v", d)))
    C = Asm(); g1_addr(C)
    s1 = interleave(m, [t for k, t in C.items], 9, 32)
    for k, x in enumerate(m):
        A(x)
        for y in s1[k]: A(y)
    A("s_lshl_b32 s10, s36, 12"); A("s_lshl_b32 s41, s38, 8"); A("s_add_u32 s10, s10, s41"); A("s_lshl_b32 s41, s37, 7"); A("s_add_u32 s10, s10, s41")
    w_touch_setup(A)
    if ENV("AIT") == "2": stamp(A, 7, force=True)
    srd(A, 32, PWS, WS_Y, SZ_Y)
    A("s_nop 4")
    YP = 64
    for row in range(2):
        for dh in range(2):
            for r in range(4):
                re = U + 16 * row + 8 * dh + r
                A("v_cvt_pk_bf16_f32 v%d, v%d, v%d" % (YP + 8 * dh + 2 * r + row, re, re + 4))
    for dh in range(2):
        for r in range(4):
            A("ds_write_b64 v%d, %s offset:%d" % (YB if r == 0 else 196 + r, p2(YP + 8 * dh + 2 * r), dh * 8192))
    A("s_lshl_b32 s63, s2, 7"); A("s_add_u32 s63, s63, %d" % F2)
    A("v_mov_b32 v18, v%d" % YG)
    if ENV("AIT") == "2": stamp(A, 9, force=True)
    A("v_mov_b32 v28, v243"); A("v_mov_b32 v29, 0")
    A("s_waitcnt lgkmcnt(0)")
    if ENV("AIT") == "2": stamp(A, 10, force=True)
    A("s_barrier")
    for it in range(4): A("ds_read_b128 %s, v%d offset:%d" % (q("a", 160 + 4 * it), YR, it * 4096))
    A("s_cmp_lt_u32 s2, 32"); A("s_cbranch_scc1 a_nox")
    A("s_lshl_b32 s44, s42, 12")
    if ENV("AIT"): stamp(A, 8, force=True)
    poll(A, "f1", 44, 243, 246, 32)
    stamp(A, 5)
    for b in range(3): flat(A, dmaX(b))
    for i in range(2):
        for y in w_touch(): A(y)
    A("s_waitcnt vmcnt(10)"); A("s_barrier")
    A.label("a_nox")

def late_stores():
    o = []
    for it in range(4):
        o.append(["buffer_store_dwordx4 %s, v18, s[32:35], s10 offen sc1" % q("a", 160 + 4 * it), "s_add_u32 s10, s10, 0x%x" % (32 * 32768)])
    return o

from gen2b import gemm1, colfft, gemm2

def main():
    G.build_tables(); G.build_tables_inv()
    A = Asm(); G.kernel_head(A, KN)
    A("s_cmp_ge_u32 s2, 256"); A("s_cbranch_scc1 k_done")
    stamp(A, 0); stamp(A, 1, True)
    M = sys.modules[__name__]
    phase_a(A)
    A("s_cmp_lt_u32 s2, 32"); A("s_cbranch_scc1 k_fft")
    gemm1(A, M)
    A.label("k_g2")
    gemm2(A, M)
    A("s_endpgm")
    A.label("k_fft")
    colfft(A, M)
    A("s_branch k_g2")
    A.label("k_done"); A("s_endpgm")
    A.fix()
    stub = open("cdna_kernels/%s.s.ref" % NAME).read().split("\n")
    head = [l for l in stub if l.startswith(";") and "@launch" not in l and "Override" not in l and "grid=ceil" not in l]
    o = "\n".join(head[:12]) + "\n"
    if ENV("ASLIST"): o += "; @launch kernel=%s grid=(256,1,1) block=(256,1,1) lds=%d\n" % (KN, LDS_SIZE)
    else: o += "; @launch grid=(256,1,1) block=(256,1,1) lds=%d\n" % LDS_SIZE
    o += '.amdgcn_target "amdgcn-amd-amdhsa--gfx950"\n'
    o += A.text() + G.kernel_desc(KN, 512, 256, 100)
    o += '.section .rodata,"a"\n.p2align 8\n.type gf_tab,@object\ngf_tab:\n'
    for b in TAB.blocks:
        for i in range(0, 256, 8): o += ".long " + ",".join("0x%x" % x for x in b[i:i + 8]) + "\n"
    o += ".size gf_tab, %d\n" % (len(TAB.blocks) * 1024)
    path = sys.argv[1] if len(sys.argv) > 1 else "cdna_kernels/%s.s" % NAME
    open(path, "w").write(o)
    print("wrote", path, len(o), "bytes")

if __name__ == "__main__":
    main()
```

```python
from asmlib import *
import math, os
import gen as G
from gen import stamp, f32
ENV = os.environ.get
MF = "v_mfma_f32_16x16x32_bf16"
MF32 = "v_mfma_f32_32x32x16_bf16"
def q(f, r): return "%s[%d:%d]" % (f, r, r + 3)
def p2(r): return "v[%d:%d]" % (r, r + 1)

ZL = 128 * 1024
I1, I1S, I2 = 64, 96, 112
DV = [5, 6, 14, 15]
def g2_setup(A, M, DV=DV, t0=7, t1=13):
    W = M.WAVE
    A("s_bfe_u32 s44, s2, 0x20001"); A("s_and_b32 s42, s2, 1"); A("s_lshl_b32 s42, s42, 2"); A("s_bfe_u32 s43, s2, 0x20003"); A("s_add_u32 s42, s42, s43")
    A("s_lshr_b32 s43, s2, 5")
    d0, d1, d2, d3 = DV
    A("v_lshrrev_b32 v%d, 4, v1" % t0); A("v_lshlrev_b32 v%d, 11, v%d" % (t1, t0))
    A("v_lshlrev_b32 v%d, 1, v%d" % (t0, t0)); A("v_and_b32 v%d, 15, v1" % d0); A("v_xor_b32 v%d, v%d, v%d" % (t0, t0, d0))
    A("v_lshl_add_u32 v%d, v%d, 4, v%d" % (d0, t0, t1)); A("v_xor_b32 v%d, 0x80, v%d" % (d1, d0))
    A("v_add_u32 v%d, 0x%x, v%d" % (d2, 2 * 7168, d0)); A("v_add_u32 v%d, 0x%x, v%d" % (d3, 3 * 7168, d1)); A("v_add_u32 v%d, 0x%x, v%d" % (d1, 7168, d1))
    M.srd(A, 48, M.PWD, 0, 3584 * 2048)
    A("s_mul_i32 s45, s44, %d" % (896 * 2048)); A("s_lshl_b32 s61, s43, 8"); A("s_add_u32 s61, s61, s45")
    A("s_add_u32 s62, s61, %d" % (896 * 2048))
    A("s_lshl_b32 s45, s%d, 17" % W); A("s_add_u32 s61, s61, s45")
    A("s_lshl_b32 s64, s%d, 13" % W)
def g2_dma(par, p, DV=DV):
    o = []
    if p % 4 == 0: o.append("s_add_u32 m0, s64, 0x%x" % (par * 32768 + (p >> 2) * 4096))
    o.append("buffer_load_dwordx4 v%d, s[48:51], s61 offen%s lds" % (DV[p & 3], " offset:%d" % ((p & 3) * 1024) if p & 3 else ""))
    if p == 3: o.append("s_add_u32 s61, s61, 0x8000")
    if p == 7:
        o.append("s_add_u32 s61, s61, 0x%x" % (256 * 2048 - 0x8000))
        o += ["s_cmp_ge_u32 s61, s62", "s_cselect_b32 s65, %d, 0" % ((896 - 32) * 2048), "s_cselect_b32 s62, -1, s62", "s_sub_u32 s61, s61, s65"]
        if par == 1: o.append("s_xor_b32 s64, s64, 0x10000")
    return o
def g2_dma_of(s):
    u = (s + 2) & 7; par = u >> 2; p = 2 * (u & 3)
    return g2_dma(par, p), g2_dma(par, p + 1)
def z_fetch(A, M, t0=7, t1=13, zs=56):
    W = M.WAVE
    M.srd(A, zs, M.PWS, M.WS_Z, M.SZ_Z)
    A("v_lshrrev_b32 v%d, 4, v1" % t0); A("v_and_b32 v%d, 7, v1" % t1); A("v_xor_b32 v%d, v%d, v%d" % (t0, t0, t1)); A("v_lshlrev_b32 v%d, 4, v%d" % (t0, t0))
    A("v_lshrrev_b32 v%d, 3, v1" % t1); A("v_lshl_add_u32 v%d, v%d, 8, v%d" % (t0, t1, t0)); A("v_xor_b32 v%d, 64, v%d" % (t1, t0))
    A("s_lshr_b32 s40, s2, 1"); A("s_lshl_b32 s40, s40, 15"); A("s_and_b32 s41, s2, 1"); A("s_lshl_b32 s41, s41, 7"); A("s_add_u32 s40, s40, s41")
    A("s_lshl_b32 s41, s%d, 13" % W); A("s_add_u32 s40, s40, s41")
    A("s_lshl_b32 s41, s%d, 12" % W); A("s_add_u32 m0, s41, 0x%x" % ZL)
    for p in range(4):
        A("buffer_load_dwordx4 v%d, s[%d:%d], s40 offen%s sc1 lds" % (t0 if p % 2 == 0 else t1, zs, zs + 3, " offset:%d" % (p * 1024) if p else ""))
        A("s_add_u32 s40, s40, 1024")
def i_tabs(A, M): M.tab_dma(A, "i1_000", 96 * 1024, 112 * 1024)
def io_addr(A, M, va, vt):
    A("v_lshrrev_b32 v%d, 2, v1" % va); A("v_lshlrev_b32 v%d, 18, v%d" % (va, va)); A("v_lshl_add_u32 v%d, v2, 13, v%d" % (va, va))
    A("v_and_b32 v%d, 3, v1" % vt); A("v_lshl_add_u32 v%d, v%d, 4, v%d" % (va, vt, va))
    A("s_and_b32 s8, s2, 1"); A("s_lshl_b32 s8, s8, 17"); A("s_bfe_u32 s9, s2, 0x20003"); A("s_lshl_b32 s9, s9, 15"); A("s_add_u32 s8, s8, s9")
    A("s_lshr_b32 s9, s2, 5"); A("s_lshl_b32 s9, s9, 8"); A("s_add_u32 s8, s8, s9"); A("s_bfe_u32 s9, s2, 0x20001"); A("s_lshl_b32 s9, s9, 6"); A("s_add_u32 s8, s8, s9")
    A("s_add_u32 s9, s8, 0x1000")
def x_fetch(A, M, va, vt, sd):
    io_addr(A, M, va, vt); M.srd(A, sd, M.PX, 0, 4 << 20)
    for i in range(4): A("buffer_load_dwordx4 %s, v%d, s[%d:%d], s%d offen offset:%d" % (q("a", 240 + 4 * i), va, sd, sd + 3, 8 + (i >> 1), (i & 1) * 2048))
def g2_early(A):
    for s in range(-10, 0):
        d0, d1 = g2_dma_of(s)
        for y in d0 + d1: A(y)
HB = [192, 196, 208, 212, 224, 228, 240, 244]

def gemm1(A, M):
    W = M.WAVE; VWD = M.VWD
    def dma(b): return (M.dmaW(b, 4) + M.dmaX(b)) if ENV('WFIRST', '0') == '1' else (M.dmaX(b) + M.dmaW(b, 4))
    def acc(it, jt):
        return ("v", 32 + (jt * 8 + it) * 4) if jt < 7 else ("a", 128 + it * 4)
    def reads(buf, st):
        base = 64 * st; hi = buf >> 1; off = (buf & 1) * 32768
        o = []; la = []; lb = []
        for it in range(8):
            mat, t = it >> 2, it & 3
            for h in range(2):
                r = base + 4 * it + 2 * h
                la.append("ds_read_b64_tr_b16 a[%d:%d], v%d offset:%d" % (r, r + 1, (12 if hi else 8) + t, off + h * 8192 + mat * 2048))
        for jt in range(8):
            r = base + 32 + 4 * jt
            lb.append("ds_read_b128 a[%d:%d], v%d offset:%d" % (r, r + 3, 6 if hi else 5, off + jt * 1024))
        for i in range(8): o += [lb[i], la[2 * i], la[2 * i + 1]]
        return o
    def mfmas(st, first=False):
        base = 64 * st; o = []
        for jt in range(8):
            for it in range(8):
                f, d = acc(it, jt); dd = q(f, d)
                o.append("%s %s, %s, %s, %s" % (MF, dd, q("a", base + 4 * it), q("a", base + 32 + 4 * jt), "0" if first else dd))
        return o
    def step(i, dmas, do_read, vm, first=False, rd0=1, mid=None, extra=None):
        m = mfmas(i & 1, first)
        s1 = [[] for _ in m]; s2 = [[] for _ in m]
        r0 = rd0 if mid is not None else 0
        if do_read:
            for k, x in enumerate(reads((i + 1) & 3, (i + 1) & 1)): s1[r0 + 2 * k].append(x)
        dl = []
        for b_ in dmas: dl += dma(b_)
        if extra: dl += extra
        fl_ = []
        for g_ in dl:
            if any("exec" in y for y in g_): fl_.append(g_)
            else: fl_ += [[y] for y in g_]
        free = [k for k in range(r0, 64) if not s1[k]]
        nmem = sum(1 for g_ in fl_ if any(y.startswith("buffer") for y in g_))
        if fl_ and len(fl_) <= 30 and nmem <= 12:
            span = int(ENV("G1SPAN", "60")); pos = 0; j = 0
            for idx, g_ in enumerate(fl_):
                if any(y.startswith("buffer") for y in g_):
                    want = r0 + 3 + (j * (span - r0)) // nmem; j += 1
                elif g_[0].startswith("s_add_u32 m0"): want = r0 + 1 + (j * (span - r0)) // nmem
                else: want = 0
                while pos < len(free) - 1 and free[pos] < want: pos += 1
                s2[free[pos]] += g_; pos = min(pos + 1, len(free) - 1)
        else:
            for j, g_ in enumerate(fl_): s2[free[(j * len(free)) // len(fl_)]] += g_
        for k, x in enumerate(m):
            A(x)
            if mid is not None and k == rd0 - 1:
                nv = sum(1 for kk in range(k + 1) for y in s2[kk] if y.startswith("buffer"))
                for y in s2[k]: A(y)
                A("s_waitcnt vmcnt(%d)" % (mid + nv)); A("s_barrier")
                continue
            for y in s2[k] + s1[k]: A(y)
        if vm is not None:
            A("s_waitcnt vmcnt(%d) lgkmcnt(0)" % vm); A("s_barrier")
    for x in reads(0, 0): A(x)
    A("s_waitcnt lgkmcnt(0)")
    stamp(A, 6)
    ls = M.late_stores()
    if ENV("NOLS"): A("s_mov_b32 s34, 0")
    wt = [] if ENV("NOWT") else [M.w_touch()]
    if True:
        step(0, [3, 0], True, 18, first=True, rd0=8, mid=6)
        if ENV("G1IT"): stamp(A, 2)
        step(1, [], True, 18, extra=dma(1) + ls[:2])
        if ENV("G1IT"): stamp(A, 3)
        step(2, [], True, 20, extra=ls[2:] + dma(2))
        A("s_mov_b32 s96, s63")
        M.srd(A, 32, M.PWD, 0, 3584 * 2048)
        A("s_sub_u32 s10, s2, 32"); A("s_lshl_b32 s10, s10, 15")
        if ENV("NOWDT"): A("s_mov_b32 s34, 0")
        A("v_mul_u32_u24 v20, 1280, v2"); A("v_lshl_add_u32 v20, v1, 7, v20"); A("v_cmp_lt_u32 vcc, 9, v1"); A("v_cndmask_b32 v20, v20, 2.0, vcc")
        wt = wt + [["buffer_load_dword v18, v20, s[32:35], s10 offen", "s_add_u32 s10, s10, 5120"]]
        io_addr(A, M, 21, 22); M.srd(A, 12, M.PX, 0, 4 << 20)
        A("s_lshl_b32 s11, s%d, 12" % W); A("s_add_u32 s11, s11, 0x%x" % ZL); A("s_mov_b32 s63, s8"); A("s_add_u32 s44, s8, 0x2000")
        wt = wt + [["s_cmp_ge_u32 s63, s44", "s_cselect_b32 s14, 0, s14", "s_cselect_b32 s11, 0x%x, s11" % M.LDS_T2, "s_mov_b32 m0, s11", "s_add_u32 s11, s11, 1024",
                    "buffer_load_dwordx4 v21, s[12:15], s63 offen lds", "s_add_u32 s63, s63, 2048"]]
        M.code_srd(A, 4, "g1_npf"); A("s_bfe_u32 s71, s2, 0x20003"); A("s_lshl_b32 s71, s71, 13")
        A("v_lshlrev_b32 v23, 7, v1"); A("v_lshl_add_u32 v23, v2, 11, v23"); A("v_lshrrev_b32 v22, 4, v1"); A("v_lshl_add_u32 v23, v22, 24, v23")
        wt = wt + [["buffer_load_dword v19, v23, s[4:7], s71 offen"]]
        step(3, [3], True, 16 + len(wt), extra=wt)
        M.set_flag_w0(A, "f2y", 96, 29, 30)
    if ENV("G1IT"): stamp(A, 4)
    A("s_mov_b32 s45, 6")
    A.raw(".p2align 6")
    A.label("g1_loop")
    for i in range(4): step(i, [i], True, 16 + (len(wt) if i != 2 else 0), extra=(wt + [["s_sub_u32 s45, s45, 1", "s_cmp_lg_u32 s45, 0"]]) if i == 3 else None)
    A("s_cbranch_scc1 g1_loop")
    A.label("g1_npf")
    if ENV("G1IT"): stamp(A, 5)
    A0 = A; A = Asm()
    M.srd(A, 36, M.PWS, M.WS_H, M.SZ_H)
    A("s_bfe_u32 s40, s2, 0x20001"); A("s_lshl_b32 s41, s42, 2"); A("s_add_u32 s41, s41, s40")
    A("s_mul_i32 s40, s40, 7"); A("s_sub_u32 s40, s43, s40")
    A("s_lshl_b32 s55, s41, 3"); A("s_add_u32 s55, s55, s40"); A("s_lshl_b32 s55, s55, 7"); A("s_add_u32 s55, s55, %d" % M.FB)
    A("s_lshl_b32 s40, s40, 1"); A("s_add_u32 s40, s40, s46")
    A("s_mul_i32 s52, s41, 28"); A("s_add_u32 s52, s52, s40"); A("s_lshl_b32 s52, s52, 14"); A("s_lshl_b32 s53, s47, 13"); A("s_add_u32 s52, s52, s53")
    A("s_lshl_b32 s54, s41, 1"); A("s_add_u32 s54, s54, s47"); A("s_lshl_b32 s54, s54, 4"); A("s_add_u32 s54, s54, s40")
    A("s_lshl_b32 s54, s54, 7"); A("s_add_u32 s54, s54, %d" % M.FH)
    A("s_mov_b32 s46, %d" % M.F3)
    hb = [[t] for k, t in A.items]; A = A0
    DT = [24, 25, 26, 27]
    def grp(B):
        o = [[]]
        for k, t in B.items:
            o[-1].append(t)
            if t.startswith("buffer"): o.append([])
        return [x for x in o if x]
    nv = lambda l: sum(1 for x in l for y in x if y.startswith("buffer"))
    B = Asm(); g2_setup(B, M, DT, 22, 31); su = hb + [[t] for k, t in B.items]
    B = Asm(); i_tabs(B, M); tb = grp(B)
    fl = [["s_bfm_b64 exec, 32, 0", "buffer_load_dword v4, v28, s[%d:%d], s46 offen sc1" % (M.SFL, M.SFL + 3), "s_mov_b64 exec, -1"]]
    xr = [["v_lshl_add_u32 v21, v2, 12, v3", "v_add_u32 v21, 0x%x, v21" % ZL] + ["ds_read_b128 %s, v21 offset:%d" % (q("a", 240 + 4 * i), i * 1024) for i in range(4)]]
    IT = [[0, 1, 4, 5], [2, 3, 6, 7]]
    BR = [32, 96, 160, 192]
    def areg(s_, p, k):
        if s_ == 0: return 4 * IT[p][k]
        if s_ == 3: return (224 + 4 * k) if p == 0 else 4 * IT[0][k]
        return 48 + 16 * s_ + 4 * k
    def rdA(s_, p):
        o = []
        for k in range(4):
            it = IT[p][k]; r = areg(s_, p, k)
            for h in range(2): o.append("ds_read_b64_tr_b16 a[%d:%d], v%d offset:%d" % (r + 2 * h, r + 2 * h + 1, (12 if s_ >> 1 else 8) + (it & 3), (s_ & 1) * 32768 + h * 8192 + (it >> 2) * 2048))
        return o
    def rdB(s_): return ["ds_read_b128 %s, v%d offset:%d" % (q("a", BR[s_] + 4 * jt), 6 if s_ >> 1 else 5, (s_ & 1) * 32768 + jt * 1024) for jt in range(8)]
    def mm32(s_, p):
        o = []
        for jt in range(8):
            for k in range(4):
                f, d = acc(IT[p][k], jt)
                o.append("%s %s, %s, %s, %s" % (MF, q(f, d), q("a", areg(s_, p, k)), q("a", BR[s_] + 4 * jt), q(f, d)))
        return o
    vm = ["D30"] * 8 + ["D31"] * 8 + ["t"] * len(wt)
    def vw(tag): return min(63, len(vm) - 1 - max(i for i, t in enumerate(vm) if t == tag))
    def emit(y, tag="o"):
        A(y)
        if y.startswith("buffer"): vm.append(tag)
    def unit(m, rd, ex):
        ex = [y for g_ in ex for y in g_]
        slots = [[] for _ in m]
        for k, x in enumerate(rd): slots[(k * 26) // len(rd)].append(x)
        free = [k for k in range(32) if not slots[k]] or list(range(32))
        for k, y in enumerate(ex): slots[free[(k * len(free)) // len(ex)]].append(y)
        for k, x in enumerate(m):
            A(x)
            for y in slots[k]: emit(y)
    d0 = [g2_dma(0, p, DT) for p in range(8)]
    unit(mm32(0, 0), rdB(1) + rdA(1, 0), su[:len(su) // 2])
    A("s_waitcnt vmcnt(%d) lgkmcnt(0)" % vw("D30")); A("s_barrier")
    unit(mm32(1, 0), rdB(2) + rdA(2, 0), su[len(su) // 2:])
    A("s_waitcnt vmcnt(%d) lgkmcnt(0)" % vw("D31")); A("s_barrier")
    unit(mm32(2, 0), rdB(3) + rdA(3, 0) + rdA(1, 1), d0[:4])
    A("s_waitcnt lgkmcnt(0)")
    unit(mm32(3, 0), rdA(2, 1) + rdA(3, 1) + xr[0], d0[4:])
    A("s_waitcnt vmcnt(%d) lgkmcnt(0)" % vw("t")); A("s_barrier")
    if ENV("G1IT"): stamp(A, 8); stamp(A, 9)
    c0 = math.sqrt(2 / math.pi)
    c1 = -2 * c0 * math.log2(math.e); c2 = c1 * 0.044715
    A("s_mov_b32 s56, 0x%x" % f32(c2)); A("s_mov_b32 s57, s56")
    for i in range(4): A("v_mov_b32 v%d, v%d" % (DV[i], DT[i]))
    A("v_mov_b32 v7, v28")
    A("v_mov_b32 v8, 0x%x" % f32(c1)); A("v_mov_b32 v9, v8"); A("v_mov_b32 v10, 1.0"); A("v_mov_b32 v11, 1.0"); A("v_mov_b32 v12, 0")
    H4 = range(0, 8, 2)
    GU = lambda p, jt: (32 + (jt % 7) * 32 + 8 * p, 48 + (jt % 7) * 32 + 8 * p)
    def S1(p, jt):
        g, u = GU(p, jt); T = 16
        for e in H4: A("v_pk_mul_f32 %s, %s, %s" % (p2(T + e), p2(g + e), p2(g + e)))
        for e in H4: A("v_pk_mul_f32 %s, %s, %s" % (p2(u + e), p2(u + e), p2(g + e)))
        for e in H4: A("v_pk_fma_f32 %s, %s, s[56:57], v[8:9]" % (p2(T + e), p2(T + e)))
        for e in H4: A("v_pk_mul_f32 %s, %s, %s" % (p2(g + e), p2(T + e), p2(g + e)))
    def S2(p, jt):
        g, u = GU(p, jt)
        for e in H4: A("v_pk_add_f32 %s, %s, v[10:11]" % (p2(g + e), p2(g + e)))
    def S3(p, jt):
        g, u = GU(p, jt)
        for e in H4: A("v_pk_mul_f32 %s, %s, %s" % (p2(u + e), p2(u + e), p2(g + e)))
    def out(p, jt):
        g, u = GU(p, jt)
        return ["v_cvt_pk_bf16_f32 v%d, v%d, v%d" % (g + e, u + 2 * e, u + 2 * e + 1) for e in range(4)] + [
            "s_add_u32 s53, s52, 0x%x" % (p * 14 * 16384 + (jt >> 2) * 4096), "buffer_store_dwordx4 %s, v3, s[36:39], s53 offen offset:%d sc1" % (q("v", g), (jt & 3) * 1024)]
    def tr(op, p, jt): return ["%s v%d, v%d" % (op, GU(p, jt)[0] + e, GU(p, jt)[0] + e) for e in range(8)]
    def acc7(p):
        g, u = GU(p, 7)
        return [x for i in range(8) for x in ("v_accvgpr_read_b32 v%d, a%d" % (g + i, 128 + 8 * p + i), "v_accvgpr_read_b32 v%d, a%d" % (u + i, 144 + 8 * p + i))]
    ms = mm32(0, 1) + mm32(1, 1) + mm32(2, 1) + mm32(3, 1)
    late = [g2_dma(1, p) for p in range(8)] + [g2_dma(0, p) for p in range(4)] + tb
    for b_ in range(10):
        if b_ >= 2: S3(0, b_ - 2)
        if 1 <= b_ <= 8: S2(0, b_ - 1)
        if b_ < 8: S1(0, b_)
        t1 = tr("v_exp_f32", 0, b_) if b_ < 8 else []
        t2 = tr("v_rcp_f32", 0, b_ - 1) if 1 <= b_ <= 8 else []
        tt = t2 + t1
        oth = out(0, b_ - 2) if b_ >= 2 else []
        ld = late[2 * b_:2 * b_ + 2] if b_ < 8 else late[16:] if b_ == 8 else []
        if b_ == 6: oth = oth + acc7(0)
        if b_ == 7: ld = ld + [[y.replace("v28", "v7") for y in fl[0]]]
        for k, x in enumerate(tt):
            A(ms.pop(0)); A(x)
            for y in oth[(k * len(oth)) // len(tt):((k + 1) * len(oth)) // len(tt)]: emit(y, "A")
            if ld and k % 4 == 3:
                for y in ld.pop(0): emit(y, "f3" if "v4," in y else "o")
        if not tt:
            for y in oth: emit(y, "A")
        assert not ld
    assert not ms
    stamp(A, 7)
    for jt in range(8):
        if jt == 7:
            for y in acc7(1): A(y)
        S1(1, jt)
        for y in tr("v_exp_f32", 1, jt): A(y)
        if jt:
            S3(1, jt - 1)
            for y in out(1, jt - 1): emit(y, "B")
        S2(1, jt)
        for y in tr("v_rcp_f32", 1, jt): A(y)
        if jt == 1:
            A("s_waitcnt vmcnt(%d)" % vw("f3"))
            A("v_cmp_ne_u32 vcc, s%d, v4" % M.TOK); A("s_nop 1"); A("s_mov_b32 vcc_hi, 0"); A("s_nop 3")
            A("s_cbranch_vccz pd_f3g")
            M.poll(A, "f3g", 46, 7, 4, 32, sleep=4)
            z_fetch(A, M, zs=32); vm += ["Z"] * 4
        if jt == int(ENV("FLAGA", "3")):
            A("s_waitcnt vmcnt(%d)" % vw("A"))
            M.set_flag(A, 54, 12, 4); vm.append("o")
    S3(1, 7)
    for y in out(1, 7): emit(y, "B")
    A("s_waitcnt vmcnt(%d)" % vw("Z"))
    A("s_mov_b32 s58, 1")

def gemm2(A, M):
    W = M.WAVE
    if not ENV("G1IT"): stamp(A, 8)
    io_addr(A, M, 28, 29)
    XR, SR = 176, 192
    def io(i): return "s%d offen offset:%d" % (8 + (i >> 1), (i & 1) * 2048)
    A("s_lshl_b32 s60, s42, 2"); A("s_add_u32 s60, s60, s44")
    A("s_lshl_b32 s99, s60, 10"); A("s_add_u32 s99, s99, %d" % M.FB)
    A("s_lshl_b32 s98, s60, 1"); A("s_lshr_b32 s45, s%d, 1" % W); A("s_add_u32 s98, s98, s45"); A("s_lshl_b32 s98, s98, 11"); A("s_add_u32 s98, s98, %d" % M.FH)
    A("s_mul_i32 s60, s60, %d" % (28 * 16384))
    A("v_mov_b32 v12, 0"); A("v_lshlrev_b32 v13, 7, v1"); A("v_lshl_add_u32 v4, v2, 12, v3")
    A("s_bfm_b64 exec, 14, 0"); A("buffer_load_dword v31, v13, s[%d:%d], s98 offen sc1" % (M.SFL, M.SFL + 3)); A("s_mov_b64 exec, -1")
    M.srd(A, 32, M.PWS, M.WS_H, M.SZ_H)
    HR = 128; NH0 = int(ENV("NH0", "3"))
    def hload(s, jt):
        o = ["buffer_load_dwordx4 %s, v4, s[32:35], s60 offen offset:%d%s" % (q("a", HR + 16 * (s & 7) + 4 * jt), jt * 1024, M.HLD)]
        if jt == 3: o.append("s_add_u32 s60, s60, 0x4000")
        return o
    def h_first():
        for s_ in range(NH0):
            for jt in range(4):
                for y in hload(s_, jt): A(y)
    for i in range(16): A("v_accvgpr_read_b32 v%d, a%d" % (XR + i, 240 + i))
    A("s_barrier")
    ZD, D1, DS, PK, ITW, TT = 32, 48, 80, 112, 128, 144
    A("v_lshrrev_b32 v20, 1, v1"); A("v_and_b32 v20, 7, v20"); A("v_lshlrev_b32 v21, 1, v2"); A("v_xor_b32 v20, v20, v21"); A("v_lshlrev_b32 v20, 4, v20")
    A("v_lshl_add_u32 v20, v1, 7, v20"); A("v_add_u32 v20, 0x%x, v20" % ZL); A("v_xor_b32 v21, 16, v20")
    for k in range(2):
        for dh in range(2): A("ds_read_b128 %s, v%d offset:%d" % (q("v", ZD + 8 * k + 4 * dh), 20 + k, dh * 8192))
    A("v_add_u32 v23, 0x%x, v3" % (96 * 1024))
    for dh in range(2):
        for bh in range(2):
            for part in range(2): M.tab_read(A, q("a", I1 + 16 * bh + 8 * part + 4 * dh), "i1_%d%d%d" % (bh, part, dh), "i1_000", 23, 16384)
    for bh in range(2):
        for part in range(2): M.tab_read(A, q("a", I1S + 8 * bh + 4 * part), "i1s_%d%d" % (bh, part), "i1_000", 23, 16384)
    for bh in range(2):
        for part in range(2): M.tab_read(A, q("v", ITW + 8 * bh + 4 * part), "itw%d%d" % (bh, part), "i1_000", 23, 16384)
    for ah in range(2): M.tab_read(A, q("a", I2 + 4 * ah), "i2_%d" % ah, "i1_000", 23, 16384)
    A("v_and_b32 v22, 15, v1"); A("v_lshlrev_b32 v22, 10, v22"); A("v_lshrrev_b32 v23, 4, v1"); A("v_lshl_add_u32 v22, v23, 4, v22")
    A("s_and_b32 s40, s2, 1"); A("s_lshl_b32 s40, s40, 9"); A("s_lshl_b32 s41, s%d, 7" % W); A("s_add_u32 s40, s40, s41")
    A("s_lshr_b32 s41, s2, 1"); A("s_lshl_b32 s41, s41, 15"); A("s_add_u32 s40, s40, s41"); A("s_add_u32 s41, s40, 0x4000")
    A("s_mov_b32 s69, s58")
    M.srd(A, 56, M.PWS, M.WS_S, M.SZ_S)
    A("s_mov_b64 s[46:47], 0xffff")
    A("s_waitcnt lgkmcnt(6)")
    def mm(d, a, b, c=None):
        A("%s %s, %s, %s, %s" % (MF, q("v", d), a, b, "0" if c is None else q("v", c)))
    for k in range(2):
        for dh in range(2):
            for bh in range(2):
                for part in range(2):
                    d = D1 + 16 * k + 8 * bh + 4 * part
                    mm(d, q("v", ZD + 8 * k + 4 * dh), q("a", I1 + 16 * bh + 8 * part + 4 * dh), None if dh == 0 else d)
        for bh in range(2):
            for part in range(2):
                mm(DS + 16 * k + 8 * bh + 4 * part, q("v", ZD + 8 * k + 4 * part), q("a", I1S + 8 * bh + 4 * part))
    neg = " neg_lo:[1,0,0] neg_hi:[1,0,0]"
    A("s_waitcnt vmcnt(0) lgkmcnt(0)")
    A("v_cmp_ne_u32 vcc, s%d, v31" % M.TOK); A("s_nop 1"); A("s_and_b32 s97, vcc_lo, 0x3fff"); A("s_cbranch_scc1 g2_late")
    h_first()
    A.label("g2_late")
    for k in range(2):
        for x in range(4):
            A("v_cndmask_b32 v%d, v%d, v%d, s[46:47]" % (D1 + 16 * k + 4 * x, D1 + 16 * k + 4 * x, DS + 16 * k + 4 * x))
        for bh in range(2):
            re = D1 + 16 * k + 8 * bh; im = re + 4; tc = ITW + 8 * bh; ts = tc + 4; t = TT + 8 * bh
            for h in (0, 2): A("v_pk_mul_f32 %s, %s, %s" % (p2(t + h), p2(re + h), p2(tc + h)))
            for h in (0, 2): A("v_pk_mul_f32 %s, %s, %s" % (p2(t + 4 + h), p2(im + h), p2(tc + h)))
            for h in (0, 2): A("v_pk_fma_f32 %s, %s, %s, %s%s" % (p2(t + h), p2(im + h), p2(ts + h), p2(t + h), neg))
            for h in (0, 2): A("v_pk_fma_f32 %s, %s, %s, %s" % (p2(t + 4 + h), p2(re + h), p2(ts + h), p2(t + 4 + h)))
            for r in range(4): A("v_cvt_pk_bf16_f32 v%d, v%d, v%d" % (PK + 8 * k + 4 * bh + r, t + r, t + 4 + r))
    for k in range(2):
        for ah in range(2):
            for bh in range(2): mm(D1 + 16 * k + 8 * ah + 4 * bh, q("v", PK + 8 * k + 4 * bh), q("a", I2 + 4 * ah))
    ACC = 32; AF, HR = 0, 128
    RA = 232
    A("v_lshrrev_b32 v24, 2, v1"); A("v_lshlrev_b32 v25, 8, v24"); A("v_and_b32 v26, 3, v1"); A("v_lshl_add_u32 v25, v26, 3, v25")
    A("v_and_b32 v24, 7, v24"); A("s_lshl_b32 s45, s44, 1"); A("v_xor_b32 v24, s45, v24")
    for t in range(8):
        A("v_xor_b32 v26, %d, v24" % t); A("v_lshl_add_u32 v%d, v26, 5, v25" % (RA + t)); A("v_add_u32 v%d, 0x10000, v%d" % (RA + 16 + t, RA + t))
    SO = 160
    for k in range(2):
        for x in range(8): A("v_cvt_pk_bf16_f32 v%d, v%d, v%d" % (SO + 8 * k + x, D1 + 16 * k + 2 * x, D1 + 16 * k + 2 * x + 1))
    A("s_mov_b32 s47, s99")
    A("s_cmp_eq_u32 s97, 0"); A("s_cbranch_scc1 g2_have")
    M.poll(A, "fa", 98, 13, 31, 14, sleep=2)
    h_first()
    A.label("g2_have")
    if not ENV("G1IT") and ENV("RIT") != "2": stamp(A, 9)
    NK = 28; R = 8; LA = int(ENV("G2LA", "6"))
    units = [[(s_, tuple(range(8)))] for s_ in range(NK - R)]
    for d in (3, 2, 1, 0):
        for s_ in range(NK - R, NK, 4): units.append([(s_ + i, (2 * d, 2 * d + 1)) for i in range(4)])
    def frs(u):
        o = []
        for s_, tl in units[u]:
            for t in tl: o.append((s_, t, AF + 32 * (u & 3) + 4 * len(o)))
        return o
    def ureads(u):
        o = []
        for s_, t, r in frs(u):
            for h in range(2):
                o.append("ds_read_b64_tr_b16 a[%d:%d], v%d offset:%d" % (r + 2 * h, r + 2 * h + 1, RA + 16 * ((s_ >> 3) & 1) + t, (s_ & 7) * 8192 + h * 4096))
        return o
    vm = []
    for s_ in range(NH0): vm += [("H", s_)] * 4
    for x in ureads(0) + ureads(1): A(x)
    lg = [0] * 16 + [1] * 16
    A("s_lshl_b32 s53, s2, 2"); A("s_add_u32 s53, s53, s%d" % W); A("s_mul_i32 s52, s53, %d" % (3 * 4096)); A("s_lshl_b32 s53, s53, 9"); A("s_add_u32 s53, s53, %d" % M.FX)
    A("s_lshl_b32 s54, s2, 7"); A("s_add_u32 s54, s54, %d" % M.FS)
    A("s_lshl_b32 s46, s42, 12"); A("s_lshl_b32 s45, s%d, 10" % W); A("s_add_u32 s46, s46, s45"); A("s_add_u32 s46, s46, %d" % M.FS)
    M.srd(A, 36, M.PWS, M.WS_XC, M.SZ_XC)
    A("v_and_b32 v21, 15, v1"); A("v_mul_u32_u24 v16, 80, v21"); A("v_lshrrev_b32 v21, 4, v1"); A("v_lshl_add_u32 v16, v21, 3, v16"); A("v_lshl_add_u32 v16, v2, 13, v16")
    A("v_lshrrev_b32 v21, 2, v1"); A("v_mul_u32_u24 v17, 80, v21"); A("v_and_b32 v21, 3, v1"); A("v_lshl_add_u32 v17, v21, 4, v17"); A("v_lshl_add_u32 v17, v2, 13, v17")
    FL = "s[%d:%d]" % (M.SFL, M.SFL + 3)
    def quick(tag, vd, nl, soff):
        A("v_cmp_ne_u32 vcc, s%d, v%d" % (M.TOK, vd)); A("s_nop 1"); A("s_bfm_b64 s[66:67], %d, 0" % nl); A("s_and_b64 vcc, vcc, s[66:67]"); A("s_nop 3")
        A("s_cbranch_vccz pd_%s" % tag)
        M.poll(A, tag, soff, 13, vd, nl)
    def vwait(tags):
        last = max([i for i, t in enumerate(vm) if t in tags] + [-1])
        return min(63, len(vm) - 1 - last)
    def lwait(u):
        last = max(i for i, t in enumerate(lg) if t == u)
        return min(15, len(lg) - 1 - last)
    cert = 0; hnext = NH0
    UFB = 14 - LA
    for u in range(len(units)):
        ks = [x[0] for x in units[u]]
        need = [("H", k) for k in ks]
        nxt = max(x[0] for x in units[u + 2]) >> 2 if u + 2 < len(units) else 0
        bar = nxt > cert
        if bar: need.append(("W", nxt))
        if u == 14: need += [("S", 0)]
        if u == 6: need += [("B", 0)]
        if u == UFB: need += [("fb", 0)]
        if u == 21: need += [("fs", 0)]
        sd = {22: 3, 24: 2, 26: 1}.get(u); fd = {25: 3, 27: 2}.get(u)
        if fd: need += [("X", fd)]
        if u == 27: need += [("fx3", 0)]
        A("s_waitcnt vmcnt(%d) lgkmcnt(%d)" % (vwait(need), lwait(u)))
        if bar: A("s_barrier"); cert = nxt
        if u == (6 if ENV("DEFB", "0") == "1" else 2):
            assert bar
            A("s_cmp_lg_u32 s%d, 0" % W); A("s_cbranch_scc1 g2_np")
            A("s_cmp_eq_u32 s69, 0"); A("s_cbranch_scc1 g2_np")
            M.set_flag(A, 55, 12, 25)
            A.label("g2_np")
        if u == 14:
            assert bar
            M.set_flag_w0(A, "fs", 54, 12, 25)
        if u == 27:
            A("v_cmp_ne_u32 s[6:7], s%d, v23" % M.TOK); A("s_nop 1")
            for d in (2, 1):
                A("s_bitcmp1_b32 s6, %d" % d); A("s_cselect_b32 s%d, 0x%x, s52" % (60 + d, 0x7fff0000)); A("s_add_u32 s%d, s%d, %d" % (60 + d, 60 + d, d * 4096))
        if u == UFB: quick("fb", 18, 7, 47)
        if u == 21: quick("fs", 19, 8, 46)
        if ENV("FIT") and u in (20, 24): stamp(A, 2 + (u - 20) // 4)
        if ENV("G2IT") and u % 4 == 0 and u < 24: stamp(A, 2 + u // 4)
        rd = ureads(u + 2) if u + 2 < len(units) else []
        fr = frs(u)
        ex = [[] for _ in range(32)]
        def flagst(d):
            return ["s_xor_b32 s45, s53, 0x%x" % (d << 12), "v_mov_b32 v25, s%d" % M.TOK, "s_mov_b64 exec, 1",
                    "buffer_store_dword v25, v12, %s, s45 offen offset:%d sc1" % (FL, (d - 1) * 128), "s_mov_b64 exec, -1"]
        if fd: ex[1].append((flagst(fd), ("F", fd)))
        if u < NK - R:
            iv = (u + 10) >> 2
            if iv < 6:
                d0, d1 = g2_dma_of(u); ex[5].append((d0, ("W", iv))); ex[21].append((d1, ("W", iv)))
            elif u in (14, 15):
                for i in range(2):
                    d0, d1 = g2_dma_of(14 + 2 * (u - 14) + i); ex[5 + 16 * i].append((d0, ("W", 6))); ex[9 + 16 * i].append((d1, ("W", 6)))
            tgt = min(NK, u + 1 + LA + (4 if u >= NK - R - 5 else 0), u + 8)
            n = min(2, tgt - hnext)
            last = u == NK - R - 1
            for i in range(n):
                assert hnext < 14 or u >= UFB
                for jt in range(4): ex[jt if last else (2 + 16 * i + 4 * jt) if n == 2 else (3 + 8 * jt)].append((hload(hnext, jt), ("H", hnext)))
                hnext += 1
            if last:
                assert n <= 1 and hnext == u + 8
                for jt in range(4): ex[8 * jt + 7].append((hload(hnext, jt), ("H", hnext)))
                hnext += 1
        for i in ((2 * u - 20, 2 * u - 19) if u in (10, 11) else ()):
            ex[15 + 16 * (i & 1)].append((["buffer_store_dwordx4 %s, v22, s[56:59], s%d offen offset:%d sc1" % (q("v", SO + 4 * i), 40 + (i & 1), (i >> 1) * 64)], ("S", 0)))
        if u < 3 and ENV("DEFB", "0") == "1":
            for jt in range(8)[3 * u:3 * u + 3]:
                ex[8 + 10 * (jt % 3)].append((["buffer_store_dwordx4 %s, v3, s[32:35], s%d offen offset:%d sc1" % (q("v", HB[jt]), 20 + (jt >> 2), (jt & 3) * 1024)], ("B", 0)))
        if u == UFB - 2: ex[1].append((["s_bfm_b64 exec, 7, 0", "buffer_load_dword v18, v13, %s, s47 offen sc1" % FL, "s_mov_b64 exec, -1"], ("fb", 0)))
        if u == 18: ex[29].append((["s_bfm_b64 exec, 8, 0", "buffer_load_dword v19, v13, %s, s46 offen sc1" % FL, "s_mov_b64 exec, -1"], ("fs", 0)))
        if u == 21:
            ex[0].append((["s_lshl_b32 s6, s42, 19", "s_lshl_b32 s7, s%d, 17" % W, "s_add_u32 s6, s6, s7", "s_lshl_b32 s7, s43, 12", "s_add_u32 s6, s6, s7", "s_lshl_b32 s7, s44, 10", "s_add_u32 s6, s6, s7"], None))
            for i in range(4): ex[3 + 8 * i].append((["buffer_load_dwordx4 %s, v3, s[56:59], s6 offen sc1" % q("v", SR + 4 * i), "s_add_u32 s6, s6, 0x8000"], ("s", 0)))
        if u == 26: ex[1].append((["s_bfm_b64 exec, 3, 0", "buffer_load_dword v23, v13, %s, s53 offen sc1" % FL, "s_mov_b64 exec, -1"], ("fx3", 0)))
        if u == 27: ex[20].append((["s_bfm_b64 exec, 3, 0", "buffer_load_dword v24, v13, %s, s53 offen sc1" % FL, "s_mov_b64 exec, -1"], ("fx", 0)))
        if u == 27:
            for d in (2, 1):
                for i in range(4): ex[2 + 2 * i + 8 * (2 - d)].append((["buffer_load_dwordx4 %s, v3, s[36:39], s%d offen offset:%d sc1" % (q("v", 128 + 16 * d + 4 * i), 60 + d, i * 1024)], ("P", d)))
        if sd:
            b0 = ACC + 32 * sd
            ex[0].append((["s_xor_b32 s45, s2, %d" % (sd << 1), "s_lshl_b32 s45, s45, 2", "s_add_u32 s45, s45, s%d" % W, "s_mul_i32 s45, s45, %d" % (3 * 4096), "s_add_u32 s45, s45, %d" % ((sd - 1) * 4096)], None))
            for i in range(4):
                for e in range(4): ex[4 + 4 * i + e].append((["v_cvt_pk_bf16_f32 v%d, v%d, v%d" % (b0 + 8 * i + e, b0 + 8 * i + 2 * e, b0 + 8 * i + 2 * e + 1)], None))
                ex[8 + 4 * i].append((["buffer_store_dwordx4 %s, v3, s[36:39], s45 offen offset:%d sc1" % (q("v", b0 + 8 * i), i * 1024)], ("X", sd)))
        if not sd:
            flat_ = []
            for i in range(32):
                for ins, tag in ex[i]:
                    if any("exec" in y for y in ins): flat_.append((i, ins, tag))
                    else: flat_ += [(i, [y], tag) for y in ins]
            ex = [[] for _ in range(32)]; nxt_ = 1
            for i, ins, tag in flat_:
                p_ = max(nxt_, i | 1)
                if ins[0].startswith("s_add_u32 m0") and (i | 1) - 2 >= nxt_: p_ = (i | 1) - 2
                p_ = min(p_, 31); ex[p_].append((ins, tag)); nxt_ = p_ + 2
        k = 0
        if len(units[u]) == 1: seq = [(f, jt) for jt in range(4) for f in fr]
        else: seq = [(f, jt) for f in fr for jt in range(4)]
        for i, ((s_, t, r), jt) in enumerate(seq):
            d = q("v", ACC + 16 * t + 4 * jt)
            A("%s %s, %s, %s, %s" % (MF, d, q("a", r), q("a", HR + 16 * (s_ & 7) + 4 * jt), "0" if s_ == 0 else d))
            if i % 2 == 0 and i // 2 < len(rd): A(rd[i // 2]); lg.append(u + 2)
            for ins, tag in ex[i]:
                for y in ins:
                    A(y)
                    if y.startswith("buffer"): vm.append(tag)
    assert hnext == NK
    if ENV("RIT") != "2": stamp(A, 10)
    nl2e = -math.log2(math.e)
    A("s_mov_b32 s56, 0x%x" % f32(nl2e)); A("s_mov_b32 s57, s56"); A("s_mov_b32 s59, 0xffff0000")
    A("v_mov_b32 v26, 1.0"); A("v_mov_b32 v27, 1.0")
    A("s_waitcnt vmcnt(%d)" % vwait([("X", 1)]))
    for y in flagst(1): A(y)
    vm.append(("F", 1))
    if ENV("FIT"): stamp(A, 4)
    UX, US, PB = 64, 96, 128
    H4 = range(0, 8, 2)
    def pl(d):
        A("s_add_u32 s45, s52, %d" % (d * 4096))
        for i in range(4): A("buffer_load_dwordx4 %s, v3, s[36:39], s45 offen offset:%d sc1" % (q("v", PB + 16 * d + 4 * i), i * 1024))
    def unp():
        for i in range(16):
            A("v_lshlrev_b32 v%d, 16, v%d" % (UX + 2 * i, XR + i)); A("v_and_b32 v%d, s59, v%d" % (UX + 2 * i + 1, XR + i))
            A("v_lshlrev_b32 v%d, 16, v%d" % (US + 2 * i, SR + i)); A("v_and_b32 v%d, s59, v%d" % (US + 2 * i + 1, SR + i))
    A("s_waitcnt vmcnt(%d)" % vwait([("fx", 0)]))
    A("v_cmp_ne_u32 s[10:11], s%d, v24" % M.TOK); A("s_nop 1")
    for d in (2, 1, 0):
        if d: A("s_bitcmp1_b32 s6, %d" % d); A("s_cbranch_scc0 fx_have%d" % d)
        A("s_bitcmp1_b32 s10, %d" % d); A("s_cbranch_scc0 pd_fx%d" % d)
        A("s_add_u32 s45, s53, %d" % (128 * d))
        M.poll(A, "fx%d" % d, 45, 13, 24, 1, sleep=1)
        pl(d)
        if d: A.label("fx_have%d" % d)
        if ENV("FIT") and d == 1: stamp(A, 5)
    unp()
    A("s_barrier")
    A("s_waitcnt vmcnt(4)")
    if ENV("FIT"): stamp(A, 6)
    M.srd(A, 12, M.POUT, 0, 4 << 20)
    def addp(t, d, tt):
        for e in range(4):
            A("v_lshlrev_b32 v%d, 16, v%d" % (tt + 2 * e, PB + 16 * d + 4 * t + e)); A("v_and_b32 v%d, s59, v%d" % (tt + 2 * e + 1, PB + 16 * d + 4 * t + e))
        for e in H4: A("v_pk_add_f32 %s, %s, %s" % (p2(ACC + 8 * t + e), p2(ACC + 8 * t + e), p2(tt + e)))
    for t in range(4):
        for d in (2, 1): addp(t, d, 208 + 8 * d)
    for t in range(4):
        b = 8 * t; T = 208 + 8 * (t & 1)
        A("s_waitcnt vmcnt(%d)" % (3 - t))
        if ENV("FIT") and t == 0: stamp(A, 7)
        addp(t, 0, T)
        for e in H4: A("v_pk_mul_f32 %s, %s, s[56:57]" % (p2(T + e), p2(ACC + b + e)))
        for e in range(8): A("v_exp_f32 v%d, v%d" % (T + e, T + e))
        A("s_nop 0")
        for e in H4: A("v_pk_add_f32 %s, %s, v[26:27]" % (p2(T + e), p2(T + e)))
        for e in range(8): A("v_rcp_f32 v%d, v%d" % (T + e, T + e))
        A("s_nop 0")
        for e in H4: A("v_pk_mul_f32 %s, %s, %s" % (p2(ACC + b + e), p2(ACC + b + e), p2(T + e)))
        for e in range(4): A("v_cvt_pk_bf16_f32 v%d, v%d, v%d" % (SR + 4 * t + e, ACC + b + 2 * e, ACC + b + 2 * e + 1))
        for u in range(2):
            A("ds_write_b64 v16, %s offset:%d" % (p2(SR + 4 * t + 2 * u), (2 * (t & 1) + u) * 16 * 80 + (t >> 1) * 32))
    A("s_waitcnt lgkmcnt(0)")
    for i in range(4): A("ds_read_b128 %s, v17 offset:%d" % (q("v", ACC + 4 * i), i * 16 * 80))
    for i in range(4):
        A("s_waitcnt lgkmcnt(%d)" % (3 - i))
        T = 208 + 8 * (i & 1)
        for e in range(4):
            A("v_lshlrev_b32 v%d, 16, v%d" % (T + 2 * e, ACC + 4 * i + e)); A("v_and_b32 v%d, s59, v%d" % (T + 2 * e + 1, ACC + 4 * i + e))
        for e in H4: A("v_pk_fma_f32 %s, %s, %s, %s" % (p2(UX + 8 * i + e), p2(US + 8 * i + e), p2(T + e), p2(UX + 8 * i + e)))
        for e in range(4): A("v_cvt_pk_bf16_f32 v%d, v%d, v%d" % (XR + 4 * i + e, UX + 8 * i + 2 * e, UX + 8 * i + 2 * e + 1))
        A("buffer_store_dwordx4 %s, v28, s[12:15], %s" % (q("v", XR + 4 * i), io(i)))
    if G.STAMP:
        A("s_waitcnt vmcnt(0)")
        stamp(A, 11); A("s_memrealtime s[100:101]"); A("s_waitcnt lgkmcnt(0)")
        G.stamp_out(A, 0, 12, M.PWS, "all")
        A("v_mov_b32 v2, s100"); A("buffer_store_dword v2, v1, s[96:99], 0 offen offset:48")

def colfft(A, M):
    W_ = M.WAVE
    DAT, FA, FE = 128, 160, 176
    W, T1, T2, D, P, TMP = 8, 40, 48, 104, 168, 200
    A("s_waitcnt lgkmcnt(0)")
    M.flat(A, M.late_stores())
    M.srd(A, 36, M.PWS, M.WS_WT, M.SZ_WT)
    A("v_mov_b32 v240, 0"); A("v_lshlrev_b32 v242, 7, v1")
    RB = M.RB
    A("s_barrier")
    if ENV("RIT") == "2": stamp(A, 2)
    M.filt_dma(A, 1)
    if ENV("RIT") == "2": stamp(A, 9)
    A("s_waitcnt vmcnt(11)"); A("s_barrier")
    M.set_flag_w0(A, "f2f", 63, 240, 241)
    if ENV("RIT") == "2": stamp(A, 10)
    A("v_and_b32 v232, 7, v0"); A("v_lshrrev_b32 v233, 3, v0")
    A("v_lshlrev_b32 v235, 16, v233"); A("v_lshl_add_u32 v235, v232, 4, v235")
    A("v_mul_u32_u24 v236, 1026, v232"); A("v_and_b32 v236, -4, v236"); A("v_lshl_add_u32 v236, v233, 4, v236"); A("v_add_u32 v237, 0x%x, v236" % RB)
    A("v_and_b32 v239, 1, v0"); A("v_lshlrev_b32 v239, 4, v239")
    A("s_lshl_b32 s43, s2, 8"); A("s_mov_b32 s48, 0x05040100"); A("s_mov_b32 s49, 0x07060302")
    A("s_lshl_b32 s41, s2, 6"); A("v_add_u32 v200, s41, v1"); A("v_sub_u32 v201, 2048, v200"); A("v_and_b32 v201, 0x7ff, v201")
    A("v_mul_u32_u24 v202, 1026, v200"); A("v_mul_u32_u24 v201, 1026, v201")
    names = []
    for inv in range(2):
        for part in range(2): names.append(("fa_%d%d" % (inv, part), ar(FA + 8 * inv + 4 * part, 4)))
    for ih in range(2): names.append(("fe32_%d" % ih, ar(FE + 4 * ih, 4)))
    for nm, r in names: G.tab_load(A, r, nm, 3, M.STAB, 42)
    A("v_and_b32 v8, 15, v1"); A("v_lshrrev_b32 v9, 4, v1"); A("v_lshlrev_b32 v9, 2, v9")
    for r in range(4):
        A("v_add_u32 v10, %d, v9" % r); A("v_mul_u32_u24 v11, v10, v8"); A("v_lshl_add_u32 v10, v10, 4, v8")
        A("v_cvt_f32_u32 v11, v11"); A("v_cvt_f32_u32 v%d, v10" % (12 + r)); A("v_mul_f32 v11, 0x%x, v11" % f32(1.0 / 256))
        A("v_cos_f32 v%d, v11" % (T1 + r)); A("v_sin_f32 v%d, v11" % (T1 + 4 + r))
    for e in range(1, 8):
        for r in range(4):
            A("v_mul_f32 v%d, 0x%x, v%d" % (16 + r, f32(e / 2048.0), 12 + r))
        for r in range(4):
            A("v_cos_f32 v%d, v%d" % (T2 + 8 * (e - 1) + r, 16 + r)); A("v_sin_f32 v%d, v%d" % (T2 + 8 * (e - 1) + 4 + r, 16 + r))
    A("s_waitcnt vmcnt(%d)" % len(names)); A("s_barrier")
    if ENV("RIT"): stamp(A, 3)
    A("s_cmp_lg_u32 s%d, %d" % (W_, 9 if ENV("NOAB") else 0)); A("s_cbranch_scc1 r_noabl")
    for i, (va, sd, off) in enumerate([(202, 52, 0), (202, 56, 0), (201, 52, 0), (201, 56, 0), (202, 52, 1024), (202, 56, 1024), (201, 52, 1024), (201, 56, 1024)]):
        A("buffer_load_ushort v%d, v%d, s[%d:%d], 0 offen offset:%d" % (208 + i, va, sd, sd + 3, off))
    A.label("r_noabl")
    A("s_lshl_b32 s44, s%d, 13" % W_); A("s_add_u32 s44, s44, %d" % M.F2)
    def rrd(n):
        HL = 104 + 48 * (n & 1)
        for r in range(4):
            for mm_ in range(2):
                for d in range(5): A("ds_read_b32 v%d, v%d offset:%d" % (HL + 12 * r + 6 * mm_ + d, 236 + mm_, (8 * (n >> 1) + 16 * r) * 1026 + (n & 1) * 512 + 4 * d))
    rrd(0)
    for n in range(4):
        HL = 104 + 48 * (n & 1); WO = 8
        A("s_waitcnt lgkmcnt(0)")
        if n + 1 < 4: rrd(n + 1)
        for r in range(4):
            for mm_ in range(2):
                b = HL + 12 * r + 6 * mm_
                for d in range(4): A("v_alignbit_b32 v%d, v%d, v%d, v239" % (b + d, b + d + 1, b + d))
        for c in range(8):
            for r in range(4): A("v_perm_b32 v%d, v%d, v%d, s%d" % (WO + 4 * c + r, HL + 12 * r + 6 + (c >> 1), HL + 12 * r + (c >> 1), 48 + (c & 1)))
            A("s_add_u32 s41, s43, 0x%x" % (((n & 1) << 21) + (n >> 1) * 128 + c * 8192))
            A("buffer_store_dwordx4 %s, v235, s[36:39], s41 offen sc1" % q("v", WO + 4 * c))
    A("s_cmp_lg_u32 s%d, 0" % W_); A("s_cbranch_scc1 r_noab")
    A("s_waitcnt vmcnt(32)")
    for i in range(8): A("v_lshlrev_b32 v%d, 16, v%d" % (208 + i, 208 + i))
    A("v_add_f32 v216, v208, v210"); A("v_sub_f32 v217, v209, v211"); A("v_add_f32 v218, v212, v214"); A("v_sub_f32 v219, v213, v215")
    A("v_add_f32 v220, v216, v218"); A("v_add_f32 v221, v217, v219"); A("v_sub_f32 v222, v216, v218"); A("v_sub_f32 v223, v217, v219")
    for i in range(4): A("v_mul_f32 v%d, 0x3e800000, v%d" % (220 + i, 220 + i))
    A("v_cvt_pk_bf16_f32 v220, v220, v221"); A("v_cvt_pk_bf16_f32 v222, v222, v223")
    A("v_and_b32 v216, 15, v200"); A("v_lshlrev_b32 v216, 4, v216"); A("v_bfe_u32 v217, v200, 4, 2"); A("v_lshl_add_u32 v216, v217, 2, v216")
    A("v_lshrrev_b32 v217, 6, v200"); A("v_lshl_add_u32 v216, v217, 8, v216")
    A("s_mov_b32 s40, 0x%x" % (512 * 8192)); A("s_mov_b32 s41, 0x%x" % (513 * 8192))
    A("buffer_store_dword v220, v216, s[36:39], s40 offen sc1"); A("buffer_store_dword v222, v216, s[36:39], s41 offen sc1")
    A.label("r_noab")
    A("buffer_load_dword v244, v242, s[%d:%d], s44 offen sc1" % (M.SFL, M.SFL + 3))
    if ENV("RIT") == "1": stamp(A, 2)
    A("v_and_b32 v4, 15, v1"); A("v_lshrrev_b32 v5, 4, v1")
    A("v_lshlrev_b32 v6, 6, v4"); A("v_lshl_add_u32 v6, v5, 4, v6")
    for k in range(4):
        A("v_add_u32 v7, %d, v5" % (4 * k)); A("v_xor_b32 v7, v7, v4"); A("v_lshlrev_b32 v7, 4, v7"); A("v_lshl_add_u32 v%d, v5, 8, v7" % (232 + k))
    A("v_lshrrev_b32 v7, 5, v1"); A("v_lshlrev_b32 v7, 3, v7"); A("v_bfe_u32 v236, v1, 4, 1"); A("v_or_b32 v7, v7, v236"); A("v_xor_b32 v7, v7, v4")
    A("v_lshlrev_b32 v7, 4, v7"); A("v_lshl_add_u32 v236, v4, 8, v7"); A("v_lshl_add_u32 v236, v2, 15, v236")
    A("v_add_u32 v4, 0x1000, v3")
    A("s_lshl_b32 s51, s2, 2"); A("s_add_u32 s51, s51, s%d" % W_)
    A("s_and_b32 s41, s51, 15"); A("s_bfe_u32 s42, s51, 0x20004"); A("s_lshl_b32 s42, s42, 7")
    A("s_add_u32 s40, s41, s42")
    A("s_sub_u32 s43, 32, s41"); A("s_cmp_eq_u32 s41, 0"); A("s_cselect_b32 s43, 16, s43")
    A("s_add_u32 s43, s43, 480"); A("s_sub_u32 s43, s43, s42")
    A("s_cmp_ge_u32 s51, 64"); A("s_cselect_b32 s40, s43, s40"); A("s_cselect_b32 s50, -1, 1"); A("s_lshl_b32 s50, s50, 18")
    A("s_lshl_b32 s40, s40, 13")
    M.srd(A, 52, M.PWS, M.WS_Y, M.SZ_Y); M.srd(A, 56, M.PWS, M.WS_Z, M.SZ_Z)
    A("s_waitcnt vmcnt(0)")
    A("v_cmp_ne_u32 vcc, s%d, v244" % M.TOK); A("s_nop 4"); A("s_cbranch_vccz pd_f2")
    M.poll(A, "f2", 44, 242, 244, 64, sleep=4)
    A("s_barrier")
    A("s_add_u32 s63, s63, %d" % (M.F2B - M.F2))
    M.set_flag_w0(A, "f2fb", 63, 240, 241)
    stamp(A, 5)
    A("s_lshl_b32 s41, s51, 15"); A("s_lshl_b32 s42, s%d, 15" % W_)
    for e in range(8):
        A("s_add_u32 m0, s42, %d" % (e * 4096))
        for k in range(4): A("buffer_load_dwordx4 v%d, s[52:55], s41 offen offset:%d sc1 lds" % (232 + k, k * 1024))
        A("s_add_u32 s41, s41, 4096")
    def wload(dst, f, so):
        for e in range(8):
            A("buffer_load_dwordx4 %s, v%d, s[36:39], s%d offen offset:%d sc1" % (q(f, dst + 4 * e), 3 if e < 4 else 4, so, (e & 3) * 1024))
    A("s_mov_b32 s48, 0"); A("s_mov_b32 s49, 0xffff0000")
    def yread():
        for e in range(8): A("ds_read_b128 %s, v237 offset:%d" % (q("a", DAT + 4 * e), e * 4096))
    A("v_mov_b32 v237, v236")
    A("s_cmp_eq_u32 s51, 0"); A("s_cselect_b32 s62, 0x%x, s40" % (512 * 8192))
    A("s_mov_b32 s44, %d" % M.F2B)
    M.poll(A, "f2b", 44, 242, 244, 32, sleep=2, first_hook=yread)
    wload(W, "v", 62)
    A("s_cmp_lg_u32 s51, 0"); A("s_cbranch_scc1 cf_nb")
    A("s_mov_b32 s43, 0x%x" % (513 * 8192))
    wload(208, "a", 43)
    A.label("cf_nb")
    stamp(A, 6)
    A.label("cf_loop")
    A("s_waitcnt lgkmcnt(0)")
    def mm(d, a, b, c=None):
        A("%s %s, %s, %s, %s" % (MF, q("v", d), a, b, "0" if c is None else q("v", c)))
    tctr = [0]
    def tw_quads(dsts, re, tc, conj, TMP=TMP):
        t = TMP + 8 * (tctr[0] % 4); tctr[0] += 1
        im = re + 4; ts = tc + 4
        neg = " neg_lo:[1,0,0] neg_hi:[1,0,0]"
        for h in (0, 2): A("v_pk_mul_f32 %s, %s, %s" % (p2(t + h), p2(re + h), p2(tc + h)))
        for h in (0, 2): A("v_pk_mul_f32 %s, %s, %s" % (p2(t + 4 + h), p2(im + h), p2(tc + h)))
        for h in (0, 2): A("v_pk_fma_f32 %s, %s, %s, %s%s" % (p2(t + h), p2(im + h), p2(ts + h), p2(t + h), neg if conj else ""))
        for h in (0, 2): A("v_pk_fma_f32 %s, %s, %s, %s%s" % (p2(t + 4 + h), p2(re + h), p2(ts + h), p2(t + 4 + h), "" if conj else neg))
        for r in range(4): A("v_cvt_pk_bf16_f32 v%d, v%d, v%d" % (dsts[r], t + r, t + 4 + r))
    def cm_pairs(items):
        ts = []
        for _ in items:
            ts.append(TMP + 2 * (tctr[0] % 8)); tctr[0] += 1
        for (dst, z, c, s_), t in zip(items, ts):
            A("v_pk_mul_f32 %s, %s, %s op_sel:[0,%d] op_sel_hi:[1,%d]" % (p2(t), p2(z), p2(c & ~1), c & 1, c & 1))
        for (dst, z, c, s_), t in zip(items, ts):
            A("v_pk_fma_f32 %s, %s, %s, %s op_sel:[1,%d,0] op_sel_hi:[0,%d,1] neg_lo:[1,0,0]" % (p2(t), p2(z), p2(s_ & ~1), p2(t), s_ & 1, s_ & 1))
        for (dst, z, c, s_), t in zip(items, ts):
            A("v_cvt_pk_bf16_f32 v%d, v%d, v%d" % (dst, t, t + 1))
    for e in range(8):
        mm(D + 8 * e, q("a", DAT + 4 * e), q("a", FA)); mm(D + 8 * e + 4, q("a", DAT + 4 * e), q("a", FA + 4))
    A("s_add_u32 s40, s40, s50")
    A("s_add_u32 s43, s48, 1"); A("s_and_b32 s43, s43, 3"); A("s_lshl_b32 s43, s43, 5"); A("v_xor_b32 v237, s43, v236")
    yread()
    TP = 246
    def tw_in(re, tc, conj, k):
        im = re + 4; ts = tc + 4; t = TP + 4 * (k & 1)
        n0 = " neg_lo:[1,0,0] neg_hi:[1,0,0]"; n2 = " neg_lo:[0,0,1] neg_hi:[0,0,1]"
        for h in (0, 2): A("v_pk_mul_f32 %s, %s, %s" % (p2(t + h), p2(re + h), p2(tc + h)))
        for h in (0, 2): A("v_pk_mul_f32 %s, %s, %s" % (p2(re + h), p2(re + h), p2(ts + h)))
        for h in (0, 2): A("v_pk_fma_f32 %s, %s, %s, %s%s" % (p2(re + h), p2(im + h), p2(tc + h), p2(re + h), "" if conj else n2))
        for h in (0, 2): A("v_pk_fma_f32 %s, %s, %s, %s%s" % (p2(im + h), p2(im + h), p2(ts + h), p2(t + h), n0 if conj else ""))
    def cv_mm(mmf):
        for e in range(9):
            cv = ["v_cvt_pk_bf16_f32 v%d, v%d, v%d" % (P + 4 * e + r, D + 8 * e + 4 + r, D + 8 * e + r) for r in range(4)] if e < 8 else [None] * 4
            for h in range(2):
                for x in cv[2 * h:2 * h + 2]:
                    if x: A(x)
                if e: mmf(e - 1, h)
    for e in range(8): tw_in(D + 8 * e, T1, False, e)
    cv_mm(lambda e, h: mm(D + 8 * e + 4 * h, q("a", FA + 4 * h), q("v", P + 4 * e)))
    for e in range(8):
        if e == 0:
            for r in range(4): A("v_cvt_pk_bf16_f32 v%d, v%d, v%d" % (P + 8 * r, D + r, D + 4 + r))
        else: tw_quads([P + 8 * r + e for r in range(4)], D + 8 * e, T2 + 8 * (e - 1), False)
    def mE(r, ih):
        d = "v[%d:%d]" % (D + 16 * r, D + 16 * r + 15)
        A("%s %s, %s, %s, %s" % (MF32, d, q("a", FE + 4 * ih), q("v", P + 8 * r + 4 * ih), "0" if ih == 0 else d))
    A("s_waitcnt vmcnt(0)")
    unp = []
    for r in range(4):
        for ep in range(8):
            unp += ["v_lshlrev_b32 v%d, 16, v%d" % (TMP + 4 * ep + r, W + 4 * ep + r), "v_and_b32 v%d, s49, v%d" % (W + 4 * ep + r, W + 4 * ep + r)]
    for i in range(8):
        mE(i >> 1, i & 1)
        for x in unp[8 * i:8 * i + 8]: A(x)
    def cm_in(items):
        for k, (z, c, s_) in enumerate(items):
            A("v_pk_mul_f32 %s, %s, %s op_sel:[0,%d] op_sel_hi:[1,%d]" % (p2(TP + 2 * k), p2(z), p2(c & ~1), c & 1, c & 1))
        for k, (z, c, s_) in enumerate(items):
            A("v_pk_fma_f32 %s, %s, %s, %s op_sel:[1,%d,0] op_sel_hi:[0,%d,1] neg_lo:[1,0,0]" % (p2(z), p2(z), p2(s_ & ~1), p2(TP + 2 * k), s_ & 1, s_ & 1))
    A("s_or_b32 s43, s51, s48"); A("s_cmp_eq_u32 s43, 0"); A("s_cbranch_scc1 cf_pack")
    A.label("cf_mul")
    for r in range(4):
        for eh in range(2): cm_in([(D + 16 * r + 2 * ep, TMP + 4 * ep + r, W + 4 * ep + r) for ep in range(4 * eh, 4 * eh + 4)])
    A("s_cbranch_scc1 cf_pack2")
    A.label("cf_mul_done")
    wl = Asm(); A1 = A; A = wl; wload(W, "v", 40); A = A1
    for r in range(5):
        for ih in range(2):
            if r < 4:
                for ep in range(4 * ih, 4 * ih + 4): A("v_cvt_pk_bf16_f32 v%d, v%d, v%d" % (P + 8 * r + ep, D + 16 * r + 2 * ep, D + 16 * r + 2 * ep + 1))
            if r:
                mE(r - 1, ih); A(wl.items[2 * (r - 1) + ih][1])
    for r in range(4):
        A("v_cvt_pk_bf16_f32 v%d, v%d, v%d" % (P + r, D + 16 * r, D + 16 * r + 1))
        for xs in ((1, 2, 3, 4), (5, 6, 7)):
            cm_pairs([(P + 4 * (8 - x) + r, D + 16 * r + 2 * x, T2 + 8 * (7 - x) + r, T2 + 8 * (7 - x) + 4 + r) for x in xs])
    for e in range(8):
        mm(D + 8 * e, q("v", P + 4 * e), q("a", FA + 8)); mm(D + 8 * e + 4, q("v", P + 4 * e), q("a", FA + 12))
    for e in range(8): tw_in(D + 8 * e, T1, True, e)
    def last(e, h):
        mm(D + 8 * e + 4 * h, q("v", P + 4 * e), q("a", FA + 8 + 4 * h))
    cv_mm(last)
    for e in range(8):
        for r in range(4): A("v_cvt_pk_bf16_f32 v%d, v%d, v%d" % (P + 4 * e + r, D + 8 * e + r, D + 8 * e + 4 + r))
    for cc in range(4):
        A("s_cmp_eq_u32 s48, %d" % cc); A("s_cbranch_scc0 cf_o%d" % cc)
        for qq in range(32): A("v_accvgpr_write_b32 a%d, v%d" % (4 * qq + cc, P + qq))
        A.label("cf_o%d" % cc)
    A("s_add_u32 s48, s48, 1"); A("s_cmp_lt_u32 s48, 4"); A("s_cbranch_scc1 cf_loop")
    stamp(A, 7)
    A("v_and_b32 v238, 15, v1"); A("v_lshlrev_b32 v238, 4, v238"); A("v_lshl_add_u32 v238, v5, 20, v238")
    A("s_lshl_b32 s41, s51, 8")
    for r in range(4):
        for e in range(8):
            qq = 4 * e + r
            A("s_add_u32 s42, s41, 0x%x" % ((8 * r + e) * 32768))
            A("buffer_store_dwordx4 %s, v238, s[56:59], s42 offen sc1" % q("a", 4 * qq))
    A("s_waitcnt vmcnt(0) lgkmcnt(0)")
    A("s_lshl_b32 s44, s2, 7"); A("s_add_u32 s44, s44, %d" % M.F3)
    A("s_barrier")
    M.set_flag_w0(A, "f3", 44, 240, 241)
    if ENV("EIT"): stamp(A, 4)
    i_tabs(A, M); g2_setup(A, M); g2_early(A); x_fetch(A, M, 21, 22, 12)
    A("s_mov_b32 s46, %d" % M.F3)
    M.poll(A, "f3", 46, 242, 244, 32, sleep=4)
    z_fetch(A, M)
    A("s_mov_b32 s58, 0"); A("s_mov_b32 s55, 0"); A("s_mov_b32 s52, 0"); A("s_mov_b32 s53, 0"); A("s_mov_b32 s20, 0x7fff0000"); A("s_mov_b32 s21, s20")
    A("s_waitcnt vmcnt(0)")
    A("s_branch cf_end")
    A.label("cf_pack")
    A("s_nop 11")
    SC = M.LDS_SCR
    A("v_and_b32 v238, 15, v1"); A("v_lshl_add_u32 v238, v5, 6, v238")
    A("v_sub_u32 v239, %d, v238" % (2048 - 48 - 1792)); A("v_lshlrev_b32 v238, 3, v238"); A("v_lshlrev_b32 v239, 3, v239")
    A("v_add_u32 v238, 0x%x, v238" % SC); A("v_add_u32 v239, 0x%x, v239" % SC)
    for r in range(4):
        for ep in range(8): A("ds_write_b64 v238, %s offset:%d" % (p2(D + 16 * r + 2 * ep), 8 * (16 * r + 256 * ep)))
    A("s_mov_b64 exec, 1"); A("ds_write_b64 v238, %s offset:%d" % (p2(D), 8 * 2048)); A("s_mov_b64 exec, -1")
    MR = 0
    for r in range(4):
        for ep in range(8): A("ds_read_b64 a[%d:%d], v239 offset:%d" % (MR + 16 * r + 2 * ep, MR + 16 * r + 2 * ep + 1, 8 * (16 * (3 - r) + 256 * (7 - ep))))
    A("s_branch cf_mul")
    A.label("cf_pack2")
    U = TMP + 16
    A("s_waitcnt lgkmcnt(0)")
    for r in range(4):
        for eh in range(2):
            E4 = range(4 * eh, 4 * eh + 4)
            for ep in E4:
                A("v_accvgpr_read_b32 v%d, a%d" % (U + 2 * (ep & 3) + 1, 208 + 4 * ep + r))
                for i in range(2): A("v_accvgpr_read_b32 v%d, a%d" % (TMP + 2 * (ep & 3) + i, MR + 16 * r + 2 * ep + i))
            for ep in E4: A("v_lshlrev_b32 v%d, 16, v%d" % (U + 2 * (ep & 3), U + 2 * (ep & 3) + 1)); A("v_and_b32 v%d, s49, v%d" % (U + 2 * (ep & 3) + 1, U + 2 * (ep & 3) + 1))
            for ep in E4: A("v_pk_fma_f32 %s, %s, %s, %s op_sel:[0,0,0] op_sel_hi:[1,0,1] neg_hi:[1,0,0]" % (p2(D + 16 * r + 2 * ep), p2(TMP + 2 * (ep & 3)), p2(U + 2 * (ep & 3)), p2(D + 16 * r + 2 * ep)))
            for ep in E4: A("v_pk_fma_f32 %s, %s, %s, %s op_sel:[1,1,0] op_sel_hi:[0,1,1]" % (p2(D + 16 * r + 2 * ep), p2(TMP + 2 * (ep & 3)), p2(U + 2 * (ep & 3)), p2(D + 16 * r + 2 * ep)))
    A("s_nop 1")
    A("s_branch cf_mul_done")
    A.label("cf_end")
```
